```python
import torch

def _softmax(x, axis=-1):
    return torch.softmax(x, dim=axis)
def _gelu(x):
    return torch.nn.functional.gelu(x, approximate="tanh")
def _silu(x):
    return torch.nn.functional.silu(x)
def _sigmoid(x):
    return torch.sigmoid(x)
def _layernorm(x, axis=-1, eps=1e-5):
    m = x.mean(dim=axis, keepdim=True)
    v = x.var(dim=axis, keepdim=True, unbiased=False)
    return (x - m) / torch.sqrt(v + eps)
def _scatter_add(tgt, idx, src, axis=0):
    return tgt.clone().index_add_(axis, idx, src)
def _segment_sum(src, seg, n):
    out = torch.zeros((n,) + src.shape[1:], dtype=src.dtype)
    return out.index_add_(0, seg, src)
def _pad(x, pw):
    flat = tuple(v for pair in reversed(pw) for v in pair)
    return torch.nn.functional.pad(x, flat)

kernel_name = 'parallel_sum__ssm_conv_s5__mixer_channel_mlp__prompt'

def setup_inputs():

    _w = (lambda a: (lambda t: t.to(torch.bfloat16) if t.is_floating_point() else t)(torch.as_tensor(a)))
    def _A_setup():
        B, S, D = 1, 2048, 512
        P = D
        Lambda_re = -0.5 * (lambda _x: torch.exp(torch.as_tensor(_x)))((lambda *s: torch.randn(*s, dtype=torch.bfloat16) * 0.2)(P))
        Lambda_im = (lambda *s: torch.randn(*s, dtype=torch.bfloat16) * 0.8)(P) * 1.0
        B_re = (lambda *s: torch.randn(*s, dtype=torch.bfloat16) * 0.2)(P, D) * (D ** -0.5)
        B_im = (lambda *s: torch.randn(*s, dtype=torch.bfloat16) * 0.2)(P, D) * (D ** -0.5)
        C_re = (lambda *s: torch.randn(*s, dtype=torch.bfloat16) * 0.2)(D, P) * (P ** -0.5)
        C_im = (lambda *s: torch.randn(*s, dtype=torch.bfloat16) * 0.2)(D, P) * (P ** -0.5)
        log_dt = (lambda *s: torch.randn(*s, dtype=torch.bfloat16) * 0.2)(P) * 0.3 - 2.0
        Dskip = (lambda *s: torch.randn(*s, dtype=torch.bfloat16) * 0.05)(D)
        return {
            "x": _w((lambda *s: torch.randn(*s, dtype=torch.bfloat16) * 0.05)(B, S, D)),
            "Lambda_re": _w(Lambda_re),
            "Lambda_im": _w(Lambda_im),
            "B_re": _w(B_re),
            "B_im": _w(B_im),
            "C_re": _w(C_re),
            "C_im": _w(C_im),
            "log_dt": _w(log_dt),
            "Dskip": _w(Dskip),
        }
    _A_in = _A_setup()

    def _B_setup():
        B, S, D, F = 1, 2048, 512, 1376
        return {
            "x": _w((lambda *s: torch.randn(*s, dtype=torch.bfloat16) * 0.05)(B, S, D)),
            "w1": _w((lambda *s: torch.randn(*s, dtype=torch.bfloat16) * 1.6)(D, F) * (D ** -0.5)),
            "b1": _w((lambda *s: torch.randn(*s, dtype=torch.bfloat16) * 0.8)(F)),
            "w2": _w((lambda *s: torch.randn(*s, dtype=torch.bfloat16) * 0.05)(F, D) * (F ** -0.5)),
            "b2": _w((lambda *s: torch.randn(*s, dtype=torch.bfloat16) * 0.05)(D)),
        }
    _B_in = _B_setup()

    return {
        "A_x": _A_in["x"],
        "A_Lambda_re": _A_in["Lambda_re"],
        "A_Lambda_im": _A_in["Lambda_im"],
        "A_B_re": _A_in["B_re"],
        "A_B_im": _A_in["B_im"],
        "A_C_re": _A_in["C_re"],
        "A_C_im": _A_in["C_im"],
        "A_log_dt": _A_in["log_dt"],
        "A_Dskip": _A_in["Dskip"],
        "B_x": _B_in["x"],
        "B_w1": _B_in["w1"],
        "B_b1": _B_in["b1"],
        "B_w2": _B_in["w2"],
        "B_b2": _B_in["b2"],
    }

def reference(A_x, A_Lambda_re, A_Lambda_im, A_B_re, A_B_im, A_C_re, A_C_im, A_log_dt, A_Dskip, B_x, B_w1, B_b1, B_w2, B_b2):
    def _A_ref(x, Lambda_re, Lambda_im, B_re, B_im, C_re, C_im, log_dt, Dskip):
        Bsz, L, H = x.shape
        Lam = Lambda_re + 1j * Lambda_im
        Bmat = B_re + 1j * B_im
        Cmat = C_re + 1j * C_im
        dt = torch.exp(log_dt)
        Lam_bar = torch.exp(dt * Lam)
        B_bar = ((Lam_bar - 1.0) / Lam)[:, None] * Bmat
        Bu = torch.einsum("bld,pd->blp", x + 0j, B_bar)
        h = torch.zeros_like(Bu[:, 0, :])
        hs = []
        for t in range(L):
            h = Lam_bar[None, :] * h + Bu[:, t, :]
            hs.append(h)
        hseq = torch.stack(hs, 1)
        y = 2.0 * torch.einsum("blp,dp->bld", hseq, Cmat).real + x * Dskip[None, None, :]
        return y

    def _B_ref(x, w1, b1, w2, b2):
        y = _layernorm(x, axis=-1)
        h = _gelu(torch.einsum("bsd,df->bsf", y, w1) + b1)
        return torch.einsum("bsf,fd->bsd", h, w2) + b2

    x = A_x
    xn = _layernorm(x, axis=-1)
    return x + _A_ref(xn, A_Lambda_re, A_Lambda_im, A_B_re, A_B_im, A_C_re, A_C_im, A_log_dt, A_Dskip) + _B_ref(xn, B_w1, B_b1, B_w2, B_b2)
```

```python
import re

REG_RE = re.compile(r'^(-?)(?:abs\()?([vas])(?:(\d+)|\[(\d+):(\d+)\])\)?$')
TRANS = ('v_exp_f32', 'v_rcp_f32', 'v_rsq_f32', 'v_sqrt_f32', 'v_sin_f32', 'v_cos_f32', 'v_log_f32')


def regs_of(op):
    op = op.strip()
    if op == 'vcc':
        return {('s', 'vcc')}
    if op == 'exec':
        return {('s', 'exec')}
    if op == 'm0':
        return {('s', 'm0')}
    m = REG_RE.match(op)
    if not m:
        return set()
    k = m.group(2)
    if m.group(3) is not None:
        return {(k, int(m.group(3)))}
    return {(k, i) for i in range(int(m.group(4)), int(m.group(5)) + 1)}


class Ins:
    def __init__(self, text):
        self.text = text
        t = text.split(';')[0].strip()
        parts = t.split(None, 1)
        self.mn = parts[0]
        rest = parts[1] if len(parts) > 1 else ''
        ops = [o.strip() for o in re.split(r',(?![^\[]*\])', rest)] if rest else []
        self.mods = ''
        if ops:
            last = ops[-1].split(None, 1)
            ops[-1] = last[0]
            if len(last) > 1:
                self.mods = last[1]
        self.ops = ops
        mn = self.mn
        self.w = set()
        self.r = set()
        self.kind = 'other'
        self.states = 1
        R = [regs_of(o) for o in ops]
        allr = lambda xs: set().union(*xs) if xs else set()
        if mn.startswith('v_mfma'):
            self.kind = 'mfma'
            self.passes = 8 if '32x32' in mn else 4
            self.w = R[0]
            self.rA, self.rB, self.rC = R[1], R[2], R[3]
            self.r = R[1] | R[2] | R[3]
        elif mn.startswith('v_'):
            self.kind = 'valu'
            self.w = set(R[0])
            self.r = allr(R[1:])
            if 'permlane' in mn and 'swap' in mn:
                self.w = R[0] | R[1]
                self.r = R[0] | R[1]
            if mn.startswith('v_fmac') or mn.startswith('v_dot2c') or '_dpp' in mn:
                self.r |= R[0]
            if mn.startswith('v_cndmask') and len(ops) == 3:
                self.r |= {('s', 'vcc')}
            if mn == 'v_nop':
                self.kind = 'other'
        elif mn.startswith('ds_'):
            self.kind = 'ds'
            if mn.startswith('ds_read') or 'permute' in mn or 'swizzle' in mn:
                self.w = R[0]
                self.r = allr(R[1:])
            else:
                self.r = allr(R)
        elif mn.startswith('buffer_') or mn.startswith('global_'):
            self.kind = 'vmem'
            self.lds = ' lds' in (' ' + self.mods)
            if 'load' in mn and not self.lds:
                self.w = R[0]
                self.r = allr(R[1:])
            else:
                self.r = allr(R)
                if self.lds:
                    self.r |= {('s', 'm0')}
            self.wide_store = ('store' in mn) and ('x4' in mn or 'x3' in mn)
            if self.wide_store:
                self.data = R[0] if mn.startswith('buffer_') else R[1]
        elif mn.startswith('s_'):
            self.kind = 'salu'
            if mn == 's_nop':
                self.states = int(ops[0], 0) + 1
            elif mn.startswith(('s_cmp', 's_waitcnt', 's_barrier', 's_branch', 's_cbranch', 's_endpgm', 's_sleep', 's_setprio', 's_bitcmp')):
                self.r = allr(R)
            else:
                self.w = set(R[0]) if R else set()
                self.r = allr(R[1:])
                if 'saveexec' in mn:
                    self.w |= {('s', 'exec')}
        self.trans = mn.replace('_e32', '').replace('_e64', '') in TRANS
        self.dpp = '_dpp' in mn
        self.perml = 'permlane' in mn
        self.rdl = mn.startswith('v_readlane') or mn.startswith('v_readfirstlane')
        self.dot = mn.startswith('v_dot')


def isv(s):
    return {x for x in s if x[0] in 'va'}


def iss(s):
    return {x for x in s if x[0] == 's'}


def need(p, c):
    n = 0
    if p.kind == 'valu':
        pv = isv(p.w)
        ps = iss(p.w)
        if c.kind == 'mfma' and pv & c.r:
            n = max(n, 2)
        if c.kind == 'valu':
            if p.trans and not c.trans and pv & c.r:
                n = max(n, 1)
            if (c.dpp or c.perml) and pv & c.r:
                n = max(n, 2)
            if c.rdl and pv & c.r:
                n = max(n, 1)
            if ps & c.r:
                n = max(n, 4 if c.rdl else 2)
            if p.dot and pv & (c.r | c.w):
                if not (c.mn == p.mn and not (pv & (regs_of(c.ops[1]) | regs_of(c.ops[2])))):
                    n = max(n, 3)
        if p.dot and c.kind in ('vmem', 'ds', 'mfma') and pv & (c.r | c.w):
            n = max(n, 3)
        if c.kind == 'vmem' and ps & c.r:
            n = max(n, 5)
        if c.kind == 'salu' and ps & c.r:
            n = max(n, 1)
    if p.kind == 'mfma':
        big = 12 if p.passes == 8 else 8
        if c.kind == 'mfma':
            if p.w & (c.rA | c.rB):
                n = max(n, big)
            if p.w & c.rC:
                if not (p.w == c.rC and p.passes == c.passes):
                    n = max(n, big - 2)
            elif p.w & c.w:
                n = max(n, big)
        elif c.kind in ('valu', 'vmem', 'ds'):
            if p.w & (c.r | c.w):
                n = max(n, big)
            if c.kind == 'valu' and p.rC & c.w:
                n = max(n, 7 if p.passes == 8 else 3)
    if p.kind == 'salu' and ('s', 'm0') in p.w and c.kind == 'vmem' and getattr(c, 'lds', False):
        n = max(n, 1)
    if p.kind == 'salu' and ('s', 'm0') in p.w and 'addtid' in c.mn:
        n = max(n, 1)
    if p.kind == 'vmem' and getattr(p, 'wide_store', False) and p.data & c.w:
        n = max(n, 2)
    return n


def hazard_pass(lines):
    out = []
    hist = [[]]
    saved = {}
    nops = 0
    W = 24
    for ln in lines:
        s = ln.strip()
        if not s or s.startswith(';') or s.startswith('.'):
            out.append(ln)
            continue
        if s.endswith(':'):
            lab = s[:-1]
            hist = hist + saved.pop(lab, [])
            uniq = []
            for h in hist:
                if h not in uniq:
                    uniq.append(h)
            hist = uniq
            out.append(ln)
            continue
        c = Ins(s)
        req = 0
        for h in hist:
            d = 0
            for p in reversed(h):
                n = need(p, c)
                if n - d > req:
                    req = n - d
                d += p.states
                if d >= W:
                    break
        while req > 0:
            k = min(req, 16)
            nop = Ins('s_nop %d' % (k - 1))
            out.append('    s_nop %d' % (k - 1))
            nops += 1
            hist = [(h + [nop])[-W:] for h in hist]
            req -= k
        out.append(ln)
        hist = [(h + [c])[-W:] for h in hist]
        if c.mn.startswith('s_cbranch') or c.mn == 's_branch':
            saved.setdefault(c.ops[0], []).extend([list(h) for h in hist])
            if c.mn == 's_branch':
                hist = []
        if c.mn == 's_endpgm':
            hist = []
        if not hist:
            hist = [[]] if c.mn not in ('s_branch', 's_endpgm') else []
        if len(hist) > 1:
            uniq = []
            for h in hist:
                if h not in uniq:
                    uniq.append(h)
            hist = uniq
    return out, nops


class Asm:
    def __init__(self):
        self.lines = []
        self.vm = []
        self.lg = []

    def e(self, s):
        self.lines.append('    ' + s)

    def c(self, s):
        self.lines.append('    ; ' + s)

    def label(self, s):
        self.lines.append(s + ':')

    def vmem(self, s, tag='x', opt=False):
        self.e(s)
        self.vm.append((tag, opt))

    def ds(self, s, tag='x'):
        self.e(s)
        self.lg.append(tag)

    def vm_n(self, tags):
        if isinstance(tags, str):
            tags = [tags]
        idx = [i for i, (t, o) in enumerate(self.vm) if t in tags]
        if not idx:
            return None
        last = idx[-1]
        n = sum(1 for (t, o) in self.vm[last + 1:] if not o)
        return n, last

    def wait_vm(self, tags):
        r = self.vm_n(tags)
        if r is None:
            return
        n, last = r
        n = min(n, 63)
        self.e('s_waitcnt vmcnt(%d)' % n)
        self.vm = self.vm[last + 1:]

    def wait_vm0(self):
        self.e('s_waitcnt vmcnt(0)')
        self.vm = []

    def wait_lg(self, tags):
        if isinstance(tags, str):
            tags = [tags]
        idx = [i for i, t in enumerate(self.lg) if t in tags]
        if not idx:
            return
        last = idx[-1]
        n = len(self.lg) - 1 - last
        if n > 15:
            last = len(self.lg) - 1 - 15
            n = 15
        self.e('s_waitcnt lgkmcnt(%d)' % n)
        self.lg = self.lg[last + 1:]

    def wait_lg0(self):
        self.e('s_waitcnt lgkmcnt(0)')
        self.lg = []


def vr(a, n=1):
    return 'v%d' % a if n == 1 else 'v[%d:%d]' % (a, a + n - 1)


def ar(a, n=1):
    return 'a%d' % a if n == 1 else 'a[%d:%d]' % (a, a + n - 1)


def sr(a, n=1):
    return 's%d' % a if n == 1 else 's[%d:%d]' % (a, a + n - 1)
```

```python
import sys, math, struct
from asmlib import *

NAME = 'parallel_sum__ssm_conv_s5__mixer_channel_mlp__prompt'
PROF = '--prof' in sys.argv
OUT = [a for a in sys.argv[1:] if not a.startswith('--')]
OUT = OUT[0] if OUT else 'cdna_kernels/%s.s' % NAME

def f2u(x):
    return '0x%08x' % struct.unpack('<I', struct.pack('<f', x))[0]

WS_EPOCH = 0
WS_F0 = 0x1000
WS_F1 = 0x2000
WS_CSB = 0x4000
WS_SM = 0x6000
WS_SR = 0x8000
WS_G = 0x10000
WS_SG = 0x20000
WS_PROF = 0x40000
WS_WP = 0x100000
WS_HS = 0x400000
WS_SIZE = 0x1000000

XS = 0
WSL = 65536
WSLOT = 22528
BS = 65536
CSX = 155648
RED = 0
REDP = 17408
TR = 69632
TRROW = 320
TRSZ = 32 * TRROW
LDS_BYTES = 160 * 1024

sW, sRB, sJ, sROLE, sR, sC, sTAG, sGW = 4, 5, 6, 7, 8, 9, 10, 11
pX, pLRE, pLIM, pBRE, pBIM, pCRE, pCIM, pLDT, pDSK, pBX, pW1, pB1, pW2, pB2, pOUT, pDBG, pWS = [16 + 2 * i for i in range(17)]
dX, dWS, dM1, dM2, dW2, dOUT = 52, 56, 60, 64, 68, 72
sXO, sMO, sM0X, sM0W = 76, 77, 78, 79
sG = [80, 81, 82, 83]
sWO, sHO, sT0, sT1 = 84, 85, 86, 87
sMSK = [88, 90, 92, 94]
sEXTRA, sCNT = 50, 51
sT2, sT3 = 12, 13
sPC = 14
STAMPS = [96, 98, 100, 18, 20, 22, 24, 26, 28, 30, 34]

vLANE, vL16 = 255, 254

A = Asm()
e = A.e
nstamp = [0]

def stamp(i):
    if PROF:
        e('s_memtime %s' % sr(STAMPS[i], 2))

def srd(d, p, size):
    e('s_mov_b32 %s, %s' % (sr(d), sr(p)))
    e('s_mov_b32 %s, %s' % (sr(d + 1), sr(p + 1)))
    e('s_mov_b32 %s, 0x%x' % (sr(d + 2), size))
    e('s_mov_b32 %s, 0x20000' % sr(d + 3))

def rnd_bf16(dst, src):
    e('v_cvt_pk_bf16_f32 %s, %s, %s' % (vr(dst), vr(src), vr(src)))
    e('v_lshlrev_b32 %s, 16, %s' % (vr(dst), vr(dst)))

def cmul(dr, di, ar_, ai, br, bi):
    e('v_mul_f32 %s, %s, %s' % (vr(dr), vr(ar_), vr(br)))
    e('v_mul_f32 %s, %s, %s' % (vr(di), vr(ar_), vr(bi)))
    e('v_fma_f32 %s, -%s, %s, %s' % (vr(dr), vr(ai), vr(bi), vr(dr)))
    e('v_fma_f32 %s, %s, %s, %s' % (vr(di), vr(ai), vr(br), vr(di)))

def cfma(dr, di, ar_, ai, br, bi, cr, ci):
    e('v_fma_f32 %s, %s, %s, %s' % (vr(dr), vr(ar_), vr(br), vr(cr)))
    e('v_fma_f32 %s, %s, %s, %s' % (vr(di), vr(ar_), vr(bi), vr(ci)))
    e('v_fma_f32 %s, -%s, %s, %s' % (vr(dr), vr(ai), vr(bi), vr(dr)))
    e('v_fma_f32 %s, %s, %s, %s' % (vr(di), vr(ai), vr(br), vr(di)))

def csq(dr, di, ar_, ai):
    e('v_mul_f32 %s, %s, %s' % (vr(dr), vr(ar_), vr(ar_)))
    e('v_mul_f32 %s, %s, %s' % (vr(di), vr(ar_), vr(ai)))
    e('v_fma_f32 %s, -%s, %s, %s' % (vr(dr), vr(ai), vr(ai), vr(dr)))
    e('v_add_f32 %s, %s, %s' % (vr(di), vr(di), vr(di)))

labn = [0]
def newlab(s):
    labn[0] += 1
    return 'L_%s_%d' % (s, labn[0])

e('s_cmp_ge_u32 s2, 256')
e('s_cbranch_scc1 L_end')
if PROF:
    e('s_memrealtime %s' % sr(STAMPS[0], 2))
    stamp(1)
e('s_load_dwordx16 s[16:31], s[0:1], 0')
e('s_load_dwordx16 s[32:47], s[0:1], 64')
e('s_load_dwordx2 s[48:49], s[0:1], 128')
e('s_getpc_b64 %s' % sr(sPC, 2))
A.label('L_pc')
e('v_and_b32 %s, 63, v0' % vr(vLANE))
e('v_lshrrev_b32 v1, 6, v0')
e('v_lshlrev_b32 %s, 4, %s' % (vr(vL16), vr(vLANE)))
e('v_readfirstlane_b32 %s, v1' % sr(sW))
e('s_and_b32 s3, s2, 7')
e('s_lshr_b32 %s, s2, 3' % sr(sT0))
e('s_lshr_b32 %s, %s, 4' % (sr(sRB), sr(sT0)))
e('s_lshl_b32 %s, s3, 1' % sr(sT1))
e('s_add_u32 %s, %s, %s' % (sr(sRB), sr(sRB), sr(sT1)))
e('s_and_b32 %s, %s, 7' % (sr(sJ), sr(sT0)))
e('s_bfe_u32 %s, %s, 0x10003' % (sr(sROLE), sr(sT0)))
e('s_lshr_b32 %s, %s, 3' % (sr(sR), sr(sT0)))
e('s_lshl_b32 %s, s3, 2' % sr(sT1))
e('s_add_u32 %s, %s, %s' % (sr(sR), sr(sR), sr(sT1)))
e('s_mov_b32 %s, %s' % (sr(sC), sr(sJ)))
e('s_lshl_b32 %s, s2, 2' % sr(sGW))
e('s_add_u32 %s, %s, %s' % (sr(sGW), sr(sGW), sr(sW)))
e('s_lshl_b32 %s, %s, 2' % (sr(sT1), sr(sT0)))
e('s_add_u32 %s, %s, %s' % (sr(sT1), sr(sT1), sr(sW)))
e('s_and_b32 %s, %s, 31' % (sr(sT1), sr(sT1)))
e('s_lshl_b32 %s, %s, 10' % (sr(sT1), sr(sT1)))
e('v_add_u32 v2, %s, %s' % (sr(sT1), vr(vL16)))
e('v_min_u32 v2, L_end-L_pc-16, v2')
A.vmem('global_load_dwordx4 v[4:7], v2, %s' % sr(sPC, 2), 'pf')

vHI5, vLO5, vG, vLO4 = 250, 251, 252, 253
e('v_lshrrev_b32 %s, 5, %s' % (vr(vHI5), vr(vLANE)))
e('v_and_b32 %s, 31, %s' % (vr(vLO5), vr(vLANE)))
e('v_lshrrev_b32 %s, 4, %s' % (vr(vG), vr(vLANE)))
e('v_and_b32 %s, 15, %s' % (vr(vLO4), vr(vLANE)))
e('v_lshlrev_b32 v10, 10, %s' % vr(vHI5))
e('v_lshl_add_u32 v10, %s, 4, v10' % vr(vLO5))
e('v_lshlrev_b32 v11, 10, %s' % vr(vLO5))
e('v_lshl_add_u32 v11, %s, 4, v11' % vr(vHI5))
e('v_lshlrev_b32 v12, 13, %s' % vr(vHI5))
e('v_lshl_add_u32 v12, %s, 1, v12' % vr(vLO5))
e('v_add_u32 v13, 4096, v12')
e('v_mov_b32 v14, 0')
e('s_and_b32 %s, %s, 1' % (sr(sT0), sr(sGW)))
e('s_lshr_b32 %s, %s, 7' % (sr(sT1), sr(sGW)))
e('s_lshl_b32 %s, %s, 1' % (sr(sT1), sr(sT1)))
e('s_add_u32 %s, %s, %s' % (sr(sT1), sr(sT1), sr(sT0)))
e('s_lshl_b32 %s, %s, 15' % (sr(sT1), sr(sT1)))
e('s_bfe_u32 %s, %s, 0x50002' % (sr(sT2), sr(sGW)))
e('s_lshl_b32 %s, %s, 5' % (sr(sT2), sr(sT2)))
e('s_add_u32 %s, %s, %s' % (sr(sT1), sr(sT1), sr(sT2)))
e('v_add_u32 v11, %s, v11' % sr(sT1))
sCD, sWD1, sWS1, sWD2, sWS2 = 76, 77, 78, 79, 80
e('s_lshr_b32 %s, %s, 4' % (sr(sT1), sr(sGW)))
e('s_mul_i32 %s, %s, 38' % (sr(sT1), sr(sT1)))
e('s_and_b32 %s, %s, 15' % (sr(sT2), sr(sGW)))
e('s_add_u32 %s, %s, %s' % (sr(sT1), sr(sT1), sr(sT2)))
e('s_lshl_b32 %s, %s, 10' % (sr(sT1), sr(sT1)))
e('s_add_u32 %s, %s, 0x%x' % (sr(sCD), sr(sT1), WS_WP))

def w2_decode(sq, sdst, ssrc):
    e('s_and_b32 %s, %s, 1' % (sr(sT0), sr(sq)))
    e('s_lshr_b32 %s, %s, 1' % (sr(sT1), sr(sq)))
    e('s_mul_i32 %s, %s, 5958' % (sr(sT2), sr(sT1)))
    e('s_lshr_b32 %s, %s, 16' % (sr(sT2), sr(sT2)))
    e('s_mul_i32 %s, %s, 11' % (sr(sT3), sr(sT2)))
    e('s_sub_u32 %s, %s, %s' % (sr(sT1), sr(sT1), sr(sT3)))
    e('s_mul_i32 %s, %s, 19' % (sr(sT3), sr(sT2)))
    e('s_add_u32 %s, %s, %s' % (sr(sT3), sr(sT3), sr(sT1)))
    e('s_lshl_b32 %s, %s, 1' % (sr(sT3), sr(sT3)))
    e('s_add_u32 %s, %s, %s' % (sr(sT3), sr(sT3), sr(sT0)))
    e('s_lshl_b32 %s, %s, 10' % (sr(sT3), sr(sT3)))
    e('s_add_u32 %s, %s, 0x%x' % (sr(sdst), sr(sT3), WS_WP + 16 * 1024))
    e('s_and_b32 %s, %s, 7' % (sr(sT3), sr(sT2)))
    e('s_mul_i32 %s, %s, 11' % (sr(sT3), sr(sT3)))
    e('s_add_u32 %s, %s, %s' % (sr(sT3), sr(sT3), sr(sT1)))
    e('s_lshl_b32 %s, %s, 14' % (sr(sT3), sr(sT3)))
    e('s_lshr_b32 %s, %s, 3' % (sr(sT2), sr(sT2)))
    e('s_lshl_b32 %s, %s, 1' % (sr(sT2), sr(sT2)))
    e('s_add_u32 %s, %s, %s' % (sr(sT2), sr(sT2), sr(sT0)))
    e('s_lshl_b32 %s, %s, 6' % (sr(sT2), sr(sT2)))
    e('s_add_u32 %s, %s, %s' % (sr(ssrc), sr(sT3), sr(sT2)))

w2_decode(sGW, sWD1, sWS1)
e('s_lshl_b32 s3, %s, 3' % sr(sRB))
e('s_add_u32 s3, s3, %s' % sr(sJ))
e('s_lshl_b32 s3, s3, 2')
e('s_add_u32 s3, s3, %s' % sr(sW))
e('s_lshl_b32 %s, %s, 10' % (sr(sT0), sr(sROLE)))
e('s_add_u32 %s, s3, %s' % (sr(sEXTRA), sr(sT0)))
e('s_add_u32 s3, s3, 1024')
e('s_min_u32 s3, s3, 1407')
w2_decode(3, sWD2, sWS2)

e('s_waitcnt lgkmcnt(0)')
srd(dX, pX, 2048 * 1024)
srd(dWS, pWS, WS_SIZE)
srd(dW2, pW2, 1376 * 1024)
A.vmem('buffer_load_dword v16, v14, %s, 0 offen sc1' % sr(dWS, 4), 'epoch')
e('s_lshl_b32 %s, %s, 11' % (sr(sT0), sr(sGW)))
A.vmem('buffer_load_dwordx4 v[20:23], v10, %s, %s offen' % (sr(dX, 4), sr(sT0)), 'p0x')
A.vmem('buffer_load_dwordx4 v[24:27], v10, %s, %s offen offset:512' % (sr(dX, 4), sr(sT0)), 'p0x')
e('s_cmp_lt_u32 %s, 512' % sr(sGW))
e('s_cselect_b32 %s, %s, %s' % (sr(88), sr(pBRE), sr(pBIM)))
e('s_cselect_b32 %s, %s, %s' % (sr(89), sr(pBRE + 1), sr(pBIM + 1)))
e('s_and_b32 %s, %s, 511' % (sr(sT0), sr(sGW)))
e('s_lshl_b32 %s, %s, 10' % (sr(sT0), sr(sT0)))
e('v_add_u32 v15, %s, %s' % (sr(sT0), vr(vL16)))
A.vmem('global_load_dwordx4 v[28:31], v15, s[88:89]', 'p0b')
e('s_bitcmp0_b32 %s, 1' % sr(sGW))
e('s_cselect_b32 %s, %s, %s' % (sr(90), sr(pCRE), sr(pCIM)))
e('s_cselect_b32 %s, %s, %s' % (sr(91), sr(pCRE + 1), sr(pCIM + 1)))
A.vmem('global_load_dwordx4 v[32:35], v11, s[90:91]', 'p0c')
for jx in range(8):
    A.vmem('buffer_load_ushort v%d, v%d, %s, %s offen offset:%d' % (36 + jx, 12 + jx // 4, sr(dW2, 4), sr(sWS1), (jx % 4) * 1024), 'p0w')
lab = newlab('noex')
e('s_cmp_ge_u32 %s, 384' % sr(sEXTRA))
e('s_cbranch_scc1 %s' % lab)
for jx in range(8):
    A.vmem('buffer_load_ushort v%d, v%d, %s, %s offen offset:%d' % (44 + jx, 12 + jx // 4, sr(dW2, 4), sr(sWS2), (jx % 4) * 1024), 'p0w', opt=True)
A.label(lab)
sCD2, sWD1b, sWD2b = 92, 93, 94
e('s_mov_b32 %s, %s' % (sr(sCD2), sr(sCD)))
e('s_mov_b32 %s, %s' % (sr(sWD1b), sr(sWD1)))
e('s_mov_b32 %s, %s' % (sr(sWD2b), sr(sWD2)))

e('s_lshl_b32 %s, %s, 17' % (sr(sXO), sr(sRB)))
e('s_lshl_b32 %s, %s, 12' % (sr(sM0X), sr(sW)))
vSW0, vSW1, vL3 = 247, 248, 249
e('v_and_b32 v1, 7, %s' % vr(vLANE))
e('v_xor_b32 %s, v1, %s' % (vr(vSW0), vr(vG)))
e('v_lshlrev_b32 %s, 4, %s' % (vr(vSW0), vr(vSW0)))
e('v_xor_b32 %s, 64, %s' % (vr(vSW1), vr(vSW0)))
e('v_lshrrev_b32 %s, 3, %s' % (vr(vL3), vr(vLANE)))
vFA0, vFA1 = 245, 246
e('v_lshrrev_b32 v1, 1, %s' % vr(vLO4))
e('v_xor_b32 v1, v1, %s' % vr(vG))
e('v_lshlrev_b32 v1, 4, v1')
e('v_lshl_add_u32 %s, %s, 7, v1' % (vr(vFA0), vr(vLO4)))
e('v_xor_b32 %s, 64, %s' % (vr(vFA1), vr(vFA0)))


def phase0_compute():
    A.wait_vm('p0x')
    e('v_readfirstlane_b32 %s, v16' % sr(sTAG))
    e('v_mov_b32 v17, 0x3f803f80')
    e('v_mov_b32 v60, 0')
    e('v_mov_b32 v61, 0')
    e('v_mov_b32 v62, 0')
    e('s_add_u32 %s, %s, 1' % (sr(sTAG), sr(sTAG)))
    for i in range(8):
        e('v_dot2_f32_bf16 v60, v%d, v17, v60' % (20 + i))
        e('v_dot2_f32_bf16 v61, v%d, v%d, v61' % (20 + i, 20 + i))
    A.wait_vm('p0b')
    for i in range(4):
        e('v_dot2_f32_bf16 v62, v%d, v17, v62' % (28 + i))
    for sh in (1, 2, 4, 8):
        for r in (60, 61, 62):
            e('v_add_f32_dpp v%d, v%d, v%d row_shr:%d row_mask:0xf bank_mask:0xf bound_ctrl:0' % (r, r, r, sh))
    for r in (60, 61, 62):
        e('v_add_f32_dpp v%d, v%d, v%d row_bcast:15 row_mask:0xa bank_mask:0xf' % (r, r, r))
    e('v_add_f32_dpp v62, v62, v62 row_bcast:31 row_mask:0xc bank_mask:0xf')
    e('v_mul_f32 v60, %s, v60' % f2u(1.0 / 512))
    e('v_mul_f32 v61, %s, v61' % f2u(1.0 / 512))
    e('v_fma_f32 v61, -v60, v60, v61')
    e('v_max_f32 v61, 0, v61')
    rnd_bf16(66, 60)
    rnd_bf16(63, 61)
    e('v_add_f32 v63, %s, v63' % f2u(1e-5))
    rnd_bf16(63, 63)
    e('v_sqrt_f32 v63, v63')
    rnd_bf16(63, 63)
    e('v_rcp_f32 v67, v63')
    e('v_sub_f32 v68, v60, v66')
    e('v_mul_f32 v68, v68, v67')
    rnd_bf16(68, 68)
    e('v_fma_f32 v64, v68, v63, v66')
    e('v_mul_f32 v69, v61, v67')
    e('v_mul_f32 v69, v69, v67')
    rnd_bf16(69, 69)
    e('v_add_f32 v69, %s, v69' % f2u(1e-5))
    rnd_bf16(69, 69)
    e('v_sqrt_f32 v69, v69')
    rnd_bf16(69, 69)
    e('v_mul_f32 v65, v69, v63')
    e('s_lshl_b32 %s, %s, 1' % (sr(sT0), sr(sGW)))
    e('v_add_u32 v70, %s, %s' % (sr(sT0), vr(vHI5)))
    e('v_lshlrev_b32 v71, 4, v70')
    e('v_and_b32 v72, 0xffffffe0, v70')
    e('v_and_b32 v73, 15, v70')
    e('v_lshl_or_b32 v72, v73, 1, v72')
    e('v_bfe_u32 v73, v70, 4, 1')
    e('v_or_b32 v72, v72, v73')
    e('v_lshlrev_b32 v72, 2, v72')
    e('s_mov_b32 exec_lo, 0x80000000')
    e('s_mov_b32 exec_hi, 0x80000000')
    e('s_mov_b32 %s, 0x%x' % (sr(sT0), WS_G))
    e('s_mov_b32 %s, 0x%x' % (sr(sT1), WS_SM))
    e('s_mov_b32 %s, 0x%x' % (sr(sT2), WS_SR))
    A.vmem('buffer_store_dwordx4 v[64:67], v71, %s, %s offen sc1' % (sr(dWS, 4), sr(sT0)), 'p0s')
    A.vmem('buffer_store_dword v66, v72, %s, %s offen sc1' % (sr(dWS, 4), sr(sT1)), 'p0s')
    A.vmem('buffer_store_dword v67, v72, %s, %s offen sc1' % (sr(dWS, 4), sr(sT2)), 'p0s')
    e('s_mov_b32 exec_lo, 0')
    e('s_lshl_b32 %s, %s, 2' % (sr(sT0), sr(sGW)))
    e('s_add_u32 %s, %s, 0x%x' % (sr(sT0), sr(sT0), WS_CSB))
    A.vmem('buffer_store_dword v62, v14, %s, %s offen sc1' % (sr(dWS, 4), sr(sT0)), 'p0s')
    e('s_mov_b64 exec, -1')
    A.wait_vm(['p0c', 'p0w'])
    A.vmem('buffer_store_dwordx4 v[32:35], %s, %s, %s offen sc1' % (vr(vL16), sr(dWS, 4), sr(sCD2)), 'p0s')
    for i in range(4):
        e('v_lshl_or_b32 v%d, v%d, 16, v%d' % (52 + i, 37 + 2 * i, 36 + 2 * i))
    A.vmem('buffer_store_dwordx4 v[52:55], %s, %s, %s offen sc1' % (vr(vL16), sr(dWS, 4), sr(sWD1b)), 'p0s')
    lab = newlab('noex')
    e('s_cmp_ge_u32 %s, 384' % sr(sEXTRA))
    e('s_cbranch_scc1 %s' % lab)
    for i in range(4):
        e('v_lshl_or_b32 v%d, v%d, 16, v%d' % (56 + i, 45 + 2 * i, 44 + 2 * i))
    A.vmem('buffer_store_dwordx4 v[56:59], %s, %s, %s offen sc1' % (vr(vL16), sr(dWS, 4), sr(sWD2b)), 'p0s', opt=True)
    A.label(lab)


def f0_publish(vt):
    lab = newlab('f0p')
    e('s_cmp_lg_u32 %s, 0' % sr(sW))
    e('s_cbranch_scc1 %s' % lab)
    e('s_lshl_b32 %s, s2, 2' % sr(sT0))
    e('s_add_u32 %s, %s, 0x%x' % (sr(sT0), sr(sT0), WS_F0))
    e('v_mov_b32 %s, %s' % (vr(vt), sr(sTAG)))
    e('v_mov_b32 %s, 0' % vr(vt + 1))
    e('s_mov_b64 exec, 1')
    A.vmem('buffer_store_dword %s, %s, %s, %s offen sc1' % (vr(vt), vr(vt + 1), sr(dWS, 4), sr(sT0)), 'f0', opt=True)
    e('s_mov_b64 exec, -1')
    A.label(lab)


def f0_poll_issue(vt):
    e('s_mov_b32 %s, 0x%x' % (sr(sT0), WS_F0))
    A.vmem('buffer_load_dwordx4 %s, %s, %s, %s offen sc1' % (vr(vt, 4), vr(vL16), sr(dWS, 4), sr(sT0)), 'f0poll')


def f0_check(vt):
    lo, ld = newlab('f0l'), newlab('f0d')
    e('s_mov_b32 %s, 0' % sr(sCNT))
    A.label(lo)
    A.wait_vm0()
    e('v_xor_b32 %s, %s, %s' % (vr(vt), sr(sTAG), vr(vt)))
    e('v_xor_b32 %s, %s, %s' % (vr(vt + 1), sr(sTAG), vr(vt + 1)))
    e('v_xor_b32 %s, %s, %s' % (vr(vt + 2), sr(sTAG), vr(vt + 2)))
    e('v_xor_b32 %s, %s, %s' % (vr(vt + 3), sr(sTAG), vr(vt + 3)))
    e('v_or3_b32 %s, %s, %s, %s' % (vr(vt), vr(vt), vr(vt + 1), vr(vt + 2)))
    e('v_or_b32 %s, %s, %s' % (vr(vt), vr(vt), vr(vt + 3)))
    e('v_cmp_ne_u32 vcc, 0, %s' % vr(vt))
    e('s_add_u32 %s, %s, 1' % (sr(sCNT), sr(sCNT)))
    e('s_cmp_eq_u64 vcc, 0')
    e('s_cbranch_scc1 %s' % ld)
    e('s_cmp_gt_u32 %s, 0x40000' % sr(sCNT))
    e('s_cbranch_scc1 %s' % ld)
    e('s_mov_b32 %s, 0x%x' % (sr(sT0), WS_F0))
    e('buffer_load_dwordx4 %s, %s, %s, %s offen sc1' % (vr(vt, 4), vr(vL16), sr(dWS, 4), sr(sT0)))
    e('s_branch %s' % lo)
    A.label(ld)
    lab = newlab('ep')
    e('s_cmp_lg_u32 %s, 0' % sr(sGW))
    e('s_cbranch_scc1 %s' % lab)
    e('v_mov_b32 %s, %s' % (vr(vt), sr(sTAG)))
    e('v_mov_b32 %s, 0' % vr(vt + 1))
    e('s_mov_b64 exec, 1')
    A.vmem('buffer_store_dword %s, %s, %s, 0 offen sc1' % (vr(vt), vr(vt + 1), sr(dWS, 4)), 'ep', opt=True)
    e('s_mov_b64 exec, -1')
    A.label(lab)


class WQ:
    def __init__(self):
        self.f = 0
    def init(self):
        e('s_lshl_b32 %s, %s, 3' % (sr(sWO), sr(sC)))
        e('s_lshl_b32 %s, %s, 1' % (sr(sT0), sr(sW)))
        e('s_add_u32 %s, %s, %s' % (sr(sWO), sr(sWO), sr(sT0)))
        e('s_mul_i32 %s, %s, %d' % (sr(sWO), sr(sWO), 38 * 1024))
        e('s_add_u32 %s, %s, 0x%x' % (sr(sWO), sr(sWO), WS_WP))
    def pop(self, n=1, limit=64):
        for _ in range(n):
            if self.f >= limit:
                return
            f = self.f
            dst = ar(4 * f, 4) if f < 64 else vr(64 + 4 * (f - 64), 4)
            A.vmem('buffer_load_dwordx4 %s, %s, %s, %s offen offset:%d sc1' % (dst, vr(vL16), sr(dWS, 4), sr(sWO), (f % 4) * 1024), 'W')
            if f % 4 == 3:
                e('s_add_u32 %s, %s, 4096' % (sr(sWO), sr(sWO)))
            self.f += 1

def wreg(f):
    return ar(4 * f, 4) if f < 64 else vr(64 + 4 * (f - 64), 4)


def f1_publish(vt, role):
    e('s_lshl_b32 %s, %s, 3' % (sr(sT0), sr(sRB)))
    e('s_add_u32 %s, %s, %s' % (sr(sT0), sr(sT0), sr(sJ)))
    e('s_lshl_b32 %s, %s, 3' % (sr(sT0), sr(sT0)))
    e('s_add_u32 %s, %s, %s' % (sr(sT0), sr(sT0), sr(sW)))
    e('s_lshl_b32 %s, %s, 2' % (sr(sT0), sr(sT0)))
    e('s_add_u32 %s, %s, 0x%x' % (sr(sT0), sr(sT0), WS_F1 + role * 16))
    e('v_mov_b32 %s, %s' % (vr(vt), sr(sTAG)))
    e('v_mov_b32 %s, 0' % vr(vt + 1))
    A.wait_vm('H')
    e('s_mov_b64 exec, 1')
    A.vmem('buffer_store_dword %s, %s, %s, %s offen sc1' % (vr(vt), vr(vt + 1), sr(dWS, 4), sr(sT0)), 'f1')
    e('s_mov_b64 exec, -1')


e('s_cmp_eq_u32 %s, 0' % sr(sROLE))
e('s_cbranch_scc1 L_ssm')
vm_save = list(A.vm)

mACC, mCS, mW, mX, mB1, mONE, mST = 0, 88, 100, 144, 160, 184, 188
mXD, mWD, mXA, mWA = 196, 200, 206, 208
mT = 216
GSTART = [0, 3, 6, 9]
def grp_of(v):
    return min(v // 3, 3)

srd(dM1, pW1, 512 * 2752)
srd(dM2, pB1, 2752)
e('s_lshl_b32 %s, %s, 15' % (sr(sT0), sr(sW)))
e('v_lshl_add_u32 v1, %s, 10, %s' % (vr(vL3), sr(sT0)))
for i in range(4):
    e('v_add_u32 %s, v1, %s' % (vr(mXD + i), vr(vSW1 if i & 1 else vSW0)))
    if i:
        e('v_add_u32 %s, %d, %s' % (vr(mXD + i), i * (8192 - 1024), vr(mXD + i)))
e('s_mul_i32 %s, %s, %d' % (sr(sT0), sr(sW), 16 * 2752))
e('s_movk_i32 %s, 2979' % sr(sT1))
e('s_movk_i32 %s, 2752' % sr(sT2))
for i in range(6):
    e('v_add_u32 v1, %d, %s' % (64 * i, vr(vLANE)))
    e('v_mul_u32_u24 v2, %s, v1' % sr(sT1))
    e('v_lshrrev_b32 v2, 16, v2')
    e('v_mul_u32_u24 v3, 22, v2')
    e('v_sub_u32 v1, v1, v3')
    e('v_and_b32 v3, 3, v2')
    e('v_bfe_u32 v8, v2, 2, 1')
    e('v_lshl_or_b32 v3, v8, 3, v3')
    e('v_bfe_u32 v8, v2, 3, 1')
    e('v_lshl_or_b32 v3, v8, 2, v3')
    e('v_mul_u32_u24 v3, %s, v3' % sr(sT2))
    e('v_lshl_add_u32 v3, v1, 4, v3')
    e('v_add_u32 %s, %s, v3' % (vr(mWD + i), sr(sT0)))
    if i % 4:
        e('v_subrev_u32 %s, %d, %s' % (vr(mWD + i), (i % 4) * 1024, vr(mWD + i)))
e('s_mul_i32 %s, %s, 352' % (sr(sMO), sr(sJ)))
e('s_mul_i32 %s, %s, 5632' % (sr(sM0W), sr(sW)))
e('s_add_u32 %s, %s, %d' % (sr(sM0W), sr(sM0W), WSL))

def mlp_dma(stage):
    slot = stage & 3
    tag = 'st%d' % stage
    ops = []
    def xop(i):
        def f():
            if i == 0:
                e('s_add_u32 m0, %s, %d' % (sr(sM0X), XS + slot * 16384))
                e('s_add_u32 %s, %s, %d' % (sr(sT2), sr(sXO), stage * 128))
            A.vmem('buffer_load_dwordx4 %s, %s, %s offen offset:%d lds' % (vr(mXD + i), sr(dX, 4), sr(sT2), i * 1024), tag)
        return f
    def wop(i):
        def f():
            if i == 0:
                e('s_add_u32 m0, %s, %d' % (sr(sM0W), slot * WSLOT))
                e('s_add_u32 %s, %s, %d' % (sr(sT3), sr(sMO), stage * 64 * 2752))
            if i == 4:
                e('s_add_u32 m0, %s, %d' % (sr(sM0W), slot * WSLOT + 4096))
            if i == 5:
                e('s_mov_b32 exec_hi, 0')
            A.vmem('buffer_load_dwordx4 %s, %s, %s offen offset:%d lds' % (vr(mWD + i), sr(dM1, 4), sr(sT3), (i % 4) * 1024), tag)
            if i == 5:
                e('s_mov_b32 exec_hi, -1')
        return f
    return [xop(i) for i in range(4)] + [wop(i) for i in range(6)]

for st in range(4):
    for f in mlp_dma(st):
        f()
stamp(2)
e('s_mul_i32 %s, %s, 3' % (sr(sG[0]), sr(sW)))
e('s_min_u32 %s, %s, 8' % (sr(sG[0]), sr(sG[0])))
e('s_cmp_eq_u32 %s, 0' % sr(sW))
e('s_cselect_b32 %s, 3, 0' % sr(sG[1]))
e('s_cmp_lt_u32 %s, 2' % sr(sW))
e('s_cselect_b32 %s, 6, 3' % sr(sG[2]))
e('s_cmp_lt_u32 %s, 3' % sr(sW))
e('s_cselect_b32 %s, 9, 6' % sr(sG[3]))
e('v_lshlrev_b32 v9, 3, %s' % vr(vG))
for v in range(11):
    g = grp_of(v)
    if v == GSTART[g]:
        e('s_lshl_b32 %s, %s, 5' % (sr(sT0), sr(sG[g])))
        e('s_add_u32 %s, %s, %s' % (sr(sT0), sr(sT0), sr(sMO)))
    A.vmem('buffer_load_dwordx2 %s, v9, %s, %s offen offset:%d' % (vr(mB1 + 2 * v, 2), sr(dM2, 4), sr(sT0), 32 * (v - GSTART[g])), 'b1')
e('v_add_u32 %s, %s, %s' % (vr(mXA), sr(sM0X), vr(vFA0)))
e('v_add_u32 %s, %s, %s' % (vr(mXA + 1), sr(sM0X), vr(vFA1)))
e('v_bfe_u32 v1, %s, 2, 2' % vr(vLANE))
e('v_bfe_u32 v2, %s, 4, 1' % vr(vLANE))
e('v_lshl_add_u32 v1, v2, 2, v1')
e('v_lshl_add_u32 v1, %s, 4, v1' % vr(vHI5))
e('v_mul_u32_u24 v1, 352, v1')
e('v_and_b32 v2, 3, %s' % vr(vLANE))
e('v_lshl_add_u32 v1, v2, 3, v1')
for g in range(4):
    e('s_lshl_b32 %s, %s, 5' % (sr(sT0), sr(sG[g])))
    e('s_add_u32 %s, %s, %d' % (sr(sT0), sr(sT0), WSL))
    e('v_add_u32 %s, %s, v1' % (vr(mWA + 2 * g), sr(sT0)))
    e('v_add_u32 %s, %d, %s' % (vr(mWA + 2 * g + 1), 2 * WSLOT, vr(mWA + 2 * g)))
for i in range(4):
    e('v_mov_b32 %s, 0x3f803f80' % vr(mONE + i))
phase0_compute()
stamp(3)

def mlp_rd_w(step, v):
    stage, ks = step // 2, step % 2
    slot = stage & 3
    g = grp_of(v)
    for half in range(2):
        off = (slot & 1) * WSLOT + (32 * ks + 8 * half) * 352 + 32 * (v - GSTART[g])
        A.ds('ds_read_b64_tr_b16 %s, %s offset:%d' % (vr(mW + 4 * v + 2 * half, 2), vr(mWA + 2 * g + (slot >> 1)), off), 'w%d_%d' % (step, v))

def mlp_rd_x(step):
    stage, ks = step // 2, step % 2
    slot = stage & 3
    for a in range(2):
        A.ds('ds_read_b128 %s, %s offset:%d' % (vr(mX + 8 * ks + 4 * a, 4), vr(mXA + ks), XS + slot * 16384 + a * 2048), 'x%d' % step)

wq = WQ()
A.wait_vm('st0')
e('s_barrier')
mlp_rd_x(0)
for v in range(11):
    mlp_rd_w(0, v)
pend = []
for step in range(16):
    stage, ks = step // 2, step % 2
    if ks == 1:
        A.wait_lg0()
        if stage == 2:
            A.wait_vm(['st3', 'p0s'])
        elif stage == 6:
            f0_check(mT)
        elif stage < 7:
            A.wait_vm('st%d' % (stage + 1))
        e('s_barrier')
        if stage == 2:
            f0_publish(mT)
        if stage == 5:
            f0_poll_issue(mT)
        if stage < 4:
            pend = mlp_dma(stage + 4)
        if stage == 6:
            stamp(4)
            e('s_lshl_b32 %s, %s, 11' % (sr(sT0), sr(sRB)))
            e('s_lshl_b32 %s, %s, 9' % (sr(sT1), sr(sW)))
            e('s_add_u32 %s, %s, %s' % (sr(sT0), sr(sT0), sr(sT1)))
            e('s_add_u32 %s, %s, 0x%x' % (sr(sT0), sr(sT0), WS_G))
            e('v_lshlrev_b32 %s, 4, %s' % (vr(mT), vr(vLO4)))
            A.vmem('buffer_load_dwordx2 %s, %s, %s, %s offen sc1' % (vr(mST, 2), vr(mT), sr(dWS, 4), sr(sT0)), 'stat')
            A.vmem('buffer_load_dwordx2 %s, %s, %s, %s offen offset:256 sc1' % (vr(mST + 4, 2), vr(mT), sr(dWS, 4), sr(sT0)), 'stat')
            wq.init()
    for v in range(11):
        if v in (0, 4, 8):
            A.wait_lg(['x%d' % step] + ['w%d_%d' % (step, u) for u in range(v, min(v + 4, 11))])
        for a in range(2):
            acc = vr(mACC + 8 * v + 4 * a, 4)
            e('v_mfma_f32_16x16x32_bf16 %s, %s, %s, %s' % (acc, vr(mW + 4 * v, 4), vr(mX + 8 * ks + 4 * a, 4), acc if step else '0'))
        if v < 3:
            acc = vr(mCS + 4 * v, 4)
            e('v_mfma_f32_16x16x32_bf16 %s, %s, %s, %s' % (acc, vr(mW + 4 * v, 4), vr(mONE, 4), acc if step else '0'))
        if step < 15:
            if v == 0:
                mlp_rd_x(step + 1)
            mlp_rd_w(step + 1, v)
        if pend and v % 2 == 1:
            pend.pop(0)()
        if step >= 13 and v % 3 == 2:
            wq.pop()
assert not pend
stamp(5)
e('v_lshlrev_b32 %s, 4, %s' % (vr(mT), vr(vG)))
e('s_lshl_b32 %s, %s, 6' % (sr(sT0), sr(sG[0])))
e('s_add_u32 %s, %s, %d' % (sr(sT0), sr(sT0), CSX))
e('v_add_u32 %s, %s, %s' % (vr(mT + 1), sr(sT0), vr(mT)))
for v in range(3):
    A.ds('ds_write_b128 %s, %s offset:%d' % (vr(mT + 1), vr(mCS + 4 * v, 4), 64 * v), 'csw')
C0 = -2.0 * math.sqrt(2.0 / math.pi) * math.log2(math.e)
C1 = C0 * 0.044715
A.wait_vm(['stat', 'b1'])
for a in range(2):
    b = mST + 4 * a
    e('v_rcp_f32 %s, %s' % (vr(mT + 2), vr(b + 1)))
    e('v_mul_f32 %s, %s, %s' % (vr(b + 2), f2u(C0), vr(mT + 2)))
    e('v_mul_f32 %s, %s, %s' % (vr(b + 3), vr(mT + 2), vr(mT + 2)))
    e('v_mul_f32 %s, %s, %s' % (vr(b + 3), vr(b + 3), vr(mT + 2)))
    e('v_mul_f32 %s, %s, %s' % (vr(b + 3), f2u(C1), vr(b + 3)))
A.wait_lg0()
e('s_barrier')
mCSV = mW
for v in range(11):
    g = grp_of(v)
    if v == GSTART[g]:
        e('s_lshl_b32 %s, %s, 6' % (sr(sT0), sr(sG[g])))
        e('s_add_u32 %s, %s, %d' % (sr(sT0), sr(sT0), CSX))
        e('v_add_u32 %s, %s, %s' % (vr(mT + 1), sr(sT0), vr(mT)))
    A.ds('ds_read_b128 %s, %s offset:%d' % (vr(mCSV + 4 * v, 4), vr(mT + 1), 64 * (v - GSTART[g])), 'cs%d' % v)
e('s_lshr_b32 %s, %s, 1' % (sr(sT0), sr(sW)))
e('s_lshl_b32 %s, %s, 1' % (sr(sHO), sr(sRB)))
e('s_add_u32 %s, %s, %s' % (sr(sHO), sr(sHO), sr(sT0)))
e('s_lshl_b32 %s, %s, 3' % (sr(sHO), sr(sHO)))
e('s_add_u32 %s, %s, %s' % (sr(sHO), sr(sHO), sr(sJ)))
e('s_mul_i32 %s, %s, 38' % (sr(sHO), sr(sHO)))
e('s_and_b32 %s, %s, 1' % (sr(sT0), sr(sW)))
e('s_add_u32 %s, %s, %s' % (sr(sHO), sr(sHO), sr(sT0)))
e('s_lshl_b32 %s, %s, 10' % (sr(sHO), sr(sHO)))
e('s_add_u32 %s, %s, 0x%x' % (sr(sHO), sr(sHO), WS_HS + 16 * 1024))
LOB = 'op_sel:[0,0,0] op_sel_hi:[1,0,1]'
HIB = 'op_sel:[0,1,0] op_sel_hi:[1,1,1]'
tZ, tB, tO = mT + 4, mT + 20, mT + 24
for v in range(11):
    g = grp_of(v)
    e('v_lshlrev_b32 %s, 16, %s' % (vr(tB), vr(mB1 + 2 * v)))
    e('v_and_b32 %s, 0xffff0000, %s' % (vr(tB + 1), vr(mB1 + 2 * v)))
    e('v_lshlrev_b32 %s, 16, %s' % (vr(tB + 2), vr(mB1 + 2 * v + 1)))
    e('v_and_b32 %s, 0xffff0000, %s' % (vr(tB + 3), vr(mB1 + 2 * v + 1)))
    prs = [(a, h) for a in range(2) for h in range(2)]
    def accp(a, h):
        return mACC + 8 * v + 4 * a + 2 * h
    for (a, h) in prs:
        e('v_pk_fma_f32 %s, %s, %s, %s %s' % (vr(accp(a, h), 2), vr(tB + 2 * h, 2), vr(mST + 4 * a, 2), vr(accp(a, h), 2), HIB))
    A.wait_lg('cs%d' % v)
    for (a, h) in prs:
        e('v_pk_fma_f32 %s, %s, %s, %s %s neg_lo:[0,1,0] neg_hi:[0,1,0]' % (vr(accp(a, h), 2), vr(mCSV + 4 * v + 2 * h, 2), vr(mST + 4 * a, 2), vr(accp(a, h), 2), LOB))
    for i, (a, h) in enumerate(prs):
        e('v_pk_mul_f32 %s, %s, %s' % (vr(tZ + 2 * i, 2), vr(accp(a, h), 2), vr(accp(a, h), 2)))
    for i, (a, h) in enumerate(prs):
        e('v_pk_fma_f32 %s, %s, %s, %s op_sel:[0,1,0] op_sel_hi:[1,1,0]' % (vr(tZ + 2 * i, 2), vr(tZ + 2 * i, 2), vr(mST + 4 * a + 2, 2), vr(mST + 4 * a + 2, 2)))
    for i, (a, h) in enumerate(prs):
        e('v_pk_mul_f32 %s, %s, %s' % (vr(tZ + 2 * i, 2), vr(tZ + 2 * i, 2), vr(accp(a, h), 2)))
    wq.pop()
    for i in range(8):
        e('v_exp_f32 %s, %s' % (vr(tZ + i), vr(tZ + i)))
    wq.pop()
    for i, (a, h) in enumerate(prs):
        e('v_pk_fma_f32 %s, %s, %s, %s op_sel:[0,1,1] op_sel_hi:[1,1,1]' % (vr(tZ + 2 * i, 2), vr(tZ + 2 * i, 2), vr(mST + 4 * a, 2), vr(mST + 4 * a, 2)))
    for i in range(8):
        e('v_rcp_f32 %s, %s' % (vr(tZ + i), vr(tZ + i)))
    wq.pop()
    for i, (a, h) in enumerate(prs):
        e('v_pk_mul_f32 %s, %s, %s' % (vr(tZ + 2 * i, 2), vr(tZ + 2 * i, 2), vr(accp(a, h), 2)))
    o = tO + 4 * (v & 1)
    for i in range(4):
        e('v_cvt_pk_bf16_f32 %s, %s, %s' % (vr(o + i), vr(tZ + 2 * i), vr(tZ + 2 * i + 1)))
    e('s_add_u32 %s, %s, %d' % (sr(sT0), sr(sG[g]), v - GSTART[g]))
    e('s_lshl_b32 %s, %s, 11' % (sr(sT0), sr(sT0)))
    e('s_add_u32 %s, %s, %s' % (sr(sT0), sr(sT0), sr(sHO)))
    e('v_permlane16_swap_b32 %s, %s' % (vr(o), vr(o + 2)))
    e('v_permlane16_swap_b32 %s, %s' % (vr(o + 1), vr(o + 3)))
    A.vmem('buffer_store_dwordx4 %s, %s, %s, %s offen sc1' % (vr(o, 4), vr(vL16), sr(dWS, 4), sr(sT0)), 'H')
    wq.pop()
stamp(6)
wq.pop(12, 76)
f1_publish(mT, 1)
stamp(7)
wq.pop(76, 76)
e('s_branch L_ph2')

A.label('L_ssm')
A.vm = list(vm_save)
A.lg = []
sAR, sAI, sX, sB, sSM, sSR = 0, 32, 64, 96, 112, 144
kL, kL16, kL32, kP32, kL512, kP128, kCF, kCS = 176, 178, 180, 182, 184, 186, 188, 190
sXD, sBD, sBA = 192, 196, 198
sT = 200
srd(dM1, pBRE, 512 * 1024)
srd(dM2, pBIM, 512 * 1024)
e('s_lshl_b32 %s, %s, 2' % (sr(sT0), sr(sJ)))
e('s_add_u32 %s, %s, %s' % (sr(sT0), sr(sT0), sr(sW)))
e('s_lshl_b32 %s, %s, 5' % (sr(sT0), sr(sT0)))
e('v_lshl_add_u32 %s, %s, 1, %s' % (vr(sT), vr(vLO4), sr(sT0)))
A.vmem('global_load_ushort %s, %s, %s' % (vr(sT + 1), vr(sT), sr(pLRE, 2)), 'lam')
A.vmem('global_load_ushort %s, %s, %s' % (vr(sT + 2), vr(sT), sr(pLIM, 2)), 'lam')
A.vmem('global_load_ushort %s, %s, %s' % (vr(sT + 3), vr(sT), sr(pLDT, 2)), 'lam')
e('v_lshlrev_b32 v1, 5, %s' % vr(vHI5))
e('v_bfe_u32 v2, %s, 3, 1' % vr(vLANE))
e('v_lshl_add_u32 v1, v2, 4, v1')
e('v_bfe_u32 v2, %s, 4, 1' % vr(vLANE))
e('v_add_u32 v1, v1, v2')
e('s_lshl_b32 %s, %s, 12' % (sr(sT0), sr(sW)))
e('v_lshl_add_u32 v1, v1, 10, %s' % sr(sT0))
for i in range(4):
    e('v_add_u32 %s, v1, %s' % (vr(sXD + i), vr(vSW1 if i & 1 else vSW0)))
    add = (64 * (i & 1) + 2 * (i >> 1)) * 1024 - 1024 * i
    if add:
        e('v_add_u32 %s, %d, %s' % (vr(sXD + i), add, vr(sXD + i)))
e('s_lshl_b32 %s, %s, 14' % (sr(sT0), sr(sW)))
e('v_lshl_add_u32 v1, %s, 10, %s' % (vr(vL3), sr(sT0)))
e('v_add_u32 %s, v1, %s' % (vr(sBD), vr(vSW0)))
e('v_add_u32 %s, v1, %s' % (vr(sBD + 1), vr(vSW1)))
e('v_add_u32 %s, %d, %s' % (vr(sBD + 1), 8192 - 1024, vr(sBD + 1)))
e('s_lshl_b32 %s, %s, 16' % (sr(sMO), sr(sJ)))
e('s_add_u32 %s, %s, %d' % (sr(sM0W), sr(sM0X), BS))

def ssm_dma(stage):
    slot = stage & 3
    tag = 'st%d' % stage
    def xop(i):
        def f():
            if i == 0:
                e('s_add_u32 m0, %s, %d' % (sr(sM0X), XS + slot * 16384))
                e('s_add_u32 %s, %s, %d' % (sr(sT2), sr(sXO), stage * 128))
            A.vmem('buffer_load_dwordx4 %s, %s, %s offen offset:%d lds' % (vr(sXD + i), sr(dX, 4), sr(sT2), i * 1024), tag)
        return f
    def bop(i):
        def f():
            if i % 2 == 0:
                e('s_add_u32 m0, %s, %d' % (sr(sM0W), slot * 16384 + (i >> 1) * 2048))
            if i == 0:
                e('s_add_u32 %s, %s, %d' % (sr(sT3), sr(sMO), stage * 128))
            A.vmem('buffer_load_dwordx4 %s, %s, %s offen offset:%d lds' % (vr(sBD + (i & 1)), sr(dM2 if i >> 1 else dM1, 4), sr(sT3), (i & 1) * 1024), tag)
        return f
    return [xop(i) for i in range(4)] + [bop(i) for i in range(4)]

for st in range(4):
    for f in ssm_dma(st):
        f()
stamp(2)
e('v_add_u32 %s, %s, %s' % (vr(sBA), sr(sM0W), vr(vFA0)))
e('v_add_u32 %s, %s, %s' % (vr(sBA + 1), sr(sM0W), vr(vFA1)))
phase0_compute()
A.wait_vm('lam')
lre, lim, ldt = sT + 1, sT + 2, sT + 3
t0, t1, t2, t3, t4, t5 = [sT + 4 + i for i in range(6)]
LOG2E = math.log2(math.e)
for r in (lre, lim, ldt):
    e('v_lshlrev_b32 %s, 16, %s' % (vr(r), vr(r)))
e('v_mul_f32 %s, %s, %s' % (vr(ldt), f2u(LOG2E), vr(ldt)))
e('v_exp_f32 %s, %s' % (vr(ldt), vr(ldt)))
rnd_bf16(ldt, ldt)
e('v_mul_f32 %s, %s, %s' % (vr(t0), vr(ldt), vr(lre)))
e('v_mul_f32 %s, %s, %s' % (vr(t1), vr(ldt), vr(lim)))
e('v_mul_f32 %s, %s, %s' % (vr(t0), f2u(LOG2E), vr(t0)))
e('v_mul_f32 %s, 0.15915494, %s' % (vr(t1), vr(t1)))
e('v_exp_f32 %s, %s' % (vr(t0), vr(t0)))
e('v_rndne_f32 %s, %s' % (vr(t2), vr(t1)))
e('v_sub_f32 %s, %s, %s' % (vr(t1), vr(t1), vr(t2)))
e('v_cos_f32 %s, %s' % (vr(t2), vr(t1)))
e('v_sin_f32 %s, %s' % (vr(t3), vr(t1)))
e('v_mul_f32 %s, %s, %s' % (vr(kL), vr(t0), vr(t2)))
e('v_mul_f32 %s, %s, %s' % (vr(kL + 1), vr(t0), vr(t3)))
e('v_mul_f32 %s, %s, %s' % (vr(t0), vr(lre), vr(lre)))
e('v_fma_f32 %s, %s, %s, %s' % (vr(t0), vr(lim), vr(lim), vr(t0)))
e('v_rcp_f32 %s, %s' % (vr(t0), vr(t0)))
e('v_add_f32 %s, -1.0, %s' % (vr(t1), vr(kL)))
e('v_add_f32 %s, %s, %s' % (vr(t0), vr(t0), vr(t0)))
e('v_mul_f32 %s, %s, %s' % (vr(t2), vr(t1), vr(lre)))
e('v_fma_f32 %s, %s, %s, %s' % (vr(t2), vr(kL + 1), vr(lim), vr(t2)))
e('v_mul_f32 %s, %s, %s' % (vr(t3), vr(kL + 1), vr(lre)))
e('v_fma_f32 %s, -%s, %s, %s' % (vr(t3), vr(t1), vr(lim), vr(t3)))
e('v_mul_f32 %s, %s, %s' % (vr(kCF), vr(t2), vr(t0)))
e('v_mul_f32 %s, %s, %s' % (vr(kCF + 1), vr(t3), vr(t0)))
csq(t0, t1, kL, kL + 1)
csq(t2, t3, t0, t1)
csq(t0, t1, t2, t3)
csq(kL16, kL16 + 1, t0, t1)
csq(kL32, kL32 + 1, kL16, kL16 + 1)
e('v_and_b32 %s, 1, %s' % (vr(t4), vr(vG)))
e('v_cmp_eq_u32 %s, 1, %s' % (sr(sMSK[0], 2), vr(t4)))
e('v_cmp_lt_u32 %s, 1, %s' % (sr(sMSK[1], 2), vr(vG)))
def pow_by_g(dst, b, sq):
    e('v_mov_b32 %s, 0' % vr(t5))
    e('v_cndmask_b32 %s, 1.0, %s, %s' % (vr(t2), vr(b), sr(sMSK[0], 2)))
    e('v_cndmask_b32 %s, 0, %s, %s' % (vr(t3), vr(b + 1), sr(sMSK[0], 2)))
    e('v_cndmask_b32 %s, 1.0, %s, %s' % (vr(t4), vr(sq), sr(sMSK[1], 2)))
    e('v_cndmask_b32 %s, 0, %s, %s' % (vr(t5), vr(sq + 1), sr(sMSK[1], 2)))
    cmul(dst, dst + 1, t2, t3, t4, t5)
u0, u2 = sT + 10, sT + 12
csq(t0, t1, kL32, kL32 + 1)
pow_by_g(kP32, kL32, t0)
csq(u0, u0 + 1, t0, t1)
csq(u2, u2 + 1, u0, u0 + 1)
pow_by_g(kP128, u0, u2)
csq(kL512, kL512 + 1, u2, u2 + 1)
stamp(3)

def ssm_rd_x(step, T):
    stage, ks = step // 2, step % 2
    slot = stage & 3
    A.ds('ds_read_b128 %s, %s offset:%d' % (vr(sX + 4 * T, 4), vr(vFA1 if ks else vFA0), XS + slot * 16384 + T * 2048), 'x%d_%d' % (step, T))

def ssm_rd_b(step):
    stage, ks = step // 2, step % 2
    slot = stage & 3
    for part in range(2):
        A.ds('ds_read_b128 %s, %s offset:%d' % (vr(sB + 8 * ks + 4 * part, 4), vr(sBA + ks), slot * 16384 + part * 2048), 'b%d' % step)

wq = WQ()
A.wait_vm('st0')
e('s_barrier')
ssm_rd_b(0)
for T in range(8):
    ssm_rd_x(0, T)
pend = []
for step in range(16):
    stage, ks = step // 2, step % 2
    if ks == 1:
        A.wait_lg0()
        if stage == 2:
            A.wait_vm(['st3', 'p0s'])
        elif stage == 6:
            f0_check(sT)
        elif stage < 7:
            A.wait_vm('st%d' % (stage + 1))
        e('s_barrier')
        if stage == 2:
            f0_publish(sT)
        if stage == 5:
            f0_poll_issue(sT)
        if stage < 4:
            pend = ssm_dma(stage + 4)
        if stage == 6:
            stamp(4)
            e('s_lshl_b32 %s, %s, 2' % (sr(sT0), sr(sJ)))
            e('s_add_u32 %s, %s, %s' % (sr(sT0), sr(sT0), sr(sW)))
            e('s_lshl_b32 %s, %s, 6' % (sr(sT0), sr(sT0)))
            e('s_add_u32 %s, %s, 0x%x' % (sr(sT0), sr(sT0), WS_CSB))
            e('v_lshlrev_b32 %s, 2, %s' % (vr(sT), vr(vLO4)))
            e('v_lshlrev_b32 %s, 7, %s' % (vr(sT + 1), vr(vG)))
            A.vmem('buffer_load_dword %s, %s, %s, %s offen sc1' % (vr(kCS), vr(sT), sr(dWS, 4), sr(sT0)), 'stat')
            A.vmem('buffer_load_dword %s, %s, %s, %s offen offset:2048 sc1' % (vr(kCS + 1), vr(sT), sr(dWS, 4), sr(sT0)), 'stat')
            e('s_lshl_b32 %s, %s, 9' % (sr(sT2), sr(sRB)))
            e('s_add_u32 %s, %s, 0x%x' % (sr(sT3), sr(sT2), WS_SR))
            e('s_add_u32 %s, %s, 0x%x' % (sr(sT2), sr(sT2), WS_SM))
            def stld(T, which):
                def f():
                    A.vmem('buffer_load_dwordx4 %s, %s, %s, %s offen offset:%d sc1' % (vr((sSR if which else sSM) + 4 * T, 4), vr(sT + 1), sr(dWS, 4), sr(sT3 if which else sT2), 16 * T), 'stat')
                return f
            pend = [stld(T, wh) for T in range(8) for wh in range(2)]
            wq.init()
    for T in range(8):
        if T in (0, 4):
            A.wait_lg(['b%d' % step] + ['x%d_%d' % (step, u) for u in range(T, T + 4)])
        for part in range(2):
            acc = vr((sAI if part else sAR) + 4 * T, 4)
            e('v_mfma_f32_16x16x32_bf16 %s, %s, %s, %s' % (acc, vr(sX + 4 * T, 4), vr(sB + 8 * ks + 4 * part, 4), acc if step else '0'))
        if step < 15:
            if T == 0:
                ssm_rd_b(step + 1)
            ssm_rd_x(step + 1, T)
        if pend and (T % 2 == 1 or step >= 13):
            pend.pop(0)()
        elif step == 15 and T % 2 == 1:
            wq.pop()
assert not pend
stamp(5)
A.wait_vm('stat')
for T in range(8):
    for h in range(2):
        o = 4 * T + 2 * h
        e('v_pk_fma_f32 %s, %s, %s, %s op_sel:[0,0,0] op_sel_hi:[1,0,1] neg_lo:[0,1,0] neg_hi:[0,1,0]' % (vr(sAR + o, 2), vr(sSM + o, 2), vr(kCS, 2), vr(sAR + o, 2)))
        e('v_pk_fma_f32 %s, %s, %s, %s op_sel:[0,1,0] op_sel_hi:[1,1,1] neg_lo:[0,1,0] neg_hi:[0,1,0]' % (vr(sAI + o, 2), vr(sSM + o, 2), vr(kCS, 2), vr(sAI + o, 2)))
        e('v_pk_mul_f32 %s, %s, %s' % (vr(sAR + o, 2), vr(sAR + o, 2), vr(sSR + o, 2)))
        e('v_pk_mul_f32 %s, %s, %s' % (vr(sAI + o, 2), vr(sAI + o, 2), vr(sSR + o, 2)))
    if T % 2 == 1:
        wq.pop()
LO = 'op_sel:[0,0,0] op_sel_hi:[1,0,1]'
HI = 'op_sel:[0,1,0] op_sel_hi:[1,1,1]'
NEG = 'neg_lo:[0,1,0] neg_hi:[0,1,0]'
hA, hB = sX, sX + 4
cur = (sAR, sAI)
for s in range(1, 16):
    o = 2 * s
    nxt = (hA, hA + 2) if s & 1 else (hB, hB + 2)
    e('v_pk_fma_f32 %s, %s, %s, %s %s' % (vr(nxt[0], 2), vr(cur[0], 2), vr(kL, 2), vr(sAR + o, 2), LO))
    e('v_pk_fma_f32 %s, %s, %s, %s %s' % (vr(nxt[1], 2), vr(cur[1], 2), vr(kL, 2), vr(sAI + o, 2), LO))
    e('v_pk_fma_f32 %s, %s, %s, %s %s %s' % (vr(nxt[0], 2), vr(cur[1], 2), vr(kL, 2), vr(nxt[0], 2), HI, NEG))
    e('v_pk_fma_f32 %s, %s, %s, %s %s' % (vr(nxt[1], 2), vr(cur[0], 2), vr(kL, 2), vr(nxt[1], 2), HI))
    cur = nxt
    if s % 4 == 3:
        wq.pop()
s0r, s1r, s0i, s1i = cur[0], cur[0] + 1, cur[1], cur[1] + 1
q = sX + 8
ar0, ar1, ar2, ar3, ai0, ai1, ai2, ai3 = [q + i for i in range(8)]
cfma(ar0, ai0, s0r, s0i, kL16, kL16 + 1, s1r, s1i)
for (x0, x1, x2, x3) in ((ar0, ar1, ar2, ar3), (ai0, ai1, ai2, ai3)):
    e('v_mov_b32 %s, %s' % (vr(x1), vr(x0)))
for (x0, x1, x2, x3) in ((ar0, ar1, ar2, ar3), (ai0, ai1, ai2, ai3)):
    e('v_permlane16_swap_b32 %s, %s' % (vr(x0), vr(x1)))
for (x0, x1, x2, x3) in ((ar0, ar1, ar2, ar3), (ai0, ai1, ai2, ai3)):
    e('v_mov_b32 %s, %s' % (vr(x2), vr(x0)))
    e('v_mov_b32 %s, %s' % (vr(x3), vr(x1)))
for (x0, x1, x2, x3) in ((ar0, ar1, ar2, ar3), (ai0, ai1, ai2, ai3)):
    e('v_permlane32_swap_b32 %s, %s' % (vr(x0), vr(x2)))
    e('v_permlane32_swap_b32 %s, %s' % (vr(x1), vr(x3)))
vS = sX + 16
cfma(ar1, ai1, ar0, ai0, kL32, kL32 + 1, ar1, ai1)
cfma(ar2, ai2, ar1, ai1, kL32, kL32 + 1, ar2, ai2)
cfma(vS, vS + 1, ar2, ai2, kL32, kL32 + 1, ar3, ai3)
e('v_mov_b32 %s, %s' % (vr(vS + 2), sr(sTAG)))
e('v_mov_b32 %s, %s' % (vr(vS + 3), sr(sTAG)))
e('s_lshl_b32 %s, %s, 14' % (sr(sT1), sr(sJ)))
e('s_lshl_b32 %s, %s, 8' % (sr(sT0), sr(sW)))
e('s_add_u32 %s, %s, %s' % (sr(sT1), sr(sT1), sr(sT0)))
e('s_add_u32 %s, %s, 0x%x' % (sr(sT1), sr(sT1), WS_SG))
e('s_lshl_b32 %s, %s, 10' % (sr(sT0), sr(sRB)))
e('s_add_u32 %s, %s, %s' % (sr(sT0), sr(sT0), sr(sT1)))
e('s_mov_b64 exec, 0xffff')
A.vmem('buffer_store_dwordx4 %s, %s, %s, %s offen sc1' % (vr(vS, 4), vr(vL16), sr(dWS, 4), sr(sT0)), 'S')
e('s_mov_b64 exec, -1')
stamp(8)
Er, Ei = sX + 20, sX + 21
for (E, x0, x1, x2) in ((Er, ar0, ar1, ar2), (Ei, ai0, ai1, ai2)):
    e('v_cndmask_b32 %s, 0, %s, %s' % (vr(E), vr(x0), sr(sMSK[0], 2)))
    e('v_cndmask_b32 %s, %s, %s, %s' % (vr(x1), vr(x1), vr(x2), sr(sMSK[0], 2)))
    e('v_cndmask_b32 %s, %s, %s, %s' % (vr(E), vr(E), vr(x1), sr(sMSK[1], 2)))
vPA = sX + 24
e('s_sub_u32 %s, %s, 1' % (sr(sT0), sr(sRB)))
e('v_sub_u32 %s, %s, %s' % (vr(sT), sr(sT0), vr(vG)))
for i in range(4):
    e('v_subrev_u32 %s, %d, %s' % (vr(vPA + i), 4 * i, vr(sT)))
    e('v_cmp_le_i32 %s, 0, %s' % (sr(sMSK[i], 2), vr(vPA + i)))
    e('v_max_i32 %s, 0, %s' % (vr(vPA + i), vr(vPA + i)))
    e('v_lshlrev_b32 %s, 10, %s' % (vr(vPA + i), vr(vPA + i)))
    e('v_lshl_add_u32 %s, %s, 4, %s' % (vr(vPA + i), vr(vLO4), vr(vPA + i)))
wq.pop(6)
tp = sB
for s in range(16):
    o = 2 * s
    t = tp + 2 * (s & 3)
    e('v_pk_mul_f32 %s, %s, %s op_sel:[0,1] op_sel_hi:[1,1]' % (vr(t, 2), vr(sAR + o, 2), vr(kCF, 2)))
    e('v_pk_mul_f32 %s, %s, %s op_sel:[0,0] op_sel_hi:[1,0]' % (vr(sAR + o, 2), vr(sAR + o, 2), vr(kCF, 2)))
    e('v_pk_fma_f32 %s, %s, %s, %s %s %s' % (vr(sAR + o, 2), vr(sAI + o, 2), vr(kCF, 2), vr(sAR + o, 2), HI, NEG))
    e('v_pk_fma_f32 %s, %s, %s, %s %s' % (vr(sAI + o, 2), vr(sAI + o, 2), vr(kCF, 2), vr(t, 2), LO))
    if s % 4 == 3:
        wq.pop()
vQ = sSM
lo = newlab('sp')
ld = newlab('spd')
e('s_mov_b32 %s, 0' % sr(sCNT))
A.label(lo)
for i in range(4):
    e('buffer_load_dwordx4 %s, %s, %s, %s offen sc1' % (vr(vQ + 4 * i, 4), vr(vPA + i), sr(dWS, 4), sr(sT1)))
A.wait_vm0()
e('s_mov_b64 s[14:15], 0')
for i in range(4):
    e('v_cmp_ne_u32 vcc, %s, %s' % (sr(sTAG), vr(vQ + 4 * i + 2)))
    e('s_and_b64 vcc, vcc, %s' % sr(sMSK[i], 2))
    e('s_or_b64 s[14:15], s[14:15], vcc')
e('s_add_u32 %s, %s, 1' % (sr(sCNT), sr(sCNT)))
e('s_cmp_eq_u64 s[14:15], 0')
e('s_cbranch_scc1 %s' % ld)
e('s_cmp_le_u32 %s, 0x40000' % sr(sCNT))
e('s_cbranch_scc1 %s' % lo)
A.label(ld)
stamp(9)
for i in range(4):
    e('v_cndmask_b32 %s, 0, %s, %s' % (vr(vQ + 4 * i), vr(vQ + 4 * i), sr(sMSK[i], 2)))
    e('v_cndmask_b32 %s, 0, %s, %s' % (vr(vQ + 4 * i + 1), vr(vQ + 4 * i + 1), sr(sMSK[i], 2)))
wq.pop(4)
for i in (2, 1, 0):
    cfma(vQ + 4 * i, vQ + 4 * i + 1, vQ + 4 * i + 4, vQ + 4 * i + 5, kL512, kL512 + 1, vQ + 4 * i, vQ + 4 * i + 1)
hr, hi_, h2, h3 = vQ + 4, vQ + 5, vQ + 6, vQ + 7
cmul(hr, hi_, vQ, vQ + 1, kP128, kP128 + 1)
for sw in ('v_permlane16_swap_b32', 'v_permlane32_swap_b32'):
    e('v_mov_b32 %s, %s' % (vr(h2), vr(hr)))
    e('v_mov_b32 %s, %s' % (vr(h3), vr(hi_)))
    e('%s %s, %s' % (sw, vr(hr), vr(h2)))
    e('%s %s, %s' % (sw, vr(hi_), vr(h3)))
    e('v_add_f32 %s, %s, %s' % (vr(hr), vr(hr), vr(h2)))
    e('v_add_f32 %s, %s, %s' % (vr(hi_), vr(hi_), vr(h3)))
cfma(Er, Ei, hr, hi_, kP32, kP32 + 1, Er, Ei)
cfma(s0r, s0i, Er, Ei, kL16, kL16 + 1, s0r, s0i)
cR, cI = vQ + 8, vQ + 10
cmul(cR, cI, Er, Ei, kCF, kCF + 1)
cmul(cR + 1, cI + 1, s0r, s0i, kCF, kCF + 1)
cur = (cR, cI)
for s in range(16):
    o = 2 * s
    e('v_pk_fma_f32 %s, %s, %s, %s %s' % (vr(sAR + o, 2), vr(cur[0], 2), vr(kL, 2), vr(sAR + o, 2), LO))
    e('v_pk_fma_f32 %s, %s, %s, %s %s' % (vr(sAI + o, 2), vr(cur[1], 2), vr(kL, 2), vr(sAI + o, 2), LO))
    e('v_pk_fma_f32 %s, %s, %s, %s %s %s' % (vr(sAR + o, 2), vr(cur[1], 2), vr(kL, 2), vr(sAR + o, 2), HI, NEG))
    e('v_pk_fma_f32 %s, %s, %s, %s %s' % (vr(sAI + o, 2), vr(cur[0], 2), vr(kL, 2), vr(sAI + o, 2), HI))
    cur = (sAR + o, sAI + o)
    if s % 4 == 3:
        wq.pop()
e('s_mul_i32 %s, %s, %d' % (sr(sT0), sr(sW), TRSZ))
e('s_add_u32 %s, %s, %d' % (sr(sT0), sr(sT0), TR))
e('v_mul_u32_u24 %s, %d, %s' % (vr(sT), TRROW, vr(vLO4)))
e('v_lshl_add_u32 %s, %s, 6, %s' % (vr(sT), vr(vG), vr(sT)))
e('v_add_u32 %s, %s, %s' % (vr(sT), sr(sT0), vr(sT)))
e('v_bfe_u32 %s, %s, 2, 2' % (vr(sT + 1), vr(vLANE)))
e('v_lshl_add_u32 %s, %s, 3, %s' % (vr(sT + 1), vr(vHI5), vr(sT + 1)))
e('v_mul_u32_u24 %s, %d, %s' % (vr(sT + 1), TRROW, vr(sT + 1)))
e('v_bfe_u32 %s, %s, 4, 1' % (vr(sT + 2), vr(vLANE)))
e('v_lshl_add_u32 %s, %s, 5, %s' % (vr(sT + 1), vr(sT + 2), vr(sT + 1)))
e('v_and_b32 %s, 3, %s' % (vr(sT + 2), vr(vLANE)))
e('v_lshl_add_u32 %s, %s, 3, %s' % (vr(sT + 1), vr(sT + 2), vr(sT + 1)))
e('v_add_u32 %s, %s, %s' % (vr(sT + 1), sr(sT0), vr(sT + 1)))
pk = sSR
for part in range(2):
    base = sAI if part else sAR
    ng = '-' if part else ''
    for ee in range(2):
        for T in range(8):
            e('v_cvt_pk_bf16_f32 %s, %s%s, %s%s' % (vr(pk + 16 * part + 8 * ee + T), ng, vr(base + 4 * T + ee), ng, vr(base + 4 * T + 2 + ee)))
        for hh in range(2):
            A.ds('ds_write_b128 %s, %s offset:%d' % (vr(sT), vr(pk + 16 * part + 8 * ee + 4 * hh, 4), part * 16 * TRROW + ee * 32 + hh * 16), 'trw')
A.wait_lg0()
fr = sSM
for part in range(2):
    for rt in range(4):
        for half in range(2):
            A.ds('ds_read_b64_tr_b16 %s, %s offset:%d' % (vr(fr + 16 * part + 4 * rt + 2 * half, 2), vr(sT + 1), (part * 16 + 4 * half) * TRROW + rt * 64), 'tr%d_%d' % (part, rt))
e('s_lshl_b32 %s, %s, 4' % (sr(sHO), sr(sRB)))
e('s_add_u32 %s, %s, %s' % (sr(sHO), sr(sHO), sr(sJ)))
e('s_mul_i32 %s, %s, 38' % (sr(sHO), sr(sHO)))
e('s_lshl_b32 %s, %s, 2' % (sr(sT0), sr(sW)))
e('s_add_u32 %s, %s, %s' % (sr(sHO), sr(sHO), sr(sT0)))
e('s_lshl_b32 %s, %s, 10' % (sr(sHO), sr(sHO)))
e('s_add_u32 %s, %s, 0x%x' % (sr(sHO), sr(sHO), WS_HS))
e('s_add_u32 %s, %s, %d' % (sr(sT0), sr(sHO), 8 * 38 * 1024))
for part in range(2):
    for rt in range(4):
        A.wait_lg('tr%d_%d' % (part, rt))
        A.vmem('buffer_store_dwordx4 %s, %s, %s, %s offen offset:%d sc1' % (vr(fr + 16 * part + 4 * rt, 4), vr(vL16), sr(dWS, 4), sr(sT0 if rt >> 1 else sHO), part * 2048 + (rt & 1) * 1024), 'H')
stamp(6)
wq.pop(12, 76)
f1_publish(sT, 0)
stamp(7)
wq.pop(76, 76)

A.label('L_ph2')
A.vm = []
A.lg = []
pACC, pRING, pT = 0, 112, 240
NRING = 32
srd(dOUT, pOUT, 2048 * 2048)
e('s_lshr_b32 %s, %s, 1' % (sr(sT0), sr(sR)))
e('s_lshl_b32 %s, %s, 2' % (sr(sT0), sr(sT0)))
e('s_add_u32 %s, %s, %s' % (sr(sT0), sr(sT0), sr(sW)))
e('s_lshl_b32 %s, %s, 6' % (sr(sT0), sr(sT0)))
e('s_add_u32 %s, %s, 0x%x' % (sr(sT0), sr(sT0), WS_F1))
e('v_lshlrev_b32 %s, 2, %s' % (vr(pT), vr(vLO4)))
e('s_lshl_b32 %s, %s, 2' % (sr(sHO), sr(sR)))
e('s_add_u32 %s, %s, %s' % (sr(sHO), sr(sHO), sr(sW)))
e('s_mul_i32 %s, %s, %d' % (sr(sHO), sr(sHO), 76 * 1024))
e('s_add_u32 %s, %s, 0x%x' % (sr(sHO), sr(sHO), WS_HS))
lo, ld = newlab('f1l'), newlab('f1d')
e('s_mov_b32 %s, 0' % sr(sCNT))
A.label(lo)
e('buffer_load_dword %s, %s, %s, %s offen sc1' % (vr(pT + 1), vr(pT), sr(dWS, 4), sr(sT0)))
A.wait_vm0()
e('v_cmp_ne_u32 vcc, %s, %s' % (sr(sTAG), vr(pT + 1)))
e('s_add_u32 %s, %s, 1' % (sr(sCNT), sr(sCNT)))
e('s_cmp_eq_u64 vcc, 0')
e('s_cbranch_scc1 %s' % ld)
e('s_cmp_le_u32 %s, 0x40000' % sr(sCNT))
e('s_cbranch_scc1 %s' % lo)
A.label(ld)
stamp(10)
hf = [0]
def hload():
    f = hf[0]
    A.vmem('buffer_load_dwordx4 %s, %s, %s, %s offen offset:%d sc1' % (vr(pRING + 4 * (f % NRING), 4), vr(vL16), sr(dWS, 4), sr(sHO), (f % 4) * 1024), 'h%d' % f)
    if f % 4 == 3:
        e('s_add_u32 %s, %s, 4096' % (sr(sHO), sr(sHO)))
    hf[0] += 1
for _ in range(NRING):
    hload()
vXO, vGO, vDO, vOO = pT, pT + 1, pT + 2, pT + 3
e('s_lshl_b32 %s, %s, 6' % (sr(sT0), sr(sR)))
e('s_lshl_b32 %s, %s, 4' % (sr(sT1), sr(sW)))
e('s_add_u32 %s, %s, %s' % (sr(sT0), sr(sT0), sr(sT1)))
e('v_add_u32 %s, %s, %s' % (vr(vGO), sr(sT0), vr(vG)))
e('s_lshl_b32 %s, %s, 7' % (sr(sT1), sr(sC)))
e('v_lshl_add_u32 %s, %s, 3, %s' % (vr(vDO), vr(vLO4), sr(sT1)))
e('v_lshl_add_u32 %s, %s, 10, %s' % (vr(vXO), vr(vGO), vr(vDO)))
e('v_lshlrev_b32 %s, 1, %s' % (vr(vOO), vr(vXO)))
e('v_lshlrev_b32 %s, 4, %s' % (vr(vGO), vr(vGO)))
e('s_mov_b32 %s, 0x%x' % (sr(sT2), WS_G + 8))
eX = None
late = []
for step in range(38):
    A.wait_vm('h%d' % (2 * step + 1))
    for th in range(2):
        for dh in range(2):
            acc = vr(pACC + 32 * th + 16 * dh, 16)
            e('v_mfma_f32_32x32x16_bf16 %s, %s, %s, %s' % (acc, wreg(2 * step + dh), vr(pRING + 4 * ((2 * step + th) % NRING), 4), acc if step else '0'))
        if hf[0] < 76:
            hload()
    if step == 25:
        eX = pRING + 4 * (44 % NRING)
        eS, eD, eB = eX + 8, eX + 16, eX + 18
        for qx in range(4):
            e('s_mov_b32 %s, %d' % (sr(sT0), qx * 4096))
            A.vmem('buffer_load_dwordx2 %s, %s, %s, %s offen' % (vr(eX + 2 * qx, 2), vr(vXO), sr(dX, 4), sr(sT0)), 'ep')
            A.vmem('buffer_load_dwordx2 %s, %s, %s, %s offen offset:%d sc1' % (vr(eS + 2 * qx, 2), vr(vGO), sr(dWS, 4), sr(sT2), qx * 64), 'ep')
        A.vmem('global_load_dwordx2 %s, %s, %s' % (vr(eD, 2), vr(vDO), sr(pDSK, 2)), 'ep')
        A.vmem('global_load_dwordx2 %s, %s, %s' % (vr(eB, 2), vr(vDO), sr(pB2, 2)), 'ep')
if PROF:
    e('s_memtime %s' % sr(36, 2))
vRW, vRR = pT + 4, pT + 5
e('s_mul_i32 %s, %s, %d' % (sr(sT0), sr(sW), REDP))
e('v_mul_u32_u24 %s, 272, %s' % (vr(vRW), vr(vLO5)))
e('v_lshl_add_u32 %s, %s, 4, %s' % (vr(vRW), vr(vHI5), vr(vRW)))
e('v_add_u32 %s, %s, %s' % (vr(vRW), sr(sT0), vr(vRW)))
e('s_mul_i32 %s, %s, %d' % (sr(sT0), sr(sW), 16 * 272))
e('v_mul_u32_u24 %s, 272, %s' % (vr(vRR), vr(vG)))
e('v_lshl_add_u32 %s, %s, 4, %s' % (vr(vRR), vr(vLO4), vr(vRR)))
e('v_add_u32 %s, %s, %s' % (vr(vRR), sr(sT0), vr(vRR)))
for th in range(2):
    for dh in range(2):
        for qq in range(4):
            A.ds('ds_write_b128 %s, %s offset:%d' % (vr(vRW), vr(pACC + 32 * th + 16 * dh + 4 * qq, 4), RED + th * 32 * 272 + dh * 128 + qq * 32), 'rw')
A.wait_vm('ep')
fT = 64
fD, fB = fT, fT + 4
for (dst, src) in ((fD, eD), (fB, eB)):
    for hh in range(2):
        e('v_lshlrev_b32 %s, 16, %s' % (vr(dst + 2 * hh), vr(src + hh)))
        e('v_and_b32 %s, 0xffff0000, %s' % (vr(dst + 2 * hh + 1), vr(src + hh)))
fR = fT + 8
fU = fT + 24
for qx in range(4):
    r = fR + 4 * qx
    for hh in range(2):
        e('v_lshlrev_b32 %s, 16, %s' % (vr(r + 2 * hh), vr(eX + 2 * qx + hh)))
        e('v_and_b32 %s, 0xffff0000, %s' % (vr(r + 2 * hh + 1), vr(eX + 2 * qx + hh)))
    def rnd4():
        e('v_cvt_pk_bf16_f32 %s, %s, %s' % (vr(fU + 1), vr(fU), vr(fU + 1)))
        e('v_cvt_pk_bf16_f32 %s, %s, %s' % (vr(fU + 3), vr(fU + 2), vr(fU + 3)))
        e('v_lshlrev_b32 %s, 16, %s' % (vr(fU), vr(fU + 1)))
        e('v_lshlrev_b32 %s, 16, %s' % (vr(fU + 2), vr(fU + 3)))
        e('v_and_b32 %s, 0xffff0000, %s' % (vr(fU + 1), vr(fU + 1)))
        e('v_and_b32 %s, 0xffff0000, %s' % (vr(fU + 3), vr(fU + 3)))
    for hh in range(2):
        e('v_pk_add_f32 %s, %s, %s op_sel:[0,0] op_sel_hi:[1,0] neg_lo:[0,1] neg_hi:[0,1]' % (vr(fU + 2 * hh, 2), vr(r + 2 * hh, 2), vr(eS + 2 * qx, 2)))
    rnd4()
    for hh in range(2):
        e('v_pk_mul_f32 %s, %s, %s op_sel:[0,1] op_sel_hi:[1,1]' % (vr(fU + 2 * hh, 2), vr(fU + 2 * hh, 2), vr(eS + 2 * qx, 2)))
    rnd4()
    for hh in range(2):
        e('v_pk_mul_f32 %s, %s, %s' % (vr(fU + 2 * hh, 2), vr(fU + 2 * hh, 2), vr(fD + 2 * hh, 2)))
    rnd4()
    for hh in range(2):
        e('v_pk_add_f32 %s, %s, %s' % (vr(r + 2 * hh, 2), vr(r + 2 * hh, 2), vr(fU + 2 * hh, 2)))
        e('v_pk_add_f32 %s, %s, %s' % (vr(r + 2 * hh, 2), vr(r + 2 * hh, 2), vr(fB + 2 * hh, 2)))
A.wait_lg0()
e('s_barrier')
for qx in range(4):
    for part in range(4):
        A.ds('ds_read_b128 %s, %s offset:%d' % (vr(16 * qx + 4 * part, 4), vr(vRR), RED + part * REDP + qx * 4 * 272), 'rr%d' % qx)
for qx in range(4):
    A.wait_lg('rr%d' % qx)
    r = fR + 4 * qx
    for part in range(4):
        for hh in range(2):
            e('v_pk_add_f32 %s, %s, %s' % (vr(r + 2 * hh, 2), vr(r + 2 * hh, 2), vr(16 * qx + 4 * part + 2 * hh, 2)))
    e('s_mov_b32 %s, %d' % (sr(sT0), qx * 8192))
    A.vmem('buffer_store_dwordx4 %s, %s, %s, %s offen' % (vr(r, 4), vr(vOO), sr(dOUT, 4), sr(sT0)), 'out')
if PROF:
    e('s_memtime %s' % sr(38, 2))
    e('s_waitcnt vmcnt(0)')
    e('s_memtime %s' % sr(40, 2))
    e('s_memrealtime %s' % sr(42, 2))
    e('s_waitcnt lgkmcnt(0)')
    allst = STAMPS + [36, 38, 40, 42]
    for i, s in enumerate(allst):
        e('v_mov_b32 v%d, %s' % (i, sr(s)))
    e('v_mov_b32 v15, %s' % sr(sCNT))
    e('v_mov_b32 v16, 0')
    e('s_lshl_b32 %s, %s, 7' % (sr(sT0), sr(sGW)))
    e('s_add_u32 %s, %s, 0x%x' % (sr(sT0), sr(sT0), WS_PROF))
    e('s_mov_b64 exec, 1')
    for i in range(4):
        e('buffer_store_dwordx4 v[%d:%d], v16, %s, %s offen offset:%d' % (4 * i, 4 * i + 3, sr(dWS, 4), sr(sT0), 16 * i))
A.label('L_end')
e('s_endpgm')

body, nops = hazard_pass(A.lines)
head = open('cdna_kernels/%s.s.ref' % NAME).read().split('; Override launch')[0]
txt = head + '; @launch grid=(256,1,1) block=(256,1,1) lds=%d\n' % LDS_BYTES
txt += '''.amdgcn_target "amdgcn-amd-amdhsa--gfx950"
.text
.globl %s_kernel
.p2align 8
.type %s_kernel,@function
%s_kernel:
''' % (NAME, NAME, NAME)
txt += '\n'.join(body) + '\n'
txt += '''.section .rodata,"a"
.p2align 6
.amdhsa_kernel %s_kernel
  .amdhsa_next_free_vgpr 512
  .amdhsa_next_free_sgpr 102
  .amdhsa_accum_offset 256
  .amdhsa_group_segment_fixed_size 0
  .amdhsa_kernarg_size 136
  .amdhsa_user_sgpr_count 2
  .amdhsa_user_sgpr_kernarg_segment_ptr 1
  .amdhsa_system_sgpr_workgroup_id_x 1
.end_amdhsa_kernel
''' % NAME
open(OUT, 'w').write(txt)
print('wrote', OUT, 'lines', len(body), 'nops', nops)
```

```python
import sys, math, struct
from asmlib import *

NAME = 'parallel_sum__ssm_conv_s5__mixer_channel_mlp__prompt'
PROF = '--prof' in sys.argv
DBGT = '--dbgt' in sys.argv
OUT = [a for a in sys.argv[1:] if not a.startswith('--')]
OUT = OUT[0] if OUT else 'cdna_kernels/%s.s' % NAME

def f2u(x):
    return '0x%08x' % struct.unpack('<I', struct.pack('<f', x))[0]

WS_EPOCH = 0
WS_F0 = 0x1000
WS_F1 = 0x2000
WS_CSB = 0x4000
WS_SM = 0x6000
WS_SR = 0x8000
WS_G = 0x10000
WS_SG = 0x20000
WS_PROF = 0x40000
WS_WP = 0x100000
WS_HS = 0x400000
WS_SIZE = 0x1000000

XS = 0
WSL = 65536
WSLOT = 22528
BS = 65536
CSX = 155648
RED = 0
REDP = 17408
TR = 69632
TRROW = 320
TRSZ = 32 * TRROW
LDS_BYTES = 160 * 1024

sW, sRB, sJ, sROLE, sR, sC, sTAG, sGW = 4, 5, 6, 7, 8, 9, 10, 11
pX, pLRE, pLIM, pBRE, pBIM, pCRE, pCIM, pLDT, pDSK, pBX, pW1, pB1, pW2, pB2, pOUT, pDBG, pWS = [16 + 2 * i for i in range(17)]
dX, dWS, dM1, dM2, dW2, dOUT = 52, 56, 60, 64, 68, 72
sXO, sMO, sM0X, sM0W = 76, 77, 78, 79
sG = [80, 81, 82, 83]
sWO, sHO, sT0, sT1 = 84, 85, 86, 87
sMSK = [88, 90, 92, 94]
sEXTRA, sCNT = 50, 51
sT2, sT3 = 12, 13
sPC = 14
STAMPS = [96, 98, 100, 18, 20, 22, 24, 26, 28, 30, 34]

vLANE, vL16 = 255, 254

A = Asm()
e = A.e
nstamp = [0]
vSTAMP = 249
SNAMES = {}
pending = []
SPAIRS = [96, 98, 100]
def flush_stamps():
    for (i, p) in pending:
        e('v_writelane_b32 %s, %s, %d' % (vr(vSTAMP), sr(p), i))
    del pending[:]
_wl0 = A.wait_lg0
def wait_lg0_hook():
    _wl0()
    flush_stamps()
A.wait_lg0 = wait_lg0_hook
def stamp(name, real=False):
    if not PROF:
        return
    if name not in SNAMES:
        SNAMES[name] = len(SNAMES)
    i = SNAMES[name]
    assert i < 63
    if len(pending) == len(SPAIRS):
        A.wait_lg0()
    used = [p for (_, p) in pending]
    p = [q for q in SPAIRS if q not in used][0]
    e('%s %s' % ('s_memrealtime' if real else 's_memtime', sr(p, 2)))
    pending.append((i, p))

def srd(d, p, size):
    e('s_mov_b32 %s, %s' % (sr(d), sr(p)))
    e('s_mov_b32 %s, %s' % (sr(d + 1), sr(p + 1)))
    e('s_mov_b32 %s, 0x%x' % (sr(d + 2), size))
    e('s_mov_b32 %s, 0x20000' % sr(d + 3))

def rnd_bf16(dst, src):
    e('v_cvt_pk_bf16_f32 %s, %s, %s' % (vr(dst), vr(src), vr(src)))
    e('v_lshlrev_b32 %s, 16, %s' % (vr(dst), vr(dst)))

def cmul(dr, di, ar_, ai, br, bi):
    e('v_mul_f32 %s, %s, %s' % (vr(dr), vr(ar_), vr(br)))
    e('v_mul_f32 %s, %s, %s' % (vr(di), vr(ar_), vr(bi)))
    e('v_fma_f32 %s, -%s, %s, %s' % (vr(dr), vr(ai), vr(bi), vr(dr)))
    e('v_fma_f32 %s, %s, %s, %s' % (vr(di), vr(ai), vr(br), vr(di)))

def cfma(dr, di, ar_, ai, br, bi, cr, ci):
    e('v_fma_f32 %s, %s, %s, %s' % (vr(dr), vr(ar_), vr(br), vr(cr)))
    e('v_fma_f32 %s, %s, %s, %s' % (vr(di), vr(ar_), vr(bi), vr(ci)))
    e('v_fma_f32 %s, -%s, %s, %s' % (vr(dr), vr(ai), vr(bi), vr(dr)))
    e('v_fma_f32 %s, %s, %s, %s' % (vr(di), vr(ai), vr(br), vr(di)))

def csq(dr, di, ar_, ai):
    e('v_mul_f32 %s, %s, %s' % (vr(dr), vr(ar_), vr(ar_)))
    e('v_mul_f32 %s, %s, %s' % (vr(di), vr(ar_), vr(ai)))
    e('v_fma_f32 %s, -%s, %s, %s' % (vr(dr), vr(ai), vr(ai), vr(dr)))
    e('v_add_f32 %s, %s, %s' % (vr(di), vr(di), vr(di)))

labn = [0]
def newlab(s):
    labn[0] += 1
    return 'L_%s_%d' % (s, labn[0])

e('s_cmp_ge_u32 s2, 256')
e('s_cbranch_scc1 L_end')
if PROF:
    e('v_mov_b32 %s, 0' % vr(vSTAMP))
    stamp('rt0', True)
    stamp('t0')
if DBGT:
    e('s_memrealtime s[96:97]')
e('s_load_dwordx16 s[16:31], s[0:1], 0')
e('s_load_dwordx16 s[32:47], s[0:1], 64')
e('s_load_dwordx2 s[48:49], s[0:1], 128')
e('s_getpc_b64 %s' % sr(sPC, 2))
A.label('L_pc')
e('v_and_b32 %s, 63, v0' % vr(vLANE))
e('v_lshrrev_b32 v1, 6, v0')
e('v_lshlrev_b32 %s, 4, %s' % (vr(vL16), vr(vLANE)))
e('v_readfirstlane_b32 %s, v1' % sr(sW))
e('s_and_b32 s3, s2, 7')
e('s_lshr_b32 %s, s2, 3' % sr(sT0))
e('s_lshr_b32 %s, %s, 4' % (sr(sRB), sr(sT0)))
e('s_lshl_b32 %s, s3, 1' % sr(sT1))
e('s_add_u32 %s, %s, %s' % (sr(sRB), sr(sRB), sr(sT1)))
e('s_and_b32 %s, %s, 7' % (sr(sJ), sr(sT0)))
e('s_bfe_u32 %s, %s, 0x10003' % (sr(sROLE), sr(sT0)))
e('s_lshr_b32 %s, %s, 3' % (sr(sR), sr(sT0)))
e('s_lshl_b32 %s, s3, 2' % sr(sT1))
e('s_add_u32 %s, %s, %s' % (sr(sR), sr(sR), sr(sT1)))
e('s_mov_b32 %s, %s' % (sr(sC), sr(sJ)))
e('s_lshl_b32 %s, s2, 2' % sr(sGW))
e('s_add_u32 %s, %s, %s' % (sr(sGW), sr(sGW), sr(sW)))
e('s_lshl_b32 %s, %s, 2' % (sr(sT1), sr(sT0)))
e('s_add_u32 %s, %s, %s' % (sr(sT1), sr(sT1), sr(sW)))
e('s_and_b32 %s, %s, 31' % (sr(sT1), sr(sT1)))
e('s_lshl_b32 %s, %s, 10' % (sr(sT1), sr(sT1)))
e('v_add_u32 v2, %s, %s' % (sr(sT1), vr(vL16)))
e('v_min_u32 v2, L_end-L_pc-16, v2')
A.vmem('global_load_dwordx4 v[4:7], v2, %s' % sr(sPC, 2), 'pf')

vHI5, vLO5, vG, vLO4 = 250, 251, 252, 253
e('v_lshrrev_b32 %s, 5, %s' % (vr(vHI5), vr(vLANE)))
e('v_and_b32 %s, 31, %s' % (vr(vLO5), vr(vLANE)))
e('v_lshrrev_b32 %s, 4, %s' % (vr(vG), vr(vLANE)))
e('v_and_b32 %s, 15, %s' % (vr(vLO4), vr(vLANE)))
e('v_lshlrev_b32 v10, 10, %s' % vr(vHI5))
e('v_lshl_add_u32 v10, %s, 4, v10' % vr(vLO5))
e('v_lshlrev_b32 v11, 10, %s' % vr(vLO5))
e('v_lshl_add_u32 v11, %s, 4, v11' % vr(vHI5))
e('v_lshlrev_b32 v12, 13, %s' % vr(vHI5))
e('v_lshl_add_u32 v12, %s, 1, v12' % vr(vLO5))
e('v_add_u32 v13, 4096, v12')
e('v_mov_b32 v14, 0')
e('s_and_b32 %s, %s, 1' % (sr(sT0), sr(sGW)))
e('s_lshr_b32 %s, %s, 7' % (sr(sT1), sr(sGW)))
e('s_lshl_b32 %s, %s, 1' % (sr(sT1), sr(sT1)))
e('s_add_u32 %s, %s, %s' % (sr(sT1), sr(sT1), sr(sT0)))
e('s_lshl_b32 %s, %s, 15' % (sr(sT1), sr(sT1)))
e('s_bfe_u32 %s, %s, 0x50002' % (sr(sT2), sr(sGW)))
e('s_lshl_b32 %s, %s, 5' % (sr(sT2), sr(sT2)))
e('s_add_u32 %s, %s, %s' % (sr(sT1), sr(sT1), sr(sT2)))
e('v_add_u32 v11, %s, v11' % sr(sT1))
sCD, sWD1, sWS1, sWD2, sWS2 = 76, 77, 78, 79, 80
e('s_lshr_b32 %s, %s, 4' % (sr(sT1), sr(sGW)))
e('s_mul_i32 %s, %s, 38' % (sr(sT1), sr(sT1)))
e('s_and_b32 %s, %s, 15' % (sr(sT2), sr(sGW)))
e('s_add_u32 %s, %s, %s' % (sr(sT1), sr(sT1), sr(sT2)))
e('s_lshl_b32 %s, %s, 10' % (sr(sT1), sr(sT1)))
e('s_add_u32 %s, %s, 0x%x' % (sr(sCD), sr(sT1), WS_WP))

def w2_decode(sq, sdst, ssrc):
    e('s_and_b32 %s, %s, 1' % (sr(sT0), sr(sq)))
    e('s_lshr_b32 %s, %s, 1' % (sr(sT1), sr(sq)))
    e('s_mul_i32 %s, %s, 5958' % (sr(sT2), sr(sT1)))
    e('s_lshr_b32 %s, %s, 16' % (sr(sT2), sr(sT2)))
    e('s_mul_i32 %s, %s, 11' % (sr(sT3), sr(sT2)))
    e('s_sub_u32 %s, %s, %s' % (sr(sT1), sr(sT1), sr(sT3)))
    e('s_mul_i32 %s, %s, 19' % (sr(sT3), sr(sT2)))
    e('s_add_u32 %s, %s, %s' % (sr(sT3), sr(sT3), sr(sT1)))
    e('s_lshl_b32 %s, %s, 1' % (sr(sT3), sr(sT3)))
    e('s_add_u32 %s, %s, %s' % (sr(sT3), sr(sT3), sr(sT0)))
    e('s_lshl_b32 %s, %s, 10' % (sr(sT3), sr(sT3)))
    e('s_add_u32 %s, %s, 0x%x' % (sr(sdst), sr(sT3), WS_WP + 16 * 1024))
    e('s_and_b32 %s, %s, 7' % (sr(sT3), sr(sT2)))
    e('s_mul_i32 %s, %s, 11' % (sr(sT3), sr(sT3)))
    e('s_add_u32 %s, %s, %s' % (sr(sT3), sr(sT3), sr(sT1)))
    e('s_lshl_b32 %s, %s, 14' % (sr(sT3), sr(sT3)))
    e('s_lshr_b32 %s, %s, 3' % (sr(sT2), sr(sT2)))
    e('s_lshl_b32 %s, %s, 1' % (sr(sT2), sr(sT2)))
    e('s_add_u32 %s, %s, %s' % (sr(sT2), sr(sT2), sr(sT0)))
    e('s_lshl_b32 %s, %s, 6' % (sr(sT2), sr(sT2)))
    e('s_add_u32 %s, %s, %s' % (sr(ssrc), sr(sT3), sr(sT2)))

w2_decode(sGW, sWD1, sWS1)
e('s_lshl_b32 s3, %s, 3' % sr(sRB))
e('s_add_u32 s3, s3, %s' % sr(sJ))
e('s_lshl_b32 s3, s3, 2')
e('s_add_u32 s3, s3, %s' % sr(sW))
e('s_lshl_b32 %s, %s, 10' % (sr(sT0), sr(sROLE)))
e('s_add_u32 %s, s3, %s' % (sr(sEXTRA), sr(sT0)))
e('s_add_u32 s3, s3, 1024')
e('s_min_u32 s3, s3, 1407')
w2_decode(3, sWD2, sWS2)

A.wait_lg0()
stamp('karg')
srd(dX, pX, 2048 * 1024)
srd(dWS, pWS, WS_SIZE)
srd(dW2, pW2, 1376 * 1024)
A.vmem('buffer_load_dword v16, v14, %s, 0 offen sc1' % sr(dWS, 4), 'epoch')
e('s_lshl_b32 %s, %s, 11' % (sr(sT0), sr(sGW)))
A.vmem('buffer_load_dwordx4 v[20:23], v10, %s, %s offen' % (sr(dX, 4), sr(sT0)), 'p0x')
A.vmem('buffer_load_dwordx4 v[24:27], v10, %s, %s offen offset:512' % (sr(dX, 4), sr(sT0)), 'p0x')
e('s_cmp_lt_u32 %s, 512' % sr(sGW))
e('s_cselect_b32 %s, %s, %s' % (sr(88), sr(pBRE), sr(pBIM)))
e('s_cselect_b32 %s, %s, %s' % (sr(89), sr(pBRE + 1), sr(pBIM + 1)))
e('s_and_b32 %s, %s, 511' % (sr(sT0), sr(sGW)))
e('s_lshl_b32 %s, %s, 10' % (sr(sT0), sr(sT0)))
e('v_add_u32 v15, %s, %s' % (sr(sT0), vr(vL16)))
A.vmem('global_load_dwordx4 v[28:31], v15, s[88:89]', 'p0b')
e('s_bitcmp0_b32 %s, 1' % sr(sGW))
e('s_cselect_b32 %s, %s, %s' % (sr(90), sr(pCRE), sr(pCIM)))
e('s_cselect_b32 %s, %s, %s' % (sr(91), sr(pCRE + 1), sr(pCIM + 1)))
A.vmem('global_load_dwordx4 v[32:35], v11, s[90:91]', 'p0c')
for jx in range(8):
    A.vmem('buffer_load_ushort v%d, v%d, %s, %s offen offset:%d' % (36 + jx, 12 + jx // 4, sr(dW2, 4), sr(sWS1), (jx % 4) * 1024), 'p0w')
lab = newlab('noex')
e('s_cmp_ge_u32 %s, 384' % sr(sEXTRA))
e('s_cbranch_scc1 %s' % lab)
for jx in range(8):
    A.vmem('buffer_load_ushort v%d, v%d, %s, %s offen offset:%d' % (44 + jx, 12 + jx // 4, sr(dW2, 4), sr(sWS2), (jx % 4) * 1024), 'p0w', opt=True)
A.label(lab)
sCD2, sWD1b, sWD2b = 92, 93, 94
e('s_mov_b32 %s, %s' % (sr(sCD2), sr(sCD)))
e('s_mov_b32 %s, %s' % (sr(sWD1b), sr(sWD1)))
e('s_mov_b32 %s, %s' % (sr(sWD2b), sr(sWD2)))

e('s_lshl_b32 %s, %s, 17' % (sr(sXO), sr(sRB)))
e('s_lshl_b32 %s, %s, 12' % (sr(sM0X), sr(sW)))
vSW0, vSW1, vL3 = 17, 18, 19
e('v_and_b32 v1, 7, %s' % vr(vLANE))
e('v_xor_b32 %s, v1, %s' % (vr(vSW0), vr(vG)))
e('v_lshlrev_b32 %s, 4, %s' % (vr(vSW0), vr(vSW0)))
e('v_xor_b32 %s, 64, %s' % (vr(vSW1), vr(vSW0)))
e('v_lshrrev_b32 %s, 3, %s' % (vr(vL3), vr(vLANE)))
vFA0, vFA1 = 245, 246
e('v_lshrrev_b32 v1, 1, %s' % vr(vLO4))
e('v_xor_b32 v1, v1, %s' % vr(vG))
e('v_lshlrev_b32 v1, 4, v1')
e('v_lshl_add_u32 %s, %s, 7, v1' % (vr(vFA0), vr(vLO4)))
e('v_xor_b32 %s, 64, %s' % (vr(vFA1), vr(vFA0)))


def phase0_compute():
    A.wait_vm('p0x')
    e('v_readfirstlane_b32 %s, v16' % sr(sTAG))
    e('v_mov_b32 v17, 0x3f803f80')
    e('v_mov_b32 v60, 0')
    e('v_mov_b32 v61, 0')
    e('v_mov_b32 v62, 0')
    e('s_add_u32 %s, %s, 1' % (sr(sTAG), sr(sTAG)))
    for i in range(8):
        e('v_dot2_f32_bf16 v60, v%d, v17, v60' % (20 + i))
        e('v_dot2_f32_bf16 v61, v%d, v%d, v61' % (20 + i, 20 + i))
    A.wait_vm('p0b')
    for i in range(4):
        e('v_dot2_f32_bf16 v62, v%d, v17, v62' % (28 + i))
    for sh in (1, 2, 4, 8):
        for r in (60, 61, 62):
            e('v_add_f32_dpp v%d, v%d, v%d row_shr:%d row_mask:0xf bank_mask:0xf bound_ctrl:0' % (r, r, r, sh))
    for r in (60, 61, 62):
        e('v_add_f32_dpp v%d, v%d, v%d row_bcast:15 row_mask:0xa bank_mask:0xf' % (r, r, r))
    e('v_add_f32_dpp v62, v62, v62 row_bcast:31 row_mask:0xc bank_mask:0xf')
    e('v_mul_f32 v60, %s, v60' % f2u(1.0 / 512))
    e('v_mul_f32 v61, %s, v61' % f2u(1.0 / 512))
    e('v_fma_f32 v61, -v60, v60, v61')
    e('v_max_f32 v61, 0, v61')
    rnd_bf16(66, 60)
    rnd_bf16(63, 61)
    e('v_add_f32 v63, %s, v63' % f2u(1e-5))
    rnd_bf16(63, 63)
    e('v_sqrt_f32 v63, v63')
    rnd_bf16(63, 63)
    e('v_rcp_f32 v67, v63')
    e('v_sub_f32 v68, v60, v66')
    e('v_mul_f32 v68, v68, v67')
    rnd_bf16(68, 68)
    e('v_fma_f32 v64, v68, v63, v66')
    e('v_mul_f32 v69, v61, v67')
    e('v_mul_f32 v69, v69, v67')
    rnd_bf16(69, 69)
    e('v_add_f32 v69, %s, v69' % f2u(1e-5))
    rnd_bf16(69, 69)
    e('v_sqrt_f32 v69, v69')
    rnd_bf16(69, 69)
    e('v_mul_f32 v65, v69, v63')
    e('s_lshl_b32 %s, %s, 1' % (sr(sT0), sr(sGW)))
    e('v_add_u32 v70, %s, %s' % (sr(sT0), vr(vHI5)))
    e('v_lshlrev_b32 v71, 4, v70')
    e('v_and_b32 v72, 0xffffffe0, v70')
    e('v_and_b32 v73, 15, v70')
    e('v_lshl_or_b32 v72, v73, 1, v72')
    e('v_bfe_u32 v73, v70, 4, 1')
    e('v_or_b32 v72, v72, v73')
    e('v_lshlrev_b32 v72, 2, v72')
    e('s_mov_b32 exec_lo, 0x80000000')
    e('s_mov_b32 exec_hi, 0x80000000')
    e('s_mov_b32 %s, 0x%x' % (sr(sT0), WS_G))
    e('s_mov_b32 %s, 0x%x' % (sr(sT1), WS_SM))
    e('s_mov_b32 %s, 0x%x' % (sr(sT2), WS_SR))
    A.vmem('buffer_store_dwordx4 v[64:67], v71, %s, %s offen sc1' % (sr(dWS, 4), sr(sT0)), 'p0s')
    A.vmem('buffer_store_dword v66, v72, %s, %s offen sc1' % (sr(dWS, 4), sr(sT1)), 'p0s')
    A.vmem('buffer_store_dword v67, v72, %s, %s offen sc1' % (sr(dWS, 4), sr(sT2)), 'p0s')
    e('s_mov_b32 exec_lo, 0')
    e('s_lshl_b32 %s, %s, 2' % (sr(sT0), sr(sGW)))
    e('s_add_u32 %s, %s, 0x%x' % (sr(sT0), sr(sT0), WS_CSB))
    A.vmem('buffer_store_dword v62, v14, %s, %s offen sc1' % (sr(dWS, 4), sr(sT0)), 'p0s')
    e('s_mov_b64 exec, -1')
    A.wait_vm(['p0c', 'p0w'])
    A.vmem('buffer_store_dwordx4 v[32:35], %s, %s, %s offen sc1' % (vr(vL16), sr(dWS, 4), sr(sCD2)), 'p0s')
    for i in range(4):
        e('v_lshl_or_b32 v%d, v%d, 16, v%d' % (52 + i, 37 + 2 * i, 36 + 2 * i))
    A.vmem('buffer_store_dwordx4 v[52:55], %s, %s, %s offen sc1' % (vr(vL16), sr(dWS, 4), sr(sWD1b)), 'p0s')
    lab = newlab('noex')
    e('s_cmp_ge_u32 %s, 384' % sr(sEXTRA))
    e('s_cbranch_scc1 %s' % lab)
    for i in range(4):
        e('v_lshl_or_b32 v%d, v%d, 16, v%d' % (56 + i, 45 + 2 * i, 44 + 2 * i))
    A.vmem('buffer_store_dwordx4 v[56:59], %s, %s, %s offen sc1' % (vr(vL16), sr(dWS, 4), sr(sWD2b)), 'p0s', opt=True)
    A.label(lab)


def f0_publish(vt):
    lab = newlab('f0p')
    e('s_cmp_lg_u32 %s, 0' % sr(sW))
    e('s_cbranch_scc1 %s' % lab)
    e('s_lshl_b32 %s, s2, 2' % sr(sT0))
    e('s_add_u32 %s, %s, 0x%x' % (sr(sT0), sr(sT0), WS_F0))
    e('v_mov_b32 %s, %s' % (vr(vt), sr(sTAG)))
    e('v_mov_b32 %s, 0' % vr(vt + 1))
    e('s_mov_b64 exec, 1')
    A.vmem('buffer_store_dword %s, %s, %s, %s offen sc1' % (vr(vt), vr(vt + 1), sr(dWS, 4), sr(sT0)), 'f0', opt=True)
    e('s_mov_b64 exec, -1')
    A.label(lab)


def f0_poll_issue(vt):
    e('s_mov_b32 %s, 0x%x' % (sr(sT0), WS_F0))
    A.vmem('buffer_load_dwordx4 %s, %s, %s, %s offen sc1' % (vr(vt, 4), vr(vL16), sr(dWS, 4), sr(sT0)), 'f0poll')


def f0_check(vt):
    lo, ld = newlab('f0l'), newlab('f0d')
    e('s_mov_b32 %s, 0' % sr(sCNT))
    A.label(lo)
    A.wait_vm0()
    e('v_xor_b32 %s, %s, %s' % (vr(vt), sr(sTAG), vr(vt)))
    e('v_xor_b32 %s, %s, %s' % (vr(vt + 1), sr(sTAG), vr(vt + 1)))
    e('v_xor_b32 %s, %s, %s' % (vr(vt + 2), sr(sTAG), vr(vt + 2)))
    e('v_xor_b32 %s, %s, %s' % (vr(vt + 3), sr(sTAG), vr(vt + 3)))
    e('v_or3_b32 %s, %s, %s, %s' % (vr(vt), vr(vt), vr(vt + 1), vr(vt + 2)))
    e('v_or_b32 %s, %s, %s' % (vr(vt), vr(vt), vr(vt + 3)))
    e('v_cmp_ne_u32 vcc, 0, %s' % vr(vt))
    e('s_add_u32 %s, %s, 1' % (sr(sCNT), sr(sCNT)))
    e('s_cmp_eq_u64 vcc, 0')
    e('s_cbranch_scc1 %s' % ld)
    e('s_cmp_gt_u32 %s, 0x40000' % sr(sCNT))
    e('s_cbranch_scc1 %s' % ld)
    e('s_mov_b32 %s, 0x%x' % (sr(sT0), WS_F0))
    e('buffer_load_dwordx4 %s, %s, %s, %s offen sc1' % (vr(vt, 4), vr(vL16), sr(dWS, 4), sr(sT0)))
    e('s_branch %s' % lo)
    A.label(ld)
    if PROF:
        e('v_writelane_b32 %s, %s, 62' % (vr(vSTAMP), sr(sCNT)))
    lab = newlab('ep')
    e('s_cmp_lg_u32 %s, 0' % sr(sGW))
    e('s_cbranch_scc1 %s' % lab)
    e('v_mov_b32 %s, %s' % (vr(vt), sr(sTAG)))
    e('v_mov_b32 %s, 0' % vr(vt + 1))
    e('s_mov_b64 exec, 1')
    A.vmem('buffer_store_dword %s, %s, %s, 0 offen sc1' % (vr(vt), vr(vt + 1), sr(dWS, 4)), 'ep', opt=True)
    e('s_mov_b64 exec, -1')
    A.label(lab)


class WQ:
    def __init__(self):
        self.f = 0
    def init(self):
        e('s_lshl_b32 %s, %s, 3' % (sr(sWO), sr(sC)))
        e('s_lshl_b32 %s, %s, 1' % (sr(sT0), sr(sW)))
        e('s_add_u32 %s, %s, %s' % (sr(sWO), sr(sWO), sr(sT0)))
        e('s_mul_i32 %s, %s, %d' % (sr(sWO), sr(sWO), 38 * 1024))
        e('s_add_u32 %s, %s, 0x%x' % (sr(sWO), sr(sWO), WS_WP))
    def pop(self, n=1, limit=64):
        for _ in range(n):
            if self.f >= limit:
                return
            f = self.f
            dst = ar(4 * f, 4) if f < 64 else vr(64 + 4 * (f - 64), 4)
            A.vmem('buffer_load_dwordx4 %s, %s, %s, %s offen offset:%d sc1' % (dst, vr(vL16), sr(dWS, 4), sr(sWO), (f % 4) * 1024), 'W')
            if f % 4 == 3:
                e('s_add_u32 %s, %s, 4096' % (sr(sWO), sr(sWO)))
            self.f += 1

def wreg(f):
    return ar(4 * f, 4) if f < 64 else vr(64 + 4 * (f - 64), 4)


def f1_publish(vt, role):
    e('s_lshl_b32 %s, %s, 3' % (sr(sT0), sr(sRB)))
    e('s_add_u32 %s, %s, %s' % (sr(sT0), sr(sT0), sr(sJ)))
    e('s_lshl_b32 %s, %s, 3' % (sr(sT0), sr(sT0)))
    e('s_add_u32 %s, %s, %s' % (sr(sT0), sr(sT0), sr(sW)))
    e('s_lshl_b32 %s, %s, 2' % (sr(sT0), sr(sT0)))
    e('s_add_u32 %s, %s, 0x%x' % (sr(sT0), sr(sT0), WS_F1 + role * 16))
    e('v_mov_b32 %s, %s' % (vr(vt), sr(sTAG)))
    e('v_mov_b32 %s, 0' % vr(vt + 1))
    A.wait_vm('H')
    e('s_mov_b64 exec, 1')
    A.vmem('buffer_store_dword %s, %s, %s, %s offen sc1' % (vr(vt), vr(vt + 1), sr(dWS, 4), sr(sT0)), 'f1')
    e('s_mov_b64 exec, -1')


if PROF:
    A.wait_lg0()
e('s_cmp_eq_u32 %s, 0' % sr(sROLE))
e('s_cbranch_scc1 L_ssm')
vm_save = list(A.vm)

mACC, mCS, mW, mX, mB1, mONE, mST = 0, 88, 100, 144, 160, 184, 188
mXD, mWD, mXA, mWA = 196, 200, 206, 208
mT = 216
GSTART = [0, 3, 6, 9]
def grp_of(v):
    return min(v // 3, 3)

srd(dM1, pW1, 512 * 2752)
srd(dM2, pB1, 2752)
e('s_lshl_b32 %s, %s, 15' % (sr(sT0), sr(sW)))
e('v_lshl_add_u32 v1, %s, 10, %s' % (vr(vL3), sr(sT0)))
for i in range(4):
    e('v_add_u32 %s, v1, %s' % (vr(mXD + i), vr(vSW1 if i & 1 else vSW0)))
    if i:
        e('v_add_u32 %s, %d, %s' % (vr(mXD + i), i * (8192 - 1024), vr(mXD + i)))
e('s_mul_i32 %s, %s, %d' % (sr(sT0), sr(sW), 16 * 2752))
e('s_movk_i32 %s, 2979' % sr(sT1))
e('s_movk_i32 %s, 2752' % sr(sT2))
for i in range(6):
    e('v_add_u32 v1, %d, %s' % (64 * i, vr(vLANE)))
    e('v_mul_u32_u24 v2, %s, v1' % sr(sT1))
    e('v_lshrrev_b32 v2, 16, v2')
    e('v_mul_u32_u24 v3, 22, v2')
    e('v_sub_u32 v1, v1, v3')
    e('v_and_b32 v3, 3, v2')
    e('v_bfe_u32 v8, v2, 2, 1')
    e('v_lshl_or_b32 v3, v8, 3, v3')
    e('v_bfe_u32 v8, v2, 3, 1')
    e('v_lshl_or_b32 v3, v8, 2, v3')
    e('v_mul_u32_u24 v3, %s, v3' % sr(sT2))
    e('v_lshl_add_u32 v3, v1, 4, v3')
    e('v_add_u32 %s, %s, v3' % (vr(mWD + i), sr(sT0)))
    if i % 4:
        e('v_subrev_u32 %s, %d, %s' % (vr(mWD + i), (i % 4) * 1024, vr(mWD + i)))
e('s_mul_i32 %s, %s, 352' % (sr(sMO), sr(sJ)))
e('s_mul_i32 %s, %s, 5632' % (sr(sM0W), sr(sW)))
e('s_add_u32 %s, %s, %d' % (sr(sM0W), sr(sM0W), WSL))

def mlp_dma(stage):
    slot = stage & 3
    tag = 'st%d' % stage
    ops = []
    def xop(i):
        def f():
            if i == 0:
                e('s_add_u32 m0, %s, %d' % (sr(sM0X), XS + slot * 16384))
                e('s_add_u32 %s, %s, %d' % (sr(sT2), sr(sXO), stage * 128))
            A.vmem('buffer_load_dwordx4 %s, %s, %s offen offset:%d lds' % (vr(mXD + i), sr(dX, 4), sr(sT2), i * 1024), tag)
        return f
    def wop(i):
        def f():
            if i == 0:
                e('s_add_u32 m0, %s, %d' % (sr(sM0W), slot * WSLOT))
                e('s_add_u32 %s, %s, %d' % (sr(sT3), sr(sMO), stage * 64 * 2752))
            if i == 4:
                e('s_add_u32 m0, %s, %d' % (sr(sM0W), slot * WSLOT + 4096))
            if i == 5:
                e('s_mov_b32 exec_hi, 0')
            A.vmem('buffer_load_dwordx4 %s, %s, %s offen offset:%d lds' % (vr(mWD + i), sr(dM1, 4), sr(sT3), (i % 4) * 1024), tag)
            if i == 5:
                e('s_mov_b32 exec_hi, -1')
        return f
    return [xop(i) for i in range(4)] + [wop(i) for i in range(6)]

for st in range(4):
    for f in mlp_dma(st):
        f()
stamp('dma_iss')
e('s_mul_i32 %s, %s, 3' % (sr(sG[0]), sr(sW)))
e('s_min_u32 %s, %s, 8' % (sr(sG[0]), sr(sG[0])))
e('s_cmp_eq_u32 %s, 0' % sr(sW))
e('s_cselect_b32 %s, 3, 0' % sr(sG[1]))
e('s_cmp_lt_u32 %s, 2' % sr(sW))
e('s_cselect_b32 %s, 6, 3' % sr(sG[2]))
e('s_cmp_lt_u32 %s, 3' % sr(sW))
e('s_cselect_b32 %s, 9, 6' % sr(sG[3]))
e('v_lshlrev_b32 v9, 3, %s' % vr(vG))
for v in range(11):
    g = grp_of(v)
    if v == GSTART[g]:
        e('s_lshl_b32 %s, %s, 5' % (sr(sT0), sr(sG[g])))
        e('s_add_u32 %s, %s, %s' % (sr(sT0), sr(sT0), sr(sMO)))
    A.vmem('buffer_load_dwordx2 %s, v9, %s, %s offen offset:%d' % (vr(mB1 + 2 * v, 2), sr(dM2, 4), sr(sT0), 32 * (v - GSTART[g])), 'b1')
e('v_add_u32 %s, %s, %s' % (vr(mXA), sr(sM0X), vr(vFA0)))
e('v_add_u32 %s, %s, %s' % (vr(mXA + 1), sr(sM0X), vr(vFA1)))
e('v_bfe_u32 v1, %s, 2, 2' % vr(vLANE))
e('v_bfe_u32 v2, %s, 4, 1' % vr(vLANE))
e('v_lshl_add_u32 v1, v2, 2, v1')
e('v_lshl_add_u32 v1, %s, 4, v1' % vr(vHI5))
e('v_mul_u32_u24 v1, 352, v1')
e('v_and_b32 v2, 3, %s' % vr(vLANE))
e('v_lshl_add_u32 v1, v2, 3, v1')
for g in range(4):
    e('s_lshl_b32 %s, %s, 5' % (sr(sT0), sr(sG[g])))
    e('s_add_u32 %s, %s, %d' % (sr(sT0), sr(sT0), WSL))
    e('v_add_u32 %s, %s, v1' % (vr(mWA + 2 * g), sr(sT0)))
    e('v_add_u32 %s, %d, %s' % (vr(mWA + 2 * g + 1), 2 * WSLOT, vr(mWA + 2 * g)))
for i in range(4):
    e('v_mov_b32 %s, 0x3f803f80' % vr(mONE + i))
phase0_compute()
stamp('p0done')

def mlp_rd_w(step, v):
    stage, ks = step // 2, step % 2
    slot = stage & 3
    g = grp_of(v)
    for half in range(2):
        off = (slot & 1) * WSLOT + (32 * ks + 8 * half) * 352 + 32 * (v - GSTART[g])
        A.ds('ds_read_b64_tr_b16 %s, %s offset:%d' % (vr(mW + 4 * v + 2 * half, 2), vr(mWA + 2 * g + (slot >> 1)), off), 'w%d_%d' % (step, v))

def mlp_rd_x(step):
    stage, ks = step // 2, step % 2
    slot = stage & 3
    for a in range(2):
        A.ds('ds_read_b128 %s, %s offset:%d' % (vr(mX + 8 * ks + 4 * a, 4), vr(mXA + ks), XS + slot * 16384 + a * 2048), 'x%d' % step)

wq = WQ()
A.wait_vm('st0')
stamp('st0')
e('s_barrier')
mlp_rd_x(0)
for v in range(11):
    mlp_rd_w(0, v)
pend = []
for step in range(16):
    stage, ks = step // 2, step % 2
    if ks == 1:
        A.wait_lg0()
        stamp('a%d' % stage)
        if stage == 2:
            A.wait_vm(['st3', 'p0s'])
        elif stage == 6:
            f0_check(mT)
        elif stage < 7:
            A.wait_vm('st%d' % (stage + 1))
        stamp('b%d' % stage)
        e('s_barrier')
        if stage == 2:
            f0_publish(mT)
        if stage == 5:
            f0_poll_issue(mT)
        if stage < 4:
            pend = mlp_dma(stage + 4)
        if stage == 6:
            stamp('f0ok')
            e('s_lshl_b32 %s, %s, 11' % (sr(sT0), sr(sRB)))
            e('s_lshl_b32 %s, %s, 9' % (sr(sT1), sr(sW)))
            e('s_add_u32 %s, %s, %s' % (sr(sT0), sr(sT0), sr(sT1)))
            e('s_add_u32 %s, %s, 0x%x' % (sr(sT0), sr(sT0), WS_G))
            e('v_lshlrev_b32 %s, 4, %s' % (vr(mT), vr(vLO4)))
            A.vmem('buffer_load_dwordx2 %s, %s, %s, %s offen sc1' % (vr(mST, 2), vr(mT), sr(dWS, 4), sr(sT0)), 'stat')
            A.vmem('buffer_load_dwordx2 %s, %s, %s, %s offen offset:256 sc1' % (vr(mST + 4, 2), vr(mT), sr(dWS, 4), sr(sT0)), 'stat')
            wq.init()
    for v in range(11):
        if v in (0, 4, 8):
            A.wait_lg(['x%d' % step] + ['w%d_%d' % (step, u) for u in range(v, min(v + 4, 11))])
        for a in range(2):
            acc = vr(mACC + 8 * v + 4 * a, 4)
            e('v_mfma_f32_16x16x32_bf16 %s, %s, %s, %s' % (acc, vr(mW + 4 * v, 4), vr(mX + 8 * ks + 4 * a, 4), acc if step else '0'))
        if v < 3:
            acc = vr(mCS + 4 * v, 4)
            e('v_mfma_f32_16x16x32_bf16 %s, %s, %s, %s' % (acc, vr(mW + 4 * v, 4), vr(mONE, 4), acc if step else '0'))
        if step < 15:
            if v == 0:
                mlp_rd_x(step + 1)
            mlp_rd_w(step + 1, v)
        if pend and v % 2 == 1:
            pend.pop(0)()
        if step >= 13 and v % 3 == 2:
            wq.pop()
assert not pend
stamp('kloop')
e('v_lshlrev_b32 %s, 4, %s' % (vr(mT), vr(vG)))
e('s_lshl_b32 %s, %s, 6' % (sr(sT0), sr(sG[0])))
e('s_add_u32 %s, %s, %d' % (sr(sT0), sr(sT0), CSX))
e('v_add_u32 %s, %s, %s' % (vr(mT + 1), sr(sT0), vr(mT)))
for v in range(3):
    A.ds('ds_write_b128 %s, %s offset:%d' % (vr(mT + 1), vr(mCS + 4 * v, 4), 64 * v), 'csw')
C0 = -2.0 * math.sqrt(2.0 / math.pi) * math.log2(math.e)
C1 = C0 * 0.044715
A.wait_vm(['stat', 'b1'])
for a in range(2):
    b = mST + 4 * a
    e('v_rcp_f32 %s, %s' % (vr(mT + 2), vr(b + 1)))
    e('v_mul_f32 %s, %s, %s' % (vr(b + 2), f2u(C0), vr(mT + 2)))
    e('v_mul_f32 %s, %s, %s' % (vr(b + 3), vr(mT + 2), vr(mT + 2)))
    e('v_mul_f32 %s, %s, %s' % (vr(b + 3), vr(b + 3), vr(mT + 2)))
    e('v_mul_f32 %s, %s, %s' % (vr(b + 3), f2u(C1), vr(b + 3)))
A.wait_lg0()
e('s_barrier')
mCSV = mW
for v in range(11):
    g = grp_of(v)
    if v == GSTART[g]:
        e('s_lshl_b32 %s, %s, 6' % (sr(sT0), sr(sG[g])))
        e('s_add_u32 %s, %s, %d' % (sr(sT0), sr(sT0), CSX))
        e('v_add_u32 %s, %s, %s' % (vr(mT + 1), sr(sT0), vr(mT)))
    A.ds('ds_read_b128 %s, %s offset:%d' % (vr(mCSV + 4 * v, 4), vr(mT + 1), 64 * (v - GSTART[g])), 'cs%d' % v)
e('s_lshr_b32 %s, %s, 1' % (sr(sT0), sr(sW)))
e('s_lshl_b32 %s, %s, 1' % (sr(sHO), sr(sRB)))
e('s_add_u32 %s, %s, %s' % (sr(sHO), sr(sHO), sr(sT0)))
e('s_lshl_b32 %s, %s, 3' % (sr(sHO), sr(sHO)))
e('s_add_u32 %s, %s, %s' % (sr(sHO), sr(sHO), sr(sJ)))
e('s_mul_i32 %s, %s, 38' % (sr(sHO), sr(sHO)))
e('s_and_b32 %s, %s, 1' % (sr(sT0), sr(sW)))
e('s_add_u32 %s, %s, %s' % (sr(sHO), sr(sHO), sr(sT0)))
e('s_lshl_b32 %s, %s, 10' % (sr(sHO), sr(sHO)))
e('s_add_u32 %s, %s, 0x%x' % (sr(sHO), sr(sHO), WS_HS + 16 * 1024))
LOB = 'op_sel:[0,0,0] op_sel_hi:[1,0,1]'
HIB = 'op_sel:[0,1,0] op_sel_hi:[1,1,1]'
tZ, tB, tO = mT + 4, mT + 20, mT + 24
for v in range(11):
    g = grp_of(v)
    e('v_lshlrev_b32 %s, 16, %s' % (vr(tB), vr(mB1 + 2 * v)))
    e('v_and_b32 %s, 0xffff0000, %s' % (vr(tB + 1), vr(mB1 + 2 * v)))
    e('v_lshlrev_b32 %s, 16, %s' % (vr(tB + 2), vr(mB1 + 2 * v + 1)))
    e('v_and_b32 %s, 0xffff0000, %s' % (vr(tB + 3), vr(mB1 + 2 * v + 1)))
    prs = [(a, h) for a in range(2) for h in range(2)]
    def accp(a, h):
        return mACC + 8 * v + 4 * a + 2 * h
    for (a, h) in prs:
        e('v_pk_fma_f32 %s, %s, %s, %s %s' % (vr(accp(a, h), 2), vr(tB + 2 * h, 2), vr(mST + 4 * a, 2), vr(accp(a, h), 2), HIB))
    A.wait_lg('cs%d' % v)
    for (a, h) in prs:
        e('v_pk_fma_f32 %s, %s, %s, %s %s neg_lo:[0,1,0] neg_hi:[0,1,0]' % (vr(accp(a, h), 2), vr(mCSV + 4 * v + 2 * h, 2), vr(mST + 4 * a, 2), vr(accp(a, h), 2), LOB))
    for i, (a, h) in enumerate(prs):
        e('v_pk_mul_f32 %s, %s, %s' % (vr(tZ + 2 * i, 2), vr(accp(a, h), 2), vr(accp(a, h), 2)))
    for i, (a, h) in enumerate(prs):
        e('v_pk_fma_f32 %s, %s, %s, %s op_sel:[0,1,0] op_sel_hi:[1,1,0]' % (vr(tZ + 2 * i, 2), vr(tZ + 2 * i, 2), vr(mST + 4 * a + 2, 2), vr(mST + 4 * a + 2, 2)))
    for i, (a, h) in enumerate(prs):
        e('v_pk_mul_f32 %s, %s, %s' % (vr(tZ + 2 * i, 2), vr(tZ + 2 * i, 2), vr(accp(a, h), 2)))
    wq.pop()
    for i in range(8):
        e('v_exp_f32 %s, %s' % (vr(tZ + i), vr(tZ + i)))
    wq.pop()
    for i, (a, h) in enumerate(prs):
        e('v_pk_fma_f32 %s, %s, %s, %s op_sel:[0,1,1] op_sel_hi:[1,1,1]' % (vr(tZ + 2 * i, 2), vr(tZ + 2 * i, 2), vr(mST + 4 * a, 2), vr(mST + 4 * a, 2)))
    for i in range(8):
        e('v_rcp_f32 %s, %s' % (vr(tZ + i), vr(tZ + i)))
    wq.pop()
    for i, (a, h) in enumerate(prs):
        e('v_pk_mul_f32 %s, %s, %s' % (vr(tZ + 2 * i, 2), vr(tZ + 2 * i, 2), vr(accp(a, h), 2)))
    o = tO + 4 * (v & 1)
    for i in range(4):
        e('v_cvt_pk_bf16_f32 %s, %s, %s' % (vr(o + i), vr(tZ + 2 * i), vr(tZ + 2 * i + 1)))
    e('s_add_u32 %s, %s, %d' % (sr(sT0), sr(sG[g]), v - GSTART[g]))
    e('s_lshl_b32 %s, %s, 11' % (sr(sT0), sr(sT0)))
    e('s_add_u32 %s, %s, %s' % (sr(sT0), sr(sT0), sr(sHO)))
    e('v_permlane16_swap_b32 %s, %s' % (vr(o), vr(o + 2)))
    e('v_permlane16_swap_b32 %s, %s' % (vr(o + 1), vr(o + 3)))
    A.vmem('buffer_store_dwordx4 %s, %s, %s, %s offen sc1' % (vr(o, 4), vr(vL16), sr(dWS, 4), sr(sT0)), 'H')
    wq.pop()
stamp('epi')
wq.pop(12, 76)
f1_publish(mT, 1)
stamp('f1pub')
wq.pop(76, 76)
stamp('wq')
if PROF:
    A.wait_lg0()
e('s_branch L_ph2')

A.label('L_ssm')
A.vm = list(vm_save)
A.lg = []
sAR, sAI, sX, sB, sSM, sSR = 0, 32, 64, 96, 112, 144
kL, kL16, kL32, kP32, kL512, kP128, kCF, kCS = 176, 178, 180, 182, 184, 186, 188, 190
sXD, sBD, sBA = 192, 196, 198
sT = 200
srd(dM1, pBRE, 512 * 1024)
srd(dM2, pBIM, 512 * 1024)
e('s_lshl_b32 %s, %s, 2' % (sr(sT0), sr(sJ)))
e('s_add_u32 %s, %s, %s' % (sr(sT0), sr(sT0), sr(sW)))
e('s_lshl_b32 %s, %s, 5' % (sr(sT0), sr(sT0)))
e('v_lshl_add_u32 %s, %s, 1, %s' % (vr(sT), vr(vLO4), sr(sT0)))
A.vmem('global_load_ushort %s, %s, %s' % (vr(sT + 1), vr(sT), sr(pLRE, 2)), 'lam')
A.vmem('global_load_ushort %s, %s, %s' % (vr(sT + 2), vr(sT), sr(pLIM, 2)), 'lam')
A.vmem('global_load_ushort %s, %s, %s' % (vr(sT + 3), vr(sT), sr(pLDT, 2)), 'lam')
e('v_lshlrev_b32 v1, 5, %s' % vr(vHI5))
e('v_bfe_u32 v2, %s, 3, 1' % vr(vLANE))
e('v_lshl_add_u32 v1, v2, 4, v1')
e('v_bfe_u32 v2, %s, 4, 1' % vr(vLANE))
e('v_add_u32 v1, v1, v2')
e('s_lshl_b32 %s, %s, 12' % (sr(sT0), sr(sW)))
e('v_lshl_add_u32 v1, v1, 10, %s' % sr(sT0))
for i in range(4):
    e('v_add_u32 %s, v1, %s' % (vr(sXD + i), vr(vSW1 if i & 1 else vSW0)))
    add = (64 * (i & 1) + 2 * (i >> 1)) * 1024 - 1024 * i
    if add:
        e('v_add_u32 %s, %d, %s' % (vr(sXD + i), add, vr(sXD + i)))
e('s_lshl_b32 %s, %s, 14' % (sr(sT0), sr(sW)))
e('v_lshl_add_u32 v1, %s, 10, %s' % (vr(vL3), sr(sT0)))
e('v_add_u32 %s, v1, %s' % (vr(sBD), vr(vSW0)))
e('v_add_u32 %s, v1, %s' % (vr(sBD + 1), vr(vSW1)))
e('v_add_u32 %s, %d, %s' % (vr(sBD + 1), 8192 - 1024, vr(sBD + 1)))
e('s_lshl_b32 %s, %s, 16' % (sr(sMO), sr(sJ)))
e('s_add_u32 %s, %s, %d' % (sr(sM0W), sr(sM0X), BS))

def ssm_dma(stage):
    slot = stage & 3
    tag = 'st%d' % stage
    def xop(i):
        def f():
            if i == 0:
                e('s_add_u32 m0, %s, %d' % (sr(sM0X), XS + slot * 16384))
                e('s_add_u32 %s, %s, %d' % (sr(sT2), sr(sXO), stage * 128))
            A.vmem('buffer_load_dwordx4 %s, %s, %s offen offset:%d lds' % (vr(sXD + i), sr(dX, 4), sr(sT2), i * 1024), tag)
        return f
    def bop(i):
        def f():
            if i % 2 == 0:
                e('s_add_u32 m0, %s, %d' % (sr(sM0W), slot * 16384 + (i >> 1) * 2048))
            if i == 0:
                e('s_add_u32 %s, %s, %d' % (sr(sT3), sr(sMO), stage * 128))
            A.vmem('buffer_load_dwordx4 %s, %s, %s offen offset:%d lds' % (vr(sBD + (i & 1)), sr(dM2 if i >> 1 else dM1, 4), sr(sT3), (i & 1) * 1024), tag)
        return f
    return [xop(i) for i in range(4)] + [bop(i) for i in range(4)]

for st in range(4):
    for f in ssm_dma(st):
        f()
stamp('dma_iss')
e('v_add_u32 %s, %s, %s' % (vr(sBA), sr(sM0W), vr(vFA0)))
e('v_add_u32 %s, %s, %s' % (vr(sBA + 1), sr(sM0W), vr(vFA1)))
phase0_compute()
A.wait_vm('lam')
lre, lim, ldt = sT + 1, sT + 2, sT + 3
t0, t1, t2, t3, t4, t5 = [sT + 4 + i for i in range(6)]
LOG2E = math.log2(math.e)
for r in (lre, lim, ldt):
    e('v_lshlrev_b32 %s, 16, %s' % (vr(r), vr(r)))
e('v_mul_f32 %s, %s, %s' % (vr(ldt), f2u(LOG2E), vr(ldt)))
e('v_exp_f32 %s, %s' % (vr(ldt), vr(ldt)))
rnd_bf16(ldt, ldt)
e('v_mul_f32 %s, %s, %s' % (vr(t0), vr(ldt), vr(lre)))
e('v_mul_f32 %s, %s, %s' % (vr(t1), vr(ldt), vr(lim)))
e('v_mul_f32 %s, %s, %s' % (vr(t0), f2u(LOG2E), vr(t0)))
e('v_mul_f32 %s, 0.15915494, %s' % (vr(t1), vr(t1)))
e('v_exp_f32 %s, %s' % (vr(t0), vr(t0)))
e('v_rndne_f32 %s, %s' % (vr(t2), vr(t1)))
e('v_sub_f32 %s, %s, %s' % (vr(t1), vr(t1), vr(t2)))
e('v_cos_f32 %s, %s' % (vr(t2), vr(t1)))
e('v_sin_f32 %s, %s' % (vr(t3), vr(t1)))
e('v_mul_f32 %s, %s, %s' % (vr(kL), vr(t0), vr(t2)))
e('v_mul_f32 %s, %s, %s' % (vr(kL + 1), vr(t0), vr(t3)))
e('v_mul_f32 %s, %s, %s' % (vr(t0), vr(lre), vr(lre)))
e('v_fma_f32 %s, %s, %s, %s' % (vr(t0), vr(lim), vr(lim), vr(t0)))
e('v_rcp_f32 %s, %s' % (vr(t0), vr(t0)))
e('v_add_f32 %s, -1.0, %s' % (vr(t1), vr(kL)))
e('v_add_f32 %s, %s, %s' % (vr(t0), vr(t0), vr(t0)))
e('v_mul_f32 %s, %s, %s' % (vr(t2), vr(t1), vr(lre)))
e('v_fma_f32 %s, %s, %s, %s' % (vr(t2), vr(kL + 1), vr(lim), vr(t2)))
e('v_mul_f32 %s, %s, %s' % (vr(t3), vr(kL + 1), vr(lre)))
e('v_fma_f32 %s, -%s, %s, %s' % (vr(t3), vr(t1), vr(lim), vr(t3)))
e('v_mul_f32 %s, %s, %s' % (vr(kCF), vr(t2), vr(t0)))
e('v_mul_f32 %s, %s, %s' % (vr(kCF + 1), vr(t3), vr(t0)))
csq(t0, t1, kL, kL + 1)
csq(t2, t3, t0, t1)
csq(t0, t1, t2, t3)
csq(kL16, kL16 + 1, t0, t1)
csq(kL32, kL32 + 1, kL16, kL16 + 1)
e('v_and_b32 %s, 1, %s' % (vr(t4), vr(vG)))
e('v_cmp_eq_u32 %s, 1, %s' % (sr(sMSK[0], 2), vr(t4)))
e('v_cmp_lt_u32 %s, 1, %s' % (sr(sMSK[1], 2), vr(vG)))
def pow_by_g(dst, b, sq):
    e('v_mov_b32 %s, 0' % vr(t5))
    e('v_cndmask_b32 %s, 1.0, %s, %s' % (vr(t2), vr(b), sr(sMSK[0], 2)))
    e('v_cndmask_b32 %s, 0, %s, %s' % (vr(t3), vr(b + 1), sr(sMSK[0], 2)))
    e('v_cndmask_b32 %s, 1.0, %s, %s' % (vr(t4), vr(sq), sr(sMSK[1], 2)))
    e('v_cndmask_b32 %s, 0, %s, %s' % (vr(t5), vr(sq + 1), sr(sMSK[1], 2)))
    cmul(dst, dst + 1, t2, t3, t4, t5)
u0, u2 = sT + 10, sT + 12
csq(t0, t1, kL32, kL32 + 1)
pow_by_g(kP32, kL32, t0)
csq(u0, u0 + 1, t0, t1)
csq(u2, u2 + 1, u0, u0 + 1)
pow_by_g(kP128, u0, u2)
csq(kL512, kL512 + 1, u2, u2 + 1)
stamp('p0done')

def ssm_rd_x(step, T):
    stage, ks = step // 2, step % 2
    slot = stage & 3
    A.ds('ds_read_b128 %s, %s offset:%d' % (vr(sX + 4 * T, 4), vr(vFA1 if ks else vFA0), XS + slot * 16384 + T * 2048), 'x%d_%d' % (step, T))

def ssm_rd_b(step):
    stage, ks = step // 2, step % 2
    slot = stage & 3
    for part in range(2):
        A.ds('ds_read_b128 %s, %s offset:%d' % (vr(sB + 8 * ks + 4 * part, 4), vr(sBA + ks), slot * 16384 + part * 2048), 'b%d' % step)

wq = WQ()
A.wait_vm('st0')
stamp('st0')
e('s_barrier')
ssm_rd_b(0)
for T in range(8):
    ssm_rd_x(0, T)
pend = []
for step in range(16):
    stage, ks = step // 2, step % 2
    if ks == 1:
        A.wait_lg0()
        stamp('a%d' % stage)
        if stage == 2:
            A.wait_vm(['st3', 'p0s'])
        elif stage == 6:
            f0_check(sT)
        elif stage < 7:
            A.wait_vm('st%d' % (stage + 1))
        stamp('b%d' % stage)
        e('s_barrier')
        if stage == 2:
            f0_publish(sT)
        if stage == 5:
            f0_poll_issue(sT)
        if stage < 4:
            pend = ssm_dma(stage + 4)
        if stage == 6:
            stamp('f0ok')
            e('s_lshl_b32 %s, %s, 2' % (sr(sT0), sr(sJ)))
            e('s_add_u32 %s, %s, %s' % (sr(sT0), sr(sT0), sr(sW)))
            e('s_lshl_b32 %s, %s, 6' % (sr(sT0), sr(sT0)))
            e('s_add_u32 %s, %s, 0x%x' % (sr(sT0), sr(sT0), WS_CSB))
            e('v_lshlrev_b32 %s, 2, %s' % (vr(sT), vr(vLO4)))
            e('v_lshlrev_b32 %s, 7, %s' % (vr(sT + 1), vr(vG)))
            A.vmem('buffer_load_dword %s, %s, %s, %s offen sc1' % (vr(kCS), vr(sT), sr(dWS, 4), sr(sT0)), 'stat')
            A.vmem('buffer_load_dword %s, %s, %s, %s offen offset:2048 sc1' % (vr(kCS + 1), vr(sT), sr(dWS, 4), sr(sT0)), 'stat')
            e('s_lshl_b32 %s, %s, 9' % (sr(sT2), sr(sRB)))
            e('s_add_u32 %s, %s, 0x%x' % (sr(sT3), sr(sT2), WS_SR))
            e('s_add_u32 %s, %s, 0x%x' % (sr(sT2), sr(sT2), WS_SM))
            def stld(T, which):
                def f():
                    A.vmem('buffer_load_dwordx4 %s, %s, %s, %s offen offset:%d sc1' % (vr((sSR if which else sSM) + 4 * T, 4), vr(sT + 1), sr(dWS, 4), sr(sT3 if which else sT2), 16 * T), 'stat')
                return f
            pend = [stld(T, wh) for T in range(8) for wh in range(2)]
            wq.init()
    for T in range(8):
        if T in (0, 4):
            A.wait_lg(['b%d' % step] + ['x%d_%d' % (step, u) for u in range(T, T + 4)])
        for part in range(2):
            acc = vr((sAI if part else sAR) + 4 * T, 4)
            e('v_mfma_f32_16x16x32_bf16 %s, %s, %s, %s' % (acc, vr(sX + 4 * T, 4), vr(sB + 8 * ks + 4 * part, 4), acc if step else '0'))
        if step < 15:
            if T == 0:
                ssm_rd_b(step + 1)
            ssm_rd_x(step + 1, T)
        if pend and (T % 2 == 1 or step >= 13):
            pend.pop(0)()
        elif step == 15 and T % 2 == 1:
            wq.pop()
assert not pend
stamp('kloop')
A.wait_vm('stat')
for T in range(8):
    for h in range(2):
        o = 4 * T + 2 * h
        e('v_pk_fma_f32 %s, %s, %s, %s op_sel:[0,0,0] op_sel_hi:[1,0,1] neg_lo:[0,1,0] neg_hi:[0,1,0]' % (vr(sAR + o, 2), vr(sSM + o, 2), vr(kCS, 2), vr(sAR + o, 2)))
        e('v_pk_fma_f32 %s, %s, %s, %s op_sel:[0,1,0] op_sel_hi:[1,1,1] neg_lo:[0,1,0] neg_hi:[0,1,0]' % (vr(sAI + o, 2), vr(sSM + o, 2), vr(kCS, 2), vr(sAI + o, 2)))
        e('v_pk_mul_f32 %s, %s, %s' % (vr(sAR + o, 2), vr(sAR + o, 2), vr(sSR + o, 2)))
        e('v_pk_mul_f32 %s, %s, %s' % (vr(sAI + o, 2), vr(sAI + o, 2), vr(sSR + o, 2)))
    if T % 2 == 1:
        wq.pop()
LO = 'op_sel:[0,0,0] op_sel_hi:[1,0,1]'
HI = 'op_sel:[0,1,0] op_sel_hi:[1,1,1]'
NEG = 'neg_lo:[0,1,0] neg_hi:[0,1,0]'
hA, hB = sX, sX + 4
cur = (sAR, sAI)
for s in range(1, 16):
    o = 2 * s
    nxt = (hA, hA + 2) if s & 1 else (hB, hB + 2)
    e('v_pk_fma_f32 %s, %s, %s, %s %s' % (vr(nxt[0], 2), vr(cur[0], 2), vr(kL, 2), vr(sAR + o, 2), LO))
    e('v_pk_fma_f32 %s, %s, %s, %s %s' % (vr(nxt[1], 2), vr(cur[1], 2), vr(kL, 2), vr(sAI + o, 2), LO))
    e('v_pk_fma_f32 %s, %s, %s, %s %s %s' % (vr(nxt[0], 2), vr(cur[1], 2), vr(kL, 2), vr(nxt[0], 2), HI, NEG))
    e('v_pk_fma_f32 %s, %s, %s, %s %s' % (vr(nxt[1], 2), vr(cur[0], 2), vr(kL, 2), vr(nxt[1], 2), HI))
    cur = nxt
    if s % 4 == 3:
        wq.pop()
s0r, s1r, s0i, s1i = cur[0], cur[0] + 1, cur[1], cur[1] + 1
q = sX + 8
ar0, ar1, ar2, ar3, ai0, ai1, ai2, ai3 = [q + i for i in range(8)]
cfma(ar0, ai0, s0r, s0i, kL16, kL16 + 1, s1r, s1i)
for (x0, x1, x2, x3) in ((ar0, ar1, ar2, ar3), (ai0, ai1, ai2, ai3)):
    e('v_mov_b32 %s, %s' % (vr(x1), vr(x0)))
for (x0, x1, x2, x3) in ((ar0, ar1, ar2, ar3), (ai0, ai1, ai2, ai3)):
    e('v_permlane16_swap_b32 %s, %s' % (vr(x0), vr(x1)))
for (x0, x1, x2, x3) in ((ar0, ar1, ar2, ar3), (ai0, ai1, ai2, ai3)):
    e('v_mov_b32 %s, %s' % (vr(x2), vr(x0)))
    e('v_mov_b32 %s, %s' % (vr(x3), vr(x1)))
for (x0, x1, x2, x3) in ((ar0, ar1, ar2, ar3), (ai0, ai1, ai2, ai3)):
    e('v_permlane32_swap_b32 %s, %s' % (vr(x0), vr(x2)))
    e('v_permlane32_swap_b32 %s, %s' % (vr(x1), vr(x3)))
vS = sX + 16
cfma(ar1, ai1, ar0, ai0, kL32, kL32 + 1, ar1, ai1)
cfma(ar2, ai2, ar1, ai1, kL32, kL32 + 1, ar2, ai2)
cfma(vS, vS + 1, ar2, ai2, kL32, kL32 + 1, ar3, ai3)
e('v_mov_b32 %s, %s' % (vr(vS + 2), sr(sTAG)))
e('v_mov_b32 %s, %s' % (vr(vS + 3), sr(sTAG)))
e('s_lshl_b32 %s, %s, 14' % (sr(sT1), sr(sJ)))
e('s_lshl_b32 %s, %s, 8' % (sr(sT0), sr(sW)))
e('s_add_u32 %s, %s, %s' % (sr(sT1), sr(sT1), sr(sT0)))
e('s_add_u32 %s, %s, 0x%x' % (sr(sT1), sr(sT1), WS_SG))
e('s_lshl_b32 %s, %s, 10' % (sr(sT0), sr(sRB)))
e('s_add_u32 %s, %s, %s' % (sr(sT0), sr(sT0), sr(sT1)))
e('s_mov_b64 exec, 0xffff')
A.vmem('buffer_store_dwordx4 %s, %s, %s, %s offen sc1' % (vr(vS, 4), vr(vL16), sr(dWS, 4), sr(sT0)), 'S')
e('s_mov_b64 exec, -1')
stamp('Spub')
Er, Ei = sX + 20, sX + 21
for (E, x0, x1, x2) in ((Er, ar0, ar1, ar2), (Ei, ai0, ai1, ai2)):
    e('v_cndmask_b32 %s, 0, %s, %s' % (vr(E), vr(x0), sr(sMSK[0], 2)))
    e('v_cndmask_b32 %s, %s, %s, %s' % (vr(x1), vr(x1), vr(x2), sr(sMSK[0], 2)))
    e('v_cndmask_b32 %s, %s, %s, %s' % (vr(E), vr(E), vr(x1), sr(sMSK[1], 2)))
vPA = sX + 24
e('s_sub_u32 %s, %s, 1' % (sr(sT0), sr(sRB)))
e('v_sub_u32 %s, %s, %s' % (vr(sT), sr(sT0), vr(vG)))
for i in range(4):
    e('v_subrev_u32 %s, %d, %s' % (vr(vPA + i), 4 * i, vr(sT)))
    e('v_cmp_le_i32 %s, 0, %s' % (sr(sMSK[i], 2), vr(vPA + i)))
    e('v_max_i32 %s, 0, %s' % (vr(vPA + i), vr(vPA + i)))
    e('v_lshlrev_b32 %s, 10, %s' % (vr(vPA + i), vr(vPA + i)))
    e('v_lshl_add_u32 %s, %s, 4, %s' % (vr(vPA + i), vr(vLO4), vr(vPA + i)))
wq.pop(6)
tp = sB
for s in range(16):
    o = 2 * s
    t = tp + 2 * (s & 3)
    e('v_pk_mul_f32 %s, %s, %s op_sel:[0,1] op_sel_hi:[1,1]' % (vr(t, 2), vr(sAR + o, 2), vr(kCF, 2)))
    e('v_pk_mul_f32 %s, %s, %s op_sel:[0,0] op_sel_hi:[1,0]' % (vr(sAR + o, 2), vr(sAR + o, 2), vr(kCF, 2)))
    e('v_pk_fma_f32 %s, %s, %s, %s %s %s' % (vr(sAR + o, 2), vr(sAI + o, 2), vr(kCF, 2), vr(sAR + o, 2), HI, NEG))
    e('v_pk_fma_f32 %s, %s, %s, %s %s' % (vr(sAI + o, 2), vr(sAI + o, 2), vr(kCF, 2), vr(t, 2), LO))
    if s % 4 == 3:
        wq.pop()
vQ = sSM
lo = newlab('sp')
ld = newlab('spd')
e('s_mov_b32 %s, 0' % sr(sCNT))
A.label(lo)
for i in range(4):
    e('buffer_load_dwordx4 %s, %s, %s, %s offen sc1' % (vr(vQ + 4 * i, 4), vr(vPA + i), sr(dWS, 4), sr(sT1)))
A.wait_vm0()
e('s_mov_b64 s[14:15], 0')
for i in range(4):
    e('v_cmp_ne_u32 vcc, %s, %s' % (sr(sTAG), vr(vQ + 4 * i + 2)))
    e('s_and_b64 vcc, vcc, %s' % sr(sMSK[i], 2))
    e('s_or_b64 s[14:15], s[14:15], vcc')
e('s_add_u32 %s, %s, 1' % (sr(sCNT), sr(sCNT)))
e('s_cmp_eq_u64 s[14:15], 0')
e('s_cbranch_scc1 %s' % ld)
e('s_cmp_le_u32 %s, 0x40000' % sr(sCNT))
e('s_cbranch_scc1 %s' % lo)
A.label(ld)
stamp('Sgot')
for i in range(4):
    e('v_cndmask_b32 %s, 0, %s, %s' % (vr(vQ + 4 * i), vr(vQ + 4 * i), sr(sMSK[i], 2)))
    e('v_cndmask_b32 %s, 0, %s, %s' % (vr(vQ + 4 * i + 1), vr(vQ + 4 * i + 1), sr(sMSK[i], 2)))
wq.pop(4)
for i in (2, 1, 0):
    cfma(vQ + 4 * i, vQ + 4 * i + 1, vQ + 4 * i + 4, vQ + 4 * i + 5, kL512, kL512 + 1, vQ + 4 * i, vQ + 4 * i + 1)
hr, hi_, h2, h3 = vQ + 4, vQ + 5, vQ + 6, vQ + 7
cmul(hr, hi_, vQ, vQ + 1, kP128, kP128 + 1)
for sw in ('v_permlane16_swap_b32', 'v_permlane32_swap_b32'):
    e('v_mov_b32 %s, %s' % (vr(h2), vr(hr)))
    e('v_mov_b32 %s, %s' % (vr(h3), vr(hi_)))
    e('%s %s, %s' % (sw, vr(hr), vr(h2)))
    e('%s %s, %s' % (sw, vr(hi_), vr(h3)))
    e('v_add_f32 %s, %s, %s' % (vr(hr), vr(hr), vr(h2)))
    e('v_add_f32 %s, %s, %s' % (vr(hi_), vr(hi_), vr(h3)))
cfma(Er, Ei, hr, hi_, kP32, kP32 + 1, Er, Ei)
cfma(s0r, s0i, Er, Ei, kL16, kL16 + 1, s0r, s0i)
cR, cI = vQ + 8, vQ + 10
cmul(cR, cI, Er, Ei, kCF, kCF + 1)
cmul(cR + 1, cI + 1, s0r, s0i, kCF, kCF + 1)
cur = (cR, cI)
for s in range(16):
    o = 2 * s
    e('v_pk_fma_f32 %s, %s, %s, %s %s' % (vr(sAR + o, 2), vr(cur[0], 2), vr(kL, 2), vr(sAR + o, 2), LO))
    e('v_pk_fma_f32 %s, %s, %s, %s %s' % (vr(sAI + o, 2), vr(cur[1], 2), vr(kL, 2), vr(sAI + o, 2), LO))
    e('v_pk_fma_f32 %s, %s, %s, %s %s %s' % (vr(sAR + o, 2), vr(cur[1], 2), vr(kL, 2), vr(sAR + o, 2), HI, NEG))
    e('v_pk_fma_f32 %s, %s, %s, %s %s' % (vr(sAI + o, 2), vr(cur[0], 2), vr(kL, 2), vr(sAI + o, 2), HI))
    cur = (sAR + o, sAI + o)
    if s % 4 == 3:
        wq.pop()
e('s_mul_i32 %s, %s, %d' % (sr(sT0), sr(sW), TRSZ))
e('s_add_u32 %s, %s, %d' % (sr(sT0), sr(sT0), TR))
e('v_mul_u32_u24 %s, %d, %s' % (vr(sT), TRROW, vr(vLO4)))
e('v_lshl_add_u32 %s, %s, 6, %s' % (vr(sT), vr(vG), vr(sT)))
e('v_add_u32 %s, %s, %s' % (vr(sT), sr(sT0), vr(sT)))
e('v_bfe_u32 %s, %s, 2, 2' % (vr(sT + 1), vr(vLANE)))
e('v_lshl_add_u32 %s, %s, 3, %s' % (vr(sT + 1), vr(vHI5), vr(sT + 1)))
e('v_mul_u32_u24 %s, %d, %s' % (vr(sT + 1), TRROW, vr(sT + 1)))
e('v_bfe_u32 %s, %s, 4, 1' % (vr(sT + 2), vr(vLANE)))
e('v_lshl_add_u32 %s, %s, 5, %s' % (vr(sT + 1), vr(sT + 2), vr(sT + 1)))
e('v_and_b32 %s, 3, %s' % (vr(sT + 2), vr(vLANE)))
e('v_lshl_add_u32 %s, %s, 3, %s' % (vr(sT + 1), vr(sT + 2), vr(sT + 1)))
e('v_add_u32 %s, %s, %s' % (vr(sT + 1), sr(sT0), vr(sT + 1)))
pk = sSR
for part in range(2):
    base = sAI if part else sAR
    ng = '-' if part else ''
    for ee in range(2):
        for T in range(8):
            e('v_cvt_pk_bf16_f32 %s, %s%s, %s%s' % (vr(pk + 16 * part + 8 * ee + T), ng, vr(base + 4 * T + ee), ng, vr(base + 4 * T + 2 + ee)))
        for hh in range(2):
            A.ds('ds_write_b128 %s, %s offset:%d' % (vr(sT), vr(pk + 16 * part + 8 * ee + 4 * hh, 4), part * 16 * TRROW + ee * 32 + hh * 16), 'trw')
A.wait_lg0()
fr = sSM
for part in range(2):
    for rt in range(4):
        for half in range(2):
            A.ds('ds_read_b64_tr_b16 %s, %s offset:%d' % (vr(fr + 16 * part + 4 * rt + 2 * half, 2), vr(sT + 1), (part * 16 + 4 * half) * TRROW + rt * 64), 'tr%d_%d' % (part, rt))
e('s_lshl_b32 %s, %s, 4' % (sr(sHO), sr(sRB)))
e('s_add_u32 %s, %s, %s' % (sr(sHO), sr(sHO), sr(sJ)))
e('s_mul_i32 %s, %s, 38' % (sr(sHO), sr(sHO)))
e('s_lshl_b32 %s, %s, 2' % (sr(sT0), sr(sW)))
e('s_add_u32 %s, %s, %s' % (sr(sHO), sr(sHO), sr(sT0)))
e('s_lshl_b32 %s, %s, 10' % (sr(sHO), sr(sHO)))
e('s_add_u32 %s, %s, 0x%x' % (sr(sHO), sr(sHO), WS_HS))
e('s_add_u32 %s, %s, %d' % (sr(sT0), sr(sHO), 8 * 38 * 1024))
for part in range(2):
    for rt in range(4):
        A.wait_lg('tr%d_%d' % (part, rt))
        A.vmem('buffer_store_dwordx4 %s, %s, %s, %s offen offset:%d sc1' % (vr(fr + 16 * part + 4 * rt, 4), vr(vL16), sr(dWS, 4), sr(sT0 if rt >> 1 else sHO), part * 2048 + (rt & 1) * 1024), 'H')
stamp('epi')
wq.pop(12, 76)
f1_publish(sT, 0)
stamp('f1pub')
wq.pop(76, 76)
stamp('wq')
if PROF:
    A.wait_lg0()

A.label('L_ph2')
A.vm = []
A.lg = []
pACC, pRING, pT = 0, 112, 240
NRING = 32
srd(dOUT, pOUT, 2048 * 2048)
e('s_lshr_b32 %s, %s, 1' % (sr(sT0), sr(sR)))
e('s_lshl_b32 %s, %s, 2' % (sr(sT0), sr(sT0)))
e('s_add_u32 %s, %s, %s' % (sr(sT0), sr(sT0), sr(sW)))
e('s_lshl_b32 %s, %s, 6' % (sr(sT0), sr(sT0)))
e('s_add_u32 %s, %s, 0x%x' % (sr(sT0), sr(sT0), WS_F1))
e('v_lshlrev_b32 %s, 2, %s' % (vr(pT), vr(vLO4)))
e('s_lshl_b32 %s, %s, 2' % (sr(sHO), sr(sR)))
e('s_add_u32 %s, %s, %s' % (sr(sHO), sr(sHO), sr(sW)))
e('s_mul_i32 %s, %s, %d' % (sr(sHO), sr(sHO), 76 * 1024))
e('s_add_u32 %s, %s, 0x%x' % (sr(sHO), sr(sHO), WS_HS))
lo, ld = newlab('f1l'), newlab('f1d')
e('s_mov_b32 %s, 0' % sr(sCNT))
A.label(lo)
e('buffer_load_dword %s, %s, %s, %s offen sc1' % (vr(pT + 1), vr(pT), sr(dWS, 4), sr(sT0)))
A.wait_vm0()
e('v_cmp_ne_u32 vcc, %s, %s' % (sr(sTAG), vr(pT + 1)))
e('s_add_u32 %s, %s, 1' % (sr(sCNT), sr(sCNT)))
e('s_cmp_eq_u64 vcc, 0')
e('s_cbranch_scc1 %s' % ld)
e('s_cmp_le_u32 %s, 0x40000' % sr(sCNT))
e('s_cbranch_scc1 %s' % lo)
A.label(ld)
stamp('f1ok')
hf = [0]
def hload():
    f = hf[0]
    A.vmem('buffer_load_dwordx4 %s, %s, %s, %s offen offset:%d sc1' % (vr(pRING + 4 * (f % NRING), 4), vr(vL16), sr(dWS, 4), sr(sHO), (f % 4) * 1024), 'h%d' % f)
    if f % 4 == 3:
        e('s_add_u32 %s, %s, 4096' % (sr(sHO), sr(sHO)))
    hf[0] += 1
for _ in range(NRING):
    hload()
vXO, vGO, vDO, vOO = pT, pT + 1, pT + 2, pT + 3
e('s_lshl_b32 %s, %s, 6' % (sr(sT0), sr(sR)))
e('s_lshl_b32 %s, %s, 4' % (sr(sT1), sr(sW)))
e('s_add_u32 %s, %s, %s' % (sr(sT0), sr(sT0), sr(sT1)))
e('v_add_u32 %s, %s, %s' % (vr(vGO), sr(sT0), vr(vG)))
e('s_lshl_b32 %s, %s, 7' % (sr(sT1), sr(sC)))
e('v_lshl_add_u32 %s, %s, 3, %s' % (vr(vDO), vr(vLO4), sr(sT1)))
e('v_lshl_add_u32 %s, %s, 10, %s' % (vr(vXO), vr(vGO), vr(vDO)))
e('v_lshlrev_b32 %s, 1, %s' % (vr(vOO), vr(vXO)))
e('v_lshlrev_b32 %s, 4, %s' % (vr(vGO), vr(vGO)))
e('s_mov_b32 %s, 0x%x' % (sr(sT2), WS_G + 8))
eX = None
late = []
for step in range(38):
    A.wait_vm('h%d' % (2 * step + 1))
    if step in (0, 8, 16, 24, 32):
        stamp('h%d' % step)
    for th in range(2):
        for dh in range(2):
            acc = vr(pACC + 32 * th + 16 * dh, 16)
            e('v_mfma_f32_32x32x16_bf16 %s, %s, %s, %s' % (acc, wreg(2 * step + dh), vr(pRING + 4 * ((2 * step + th) % NRING), 4), acc if step else '0'))
        if hf[0] < 76:
            hload()
    if step == 25:
        eX = pRING + 4 * (44 % NRING)
        eS, eD, eB = eX + 8, eX + 16, eX + 18
        for qx in range(4):
            e('s_mov_b32 %s, %d' % (sr(sT0), qx * 4096))
            A.vmem('buffer_load_dwordx2 %s, %s, %s, %s offen' % (vr(eX + 2 * qx, 2), vr(vXO), sr(dX, 4), sr(sT0)), 'ep')
            A.vmem('buffer_load_dwordx2 %s, %s, %s, %s offen offset:%d sc1' % (vr(eS + 2 * qx, 2), vr(vGO), sr(dWS, 4), sr(sT2), qx * 64), 'ep')
        A.vmem('global_load_dwordx2 %s, %s, %s' % (vr(eD, 2), vr(vDO), sr(pDSK, 2)), 'ep')
        A.vmem('global_load_dwordx2 %s, %s, %s' % (vr(eB, 2), vr(vDO), sr(pB2, 2)), 'ep')
stamp('mfma2')
vRW, vRR = pT + 4, pT + 5
e('s_mul_i32 %s, %s, %d' % (sr(sT0), sr(sW), REDP))
e('v_mul_u32_u24 %s, 272, %s' % (vr(vRW), vr(vLO5)))
e('v_lshl_add_u32 %s, %s, 4, %s' % (vr(vRW), vr(vHI5), vr(vRW)))
e('v_add_u32 %s, %s, %s' % (vr(vRW), sr(sT0), vr(vRW)))
e('s_mul_i32 %s, %s, %d' % (sr(sT0), sr(sW), 16 * 272))
e('v_mul_u32_u24 %s, 272, %s' % (vr(vRR), vr(vG)))
e('v_lshl_add_u32 %s, %s, 4, %s' % (vr(vRR), vr(vLO4), vr(vRR)))
e('v_add_u32 %s, %s, %s' % (vr(vRR), sr(sT0), vr(vRR)))
for th in range(2):
    for dh in range(2):
        for qq in range(4):
            A.ds('ds_write_b128 %s, %s offset:%d' % (vr(vRW), vr(pACC + 32 * th + 16 * dh + 4 * qq, 4), RED + th * 32 * 272 + dh * 128 + qq * 32), 'rw')
A.wait_vm('ep')
fT = 64
fD, fB = fT, fT + 4
for (dst, src) in ((fD, eD), (fB, eB)):
    for hh in range(2):
        e('v_lshlrev_b32 %s, 16, %s' % (vr(dst + 2 * hh), vr(src + hh)))
        e('v_and_b32 %s, 0xffff0000, %s' % (vr(dst + 2 * hh + 1), vr(src + hh)))
fR = fT + 8
fU = fT + 24
for qx in range(4):
    r = fR + 4 * qx
    for hh in range(2):
        e('v_lshlrev_b32 %s, 16, %s' % (vr(r + 2 * hh), vr(eX + 2 * qx + hh)))
        e('v_and_b32 %s, 0xffff0000, %s' % (vr(r + 2 * hh + 1), vr(eX + 2 * qx + hh)))
    def rnd4():
        e('v_cvt_pk_bf16_f32 %s, %s, %s' % (vr(fU + 1), vr(fU), vr(fU + 1)))
        e('v_cvt_pk_bf16_f32 %s, %s, %s' % (vr(fU + 3), vr(fU + 2), vr(fU + 3)))
        e('v_lshlrev_b32 %s, 16, %s' % (vr(fU), vr(fU + 1)))
        e('v_lshlrev_b32 %s, 16, %s' % (vr(fU + 2), vr(fU + 3)))
        e('v_and_b32 %s, 0xffff0000, %s' % (vr(fU + 1), vr(fU + 1)))
        e('v_and_b32 %s, 0xffff0000, %s' % (vr(fU + 3), vr(fU + 3)))
    for hh in range(2):
        e('v_pk_add_f32 %s, %s, %s op_sel:[0,0] op_sel_hi:[1,0] neg_lo:[0,1] neg_hi:[0,1]' % (vr(fU + 2 * hh, 2), vr(r + 2 * hh, 2), vr(eS + 2 * qx, 2)))
    rnd4()
    for hh in range(2):
        e('v_pk_mul_f32 %s, %s, %s op_sel:[0,1] op_sel_hi:[1,1]' % (vr(fU + 2 * hh, 2), vr(fU + 2 * hh, 2), vr(eS + 2 * qx, 2)))
    rnd4()
    for hh in range(2):
        e('v_pk_mul_f32 %s, %s, %s' % (vr(fU + 2 * hh, 2), vr(fU + 2 * hh, 2), vr(fD + 2 * hh, 2)))
    rnd4()
    for hh in range(2):
        e('v_pk_add_f32 %s, %s, %s' % (vr(r + 2 * hh, 2), vr(r + 2 * hh, 2), vr(fU + 2 * hh, 2)))
        e('v_pk_add_f32 %s, %s, %s' % (vr(r + 2 * hh, 2), vr(r + 2 * hh, 2), vr(fB + 2 * hh, 2)))
A.wait_lg0()
e('s_barrier')
for qx in range(4):
    for part in range(4):
        A.ds('ds_read_b128 %s, %s offset:%d' % (vr(16 * qx + 4 * part, 4), vr(vRR), RED + part * REDP + qx * 4 * 272), 'rr%d' % qx)
for qx in range(4):
    A.wait_lg('rr%d' % qx)
    r = fR + 4 * qx
    for part in range(4):
        for hh in range(2):
            e('v_pk_add_f32 %s, %s, %s' % (vr(r + 2 * hh, 2), vr(r + 2 * hh, 2), vr(16 * qx + 4 * part + 2 * hh, 2)))
    e('s_mov_b32 %s, %d' % (sr(sT0), qx * 8192))
    A.vmem('buffer_store_dwordx4 %s, %s, %s, %s offen' % (vr(r, 4), vr(vOO), sr(dOUT, 4), sr(sT0)), 'out')
if PROF:
    stamp('stored')
    e('s_waitcnt vmcnt(0)')
    stamp('drained')
    stamp('rt1', True)
    A.wait_lg0()
    e('v_writelane_b32 %s, %s, 63' % (vr(vSTAMP), sr(sCNT)))
    e('v_lshlrev_b32 v16, 2, %s' % vr(vLANE))
    e('s_lshl_b32 %s, %s, 8' % (sr(sT0), sr(sGW)))
    e('s_add_u32 %s, %s, 0x%x' % (sr(sT0), sr(sT0), WS_PROF))
    e('buffer_store_dword %s, v16, %s, %s offen' % (vr(vSTAMP), sr(dWS, 4), sr(sT0)))
    import json
    json.dump(SNAMES, open(OUT + '.names', 'w'))
if DBGT:
    e('s_waitcnt vmcnt(0)')
    e('s_memrealtime s[98:99]')
    e('s_waitcnt lgkmcnt(0)')
    e('s_not_b32 s100, s96')
    e('s_not_b32 s101, s98')
    e('v_mov_b32 v0, s98')
    e('v_mov_b32 v1, s100')
    e('v_mov_b32 v2, s96')
    e('v_mov_b32 v3, s101')
    e('v_mov_b32 v4, 0')
    e('s_mov_b64 exec, 1')
    e('global_atomic_umax v4, v0, %s' % sr(pDBG, 2))
    e('global_atomic_umax v4, v1, %s offset:4' % sr(pDBG, 2))
    e('global_atomic_umax v4, v2, %s offset:8' % sr(pDBG, 2))
    e('global_atomic_umax v4, v3, %s offset:12' % sr(pDBG, 2))
A.label('L_end')
e('s_endpgm')

body, nops = hazard_pass(A.lines)
head = open('cdna_kernels/%s.s.ref' % NAME).read().split('; Override launch')[0]
txt = head + '; @launch grid=(256,1,1) block=(256,1,1) lds=%d\n' % LDS_BYTES
txt += '''.amdgcn_target "amdgcn-amd-amdhsa--gfx950"
.text
.globl %s_kernel
.p2align 8
.type %s_kernel,@function
%s_kernel:
''' % (NAME, NAME, NAME)
txt += '\n'.join(body) + '\n'
txt += '''.section .rodata,"a"
.p2align 6
.amdhsa_kernel %s_kernel
  .amdhsa_next_free_vgpr 512
  .amdhsa_next_free_sgpr 102
  .amdhsa_accum_offset 256
  .amdhsa_group_segment_fixed_size 0
  .amdhsa_kernarg_size 136
  .amdhsa_user_sgpr_count 2
  .amdhsa_user_sgpr_kernarg_segment_ptr 1
  .amdhsa_system_sgpr_workgroup_id_x 1
.end_amdhsa_kernel
''' % NAME
open(OUT, 'w').write(txt)
print('wrote', OUT, 'lines', len(body), 'nops', nops)
```

```python
import sys, math, struct, json
from asmlib import *

NAME = 'parallel_sum__ssm_conv_s5__mixer_channel_mlp__prompt'
PROF = '--prof' in sys.argv
OUT = [a for a in sys.argv[1:] if not a.startswith('--') and '=' not in a]
OUT = OUT[0] if OUT else 'cdna_kernels/%s.s' % NAME
OPT = dict(ROT=4, DINT=64, PBPOS=14, STATPOS=1, LBPOS=2, OUTSC=0, PXPOS=34, NPRE=8, RPOP=8, HINT=62, PTOUCH=1, DCOST=2, D1PRE=9, STL=4, BUD0=2, NB0=4, X=0, HSC=1, HLC=1, PRET=0, PRC=2, WSB=0)
for a in sys.argv[1:]:
    if '=' in a:
        k, v = a.split('=')
        assert k in OPT, k
        OPT[k] = int(v)

def f2u(x):
    return '0x%08x' % struct.unpack('<I', struct.pack('<f', x))[0]

WS_AL = 0x1000
WS_G = 0x8000
WS_SG = 0x10000
WS_PROF = 0x40000
WS_FA = 0x80000
WS_FB = 0xA0000
WS_PX = 0x100000
WS_H = 0x800000
WS_SIZE = 0x1200000
HR = 152 * 2048

SLOT, PIECE = 36864, 9216
TAB, TROW = 147456, 272
CSX = TAB + 25 * TROW
PE = 155648
assert CSX + 1280 <= PE and CSX % 16 == 0
LDS_BYTES = 160 * 1024

sW, sRB, sJ, sKH, sC, sRBL, sTAG, sGW, sT2, sT3, sPC = 4, 5, 6, 7, 8, 9, 10, 11, 12, 13, 14
pX, pLRE, pLIM, pBRE, pBIM, pCRE, pCIM, pLDT, pDSK, pBX, pW1, pB1, pW2, pB2, pOUT, pDBG, pWS = [16 + 2 * i for i in range(17)]
sPERM, sCNT = 50, 51
dX, dWS, dB, dW1, dW2, dO = 52, 56, 60, 64, 68, 72
sM0, sSX, sSW, sOFF, sM8, sME, sWS, sWE, sCR, sCG, sT0, sT1 = range(76, 88)
sMSK = [88, 90, 92, 94]
sTH, sPH, sJT = 34, 35, 46
sD0, sSG, sSGO, sHM, sHS, sFL, sPA, sPB, sH1, sH2 = range(16, 26)
sSSM, sGR, sPX, sPX2, sHU, sHC, sF0, sF1 = 30, 31, 32, 33, 36, 37, 38, 39

vLANE, vL16, vLO4, vG, vLO5, vHI5, vSTAMP, vSCR = 255, 254, 253, 252, 251, 250, 249, 248

A = Asm()
e = A.e
EXPECT = dict([('st%d' % v, 9) for v in range(8)] + [('stat', 4), ('W', 38), ('srow', 2), ('lb', 4), ('pb', 1), ('px', 6), ('res', 8)])
ISSUED = {}
_vm, _wv = A.vmem, A.wait_vm
def vm_hook(s, tag='x', opt=False):
    ISSUED[tag] = ISSUED.get(tag, 0) + 1
    if OPT['X'] & 1 and ' lds' in s and tag not in ('st0', 'st1'):
        return
    _vm(s, tag, opt)
def wv_hook(tags):
    for t in ([tags] if isinstance(tags, str) else tags):
        assert ISSUED.get(t, 0) >= EXPECT.get(t, 1), (t, ISSUED.get(t, 0))
    _wv(tags)
A.vmem, A.wait_vm = vm_hook, wv_hook
DSN = {}
_ds = A.ds
def ds_hook(s, tag='x'):
    DSN[tag] = DSN.get(tag, 0) + 1
    if OPT['X'] & 4 and tag[0] in 'xa' and tag[1].isdigit():
        return
    _ds(s, tag)
A.ds = ds_hook
SNAMES = {}
pending = []
SPAIRS = [96, 98, 100]
def flush_stamps():
    for (i, p) in pending:
        e('v_writelane_b32 %s, %s, %d' % (vr(vSTAMP), sr(p), i))
    del pending[:]
_wl0 = A.wait_lg0
def wait_lg0_hook():
    _wl0()
    flush_stamps()
A.wait_lg0 = wait_lg0_hook
def stamp(name, real=False):
    if not PROF:
        return
    assert name not in SNAMES
    SNAMES[name] = len(SNAMES)
    i = SNAMES[name]
    assert i < 58
    if len(pending) == len(SPAIRS):
        A.wait_lg0()
    used = [p for (_, p) in pending]
    p = [q for q in SPAIRS if q not in used][0]
    e('%s %s' % ('s_memrealtime' if real else 's_memtime', sr(p, 2)))
    pending.append((i, p))
def count(slot):
    if PROF:
        e('v_writelane_b32 %s, %s, %d' % (vr(vSTAMP), sr(sCNT), slot))

def srd(d, p, size):
    e('s_mov_b32 %s, %s' % (sr(d), sr(p)))
    e('s_mov_b32 %s, %s' % (sr(d + 1), sr(p + 1)))
    e('s_mov_b32 %s, 0x%x' % (sr(d + 2), size))
    e('s_mov_b32 %s, 0x20000' % sr(d + 3))

def cmul(dr, di, ar_, ai, br, bi):
    e('v_mul_f32 %s, %s, %s' % (vr(dr), vr(ar_), vr(br)))
    e('v_mul_f32 %s, %s, %s' % (vr(di), vr(ar_), vr(bi)))
    e('v_fma_f32 %s, -%s, %s, %s' % (vr(dr), vr(ai), vr(bi), vr(dr)))
    e('v_fma_f32 %s, %s, %s, %s' % (vr(di), vr(ai), vr(br), vr(di)))

def cfma(dr, di, ar_, ai, br, bi, cr, ci):
    e('v_fma_f32 %s, %s, %s, %s' % (vr(dr), vr(ar_), vr(br), vr(cr)))
    e('v_fma_f32 %s, %s, %s, %s' % (vr(di), vr(ar_), vr(bi), vr(ci)))
    e('v_fma_f32 %s, -%s, %s, %s' % (vr(dr), vr(ai), vr(bi), vr(dr)))
    e('v_fma_f32 %s, %s, %s, %s' % (vr(di), vr(ai), vr(br), vr(di)))

NEG1 = 'neg_lo:[0,1,0] neg_hi:[0,1,0]'
def pk_cfma4(dr, di, ar_, ai, k, cr, ci):
    for h in (0, 2):
        e('v_pk_fma_f32 %s, %s, %s, %s' % (vr(dr + h, 2), vr(ar_ + h, 2), vr(k + h, 2), vr(cr + h, 2)))
    for h in (0, 2):
        e('v_pk_fma_f32 %s, %s, %s, %s' % (vr(di + h, 2), vr(ai + h, 2), vr(k + h, 2), vr(ci + h, 2)))
    for h in (0, 2):
        e('v_pk_fma_f32 %s, %s, %s, %s %s' % (vr(dr + h, 2), vr(ai + h, 2), vr(k + 4 + h, 2), vr(dr + h, 2), NEG1))
    for h in (0, 2):
        e('v_pk_fma_f32 %s, %s, %s, %s' % (vr(di + h, 2), vr(ar_ + h, 2), vr(k + 4 + h, 2), vr(di + h, 2)))

labn = [0]
def newlab(s):
    labn[0] += 1
    return 'L_%s_%d' % (s, labn[0])

def S(fmt, *a):
    e(fmt % tuple(sr(x) if isinstance(x, int) else x for x in a))

def retry_loop(name, issue, check, slot, first=True):
    lo, ld = newlab(name + 'l'), newlab(name + 'd')
    if first:
        check()
    if PROF:
        S('s_mov_b32 %s, 0', sCNT)
    e('s_cbranch_vccz %s' % ld)
    S('s_mov_b32 %s, 0', sCNT)
    A.label(lo)
    sv = list(A.vm)
    issue()
    e('s_waitcnt vmcnt(0)')
    A.vm = sv
    check()
    S('s_add_u32 %s, %s, 1', sCNT, sCNT)
    e('s_cbranch_vccz %s' % ld)
    S('s_cmp_le_u32 %s, 0x20000', sCNT)
    e('s_cbranch_scc1 %s' % lo)
    A.label(ld)
    count(slot)

HS_ = ['', ' sc1', ' nt', ' sc0'][OPT['HSC']]
def one_lane_store(vt, soff, tag, opt=False, sc=' sc1'):
    e('v_mov_b32 %s, %s' % (vr(vt), sr(sTAG)))
    e('v_mov_b32 %s, 0' % vr(vt + 1))
    e('s_mov_b64 exec, 1')
    A.vmem('buffer_store_dword %s, %s, %s, %s offen%s' % (vr(vt), vr(vt + 1), sr(dWS, 4), soff, sc), tag, opt=opt)
    e('s_mov_b64 exec, -1')

ACC, CS, XF, AF, ONE = 0, 80, 100, 132, 152
XA, BA, WA = 156, 160, 164
vX, vB, vW1, vW2 = 168, 170, 172, 175
B1, ST, SS, TMP = 180, 188, 204, 212
BU = TMP + 4
vTB, vTI, vTC, vTG, vSXW, vSXR, vCW, vCR, vPF, vTM, vXO, vGO = range(TMP + 16, TMP + 28)
vPA = TMP + 28
vSA, vTRL = 177, 178
U0, U1 = 186, 187
SR = ST

e('s_cmp_ge_u32 s2, 256')
e('s_cbranch_scc1 L_end')
if PROF:
    e('v_mov_b32 %s, 0' % vr(vSTAMP))
    stamp('rt0', True)
    stamp('t0')
e('s_load_dwordx16 s[16:31], s[0:1], 0')
e('s_load_dwordx16 s[32:47], s[0:1], 64')
e('s_load_dwordx2 s[48:49], s[0:1], 128')
e('s_getpc_b64 %s' % sr(sPC, 2))
A.label('L_pc')
e('v_and_b32 %s, 63, v0' % vr(vLANE))
e('v_lshrrev_b32 v1, 6, v0')
e('v_lshlrev_b32 %s, 4, %s' % (vr(vL16), vr(vLANE)))
e('v_readfirstlane_b32 %s, v1' % sr(sW))
e('v_lshlrev_b32 v2, 7, v0')
e('v_min_u32 v2, L_end-L_pc, v2')
lab = newlab('npf')
e('s_cmp_ge_u32 s2, 16')
e('s_cbranch_scc1 %s' % lab)
A.vmem('global_load_dword %s, v2, %s' % (vr(vSCR), sr(sPC, 2)), 'pf', opt=True)
A.label(lab)
S('s_and_b32 %s, s2, 1', sKH)
S('s_lshr_b32 %s, s2, 6', sRBL)
S('s_bfe_u32 %s, s2, 0x30003', sC)
S('s_bfe_u32 s3, s2, 0x20001')
S('s_lshl2_add_u32 %s, s3, %s', sRB, sRBL)
S('s_lshl3_add_u32 %s, %s, %s', sJ, sKH, sC)
S('s_lshl2_add_u32 %s, s2, %s', sGW, sW)
if OPT['ROT'] == 0:
    S('s_mov_b32 %s, 0x76543210', sPERM)
elif OPT['ROT'] == 8:
    S('s_lshl1_add_u32 %s, %s, %s', sT0, sRBL, sC)
    S('s_add_u32 %s, %s, s3', sT0, sT0)
    S('s_and_b32 %s, %s, 7', sT0, sT0)
    S('s_mul_i32 %s, %s, 0x11111111', sT0, sT0)
    S('s_add_u32 %s, %s, 0x76543210', sT0, sT0)
    S('s_and_b32 %s, %s, 0x77777777', sPERM, sT0)
else:
    S('s_add_u32 %s, %s, %s', sT0, sRBL, sC)
    S('s_and_b32 %s, %s, 3', sT0, sT0)
    S('s_mul_i32 %s, %s, 0x11111111', sT0, sT0)
    S('s_add_u32 %s, %s, 0x32103210', sT0, sT0)
    S('s_and_b32 %s, %s, 0x33333333', sT0, sT0)
    if OPT['ROT'] == 4:
        S('s_add_u32 %s, s3, %s', sT1, sKH)
    else:
        S('s_lshr_b32 %s, %s, 2', sT1, sC)
        S('s_add_u32 %s, %s, s3', sT1, sT1)
    S('s_bitcmp0_b32 %s, 0', sT1)
    S('s_mov_b32 %s, 0x4444', sT1)
    S('s_cselect_b32 %s, 0x44440000, %s', sT1, sT1)
    S('s_or_b32 %s, %s, %s', sPERM, sT0, sT1)
e('v_lshrrev_b32 %s, 5, %s' % (vr(vHI5), vr(vLANE)))
e('v_and_b32 %s, 31, %s' % (vr(vLO5), vr(vLANE)))
e('v_lshrrev_b32 %s, 4, %s' % (vr(vG), vr(vLANE)))
e('v_and_b32 %s, 15, %s' % (vr(vLO4), vr(vLANE)))
S('s_lshr_b32 %s, %s, 1', sT2, sW)
S('s_and_b32 %s, %s, 1', sT3, sW)
e('v_and_b32 v1, 7, %s' % vr(vLANE))
e('v_lshrrev_b32 v3, 3, %s' % vr(vLANE))
e('v_xor_b32 v4, v1, %s' % vr(vG))
e('v_lshlrev_b32 v4, 4, v4')
S('s_lshl1_add_u32 %s, %s, %s', sT0, sRB, sT2)
S('s_lshl_b32 %s, %s, 6', sT0, sT0)
S('s_add_u32 %s, %s, %s', sT0, sT0, sT3)
S('s_lshl_b32 %s, %s, 10', sT0, sT0)
e('v_lshl_add_u32 v5, v3, 12, v4')
e('v_add_u32 %s, %s, v5' % (vr(vX), sr(sT0)))
e('v_xor_b32 %s, 64, %s' % (vr(vX + 1), vr(vX)))
e('v_add_u32 %s, %d, %s' % (vr(vX + 1), 31 * 1024, vr(vX + 1)))
S('s_lshl1_add_u32 %s, %s, %s', sCG, sJ, sT2)
S('s_lshl_b32 %s, %s, 14', sCG, sCG)
e('v_lshl_add_u32 v5, v3, 10, v4')
e('v_add_u32 %s, %s, v5' % (vr(vB), sr(sCG)))
e('v_xor_b32 %s, 64, %s' % (vr(vB + 1), vr(vB)))
e('v_add_u32 %s, %d, %s' % (vr(vB + 1), 7 * 1024, vr(vB + 1)))
S('s_lshr_b32 %s, %s, 2', sT0, sJ)
S('s_mul_i32 %s, %s, 22', sT0, sT0)
S('s_and_b32 %s, %s, 3', sT1, sJ)
S('s_mul_i32 %s, %s, 6', sT1, sT1)
S('s_add_u32 %s, %s, %s', sOFF, sT0, sT1)
S('s_lshl_b32 %s, %s, 5', sSW, sOFF)
S('s_mul_i32 %s, %s, %s', sT0, sW, str(16 * 2752))
S('s_add_u32 %s, %s, %s', sSW, sSW, sT0)
S('s_movk_i32 %s, 5462', sT0)
S('s_movk_i32 %s, 2752', sT1)
for i in range(3):
    e('v_add_u32 v6, %d, %s' % (64 * i, vr(vLANE)))
    e('v_mul_u32_u24 v7, %s, v6' % sr(sT0))
    e('v_lshrrev_b32 v7, 16, v7')
    e('v_mul_u32_u24 v8, 12, v7')
    e('v_sub_u32 v6, v6, v8')
    e('v_lshrrev_b32 v8, 3, v7')
    e('v_lshlrev_b32 v8, 1, v8')
    e('v_xor_b32 v6, v6, v8')
    e('v_mul_u32_u24 v7, %s, v7' % sr(sT1))
    e('v_lshl_add_u32 v6, v6, 4, v7')
    e('v_add_u32 %s, %s, v6' % (vr(vW1 + i), sr(sSW)))
    if i < 2:
        S('s_sub_u32 %s, %s, 1024', sSW, sSW)
S('s_mul_i32 %s, %s, %s', sM0, sW, str(PIECE))
S('s_lshl_b32 %s, %s, 6', sT0, sJ)
e('v_lshl_add_u32 v9, %s, 1, %s' % (vr(vLO5), sr(sT0)))
e('v_mov_b32 v10, 0')
S('s_mov_b32 %s, 0x200000', dX + 2)
S('s_mov_b32 %s, 0x20000', dX + 3)
S('s_mov_b32 %s, 0x80000', dB + 2)
S('s_mov_b32 %s, 0x20000', dB + 3)
S('s_mov_b32 %s, %s', dW1 + 2, str(512 * 2752))
S('s_mov_b32 %s, 0x20000', dW1 + 3)
S('s_mov_b32 %s, %s', dWS + 2, hex(WS_SIZE))
S('s_mov_b32 %s, 0x20000', dWS + 3)

def stage_dma(v):
    slot = v & 3
    tag = 'st%d' % v
    ops = []
    sc = lambda fmt, *a: ops.append((1, lambda: S(fmt, *a)))
    dm = lambda txt: ops.append(('D', lambda: A.vmem(txt, tag)))
    sc('s_bfe_u32 %s, %s, %s', sSW, sPERM, '0x%x' % (4 * v + 0x30000))
    sc('s_add_u32 m0, %s, %s', sM0, str(slot * SLOT + 4096))
    sc('s_lshl_b32 %s, %s, 7', sSX, sSW)
    for i in range(2):
        dm('buffer_load_dwordx4 %s, %s, %s offen offset:%d lds' % (vr(vB + i), sr(dB, 4), sr(sSX), i * 1024))
    sc('s_add_u32 m0, %s, %s', sM0, str(slot * SLOT + 6144))
    sc('s_mul_i32 %s, %s, %s', sSW, sSW, str(64 * 2752))
    for i in range(3):
        dm('buffer_load_dwordx4 %s, %s, %s offen offset:%d lds' % (vr(vW1 + i), sr(dW1, 4), sr(sSW), i * 1024))
    sc('s_add_u32 m0, %s, %s', sM0, str(slot * SLOT))
    for i in range(4):
        dm('buffer_load_dwordx4 %s, %s, %s offen offset:%d lds' % (vr(vX + (i & 1)), sr(dX, 4), sr(sSX), i * 1024))
    return ops

d0 = stage_dma(0)
for (c, f) in d0[:3]:
    f()
S('s_cmp_eq_u32 %s, 0', sT3)
A.wait_lg0()
stamp('karg')
S('s_cselect_b64 %s, %s, %s', sr(dB, 2), sr(pBRE, 2), sr(pBIM, 2))
S('s_mov_b64 %s, %s', sr(dW1, 2), sr(pW1, 2))
S('s_mov_b64 %s, %s', sr(dX, 2), sr(pX, 2))
if OPT['WSB']:
    S('s_add_u32 %s, %s, %s', dWS, pWS, hex(OPT['WSB'] << 20))
    S('s_addc_u32 %s, %s, 0', dWS + 1, pWS + 1)
else:
    S('s_mov_b64 %s, %s', sr(dWS, 2), sr(pWS, 2))
lre, lim, ldt, vEP = 11, 12, 13, 14
A.vmem('global_load_ushort %s, v9, %s' % (vr(lre), sr(pLRE, 2)), 'lam')
A.vmem('global_load_ushort %s, v9, %s' % (vr(lim), sr(pLIM, 2)), 'lam')
A.vmem('global_load_ushort %s, v9, %s' % (vr(ldt), sr(pLDT, 2)), 'lam')
A.vmem('buffer_load_dword %s, v10, %s, 0 offen sc1' % (vr(vEP), sr(dWS, 4)), 'lam')
for (c, f) in d0[3:]:
    f()
stamp('d0')

def stat_rows():
    S('s_lshl1_add_u32 %s, %s, %s', sT0, sRB, sKH)
    S('s_and_b32 %s, %s, 1', sT1, sJ)
    S('s_lshl1_add_u32 %s, %s, %s', sT0, sT0, sT1)
    S('s_lshl2_add_u32 %s, %s, %s', sT0, sT0, sW)
    S('s_bfe_u32 %s, %s, 0x20001', sT1, sJ)
    S('s_lshl3_add_u32 %s, %s, %s', sT0, sT0, sT1)
    S('s_lshl_b32 %s, %s, 10', sD0, sT0)
    e('v_lshlrev_b32 %s, 12, %s' % (vr(vSA), vr(vHI5)))
    e('v_lshl_add_u32 %s, %s, 4, %s' % (vr(vSA), vr(vLO5), vr(vSA)))
    return [('D', lambda: A.vmem('buffer_load_dwordx4 %s, %s, %s, %s offen' % (vr(SR, 4), vr(vSA), sr(dX, 4), sr(sD0)), 'srow')),
            ('D', lambda: A.vmem('buffer_load_dwordx4 %s, %s, %s, %s offen offset:512' % (vr(SR + 4, 4), vr(vSA), sr(dX, 4), sr(sD0)), 'srow'))]

S('s_mov_b32 %s, %s', sTH, sT2)
S('s_mov_b32 %s, %s', sPH, sT3)
S('s_mov_b32 %s, %s', sJT, sOFF)
srd(dO, pB1, 2752)
srd(dW2, pW2, 1376 * 1024)
e('v_lshlrev_b32 v16, 3, %s' % vr(vG))
S('s_add_u32 %s, %s, %s', sT0, sJT, sPH)
S('s_lshl_b32 %s, %s, 5', sT0, sT0)
for v in range(3):
    A.vmem('buffer_load_dwordx2 %s, v16, %s, %s offen offset:%d' % (vr(B1 + 2 * v, 2), sr(dO, 4), sr(sT0), 64 * v), 'b1')
S('s_lshl_b32 %s, %s, 7', sT1, sC)
e('v_lshl_add_u32 v17, %s, 3, %s' % (vr(vLO4), sr(sT1)))
A.vmem('global_load_dwordx2 a[248:249], v17, %s' % sr(pDSK, 2), 'b1')
A.vmem('global_load_dwordx2 a[250:251], v17, %s' % sr(pB2, 2), 'b1')
srow_ops = stat_rows()
if OPT['STATPOS'] == 0:
    for (c, f) in srow_ops:
        f()
    srow_ops = []
e('v_lshrrev_b32 v1, 1, %s' % vr(vLO4))
e('v_xor_b32 v1, v1, %s' % vr(vG))
e('v_lshlrev_b32 v1, 4, v1')
e('v_lshl_add_u32 v1, %s, 7, v1' % vr(vLO4))
S('s_lshl_b32 %s, %s, 6', sT0, sTH)
e('v_xor_b32 v1, %s, v1' % sr(sT0))
e('v_xor_b32 v2, 64, v1')
S('s_mul_i32 %s, %s, %s', sT0, sTH, str(2 * PIECE))
S('s_mul_i32 %s, %s, %s', sT1, sPH, str(2 * PIECE))
S('s_add_u32 %s, %s, 4096', sT1, sT1)
for k in range(2):
    e('v_add_u32 %s, %s, v%d' % (vr(XA + 2 * k), sr(sT0), 1 + k))
    e('v_add_u32 %s, %s, v%d' % (vr(BA + 2 * k), sr(sT1), 1 + k))
    e('v_add_u32 %s, %d, %s' % (vr(XA + 2 * k + 1), 2 * SLOT, vr(XA + 2 * k)))
    e('v_add_u32 %s, %d, %s' % (vr(BA + 2 * k + 1), 2 * SLOT, vr(BA + 2 * k)))
e('v_bfe_u32 v1, %s, 2, 2' % vr(vLANE))
e('v_bfe_u32 v2, %s, 4, 1' % vr(vLANE))
e('v_lshl_add_u32 v3, v2, 3, v1')
e('v_mul_u32_u24 v3, 192, v3')
e('v_xor_b32 v4, %s, v2' % sr(sPH))
e('v_lshl_add_u32 v3, v4, 5, v3')
e('v_and_b32 v4, 3, %s' % vr(vLANE))
e('v_lshl_add_u32 v3, v4, 3, v3')
S('s_movk_i32 %s, %s', sT1, str(PIECE))
e('v_mad_u32_u24 v3, %s, %s, v3' % (vr(vHI5), sr(sT1)))
S('s_add_u32 %s, %s, 6144', sT1, sT0)
S('s_sub_u32 %s, %s, %s', sT0, str(2 * PIECE + 6144), sT0)
e('v_add_u32 %s, %s, v3' % (vr(WA), sr(sT1)))
e('v_add_u32 %s, %s, v3' % (vr(WA + 2), sr(sT0)))
e('v_add_u32 %s, %d, %s' % (vr(WA + 1), 2 * SLOT, vr(WA)))
e('v_add_u32 %s, %d, %s' % (vr(WA + 3), 2 * SLOT, vr(WA + 2)))
e('v_and_b32 v5, 7, %s' % vr(vLANE))
e('v_lshlrev_b32 v6, 2, v2')
e('v_xor_b32 v5, v5, v6')
e('v_lshlrev_b32 v5, 4, v5')
e('v_lshrrev_b32 v6, 3, %s' % vr(vLANE))
e('v_lshl_add_u32 %s, v6, 10, v5' % vr(vW2))
e('v_add_u32 %s, %d, %s' % (vr(vW2 + 1), 7 * 1024, vr(vW2)))
e('v_lshl_add_u32 v5, %s, 3, v1' % vr(vHI5))
e('v_lshlrev_b32 v5, 7, v5')
e('v_lshrrev_b32 v6, 1, v1')
e('v_lshl_add_u32 v5, v6, 6, v5')
e('v_lshl_add_u32 v5, v2, 5, v5')
e('v_lshl_add_u32 %s, v4, 3, v5' % vr(vTRL))
for i in range(4):
    e('v_mov_b32 %s, 0x3f803f80' % vr(ONE + i))
S('s_lshl1_add_u32 %s, %s, %s', sOFF, sRBL, sC)
S('s_and_b32 %s, %s, 7', sOFF, sOFF)
S('s_mul_i32 %s, %s, 11', sOFF, sOFF)
S('s_lshr_b32 %s, %s, 3', sOFF, sOFF)
S('s_lshl_b32 %s, %s, 13', sM8, sW)
S('s_mul_i32 %s, %s, %s', sME, sTH, str(SLOT))
S('s_lshl_b32 %s, %s, 11', sT0, sPH)
S('s_add_u32 %s, %s, %s', sME, sME, sT0)
S('s_add_u32 %s, %s, 32768', sME, sME)
S('s_lshl2_add_u32 %s, %s, %s', sT2, sKH, sW)
S('s_mul_i32 %s, %s, %s', sWS, sT2, str(11 * 16384))
S('s_lshl_b32 %s, %s, 7', sT0, sC)
S('s_add_u32 %s, %s, %s', sWS, sWS, sT0)
S('s_add_u32 %s, %s, %s', sWE, sWS, str(11 * 16384))
S('s_lshl_b32 %s, %s, 11', sCR, sRBL)
S('s_add_u32 %s, %s, %s', sCR, sCR, sM8)
S('s_mul_i32 %s, %s, %s', sSSM, sT2, str(16384 - 11 * 2048))
S('s_add_u32 %s, %s, %s', sSSM, sSSM, str(88 * 2048))
S('s_mul_i32 %s, %s, %s', sT0, sT2, str(11 * 2048))
S('s_add_u32 %s, %s, %s', sT0, sT0, hex(WS_H))
S('s_lshl1_add_u32 %s, %s, %s', sT1, sRB, sKH)
S('s_mul_i32 %s, %s, %s', sH2, sT1, str(HR))
S('s_add_u32 %s, %s, %s', sH2, sH2, sT0)
S('s_xor_b32 %s, %s, 1', sT3, sT1)
S('s_mul_i32 %s, %s, %s', sH1, sT3, str(HR))
S('s_add_u32 %s, %s, %s', sH1, sH1, sT0)
S('s_lshl1_add_u32 %s, %s, %s', sPA, sT1, sTH)
S('s_lshl_b32 %s, %s, 11', sPA, sPA)
S('s_add_u32 %s, %s, %s', sPA, sPA, hex(WS_FA))
S('s_lshl2_add_u32 %s, %s, %s', sPB, sT1, sW)
S('s_lshl_b32 %s, %s, 8', sGR, sPB)
S('s_add_u32 %s, %s, %s', sGR, sGR, hex(WS_G + 8))
S('s_lshl_b32 %s, %s, 10', sPB, sPB)
S('s_add_u32 %s, %s, %s', sPB, sPB, hex(WS_FB))
S('s_lshl_b32 %s, %s, 11', sHU, sOFF)
S('s_lshl1_add_u32 %s, %s, %s', sT0, sJ, sPH)
S('s_lshl_b32 %s, %s, 12', sT0, sT0)
S('s_add_u32 %s, %s, %s', sSG, sT0, hex(WS_SG))
S('s_lshl_b32 %s, %s, 8', sSGO, sRB)
S('s_add_u32 %s, %s, %s', sSGO, sSGO, sSG)
S('s_lshl1_add_u32 %s, %s, %s', sT1, sRB, sTH)
S('s_mul_i32 %s, %s, %s', sT1, sT1, str(HR))
S('s_add_u32 %s, %s, %s', sHS, sT0, sT1)
S('s_add_u32 %s, %s, %s', sHS, sHS, hex(WS_H + 88 * 2048))
S('s_add_u32 %s, %s, %s', sHM, sJT, sPH)
S('s_lshl_b32 %s, %s, 11', sHM, sHM)
S('s_add_u32 %s, %s, %s', sHM, sHM, sT1)
S('s_add_u32 %s, %s, %s', sHM, sHM, hex(WS_H))
S('s_lshl4_add_u32 %s, %s, %s', sFL, sRB, sJ)
S('s_lshl2_add_u32 %s, %s, %s', sFL, sFL, sW)
S('s_lshl_b32 %s, %s, 5', sF0, sFL)
S('s_add_u32 %s, %s, %s', sF0, sF0, hex(WS_G))
S('s_lshl_b32 %s, %s, 7', sFL, sFL)
S('s_add_u32 %s, %s, %s', sFL, sFL, hex(WS_FA))
S('s_mul_i32 %s, %s, 6144', sPX, sGW)
S('s_add_u32 %s, %s, %s', sPX, sPX, hex(WS_PX))
S('s_mov_b64 %s, %s', sr(dO, 2), sr(pOUT, 2))
S('s_mov_b32 %s, 0x400000', dO + 2)

A.wait_vm('lam')
stamp('lam')
LOG2E = math.log2(math.e)
e('v_readfirstlane_b32 %s, %s' % (sr(sTAG), vr(vEP)))
for r in (lre, lim, ldt):
    e('v_lshlrev_b32 %s, 16, %s' % (vr(r), vr(r)))
e('v_mul_f32 %s, %s, %s' % (vr(ldt), f2u(LOG2E), vr(ldt)))
e('v_exp_f32 %s, %s' % (vr(ldt), vr(ldt)))
S('s_add_u32 %s, %s, 1', sTAG, sTAG)
S('s_lshl_b32 %s, %s, 1', sT0, sW)
e('v_add_u32 v1, %s, %s' % (sr(sT0), vr(vHI5)))
e('v_cvt_pk_bf16_f32 %s, %s, %s' % (vr(ldt), vr(ldt), vr(ldt)))
e('v_cvt_f32_u32 v2, v1')
e('v_lshlrev_b32 %s, 16, %s' % (vr(ldt), vr(ldt)))
e('v_cmp_lt_u32 vcc, 4, v1')
e('v_mul_u32_u24 v3, %d, v1' % TROW)
e('v_mul_f32 v5, %s, %s' % (vr(ldt), vr(lre)))
e('v_mul_f32 v6, %s, %s' % (vr(ldt), vr(lim)))
e('v_lshl_add_u32 v3, %s, 2, v3' % vr(vLO5))
e('v_mul_f32 v5, %s, v5' % f2u(LOG2E))
e('v_mul_f32 v6, 0.15915494, v6')
e('v_add_u32 v3, %d, v3' % TAB)
e('v_mul_f32 v20, 4.0, v2')
e('v_add_f32 v21, %s, v20' % f2u(32.0))
e('v_mul_f32 v22, %s, v2' % f2u(128.0))
e('v_max_f32 v22, %s, v22' % f2u(64.0))
e('v_add_f32 v23, -4.0, v2')
e('v_cndmask_b32 v22, v22, v23, vcc')
for r in range(3):
    e('v_mul_f32 v%d, v%d, v5' % (24 + r, 20 + r))
    e('v_mul_f32 v%d, v%d, v6' % (28 + r, 20 + r))
for r in range(3):
    e('v_exp_f32 v%d, v%d' % (24 + r, 24 + r))
    e('v_rndne_f32 v%d, v%d' % (20 + r, 28 + r))
for r in range(3):
    e('v_sub_f32 v%d, v%d, v%d' % (28 + r, 28 + r, 20 + r))
for r in range(3):
    e('v_cos_f32 v%d, v%d' % (20 + r, 28 + r))
    e('v_sin_f32 v%d, v%d' % (28 + r, 28 + r))
for r in range(3):
    e('v_mul_f32 v%d, v%d, v%d' % (20 + r, 20 + r, 24 + r))
    e('v_mul_f32 v%d, v%d, v%d' % (28 + r, 28 + r, 24 + r))
for r in range(3):
    A.ds('ds_write_b32 v3, v%d offset:%d' % (20 + r, 8 * r * TROW), 'tab')
    A.ds('ds_write_b32 v3, v%d offset:%d' % (28 + r, 8 * r * TROW + 128), 'tab')
lab = newlab('ncf')
S('s_cmp_lg_u32 %s, 2', sW)
e('s_cbranch_scc1 %s' % lab)
e('v_mul_f32 v24, %s, %s' % (vr(lre), vr(lre)))
e('v_fma_f32 v24, %s, %s, v24' % (vr(lim), vr(lim)))
e('v_rcp_f32 v24, v24')
e('v_add_f32 v25, -1.0, v22')
e('v_mul_f32 v26, v25, %s' % vr(lre))
e('v_mul_f32 v27, v30, %s' % vr(lre))
e('v_add_f32 v24, v24, v24')
e('v_fma_f32 v26, v30, %s, v26' % vr(lim))
e('v_fma_f32 v27, -v25, %s, v27' % vr(lim))
e('v_mul_f32 v26, v26, v24')
e('v_mul_f32 v27, v27, v24')
e('s_mov_b32 exec_lo, 0')
e('ds_write_b32 v3, v26 offset:%d' % (19 * TROW))
e('ds_write_b32 v3, v27 offset:%d' % (19 * TROW + 128))
e('s_mov_b32 exec_lo, -1')
A.label(lab)
stamp('tab')
R_L64, R_L512, R_L1, R_L2, R_L3, R_CF = 16, 20, 21, 22, 23, 24

class Q:
    def __init__(self):
        self.q = []
        self.open = set([None])
    def add(self, ops, gate=None):
        self.q += [(c, f, gate) for (c, f) in ops]
    def ready(self):
        return bool(self.q) and self.q[0][2] in self.open
    def cost(self):
        return self.q[0][0]
    def pop1(self):
        self.q.pop(0)[1]()
    def popD(self, n=1):
        while n > 0 and self.ready():
            if self.cost() == 'D':
                n -= 1
            self.pop1()
    def pop(self, n):
        while n > 0 and self.ready():
            c = self.cost()
            n -= 2 if c == 'D' else c
            self.pop1()
    def flush(self):
        while self.q:
            assert self.ready(), self.q[0][2]
            self.pop1()

class Ops(list):
    def v(self, s, c=1):
        self.append((c, lambda: e(s)))
    def s(self, fmt, *a):
        self.append((1, lambda: S(fmt, *a)))
    def f(self, fn, c=1):
        self.append((c, fn))

DQ = Q()
FQ = Q()
DQ.add(stage_dma(1))
DQ.add(srow_ops)
DQ.popD(OPT['D1PRE'])
A.wait_lg0()
stamp('d1')

def stat_compute_ops():
    o = Ops()
    t = SR + 8
    o.f(lambda: A.wait_vm('srow'))
    o.v('v_dot2_f32_bf16 v%d, v%d, v%d, 0' % (t, SR, ONE), 2)
    o.v('v_dot2_f32_bf16 v%d, v%d, v%d, 0' % (t + 1, SR, SR), 2)
    for i in range(1, 8):
        o.v('v_dot2_f32_bf16 v%d, v%d, v%d, v%d' % (t, SR + i, ONE, t), 2)
        o.v('v_dot2_f32_bf16 v%d, v%d, v%d, v%d' % (t + 1, SR + i, SR + i, t + 1), 2)
    for sh in (1, 2, 4, 8):
        for r in (t, t + 1):
            o.v('v_add_f32_dpp v%d, v%d, v%d row_shr:%d row_mask:0xf bank_mask:0xf bound_ctrl:0' % (r, r, r, sh))
    for r in (t, t + 1):
        o.v('v_add_f32_dpp v%d, v%d, v%d row_bcast:15 row_mask:0xa bank_mask:0xf' % (r, r, r))
    mean, var, sb, rs, m2, v2_, mb = t, t + 1, t + 2, t + 3, t + 8, t + 9, t + 10
    g0 = t + 4
    def rnd(d, s):
        o.v('v_cvt_pk_bf16_f32 v%d, v%d, v%d' % (d, s, s))
        o.v('v_lshlrev_b32 v%d, 16, v%d' % (d, d))
    o.v('v_mul_f32 v%d, %s, v%d' % (mean, f2u(1.0 / 512), mean))
    o.v('v_mul_f32 v%d, %s, v%d' % (var, f2u(1.0 / 512), var))
    o.v('v_fma_f32 v%d, -v%d, v%d, v%d' % (var, mean, mean, var))
    o.v('v_max_f32 v%d, 0, v%d' % (var, var))
    rnd(mb, mean)
    rnd(sb, var)
    o.v('v_add_f32 v%d, %s, v%d' % (sb, f2u(1e-5), sb))
    rnd(sb, sb)
    o.v('v_sqrt_f32 v%d, v%d' % (sb, sb), 2)
    o.v('v_sub_f32 v%d, v%d, v%d' % (m2, mean, mb))
    rnd(sb, sb)
    o.v('v_rcp_f32 v%d, v%d' % (rs, sb), 2)
    o.v('v_cvt_pk_bf16_f32 v%d, v%d, v%d' % (g0 + 2, mb, sb))
    o.v('v_mul_f32 v%d, v%d, v%d' % (m2, m2, rs))
    o.v('v_mul_f32 v%d, v%d, v%d' % (v2_, var, rs))
    rnd(m2, m2)
    o.v('v_mul_f32 v%d, v%d, v%d' % (v2_, v2_, rs))
    o.v('v_fma_f32 v%d, v%d, v%d, v%d' % (g0, m2, sb, mb))
    rnd(v2_, v2_)
    o.v('v_add_f32 v%d, %s, v%d' % (v2_, f2u(1e-5), v2_))
    rnd(v2_, v2_)
    o.v('v_sqrt_f32 v%d, v%d' % (v2_, v2_), 2)
    o.v('v_mov_b32 v%d, %s' % (g0 + 3, sr(sTAG)))
    rnd(v2_, v2_)
    o.v('v_mul_f32 v%d, v%d, v%d' % (g0 + 1, v2_, sb))
    o.v('v_lshlrev_b32 v%d, 4, %s' % (t, vr(vHI5)))
    o.s('s_mov_b32 %s, 0x80000000', sT0)
    o.s('s_mov_b32 %s, 0x80000000', sT1)
    def st():
        e('s_mov_b64 exec, %s' % sr(sT0, 2))
        A.vmem('buffer_store_dwordx4 %s, v%d, %s, %s offen sc1' % (vr(g0, 4), t, sr(dWS, 4), sr(sF0)), 'gs')
        e('s_mov_b64 exec, -1')
        stamp('gs')
    o.f(st, 4)
    o.s('s_lshl1_add_u32 %s, %s, %s', sD0, sRB, sTH)
    o.s('s_lshl_b32 %s, %s, 10', sD0, sD0)
    o.s('s_add_u32 %s, %s, %s', sD0, sD0, hex(WS_G))
    o.v('v_lshlrev_b32 %s, 4, %s' % (vr(vSA), vr(vLO4)))
    o.f(lambda: DQ.open.add('sadr'), 0)
    return o

def b1_ops():
    o = Ops()
    o.f(lambda: A.wait_vm('b1'), 0)
    for v in range(3):
        for hh in range(2):
            o.v('v_lshlrev_b32 %s, 16, %s' % (vr(BU + 4 * v + 2 * hh), vr(B1 + 2 * v + hh)))
            o.v('v_and_b32 %s, 0xffff0000, %s' % (vr(BU + 4 * v + 2 * hh + 1), vr(B1 + 2 * v + hh)))
    return o
def prep_ops():
    o = Ops()
    o.s('s_lshl_b32 %s, %s, 6', sT0, sPH)
    o.s('s_add_u32 %s, %s, %s', sT0, sT0, str(TAB))
    o.s('s_movk_i32 %s, %s', sT1, str(TROW))
    o.v('v_lshl_add_u32 %s, %s, 4, %s' % (vr(vTB), vr(vG), sr(sT0)))
    o.v('v_lshl_add_u32 %s, %s, 2, %s' % (vr(vTC), vr(vLO4), sr(sT0)))
    o.v('v_mad_u32_u24 %s, %s, %s, %s' % (vr(vTI), vr(vLO4), sr(sT1), vr(vTB)))
    o.v('v_min_u32 %s, 1, %s' % (vr(U0), vr(vG)))
    o.v('v_lshl_add_u32 %s, %s, 4, %s' % (vr(U0), vr(U0), vr(vG)))
    o.v('v_mad_u32_u24 %s, %s, %s, %s' % (vr(vTG), vr(U0), sr(sT1), vr(vTC)))
    o.s('s_mul_i32 %s, %s, 320', sT0, sW)
    o.s('s_add_u32 %s, %s, %s', sT0, sT0, str(CSX))
    o.v('v_lshl_add_u32 %s, %s, 4, %s' % (vr(vCW), vr(vG), sr(sT0)))
    o.s('s_xor_b32 %s, %s, 2', sT0, sW)
    o.s('s_mul_i32 %s, %s, 320', sT0, sT0)
    o.s('s_add_u32 %s, %s, %s', sT0, sT0, str(CSX))
    o.v('v_lshl_add_u32 %s, %s, 4, %s' % (vr(vCR), vr(vG), sr(sT0)))
    o.v('v_lshl_add_u32 %s, %s, 2, %s' % (vr(vSXW), vr(vLO4), sr(sT0)))
    o.s('s_mul_i32 %s, %s, 320', sT0, sPH)
    o.s('s_add_u32 %s, %s, %s', sT0, sT0, str(CSX))
    o.v('v_lshl_add_u32 %s, %s, 2, %s' % (vr(vSXR), vr(vLO4), sr(sT0)))
    o.s('s_sub_u32 %s, %s, 1', sT0, sRB)
    o.v('v_sub_u32 %s, %s, %s' % (vr(U0), sr(sT0), vr(vG)))
    o.v('v_lshlrev_b32 %s, 4, %s' % (vr(U1), vr(vLO4)))
    for i in range(4):
        o.v('v_subrev_u32 %s, %d, %s' % (vr(vPA + i), 4 * i, vr(U0)))
        o.v('v_cmp_le_i32 %s, 0, %s' % (sr(sMSK[i], 2), vr(vPA + i)))
        o.v('v_max_i32 %s, 0, %s' % (vr(vPA + i), vr(vPA + i)))
        o.v('v_lshl_add_u32 %s, %s, 8, %s' % (vr(vPA + i), vr(vPA + i), vr(U1)))
    o.v('v_lshlrev_b32 %s, 7, %s' % (vr(vPF), vr(vLO4)))
    o.s('s_and_b32 %s, %s, 3', sT0, sJ)
    o.s('s_cmp_eq_u32 %s, 3', sT0)
    o[-2:] = [(3, lambda a=o[-2][1], b=o[-1][1]: (a(), b(), S('s_cselect_b32 %s, 1, 2', sF1)))]
    o.v('v_min_u32 %s, %s, %s' % (vr(U0), sr(sF1), vr(vG)))
    o.v('v_lshl_add_u32 %s, %s, 12, %s' % (vr(vTM), vr(U0), vr(vPF)))
    o.s('s_lshl1_add_u32 %s, %s, %s', sT0, sRB, sKH)
    o.s('s_lshl_b32 %s, %s, 6', sT0, sT0)
    o.s('s_add_u32 %s, %s, %s', sT0, sT0, sW)
    o.v('v_lshl_add_u32 %s, %s, 2, %s' % (vr(U0), vr(vG), sr(sT0)))
    o.s('s_lshl_b32 %s, %s, 7', sT1, sC)
    o.v('v_lshl_add_u32 %s, %s, 3, %s' % (vr(U1), vr(vLO4), sr(sT1)))
    o.v('v_lshl_add_u32 %s, %s, 10, %s' % (vr(vXO), vr(U0), vr(U1)))
    o.v('v_lshlrev_b32 %s, 4, %s' % (vr(vGO), vr(vG)))
    return o

def stat_loads():
    return [('D', lambda T=T: A.vmem('buffer_load_dwordx4 %s, %s, %s, %s offen offset:%d sc1' % (vr(ST + 4 * T, 4), vr(vSA), sr(dWS, 4), sr(sD0), 256 * T), 'stat')) for T in range(4)]
def stat_issue():
    for (c, f) in stat_loads():
        f()
def stat_check(e=e):
    t = TMP
    for T in range(4):
        e('v_xor_b32 v%d, %s, %s' % (t + T, sr(sTAG), vr(ST + 4 * T + 3)))
    e('v_or3_b32 v%d, v%d, v%d, v%d' % (t, t, t + 1, t + 2))
    e('v_or_b32 v%d, v%d, v%d' % (t, t, t + 3))
    e('v_cmp_ne_u32 vcc, 0, v%d' % t)
C0 = -2.0 * math.sqrt(2.0 / math.pi) * math.log2(math.e)
def stat_derive_ops():
    o = Ops()
    o.f(lambda: A.wait_vm('stat'))
    stat_check(o.v)
    o.f(lambda: retry_loop('st', stat_issue, stat_check, 58, False), 2)
    for T in range(4):
        b = ST + 4 * T
        o.v('v_rcp_f32 v%d, v%d' % (TMP + T, b + 1), 2)
        o.v('v_lshlrev_b32 v%d, 16, v%d' % (SS + 2 * T, b + 2))
        o.v('v_and_b32 v%d, 0xffff0000, v%d' % (SS + 2 * T + 1, b + 2))
    for T in range(4):
        b = ST + 4 * T
        o.v('v_rcp_f32 v%d, v%d' % (SS + 2 * T + 1, SS + 2 * T + 1), 2)
        o.v('v_mul_f32 v%d, %s, v%d' % (b + 2, f2u(C0), TMP + T))
        o.v('v_mul_f32 v%d, v%d, v%d' % (b + 3, TMP + T, TMP + T))
    for T in range(4):
        b = ST + 4 * T
        o.v('v_mul_f32 v%d, v%d, v%d' % (b + 3, b + 3, b + 2))
        o.v('v_mul_f32 v%d, %s, v%d' % (b + 3, f2u(0.044715), b + 3))
    return o

def w2_step(st):
    o = Ops()
    if st == 0:
        o.s('s_lshl_b32 %s, %s, 14', sSW, sOFF)
        o.s('s_add_u32 %s, %s, %s', sSW, sSW, sWS)
        o.s('s_lshl_b32 %s, %s, 11', sSX, sW)
        o.s('s_add_u32 m0, %s, %s', sSX, str(PE))
    else:
        o.f(lambda: (S('s_add_u32 %s, %s, 16384', sSW, sSW), S('s_cmp_ge_u32 %s, %s', sSW, sWE), S('s_cselect_b32 %s, %s, %s', sSW, sWS, sSW)), 3)
        if st <= 8:
            o.s('s_add_u32 m0, %s, %s', sM8, str(((st - 1) // 4) * SLOT + ((st - 1) % 4) * 2048))
        else:
            o.s('s_add_u32 m0, %s, %s', sME, str((st - 9) * 2 * SLOT))
    o.f(lambda: A.vmem('buffer_load_dwordx4 %s, %s, %s offen lds' % (vr(vW2), sr(dW2, 4), sr(sSW)), 'W'), 'D')
    o.f(lambda: A.vmem('buffer_load_dwordx4 %s, %s, %s offen offset:1024 lds' % (vr(vW2 + 1), sr(dW2, 4), sr(sSW)), 'W'), 'D')
    return o
def c_job(part):
    o = Ops()
    o.s('s_mov_b64 %s, %s', sr(dB, 2), sr(pCIM if part else pCRE, 2))
    if part == 0:
        o.v('v_subrev_u32 %s, %s, %s' % (vr(vB), sr(sCG), vr(vB)))
        o.v('v_subrev_u32 %s, %s, %s' % (vr(vB + 1), sr(sCG), vr(vB + 1)))
        o.s('s_lshl2_add_u32 %s, %s, %s', sCG, sC, sRBL)
        o.s('s_lshl_b32 %s, %s, 7', sCG, sCG)
        o.s('s_add_u32 %s, %s, %s', sCG, sCG, sT2)
        o.s('s_lshl_b32 %s, %s, 7', sCG, sCG)
    for k in range(4):
        o.s('s_xor_b32 %s, %s, %s', sSX, sCR, str(k * 2048))
        o.s('s_add_u32 m0, %s, %s', sSX, str((2 + part) * SLOT))
        o.s('s_xor_b32 %s, %s, %s', sSX, sCG, str(k * 16384))
        o.f(lambda: A.vmem('buffer_load_dwordx4 %s, %s, %s offen lds' % (vr(vB), sr(dB, 4), sr(sSX)), 'W'), 'D')
        o.f(lambda: A.vmem('buffer_load_dwordx4 %s, %s, %s offen offset:1024 lds' % (vr(vB + 1), sr(dB, 4), sr(sSX)), 'W'), 'D')
    return o
def resx_loads():
    o = Ops()
    for q in range(4):
        o.s('s_mov_b32 %s, %s', sSX, str(q * 16384))
        o.f(lambda q=q: A.vmem('buffer_load_dwordx2 %s, %s, %s, %s offen' % (ar(240 + 2 * q, 2), vr(vXO), sr(dX, 4), sr(sSX)), 'res'), 'D')
    return o
def resg_loads():
    return [('D', lambda q=q: A.vmem('buffer_load_dword %s, %s, %s, %s offen offset:%d sc1' % (ar(252 + q), vr(vGO), sr(dWS, 4), sr(sGR), q * 64), 'res')) for q in range(4)]

def pret(k):
    if OPT['PRET'] != k:
        return
    sc = ['', ' sc1', ' nt', ' sc0'][OPT['PRC']]
    o = Ops()
    o.v('v_lshlrev_b32 v244, 7, %s' % vr(vLO5))
    o.f(lambda: A.vmem('buffer_load_dword %s, %s, %s, %s offen%s' % (vr(vSCR), vr(vTM), sr(dWS, 4), sr(sHM), sc), 'touch'), 'D')
    o.f(lambda: A.vmem('buffer_load_dword %s, v244, %s, %s offen%s' % (vr(vSCR), sr(dWS, 4), sr(sHS), sc), 'touch'), 'D')
    DQ.add(o)
def add_stl(k):
    if OPT['STL'] == k:
        DQ.add(stat_loads(), 'sadr')
        DQ.add([(0, lambda: FQ.open.add('stl'))])
for v in range(2, 8):
    DQ.add(stage_dma(v), None if v < 4 else 'mid%d' % (v - 4))
    pret(10 + v)
DQ.add(resx_loads())
DQ.add(w2_step(0))
add_stl(3)
for st in range(1, 5):
    DQ.add(w2_step(st), 'mid4')
add_stl(4)
for st in range(5, 10):
    DQ.add(w2_step(st), 'mid5')
add_stl(5)
pret(1)
DQ.add(c_job(0), 'mid6')
pret(2)
DQ.add(c_job(1), 'mid7')
DQ.add(w2_step(10), 'mid7')
pret(3)
FQ.add(b1_ops())
FQ.add(stat_compute_ops(), None if OPT['STATPOS'] == 0 else 'mid0')
FQ.add([(0, lambda: None)], 'stl')
FQ.add(stat_derive_ops(), 'mid6')
for (c, f) in prep_ops():
    f()
stamp('prep')

RQ = Q()
def rd_x(step, T):
    v, ks = step // 2, step % 2
    slot = v & 3
    return [(1, lambda: A.ds('ds_read_b128 %s, %s offset:%d' % (vr(XF + 16 * ks + 4 * T, 4), vr(XA + 2 * ks + (slot >> 1)), (slot & 1) * SLOT + (T & 1) * PIECE + (T >> 1) * 2048), 'x%d' % step))]
def rd_a(step, a):
    v, ks = step // 2, step % 2
    slot = v & 3
    if a < 2:
        return [(1, lambda: A.ds('ds_read_b128 %s, %s offset:%d' % (vr(AF + 4 * a, 4), vr(BA + 2 * ks + (slot >> 1)), (slot & 1) * SLOT + a * PIECE), 'a%d_%d' % (step, a)))]
    return [(1, lambda half=half: A.ds('ds_read_b64_tr_b16 %s, %s offset:%d' % (vr(AF + 4 * a + 2 * half, 2), vr(WA + 2 * ks + (slot >> 1)), (slot & 1) * SLOT + half * 768 + 64 * (a - 2)), 'a%d_%d' % (step, a))) for half in range(2)]

A.wait_vm('st0')
stamp('st0')
e('s_barrier')
RQ.add(rd_a(0, 0))
for T in range(4):
    RQ.add(rd_x(0, T))
for a in range(1, 5):
    RQ.add(rd_a(0, a))
RQ.flush()
clk = [0, 0]
def gap(budget, base):
    used = 0
    while used < budget:
        if RQ.ready():
            used += RQ.cost()
            RQ.pop1()
        elif DQ.ready() and (DQ.cost() != 'D' or (clk[0] >= clk[1] and used + OPT['DCOST'] <= max(budget, OPT['DCOST']))):
            if DQ.cost() == 'D':
                used += OPT['DCOST']
                clk[1] = max(clk[1], clk[0] - 2 * OPT['DINT']) + OPT['DINT']
            elif used + DQ.cost() > max(budget, DQ.cost()):
                break
            else:
                used += DQ.cost()
            DQ.pop1()
        elif FQ.ready() and used + FQ.cost() <= max(budget, FQ.cost()):
            used += FQ.cost()
            FQ.pop1()
        else:
            break
    clk[0] += max(base, 8 + 4 * used)

K0, K1, SA, SE = 116, 124, 136, 144
def tab_rd(dst, row, tag, addr=None):
    for part in range(2):
        A.ds('ds_read_b128 %s, %s offset:%d' % (vr(dst + 4 * part, 4), vr(vTB if addr is None else addr), row * TROW + part * 128), tag)
for step in range(16):
    v, ks = step // 2, step % 2
    gate = 'mid%d' % v if ks == 1 else None
    for a in range(5):
        if ks == 1 and a == 2:
            for u in range(5):
                assert DSN.get('a%d_%d' % (step, u), 0) == (1 if u < 2 else 2), (step, u)
            if v == 7:
                assert DSN.get('csw', 0) == 5
            A.wait_lg0()
            stamp('a%d' % v)
            if v < 7:
                A.wait_vm('st%d' % (v + 1))
                stamp('b%d' % v)
            if not OPT['X'] & 2:
                e('s_barrier')
            clk[0] += 40
            for q in (DQ, FQ, RQ):
                q.open.add('mid%d' % v)
            if v == 2:
                lab = newlab('al')
                S('s_cmp_lg_u32 %s, 0', sW)
                e('s_cbranch_scc1 %s' % lab)
                S('s_lshl_b32 s3, s2, 2')
                S('s_add_u32 s3, s3, %s', hex(WS_AL))
                one_lane_store(246, 's3', 'al', opt=True)
                A.label(lab)
            if v == 7:
                for q in range(5):
                    RQ.add([(1, lambda q=q: A.ds('ds_read_b128 %s, %s offset:%d' % (vr((XF + 4 * q) if q < 4 else AF, 4), vr(vCR), 64 * q), 'csr'))])
        if a in (0, 2, 4):
            assert DSN.get('x%d' % step, 0) == 4, (step, a)
            for u in (a, a + 1):
                assert u > 4 or DSN.get('a%d_%d' % (step, u), 0) == (1 if u < 2 else 2), (step, a, u)
            A.wait_lg(['x%d' % step] + ['a%d_%d' % (step, u) for u in (a, a + 1)])
        ms = []
        if ks == 0:
            ms.append((CS + 4 * a, ONE))
        for T in range(4):
            ms.append((ACC + 16 * a + 4 * T, XF + 16 * ks + 4 * T))
        for i, (acc, b) in enumerate(ms):
            e('v_mfma_f32_16x16x32_bf16 %s, %s, %s, %s' % (vr(acc, 4), vr(AF + 4 * a, 4), vr(b, 4), '0' if step == 0 else vr(acc, 4)))
            last = i == len(ms) - 1
            if step < 15:
                if last:
                    RQ.add(rd_a(step + 1, a), gate)
                if (a == 0 and last) if ks == 1 else (a == 0 and i == 1):
                    for T in range(4):
                        RQ.add(rd_x(step + 1, T), gate)
            if step == 15 and a == 0 and i == 2:
                for q in range(5):
                    RQ.add([(2, lambda q=q: A.ds('ds_write_b128 %s, %s offset:%d' % (vr(vCW), vr(CS + 4 * q, 4), 64 * q), 'csw'))])
            bud = OPT['BUD0'] if step < OPT['NB0'] else 2
            if last and a in (1, 3, 4) and not (ks == 1 and a == 3):
                bud = 0 if (ks == 1 and a == 1) else 1
            if bud == 0:
                while RQ.ready():
                    RQ.pop1()
            gap(bud, 16)
print('K loop estimate', clk[0], 'left DQ', len(DQ.q), 'FQ', len(FQ.q))
FQ.flush()
RQ.flush()
stamp('kloop')

DQ.add(resg_loads(), 'sx')
tab_rd(K0, R_CF, 'k0')
tab_rd(K1, R_L1, 'k1')
A.wait_lg('csr')
for q in range(5):
    src = (XF + 4 * q) if q < 4 else AF
    for h in (0, 2):
        e('v_pk_add_f32 %s, %s, %s' % (vr(CS + 4 * q + h, 2), vr(CS + 4 * q + h, 2), vr(src + h, 2)))
DQ.popD()
LOB = 'op_sel:[0,0,0] op_sel_hi:[1,0,1]'
HIB = 'op_sel:[0,1,0] op_sel_hi:[1,1,1]'
RR, II = ACC, ACC + 16
tq = XF
for T in range(4):
    for part in range(2):
        for h in (0, 2):
            r = ACC + 16 * part + 4 * T + h
            e('v_pk_fma_f32 %s, %s, %s, %s %s %s' % (vr(r, 2), vr(CS + 4 * part + h, 2), vr(SS + 2 * T, 2), vr(r, 2), LOB, NEG1))
    if T == 0:
        A.wait_lg('k0')
    for q in (0, 2, 4, 6):
        e('v_pk_mul_f32 %s, %s, %s op_sel:[0,1] op_sel_hi:[1,1]' % (vr(tq + q, 2), vr(K0 + q, 2), vr(SS + 2 * T, 2)))
    if T == 3:
        tab_rd(K0, 1, 'k0')
    for h in (0, 2):
        e('v_pk_mul_f32 %s, %s, %s' % (vr(tq + 8 + h, 2), vr(RR + 4 * T + h, 2), vr(tq + 4 + h, 2)))
    for h in (0, 2):
        e('v_pk_mul_f32 %s, %s, %s' % (vr(RR + 4 * T + h, 2), vr(RR + 4 * T + h, 2), vr(tq + h, 2)))
    for h in (0, 2):
        e('v_pk_fma_f32 %s, %s, %s, %s %s' % (vr(RR + 4 * T + h, 2), vr(II + 4 * T + h, 2), vr(tq + 4 + h, 2), vr(RR + 4 * T + h, 2), NEG1))
    for h in (0, 2):
        e('v_pk_fma_f32 %s, %s, %s, %s' % (vr(II + 4 * T + h, 2), vr(II + 4 * T + h, 2), vr(tq + h, 2), vr(tq + 8 + h, 2)))
    DQ.popD()
tab_rd(tq, 2, 'k2')
tab_rd(tq + 8, 4, 'k3')
A.wait_lg('k1')
for T in range(1, 4):
    pk_cfma4(RR + 4 * T, II + 4 * T, RR + 4 * T - 4, II + 4 * T - 4, K1, RR + 4 * T, II + 4 * T)
DQ.popD()
tab_rd(K1, 8, 'k1')
cur = (RR + 12, II + 12)
L64, L512, P128, S0 = K0, K0 + 2, K0 + 4, K0 + 6
for lv in range(4):
    k = [K0, tq, tq + 8, K1][lv]
    for part in range(2):
        for i in range(4):
            e('v_mov_b32_dpp %s, %s row_shr:%d row_mask:0xf bank_mask:0xf bound_ctrl:0' % (vr(SE + 4 * part + i), vr(cur[part] + i), 1 << lv))
    if lv in (0, 3):
        A.wait_lg(['k3', 'k3', 'k3', 'k1'][lv])
    pk_cfma4(SA, SA + 4, SE, SE + 4, k, cur[0], cur[1])
    cur = (SA, SA + 4)
    if lv == 0:
        for (dst, row, ad) in ((L64, R_L64, vTC), (L512, R_L512, vTC), (P128, 0, vTG)):
            for part in range(2):
                A.ds('ds_read_b32 %s, %s offset:%d' % (vr(dst + part), vr(ad), row * TROW + part * 128), 'kc')
    if lv < 3:
        DQ.popD()
e('s_mov_b32 exec_lo, 0x80008000')
e('s_mov_b32 exec_hi, 0x80008000')
A.ds('ds_write_b128 %s, %s' % (vr(vCR), vr(SA, 4)), 'sx')
A.ds('ds_write_b128 %s, %s offset:64' % (vr(vCR), vr(SA + 4, 4)), 'sx')
e('s_mov_b64 exec, -1')
GR = tq + 12
for part in range(2):
    for i in range(4):
        e('v_mov_b32_dpp %s, %s row_shr:1 row_mask:0xf bank_mask:0xf bound_ctrl:0' % (vr(SE + 4 * part + i), vr(SA + 4 * part + i)))
e('v_mov_b32 %s, %s' % (vr(GR + 2), sr(sTAG)))
e('v_mov_b32 %s, %s' % (vr(GR + 3), sr(sTAG)))
A.wait_lg0()
e('s_barrier')
A.ds('ds_read2_b32 %s, %s offset0:160 offset1:176' % (vr(S0, 2), vr(vSXR)), 's0')
A.ds('ds_read2_b32 %s, %s offset0:0 offset1:16' % (vr(GR, 2), vr(vSXR)), 's0')
DQ.open.add('sx')
DQ.flush()
lab = newlab('np')
S('s_cmp_eq_u32 %s, 0', sTH)
e('s_cbranch_scc1 %s' % lab)
e('s_waitcnt lgkmcnt(0)')
cfma(GR, GR + 1, S0, S0 + 1, L64, L64 + 1, GR, GR + 1)
e('s_mov_b64 exec, 0xffff')
A.vmem('buffer_store_dwordx4 %s, %s, %s, %s offen sc1' % (vr(GR, 4), vr(vL16), sr(dWS, 4), sr(sSGO)), 'S', opt=True)
e('s_mov_b64 exec, -1')
A.label(lab)
stamp('Spub')

vQ = 152
def lb_issue():
    for i in range(4):
        A.vmem('buffer_load_dwordx4 %s, %s, %s, %s offen sc1' % (vr(vQ + 4 * i, 4), vr(vPA + i), sr(dWS, 4), sr(sSG)), 'lb')
def lb_check():
    for i in range(4):
        e('v_xor_b32 %s, %s, %s' % (vr(vQ + 4 * i + 3), sr(sTAG), vr(vQ + 4 * i + 2)))
    for i in range(4):
        e('v_cndmask_b32 %s, 0, %s, %s' % (vr(vQ + 4 * i + 3), vr(vQ + 4 * i + 3), sr(sMSK[i], 2)))
    e('v_or3_b32 %s, %s, %s, %s' % (vr(vQ + 3), vr(vQ + 3), vr(vQ + 7), vr(vQ + 11)))
    e('v_or_b32 %s, %s, %s' % (vr(vQ + 3), vr(vQ + 3), vr(vQ + 15)))
    e('v_cmp_ne_u32 vcc, 0, %s' % vr(vQ + 3))

tZ, tO = tq, 168
def gelu_tile(v, opt):
    for hh in range(2):
        prs = [(2 * hh + a, h) for a in range(2) for h in range(2)]
        accp = lambda T, h: ACC + 32 + 16 * v + 4 * T + 2 * h
        for (T, h) in prs:
            e('v_pk_fma_f32 %s, %s, %s, %s %s' % (vr(accp(T, h), 2), vr(BU + 4 * v + 2 * h, 2), vr(ST + 4 * T, 2), vr(accp(T, h), 2), HIB))
        for (T, h) in prs:
            e('v_pk_fma_f32 %s, %s, %s, %s %s %s' % (vr(accp(T, h), 2), vr(CS + 8 + 4 * v + 2 * h, 2), vr(ST + 4 * T, 2), vr(accp(T, h), 2), LOB, NEG1))
        for i, (T, h) in enumerate(prs):
            e('v_pk_mul_f32 %s, %s, %s' % (vr(tZ + 2 * i, 2), vr(accp(T, h), 2), vr(accp(T, h), 2)))
        for i, (T, h) in enumerate(prs):
            e('v_pk_fma_f32 %s, %s, %s, %s op_sel:[0,1,0] op_sel_hi:[1,1,0]' % (vr(tZ + 2 * i, 2), vr(tZ + 2 * i, 2), vr(ST + 4 * T + 2, 2), vr(ST + 4 * T + 2, 2)))
        for i, (T, h) in enumerate(prs):
            e('v_pk_mul_f32 %s, %s, %s' % (vr(tZ + 2 * i, 2), vr(tZ + 2 * i, 2), vr(accp(T, h), 2)))
        for i in range(8):
            e('v_exp_f32 %s, %s' % (vr(tZ + i), vr(tZ + i)))
        for i, (T, h) in enumerate(prs):
            e('v_pk_fma_f32 %s, %s, %s, %s op_sel:[0,1,1] op_sel_hi:[1,1,1]' % (vr(tZ + 2 * i, 2), vr(tZ + 2 * i, 2), vr(ST + 4 * T, 2), vr(ST + 4 * T, 2)))
        for i in range(8):
            e('v_rcp_f32 %s, %s' % (vr(tZ + i), vr(tZ + i)))
        for i, (T, h) in enumerate(prs):
            e('v_pk_mul_f32 %s, %s, %s' % (vr(tZ + 2 * i, 2), vr(tZ + 2 * i, 2), vr(accp(T, h), 2)))
        o = tO + 4 * hh
        for i in (0, 2, 1, 3):
            e('v_cvt_pk_bf16_f32 %s, %s, %s' % (vr(o + i), vr(tZ + 2 * i), vr(tZ + 2 * i + 1)))
        e('v_permlane16_swap_b32 %s, %s' % (vr(o), vr(o + 2)))
        so = sHM
        if v == 2:
            so = sT0
            if hh == 0:
                S('s_add_u32 %s, %s, 8192', sT0, sHM)
        elif v == 1:
            so = sT0
            if hh == 0:
                S('s_add_u32 %s, %s, 4096', sT0, sHM)
        e('v_permlane16_swap_b32 %s, %s' % (vr(o + 1), vr(o + 3)))
        A.vmem('buffer_store_dwordx4 %s, %s, %s, %s offen offset:%d%s' % (vr(o, 4), vr(vL16), sr(dWS, 4), sr(so), 1024 * hh, HS_), 'HM', opt=opt)

lab = newlab('skip')
S('s_cmp_eq_u32 %s, 1', sF1)
e('s_cbranch_scc1 %s' % lab)
gelu_tile(2, True)
A.label(lab)
if OPT['LBPOS'] == 0:
    lb_issue()
gelu_tile(0, False)
if OPT['LBPOS'] == 1:
    lb_issue()
gelu_tile(1, False)
stamp('gelu')
if OPT['LBPOS'] == 2:
    lb_issue()
KP = [tq, tq + 8, CS, CS + 8]
tab_rd(K1, 0, 'kp', vTI)
for T, row in enumerate((R_L1, R_L2, R_L3, 1)):
    tab_rd(KP[T], row, 'kp')
AD = 32
S('s_lshl_b32 %s, %s, 11', sT0, sW)
S('s_add_u32 %s, %s, %s', sT0, sT0, str(PE))
S('s_add_u32 %s, %s, %s', sT1, sME, str(2 * SLOT))
for i, sb in enumerate((sT0, sM8, sME, sT1)):
    e('v_add_u32 %s, %s, %s' % (vr(AD + 2 * i), sr(sb), vr(vTRL)))
    e('v_xor_b32 %s, 64, %s' % (vr(AD + 2 * i + 1), vr(AD + 2 * i)))
vCA = AD + 8
e('v_bfe_u32 %s, %s, 1, 3' % (vr(vCA), vr(vLANE)))
e('v_xor_b32 %s, %s, %s' % (vr(vCA), vr(vCA), vr(vHI5)))
e('v_lshlrev_b32 %s, 4, %s' % (vr(vCA), vr(vCA)))
e('v_lshl_add_u32 %s, %s, 7, %s' % (vr(vCA), vr(vLO5), vr(vCA)))
S('s_add_u32 %s, %s, %s', sT0, sM8, str(2 * SLOT))
e('v_add_u32 %s, %s, %s' % (vr(vCA), sr(sT0), vr(vCA)))
for sub in range(1, 4):
    e('v_xor_b32 %s, %d, %s' % (vr(vCA + sub), 32 * sub, vr(vCA)))
A.wait_vm('W')
stamp('Wok')
for st in range(11):
    for dh in range(2):
        for half in range(2):
            if st == 0:
                ad, off = AD, 0
            elif st <= 8:
                ad, off = AD + 2, ((st - 1) // 4) * SLOT + ((st - 1) % 4) * 2048
            else:
                ad, off = AD + 4 + 2 * (st - 9), 0
            A.ds('ds_read_b64_tr_b16 %s, %s offset:%d' % (ar(8 * st + 4 * dh + 2 * half, 2), vr(ad + dh), off + half * 512), 'xw')
A.wait_vm('HM')
stamp('HMdone')
one_lane_store(AD + 12, sr(sFL), 'fa', sc=HS_)
if OPT['PTOUCH']:
    A.vmem('buffer_load_dword %s, %s, %s, %s offen sc1' % (vr(vSCR), vr(vTM), sr(dWS, 4), sr(sHM)), 'touch')
for part in range(2):
    for sub in range(4):
        for dh in range(2):
            A.ds('ds_read_b128 %s, %s offset:%d' % (ar(8 * (11 + 2 * sub + part) + 4 * dh, 4), vr(vCA + sub), part * SLOT + dh * 4096), 'xw')
A.wait_vm('lb')
retry_loop('lb', lb_issue, lb_check, 59)
stamp('Sgot')
for i in range(4):
    e('v_cndmask_b32 %s, 0, %s, %s' % (vr(vQ + 4 * i), vr(vQ + 4 * i), sr(sMSK[i], 2)))
    e('v_cndmask_b32 %s, 0, %s, %s' % (vr(vQ + 4 * i + 1), vr(vQ + 4 * i + 1), sr(sMSK[i], 2)))
A.wait_lg('s0')
for i in (2, 1, 0):
    cfma(vQ + 4 * i, vQ + 4 * i + 1, vQ + 4 * i + 4, vQ + 4 * i + 5, L512, L512 + 1, vQ + 4 * i, vQ + 4 * i + 1)
hr, hi_, h2, h3 = vQ + 4, vQ + 5, vQ + 6, vQ + 7
cmul(hr, hi_, vQ, vQ + 1, P128, P128 + 1)
for sw in ('v_permlane16_swap_b32', 'v_permlane32_swap_b32'):
    e('v_mov_b32 %s, %s' % (vr(h2), vr(hr)))
    e('v_mov_b32 %s, %s' % (vr(h3), vr(hi_)))
    e('%s %s, %s' % (sw, vr(hr), vr(h2)))
    e('%s %s, %s' % (sw, vr(hi_), vr(h3)))
    e('v_add_f32 %s, %s, %s' % (vr(hr), vr(hr), vr(h2)))
    e('v_add_f32 %s, %s, %s' % (vr(hi_), vr(hi_), vr(h3)))
lab = newlab('t0')
S('s_cmp_eq_u32 %s, 0', sTH)
e('s_cbranch_scc1 %s' % lab)
cfma(S0, S0 + 1, hr, hi_, L64, L64 + 1, S0, S0 + 1)
e('v_mov_b32 %s, %s' % (vr(hr), vr(S0)))
e('v_mov_b32 %s, %s' % (vr(hi_), vr(S0 + 1)))
A.label(lab)
A.ds('ds_write2_b32 %s, %s, %s offset0:32 offset1:48' % (vr(vSXW), vr(hr), vr(hi_)), 'cy')
A.ds('ds_read_b128 %s, %s offset:128' % (vr(SA, 4), vr(vCR)), 'cy')
A.ds('ds_read_b128 %s, %s offset:192' % (vr(SA + 4, 4), vr(vCR)), 'cy')
A.wait_lg0()
pk_cfma4(SE, SE + 4, SA, SA + 4, K1, SE, SE + 4)
for hh in range(2):
    for T in (2 * hh, 2 * hh + 1):
        pk_cfma4(RR + 4 * T, II + 4 * T, SE, SE + 4, KP[T], RR + 4 * T, II + 4 * T)
    for part in range(2):
        o = vQ + 8 * hh + 4 * part
        b = ACC + 16 * part + 8 * hh
        ng = '-' if part else ''
        for i in range(4):
            e('v_cvt_pk_bf16_f32 %s, %s%s, %s%s' % (vr(o + i), ng, vr(b + 2 * i), ng, vr(b + 2 * i + 1)))
    for part in range(2):
        o = vQ + 8 * hh + 4 * part
        e('v_permlane16_swap_b32 %s, %s' % (vr(o), vr(o + 2)))
        e('v_permlane16_swap_b32 %s, %s' % (vr(o + 1), vr(o + 3)))
        A.vmem('buffer_store_dwordx4 %s, %s, %s, %s offen offset:%d%s' % (vr(o, 4), vr(vL16), sr(dWS, 4), sr(sHS), 2048 * part + 1024 * hh, HS_), 'HS')
stamp('epi')

NR, RING = 22, 152
RD, RES, PXR, pT = 128, 192, 208, 240
vOO, vRW, vRR, vPD = vGO, vCW, vCR, vTM
def pa_issue():
    A.vmem('buffer_load_dword %s, %s, %s, %s offen sc1' % (vr(vPD), vr(vPF), sr(dWS, 4), sr(sPA)), 'pa')
def pa_check():
    e('v_cmp_ne_u32 vcc, %s, %s' % (sr(sTAG), vr(vPD)))
e('s_barrier')
eX, eS, eD = 32, 40, 44
fD, fB, fU, fM = 48, 52, 56, 60
A.wait_vm('res')
for i in range(16):
    e('v_accvgpr_read_b32 %s, a%d' % (vr(eX + [0, 1, 2, 3, 4, 5, 6, 7, 12, 13, 14, 15, 8, 9, 10, 11][i]), 240 + i))
for (dst, src) in ((fD, eD), (fB, eD + 2)):
    for hh in range(2):
        e('v_lshlrev_b32 %s, 16, %s' % (vr(dst + 2 * hh), vr(src + hh)))
        e('v_and_b32 %s, 0xffff0000, %s' % (vr(dst + 2 * hh + 1), vr(src + hh)))
def res_q(q):
    r = RES + 4 * q
    e('v_and_b32 %s, 0xffff0000, %s' % (vr(fM + 1), vr(eS + q)))
    e('v_lshlrev_b32 %s, 16, %s' % (vr(fM), vr(eS + q)))
    e('v_rcp_f32 %s, %s' % (vr(fM + 1), vr(fM + 1)))
    for hh in range(2):
        e('v_lshlrev_b32 %s, 16, %s' % (vr(r + 2 * hh), vr(eX + 2 * q + hh)))
        e('v_and_b32 %s, 0xffff0000, %s' % (vr(r + 2 * hh + 1), vr(eX + 2 * q + hh)))
    def rnd4():
        e('v_cvt_pk_bf16_f32 %s, %s, %s' % (vr(fU + 1), vr(fU), vr(fU + 1)))
        e('v_cvt_pk_bf16_f32 %s, %s, %s' % (vr(fU + 3), vr(fU + 2), vr(fU + 3)))
        e('v_lshlrev_b32 %s, 16, %s' % (vr(fU), vr(fU + 1)))
        e('v_lshlrev_b32 %s, 16, %s' % (vr(fU + 2), vr(fU + 3)))
        e('v_and_b32 %s, 0xffff0000, %s' % (vr(fU + 1), vr(fU + 1)))
        e('v_and_b32 %s, 0xffff0000, %s' % (vr(fU + 3), vr(fU + 3)))
    for hh in range(2):
        e('v_pk_add_f32 %s, %s, %s op_sel:[0,0] op_sel_hi:[1,0] neg_lo:[0,1] neg_hi:[0,1]' % (vr(fU + 2 * hh, 2), vr(r + 2 * hh, 2), vr(fM, 2)))
    rnd4()
    for hh in range(2):
        e('v_pk_mul_f32 %s, %s, %s op_sel:[0,1] op_sel_hi:[1,1]' % (vr(fU + 2 * hh, 2), vr(fU + 2 * hh, 2), vr(fM, 2)))
    rnd4()
    for hh in range(2):
        e('v_pk_mul_f32 %s, %s, %s' % (vr(fU + 2 * hh, 2), vr(fU + 2 * hh, 2), vr(fD + 2 * hh, 2)))
    rnd4()
    for hh in range(2):
        e('v_pk_add_f32 %s, %s, %s' % (vr(r + 2 * hh, 2), vr(r + 2 * hh, 2), vr(fU + 2 * hh, 2)))
    for hh in range(2):
        e('v_pk_add_f32 %s, %s, %s' % (vr(r + 2 * hh, 2), vr(r + 2 * hh, 2), vr(fB + 2 * hh, 2)))
res_q(0)
pa_issue()
res_q(1)
res_q(2)
S('s_add_u32 %s, %s, %s', sFL, sFL, hex(WS_FB - WS_FA))
e('v_lshlrev_b32 %s, 7, %s' % (vr(pT + 2), vr(vLO5)))
A.wait_vm('HS')
stamp('HSdone')
one_lane_store(pT, sr(sFL), 'fb', sc=HS_)
if OPT['PTOUCH']:
    A.vmem('buffer_load_dword %s, %s, %s, %s offen sc1' % (vr(vSCR), vr(pT + 2), sr(dWS, 4), sr(sHS)), 'touch')
A.wait_vm('pa')
retry_loop('pa', pa_issue, pa_check, 60)
stamp('paok')
seq = [(0, s) for s in range(19)] + [(1, s) for s in range(19)]
hf = [0]
def pb_issue():
    A.vmem('buffer_load_dword %s, %s, %s, %s offen sc1' % (vr(vPD), vr(vPF), sr(dWS, 4), sr(sPB)), 'pb')
def hload():
    f = hf[0]
    t, s = seq[f // 2]
    base = sH2 if t else sH1
    n = 3
    if f == OPT['PBPOS']:
        pb_issue()
    if f == 22:
        A.wait_vm('pb')
        retry_loop('pb', pb_issue, pa_check, 61)
        stamp('pbok')
    off = (f & 1) * 1024
    if s < 11:
        if f % 2 == 0:
            S('s_add_u32 %s, %s, %s', sHC, base, sHU)
            n += 1
    else:
        off += ((s - 11) & 1) * 2048
        if f % 2 == 0 and s == 11:
            S('s_add_u32 %s, %s, %s', sHC, base, sSSM)
        elif f % 2 == 0 and (s - 11) % 2 == 0:
            S('s_add_u32 %s, %s, 4096', sHC, sHC)
    A.vmem('buffer_load_dwordx4 %s, %s, %s, %s offen offset:%d%s' % (ar(RING + 4 * (f % NR), 4), vr(vL16), sr(dWS, 4), sr(sHC), off, ['', ' sc1', ' nt', ' sc0'][OPT['HLC']]), 'h%d' % f)
    if s < 11 and f % 2 == 1:
        S('s_add_u32 %s, %s, 2048', sHU, sHU)
        S('s_cmp_ge_u32 %s, %s', sHU, str(11 * 2048))
        S('s_cselect_b32 %s, 0, %s', sHU, sHU)
        n += 3
    hf[0] += 1
    return n
assert OPT['NPRE'] <= OPT['PBPOS']
while hf[0] < OPT['NPRE']:
    hload()
res_q(3)
e('v_and_b32 %s, 0x380, %s' % (vr(vPF), vr(vPF)))
e('v_lshlrev_b32 %s, 1, %s' % (vr(vOO), vr(vXO)))
e('v_mul_u32_u24 %s, 272, %s' % (vr(vRW), vr(vLO5)))
e('v_lshl_add_u32 %s, %s, 4, %s' % (vr(vRW), vr(vHI5), vr(vRW)))
e('v_add_u32 %s, %s, %s' % (vr(vRW), sr(sM0), vr(vRW)))
S('s_mul_i32 %s, %s, %s', sT0, sTH, str(SLOT))
S('s_mul_i32 %s, %s, %s', sT1, sPH, str(16 * 272))
S('s_add_u32 %s, %s, %s', sT0, sT0, sT1)
e('v_mul_u32_u24 %s, 272, %s' % (vr(vRR), vr(vG)))
e('v_lshl_add_u32 %s, %s, 4, %s' % (vr(vRR), vr(vLO4), vr(vRR)))
e('v_add_u32 %s, %s, %s' % (vr(vRR), sr(sT0), vr(vRR)))
S('s_add_u32 %s, %s, 4096', sPX2, sPX)
for k in range(6):
    e('v_mov_b32 %s, %s' % (vr(PXR + 4 * k + 3), sr(sTAG)))

F2 = Q()
def red_write(t, hh, dh, qq):
    A.ds('ds_write_b128 %s, %s offset:%d' % (vr(vRW), vr(64 * t + 32 * hh + 16 * dh + 4 * qq, 4), hh * SLOT + dh * 128 + qq * 32), 'rw')
def red_read(q, part):
    A.ds('ds_read_b128 %s, %s offset:%d' % (vr(RD + 16 * q + 4 * part, 4), vr(vRR), part * PIECE + q * 4 * 272), 'rr%d' % q)
pslot = lambda v: PXR + 4 * (v // 3) + v % 3
def px_issue():
    for k in range(6):
        A.vmem('buffer_load_dwordx4 %s, %s, %s, %s offen offset:%d sc1' % (vr(PXR + 4 * k, 4), vr(vL16), sr(dWS, 4), sr(sPX if k < 4 else sPX2), (k & 3) * 1024), 'px')
def px_check():
    for k in range(6):
        e('v_xor_b32 %s, %s, %s' % (vr(pT + k), sr(sTAG), vr(PXR + 4 * k + 3)))
    e('v_or3_b32 %s, %s, %s, %s' % (vr(pT), vr(pT), vr(pT + 1), vr(pT + 2)))
    e('v_or3_b32 %s, %s, %s, %s' % (vr(pT + 3), vr(pT + 3), vr(pT + 4), vr(pT + 5)))
    e('v_or_b32 %s, %s, %s' % (vr(pT), vr(pT), vr(pT + 3)))
    e('v_cmp_ne_u32 vcc, 0, %s' % vr(pT))
def al_issue(opt=True):
    S('s_mov_b32 %s, %s', sT0, hex(WS_AL))
    A.vmem('buffer_load_dwordx4 %s, %s, %s, %s offen sc1' % (vr(0, 4), vr(vL16), sr(dWS, 4), sr(sT0)), 'alp', opt=opt)
def al_check():
    for i in range(4):
        e('v_xor_b32 v%d, %s, v%d' % (4 + i, sr(sTAG), i))
    e('v_or3_b32 v4, v4, v5, v6')
    e('v_or_b32 v4, v4, v7')
    e('v_cmp_ne_u32 vcc, 0, v4')

used = [0]
clk = [0, -6 * OPT['HINT']]
for n, (t, s) in enumerate(seq):
    if n == 19:
        o = Ops()
        for hh in range(2):
            for dh in range(2):
                for qq in range(4):
                    o.f(lambda hh=hh, dh=dh, qq=qq: red_write(0, hh, dh, qq), 4)
        def bar1():
            A.wait_lg0()
            e('s_barrier')
            stamp('bar1')
        o.v('v_add_u32 %s, %d, %s' % (vr(vRW), 2 * SLOT, vr(vRW)), 8)
        o.f(bar1, 8)
        for q in range(4):
            for part in range(4):
                o.f(lambda q=q, part=part: red_read(q, part), 2)
        o.v('v_add_u32 %s, %d, %s' % (vr(vRR), 2 * SLOT, vr(vRR)))
        ks = 0
        for q in range(4):
            o.f(lambda q=q: A.wait_lg('rr%d' % q))
            b = RD + 16 * q
            for i in range(4):
                o.v('v_add_f32 %s, %s, %s' % (vr(b + i), vr(b + i), vr(b + 4 + i)))
            for i in range(4):
                o.v('v_add_f32 %s, %s, %s' % (vr(b + 8 + i), vr(b + 8 + i), vr(b + 12 + i)))
            for i in range(4):
                o.v('v_add_f32 %s, %s, %s' % (vr(pslot(4 * q + i)), vr(b + i), vr(b + 8 + i)))
            while ks < 6 and min(3 * ks + 2, 15) <= 4 * q + 3:
                o.f(lambda k=ks: A.vmem('buffer_store_dwordx4 %s, %s, %s, %s offen offset:%d sc1' % (vr(PXR + 4 * k, 4), vr(vL16), sr(dWS, 4), sr(sPX if k < 4 else sPX2), (k & 3) * 1024), 'pxs'), 4)
                ks += 1
        o.s('s_xor_b32 %s, %s, 4', sPX, sGW)
        o.s('s_mul_i32 %s, %s, 6144', sPX, sPX)
        o.s('s_add_u32 %s, %s, %s', sPX, sPX, hex(WS_PX))
        o.s('s_add_u32 %s, %s, 4096', sPX2, sPX)
        o.f(lambda: (stamp('pxs'), print('px stores done at step', used[0] / 2, 'loads issued', hf[0])), 0)
        F2.add(o)
    if n == OPT['PXPOS']:
        F2.flush()
        px_issue()
        lab = newlab('nal')
        S('s_cmp_lg_u32 %s, 3', sGW)
        e('s_cbranch_scc1 %s' % lab)
        al_issue()
        A.label(lab)
    for hh in range(2):
        A.wait_vm('h%d' % (2 * n + hh))
        if n in (0, 6, 12, 19, 26, 32) and hh == 0:
            stamp('h%d' % n)
        for dh in range(2):
            acc = vr(64 * t + 32 * hh + 16 * dh, 16)
            e('v_mfma_f32_32x32x16_bf16 %s, %s, %s, %s' % (acc, ar(8 * s + 4 * dh, 4), ar(RING + 4 * ((2 * n + hh) % NR), 4), acc if s else '0'))
            if dh == 1:
                used[0] += 1
            u = dh
            if hf[0] < min(76, used[0] + NR) and clk[0] >= clk[1]:
                u += hload()
                clk[1] += OPT['HINT']
            while F2.ready() and u < OPT['RPOP']:
                u += F2.cost()
                F2.pop1()
            clk[0] += max(32, 8 + 4 * u)
assert hf[0] == 76
stamp('mfma2')
for hh in range(2):
    for dh in range(2):
        for qq in range(4):
            red_write(1, hh, dh, qq)
A.wait_lg0()
e('s_barrier')
stamp('bar2')
for q in range(4):
    for part in range(4):
        red_read(q, part)
A.wait_vm('px')
retry_loop('px', px_issue, px_check, 62)
stamp('pxok')
for v in range(16):
    e('v_add_f32 %s, %s, %s' % (vr(RES + v), vr(RES + v), vr(pslot(v))))
for q in range(4):
    A.wait_lg('rr%d' % q)
    b, r = RD + 16 * q, RES + 4 * q
    for h in (0, 2):
        e('v_pk_add_f32 %s, %s, %s' % (vr(b + h, 2), vr(b + h, 2), vr(b + 4 + h, 2)))
        e('v_pk_add_f32 %s, %s, %s' % (vr(b + 8 + h, 2), vr(b + 8 + h, 2), vr(b + 12 + h, 2)))
    for h in (0, 2):
        e('v_pk_add_f32 %s, %s, %s' % (vr(r + h, 2), vr(r + h, 2), vr(b + h, 2)))
    for h in (0, 2):
        e('v_pk_add_f32 %s, %s, %s' % (vr(r + h, 2), vr(r + h, 2), vr(b + 8 + h, 2)))
    S('s_mov_b32 %s, %s', sT0, str(q * 32768))
    A.vmem('buffer_store_dwordx4 %s, %s, %s, %s offen%s' % (vr(r, 4), vr(vOO), sr(dO, 4), sr(sT0), ['', ' sc1', ' nt', ' sc0 sc1'][OPT['OUTSC']]), 'out')
lab = newlab('nep')
S('s_cmp_lg_u32 %s, 3', sGW)
e('s_cbranch_scc1 %s' % lab)
A.wait_vm('alp')
retry_loop('al', al_issue, al_check, 63)
one_lane_store(8, '0', 'ep')
A.label(lab)
if PROF:
    stamp('stored')
    e('s_waitcnt vmcnt(0)')
    stamp('drained')
    stamp('rt1', True)
    A.wait_lg0()
    e('v_lshlrev_b32 v16, 2, %s' % vr(vLANE))
    S('s_lshl_b32 %s, %s, 8', sT0, sGW)
    S('s_add_u32 %s, %s, %s', sT0, sT0, hex(WS_PROF))
    e('buffer_store_dword %s, v16, %s, %s offen' % (vr(vSTAMP), sr(dWS, 4), sr(sT0)))
    json.dump(SNAMES, open(OUT + '.names', 'w'))
A.label('L_end')
e('s_endpgm')

body, nops = hazard_pass(A.lines)
head = open('cdna_kernels/%s.s.ref' % NAME).read().split('; Override launch')[0]
txt = head + '; @launch grid=(256,1,1) block=(256,1,1) lds=%d\n' % LDS_BYTES
txt += '''.amdgcn_target "amdgcn-amd-amdhsa--gfx950"
.text
.globl %s_kernel
.p2align 8
.type %s_kernel,@function
%s_kernel:
''' % (NAME, NAME, NAME)
txt += '\n'.join(body) + '\n'
txt += '''.section .rodata,"a"
.p2align 6
.amdhsa_kernel %s_kernel
  .amdhsa_next_free_vgpr 512
  .amdhsa_next_free_sgpr 102
  .amdhsa_accum_offset 256
  .amdhsa_group_segment_fixed_size 0
  .amdhsa_kernarg_size 136
  .amdhsa_user_sgpr_count 2
  .amdhsa_user_sgpr_kernarg_segment_ptr 1
  .amdhsa_system_sgpr_workgroup_id_x 1
.end_amdhsa_kernel
''' % NAME
open(OUT, 'w').write(txt)
print('wrote', OUT, 'lines', len(body), 'nops', nops)
```

```python
import sys, math, struct, json
from asmlib import *

NAME = 'parallel_sum__ssm_conv_s5__mixer_channel_mlp__prompt'
PROF = '--prof' in sys.argv
OUT = [a for a in sys.argv[1:] if not a.startswith('--') and '=' not in a]
OUT = OUT[0] if OUT else 'cdna_kernels/%s.s' % NAME
OPT = dict(ROT=9, DINT=72, LBPOS=2, OUTSC=0, PXPOS=33, RPOP=8, HINT=66, PTOUCH=0, DCOST=2, D1A=3, BUD0=2, NB0=4, X=0,
           EINT=72, NB1=0, PBD=8, SDG=6, NPRE=10, WPF=5, WT0=9, STL=5, RQ=2)
for a in sys.argv[1:]:
    if '=' in a:
        k, v = a.split('=')
        assert k in OPT, k
        OPT[k] = int(v)

def f2u(x):
    return '0x%08x' % struct.unpack('<I', struct.pack('<f', x))[0]

WS_AL = 0x1000
WS_G = 0x8000
WS_SG = 0x10000
WS_PROF = 0x40000
WS_FA = 0x80000
WS_FB = 0xA0000
WS_FC = 0xC0000
WS_PX = 0x100000
WS_H = 0x800000
WS_SIZE = 0x1200000
HR = 152 * 2048

SLOT, PIECE = 36864, 9216
TAB, TROW = 147456, 272
CSX = TAB + 25 * TROW
PE = 155648
assert CSX + 1280 <= PE and CSX % 16 == 0
LDS_BYTES = 160 * 1024

sW, sRB, sJ, sKH, sC, sRBL, sTAG, sGW, sT2, sT3, sPC = 4, 5, 6, 7, 8, 9, 10, 11, 12, 13, 14
pX, pLRE, pLIM, pBRE, pBIM, pCRE, pCIM, pLDT, pDSK, pBX, pW1, pB1, pW2, pB2, pOUT, pDBG, pWS = [16 + 2 * i for i in range(17)]
sPERM, sCNT = 50, 51
dX, dWS, dB, dW1, dW2, dO = 52, 56, 60, 64, 68, 72
sM0, sSX, sSW, sOFF, sM8, sME, sWS, sBM, sU0, sCG, sT0, sT1 = range(76, 88)
sCO = sOFF
sMSK = [88, 90, 92, 94]
sTH, sPH, sJT = 34, 35, 46
sD0, sSG, sSGO, sHM, sHS, sFL, sPA, sPB, sH1, sH2 = range(16, 26)
sSSM, sGR, sPX, sP1, sP2, sHC, sF0, sF1 = 30, 31, 32, 33, 36, 37, 38, 39

vLANE, vL16, vLO4, vG, vLO5, vHI5, vSTAMP, vSCR = 255, 254, 253, 252, 251, 250, 249, 248

A = Asm()
AUTO = dict(on=False, t=0, nxt=0, busy=False)
_e = A.e
def e_time(s):
    mn = s.split()[0]
    AUTO['t'] += 8 if mn in TRANS else 12 if mn.startswith(('buffer_', 'ds_write')) else 4
    _e(s)
A.e = e_time
def e(s):
    A.e(s)
    if AUTO['on'] and not AUTO['busy'] and s.startswith('v_') and DQ.ready() and AUTO['t'] >= AUTO['nxt']:
        AUTO['busy'] = True
        AUTO['nxt'] = max(AUTO['nxt'], AUTO['t'] - 2 * OPT['EINT']) + OPT['EINT']
        DQ.popD()
        AUTO['busy'] = False
def auto(on):
    AUTO['on'] = on
EXPECT = dict([('st%d' % v, 9) for v in range(8)] + [('stat', 4), ('W', 38), ('b1', 5), ('srow', 2), ('lb', 4), ('px', 4), ('res', 8)])
ISSUED = {}
_vm, _wv = A.vmem, A.wait_vm
def vm_hook(s, tag='x', opt=False):
    ISSUED[tag] = ISSUED.get(tag, 0) + 1
    if OPT['X'] & 1 and ' lds' in s and tag not in ('st0', 'st1'):
        return
    _vm(s, tag, opt)
def wv_hook(tags):
    for t in ([tags] if isinstance(tags, str) else tags):
        assert ISSUED.get(t, 0) >= EXPECT.get(t, 1), (t, ISSUED.get(t, 0))
    _wv(tags)
A.vmem, A.wait_vm = vm_hook, wv_hook
DSN = {}
_ds = A.ds
def ds_hook(s, tag='x'):
    DSN[tag] = DSN.get(tag, 0) + 1
    if OPT['X'] & 4 and tag[0] in 'xa' and tag[1].isdigit():
        return
    _ds(s, tag)
A.ds = ds_hook
SNAMES = {}
pending = []
SPAIRS = [96, 98, 100]
def flush_stamps():
    for (i, p) in pending:
        e('v_writelane_b32 %s, %s, %d' % (vr(vSTAMP), sr(p), i))
    del pending[:]
_wl0 = A.wait_lg0
def wait_lg0_hook():
    _wl0()
    flush_stamps()
A.wait_lg0 = wait_lg0_hook
def stamp(name, real=False):
    if not PROF:
        return
    assert name not in SNAMES
    SNAMES[name] = len(SNAMES)
    i = SNAMES[name]
    assert i < 57
    if len(pending) == len(SPAIRS):
        A.wait_lg0()
    used = [p for (_, p) in pending]
    p = [q for q in SPAIRS if q not in used][0]
    e('%s %s' % ('s_memrealtime' if real else 's_memtime', sr(p, 2)))
    pending.append((i, p))
def count(slot):
    if PROF:
        e('v_writelane_b32 %s, %s, %d' % (vr(vSTAMP), sr(sCNT), slot))

def srd(d, p, size):
    e('s_mov_b32 %s, %s' % (sr(d), sr(p)))
    e('s_mov_b32 %s, %s' % (sr(d + 1), sr(p + 1)))
    e('s_mov_b32 %s, 0x%x' % (sr(d + 2), size))
    e('s_mov_b32 %s, 0x20000' % sr(d + 3))

def cmul(dr, di, ar_, ai, br, bi):
    e('v_mul_f32 %s, %s, %s' % (vr(dr), vr(ar_), vr(br)))
    e('v_mul_f32 %s, %s, %s' % (vr(di), vr(ar_), vr(bi)))
    e('v_fma_f32 %s, -%s, %s, %s' % (vr(dr), vr(ai), vr(bi), vr(dr)))
    e('v_fma_f32 %s, %s, %s, %s' % (vr(di), vr(ai), vr(br), vr(di)))

def cfma(dr, di, ar_, ai, br, bi, cr, ci):
    e('v_fma_f32 %s, %s, %s, %s' % (vr(dr), vr(ar_), vr(br), vr(cr)))
    e('v_fma_f32 %s, %s, %s, %s' % (vr(di), vr(ar_), vr(bi), vr(ci)))
    e('v_fma_f32 %s, -%s, %s, %s' % (vr(dr), vr(ai), vr(bi), vr(dr)))
    e('v_fma_f32 %s, %s, %s, %s' % (vr(di), vr(ai), vr(br), vr(di)))

NEG1 = 'neg_lo:[0,1,0] neg_hi:[0,1,0]'
def pk_cfma4(dr, di, ar_, ai, k, cr, ci):
    for h in (0, 2):
        e('v_pk_fma_f32 %s, %s, %s, %s' % (vr(dr + h, 2), vr(ar_ + h, 2), vr(k + h, 2), vr(cr + h, 2)))
    for h in (0, 2):
        e('v_pk_fma_f32 %s, %s, %s, %s' % (vr(di + h, 2), vr(ai + h, 2), vr(k + h, 2), vr(ci + h, 2)))
    for h in (0, 2):
        e('v_pk_fma_f32 %s, %s, %s, %s %s' % (vr(dr + h, 2), vr(ai + h, 2), vr(k + 4 + h, 2), vr(dr + h, 2), NEG1))
    for h in (0, 2):
        e('v_pk_fma_f32 %s, %s, %s, %s' % (vr(di + h, 2), vr(ar_ + h, 2), vr(k + 4 + h, 2), vr(di + h, 2)))

labn = [0]
def newlab(s):
    labn[0] += 1
    return 'L_%s_%d' % (s, labn[0])

def S(fmt, *a):
    e(fmt % tuple(sr(x) if isinstance(x, int) else x for x in a))

def retry_loop(name, issue, check, slot, first=True):
    lo, ld = newlab(name + 'l'), newlab(name + 'd')
    if first:
        check()
    if PROF:
        S('s_mov_b32 %s, 0', sCNT)
    e('s_cbranch_vccz %s' % ld)
    S('s_mov_b32 %s, 0', sCNT)
    A.label(lo)
    sv = list(A.vm)
    issue()
    e('s_waitcnt vmcnt(0)')
    A.vm = sv
    check()
    S('s_add_u32 %s, %s, 1', sCNT, sCNT)
    e('s_cbranch_vccz %s' % ld)
    S('s_cmp_le_u32 %s, 0x20000', sCNT)
    e('s_cbranch_scc1 %s' % lo)
    A.label(ld)
    count(slot)

def one_lane_store(vt, soff, tag, opt=False, sc=' sc1'):
    e('v_mov_b32 %s, %s' % (vr(vt), sr(sTAG)))
    e('v_mov_b32 %s, 0' % vr(vt + 1))
    e('s_mov_b64 exec, 1')
    A.vmem('buffer_store_dword %s, %s, %s, %s offen%s' % (vr(vt), vr(vt + 1), sr(dWS, 4), soff, sc), tag, opt=opt)
    e('s_mov_b64 exec, -1')
def flag(off, tag):
    S('s_add_u32 %s, %s, %s', sT0, sFL, hex(off))
    e('s_mov_b32 exec_hi, 0')
    A.vmem('buffer_store_dword %s, %s, %s, %s offen sc1' % (vr(vTAG), vr(vTM), sr(dWS, 4), sr(sT0)), tag)
    e('s_mov_b32 exec_hi, -1')

ACC, CS, XF, AF, ONE = 0, 80, 100, 132, 152
XA, BA, WA = 156, 160, 164
vX, vB, vW1, vW2 = 168, 170, 172, 175
B1, ST, SS, TMP = 180, 188, 204, 212
BU = TMP + 4
vTB, vTI, vTC, vTG, vSXW, vSXR, vCW, vCR, vPF, vTM, vXO, vGO = range(TMP + 16, TMP + 28)
vPA = TMP + 28
vSA, vTRL, vTAG = 177, 178, 179
vWT, vCT, vPW = 244, 245, 246
sPM = 40
U0, U1 = 186, 187
SR = ST

e('s_cmp_ge_u32 s2, 256')
e('s_cbranch_scc1 L_end')
if PROF:
    e('v_mov_b32 %s, 0' % vr(vSTAMP))
    stamp('rt0', True)
    stamp('t0')
e('s_load_dwordx16 s[16:31], s[0:1], 0')
e('s_load_dwordx16 s[32:47], s[0:1], 64')
e('s_load_dwordx2 s[48:49], s[0:1], 128')
e('s_getpc_b64 %s' % sr(sPC, 2))
A.label('L_pc')
e('v_and_b32 %s, 63, v0' % vr(vLANE))
e('v_lshrrev_b32 v1, 6, v0')
e('v_lshlrev_b32 %s, 4, %s' % (vr(vL16), vr(vLANE)))
e('v_readfirstlane_b32 %s, v1' % sr(sW))
e('v_lshlrev_b32 v2, 7, v0')
e('v_min_u32 v2, L_end-L_pc, v2')
lab = newlab('npf')
e('s_cmp_ge_u32 s2, 16')
e('s_cbranch_scc1 %s' % lab)
A.vmem('global_load_dword %s, v2, %s' % (vr(vSCR), sr(sPC, 2)), 'pf', opt=True)
A.label(lab)
S('s_and_b32 %s, s2, 1', sKH)
S('s_lshr_b32 %s, s2, 6', sRBL)
S('s_bfe_u32 %s, s2, 0x30003', sC)
S('s_bfe_u32 s3, s2, 0x20001')
S('s_lshl2_add_u32 %s, s3, %s', sRB, sRBL)
S('s_lshl3_add_u32 %s, %s, %s', sJ, sKH, sC)
S('s_lshl2_add_u32 %s, s2, %s', sGW, sW)
if OPT['ROT'] == 0:
    S('s_mov_b32 %s, 0x76543210', sPERM)
elif OPT['ROT'] == 9:
    PT = [[0, 4, 1, 2, 3, 5, 6, 7], [1, 2, 5, 3, 0, 4, 6, 7], [2, 3, 0, 6, 1, 4, 5, 7], [3, 0, 1, 2, 7, 4, 5, 6]]
    PT = [hex(sum(x << (4 * i) for i, x in enumerate(p))) for p in PT]
    S('s_add_u32 %s, %s, %s', sT0, sRBL, sC)
    S('s_mov_b32 %s, %s', sPERM, PT[0])
    S('s_mov_b32 %s, %s', sT1, PT[2])
    S('s_bitcmp1_b32 %s, 0', sT0)
    S('s_cselect_b32 %s, %s, %s', sPERM, PT[1], sPERM)
    S('s_cselect_b32 %s, %s, %s', sT1, PT[3], sT1)
    S('s_bitcmp1_b32 %s, 1', sT0)
    S('s_cselect_b32 %s, %s, %s', sPERM, sT1, sPERM)
    S('s_add_u32 %s, s3, %s', sT1, sKH)
    S('s_bitcmp1_b32 %s, 0', sT1)
    S('s_cselect_b32 %s, 0x44444444, 0', sT1)
    S('s_xor_b32 %s, %s, %s', sPERM, sPERM, sT1)
elif OPT['ROT'] == 8:
    S('s_lshl1_add_u32 %s, %s, %s', sT0, sRBL, sC)
    S('s_add_u32 %s, %s, s3', sT0, sT0)
    S('s_and_b32 %s, %s, 7', sT0, sT0)
    S('s_mul_i32 %s, %s, 0x11111111', sT0, sT0)
    S('s_add_u32 %s, %s, 0x76543210', sT0, sT0)
    S('s_and_b32 %s, %s, 0x77777777', sPERM, sT0)
else:
    S('s_add_u32 %s, %s, %s', sT0, sRBL, sC)
    S('s_and_b32 %s, %s, 3', sT0, sT0)
    S('s_mul_i32 %s, %s, 0x11111111', sT0, sT0)
    S('s_add_u32 %s, %s, 0x32103210', sT0, sT0)
    S('s_and_b32 %s, %s, 0x33333333', sT0, sT0)
    if OPT['ROT'] == 4:
        S('s_add_u32 %s, s3, %s', sT1, sKH)
    elif OPT['ROT'] == 6:
        S('s_mov_b32 %s, 0', sT1)
    else:
        S('s_lshr_b32 %s, %s, 2', sT1, sC)
        S('s_add_u32 %s, %s, s3', sT1, sT1)
    S('s_bitcmp0_b32 %s, 0', sT1)
    S('s_mov_b32 %s, 0x4444', sT1)
    S('s_cselect_b32 %s, 0x44440000, %s', sT1, sT1)
    S('s_or_b32 %s, %s, %s', sPERM, sT0, sT1)
e('v_lshrrev_b32 %s, 5, %s' % (vr(vHI5), vr(vLANE)))
e('v_and_b32 %s, 31, %s' % (vr(vLO5), vr(vLANE)))
e('v_lshrrev_b32 %s, 4, %s' % (vr(vG), vr(vLANE)))
e('v_and_b32 %s, 15, %s' % (vr(vLO4), vr(vLANE)))
S('s_lshr_b32 %s, %s, 1', sT2, sW)
S('s_and_b32 %s, %s, 1', sT3, sW)
e('v_and_b32 v1, 7, %s' % vr(vLANE))
e('v_lshrrev_b32 v3, 3, %s' % vr(vLANE))
e('v_xor_b32 v4, v1, %s' % vr(vG))
e('v_lshlrev_b32 v4, 4, v4')
S('s_lshl1_add_u32 %s, %s, %s', sT0, sRB, sT2)
S('s_lshl_b32 %s, %s, 6', sT0, sT0)
S('s_add_u32 %s, %s, %s', sT0, sT0, sT3)
S('s_lshl_b32 %s, %s, 10', sT0, sT0)
e('v_lshl_add_u32 v5, v3, 12, v4')
e('v_add_u32 %s, %s, v5' % (vr(vX), sr(sT0)))
e('v_xor_b32 %s, 64, %s' % (vr(vX + 1), vr(vX)))
e('v_add_u32 %s, %d, %s' % (vr(vX + 1), 31 * 1024, vr(vX + 1)))
S('s_lshl1_add_u32 %s, %s, %s', sCG, sJ, sT2)
S('s_lshl_b32 %s, %s, 14', sCG, sCG)
e('v_lshl_add_u32 v5, v3, 10, v4')
e('v_add_u32 %s, %s, v5' % (vr(vB), sr(sCG)))
e('v_xor_b32 %s, 64, %s' % (vr(vB + 1), vr(vB)))
e('v_add_u32 %s, %d, %s' % (vr(vB + 1), 7 * 1024, vr(vB + 1)))
S('s_lshr_b32 %s, %s, 2', sT0, sJ)
S('s_mul_i32 %s, %s, 22', sT0, sT0)
S('s_and_b32 %s, %s, 3', sT1, sJ)
S('s_mul_i32 %s, %s, 6', sT1, sT1)
S('s_add_u32 %s, %s, %s', sOFF, sT0, sT1)
S('s_lshl_b32 %s, %s, 5', sSW, sOFF)
S('s_mul_i32 %s, %s, %s', sT0, sW, str(16 * 2752))
S('s_add_u32 %s, %s, %s', sSW, sSW, sT0)
S('s_movk_i32 %s, 5462', sT0)
S('s_movk_i32 %s, 2752', sT1)
for i in range(3):
    e('v_add_u32 v6, %d, %s' % (64 * i, vr(vLANE)))
    e('v_mul_u32_u24 v7, %s, v6' % sr(sT0))
    e('v_lshrrev_b32 v7, 16, v7')
    e('v_mul_u32_u24 v8, 12, v7')
    e('v_sub_u32 v6, v6, v8')
    e('v_lshrrev_b32 v8, 3, v7')
    e('v_lshlrev_b32 v8, 1, v8')
    e('v_xor_b32 v6, v6, v8')
    e('v_mul_u32_u24 v7, %s, v7' % sr(sT1))
    e('v_lshl_add_u32 v6, v6, 4, v7')
    e('v_add_u32 %s, %s, v6' % (vr(vW1 + i), sr(sSW)))
    if i < 2:
        S('s_sub_u32 %s, %s, 1024', sSW, sSW)
S('s_mul_i32 %s, %s, %s', sM0, sW, str(PIECE))
S('s_lshl_b32 %s, %s, 6', sT0, sJ)
e('v_lshl_add_u32 v9, %s, 1, %s' % (vr(vLO5), sr(sT0)))
e('v_mov_b32 v10, 0')
S('s_mov_b32 %s, 0x200000', dX + 2)
S('s_mov_b32 %s, 0x20000', dX + 3)
S('s_mov_b32 %s, 0x80000', dB + 2)
S('s_mov_b32 %s, 0x20000', dB + 3)
S('s_mov_b32 %s, %s', dW1 + 2, str(512 * 2752))
S('s_mov_b32 %s, 0x20000', dW1 + 3)
S('s_mov_b32 %s, %s', dWS + 2, hex(WS_SIZE))
S('s_mov_b32 %s, 0x20000', dWS + 3)

def stage_dma(v):
    slot = v & 3
    tag = 'st%d' % v
    ops = []
    sc = lambda fmt, *a: ops.append((1, lambda: S(fmt, *a)))
    dm = lambda txt: ops.append(('D', lambda: A.vmem(txt, tag)))
    sc('s_bfe_u32 %s, %s, %s', sSW, sPERM, '0x%x' % (4 * v + 0x30000))
    sc('s_add_u32 m0, %s, %s', sM0, str(slot * SLOT + 4096))
    sc('s_lshl_b32 %s, %s, 7', sSX, sSW)
    for i in range(2):
        dm('buffer_load_dwordx4 %s, %s, %s offen offset:%d lds' % (vr(vB + i), sr(dB, 4), sr(sSX), i * 1024))
    sc('s_add_u32 m0, %s, %s', sM0, str(slot * SLOT + 6144))
    sc('s_mul_i32 %s, %s, %s', sSW, sSW, str(64 * 2752))
    for i in range(3):
        dm('buffer_load_dwordx4 %s, %s, %s offen offset:%d lds' % (vr(vW1 + i), sr(dW1, 4), sr(sSW), i * 1024))
    sc('s_add_u32 m0, %s, %s', sM0, str(slot * SLOT))
    for i in range(4):
        dm('buffer_load_dwordx4 %s, %s, %s offen offset:%d lds' % (vr(vX + (i & 1)), sr(dX, 4), sr(sSX), i * 1024))
    return ops

S('s_lshl1_add_u32 %s, %s, %s', sT0, sRB, sKH)
S('s_and_b32 %s, %s, 1', sT1, sJ)
S('s_lshl1_add_u32 %s, %s, %s', sT0, sT0, sT1)
S('s_lshl2_add_u32 %s, %s, %s', sT0, sT0, sW)
S('s_bfe_u32 %s, %s, 0x20001', sT1, sJ)
S('s_lshl3_add_u32 %s, %s, %s', sT0, sT0, sT1)
S('s_lshl_b32 %s, %s, 10', sM8, sT0)
e('v_lshlrev_b32 %s, 12, %s' % (vr(vSA), vr(vHI5)))
e('v_lshl_add_u32 %s, %s, 4, %s' % (vr(vSA), vr(vLO5), vr(vSA)))
d0 = stage_dma(0)
for (c, f) in d0[:3]:
    f()
S('s_cmp_eq_u32 %s, 0', sT3)
A.wait_lg0()
stamp('karg')
S('s_cselect_b64 %s, %s, %s', sr(dB, 2), sr(pBRE, 2), sr(pBIM, 2))
S('s_mov_b64 %s, %s', sr(dX, 2), sr(pX, 2))
S('s_mov_b64 %s, %s', sr(dWS, 2), sr(pWS, 2))
lre, lim, ldt, vEP = 11, 12, 13, 14
A.vmem('global_load_ushort %s, v9, %s' % (vr(lre), sr(pLRE, 2)), 'lam')
A.vmem('global_load_ushort %s, v9, %s' % (vr(lim), sr(pLIM, 2)), 'lam')
A.vmem('global_load_ushort %s, v9, %s' % (vr(ldt), sr(pLDT, 2)), 'lam')
A.vmem('buffer_load_dword %s, v10, %s, 0 offen sc1' % (vr(vEP), sr(dWS, 4)), 'lam')
S('s_mov_b64 %s, %s', sr(dW1, 2), sr(pW1, 2))
for i in range(2):
    A.vmem('buffer_load_dwordx4 %s, %s, %s, %s offen offset:%d' % (vr(SR + 4 * i, 4), vr(vSA), sr(dX, 4), sr(sM8), 512 * i), 'srow')
for (c, f) in d0[3:]:
    f()
stamp('d0')

S('s_mov_b32 %s, %s', sTH, sT2)
S('s_mov_b32 %s, %s', sPH, sT3)
S('s_mov_b32 %s, %s', sJT, sOFF)
srd(dO, pB1, 2752)
srd(dW2, pW2, 1376 * 1024)
S('s_mov_b64 %s, %s', sr(sPC, 2), sr(pDSK, 2))
e('v_lshrrev_b32 v1, 1, %s' % vr(vLO4))
e('v_xor_b32 v1, v1, %s' % vr(vG))
e('v_lshlrev_b32 v1, 4, v1')
e('v_lshl_add_u32 v1, %s, 7, v1' % vr(vLO4))
S('s_lshl_b32 %s, %s, 6', sT0, sTH)
e('v_xor_b32 v1, %s, v1' % sr(sT0))
e('v_xor_b32 v2, 64, v1')
S('s_mul_i32 %s, %s, %s', sT0, sTH, str(2 * PIECE))
S('s_mul_i32 %s, %s, %s', sT1, sPH, str(2 * PIECE))
S('s_add_u32 %s, %s, 4096', sT1, sT1)
for k in range(2):
    e('v_add_u32 %s, %s, v%d' % (vr(XA + 2 * k), sr(sT0), 1 + k))
    e('v_add_u32 %s, %s, v%d' % (vr(BA + 2 * k), sr(sT1), 1 + k))
    e('v_add_u32 %s, %d, %s' % (vr(XA + 2 * k + 1), 2 * SLOT, vr(XA + 2 * k)))
    e('v_add_u32 %s, %d, %s' % (vr(BA + 2 * k + 1), 2 * SLOT, vr(BA + 2 * k)))
e('v_bfe_u32 v1, %s, 2, 2' % vr(vLANE))
e('v_bfe_u32 v2, %s, 4, 1' % vr(vLANE))
e('v_lshl_add_u32 v3, v2, 3, v1')
e('v_mul_u32_u24 v3, 192, v3')
e('v_xor_b32 v4, %s, v2' % sr(sPH))
e('v_lshl_add_u32 v3, v4, 5, v3')
e('v_and_b32 v4, 3, %s' % vr(vLANE))
e('v_lshl_add_u32 v3, v4, 3, v3')
S('s_movk_i32 %s, %s', sT1, str(PIECE))
e('v_mad_u32_u24 v3, %s, %s, v3' % (vr(vHI5), sr(sT1)))
S('s_add_u32 %s, %s, 6144', sT1, sT0)
S('s_sub_u32 %s, %s, %s', sT0, str(2 * PIECE + 6144), sT0)
e('v_add_u32 %s, %s, v3' % (vr(WA), sr(sT1)))
e('v_add_u32 %s, %s, v3' % (vr(WA + 2), sr(sT0)))
e('v_add_u32 %s, %d, %s' % (vr(WA + 1), 2 * SLOT, vr(WA)))
e('v_add_u32 %s, %d, %s' % (vr(WA + 3), 2 * SLOT, vr(WA + 2)))
e('v_and_b32 v5, 7, %s' % vr(vLANE))
e('v_lshlrev_b32 v6, 2, v2')
e('v_xor_b32 v5, v5, v6')
e('v_lshlrev_b32 v5, 4, v5')
e('v_lshrrev_b32 v6, 3, %s' % vr(vLANE))
e('v_lshl_add_u32 %s, v6, 10, v5' % vr(vW2))
e('v_add_u32 %s, %d, %s' % (vr(vW2 + 1), 7 * 1024, vr(vW2)))
e('v_lshl_add_u32 v5, %s, 3, v1' % vr(vHI5))
e('v_lshlrev_b32 v5, 7, v5')
e('v_lshrrev_b32 v6, 1, v1')
e('v_lshl_add_u32 v5, v6, 6, v5')
e('v_lshl_add_u32 v5, v2, 5, v5')
e('v_lshl_add_u32 %s, v4, 3, v5' % vr(vTRL))
for i in range(4):
    e('v_mov_b32 %s, 0x3f803f80' % vr(ONE + i))
S('s_lshl_b32 %s, %s, 13', sM8, sW)
S('s_mul_i32 %s, %s, %s', sME, sTH, str(SLOT))
S('s_lshl_b32 %s, %s, 11', sT0, sPH)
S('s_add_u32 %s, %s, %s', sME, sME, sT0)
S('s_add_u32 %s, %s, 32768', sME, sME)
S('s_lshl2_add_u32 %s, %s, %s', sT2, sKH, sW)
S('s_lshl_b32 %s, %s, 9', sCO, sC)
S('s_add_u32 %s, %s, %s', sCO, sCO, sT2)
S('s_lshl_b32 %s, %s, 7', sCO, sCO)
S('s_lshr_b32 %s, %s, 1', sT0, sT2)
S('s_mul_i32 %s, %s, 22', sT0, sT0)
S('s_add_u32 %s, %s, %s', sT0, sT0, sPH)
S('s_lshl_b32 %s, %s, 7', sWS, sT0)
S('s_add_u32 %s, %s, %s', sWS, sWS, sC)
S('s_lshl_b32 %s, %s, 7', sWS, sWS)
S('s_lshl_b32 %s, %s, 11', sT0, sT0)
S('s_lshl_b32 %s, %s, 14', sSSM, sT2)
S('s_sub_u32 %s, %s, %s', sSSM, sSSM, sT0)
S('s_add_u32 %s, %s, %s', sSSM, sSSM, str(88 * 2048))
S('s_add_u32 %s, %s, %s', sT0, sT0, hex(WS_H))
S('s_lshl1_add_u32 %s, %s, %s', sT1, sRB, sKH)
S('s_mul_i32 %s, %s, %s', sH2, sT1, str(HR))
S('s_add_u32 %s, %s, %s', sH2, sH2, sT0)
S('s_xor_b32 %s, %s, 1', sT3, sT1)
S('s_mul_i32 %s, %s, %s', sH1, sT3, str(HR))
S('s_add_u32 %s, %s, %s', sH1, sH1, sT0)
S('s_lshl1_add_u32 %s, %s, %s', sPA, sT1, sTH)
S('s_lshl4_add_u32 %s, %s, %s', sPA, sPA, sPH)
S('s_lshl_b32 %s, %s, 7', sPA, sPA)
S('s_add_u32 %s, %s, %s', sPA, sPA, hex(WS_FA))
S('s_lshl2_add_u32 %s, %s, %s', sPB, sT1, sW)
S('s_lshl_b32 %s, %s, 8', sGR, sPB)
S('s_add_u32 %s, %s, %s', sGR, sGR, hex(WS_G + 8))
S('s_lshl_b32 %s, %s, 10', sPB, sPB)
S('s_add_u32 %s, %s, %s', sPB, sPB, hex(WS_FB))
S('s_lshl1_add_u32 %s, %s, %s', sT0, sJ, sPH)
S('s_lshl_b32 %s, %s, 12', sT0, sT0)
S('s_add_u32 %s, %s, %s', sSG, sT0, hex(WS_SG))
S('s_lshl_b32 %s, %s, 8', sSGO, sRB)
S('s_add_u32 %s, %s, %s', sSGO, sSGO, sSG)
S('s_lshl1_add_u32 %s, %s, %s', sT1, sRB, sTH)
S('s_mul_i32 %s, %s, %s', sT1, sT1, str(HR))
S('s_add_u32 %s, %s, %s', sHS, sT0, sT1)
S('s_add_u32 %s, %s, %s', sHS, sHS, hex(WS_H + 88 * 2048))
S('s_add_u32 %s, %s, %s', sHM, sJT, sPH)
S('s_lshl_b32 %s, %s, 11', sHM, sHM)
S('s_add_u32 %s, %s, %s', sHM, sHM, sT1)
S('s_add_u32 %s, %s, %s', sHM, sHM, hex(WS_H))
S('s_lshl4_add_u32 %s, %s, %s', sFL, sRB, sJ)
S('s_lshl2_add_u32 %s, %s, %s', sFL, sFL, sW)
S('s_lshl_b32 %s, %s, 5', sF0, sFL)
S('s_add_u32 %s, %s, %s', sF0, sF0, hex(WS_G))
S('s_lshl_b32 %s, %s, 7', sFL, sFL)
S('s_lshl_b32 %s, %s, 12', sPX, sGW)
S('s_add_u32 %s, %s, %s', sPX, sPX, hex(WS_PX))
class Q:
    def __init__(self):
        self.q = []
        self.open = set([None])
    def add(self, ops, gate=None):
        self.q += [(c, f, gate) for (c, f) in ops]
    def ready(self):
        return bool(self.q) and self.q[0][2] in self.open
    def cost(self):
        return self.q[0][0]
    def pop1(self):
        self.q.pop(0)[1]()
    def popD(self, n=1):
        while n > 0 and self.ready():
            if self.cost() == 'D':
                n -= 1
            self.pop1()
    def pop(self, n):
        while n > 0 and self.ready():
            c = self.cost()
            n -= 2 if c == 'D' else c
            self.pop1()
    def flush(self):
        while self.q:
            assert self.ready(), self.q[0][2]
            self.pop1()

class Ops(list):
    def v(self, s, c=1):
        self.append((c, lambda: e(s)))
    def s(self, fmt, *a):
        self.append((1, lambda: S(fmt, *a)))
    def f(self, fn, c=1):
        self.append((c, fn))

def prep_ops():
    o = Ops()
    o.s('s_lshl_b32 %s, %s, 6', sT0, sPH)
    o.s('s_add_u32 %s, %s, %s', sT0, sT0, str(TAB))
    o.s('s_movk_i32 %s, %s', sT1, str(TROW))
    o.v('v_lshl_add_u32 %s, %s, 4, %s' % (vr(vTB), vr(vG), sr(sT0)))
    o.v('v_lshl_add_u32 %s, %s, 2, %s' % (vr(vTC), vr(vLO4), sr(sT0)))
    o.v('v_mad_u32_u24 %s, %s, %s, %s' % (vr(vTI), vr(vLO4), sr(sT1), vr(vTB)))
    o.v('v_min_u32 %s, 1, %s' % (vr(U0), vr(vG)))
    o.v('v_lshl_add_u32 %s, %s, 4, %s' % (vr(U0), vr(U0), vr(vG)))
    o.v('v_mad_u32_u24 %s, %s, %s, %s' % (vr(vTG), vr(U0), sr(sT1), vr(vTC)))
    o.s('s_mul_i32 %s, %s, 320', sT0, sW)
    o.s('s_add_u32 %s, %s, %s', sT0, sT0, str(CSX))
    o.v('v_lshl_add_u32 %s, %s, 4, %s' % (vr(vCW), vr(vG), sr(sT0)))
    o.s('s_xor_b32 %s, %s, 2', sT0, sW)
    o.s('s_mul_i32 %s, %s, 320', sT0, sT0)
    o.s('s_add_u32 %s, %s, %s', sT0, sT0, str(CSX))
    o.v('v_lshl_add_u32 %s, %s, 4, %s' % (vr(vCR), vr(vG), sr(sT0)))
    o.v('v_lshl_add_u32 %s, %s, 2, %s' % (vr(vSXW), vr(vLO4), sr(sT0)))
    o.s('s_mul_i32 %s, %s, 320', sT0, sPH)
    o.s('s_add_u32 %s, %s, %s', sT0, sT0, str(CSX))
    o.v('v_lshl_add_u32 %s, %s, 2, %s' % (vr(vSXR), vr(vLO4), sr(sT0)))
    o.s('s_sub_u32 %s, %s, 1', sT0, sRB)
    o.v('v_sub_u32 %s, %s, %s' % (vr(U0), sr(sT0), vr(vG)))
    o.v('v_lshlrev_b32 %s, 4, %s' % (vr(U1), vr(vLO4)))
    for i in range(4):
        o.v('v_subrev_u32 %s, %d, %s' % (vr(vPA + i), 4 * i, vr(U0)))
        o.v('v_cmp_le_i32 %s, 0, %s' % (sr(sMSK[i], 2), vr(vPA + i)))
        o.v('v_max_i32 %s, 0, %s' % (vr(vPA + i), vr(vPA + i)))
        o.v('v_lshl_add_u32 %s, %s, 8, %s' % (vr(vPA + i), vr(vPA + i), vr(U1)))
    o.v('v_and_b32 %s, 7, %s' % (vr(vPF), vr(vLANE)))
    o.v('v_lshlrev_b32 %s, 8, %s' % (vr(vPF), vr(vPF)))
    o.s('s_and_b32 %s, %s, 3', sT0, sJ)
    o.s('s_cmp_eq_u32 %s, 3', sT0)
    o.s('s_cselect_b32 %s, 0, 0xffff', sF1)
    o.v('v_lshlrev_b32 %s, 2, %s' % (vr(vTM), vr(vLO5)))
    o.v('v_mul_u32_u24 %s, 96, %s' % (vr(U0), vr(vG)))
    o.v('v_add_lshl_u32 %s, %s, %s, 10' % (vr(vWT), vr(U0), vr(vLO4)))
    o.v('v_lshlrev_b32 %s, 10, %s' % (vr(vCT), vr(vLANE)))
    o.v('v_and_b32 %s, 3, %s' % (vr(U1), vr(vLANE)))
    o.v('v_lshrrev_b32 %s, 2, %s' % (vr(U0), vr(vLANE)))
    o.v('v_mad_u32_u24 %s, %s, 3, %s' % (vr(U0), vr(U1), vr(U0)))
    o.s('s_lshl2_add_u32 %s, %s, s3', sT0, sRBL)
    o.s('s_lshl_b32 %s, %s, 10', sT1, sT0)
    o.v('v_lshl_add_u32 %s, %s, 15, %s' % (vr(vPW), vr(U0), sr(sT1)))
    o.s('s_lshl_b32 %s, %s, 2', sT0, sT0)
    o.s('s_lshl_b64 %s, 15, %s', sr(sPM, 2), sT0)
    o.s('s_lshl1_add_u32 %s, %s, %s', sT0, sRB, sKH)
    o.s('s_lshl_b32 %s, %s, 6', sT0, sT0)
    o.s('s_add_u32 %s, %s, %s', sT0, sT0, sW)
    o.v('v_lshl_add_u32 %s, %s, 2, %s' % (vr(U0), vr(vG), sr(sT0)))
    o.s('s_lshl_b32 %s, %s, 7', sT1, sC)
    o.v('v_lshl_add_u32 %s, %s, 3, %s' % (vr(U1), vr(vLO4), sr(sT1)))
    o.v('v_lshl_add_u32 %s, %s, 10, %s' % (vr(vXO), vr(U0), vr(U1)))
    o.v('v_lshlrev_b32 %s, 4, %s' % (vr(vGO), vr(vG)))
    o.v('v_lshlrev_b32 %s, 3, %s' % (vr(U0), vr(vG)))
    return o

for (c, f) in prep_ops():
    f()
stamp('prep')
A.wait_vm('lam')
stamp('lam')
LOG2E = math.log2(math.e)
e('v_readfirstlane_b32 %s, %s' % (sr(sTAG), vr(vEP)))
for r in (lre, lim, ldt):
    e('v_lshlrev_b32 %s, 16, %s' % (vr(r), vr(r)))
e('v_mul_f32 %s, %s, %s' % (vr(ldt), f2u(LOG2E), vr(ldt)))
e('v_exp_f32 %s, %s' % (vr(ldt), vr(ldt)))
S('s_add_u32 %s, %s, 1', sTAG, sTAG)
e('v_add_u32 %s, 1, %s' % (vr(vTAG), vr(vEP)))
S('s_lshl_b32 %s, %s, 1', sT0, sW)
e('v_add_u32 v1, %s, %s' % (sr(sT0), vr(vHI5)))
e('v_cvt_pk_bf16_f32 %s, %s, %s' % (vr(ldt), vr(ldt), vr(ldt)))
e('v_cvt_f32_u32 v2, v1')
e('v_lshlrev_b32 %s, 16, %s' % (vr(ldt), vr(ldt)))
e('v_cmp_lt_u32 vcc, 4, v1')
e('v_mul_u32_u24 v3, %d, v1' % TROW)
e('v_mul_f32 v5, %s, %s' % (vr(ldt), vr(lre)))
e('v_mul_f32 v6, %s, %s' % (vr(ldt), vr(lim)))
e('v_lshl_add_u32 v3, %s, 2, v3' % vr(vLO5))
e('v_mul_f32 v5, %s, v5' % f2u(LOG2E))
e('v_mul_f32 v6, 0.15915494, v6')
e('v_add_u32 v3, %d, v3' % TAB)
e('v_mul_f32 v20, 4.0, v2')
e('v_add_f32 v21, %s, v20' % f2u(32.0))
e('v_mul_f32 v22, %s, v2' % f2u(128.0))
e('v_max_f32 v22, %s, v22' % f2u(64.0))
e('v_add_f32 v23, -4.0, v2')
e('v_cndmask_b32 v22, v22, v23, vcc')
for r in range(3):
    e('v_mul_f32 v%d, v%d, v5' % (24 + r, 20 + r))
    e('v_mul_f32 v%d, v%d, v6' % (28 + r, 20 + r))
for r in range(3):
    e('v_exp_f32 v%d, v%d' % (24 + r, 24 + r))
    e('v_rndne_f32 v%d, v%d' % (20 + r, 28 + r))
for r in range(3):
    e('v_sub_f32 v%d, v%d, v%d' % (28 + r, 28 + r, 20 + r))
for r in range(3):
    e('v_cos_f32 v%d, v%d' % (20 + r, 28 + r))
    e('v_sin_f32 v%d, v%d' % (28 + r, 28 + r))
for r in range(3):
    e('v_mul_f32 v%d, v%d, v%d' % (20 + r, 20 + r, 24 + r))
    e('v_mul_f32 v%d, v%d, v%d' % (28 + r, 28 + r, 24 + r))
for r in range(3):
    A.ds('ds_write_b32 v3, v%d offset:%d' % (20 + r, 8 * r * TROW), 'tab')
    A.ds('ds_write_b32 v3, v%d offset:%d' % (28 + r, 8 * r * TROW + 128), 'tab')
lab = newlab('ncf')
S('s_cmp_lg_u32 %s, 2', sW)
e('s_cbranch_scc1 %s' % lab)
e('v_mul_f32 v24, %s, %s' % (vr(lre), vr(lre)))
e('v_fma_f32 v24, %s, %s, v24' % (vr(lim), vr(lim)))
e('v_rcp_f32 v24, v24')
e('v_add_f32 v25, -1.0, v22')
e('v_mul_f32 v26, v25, %s' % vr(lre))
e('v_mul_f32 v27, v30, %s' % vr(lre))
e('v_add_f32 v24, v24, v24')
e('v_fma_f32 v26, v30, %s, v26' % vr(lim))
e('v_fma_f32 v27, -v25, %s, v27' % vr(lim))
e('v_mul_f32 v26, v26, v24')
e('v_mul_f32 v27, v27, v24')
e('s_mov_b32 exec_lo, 0')
e('ds_write_b32 v3, v26 offset:%d' % (19 * TROW))
e('ds_write_b32 v3, v27 offset:%d' % (19 * TROW + 128))
e('s_mov_b32 exec_lo, -1')
A.label(lab)
stamp('tab')
R_L64, R_L512, R_L1, R_L2, R_L3, R_CF = 16, 20, 21, 22, 23, 24

DQ = Q()
FQ = Q()
def stat_compute_ops():
    o = Ops()
    t = SR + 8
    o.f(lambda: A.wait_vm('srow'))
    o.v('v_dot2_f32_bf16 v%d, v%d, v%d, 0' % (t, SR, ONE), 2)
    o.v('v_dot2_f32_bf16 v%d, v%d, v%d, 0' % (t + 1, SR, SR), 2)
    for i in range(1, 8):
        o.v('v_dot2_f32_bf16 v%d, v%d, v%d, v%d' % (t, SR + i, ONE, t), 2)
        o.v('v_dot2_f32_bf16 v%d, v%d, v%d, v%d' % (t + 1, SR + i, SR + i, t + 1), 2)
    for sh in (1, 2, 4, 8):
        for r in (t, t + 1):
            o.v('v_add_f32_dpp v%d, v%d, v%d row_shr:%d row_mask:0xf bank_mask:0xf bound_ctrl:0' % (r, r, r, sh))
    for r in (t, t + 1):
        o.v('v_add_f32_dpp v%d, v%d, v%d row_bcast:15 row_mask:0xa bank_mask:0xf' % (r, r, r))
    mean, var, sb, rs, m2, v2_, mb = t, t + 1, t + 2, t + 3, t + 8, t + 9, t + 10
    g0 = t + 4
    def rnd(d, s):
        o.v('v_cvt_pk_bf16_f32 v%d, v%d, v%d' % (d, s, s))
        o.v('v_lshlrev_b32 v%d, 16, v%d' % (d, d))
    o.v('v_mul_f32 v%d, %s, v%d' % (mean, f2u(1.0 / 512), mean))
    o.v('v_mul_f32 v%d, %s, v%d' % (var, f2u(1.0 / 512), var))
    o.v('v_fma_f32 v%d, -v%d, v%d, v%d' % (var, mean, mean, var))
    o.v('v_max_f32 v%d, 0, v%d' % (var, var))
    rnd(mb, mean)
    rnd(sb, var)
    o.v('v_add_f32 v%d, %s, v%d' % (sb, f2u(1e-5), sb))
    rnd(sb, sb)
    o.v('v_sqrt_f32 v%d, v%d' % (sb, sb), 2)
    o.v('v_sub_f32 v%d, v%d, v%d' % (m2, mean, mb))
    rnd(sb, sb)
    o.v('v_rcp_f32 v%d, v%d' % (rs, sb), 2)
    o.v('v_cvt_pk_bf16_f32 v%d, v%d, v%d' % (g0 + 2, mb, sb))
    o.v('v_mul_f32 v%d, v%d, v%d' % (m2, m2, rs))
    o.v('v_mul_f32 v%d, v%d, v%d' % (v2_, var, rs))
    rnd(m2, m2)
    o.v('v_mul_f32 v%d, v%d, v%d' % (v2_, v2_, rs))
    o.v('v_fma_f32 v%d, v%d, v%d, v%d' % (g0, m2, sb, mb))
    rnd(v2_, v2_)
    o.v('v_add_f32 v%d, %s, v%d' % (v2_, f2u(1e-5), v2_))
    rnd(v2_, v2_)
    o.v('v_sqrt_f32 v%d, v%d' % (v2_, v2_), 2)
    o.v('v_mov_b32 v%d, %s' % (g0 + 3, sr(sTAG)))
    rnd(v2_, v2_)
    o.v('v_mul_f32 v%d, v%d, v%d' % (g0 + 1, v2_, sb))
    o.s('s_lshl_b32 %s, %s, 5', sT0, sW)
    o.s('s_add_u32 %s, %s, %s', sT0, sT0, str(CSX))
    o.v('v_lshl_add_u32 v%d, %s, 4, %s' % (t, vr(vHI5), sr(sT0)))
    o.v('v_add_u32 v%d, %d, %s' % (SR, CSX, vr(vL16)))
    o.v('s_mov_b32 exec_lo, 0x80000000')
    o.v('s_mov_b32 exec_hi, 0x80000000')
    o.f(lambda: A.ds('ds_write_b128 v%d, %s offset:%d' % (t, vr(g0, 4), 0), 'gw'))
    o.v('s_mov_b64 exec, -1')
    o.f(lambda: stamp('gs'))
    o.s('s_lshl1_add_u32 %s, %s, %s', sD0, sRB, sTH)
    o.s('s_lshl_b32 %s, %s, 10', sD0, sD0)
    o.s('s_add_u32 %s, %s, %s', sD0, sD0, hex(WS_G))
    o.v('v_lshlrev_b32 %s, 4, %s' % (vr(vSA), vr(vLO4)))
    return o
DQ.add(stage_dma(1))
DQ.popD(OPT['D1A'])
for (c, f) in stat_compute_ops():
    f()
DQ.flush()
A.wait_lg0()
stamp('d1')
def b1_loads():
    o = Ops()
    o.s('s_add_u32 %s, %s, %s', sSX, sJT, sPH)
    o.s('s_lshl_b32 %s, %s, 5', sSX, sSX)
    for v in range(3):
        o.f(lambda v=v: A.vmem('buffer_load_dwordx2 %s, %s, %s, %s offen offset:%d' % (vr(B1 + 2 * v, 2), vr(U0), sr(dO, 4), sr(sSX), 64 * v), 'b1'), 2)
    o.f(lambda: A.vmem('global_load_dwordx2 a[248:249], %s, %s' % (vr(U1), sr(sPC, 2)), 'b1'), 2)
    o.f(lambda: A.vmem('global_load_dwordx2 a[250:251], %s, %s' % (vr(U1), sr(pB2, 2)), 'b1'), 2)
    o.s('s_mov_b32 %s, 0x80000', dO + 2)
    o.f(lambda: FQ.open.add('b1'), 0)
    return o

def b1_ops():
    o = Ops()
    o.f(lambda: A.wait_vm('b1'), 0)
    for v in range(3):
        for hh in range(2):
            o.v('v_lshlrev_b32 %s, 16, %s' % (vr(BU + 4 * v + 2 * hh), vr(B1 + 2 * v + hh)))
            o.v('v_and_b32 %s, 0xffff0000, %s' % (vr(BU + 4 * v + 2 * hh + 1), vr(B1 + 2 * v + hh)))
    return o
def stat_loads():
    return [(2, lambda T=T: A.vmem('buffer_load_dwordx4 %s, %s, %s, %s offen offset:%d sc1' % (vr(ST + 4 * T, 4), vr(vSA), sr(dWS, 4), sr(sD0), 256 * T), 'stat')) for T in range(4)]
def stat_issue():
    for (c, f) in stat_loads():
        f()
def stat_check(e=e):
    t = TMP
    for T in range(4):
        e('v_xor_b32 v%d, %s, %s' % (t + T, sr(sTAG), vr(ST + 4 * T + 3)))
    e('v_or3_b32 v%d, v%d, v%d, v%d' % (t, t, t + 1, t + 2))
    e('v_or_b32 v%d, v%d, v%d' % (t, t, t + 3))
    e('v_cmp_ne_u32 vcc, 0, v%d' % t)
C0 = -2.0 * math.sqrt(2.0 / math.pi) * math.log2(math.e)
def stat_derive_ops():
    o = Ops()
    o.f(lambda: A.wait_vm('stat'))
    stat_check(o.v)
    o.f(lambda: retry_loop('st', stat_issue, stat_check, 58, False), 2)
    for T in range(4):
        b = ST + 4 * T
        o.v('v_rcp_f32 v%d, v%d' % (TMP + T, b + 1), 2)
        o.v('v_lshlrev_b32 v%d, 16, v%d' % (SS + 2 * T, b + 2))
        o.v('v_and_b32 v%d, 0xffff0000, v%d' % (SS + 2 * T + 1, b + 2))
    for T in range(4):
        b = ST + 4 * T
        o.v('v_rcp_f32 v%d, v%d' % (SS + 2 * T + 1, SS + 2 * T + 1), 2)
        o.v('v_mul_f32 v%d, %s, v%d' % (b + 2, f2u(C0), TMP + T))
        o.v('v_mul_f32 v%d, v%d, v%d' % (b + 3, TMP + T, TMP + T))
    for T in range(4):
        b = ST + 4 * T
        o.v('v_mul_f32 v%d, v%d, v%d' % (b + 3, b + 3, b + 2))
        o.v('v_mul_f32 v%d, %s, v%d' % (b + 3, f2u(0.044715), b + 3))
    return o

TOFF = [6 * (st & 3) + 2 * (st >> 2) for st in range(11)]
def w_prefetch():
    o = Ops()
    def f():
        e('s_mov_b64 exec, 0x7ff')
        A.vmem('buffer_load_dword %s, %s, %s, %s offen' % (vr(vSCR), vr(vPW), sr(dW2, 4), sr(sWS)), 'touch')
        e('s_mov_b64 exec, -1')
    o.f(f, 4)
    for p in (pCRE, pCIM):
        o.s('s_mov_b64 %s, %s', sr(dO, 2), sr(p, 2))
        def f():
            e('s_mov_b64 exec, %s' % sr(sPM, 2))
            A.vmem('buffer_load_dword %s, %s, %s, %s offen' % (vr(vSCR), vr(vCT), sr(dO, 4), sr(sCO)), 'touch')
            e('s_mov_b64 exec, -1')
        o.f(f, 4)
    return o
def w_touch(p):
    o = Ops()
    if p >= 2:
        o.s('s_mov_b64 %s, %s', sr(dO, 2), sr(pCIM if p == 3 else pCRE, 2))
    o.f(lambda: (S('s_cmp_eq_u32 %s, %s', sRBL, str(p)), S('s_cselect_b32 %s, 0, 0x40000000', sSW)), 2)
    if p < 2:
        o.s('s_add_u32 %s, %s, %s', sSW, sSW, sWS)
        o.s('s_add_u32 %s, %s, %s', sSX, sSW, str(p * 32768))
        o.f(lambda: A.vmem('buffer_load_dword %s, %s, %s, %s offen' % (vr(vSCR), vr(vWT), sr(dW2, 4), sr(sSX)), 'touch'), 'D')
    else:
        o.s('s_add_u32 %s, %s, %s', sSX, sSW, sCO)
        o.f(lambda: A.vmem('buffer_load_dword %s, %s, %s, %s offen' % (vr(vSCR), vr(vCT), sr(dO, 4), sr(sSX)), 'touch'), 'D')
        if p == 2:
            o.s('s_add_u32 %s, %s, %s', sSW, sSW, sWS)
    if p < 3:
        o.s('s_add_u32 %s, %s, %s', sSX, sSW, str(TOFF[8 + p] * 16384))
        def f():
            e('s_mov_b64 exec, 0xffff')
            A.vmem('buffer_load_dword %s, %s, %s, %s offen' % (vr(vSCR), vr(vWT), sr(dW2, 4), sr(sSX)), 'touch')
            e('s_mov_b64 exec, -1')
        o.f(f, 4)
    return o
def w2_step(st):
    o = Ops()
    odd = 0
    if st == 0:
        o.s('s_lshl_b32 %s, %s, 11', sSX, sW)
        o.s('s_add_u32 m0, %s, %s', sSX, str(PE))
    elif st <= 8:
        odd = (st - 1) & 1
        if not odd:
            o.s('s_add_u32 m0, %s, %s', sM8, str(((st - 1) // 4) * SLOT + ((st - 1) % 4) * 2048))
    else:
        o.s('s_add_u32 m0, %s, %s', sME, str((st - 9) * 2 * SLOT))
    o.s('s_add_u32 %s, %s, %s', sSW, sWS, str(TOFF[st] * 16384 - odd * 2048))
    for i in range(2):
        o.f(lambda i=i: A.vmem('buffer_load_dwordx4 %s, %s, %s offen offset:%d lds' % (vr(vW2 + i), sr(dW2, 4), sr(sSW), odd * 2048 + i * 1024), 'W'), 'D')
    return o
def c_job(part):
    o = Ops()
    o.s('s_mov_b64 %s, %s', sr(dB, 2), sr(pCIM if part else pCRE, 2))
    if part == 0:
        o.v('v_subrev_u32 %s, %s, %s' % (vr(vB), sr(sCG), vr(vB)))
        o.v('v_subrev_u32 %s, %s, %s' % (vr(vB + 1), sr(sCG), vr(vB + 1)))
    for k in range(4):
        odd = k & 1
        if not odd:
            o.s('s_add_u32 m0, %s, %s', sM8, str((2 + part) * SLOT + k * 2048))
        o.s('s_add_u32 %s, %s, %s', sSX, sCO, str(k * 16384 - odd * 2048))
        for i in range(2):
            o.f(lambda i=i, odd=odd: A.vmem('buffer_load_dwordx4 %s, %s, %s offen offset:%d lds' % (vr(vB + i), sr(dB, 4), sr(sSX), odd * 2048 + i * 1024), 'W'), 'D')
    return o
def resx_loads():
    o = Ops()
    for q in range(4):
        o.s('s_mov_b32 %s, %s', sSX, str(q * 16384))
        o.f(lambda q=q: A.vmem('buffer_load_dwordx2 %s, %s, %s, %s offen' % (ar(240 + 2 * q, 2), vr(vXO), sr(dX, 4), sr(sSX)), 'res'), 'D' if q & 1 else 2)
    return o
def resg_loads():
    return [(2, lambda q=q: A.vmem('buffer_load_dword %s, %s, %s, %s offen offset:%d sc1' % (ar(252 + q), vr(vGO), sr(dWS, 4), sr(sGR), q * 64), 'res')) for q in range(4)]

for v in range(1, 8):
    if v > 1:
        DQ.add(stage_dma(v), None if v < 4 else 'mid%d' % (v - 4))
    if v == max(1, OPT['WPF']):
        DQ.add(b1_loads())
    if v == OPT['WPF']:
        DQ.add(w_prefetch())
    if v == OPT['STL']:
        DQ.add(stat_loads())
        DQ.add([(0, lambda: FQ.open.add('stl'))])
    if 0 <= v - OPT['WT0'] < 4:
        DQ.add(w_touch(v - OPT['WT0']))
assert OPT['WPF'] < OPT['WT0']
o = Ops()
o.s('s_mov_b64 %s, %s', sr(dO, 2), sr(pOUT, 2))
o.s('s_mov_b32 %s, 0x400000', dO + 2)
DQ.add(o)
DQ.add(w2_step(0))
for st in range(1, 10):
    DQ.add(w2_step(st), 'mid4' if st < 5 else 'mid5')
DQ.add(c_job(0), 'mid6')
DQ.add(resx_loads())
DQ.add(w2_step(10), 'mid7')
DQ.add(c_job(1), 'mid7')
FQ.add([(0, lambda: None)], 'b1')
FQ.add(b1_ops(), 'mid%d' % min(6, max(3, OPT['WPF'] + 1)))
FQ.add([(0, lambda: None)], 'stl')
FQ.add(stat_derive_ops(), 'mid%d' % OPT['SDG'])

RQ = Q()
def rd_x(step, T):
    v, ks = step // 2, step % 2
    slot = v & 3
    return [(1, lambda: A.ds('ds_read_b128 %s, %s offset:%d' % (vr(XF + 16 * ks + 4 * T, 4), vr(XA + 2 * ks + (slot >> 1)), (slot & 1) * SLOT + (T & 1) * PIECE + (T >> 1) * 2048), 'x%d' % step))]
def rd_a(step, a):
    v, ks = step // 2, step % 2
    slot = v & 3
    if a < 2:
        return [(1, lambda: A.ds('ds_read_b128 %s, %s offset:%d' % (vr(AF + 4 * a, 4), vr(BA + 2 * ks + (slot >> 1)), (slot & 1) * SLOT + a * PIECE), 'a%d_%d' % (step, a)))]
    return [(1, lambda half=half: A.ds('ds_read_b64_tr_b16 %s, %s offset:%d' % (vr(AF + 4 * a + 2 * half, 2), vr(WA + 2 * ks + (slot >> 1)), (slot & 1) * SLOT + half * 768 + 64 * (a - 2)), 'a%d_%d' % (step, a))) for half in range(2)]

A.wait_vm('st0')
stamp('st0')
e('s_barrier')
RQ.add(rd_a(0, 0))
for T in range(4):
    RQ.add(rd_x(0, T))
for a in range(1, 5):
    RQ.add(rd_a(0, a))
RQ.flush()
A.ds('ds_read_b128 %s, %s' % (vr(SR + 4, 4), vr(SR)), 'gr')
def g_store():
    A.wait_lg('gr')
    lab = newlab('gs')
    S('s_cmp_lg_u32 %s, 0', sW)
    e('s_cbranch_scc1 %s' % lab)
    e('s_mov_b64 exec, 0xff')
    A.vmem('buffer_store_dwordx4 %s, %s, %s, %s offen sc1' % (vr(SR + 4, 4), vr(vL16), sr(dWS, 4), sr(sF0)), 'gs', opt=True)
    e('s_mov_b64 exec, -1')
    A.label(lab)
clk = [0, 0]
def gap(budget, base):
    used = 0
    while used < budget:
        if RQ.ready():
            used += RQ.cost()
            RQ.pop1()
        elif DQ.ready() and (DQ.cost() != 'D' or (clk[0] >= clk[1] and used + OPT['DCOST'] <= max(budget, OPT['DCOST']))):
            if DQ.cost() == 'D':
                used += OPT['DCOST']
                clk[1] = max(clk[1], clk[0] - 2 * OPT['DINT']) + OPT['DINT']
            elif used + DQ.cost() > max(budget, DQ.cost()):
                break
            else:
                used += DQ.cost()
            DQ.pop1()
        elif FQ.ready() and used + FQ.cost() <= max(budget, FQ.cost()):
            used += FQ.cost()
            FQ.pop1()
        else:
            break
    clk[0] += max(base, 8 + 4 * used)

K0, K1, SA, SE = 116, 124, 136, 144
def tab_rd(dst, row, tag, addr=None):
    for part in range(2):
        A.ds('ds_read_b128 %s, %s offset:%d' % (vr(dst + 4 * part, 4), vr(vTB if addr is None else addr), row * TROW + part * 128), tag)
for step in range(16):
    v, ks = step // 2, step % 2
    gate = 'mid%d' % v if ks == 1 else None
    for a in range(5):
        if ks == 1 and a == 2:
            for u in range(5):
                assert DSN.get('a%d_%d' % (step, u), 0) == (1 if u < 2 else 2), (step, u)
            if v == 7:
                assert DSN.get('csw', 0) == 5
            A.wait_lg0()
            stamp('a%d' % v)
            if v < 7:
                A.wait_vm('st%d' % (v + 1))
                if v in (1, 3, 5):
                    stamp('b%d' % v)
            if not OPT['X'] & 2:
                e('s_barrier')
            clk[0] += 40
            for q in (DQ, FQ, RQ):
                q.open.add('mid%d' % v)
            if v == 7:
                for q in range(5):
                    RQ.add([(1, lambda q=q: A.ds('ds_read_b128 %s, %s offset:%d' % (vr((XF + 4 * q) if q < 4 else AF, 4), vr(vCR), 64 * q), 'csr'))])
        if a in (0, 2, 4):
            assert DSN.get('x%d' % step, 0) == 4, (step, a)
            for u in (a, a + 1):
                assert u > 4 or DSN.get('a%d_%d' % (step, u), 0) == (1 if u < 2 else 2), (step, a, u)
            A.wait_lg(['x%d' % step] + ['a%d_%d' % (step, u) for u in (a, a + 1)])
        if step == 0 and a == 4:
            g_store()
        ms = []
        if ks == 0:
            ms.append((CS + 4 * a, ONE))
        for T in range(4):
            ms.append((ACC + 16 * a + 4 * T, XF + 16 * ks + 4 * T))
        for i, (acc, b) in enumerate(ms):
            e('v_mfma_f32_16x16x32_bf16 %s, %s, %s, %s' % (vr(acc, 4), vr(AF + 4 * a, 4), vr(b, 4), '0' if step == 0 else vr(acc, 4)))
            last = i == len(ms) - 1
            if step < 15:
                if last:
                    RQ.add(rd_a(step + 1, a), gate)
                if (a == 0 and last) if ks == 1 else (a == 0 and i == 1):
                    for T in range(4):
                        RQ.add(rd_x(step + 1, T), gate)
            if step == 15 and a == 0 and i == 2:
                for q in range(5):
                    RQ.add([(2, lambda q=q: A.ds('ds_write_b128 %s, %s offset:%d' % (vr(vCW), vr(CS + 4 * q, 4), 64 * q), 'csw'))])
            bud = OPT['BUD0'] if step < OPT['NB0'] else 2
            if last and a in (1, 3, 4) and not (ks == 1 and a == 3):
                bud = 0 if (ks == 1 and a == 1) else 1
            if bud == 0:
                while RQ.ready():
                    RQ.pop1()
            gap(bud, 16)
print('K loop estimate', clk[0], 'left DQ', len(DQ.q), 'FQ', len(FQ.q))
FQ.flush()
RQ.flush()
stamp('kloop')

DQ.add(resg_loads(), 'sx')
tab_rd(K0, R_CF, 'k0')
tab_rd(K1, R_L1, 'k1')
A.wait_lg('csr')
AUTO['nxt'] = AUTO['t'] + max(0, clk[1] - clk[0])
auto(True)
for q in range(5):
    src = (XF + 4 * q) if q < 4 else AF
    for h in (0, 2):
        e('v_pk_add_f32 %s, %s, %s' % (vr(CS + 4 * q + h, 2), vr(CS + 4 * q + h, 2), vr(src + h, 2)))
LOB = 'op_sel:[0,0,0] op_sel_hi:[1,0,1]'
HIB = 'op_sel:[0,1,0] op_sel_hi:[1,1,1]'
RR, II = ACC, ACC + 16
tq = XF
tZ, tO = tq, B1
def gelu_tile(v, tag, mid=None):
    for hh in range(2):
        prs = [(2 * hh + a, h) for a in range(2) for h in range(2)]
        accp = lambda T, h: ACC + 32 + 16 * v + 4 * T + 2 * h
        for (T, h) in prs:
            e('v_pk_fma_f32 %s, %s, %s, %s %s' % (vr(accp(T, h), 2), vr(BU + 4 * v + 2 * h, 2), vr(ST + 4 * T, 2), vr(accp(T, h), 2), HIB))
        for (T, h) in prs:
            e('v_pk_fma_f32 %s, %s, %s, %s %s %s' % (vr(accp(T, h), 2), vr(CS + 8 + 4 * v + 2 * h, 2), vr(ST + 4 * T, 2), vr(accp(T, h), 2), LOB, NEG1))
        for i, (T, h) in enumerate(prs):
            e('v_pk_mul_f32 %s, %s, %s' % (vr(tZ + 2 * i, 2), vr(accp(T, h), 2), vr(accp(T, h), 2)))
        for i, (T, h) in enumerate(prs):
            e('v_pk_fma_f32 %s, %s, %s, %s op_sel:[0,1,0] op_sel_hi:[1,1,0]' % (vr(tZ + 2 * i, 2), vr(tZ + 2 * i, 2), vr(ST + 4 * T + 2, 2), vr(ST + 4 * T + 2, 2)))
        for i, (T, h) in enumerate(prs):
            e('v_pk_mul_f32 %s, %s, %s' % (vr(tZ + 2 * i, 2), vr(tZ + 2 * i, 2), vr(accp(T, h), 2)))
        for i in range(8):
            e('v_exp_f32 %s, %s' % (vr(tZ + i), vr(tZ + i)))
        for i, (T, h) in enumerate(prs):
            e('v_pk_fma_f32 %s, %s, %s, %s op_sel:[0,1,1] op_sel_hi:[1,1,1]' % (vr(tZ + 2 * i, 2), vr(tZ + 2 * i, 2), vr(ST + 4 * T, 2), vr(ST + 4 * T, 2)))
        for i in range(8):
            e('v_rcp_f32 %s, %s' % (vr(tZ + i), vr(tZ + i)))
        for i, (T, h) in enumerate(prs):
            e('v_pk_mul_f32 %s, %s, %s' % (vr(tZ + 2 * i, 2), vr(tZ + 2 * i, 2), vr(accp(T, h), 2)))
        o = tO + 4 * hh
        for i in (0, 2, 1, 3):
            e('v_cvt_pk_bf16_f32 %s, %s, %s' % (vr(o + i), vr(tZ + 2 * i), vr(tZ + 2 * i + 1)))
        if mid:
            mid(hh)
        auto(False)
        e('v_permlane16_swap_b32 %s, %s' % (vr(o), vr(o + 2)))
        so = sHM
        if v:
            so = sU0
            if hh == 0:
                S('s_add_u32 %s, %s, %s', sU0, sHM, str(4096 * v))
        if v == 2:
            S('s_cmp_eq_u32 %s, 0', sF1)
        e('v_permlane16_swap_b32 %s, %s' % (vr(o + 1), vr(o + 3)))
        if v == 2:
            lab = newlab('skip')
            e('s_cbranch_scc1 %s' % lab)
        A.vmem('buffer_store_dwordx4 %s, %s, %s, %s offen offset:%d sc1' % (vr(o, 4), vr(vL16), sr(dWS, 4), sr(so), 1024 * hh), tag, opt=(v == 2))
        if v == 2:
            A.label(lab)
        auto(True)
for T in range(4):
    for part in range(2):
        for h in (0, 2):
            r = ACC + 16 * part + 4 * T + h
            e('v_pk_fma_f32 %s, %s, %s, %s %s %s' % (vr(r, 2), vr(CS + 4 * part + h, 2), vr(SS + 2 * T, 2), vr(r, 2), LOB, NEG1))
    if T == 0:
        A.wait_lg('k0')
    for q in (0, 2, 4, 6):
        e('v_pk_mul_f32 %s, %s, %s op_sel:[0,1] op_sel_hi:[1,1]' % (vr(tq + q, 2), vr(K0 + q, 2), vr(SS + 2 * T, 2)))
    if T == 3:
        tab_rd(K0, 1, 'k0')
    for h in (0, 2):
        e('v_pk_mul_f32 %s, %s, %s' % (vr(tq + 8 + h, 2), vr(RR + 4 * T + h, 2), vr(tq + 4 + h, 2)))
    for h in (0, 2):
        e('v_pk_mul_f32 %s, %s, %s' % (vr(RR + 4 * T + h, 2), vr(RR + 4 * T + h, 2), vr(tq + h, 2)))
    for h in (0, 2):
        e('v_pk_fma_f32 %s, %s, %s, %s %s' % (vr(RR + 4 * T + h, 2), vr(II + 4 * T + h, 2), vr(tq + 4 + h, 2), vr(RR + 4 * T + h, 2), NEG1))
    for h in (0, 2):
        e('v_pk_fma_f32 %s, %s, %s, %s' % (vr(II + 4 * T + h, 2), vr(II + 4 * T + h, 2), vr(tq + h, 2), vr(tq + 8 + h, 2)))
tab_rd(tq, 2, 'k2')
tab_rd(tq + 8, 4, 'k3')
A.wait_lg('k1')
for T in range(1, 4):
    pk_cfma4(RR + 4 * T, II + 4 * T, RR + 4 * T - 4, II + 4 * T - 4, K1, RR + 4 * T, II + 4 * T)
tab_rd(K1, 8, 'k1')
cur = (RR + 12, II + 12)
L64, L512, P128, S0 = K0, K0 + 2, K0 + 4, K0 + 6
for lv in range(4):
    k = [K0, tq, tq + 8, K1][lv]
    for part in range(2):
        for i in range(4):
            e('v_mov_b32_dpp %s, %s row_shr:%d row_mask:0xf bank_mask:0xf bound_ctrl:0' % (vr(SE + 4 * part + i), vr(cur[part] + i), 1 << lv))
    if lv in (0, 3):
        A.wait_lg(['k3', 'k3', 'k3', 'k1'][lv])
    pk_cfma4(SA, SA + 4, SE, SE + 4, k, cur[0], cur[1])
    cur = (SA, SA + 4)
    if lv == 0:
        for (dst, row, ad) in ((L64, R_L64, vTC), (L512, R_L512, vTC), (P128, 0, vTG)):
            for part in range(2):
                A.ds('ds_read_b32 %s, %s offset:%d' % (vr(dst + part), vr(ad), row * TROW + part * 128), 'kc')
auto(False)
e('s_mov_b32 exec_lo, 0x80008000')
e('s_mov_b32 exec_hi, 0x80008000')
A.ds('ds_write_b128 %s, %s' % (vr(vCR), vr(SA, 4)), 'sx')
A.ds('ds_write_b128 %s, %s offset:64' % (vr(vCR), vr(SA + 4, 4)), 'sx')
e('s_mov_b64 exec, -1')
GR = tq + 12
for part in range(2):
    for i in range(4):
        e('v_mov_b32_dpp %s, %s row_shr:1 row_mask:0xf bank_mask:0xf bound_ctrl:0' % (vr(SE + 4 * part + i), vr(SA + 4 * part + i)))
e('v_mov_b32 %s, %s' % (vr(GR + 2), sr(sTAG)))
e('v_mov_b32 %s, %s' % (vr(GR + 3), sr(sTAG)))
A.wait_lg0()
e('s_barrier')
A.ds('ds_read2_b32 %s, %s offset0:160 offset1:176' % (vr(S0, 2), vr(vSXR)), 's0')
A.ds('ds_read2_b32 %s, %s offset0:0 offset1:16' % (vr(GR, 2), vr(vSXR)), 's0')
DQ.open.add('sx')
print('DQ left at Spub', len(DQ.q))
lab = newlab('np')
S('s_cmp_eq_u32 %s, 0', sTH)
e('s_cbranch_scc1 %s' % lab)
e('s_waitcnt lgkmcnt(0)')
cfma(GR, GR + 1, S0, S0 + 1, L64, L64 + 1, GR, GR + 1)
e('s_mov_b64 exec, 0xffff')
A.vmem('buffer_store_dwordx4 %s, %s, %s, %s offen sc1' % (vr(GR, 4), vr(vL16), sr(dWS, 4), sr(sSGO)), 'S', opt=True)
e('s_mov_b64 exec, -1')
A.label(lab)
stamp('Spub')
auto(True)

vQ = 152
vPD = vWT
def lb_issue():
    for i in range(4):
        A.vmem('buffer_load_dwordx4 %s, %s, %s, %s offen sc1' % (vr(vQ + 4 * i, 4), vr(vPA + i), sr(dWS, 4), sr(sSG)), 'lb')
def lb_check():
    for i in range(4):
        e('v_xor_b32 %s, %s, %s' % (vr(vQ + 4 * i + 3), sr(sTAG), vr(vQ + 4 * i + 2)))
    for i in range(4):
        e('v_cndmask_b32 %s, 0, %s, %s' % (vr(vQ + 4 * i + 3), vr(vQ + 4 * i + 3), sr(sMSK[i], 2)))
    e('v_or3_b32 %s, %s, %s, %s' % (vr(vQ + 3), vr(vQ + 3), vr(vQ + 7), vr(vQ + 11)))
    e('v_or_b32 %s, %s, %s' % (vr(vQ + 3), vr(vQ + 3), vr(vQ + 15)))
    e('v_cmp_ne_u32 vcc, 0, %s' % vr(vQ + 3))
def poll(tag, so):
    return lambda: A.vmem('buffer_load_dword %s, %s, %s, %s offen sc1' % (vr(vPD), vr(vPF), sr(dWS, 4), sr(so)), tag)
def p_check():
    e('v_cmp_ne_u32 vcc, %s, %s' % (sr(sTAG), vr(vPD)))
pa_issue, pb_issue = poll('pa', sPA), poll('pb', sPB)
def lbp(k):
    if k == 0:
        print('DQ left at the first HM store', len(DQ.q))
        DQ.flush()
    if OPT['LBPOS'] == k:
        lb_issue()
for i, v in enumerate((2, 0, 1)):
    gelu_tile(v, 'HM', lambda hh: lbp(2 * i + hh))
stamp('gelu')
auto(False)
lbp(6)
KP = [tq, tq + 8, CS, CS + 8]
tab_rd(K1, 0, 'kp', vTI)
for T, row in enumerate((R_L1, R_L2, R_L3, 1)):
    tab_rd(KP[T], row, 'kp')
NR, RING = 22, 152
nb1 = OPT['NB1']
seq = [(0, s) for s in range(11)] + [(1, s) for s in range(nb1)] + [(0, s) for s in range(11, 19)] + [(1, s) for s in range(nb1, 19)]
FS = 2 * seq.index((0, 11))
N0 = seq.index((0, 18)) + 1
hf = [0]
def hload():
    f = hf[0]
    t, s = seq[f // 2]
    base = sH2 if t else sH1
    n = 3
    if f == FS - OPT['PBD']:
        pb_issue()
        n += 2
    if f == FS:
        A.wait_vm('pb')
        retry_loop('pb', pb_issue, p_check, 61)
        stamp('pbok')
        n += 3
    off = (f & 1) * 1024
    so = sHC
    if s == 0:
        so = base
    elif s < 11:
        if f % 2 == 0:
            S('s_add_u32 %s, %s, %s', sHC, base, str(TOFF[s] * 2048))
            n += 1
    else:
        off += ((s - 11) & 1) * 2048
        if f % 2 == 0 and s == 11:
            S('s_add_u32 %s, %s, %s', sHC, base, sSSM)
            n += 1
        elif f % 2 == 0 and (s - 11) % 2 == 0:
            S('s_add_u32 %s, %s, 4096', sHC, sHC)
            n += 1
    A.vmem('buffer_load_dwordx4 %s, %s, %s, %s offen offset:%d sc1' % (ar(RING + 4 * (f % NR), 4), vr(vL16), sr(dWS, 4), sr(so), off), 'h%d' % f)
    hf[0] += 1
    return n

A.wait_vm('lb')
stamp('lb1')
retry_loop('lb', lb_issue, lb_check, 59)
stamp('Sgot')
for i in range(4):
    e('v_cndmask_b32 %s, 0, %s, %s' % (vr(vQ + 4 * i), vr(vQ + 4 * i), sr(sMSK[i], 2)))
    e('v_cndmask_b32 %s, 0, %s, %s' % (vr(vQ + 4 * i + 1), vr(vQ + 4 * i + 1), sr(sMSK[i], 2)))
for i in (2, 1, 0):
    cfma(vQ + 4 * i, vQ + 4 * i + 1, vQ + 4 * i + 4, vQ + 4 * i + 5, L512, L512 + 1, vQ + 4 * i, vQ + 4 * i + 1)
hr, hi_, h2, h3 = vQ + 4, vQ + 5, vQ + 6, vQ + 7
cmul(hr, hi_, vQ, vQ + 1, P128, P128 + 1)
for sw in ('v_permlane16_swap_b32', 'v_permlane32_swap_b32'):
    e('v_mov_b32 %s, %s' % (vr(h2), vr(hr)))
    e('v_mov_b32 %s, %s' % (vr(h3), vr(hi_)))
    e('%s %s, %s' % (sw, vr(hr), vr(h2)))
    e('%s %s, %s' % (sw, vr(hi_), vr(h3)))
    e('v_add_f32 %s, %s, %s' % (vr(hr), vr(hr), vr(h2)))
    e('v_add_f32 %s, %s, %s' % (vr(hi_), vr(hi_), vr(h3)))
auto(False)
A.wait_lg('s0')
lab = newlab('t0')
S('s_cmp_eq_u32 %s, 0', sTH)
e('s_cbranch_scc1 %s' % lab)
cfma(S0, S0 + 1, hr, hi_, L64, L64 + 1, S0, S0 + 1)
e('v_mov_b32 %s, %s' % (vr(hr), vr(S0)))
e('v_mov_b32 %s, %s' % (vr(hi_), vr(S0 + 1)))
A.label(lab)
A.ds('ds_write2_b32 %s, %s, %s offset0:32 offset1:48' % (vr(vSXW), vr(hr), vr(hi_)), 'cy')
A.ds('ds_read_b128 %s, %s offset:128' % (vr(SA, 4), vr(vCR)), 'cy')
A.ds('ds_read_b128 %s, %s offset:192' % (vr(SA + 4, 4), vr(vCR)), 'cy')
A.wait_lg0()
pk_cfma4(SE, SE + 4, SA, SA + 4, K1, SE, SE + 4)
for hh in range(2):
    for T in (2 * hh, 2 * hh + 1):
        pk_cfma4(RR + 4 * T, II + 4 * T, SE, SE + 4, KP[T], RR + 4 * T, II + 4 * T)
    for part in range(2):
        o = vQ + 8 * hh + 4 * part
        b = ACC + 16 * part + 8 * hh
        ng = '-' if part else ''
        for i in range(4):
            e('v_cvt_pk_bf16_f32 %s, %s%s, %s%s' % (vr(o + i), ng, vr(b + 2 * i), ng, vr(b + 2 * i + 1)))
    for part in range(2):
        o = vQ + 8 * hh + 4 * part
        e('v_permlane16_swap_b32 %s, %s' % (vr(o), vr(o + 2)))
        e('v_permlane16_swap_b32 %s, %s' % (vr(o + 1), vr(o + 3)))
        A.vmem('buffer_store_dwordx4 %s, %s, %s, %s offen offset:%d sc1' % (vr(o, 4), vr(vL16), sr(dWS, 4), sr(sHS), 2048 * part + 1024 * hh), 'HS')
stamp('epi')

RD, RES, PXR, pT, TB = 128, 192, 208, 224, 240
vOO, vRW, vRR, vRR2 = vGO, vCW, vCR, vSXR
TILE = 64 * 272
AD, vCA = 32, 40
S('s_lshl_b32 %s, %s, 11', sT0, sW)
S('s_add_u32 %s, %s, %s', sT0, sT0, str(PE))
S('s_add_u32 %s, %s, %s', sT1, sME, str(2 * SLOT))
for i, sb in enumerate((sT0, sM8, sME, sT1)):
    e('v_add_u32 %s, %s, %s' % (vr(AD + 2 * i), sr(sb), vr(vTRL)))
    e('v_xor_b32 %s, 64, %s' % (vr(AD + 2 * i + 1), vr(AD + 2 * i)))
e('v_bfe_u32 %s, %s, 1, 3' % (vr(vCA), vr(vLANE)))
e('v_xor_b32 %s, %s, %s' % (vr(vCA), vr(vCA), vr(vHI5)))
e('v_lshlrev_b32 %s, 4, %s' % (vr(vCA), vr(vCA)))
e('v_lshl_add_u32 %s, %s, 7, %s' % (vr(vCA), vr(vLO5), vr(vCA)))
S('s_add_u32 %s, %s, %s', sT0, sM8, str(2 * SLOT))
e('v_add_u32 %s, %s, %s' % (vr(vCA), sr(sT0), vr(vCA)))
for sub in range(1, 4):
    e('v_xor_b32 %s, %d, %s' % (vr(vCA + sub), 32 * sub, vr(vCA)))
A.wait_vm('W')
for st in range(11):
    for dh in range(2):
        for half in range(2):
            if st == 0:
                ad, off = AD, 0
            elif st <= 8:
                ad, off = AD + 2, ((st - 1) // 4) * SLOT + ((st - 1) % 4) * 2048
            else:
                ad, off = AD + 4 + 2 * (st - 9), 0
            A.ds('ds_read_b64_tr_b16 %s, %s offset:%d' % (ar(8 * st + 4 * dh + 2 * half, 2), vr(ad + dh), off + half * 512), 'xw')
A.wait_vm('HM')
stamp('HMdone')
flag(WS_FA, 'fa')
stamp('fa')
for part in range(2):
    for sub in range(4):
        for dh in range(2):
            A.ds('ds_read_b128 %s, %s offset:%d' % (ar(8 * (11 + 2 * sub + part) + 4 * dh, 4), vr(vCA + sub), part * SLOT + dh * 4096), 'xw')
eX, eS, eD = 128, 136, 140
fD, fB, fU, fM = 144, 148, 152, 156
def res_pre():
    A.wait_vm('res')
    for i in range(16):
        e('v_accvgpr_read_b32 %s, a%d' % (vr(eX + [0, 1, 2, 3, 4, 5, 6, 7, 12, 13, 14, 15, 8, 9, 10, 11][i]), 240 + i))
    for (dst, src) in ((fD, eD), (fB, eD + 2)):
        for hh in range(2):
            e('v_lshlrev_b32 %s, 16, %s' % (vr(dst + 2 * hh), vr(src + hh)))
            e('v_and_b32 %s, 0xffff0000, %s' % (vr(dst + 2 * hh + 1), vr(src + hh)))
def res_q(q):
    r = RES + 4 * q
    e('v_and_b32 %s, 0xffff0000, %s' % (vr(fM + 1), vr(eS + q)))
    e('v_lshlrev_b32 %s, 16, %s' % (vr(fM), vr(eS + q)))
    e('v_rcp_f32 %s, %s' % (vr(fM + 1), vr(fM + 1)))
    for hh in range(2):
        e('v_lshlrev_b32 %s, 16, %s' % (vr(r + 2 * hh), vr(eX + 2 * q + hh)))
        e('v_and_b32 %s, 0xffff0000, %s' % (vr(r + 2 * hh + 1), vr(eX + 2 * q + hh)))
    def rnd4():
        e('v_cvt_pk_bf16_f32 %s, %s, %s' % (vr(fU + 1), vr(fU), vr(fU + 1)))
        e('v_cvt_pk_bf16_f32 %s, %s, %s' % (vr(fU + 3), vr(fU + 2), vr(fU + 3)))
        e('v_lshlrev_b32 %s, 16, %s' % (vr(fU), vr(fU + 1)))
        e('v_lshlrev_b32 %s, 16, %s' % (vr(fU + 2), vr(fU + 3)))
        e('v_and_b32 %s, 0xffff0000, %s' % (vr(fU + 1), vr(fU + 1)))
        e('v_and_b32 %s, 0xffff0000, %s' % (vr(fU + 3), vr(fU + 3)))
    for hh in range(2):
        e('v_pk_add_f32 %s, %s, %s op_sel:[0,0] op_sel_hi:[1,0] neg_lo:[0,1] neg_hi:[0,1]' % (vr(fU + 2 * hh, 2), vr(r + 2 * hh, 2), vr(fM, 2)))
    rnd4()
    for hh in range(2):
        e('v_pk_mul_f32 %s, %s, %s op_sel:[0,1] op_sel_hi:[1,1]' % (vr(fU + 2 * hh, 2), vr(fU + 2 * hh, 2), vr(fM, 2)))
    rnd4()
    for hh in range(2):
        e('v_pk_mul_f32 %s, %s, %s' % (vr(fU + 2 * hh, 2), vr(fU + 2 * hh, 2), vr(fD + 2 * hh, 2)))
    rnd4()
    for hh in range(2):
        e('v_pk_add_f32 %s, %s, %s' % (vr(r + 2 * hh, 2), vr(r + 2 * hh, 2), vr(fU + 2 * hh, 2)))
    for hh in range(2):
        e('v_pk_add_f32 %s, %s, %s' % (vr(r + 2 * hh, 2), vr(r + 2 * hh, 2), vr(fB + 2 * hh, 2)))

F2 = Q()
e('v_mul_u32_u24 %s, 272, %s' % (vr(vRW), vr(vLO5)))
e('v_lshl_add_u32 %s, %s, 4, %s' % (vr(vRW), vr(vHI5), vr(vRW)))
S('s_mul_i32 %s, %s, %s', sT0, sW, str(SLOT))
e('v_add_u32 %s, %s, %s' % (vr(vRW), sr(sT0), vr(vRW)))
S('s_mul_i32 %s, %s, %s', sT0, sW, str(16 * 272))
e('v_mul_u32_u24 %s, 272, %s' % (vr(vRR), vr(vG)))
e('v_lshl_add_u32 %s, %s, 4, %s' % (vr(vRR), vr(vLO4), vr(vRR)))
e('v_add_u32 %s, %s, %s' % (vr(vRR), sr(sT0), vr(vRR)))
e('v_add_u32 %s, %d, %s' % (vr(vRR2), 2 * SLOT, vr(vRR)))
S('s_movk_i32 %s, 0xff', sBM)
S('s_mov_b32 %s, 0x0c0c0400', sP1)
e('v_mov_b32 %s, %s' % (vr(TB), vr(vTAG)))
for i in range(1, 4):
    e('v_lshrrev_b32 %s, %d, %s' % (vr(TB + i), 8 * i, vr(vTAG)))
res_pre()
A.wait_lg0()
stamp('xw')
e('s_barrier')
stamp('bx')
for q in range(5):
    if q == OPT['RQ']:
        pa_issue()
    if q < 4:
        res_q(q)
e('v_lshlrev_b32 %s, 1, %s' % (vr(vOO), vr(vXO)))
stamp('res')
A.wait_vm('HS')
stamp('HSdone')
flag(WS_FB, 'fb')
stamp('fb')
A.wait_vm('pa')
stamp('pa1')
retry_loop('pa', pa_issue, p_check, 60)
stamp('paok')
for i in range(OPT['NPRE']):
    hload()
e('v_lshrrev_b32 %s, 1, %s' % (vr(vPF), vr(vPF)))
assert OPT['NPRE'] <= FS - OPT['PBD']
def red_write(t, hh, dh, qq):
    A.ds('ds_write_b128 %s, %s offset:%d' % (vr(vRW), vr(64 * t + 32 * hh + 16 * dh + 4 * qq, 4), t * TILE + hh * 32 * 272 + dh * 128 + qq * 32), 'rw')
def red_read(t, q, part):
    A.ds('ds_read_b128 %s, %s offset:%d' % (vr(RD + 16 * q + 4 * part, 4), vr(vRR2 if part >= 2 else vRR), (part & 1) * SLOT + t * TILE + q * 4 * 272), 'rr%d' % q)
def px_issue():
    for k in range(4):
        A.vmem('buffer_load_dwordx4 %s, %s, %s, %s offen offset:%d sc1' % (vr(PXR + 4 * k, 4), vr(vL16), sr(dWS, 4), sr(sPX), k * 1024), 'px')
def px_check():
    for k in range(4):
        e('v_perm_b32 %s, %s, %s, %s' % (vr(pT + k), vr(PXR + 4 * k + 1), vr(PXR + 4 * k), sr(sP1)))
        e('v_perm_b32 %s, %s, %s, %s' % (vr(pT + 4 + k), vr(PXR + 4 * k + 3), vr(PXR + 4 * k + 2), sr(sP1)))
    for k in range(4):
        e('v_lshl_or_b32 %s, %s, 16, %s' % (vr(pT + k), vr(pT + 4 + k), vr(pT + k)))
    for k in range(4):
        e('v_xor_b32 %s, %s, %s' % (vr(pT + k), sr(sTAG), vr(pT + k)))
    e('v_or3_b32 %s, %s, %s, %s' % (vr(pT), vr(pT), vr(pT + 1), vr(pT + 2)))
    e('v_or_b32 %s, %s, %s' % (vr(pT), vr(pT), vr(pT + 3)))
    e('v_cmp_ne_u32 vcc, 0, %s' % vr(pT))
def al_issue(opt=True):
    e('v_lshlrev_b32 v8, 7, %s' % vr(vLANE))
    for i in range(4):
        S('s_mov_b32 %s, %s', sT0, hex(WS_G + 8192 * i))
        A.vmem('buffer_load_dword v%d, v8, %s, %s offen offset:12 sc1' % (i, sr(dWS, 4), sr(sT0)), 'alp', opt=opt)
def al_check():
    for i in range(4):
        e('v_xor_b32 v%d, %s, v%d' % (4 + i, sr(sTAG), i))
    e('v_or3_b32 v4, v4, v5, v6')
    e('v_or_b32 v4, v4, v7')
    e('v_cmp_ne_u32 vcc, 0, v4')

used = [0]
clk = [0, -4 * OPT['HINT']]
for n, (t, s) in enumerate(seq):
    if n == N0:
        o = Ops()
        for hh in range(2):
            for dh in range(2):
                for qq in range(4):
                    o.f(lambda hh=hh, dh=dh, qq=qq: red_write(0, hh, dh, qq), 4)
        def bar1():
            A.wait_lg0()
            e('s_barrier')
            stamp('bar1')
        o.f(lambda: None, 8)
        o.f(bar1, 4)
        for q in range(4):
            for part in range(4):
                o.f(lambda q=q, part=part: red_read(0, q, part), 2)
        for q in range(4):
            o.f(lambda q=q: A.wait_lg('rr%d' % q))
            b = RD + 16 * q
            for i in range(4):
                o.v('v_add_f32 %s, %s, %s' % (vr(b + i), vr(b + i), vr(b + 4 + i)))
            for i in range(4):
                o.v('v_add_f32 %s, %s, %s' % (vr(b + 8 + i), vr(b + 8 + i), vr(b + 12 + i)))
            for i in range(4):
                o.v('v_add_f32 %s, %s, %s' % (vr(b + i), vr(b + i), vr(b + 8 + i)))
            for i in range(4):
                o.v('v_bfi_b32 %s, %s, %s, %s' % (vr(b + i), sr(sBM), vr(TB + i), vr(b + i)))
            o.f(lambda q=q, b=b: A.vmem('buffer_store_dwordx4 %s, %s, %s, %s offen offset:%d sc1' % (vr(b, 4), vr(vL16), sr(dWS, 4), sr(sPX), q * 1024), 'pxs'), 4)
        o.s('s_xor_b32 %s, %s, 0x4000', sPX, sPX)
        o.f(lambda: (stamp('pxs'), print('px stores done at step', used[0] / 2, 'loads issued', hf[0])), 0)
        F2.add(o)
    if n == OPT['PXPOS']:
        F2.flush()
        px_issue()
        lab = newlab('nal')
        S('s_cmp_lg_u32 %s, 3', sGW)
        e('s_cbranch_scc1 %s' % lab)
        al_issue()
        A.label(lab)
    for hh in range(2):
        A.wait_vm('h%d' % (2 * n + hh))
        if n in (0, 6, 12, 19, 26, 32) and hh == 0:
            stamp('h%d' % n)
        for dh in range(2):
            acc = vr(64 * t + 32 * hh + 16 * dh, 16)
            e('v_mfma_f32_32x32x16_bf16 %s, %s, %s, %s' % (acc, ar(8 * s + 4 * dh, 4), ar(RING + 4 * ((2 * n + hh) % NR), 4), acc if s else '0'))
            if dh == 1:
                used[0] += 1
            u = dh
            if hf[0] < min(76, used[0] + NR) and clk[0] >= clk[1]:
                u += hload()
                clk[1] += OPT['HINT']
            while F2.ready() and (u + F2.cost() <= OPT['RPOP'] or u <= 1):
                u += F2.cost()
                F2.pop1()
            clk[0] += max(32, 8 + 4 * u)
assert hf[0] == 76
stamp('mfma2')
for hh in range(2):
    for dh in range(2):
        for qq in range(4):
            red_write(1, hh, dh, qq)
A.wait_lg0()
e('s_barrier')
stamp('bar2')
for q in range(4):
    for part in range(4):
        red_read(1, q, part)
A.wait_vm('px')
retry_loop('px', px_issue, px_check, 62)
stamp('pxok')
for v in range(0, 16, 2):
    e('v_pk_add_f32 %s, %s, %s' % (vr(RES + v, 2), vr(RES + v, 2), vr(PXR + v, 2)))
for q in range(4):
    A.wait_lg('rr%d' % q)
    b, r = RD + 16 * q, RES + 4 * q
    for h in (0, 2):
        e('v_pk_add_f32 %s, %s, %s' % (vr(b + h, 2), vr(b + h, 2), vr(b + 4 + h, 2)))
        e('v_pk_add_f32 %s, %s, %s' % (vr(b + 8 + h, 2), vr(b + 8 + h, 2), vr(b + 12 + h, 2)))
    for h in (0, 2):
        e('v_pk_add_f32 %s, %s, %s' % (vr(r + h, 2), vr(r + h, 2), vr(b + h, 2)))
    for h in (0, 2):
        e('v_pk_add_f32 %s, %s, %s' % (vr(r + h, 2), vr(r + h, 2), vr(b + 8 + h, 2)))
    S('s_mov_b32 %s, %s', sT0, str(q * 32768))
    A.vmem('buffer_store_dwordx4 %s, %s, %s, %s offen%s' % (vr(r, 4), vr(vOO), sr(dO, 4), sr(sT0), ['', ' sc1', ' nt', ' sc0 sc1'][OPT['OUTSC']]), 'out')
lab = newlab('nep')
S('s_cmp_lg_u32 %s, 3', sGW)
e('s_cbranch_scc1 %s' % lab)
A.wait_vm('alp')
retry_loop('al', al_issue, al_check, 63)
one_lane_store(8, '0', 'ep')
A.label(lab)
if PROF:
    stamp('stored')
    e('s_waitcnt vmcnt(0)')
    stamp('drained')
    stamp('rt1', True)
    A.wait_lg0()
    e('v_lshlrev_b32 v16, 2, %s' % vr(vLANE))
    S('s_lshl_b32 %s, %s, 8', sT0, sGW)
    S('s_add_u32 %s, %s, %s', sT0, sT0, hex(WS_PROF))
    e('buffer_store_dword %s, v16, %s, %s offen' % (vr(vSTAMP), sr(dWS, 4), sr(sT0)))
    json.dump(SNAMES, open(OUT + '.names', 'w'))
A.label('L_end')
e('s_endpgm')

body, nops = hazard_pass(A.lines)
head = open('cdna_kernels/%s.s.ref' % NAME).read().split('; Override launch')[0]
txt = head + '; @launch grid=(256,1,1) block=(256,1,1) lds=%d\n' % LDS_BYTES
txt += '''.amdgcn_target "amdgcn-amd-amdhsa--gfx950"
.text
.globl %s_kernel
.p2align 8
.type %s_kernel,@function
%s_kernel:
''' % (NAME, NAME, NAME)
txt += '\n'.join(body) + '\n'
txt += '''.section .rodata,"a"
.p2align 6
.amdhsa_kernel %s_kernel
  .amdhsa_next_free_vgpr 512
  .amdhsa_next_free_sgpr 102
  .amdhsa_accum_offset 256
  .amdhsa_group_segment_fixed_size 0
  .amdhsa_kernarg_size 136
  .amdhsa_user_sgpr_count 2
  .amdhsa_user_sgpr_kernarg_segment_ptr 1
  .amdhsa_system_sgpr_workgroup_id_x 1
.end_amdhsa_kernel
''' % NAME
open(OUT, 'w').write(txt)
print('wrote', OUT, 'lines', len(body), 'nops', nops)
```

```python
import sys, math, struct, json
from asmlib import *

NAME = 'parallel_sum__ssm_conv_s5__mixer_channel_mlp__prompt'
PROF = '--prof' in sys.argv
OUT = [a for a in sys.argv[1:] if not a.startswith('--') and '=' not in a]
OUT = OUT[0] if OUT else 'cdna_kernels/%s.s' % NAME
OPT = dict(ROT=9, DINT=72, LBPOS=6, OUTSC=0, PXPOS=37, RPOP=8, HINT=60, PTOUCH=0, DCOST=2, D1A=0, BUD0=2, NB0=4, X=0,
           EINT=72, NB1=3, PBD=12, SDG=5, NPRE=10, WPF=5, WT0=9, STL=4, RQ=3,
           PB=1, PINT=20, SPF=0, D1B=7, B1P=2, B1G=3, XS=0, TL0=6, TL1=6, WC=2, FAP=0, XWP=0)
for a in sys.argv[1:]:
    if '=' in a:
        k, v = a.split('=')
        assert k in OPT, k
        OPT[k] = int(v)

def f2u(x):
    return '0x%08x' % struct.unpack('<I', struct.pack('<f', x))[0]

WS_AL = 0x1000
WS_G = 0x8000
WS_SG = 0x10000
WS_PROF = 0x40000
WS_FA = 0x80000
WS_FB = 0xA0000
WS_FC = 0xC0000
WS_PX = 0x100000
WS_H = 0x800000
WS_SIZE = 0x1200000
HR = 152 * 2048

SLOT, PIECE = 36864, 9216
TAB, TROW = 147456, 272
CSX = TAB + 25 * TROW
PE = 155648
assert CSX + 1280 <= PE and CSX % 16 == 0
LDS_BYTES = 160 * 1024

sW, sRB, sJ, sKH, sC, sRBL, sTAG, sGW, sT2, sT3, sPC = 4, 5, 6, 7, 8, 9, 10, 11, 12, 13, 14
pX, pLRE, pLIM, pBRE, pBIM, pCRE, pCIM, pLDT, pDSK, pBX, pW1, pB1, pW2, pB2, pOUT, pDBG, pWS = [16 + 2 * i for i in range(17)]
sPERM, sCNT = 50, 51
dX, dWS, dB, dW1, dW2, dO = 52, 56, 60, 64, 68, 72
sM0, sSX, sSW, sOFF, sM8, sME, sWS, sBM, sU0, sCG, sT0, sT1 = range(76, 88)
sCO = sOFF
sMSK = [88, 90, 92, 94]
sTH, sPH, sJT = 34, 35, 46
sD0, sSG, sSGO, sHM, sHS, sFL, sPA, sPB, sH1, sH2 = range(16, 26)
sSSM, sGR, sPX, sP1, sP2, sHC, sF0, sF1 = 30, 31, 32, 33, 36, 37, 38, 39

vLANE, vL16, vLO4, vG, vLO5, vHI5, vSTAMP, vSCR = 255, 254, 253, 252, 251, 250, 249, 248

A = Asm()
AUTO = dict(on=False, t=0, nxt=0, busy=False, any=False, int=OPT['EINT'])
_e = A.e
def e_time(s):
    mn = s.split()[0]
    AUTO['t'] += 8 if mn in TRANS else 12 if mn.startswith(('buffer_', 'ds_write')) else 4
    _e(s)
A.e = e_time
def e(s):
    A.e(s)
    ok = s.startswith('v_') or (AUTO['any'] and s.startswith('s_') and not s.startswith(('s_cmp', 's_bitcmp', 's_memtime', 's_wait')))
    if AUTO['on'] and not AUTO['busy'] and ok and DQ.ready() and AUTO['t'] >= AUTO['nxt']:
        AUTO['busy'] = True
        AUTO['nxt'] = max(AUTO['nxt'], AUTO['t'] - 2 * AUTO['int']) + AUTO['int']
        DQ.popD()
        AUTO['busy'] = False
def auto(on):
    AUTO['on'] = on
EXPECT = dict([('st%d' % v, 9) for v in range(8)] + [('stat', 4), ('W', 38), ('b1', 5), ('srow', 2), ('lb', 4), ('px', 4), ('res', 8)])
ISSUED = {}
_vm, _wv = A.vmem, A.wait_vm
def vm_hook(s, tag='x', opt=False):
    ISSUED[tag] = ISSUED.get(tag, 0) + 1
    if OPT['X'] & 1 and ' lds' in s and tag not in ('st0', 'st1'):
        return
    _vm(s, tag, opt)
def wv_hook(tags):
    for t in ([tags] if isinstance(tags, str) else tags):
        assert ISSUED.get(t, 0) >= EXPECT.get(t, 1), (t, ISSUED.get(t, 0))
    _wv(tags)
A.vmem, A.wait_vm = vm_hook, wv_hook
DSN = {}
_ds = A.ds
def ds_hook(s, tag='x'):
    DSN[tag] = DSN.get(tag, 0) + 1
    if OPT['X'] & 4 and tag[0] in 'xa' and tag[1].isdigit():
        return
    _ds(s, tag)
A.ds = ds_hook
SNAMES = {}
import os
SKIP = os.environ.get('SKIP', 'b1,b3,fa,fb,d0,tab').split(',')
HST = [int(x) for x in os.environ.get('HST', '0,6,12,19,26,32').split(',')]
pending = []
SPAIRS = [96, 98, 100]
def flush_stamps():
    for (i, p) in pending:
        e('v_writelane_b32 %s, %s, %d' % (vr(vSTAMP), sr(p), i))
    del pending[:]
_wl0 = A.wait_lg0
def wait_lg0_hook():
    _wl0()
    flush_stamps()
A.wait_lg0 = wait_lg0_hook
def stamp(name, real=False):
    if not PROF or name in SKIP:
        return
    assert name not in SNAMES
    SNAMES[name] = len(SNAMES)
    i = SNAMES[name]
    assert i < 57
    if len(pending) == len(SPAIRS):
        A.wait_lg0()
    used = [p for (_, p) in pending]
    p = [q for q in SPAIRS if q not in used][0]
    e('%s %s' % ('s_memrealtime' if real else 's_memtime', sr(p, 2)))
    pending.append((i, p))
def count(slot):
    if PROF:
        e('v_writelane_b32 %s, %s, %d' % (vr(vSTAMP), sr(sCNT), slot))

def srd(d, p, size):
    e('s_mov_b32 %s, %s' % (sr(d), sr(p)))
    e('s_mov_b32 %s, %s' % (sr(d + 1), sr(p + 1)))
    e('s_mov_b32 %s, 0x%x' % (sr(d + 2), size))
    e('s_mov_b32 %s, 0x20000' % sr(d + 3))

def cmul(dr, di, ar_, ai, br, bi):
    e('v_mul_f32 %s, %s, %s' % (vr(dr), vr(ar_), vr(br)))
    e('v_mul_f32 %s, %s, %s' % (vr(di), vr(ar_), vr(bi)))
    e('v_fma_f32 %s, -%s, %s, %s' % (vr(dr), vr(ai), vr(bi), vr(dr)))
    e('v_fma_f32 %s, %s, %s, %s' % (vr(di), vr(ai), vr(br), vr(di)))

def cfma(dr, di, ar_, ai, br, bi, cr, ci):
    e('v_fma_f32 %s, %s, %s, %s' % (vr(dr), vr(ar_), vr(br), vr(cr)))
    e('v_fma_f32 %s, %s, %s, %s' % (vr(di), vr(ar_), vr(bi), vr(ci)))
    e('v_fma_f32 %s, -%s, %s, %s' % (vr(dr), vr(ai), vr(bi), vr(dr)))
    e('v_fma_f32 %s, %s, %s, %s' % (vr(di), vr(ai), vr(br), vr(di)))

NEG1 = 'neg_lo:[0,1,0] neg_hi:[0,1,0]'
def pk_cfma4(dr, di, ar_, ai, k, cr, ci):
    for h in (0, 2):
        e('v_pk_fma_f32 %s, %s, %s, %s' % (vr(dr + h, 2), vr(ar_ + h, 2), vr(k + h, 2), vr(cr + h, 2)))
    for h in (0, 2):
        e('v_pk_fma_f32 %s, %s, %s, %s' % (vr(di + h, 2), vr(ai + h, 2), vr(k + h, 2), vr(ci + h, 2)))
    for h in (0, 2):
        e('v_pk_fma_f32 %s, %s, %s, %s %s' % (vr(dr + h, 2), vr(ai + h, 2), vr(k + 4 + h, 2), vr(dr + h, 2), NEG1))
    for h in (0, 2):
        e('v_pk_fma_f32 %s, %s, %s, %s' % (vr(di + h, 2), vr(ar_ + h, 2), vr(k + 4 + h, 2), vr(di + h, 2)))

labn = [0]
def newlab(s):
    labn[0] += 1
    return 'L_%s_%d' % (s, labn[0])

def S(fmt, *a):
    e(fmt % tuple(sr(x) if isinstance(x, int) else x for x in a))

def retry_loop(name, issue, check, slot, first=True):
    lo, ld = newlab(name + 'l'), newlab(name + 'd')
    if first:
        check()
    if PROF:
        S('s_mov_b32 %s, 0', sCNT)
    e('s_cbranch_vccz %s' % ld)
    S('s_mov_b32 %s, 0', sCNT)
    A.label(lo)
    sv = list(A.vm)
    issue()
    e('s_waitcnt vmcnt(0)')
    A.vm = sv
    check()
    S('s_add_u32 %s, %s, 1', sCNT, sCNT)
    e('s_cbranch_vccz %s' % ld)
    S('s_cmp_le_u32 %s, 0x20000', sCNT)
    e('s_cbranch_scc1 %s' % lo)
    A.label(ld)
    count(slot)

def one_lane_store(vt, soff, tag, opt=False, sc=' sc1'):
    e('v_mov_b32 %s, %s' % (vr(vt), sr(sTAG)))
    e('v_mov_b32 %s, 0' % vr(vt + 1))
    e('s_mov_b64 exec, 1')
    A.vmem('buffer_store_dword %s, %s, %s, %s offen%s' % (vr(vt), vr(vt + 1), sr(dWS, 4), soff, sc), tag, opt=opt)
    e('s_mov_b64 exec, -1')
def flag(off, tag):
    S('s_add_u32 %s, %s, %s', sT0, sFL, hex(off))
    e('s_mov_b32 exec_hi, 0')
    A.vmem('buffer_store_dword %s, %s, %s, %s offen sc1' % (vr(vTAG), vr(vTM), sr(dWS, 4), sr(sT0)), tag)
    e('s_mov_b32 exec_hi, -1')

class Q:
    def __init__(self):
        self.q = []
        self.open = set([None])
    def add(self, ops, gate=None):
        self.q += [(c, f, gate) for (c, f) in ops]
    def ready(self):
        return bool(self.q) and self.q[0][2] in self.open
    def cost(self):
        return self.q[0][0]
    def pop1(self):
        self.q.pop(0)[1]()
    def popD(self, n=1):
        while n > 0 and self.ready():
            if self.cost() == 'D':
                n -= 1
            self.pop1()
    def pop(self, n):
        while n > 0 and self.ready():
            c = self.cost()
            n -= 2 if c == 'D' else c
            self.pop1()
    def flush(self):
        while self.q:
            assert self.ready(), self.q[0][2]
            self.pop1()

class Ops(list):
    def v(self, s, c=1):
        self.append((c, lambda: e(s)))
    def s(self, fmt, *a):
        self.append((1, lambda: S(fmt, *a)))
    def f(self, fn, c=1):
        self.append((c, fn))

DQ = Q()
FQ = Q()
ACC, CS, XF, AF, ONE = 0, 80, 100, 132, 152
XA, BA, WA = 156, 160, 164
vX, vB, vW1, vW2 = 168, 170, 172, 175
B1, ST, SS, TMP = 180, 188, 204, 212
BU = TMP + 4
vTB, vTI, vTC, vTG, vSXW, vSXR, vCW, vCR, vPF, vTM, vXO, vGO = range(TMP + 16, TMP + 28)
vPA = TMP + 28
vSA, vTRL, vTAG = 177, 178, 179
vWT, vCT, vPW, vCO = 244, 245, 246, 247
sPM = 40
U0, U1 = 186, 187
SR = ST

e('s_cmp_ge_u32 s2, 256')
e('s_cbranch_scc1 L_end')
if PROF:
    e('v_mov_b32 %s, 0' % vr(vSTAMP))
    stamp('rt0', True)
    stamp('t0')
e('s_load_dwordx16 s[16:31], s[0:1], 0')
e('s_load_dwordx16 s[32:47], s[0:1], 64')
e('s_load_dwordx2 s[48:49], s[0:1], 128')
e('s_getpc_b64 %s' % sr(sPC, 2))
A.label('L_pc')
e('v_and_b32 %s, 63, v0' % vr(vLANE))
e('v_lshrrev_b32 v1, 6, v0')
e('v_lshlrev_b32 %s, 4, %s' % (vr(vL16), vr(vLANE)))
e('v_readfirstlane_b32 %s, v1' % sr(sW))
e('v_lshlrev_b32 v2, 7, v0')
e('v_min_u32 v2, L_end-L_pc, v2')
lab = newlab('npf')
e('s_cmp_ge_u32 s2, 16')
e('s_cbranch_scc1 %s' % lab)
A.vmem('global_load_dword %s, v2, %s' % (vr(vSCR), sr(sPC, 2)), 'pf', opt=True)
A.label(lab)
S('s_and_b32 %s, s2, 1', sKH)
S('s_lshr_b32 %s, s2, 6', sRBL)
S('s_bfe_u32 %s, s2, 0x30003', sC)
S('s_bfe_u32 s3, s2, 0x20001')
S('s_lshl2_add_u32 %s, s3, %s', sRB, sRBL)
S('s_lshl3_add_u32 %s, %s, %s', sJ, sKH, sC)
S('s_lshl2_add_u32 %s, s2, %s', sGW, sW)
if OPT['ROT'] == 0:
    S('s_mov_b32 %s, 0x76543210', sPERM)
elif OPT['ROT'] == 9:
    PT = [[0, 4, 1, 2, 3, 5, 6, 7], [1, 2, 5, 3, 0, 4, 6, 7], [2, 3, 0, 6, 1, 4, 5, 7], [3, 0, 1, 2, 7, 4, 5, 6]]
    PT = [hex(sum(x << (4 * i) for i, x in enumerate(p))) for p in PT]
    S('s_add_u32 %s, %s, %s', sT0, sRBL, sC)
    S('s_mov_b32 %s, %s', sPERM, PT[0])
    S('s_mov_b32 %s, %s', sT1, PT[2])
    S('s_bitcmp1_b32 %s, 0', sT0)
    S('s_cselect_b32 %s, %s, %s', sPERM, PT[1], sPERM)
    S('s_cselect_b32 %s, %s, %s', sT1, PT[3], sT1)
    S('s_bitcmp1_b32 %s, 1', sT0)
    S('s_cselect_b32 %s, %s, %s', sPERM, sT1, sPERM)
    S('s_add_u32 %s, s3, %s', sT1, sKH)
    S('s_bitcmp1_b32 %s, 0', sT1)
    S('s_cselect_b32 %s, 0x44444444, 0', sT1)
    S('s_xor_b32 %s, %s, %s', sPERM, sPERM, sT1)
elif OPT['ROT'] == 8:
    S('s_lshl1_add_u32 %s, %s, %s', sT0, sRBL, sC)
    S('s_add_u32 %s, %s, s3', sT0, sT0)
    S('s_and_b32 %s, %s, 7', sT0, sT0)
    S('s_mul_i32 %s, %s, 0x11111111', sT0, sT0)
    S('s_add_u32 %s, %s, 0x76543210', sT0, sT0)
    S('s_and_b32 %s, %s, 0x77777777', sPERM, sT0)
else:
    S('s_add_u32 %s, %s, %s', sT0, sRBL, sC)
    S('s_and_b32 %s, %s, 3', sT0, sT0)
    S('s_mul_i32 %s, %s, 0x11111111', sT0, sT0)
    S('s_add_u32 %s, %s, 0x32103210', sT0, sT0)
    S('s_and_b32 %s, %s, 0x33333333', sT0, sT0)
    if OPT['ROT'] == 4:
        S('s_add_u32 %s, s3, %s', sT1, sKH)
    elif OPT['ROT'] == 6:
        S('s_mov_b32 %s, 0', sT1)
    else:
        S('s_lshr_b32 %s, %s, 2', sT1, sC)
        S('s_add_u32 %s, %s, s3', sT1, sT1)
    S('s_bitcmp0_b32 %s, 0', sT1)
    S('s_mov_b32 %s, 0x4444', sT1)
    S('s_cselect_b32 %s, 0x44440000, %s', sT1, sT1)
    S('s_or_b32 %s, %s, %s', sPERM, sT0, sT1)
e('v_lshrrev_b32 %s, 5, %s' % (vr(vHI5), vr(vLANE)))
e('v_and_b32 %s, 31, %s' % (vr(vLO5), vr(vLANE)))
e('v_lshrrev_b32 %s, 4, %s' % (vr(vG), vr(vLANE)))
e('v_and_b32 %s, 15, %s' % (vr(vLO4), vr(vLANE)))
S('s_lshr_b32 %s, %s, 1', sT2, sW)
S('s_and_b32 %s, %s, 1', sT3, sW)
e('v_and_b32 v1, 7, %s' % vr(vLANE))
e('v_lshrrev_b32 v3, 3, %s' % vr(vLANE))
e('v_xor_b32 v4, v1, %s' % vr(vG))
e('v_lshlrev_b32 v4, 4, v4')
S('s_lshl1_add_u32 %s, %s, %s', sT0, sRB, sT2)
S('s_lshl_b32 %s, %s, 6', sT0, sT0)
S('s_add_u32 %s, %s, %s', sT0, sT0, sT3)
S('s_lshl_b32 %s, %s, 10', sT0, sT0)
e('v_lshl_add_u32 v5, v3, 12, v4')
e('v_add_u32 %s, %s, v5' % (vr(vX), sr(sT0)))
e('v_xor_b32 %s, 64, %s' % (vr(vX + 1), vr(vX)))
e('v_add_u32 %s, %d, %s' % (vr(vX + 1), 31 * 1024, vr(vX + 1)))
S('s_lshl1_add_u32 %s, %s, %s', sCG, sJ, sT2)
S('s_lshl_b32 %s, %s, 14', sCG, sCG)
e('v_lshl_add_u32 v5, v3, 10, v4')
e('v_add_u32 %s, %s, v5' % (vr(vB), sr(sCG)))
e('v_xor_b32 %s, 64, %s' % (vr(vB + 1), vr(vB)))
e('v_add_u32 %s, %d, %s' % (vr(vB + 1), 7 * 1024, vr(vB + 1)))
S('s_lshr_b32 %s, %s, 2', sT0, sJ)
S('s_mul_i32 %s, %s, 22', sT0, sT0)
S('s_and_b32 %s, %s, 3', sT1, sJ)
S('s_mul_i32 %s, %s, 6', sT1, sT1)
S('s_add_u32 %s, %s, %s', sOFF, sT0, sT1)
S('s_lshl_b32 %s, %s, 5', sSW, sOFF)
S('s_mul_i32 %s, %s, %s', sT0, sW, str(16 * 2752))
S('s_add_u32 %s, %s, %s', sSW, sSW, sT0)
S('s_movk_i32 %s, 5462', sT0)
S('s_movk_i32 %s, 2752', sT1)
for i in range(3):
    e('v_add_u32 v6, %d, %s' % (64 * i, vr(vLANE)))
    e('v_mul_u32_u24 v7, %s, v6' % sr(sT0))
    e('v_lshrrev_b32 v7, 16, v7')
    e('v_mul_u32_u24 v8, 12, v7')
    e('v_sub_u32 v6, v6, v8')
    e('v_lshrrev_b32 v8, 3, v7')
    e('v_lshlrev_b32 v8, 1, v8')
    e('v_xor_b32 v6, v6, v8')
    e('v_mul_u32_u24 v7, %s, v7' % sr(sT1))
    e('v_lshl_add_u32 v6, v6, 4, v7')
    e('v_add_u32 %s, %s, v6' % (vr(vW1 + i), sr(sSW)))
    if i < 2:
        S('s_sub_u32 %s, %s, 1024', sSW, sSW)
S('s_mul_i32 %s, %s, %s', sM0, sW, str(PIECE))
S('s_lshl_b32 %s, %s, 6', sT0, sJ)
e('v_lshl_add_u32 v9, %s, 1, %s' % (vr(vLO5), sr(sT0)))
e('v_mov_b32 v10, 0')
S('s_mov_b32 %s, 0x200000', dX + 2)
S('s_mov_b32 %s, 0x20000', dX + 3)
S('s_mov_b32 %s, 0x80000', dB + 2)
S('s_mov_b32 %s, 0x20000', dB + 3)
S('s_mov_b32 %s, %s', dW1 + 2, str(512 * 2752))
S('s_mov_b32 %s, 0x20000', dW1 + 3)
S('s_mov_b32 %s, %s', dWS + 2, hex(WS_SIZE))
S('s_mov_b32 %s, 0x20000', dWS + 3)

def stage_dma(v):
    slot = v & 3
    tag = 'st%d' % v
    ops = []
    sc = lambda fmt, *a: ops.append((1, lambda: S(fmt, *a)))
    dm = lambda txt: ops.append(('D', lambda: A.vmem(txt, tag)))
    sc('s_bfe_u32 %s, %s, %s', sSW, sPERM, '0x%x' % (4 * v + 0x30000))
    sc('s_add_u32 m0, %s, %s', sM0, str(slot * SLOT + 4096))
    sc('s_lshl_b32 %s, %s, 7', sSX, sSW)
    for i in range(2):
        dm('buffer_load_dwordx4 %s, %s, %s offen offset:%d lds' % (vr(vB + i), sr(dB, 4), sr(sSX), i * 1024))
    sc('s_add_u32 m0, %s, %s', sM0, str(slot * SLOT + 6144))
    sc('s_mul_i32 %s, %s, %s', sSW, sSW, str(64 * 2752))
    for i in range(3):
        dm('buffer_load_dwordx4 %s, %s, %s offen offset:%d lds' % (vr(vW1 + i), sr(dW1, 4), sr(sSW), i * 1024))
    sc('s_add_u32 m0, %s, %s', sM0, str(slot * SLOT))
    for i in range(4):
        dm('buffer_load_dwordx4 %s, %s, %s offen offset:%d lds' % (vr(vX + (i & 1)), sr(dX, 4), sr(sSX), i * 1024))
    return ops

S('s_lshl1_add_u32 %s, %s, %s', sT0, sRB, sKH)
S('s_and_b32 %s, %s, 1', sT1, sJ)
S('s_lshl1_add_u32 %s, %s, %s', sT0, sT0, sT1)
S('s_lshl2_add_u32 %s, %s, %s', sT0, sT0, sW)
S('s_bfe_u32 %s, %s, 0x20001', sT1, sJ)
S('s_lshl3_add_u32 %s, %s, %s', sT0, sT0, sT1)
S('s_lshl_b32 %s, %s, 10', sM8, sT0)
e('v_lshlrev_b32 %s, 12, %s' % (vr(vSA), vr(vHI5)))
e('v_lshl_add_u32 %s, %s, 4, %s' % (vr(vSA), vr(vLO5), vr(vSA)))
d0 = stage_dma(0)
for (c, f) in d0[:3]:
    f()
S('s_cmp_eq_u32 %s, 0', sT3)
A.wait_lg0()
stamp('karg')
S('s_cselect_b64 %s, %s, %s', sr(dB, 2), sr(pBRE, 2), sr(pBIM, 2))
S('s_mov_b64 %s, %s', sr(dX, 2), sr(pX, 2))
S('s_mov_b64 %s, %s', sr(dWS, 2), sr(pWS, 2))
lre, lim, ldt, vEP = 11, 12, 13, 14
A.vmem('global_load_ushort %s, v9, %s' % (vr(lre), sr(pLRE, 2)), 'lam')
A.vmem('global_load_ushort %s, v9, %s' % (vr(lim), sr(pLIM, 2)), 'lam')
A.vmem('global_load_ushort %s, v9, %s' % (vr(ldt), sr(pLDT, 2)), 'lam')
A.vmem('buffer_load_dword %s, v10, %s, 0 offen sc1' % (vr(vEP), sr(dWS, 4)), 'lam')
S('s_mov_b64 %s, %s', sr(dW1, 2), sr(pW1, 2))
for i in range(2):
    A.vmem('buffer_load_dwordx4 %s, %s, %s, %s offen offset:%d' % (vr(SR + 4 * i, 4), vr(vSA), sr(dX, 4), sr(sM8), 512 * i), 'srow')
def spf(lo, hi):
    l = [(dW2 if lo else pW2, sU0, 128 * i) for i in range(11)] + [(p, sBM, 128 * i) for i in range(4) for p in (pCRE, pCIM)]
    for (p, so, off) in l[lo:hi]:
        if OPT['SPF'] == 1:
            e('s_load_dword s0, %s, %s offset:%d' % (sr(p, 2), sr(so), off))
        else:
            e('s_load_dwordx2 s[0:1], %s, %s offset:%d' % (sr(p, 2), sr(so), off + 60))
if OPT['PB']:
    e('s_barrier')
    DQ.add(d0[3:])
    DQ.popD(2)
    AUTO.update(on=True, any=True, int=OPT['PINT'], nxt=AUTO['t'])
else:
    for (c, f) in d0[3:]:
        f()
    stamp('d0')
if OPT['SPF']:
    S('s_mul_i32 %s, %s, 1376', sU0, sGW)
    S('s_lshl_b32 %s, %s, 9', sBM, sGW)
    S('s_and_b32 %s, %s, -128', sU0, sU0)
    spf(0, 13 if OPT['SPF'] == 1 else 6)

S('s_mov_b32 %s, %s', sTH, sT2)
S('s_mov_b32 %s, %s', sPH, sT3)
S('s_mov_b32 %s, %s', sJT, sOFF)
srd(dO, pB1, 2752)
srd(dW2, pW2, 1376 * 1024)
S('s_mov_b64 %s, %s', sr(sPC, 2), sr(pDSK, 2))
e('v_lshrrev_b32 v1, 1, %s' % vr(vLO4))
e('v_xor_b32 v1, v1, %s' % vr(vG))
e('v_lshlrev_b32 v1, 4, v1')
e('v_lshl_add_u32 v1, %s, 7, v1' % vr(vLO4))
S('s_lshl_b32 %s, %s, 6', sT0, sTH)
e('v_xor_b32 v1, %s, v1' % sr(sT0))
e('v_xor_b32 v2, 64, v1')
S('s_mul_i32 %s, %s, %s', sT0, sTH, str(2 * PIECE))
S('s_mul_i32 %s, %s, %s', sT1, sPH, str(2 * PIECE))
S('s_add_u32 %s, %s, 4096', sT1, sT1)
for k in range(2):
    e('v_add_u32 %s, %s, v%d' % (vr(XA + 2 * k), sr(sT0), 1 + k))
    e('v_add_u32 %s, %s, v%d' % (vr(BA + 2 * k), sr(sT1), 1 + k))
    e('v_add_u32 %s, %d, %s' % (vr(XA + 2 * k + 1), 2 * SLOT, vr(XA + 2 * k)))
    e('v_add_u32 %s, %d, %s' % (vr(BA + 2 * k + 1), 2 * SLOT, vr(BA + 2 * k)))
e('v_bfe_u32 v1, %s, 2, 2' % vr(vLANE))
e('v_bfe_u32 v2, %s, 4, 1' % vr(vLANE))
e('v_lshl_add_u32 v3, v2, 3, v1')
e('v_mul_u32_u24 v3, 192, v3')
e('v_xor_b32 v4, %s, v2' % sr(sPH))
e('v_lshl_add_u32 v3, v4, 5, v3')
e('v_and_b32 v4, 3, %s' % vr(vLANE))
e('v_lshl_add_u32 v3, v4, 3, v3')
S('s_movk_i32 %s, %s', sT1, str(PIECE))
e('v_mad_u32_u24 v3, %s, %s, v3' % (vr(vHI5), sr(sT1)))
S('s_add_u32 %s, %s, 6144', sT1, sT0)
S('s_sub_u32 %s, %s, %s', sT0, str(2 * PIECE + 6144), sT0)
e('v_add_u32 %s, %s, v3' % (vr(WA), sr(sT1)))
e('v_add_u32 %s, %s, v3' % (vr(WA + 2), sr(sT0)))
e('v_add_u32 %s, %d, %s' % (vr(WA + 1), 2 * SLOT, vr(WA)))
e('v_add_u32 %s, %d, %s' % (vr(WA + 3), 2 * SLOT, vr(WA + 2)))
e('v_and_b32 v5, 7, %s' % vr(vLANE))
e('v_lshlrev_b32 v6, 2, v2')
e('v_xor_b32 v5, v5, v6')
e('v_lshlrev_b32 v5, 4, v5')
e('v_lshrrev_b32 v6, 3, %s' % vr(vLANE))
e('v_lshl_add_u32 %s, v6, 10, v5' % vr(vW2))
e('v_add_u32 %s, %d, %s' % (vr(vW2 + 1), 7 * 1024, vr(vW2)))
e('v_lshl_add_u32 v5, %s, 3, v1' % vr(vHI5))
e('v_lshlrev_b32 v5, 7, v5')
e('v_lshrrev_b32 v6, 1, v1')
e('v_lshl_add_u32 v5, v6, 6, v5')
e('v_lshl_add_u32 v5, v2, 5, v5')
e('v_lshl_add_u32 %s, v4, 3, v5' % vr(vTRL))
e('v_mov_b32 %s, 0x3f803f80' % vr(ONE))
for q in range(5):
    e('v_cmp_eq_u32 vcc, %d, %s' % (q, vr(vLO4)))
    for i in range(4):
        e('v_cndmask_b32 %s, 0, %s, vcc' % (vr(CS + 4 * q + i), vr(ONE)))
S('s_lshl_b32 %s, %s, 13', sM8, sW)
S('s_mul_i32 %s, %s, %s', sME, sTH, str(SLOT))
S('s_lshl_b32 %s, %s, 11', sT0, sPH)
S('s_add_u32 %s, %s, %s', sME, sME, sT0)
S('s_add_u32 %s, %s, 32768', sME, sME)
S('s_lshl2_add_u32 %s, %s, %s', sT2, sKH, sW)
S('s_lshl_b32 %s, %s, 9', sCO, sC)
S('s_add_u32 %s, %s, %s', sCO, sCO, sT2)
S('s_lshl_b32 %s, %s, 7', sCO, sCO)
S('s_lshr_b32 %s, %s, 1', sT0, sT2)
S('s_mul_i32 %s, %s, 22', sT0, sT0)
S('s_add_u32 %s, %s, %s', sT0, sT0, sPH)
S('s_lshl_b32 %s, %s, 7', sWS, sT0)
S('s_add_u32 %s, %s, %s', sWS, sWS, sC)
S('s_lshl_b32 %s, %s, 7', sWS, sWS)
S('s_lshl_b32 %s, %s, 11', sT0, sT0)
S('s_lshl_b32 %s, %s, 14', sSSM, sT2)
S('s_sub_u32 %s, %s, %s', sSSM, sSSM, sT0)
S('s_add_u32 %s, %s, %s', sSSM, sSSM, str(88 * 2048))
S('s_add_u32 %s, %s, %s', sT0, sT0, hex(WS_H))
S('s_lshl1_add_u32 %s, %s, %s', sT1, sRB, sKH)
S('s_mul_i32 %s, %s, %s', sH2, sT1, str(HR))
S('s_add_u32 %s, %s, %s', sH2, sH2, sT0)
S('s_xor_b32 %s, %s, 1', sT3, sT1)
S('s_mul_i32 %s, %s, %s', sH1, sT3, str(HR))
S('s_add_u32 %s, %s, %s', sH1, sH1, sT0)
S('s_lshl1_add_u32 %s, %s, %s', sPA, sT1, sTH)
S('s_lshl4_add_u32 %s, %s, %s', sPA, sPA, sPH)
S('s_lshl_b32 %s, %s, 7', sPA, sPA)
S('s_add_u32 %s, %s, %s', sPA, sPA, hex(WS_FA))
S('s_lshl2_add_u32 %s, %s, %s', sPB, sT1, sW)
S('s_lshl_b32 %s, %s, 8', sGR, sPB)
S('s_add_u32 %s, %s, %s', sGR, sGR, hex(WS_G + 8))
S('s_lshl_b32 %s, %s, 10', sPB, sPB)
S('s_add_u32 %s, %s, %s', sPB, sPB, hex(WS_FB))
S('s_lshl1_add_u32 %s, %s, %s', sT0, sJ, sPH)
S('s_lshl_b32 %s, %s, 12', sT0, sT0)
S('s_add_u32 %s, %s, %s', sSG, sT0, hex(WS_SG))
S('s_lshl_b32 %s, %s, 8', sSGO, sRB)
S('s_add_u32 %s, %s, %s', sSGO, sSGO, sSG)
S('s_lshl1_add_u32 %s, %s, %s', sT1, sRB, sTH)
S('s_mul_i32 %s, %s, %s', sT1, sT1, str(HR))
S('s_add_u32 %s, %s, %s', sHS, sT0, sT1)
S('s_add_u32 %s, %s, %s', sHS, sHS, hex(WS_H + 88 * 2048))
S('s_add_u32 %s, %s, %s', sHM, sJT, sPH)
S('s_lshl_b32 %s, %s, 11', sHM, sHM)
S('s_add_u32 %s, %s, %s', sHM, sHM, sT1)
S('s_add_u32 %s, %s, %s', sHM, sHM, hex(WS_H))
S('s_lshl4_add_u32 %s, %s, %s', sFL, sRB, sJ)
S('s_lshl2_add_u32 %s, %s, %s', sFL, sFL, sW)
S('s_lshl_b32 %s, %s, 5', sF0, sFL)
S('s_add_u32 %s, %s, %s', sF0, sF0, hex(WS_G))
S('s_lshl_b32 %s, %s, 7', sFL, sFL)
S('s_lshl_b32 %s, %s, 12', sPX, sGW)
S('s_add_u32 %s, %s, %s', sPX, sPX, hex(WS_PX))
def prep_ops():
    o = Ops()
    o.s('s_lshl_b32 %s, %s, 6', sT0, sPH)
    o.s('s_add_u32 %s, %s, %s', sT0, sT0, str(TAB))
    o.s('s_movk_i32 %s, %s', sT1, str(TROW))
    o.v('v_lshl_add_u32 %s, %s, 4, %s' % (vr(vTB), vr(vG), sr(sT0)))
    o.v('v_lshl_add_u32 %s, %s, 2, %s' % (vr(vTC), vr(vLO4), sr(sT0)))
    o.v('v_mad_u32_u24 %s, %s, %s, %s' % (vr(vTI), vr(vLO4), sr(sT1), vr(vTB)))
    o.v('v_min_u32 %s, 1, %s' % (vr(U0), vr(vG)))
    o.v('v_lshl_add_u32 %s, %s, 4, %s' % (vr(U0), vr(U0), vr(vG)))
    o.v('v_mad_u32_u24 %s, %s, %s, %s' % (vr(vTG), vr(U0), sr(sT1), vr(vTC)))
    o.s('s_mul_i32 %s, %s, 320', sT0, sW)
    o.s('s_add_u32 %s, %s, %s', sT0, sT0, str(CSX))
    o.v('v_lshl_add_u32 %s, %s, 4, %s' % (vr(vCO), vr(vG), sr(sT0)))
    o.v('v_lshl_add_u32 %s, %s, 6, %s' % (vr(vCW), vr(vLO4), vr(vCO)))
    o.s('s_xor_b32 %s, %s, 2', sT0, sW)
    o.s('s_mul_i32 %s, %s, 320', sT0, sT0)
    o.s('s_add_u32 %s, %s, %s', sT0, sT0, str(CSX))
    o.v('v_lshl_add_u32 %s, %s, 4, %s' % (vr(vCR), vr(vG), sr(sT0)))
    o.v('v_lshl_add_u32 %s, %s, 2, %s' % (vr(vSXW), vr(vLO4), sr(sT0)))
    o.s('s_mul_i32 %s, %s, 320', sT0, sPH)
    o.s('s_add_u32 %s, %s, %s', sT0, sT0, str(CSX))
    o.v('v_lshl_add_u32 %s, %s, 2, %s' % (vr(vSXR), vr(vLO4), sr(sT0)))
    o.s('s_sub_u32 %s, %s, 1', sT0, sRB)
    o.v('v_sub_u32 %s, %s, %s' % (vr(U0), sr(sT0), vr(vG)))
    o.v('v_lshlrev_b32 %s, 4, %s' % (vr(U1), vr(vLO4)))
    for i in range(4):
        o.v('v_subrev_u32 %s, %d, %s' % (vr(vPA + i), 4 * i, vr(U0)))
        o.v('v_cmp_le_i32 %s, 0, %s' % (sr(sMSK[i], 2), vr(vPA + i)))
        o.v('v_max_i32 %s, 0, %s' % (vr(vPA + i), vr(vPA + i)))
        o.v('v_lshl_add_u32 %s, %s, 8, %s' % (vr(vPA + i), vr(vPA + i), vr(U1)))
    o.v('v_and_b32 %s, 7, %s' % (vr(vPF), vr(vLANE)))
    o.v('v_lshlrev_b32 %s, 8, %s' % (vr(vPF), vr(vPF)))
    o.s('s_and_b32 %s, %s, 3', sT0, sJ)
    o.s('s_cmp_eq_u32 %s, 3', sT0)
    o.s('s_cselect_b32 %s, 0, 0xffff', sF1)
    o.v('v_lshlrev_b32 %s, 2, %s' % (vr(vTM), vr(vLO5)))
    o.v('v_mul_u32_u24 %s, 96, %s' % (vr(U0), vr(vG)))
    o.v('v_add_lshl_u32 %s, %s, %s, 10' % (vr(vWT), vr(U0), vr(vLO4)))
    o.v('v_lshlrev_b32 %s, 10, %s' % (vr(vCT), vr(vLANE)))
    o.v('v_and_b32 %s, 3, %s' % (vr(U1), vr(vLANE)))
    o.v('v_lshrrev_b32 %s, 2, %s' % (vr(U0), vr(vLANE)))
    o.v('v_mad_u32_u24 %s, %s, 3, %s' % (vr(U0), vr(U1), vr(U0)))
    o.s('s_lshl2_add_u32 %s, %s, s3', sT0, sRBL)
    o.s('s_lshl_b32 %s, %s, 10', sT1, sT0)
    o.v('v_lshl_add_u32 %s, %s, 15, %s' % (vr(vPW), vr(U0), sr(sT1)))
    o.s('s_lshl_b32 %s, %s, 2', sT0, sT0)
    o.s('s_lshl_b64 %s, 15, %s', sr(sPM, 2), sT0)
    o.s('s_lshl1_add_u32 %s, %s, %s', sT0, sRB, sKH)
    o.s('s_lshl_b32 %s, %s, 6', sT0, sT0)
    o.s('s_add_u32 %s, %s, %s', sT0, sT0, sW)
    o.v('v_and_b32 %s, 1, %s' % (vr(vGO), vr(vG)))
    o.v('v_lshl_add_u32 %s, %s, 2, %s' % (vr(vGO), vr(vGO), vr(vHI5)))
    o.v('v_lshl_add_u32 %s, %s, 2, %s' % (vr(U0), vr(vGO), sr(sT0)))
    o.s('s_lshl_b32 %s, %s, 7', sT1, sC)
    o.v('v_lshl_add_u32 %s, %s, 3, %s' % (vr(U1), vr(vLO4), sr(sT1)))
    o.v('v_lshl_add_u32 %s, %s, 10, %s' % (vr(vXO), vr(U0), vr(U1)))
    o.v('v_lshlrev_b32 %s, 4, %s' % (vr(vGO), vr(vGO)))
    o.v('v_lshlrev_b32 %s, 3, %s' % (vr(U0), vr(vG)))
    return o

for (c, f) in prep_ops():
    f()
stamp('prep')
if OPT['PB']:
    print('DQ left after prep', len(DQ.q))
    DQ.flush()
    AUTO.update(on=False, any=False, int=OPT['EINT'])
    stamp('d0')
A.wait_vm('lam')
stamp('lam')
if OPT['SPF']:
    spf(13 if OPT['SPF'] == 1 else 6, 19 if OPT['SPF'] == 1 else 12)
LOG2E = math.log2(math.e)
e('v_readfirstlane_b32 %s, %s' % (sr(sTAG), vr(vEP)))
for r in (lre, lim, ldt):
    e('v_lshlrev_b32 %s, 16, %s' % (vr(r), vr(r)))
e('v_mul_f32 %s, %s, %s' % (vr(ldt), f2u(LOG2E), vr(ldt)))
e('v_exp_f32 %s, %s' % (vr(ldt), vr(ldt)))
S('s_add_u32 %s, %s, 1', sTAG, sTAG)
e('v_add_u32 %s, 1, %s' % (vr(vTAG), vr(vEP)))
S('s_lshl_b32 %s, %s, 1', sT0, sW)
e('v_add_u32 v1, %s, %s' % (sr(sT0), vr(vHI5)))
e('v_cvt_pk_bf16_f32 %s, %s, %s' % (vr(ldt), vr(ldt), vr(ldt)))
e('v_cvt_f32_u32 v2, v1')
e('v_lshlrev_b32 %s, 16, %s' % (vr(ldt), vr(ldt)))
e('v_cmp_lt_u32 vcc, 4, v1')
e('v_mul_u32_u24 v3, %d, v1' % TROW)
e('v_mul_f32 v5, %s, %s' % (vr(ldt), vr(lre)))
e('v_mul_f32 v6, %s, %s' % (vr(ldt), vr(lim)))
e('v_lshl_add_u32 v3, %s, 2, v3' % vr(vLO5))
e('v_mul_f32 v5, %s, v5' % f2u(LOG2E))
e('v_mul_f32 v6, 0.15915494, v6')
e('v_add_u32 v3, %d, v3' % TAB)
e('v_mul_f32 v20, 4.0, v2')
e('v_add_f32 v21, %s, v20' % f2u(32.0))
e('v_mul_f32 v22, %s, v2' % f2u(128.0))
e('v_max_f32 v22, %s, v22' % f2u(64.0))
e('v_add_f32 v23, -4.0, v2')
e('v_cndmask_b32 v22, v22, v23, vcc')
for r in range(3):
    e('v_mul_f32 v%d, v%d, v5' % (24 + r, 20 + r))
    e('v_mul_f32 v%d, v%d, v6' % (28 + r, 20 + r))
for r in range(3):
    e('v_exp_f32 v%d, v%d' % (24 + r, 24 + r))
    e('v_rndne_f32 v%d, v%d' % (20 + r, 28 + r))
for r in range(3):
    e('v_sub_f32 v%d, v%d, v%d' % (28 + r, 28 + r, 20 + r))
for r in range(3):
    e('v_cos_f32 v%d, v%d' % (20 + r, 28 + r))
    e('v_sin_f32 v%d, v%d' % (28 + r, 28 + r))
for r in range(3):
    e('v_mul_f32 v%d, v%d, v%d' % (20 + r, 20 + r, 24 + r))
    e('v_mul_f32 v%d, v%d, v%d' % (28 + r, 28 + r, 24 + r))
for r in range(3):
    A.ds('ds_write_b32 v3, v%d offset:%d' % (20 + r, 8 * r * TROW), 'tab')
    A.ds('ds_write_b32 v3, v%d offset:%d' % (28 + r, 8 * r * TROW + 128), 'tab')
lab = newlab('ncf')
S('s_cmp_lg_u32 %s, 2', sW)
e('s_cbranch_scc1 %s' % lab)
e('v_mul_f32 v24, %s, %s' % (vr(lre), vr(lre)))
e('v_fma_f32 v24, %s, %s, v24' % (vr(lim), vr(lim)))
e('v_rcp_f32 v24, v24')
e('v_add_f32 v25, -1.0, v22')
e('v_mul_f32 v26, v25, %s' % vr(lre))
e('v_mul_f32 v27, v30, %s' % vr(lre))
e('v_add_f32 v24, v24, v24')
e('v_fma_f32 v26, v30, %s, v26' % vr(lim))
e('v_fma_f32 v27, -v25, %s, v27' % vr(lim))
e('v_mul_f32 v26, v26, v24')
e('v_mul_f32 v27, v27, v24')
e('s_mov_b32 exec_lo, 0')
e('ds_write_b32 v3, v26 offset:%d' % (19 * TROW))
e('ds_write_b32 v3, v27 offset:%d' % (19 * TROW + 128))
e('s_mov_b32 exec_lo, -1')
A.label(lab)
stamp('tab')
R_L64, R_L512, R_L1, R_L2, R_L3, R_CF = 16, 20, 21, 22, 23, 24

def stat_compute_ops():
    o = Ops()
    t = SR + 8
    o.f(lambda: A.wait_vm('srow'))
    o.v('v_dot2_f32_bf16 v%d, v%d, v%d, 0' % (t, SR, ONE), 2)
    o.v('v_dot2_f32_bf16 v%d, v%d, v%d, 0' % (t + 1, SR, SR), 2)
    for i in range(1, 8):
        o.v('v_dot2_f32_bf16 v%d, v%d, v%d, v%d' % (t, SR + i, ONE, t), 2)
        o.v('v_dot2_f32_bf16 v%d, v%d, v%d, v%d' % (t + 1, SR + i, SR + i, t + 1), 2)
    for sh in (1, 2, 4, 8):
        for r in (t, t + 1):
            o.v('v_add_f32_dpp v%d, v%d, v%d row_shr:%d row_mask:0xf bank_mask:0xf bound_ctrl:0' % (r, r, r, sh))
    for r in (t, t + 1):
        o.v('v_add_f32_dpp v%d, v%d, v%d row_bcast:15 row_mask:0xa bank_mask:0xf' % (r, r, r))
    mean, var, sb, rs, m2, v2_, mb = t, t + 1, t + 2, t + 3, t + 8, t + 9, t + 10
    g0 = t + 4
    def rnd(d, s):
        o.v('v_cvt_pk_bf16_f32 v%d, v%d, v%d' % (d, s, s))
        o.v('v_lshlrev_b32 v%d, 16, v%d' % (d, d))
    o.v('v_mul_f32 v%d, %s, v%d' % (mean, f2u(1.0 / 512), mean))
    o.v('v_mul_f32 v%d, %s, v%d' % (var, f2u(1.0 / 512), var))
    o.v('v_fma_f32 v%d, -v%d, v%d, v%d' % (var, mean, mean, var))
    o.v('v_max_f32 v%d, 0, v%d' % (var, var))
    rnd(mb, mean)
    rnd(sb, var)
    o.v('v_add_f32 v%d, %s, v%d' % (sb, f2u(1e-5), sb))
    rnd(sb, sb)
    o.v('v_sqrt_f32 v%d, v%d' % (sb, sb), 2)
    o.v('v_sub_f32 v%d, v%d, v%d' % (m2, mean, mb))
    rnd(sb, sb)
    o.v('v_rcp_f32 v%d, v%d' % (rs, sb), 2)
    o.v('v_cvt_pk_bf16_f32 v%d, v%d, v%d' % (g0 + 2, mb, sb))
    o.v('v_mul_f32 v%d, v%d, v%d' % (m2, m2, rs))
    o.v('v_mul_f32 v%d, v%d, v%d' % (v2_, var, rs))
    rnd(m2, m2)
    o.v('v_mul_f32 v%d, v%d, v%d' % (v2_, v2_, rs))
    o.v('v_fma_f32 v%d, v%d, v%d, v%d' % (g0, m2, sb, mb))
    rnd(v2_, v2_)
    o.v('v_add_f32 v%d, %s, v%d' % (v2_, f2u(1e-5), v2_))
    rnd(v2_, v2_)
    o.v('v_sqrt_f32 v%d, v%d' % (v2_, v2_), 2)
    o.v('v_mov_b32 v%d, %s' % (g0 + 3, sr(sTAG)))
    rnd(v2_, v2_)
    o.v('v_mul_f32 v%d, v%d, v%d' % (g0 + 1, v2_, sb))
    o.s('s_lshl_b32 %s, %s, 5', sT0, sW)
    o.s('s_add_u32 %s, %s, %s', sT0, sT0, str(CSX))
    o.v('v_lshl_add_u32 v%d, %s, 4, %s' % (t, vr(vHI5), sr(sT0)))
    o.v('v_add_u32 v%d, %d, %s' % (SR, CSX, vr(vL16)))
    o.v('s_mov_b32 exec_lo, 0x80000000')
    o.v('s_mov_b32 exec_hi, 0x80000000')
    o.f(lambda: A.ds('ds_write_b128 v%d, %s offset:%d' % (t, vr(g0, 4), 0), 'gw'))
    o.v('s_mov_b64 exec, -1')
    o.f(lambda: stamp('gs'))
    o.s('s_lshl1_add_u32 %s, %s, %s', sD0, sRB, sTH)
    o.s('s_lshl_b32 %s, %s, 10', sD0, sD0)
    o.s('s_add_u32 %s, %s, %s', sD0, sD0, hex(WS_G))
    o.v('v_lshlrev_b32 %s, 4, %s' % (vr(vSA), vr(vLO4)))
    return o
DQ.add(stage_dma(1))
DQ.popD(OPT['D1A'])
if OPT['SPF'] == 2:
    spf(12, 19)
for (c, f) in stat_compute_ops():
    f()
DQ.popD(OPT['D1B'] - OPT['D1A'])
A.wait_lg0()
stamp('d1')
def b1_loads():
    o = Ops()
    o.s('s_add_u32 %s, %s, %s', sSX, sJT, sPH)
    o.s('s_lshl_b32 %s, %s, 5', sSX, sSX)
    for v in range(3):
        o.f(lambda v=v: A.vmem('buffer_load_dwordx2 %s, %s, %s, %s offen offset:%d' % (vr(B1 + 2 * v, 2), vr(U0), sr(dO, 4), sr(sSX), 64 * v), 'b1'), 2)
    o.f(lambda: A.vmem('global_load_dwordx2 a[248:249], %s, %s' % (vr(U1), sr(sPC, 2)), 'b1'), 2)
    o.f(lambda: A.vmem('global_load_dwordx2 a[250:251], %s, %s' % (vr(U1), sr(pB2, 2)), 'b1'), 2)
    o.s('s_mov_b32 %s, 0x80000', dO + 2)
    o.f(lambda: FQ.open.add('b1'), 0)
    return o

def b1_ops():
    o = Ops()
    o.f(lambda: A.wait_vm('b1'), 0)
    for v in range(3):
        for hh in range(2):
            o.v('v_lshlrev_b32 %s, 16, %s' % (vr(BU + 4 * v + 2 * hh), vr(B1 + 2 * v + hh)))
            o.v('v_and_b32 %s, 0xffff0000, %s' % (vr(BU + 4 * v + 2 * hh + 1), vr(B1 + 2 * v + hh)))
    return o
def stat_loads():
    return [(2, lambda T=T: A.vmem('buffer_load_dwordx4 %s, %s, %s, %s offen offset:%d sc1' % (vr(ST + 4 * T, 4), vr(vSA), sr(dWS, 4), sr(sD0), 256 * T), 'stat')) for T in range(4)]
def stat_issue():
    for (c, f) in stat_loads():
        f()
def stat_check(e=e):
    t = TMP
    for T in range(4):
        e('v_xor_b32 v%d, %s, %s' % (t + T, sr(sTAG), vr(ST + 4 * T + 3)))
    e('v_or3_b32 v%d, v%d, v%d, v%d' % (t, t, t + 1, t + 2))
    e('v_or_b32 v%d, v%d, v%d' % (t, t, t + 3))
    e('v_cmp_ne_u32 vcc, 0, v%d' % t)
C0 = -2.0 * math.sqrt(2.0 / math.pi) * math.log2(math.e)
def stat_derive_ops():
    o = Ops()
    o.f(lambda: A.wait_vm('stat'))
    stat_check(o.v)
    o.f(lambda: retry_loop('st', stat_issue, stat_check, 58, False), 2)
    for T in range(4):
        b = ST + 4 * T
        o.v('v_rcp_f32 v%d, v%d' % (TMP + T, b + 1), 2)
        o.v('v_lshlrev_b32 v%d, 16, v%d' % (SS + 2 * T, b + 2))
        o.v('v_and_b32 v%d, 0xffff0000, v%d' % (SS + 2 * T + 1, b + 2))
    for T in range(4):
        b = ST + 4 * T
        o.v('v_rcp_f32 v%d, v%d' % (SS + 2 * T + 1, SS + 2 * T + 1), 2)
        o.v('v_mul_f32 v%d, %s, v%d' % (b + 2, f2u(C0), TMP + T))
        o.v('v_mul_f32 v%d, v%d, v%d' % (b + 3, TMP + T, TMP + T))
    for T in range(4):
        b = ST + 4 * T
        o.v('v_mul_f32 v%d, v%d, v%d' % (b + 3, b + 3, b + 2))
        o.v('v_mul_f32 v%d, %s, v%d' % (b + 3, f2u(0.044715), b + 3))
    return o

TOFF = [6 * (st & 3) + 2 * (st >> 2) for st in range(11)]
def w_prefetch():
    o = Ops()
    def f():
        e('s_mov_b64 exec, 0x7ff')
        A.vmem('buffer_load_dword %s, %s, %s, %s offen' % (vr(vSCR), vr(vPW), sr(dW2, 4), sr(sWS)), 'touch')
        e('s_mov_b64 exec, -1')
    o.f(f, 4)
    for p in (pCRE, pCIM):
        o.s('s_mov_b64 %s, %s', sr(dO, 2), sr(p, 2))
        def f():
            e('s_mov_b64 exec, %s' % sr(sPM, 2))
            A.vmem('buffer_load_dword %s, %s, %s, %s offen' % (vr(vSCR), vr(vCT), sr(dO, 4), sr(sCO)), 'touch')
            e('s_mov_b64 exec, -1')
        o.f(f, 4)
    return o
def w_touch(p):
    o = Ops()
    if p >= 2:
        o.s('s_mov_b64 %s, %s', sr(dO, 2), sr(pCIM if p == 3 else pCRE, 2))
    o.f(lambda: (S('s_cmp_eq_u32 %s, %s', sRBL, str(p)), S('s_cselect_b32 %s, 0, 0x40000000', sSW)), 2)
    if p < 2:
        o.s('s_add_u32 %s, %s, %s', sSW, sSW, sWS)
        o.s('s_add_u32 %s, %s, %s', sSX, sSW, str(p * 32768))
        o.f(lambda: A.vmem('buffer_load_dword %s, %s, %s, %s offen' % (vr(vSCR), vr(vWT), sr(dW2, 4), sr(sSX)), 'touch'), 'D')
    else:
        o.s('s_add_u32 %s, %s, %s', sSX, sSW, sCO)
        o.f(lambda: A.vmem('buffer_load_dword %s, %s, %s, %s offen' % (vr(vSCR), vr(vCT), sr(dO, 4), sr(sSX)), 'touch'), 'D')
        if p == 2:
            o.s('s_add_u32 %s, %s, %s', sSW, sSW, sWS)
    if p < 3:
        o.s('s_add_u32 %s, %s, %s', sSX, sSW, str(TOFF[8 + p] * 16384))
        def f():
            e('s_mov_b64 exec, 0xffff')
            A.vmem('buffer_load_dword %s, %s, %s, %s offen' % (vr(vSCR), vr(vWT), sr(dW2, 4), sr(sSX)), 'touch')
            e('s_mov_b64 exec, -1')
        o.f(f, 4)
    return o
def w2_step(st):
    o = Ops()
    odd = 0
    if st == 0:
        o.s('s_lshl_b32 %s, %s, 11', sSX, sW)
        o.s('s_add_u32 m0, %s, %s', sSX, str(PE))
    elif st <= 8:
        odd = (st - 1) & 1
        if not odd:
            o.s('s_add_u32 m0, %s, %s', sM8, str(((st - 1) // 4) * SLOT + ((st - 1) % 4) * 2048))
    else:
        o.s('s_add_u32 m0, %s, %s', sME, str((st - 9) * 2 * SLOT))
    o.s('s_add_u32 %s, %s, %s', sSW, sWS, str(TOFF[st] * 16384 - odd * 2048))
    for i in range(2):
        o.f(lambda i=i: A.vmem('buffer_load_dwordx4 %s, %s, %s offen offset:%d lds' % (vr(vW2 + i), sr(dW2, 4), sr(sSW), odd * 2048 + i * 1024), 'W'), 'D')
    return o
def c_job(part):
    o = Ops()
    o.s('s_mov_b64 %s, %s', sr(dB, 2), sr(pCIM if part else pCRE, 2))
    if part == 0:
        o.v('v_subrev_u32 %s, %s, %s' % (vr(vB), sr(sCG), vr(vB)))
        o.v('v_subrev_u32 %s, %s, %s' % (vr(vB + 1), sr(sCG), vr(vB + 1)))
    for k in range(4):
        odd = k & 1
        if not odd:
            o.s('s_add_u32 m0, %s, %s', sM8, str((2 + part) * SLOT + k * 2048))
        o.s('s_add_u32 %s, %s, %s', sSX, sCO, str(k * 16384 - odd * 2048))
        for i in range(2):
            o.f(lambda i=i, odd=odd: A.vmem('buffer_load_dwordx4 %s, %s, %s offen offset:%d lds' % (vr(vB + i), sr(dB, 4), sr(sSX), odd * 2048 + i * 1024), 'W'), 'D')
    return o
QR = [0, 2, 8, 10]
def resx_loads():
    o = Ops()
    for q in range(4):
        o.s('s_mov_b32 %s, %s', sSX, str(QR[q] * 4096))
        o.f(lambda q=q: A.vmem('buffer_load_dwordx2 %s, %s, %s, %s offen' % (ar(240 + 2 * q, 2), vr(vXO), sr(dX, 4), sr(sSX)), 'res'), 'D' if q & 1 else 2)
    return o
def resg_loads():
    return [(2, lambda q=q: A.vmem('buffer_load_dword %s, %s, %s, %s offen offset:%d sc1' % (ar(252 + q), vr(vGO), sr(dWS, 4), sr(sGR), QR[q] * 16), 'res')) for q in range(4)]

for v in range(1, 8):
    if v > 1:
        DQ.add(stage_dma(v), None if v < 4 else 'mid%d' % (v - 4))
    if v == OPT['B1P']:
        DQ.add(b1_loads())
    if v == OPT['WPF']:
        DQ.add(w_prefetch())
    if v == OPT['STL']:
        DQ.add(stat_loads())
        DQ.add([(0, lambda: FQ.open.add('stl'))])
    if 0 <= v - OPT['WT0'] < 4:
        DQ.add(w_touch(v - OPT['WT0']))
assert OPT['WPF'] < OPT['WT0'] and (OPT['B1P'] <= OPT['WPF'] or OPT['WPF'] == 0)
o = Ops()
o.s('s_mov_b64 %s, %s', sr(dO, 2), sr(pOUT, 2))
o.s('s_mov_b32 %s, 0x400000', dO + 2)
DQ.add(o)
DQ.add(w2_step(0))
for st in range(1, 10):
    DQ.add(w2_step(st), 'mid4' if st < 5 else 'mid5')
DQ.add(c_job(0), 'mid6')
DQ.add(resx_loads())
DQ.add(w2_step(10), 'mid7')
DQ.add(c_job(1), 'mid7')
FQ.add([(0, lambda: None)], 'b1')
FQ.add(b1_ops(), 'mid%d' % OPT['B1G'])
FQ.add([(0, lambda: None)], 'stl')
FQ.add(stat_derive_ops(), 'mid%d' % OPT['SDG'])

RQ = Q()
def rd_x(step, T):
    v, ks = step // 2, step % 2
    slot = v & 3
    return [(1, lambda: A.ds('ds_read_b128 %s, %s offset:%d' % (vr(XF + 16 * ks + 4 * T, 4), vr(XA + 2 * ks + (slot >> 1)), (slot & 1) * SLOT + (T & 1) * PIECE + (T >> 1) * 2048), 'x%d' % step))]
def rd_a(step, a):
    v, ks = step // 2, step % 2
    slot = v & 3
    if a < 2:
        return [(1, lambda: A.ds('ds_read_b128 %s, %s offset:%d' % (vr(AF + 4 * a, 4), vr(BA + 2 * ks + (slot >> 1)), (slot & 1) * SLOT + a * PIECE), 'a%d_%d' % (step, a)))]
    return [(1, lambda half=half: A.ds('ds_read_b64_tr_b16 %s, %s offset:%d' % (vr(AF + 4 * a + 2 * half, 2), vr(WA + 2 * ks + (slot >> 1)), (slot & 1) * SLOT + half * 768 + 64 * (a - 2)), 'a%d_%d' % (step, a))) for half in range(2)]

A.wait_vm('st0')
stamp('st0')
e('s_barrier')
RQ.add(rd_a(0, 0))
for T in range(4):
    RQ.add(rd_x(0, T))
for a in range(1, 5):
    RQ.add(rd_a(0, a))
RQ.flush()
A.ds('ds_read_b128 %s, %s' % (vr(SR + 4, 4), vr(SR)), 'gr')
def g_store():
    A.wait_lg('gr')
    lab = newlab('gs')
    S('s_cmp_lg_u32 %s, 0', sW)
    e('s_cbranch_scc1 %s' % lab)
    e('s_mov_b64 exec, 0xff')
    A.vmem('buffer_store_dwordx4 %s, %s, %s, %s offen sc1' % (vr(SR + 4, 4), vr(vL16), sr(dWS, 4), sr(sF0)), 'gs', opt=True)
    e('s_mov_b64 exec, -1')
    A.label(lab)
clk = [0, 0]
def gap(budget, base):
    used = 0
    while used < budget:
        if RQ.ready():
            used += RQ.cost()
            RQ.pop1()
        elif DQ.ready() and (DQ.cost() != 'D' or (clk[0] >= clk[1] and used + OPT['DCOST'] <= max(budget, OPT['DCOST']))):
            if DQ.cost() == 'D':
                used += OPT['DCOST']
                clk[1] = max(clk[1], clk[0] - 2 * OPT['DINT']) + OPT['DINT']
            elif used + DQ.cost() > max(budget, DQ.cost()):
                break
            else:
                used += DQ.cost()
            DQ.pop1()
        elif FQ.ready() and used + FQ.cost() <= max(budget, FQ.cost()):
            used += FQ.cost()
            FQ.pop1()
        else:
            break
    clk[0] += max(base, 8 + 4 * used)

K0, K1, SA, SE = 116, 124, 136, 144
def tab_rd(dst, row, tag, addr=None):
    for part in range(2):
        A.ds('ds_read_b128 %s, %s offset:%d' % (vr(dst + 4 * part, 4), vr(vTB if addr is None else addr), row * TROW + part * 128), tag)
for step in range(16):
    v, ks = step // 2, step % 2
    gate = 'mid%d' % v if ks == 1 else None
    for a in range(5):
        if ks == 1 and a == 2:
            for u in range(5):
                assert DSN.get('a%d_%d' % (step, u), 0) == (1 if u < 2 else 2), (step, u)
            if v == 7:
                assert DSN.get('csw', 0) == 1 and DSN.get('cso', 0) == 5
            A.wait_lg0()
            stamp('a%d' % v)
            if v < 7:
                A.wait_vm('st%d' % (v + 1))
                if v in (1, 3, 6):
                    stamp('b%d' % v)
            if not OPT['X'] & 2:
                e('s_barrier')
            clk[0] += 40
            for q in (DQ, FQ, RQ):
                q.open.add('mid%d' % v)
            if v == 7:
                for q in range(5):
                    RQ.add([(1, lambda q=q: A.ds('ds_read_b128 %s, %s offset:%d' % (vr((XF + 4 * q) if q < 4 else AF, 4), vr(vCR), 64 * q), 'csr'))])
        if a in (0, 2, 4):
            assert DSN.get('x%d' % step, 0) == 4, (step, a)
            for u in (a, a + 1):
                assert u > 4 or DSN.get('a%d_%d' % (step, u), 0) == (1 if u < 2 else 2), (step, a, u)
            A.wait_lg(['x%d' % step] + ['a%d_%d' % (step, u) for u in (a, a + 1)])
        if OPT['XS'] and step in (14, 15) and a == 0:
            stamp('s%d' % step)
        if step == 0 and a == 4:
            g_store()
        ms = []
        if ks == 0:
            ms.append((ONE, CS + 4 * a))
        for T in range(4):
            ms.append((ACC + 16 * a + 4 * T, XF + 16 * ks + 4 * T))
        for i, (acc, b) in enumerate(ms):
            e('v_mfma_f32_16x16x32_bf16 %s, %s, %s, %s' % (vr(acc, 4), vr(AF + 4 * a, 4), vr(b, 4), '0' if step == 0 and (acc != ONE or a == 0) else vr(acc, 4)))
            last = i == len(ms) - 1
            if step < 15:
                if last:
                    RQ.add(rd_a(step + 1, a), gate)
                if (a == 0 and last) if ks == 1 else (a == 0 and i == 1):
                    for T in range(4):
                        RQ.add(rd_x(step + 1, T), gate)
            if step == 15 and a == 0 and i == 0:
                def csw():
                    e('s_mov_b32 exec_lo, 0x1f001f')
                    e('s_mov_b32 exec_hi, 0x1f001f')
                    A.ds('ds_write_b128 %s, %s' % (vr(vCW), vr(ONE, 4)), 'csw')
                    e('s_mov_b64 exec, -1')
                RQ.add([(2, csw)])
                for q in range(5):
                    RQ.add([(1, lambda q=q: A.ds('ds_read_b128 %s, %s offset:%d' % (vr(CS + 4 * q, 4), vr(vCO), 64 * q), 'cso'))])
            bud = OPT['BUD0'] if step < OPT['NB0'] else 2
            if last and a in (1, 3, 4) and not (ks == 1 and a == 3):
                bud = 0 if (ks == 1 and a == 1) else 1
            if bud == 0:
                while RQ.ready():
                    RQ.pop1()
            gap(bud, 16)
print('K loop estimate', clk[0], 'left DQ', len(DQ.q), 'FQ', len(FQ.q))
FQ.flush()
RQ.flush()
stamp('kloop')

DQ.add(resg_loads(), 'sx')
tab_rd(K0, R_CF, 'k0')
tab_rd(K1, R_L1, 'k1')
A.wait_lg('csr')
AUTO['nxt'] = AUTO['t'] + max(0, clk[1] - clk[0])
auto(True)
for q in range(5):
    src = (XF + 4 * q) if q < 4 else AF
    for h in (0, 2):
        e('v_pk_add_f32 %s, %s, %s' % (vr(CS + 4 * q + h, 2), vr(CS + 4 * q + h, 2), vr(src + h, 2)))
LOB = 'op_sel:[0,0,0] op_sel_hi:[1,0,1]'
HIB = 'op_sel:[0,1,0] op_sel_hi:[1,1,1]'
RR, II = ACC, ACC + 16
tq = XF
tZ, tO = tq, B1
def gelu_tile(v, tag, mid=None):
    for hh in range(2):
        prs = [(2 * hh + a, h) for a in range(2) for h in range(2)]
        accp = lambda T, h: ACC + 32 + 16 * v + 4 * T + 2 * h
        for (T, h) in prs:
            e('v_pk_fma_f32 %s, %s, %s, %s %s' % (vr(accp(T, h), 2), vr(BU + 4 * v + 2 * h, 2), vr(ST + 4 * T, 2), vr(accp(T, h), 2), HIB))
        for (T, h) in prs:
            e('v_pk_fma_f32 %s, %s, %s, %s %s %s' % (vr(accp(T, h), 2), vr(CS + 8 + 4 * v + 2 * h, 2), vr(ST + 4 * T, 2), vr(accp(T, h), 2), LOB, NEG1))
        for i, (T, h) in enumerate(prs):
            e('v_pk_mul_f32 %s, %s, %s' % (vr(tZ + 2 * i, 2), vr(accp(T, h), 2), vr(accp(T, h), 2)))
        for i, (T, h) in enumerate(prs):
            e('v_pk_fma_f32 %s, %s, %s, %s op_sel:[0,1,0] op_sel_hi:[1,1,0]' % (vr(tZ + 2 * i, 2), vr(tZ + 2 * i, 2), vr(ST + 4 * T + 2, 2), vr(ST + 4 * T + 2, 2)))
        for i, (T, h) in enumerate(prs):
            e('v_pk_mul_f32 %s, %s, %s' % (vr(tZ + 2 * i, 2), vr(tZ + 2 * i, 2), vr(accp(T, h), 2)))
        for i in range(8):
            e('v_exp_f32 %s, %s' % (vr(tZ + i), vr(tZ + i)))
        for i, (T, h) in enumerate(prs):
            e('v_pk_fma_f32 %s, %s, %s, %s op_sel:[0,1,1] op_sel_hi:[1,1,1]' % (vr(tZ + 2 * i, 2), vr(tZ + 2 * i, 2), vr(ST + 4 * T, 2), vr(ST + 4 * T, 2)))
        for i in range(8):
            e('v_rcp_f32 %s, %s' % (vr(tZ + i), vr(tZ + i)))
        for i, (T, h) in enumerate(prs):
            e('v_pk_mul_f32 %s, %s, %s' % (vr(tZ + 2 * i, 2), vr(tZ + 2 * i, 2), vr(accp(T, h), 2)))
        o = tO + 4 * hh
        for i in (0, 2, 1, 3):
            e('v_cvt_pk_bf16_f32 %s, %s, %s' % (vr(o + i), vr(tZ + 2 * i), vr(tZ + 2 * i + 1)))
        if mid:
            mid(hh)
        auto(False)
        e('v_permlane16_swap_b32 %s, %s' % (vr(o), vr(o + 2)))
        so = sHM
        if v:
            so = sU0
            if hh == 0:
                S('s_add_u32 %s, %s, %s', sU0, sHM, str(4096 * v))
        if v == 2:
            S('s_cmp_eq_u32 %s, 0', sF1)
        e('v_permlane16_swap_b32 %s, %s' % (vr(o + 1), vr(o + 3)))
        if v == 2:
            lab = newlab('skip')
            e('s_cbranch_scc1 %s' % lab)
        A.vmem('buffer_store_dwordx4 %s, %s, %s, %s offen offset:%d sc1' % (vr(o, 4), vr(vL16), sr(dWS, 4), sr(so), 1024 * hh), tag, opt=(v == 2))
        if v == 2:
            A.label(lab)
        auto(True)
for T in range(4):
    for part in range(2):
        for h in (0, 2):
            r = ACC + 16 * part + 4 * T + h
            e('v_pk_fma_f32 %s, %s, %s, %s %s %s' % (vr(r, 2), vr(CS + 4 * part + h, 2), vr(SS + 2 * T, 2), vr(r, 2), LOB, NEG1))
    if T == 0:
        A.wait_lg('k0')
    for q in (0, 2, 4, 6):
        e('v_pk_mul_f32 %s, %s, %s op_sel:[0,1] op_sel_hi:[1,1]' % (vr(tq + q, 2), vr(K0 + q, 2), vr(SS + 2 * T, 2)))
    if T == 3:
        tab_rd(K0, 1, 'k0')
    for h in (0, 2):
        e('v_pk_mul_f32 %s, %s, %s' % (vr(tq + 8 + h, 2), vr(RR + 4 * T + h, 2), vr(tq + 4 + h, 2)))
    for h in (0, 2):
        e('v_pk_mul_f32 %s, %s, %s' % (vr(RR + 4 * T + h, 2), vr(RR + 4 * T + h, 2), vr(tq + h, 2)))
    for h in (0, 2):
        e('v_pk_fma_f32 %s, %s, %s, %s %s' % (vr(RR + 4 * T + h, 2), vr(II + 4 * T + h, 2), vr(tq + 4 + h, 2), vr(RR + 4 * T + h, 2), NEG1))
    for h in (0, 2):
        e('v_pk_fma_f32 %s, %s, %s, %s' % (vr(II + 4 * T + h, 2), vr(II + 4 * T + h, 2), vr(tq + h, 2), vr(tq + 8 + h, 2)))
tab_rd(tq, 2, 'k2')
tab_rd(tq + 8, 4, 'k3')
A.wait_lg('k1')
for T in range(1, 4):
    pk_cfma4(RR + 4 * T, II + 4 * T, RR + 4 * T - 4, II + 4 * T - 4, K1, RR + 4 * T, II + 4 * T)
tab_rd(K1, 8, 'k1')
cur = (RR + 12, II + 12)
L64, L512, P128, S0 = K0, K0 + 2, K0 + 4, K0 + 6
for lv in range(4):
    k = [K0, tq, tq + 8, K1][lv]
    for part in range(2):
        for i in range(4):
            e('v_mov_b32_dpp %s, %s row_shr:%d row_mask:0xf bank_mask:0xf bound_ctrl:0' % (vr(SE + 4 * part + i), vr(cur[part] + i), 1 << lv))
    if lv in (0, 3):
        A.wait_lg(['k3', 'k3', 'k3', 'k1'][lv])
    pk_cfma4(SA, SA + 4, SE, SE + 4, k, cur[0], cur[1])
    cur = (SA, SA + 4)
    if lv == 0:
        for (dst, row, ad) in ((L64, R_L64, vTC), (L512, R_L512, vTC), (P128, 0, vTG)):
            for part in range(2):
                A.ds('ds_read_b32 %s, %s offset:%d' % (vr(dst + part), vr(ad), row * TROW + part * 128), 'kc')
auto(False)
e('s_mov_b32 exec_lo, 0x80008000')
e('s_mov_b32 exec_hi, 0x80008000')
A.ds('ds_write_b128 %s, %s' % (vr(vCR), vr(SA, 4)), 'sx')
A.ds('ds_write_b128 %s, %s offset:64' % (vr(vCR), vr(SA + 4, 4)), 'sx')
e('s_mov_b64 exec, -1')
GR = tq + 12
for part in range(2):
    for i in range(4):
        e('v_mov_b32_dpp %s, %s row_shr:1 row_mask:0xf bank_mask:0xf bound_ctrl:0' % (vr(SE + 4 * part + i), vr(SA + 4 * part + i)))
e('v_mov_b32 %s, %s' % (vr(GR + 2), sr(sTAG)))
e('v_mov_b32 %s, %s' % (vr(GR + 3), sr(sTAG)))
A.wait_lg0()
e('s_barrier')
A.ds('ds_read2_b32 %s, %s offset0:160 offset1:176' % (vr(S0, 2), vr(vSXR)), 's0')
A.ds('ds_read2_b32 %s, %s offset0:0 offset1:16' % (vr(GR, 2), vr(vSXR)), 's0')
DQ.open.add('sx')
print('DQ left at Spub', len(DQ.q))
lab = newlab('np')
S('s_cmp_eq_u32 %s, 0', sTH)
e('s_cbranch_scc1 %s' % lab)
e('s_waitcnt lgkmcnt(0)')
cfma(GR, GR + 1, S0, S0 + 1, L64, L64 + 1, GR, GR + 1)
e('s_mov_b64 exec, 0xffff')
A.vmem('buffer_store_dwordx4 %s, %s, %s, %s offen sc1' % (vr(GR, 4), vr(vL16), sr(dWS, 4), sr(sSGO)), 'S', opt=True)
e('s_mov_b64 exec, -1')
A.label(lab)
stamp('Spub')
auto(True)

vQ = 152
vPD = vWT
def lb_issue():
    for i in range(4):
        A.vmem('buffer_load_dwordx4 %s, %s, %s, %s offen sc1' % (vr(vQ + 4 * i, 4), vr(vPA + i), sr(dWS, 4), sr(sSG)), 'lb')
def lb_check():
    for i in range(4):
        e('v_xor_b32 %s, %s, %s' % (vr(vQ + 4 * i + 3), sr(sTAG), vr(vQ + 4 * i + 2)))
    for i in range(4):
        e('v_cndmask_b32 %s, 0, %s, %s' % (vr(vQ + 4 * i + 3), vr(vQ + 4 * i + 3), sr(sMSK[i], 2)))
    e('v_or3_b32 %s, %s, %s, %s' % (vr(vQ + 3), vr(vQ + 3), vr(vQ + 7), vr(vQ + 11)))
    e('v_or_b32 %s, %s, %s' % (vr(vQ + 3), vr(vQ + 3), vr(vQ + 15)))
    e('v_cmp_ne_u32 vcc, 0, %s' % vr(vQ + 3))
def poll(tag, so):
    return lambda: A.vmem('buffer_load_dword %s, %s, %s, %s offen sc1' % (vr(vPD), vr(vPF), sr(dWS, 4), sr(so)), tag)
def p_check():
    e('v_cmp_ne_u32 vcc, %s, %s' % (sr(sTAG), vr(vPD)))
pa_issue, pb_issue = poll('pa', sPA), poll('pb', sPB)
def lbp(k):
    if k == 0:
        print('DQ left at the first HM store', len(DQ.q))
        DQ.flush()
    if OPT['LBPOS'] == k:
        lb_issue()
for i, v in enumerate((2, 0, 1)):
    gelu_tile(v, 'HM', lambda hh: lbp(2 * i + hh))
stamp('gelu')
auto(False)
lbp(6)
KP = [tq, tq + 8, CS, CS + 8]
tab_rd(K1, 0, 'kp', vTI)
for T, row in enumerate((R_L1, R_L2, R_L3, 1)):
    tab_rd(KP[T], row, 'kp')
NR, RING = 22, 152
LD, MF = [], []
for (t, s0, s1) in ((0, 0, 11), (1, 0, OPT['NB1']), (0, 11, 19), (1, OPT['NB1'], 19)):
    tl = OPT['TL%d' % t] if s1 == 19 else 0
    for s in range(s0, s1 - tl):
        for hh in range(2):
            MF += [(len(LD), 0), (len(LD), 1)]
            LD.append((t, s, hh))
    for hh in range(2):
        for dh in range(2):
            MF += [(len(LD) + k, dh) for k in range(tl)]
        LD += [(t, s, hh) for s in range(s1 - tl, s1)]
FS = LD.index((0, 11, 0))
hf = [0]
cur = [None, 0]
def hload():
    f = hf[0]
    t, s, hh = LD[f]
    n = 3
    if f == FS - OPT['PBD']:
        pb_issue()
        n += 2
    if f == FS:
        A.wait_vm('pb')
        retry_loop('pb', pb_issue, p_check, 61)
        stamp('pbok')
        n += 3
    base = (sH2 if t else sH1) if s < 11 else (sP2 if t else sP1)
    off = (TOFF[s] if s < 11 else s - 11) * 2048 + hh * 1024
    if off < 4096:
        so = base
    else:
        so = sHC
        if cur[0] != base or not 0 <= off - cur[1] < 4096:
            cur[0], cur[1] = base, off
            S('s_add_u32 %s, %s, %s', sHC, base, str(off))
            n += 1
        off -= cur[1]
    A.vmem('buffer_load_dwordx4 %s, %s, %s, %s offen offset:%d%s' % (ar(RING + 4 * (f % NR), 4), vr(vL16), sr(dWS, 4), sr(so), off, '' if OPT['X'] & 16 else ' sc1'), 'h%d' % f)
    hf[0] += 1
    return n

RD, RES, PXR, pT, TB = 128, 192, 208, 224, 240
vOO, vRW, vRR, vRR2 = vGO, vCW, vCR, vSXR
TILE = 64 * 272
AD, vCA = 32, 40
def xw_block(k):
    if OPT['XWP'] != k:
        return
    S('s_lshl_b32 %s, %s, 11', sT0, sW)
    S('s_add_u32 %s, %s, %s', sT0, sT0, str(PE))
    S('s_add_u32 %s, %s, %s', sT1, sME, str(2 * SLOT))
    for i, sb in enumerate((sT0, sM8, sME, sT1)):
        e('v_add_u32 %s, %s, %s' % (vr(AD + 2 * i), sr(sb), vr(vTRL)))
        e('v_xor_b32 %s, 64, %s' % (vr(AD + 2 * i + 1), vr(AD + 2 * i)))
    e('v_bfe_u32 %s, %s, 1, 3' % (vr(vCA), vr(vLANE)))
    e('v_xor_b32 %s, %s, %s' % (vr(vCA), vr(vCA), vr(vHI5)))
    e('v_lshlrev_b32 %s, 4, %s' % (vr(vCA), vr(vCA)))
    e('v_lshl_add_u32 %s, %s, 7, %s' % (vr(vCA), vr(vLO5), vr(vCA)))
    S('s_add_u32 %s, %s, %s', sT0, sM8, str(2 * SLOT))
    e('v_add_u32 %s, %s, %s' % (vr(vCA), sr(sT0), vr(vCA)))
    for sub in range(1, 4):
        e('v_xor_b32 %s, %d, %s' % (vr(vCA + sub), 32 * sub, vr(vCA)))
    A.wait_vm('W')
    for st in range(11):
        for dh in range(2):
            for half in range(2):
                if st == 0:
                    ad, off = AD, 0
                elif st <= 8:
                    ad, off = AD + 2, ((st - 1) // 4) * SLOT + ((st - 1) % 4) * 2048
                else:
                    ad, off = AD + 4 + 2 * (st - 9), 0
                A.ds('ds_read_b64_tr_b16 %s, %s offset:%d' % (ar(8 * st + 4 * dh + 2 * half, 2), vr(ad + dh), off + half * 512), 'xw')
    for part in range(2):
        for sub in range(4):
            for dh in range(2):
                A.ds('ds_read_b128 %s, %s offset:%d' % (ar(8 * (11 + 2 * sub + part) + 4 * dh, 4), vr(vCA + sub), part * SLOT + dh * 4096), 'xw')
xw_block(0)
def fap(k):
    if OPT['FAP'] == k:
        A.wait_vm('HM')
        stamp('HMdone')
        flag(WS_FA, 'fa')
        if OPT['PTOUCH'] & 1:
            e('v_lshlrev_b32 %s, 7, %s' % (vr(vCT), vr(vLO4)))
            e('v_lshl_add_u32 %s, %s, 12, %s' % (vr(vCT), vr(vG), vr(vCT)))
            S('s_mov_b32 exec_hi, %s', sF1)
            A.vmem('buffer_load_dword %s, %s, %s, %s offen sc1' % (vr(vSCR), vr(vCT), sr(dWS, 4), sr(sHM)), 'touch')
            e('s_mov_b32 exec_hi, -1')
        stamp('fa')
A.wait_vm('lb')
stamp('lb1')
fap(0)
retry_loop('lb', lb_issue, lb_check, 59)
stamp('Sgot')
for i in range(4):
    e('v_cndmask_b32 %s, 0, %s, %s' % (vr(vQ + 4 * i), vr(vQ + 4 * i), sr(sMSK[i], 2)))
    e('v_cndmask_b32 %s, 0, %s, %s' % (vr(vQ + 4 * i + 1), vr(vQ + 4 * i + 1), sr(sMSK[i], 2)))
for i in (2, 1, 0):
    cfma(vQ + 4 * i, vQ + 4 * i + 1, vQ + 4 * i + 4, vQ + 4 * i + 5, L512, L512 + 1, vQ + 4 * i, vQ + 4 * i + 1)
hr, hi_, h2, h3 = vQ + 4, vQ + 5, vQ + 6, vQ + 7
cmul(hr, hi_, vQ, vQ + 1, P128, P128 + 1)
for sw in ('v_permlane16_swap_b32', 'v_permlane32_swap_b32'):
    e('v_mov_b32 %s, %s' % (vr(h2), vr(hr)))
    e('v_mov_b32 %s, %s' % (vr(h3), vr(hi_)))
    e('%s %s, %s' % (sw, vr(hr), vr(h2)))
    e('%s %s, %s' % (sw, vr(hi_), vr(h3)))
    e('v_add_f32 %s, %s, %s' % (vr(hr), vr(hr), vr(h2)))
    e('v_add_f32 %s, %s, %s' % (vr(hi_), vr(hi_), vr(h3)))
auto(False)
A.wait_lg('s0')
lab = newlab('t0')
S('s_cmp_eq_u32 %s, 0', sTH)
e('s_cbranch_scc1 %s' % lab)
cfma(S0, S0 + 1, hr, hi_, L64, L64 + 1, S0, S0 + 1)
e('v_mov_b32 %s, %s' % (vr(hr), vr(S0)))
e('v_mov_b32 %s, %s' % (vr(hi_), vr(S0 + 1)))
A.label(lab)
A.ds('ds_write2_b32 %s, %s, %s offset0:32 offset1:48' % (vr(vSXW), vr(hr), vr(hi_)), 'cy')
A.ds('ds_read_b128 %s, %s offset:128' % (vr(SA, 4), vr(vCR)), 'cy')
A.ds('ds_read_b128 %s, %s offset:192' % (vr(SA + 4, 4), vr(vCR)), 'cy')
fap(1)
A.wait_lg0()
pk_cfma4(SE, SE + 4, SA, SA + 4, K1, SE, SE + 4)
for hh in range(2):
    for T in (2 * hh, 2 * hh + 1):
        pk_cfma4(RR + 4 * T, II + 4 * T, SE, SE + 4, KP[T], RR + 4 * T, II + 4 * T)
    for part in range(2):
        o = vQ + 8 * hh + 4 * part
        b = ACC + 16 * part + 8 * hh
        ng = '-' if part else ''
        for i in range(4):
            e('v_cvt_pk_bf16_f32 %s, %s%s, %s%s' % (vr(o + i), ng, vr(b + 2 * i), ng, vr(b + 2 * i + 1)))
    if hh == 0:
        fap(2)
    for part in range(2):
        o = vQ + 8 * hh + 4 * part
        e('v_permlane16_swap_b32 %s, %s' % (vr(o), vr(o + 2)))
        e('v_permlane16_swap_b32 %s, %s' % (vr(o + 1), vr(o + 3)))
        A.vmem('buffer_store_dwordx4 %s, %s, %s, %s offen offset:%d sc1' % (vr(o, 4), vr(vL16), sr(dWS, 4), sr(sHS), 2048 * part + 1024 * hh), 'HS')
stamp('epi')

xw_block(1)
eX, eS, eD = 128, 136, 140
fD, fB, fU, fM = 144, 148, 152, 156
def res_pre():
    A.wait_vm('res')
    for i in range(16):
        e('v_accvgpr_read_b32 %s, a%d' % (vr(eX + [0, 1, 2, 3, 4, 5, 6, 7, 12, 13, 14, 15, 8, 9, 10, 11][i]), 240 + i))
    for (dst, src) in ((fD, eD), (fB, eD + 2)):
        for hh in range(2):
            e('v_lshlrev_b32 %s, 16, %s' % (vr(dst + 2 * hh), vr(src + hh)))
            e('v_and_b32 %s, 0xffff0000, %s' % (vr(dst + 2 * hh + 1), vr(src + hh)))
def res_q(q):
    r = RES + 4 * q
    e('v_and_b32 %s, 0xffff0000, %s' % (vr(fM + 1), vr(eS + q)))
    e('v_lshlrev_b32 %s, 16, %s' % (vr(fM), vr(eS + q)))
    e('v_rcp_f32 %s, %s' % (vr(fM + 1), vr(fM + 1)))
    for hh in range(2):
        e('v_lshlrev_b32 %s, 16, %s' % (vr(r + 2 * hh), vr(eX + 2 * q + hh)))
        e('v_and_b32 %s, 0xffff0000, %s' % (vr(r + 2 * hh + 1), vr(eX + 2 * q + hh)))
    def rnd4():
        e('v_cvt_pk_bf16_f32 %s, %s, %s' % (vr(fU + 1), vr(fU), vr(fU + 1)))
        e('v_cvt_pk_bf16_f32 %s, %s, %s' % (vr(fU + 3), vr(fU + 2), vr(fU + 3)))
        e('v_lshlrev_b32 %s, 16, %s' % (vr(fU), vr(fU + 1)))
        e('v_lshlrev_b32 %s, 16, %s' % (vr(fU + 2), vr(fU + 3)))
        e('v_and_b32 %s, 0xffff0000, %s' % (vr(fU + 1), vr(fU + 1)))
        e('v_and_b32 %s, 0xffff0000, %s' % (vr(fU + 3), vr(fU + 3)))
    for hh in range(2):
        e('v_pk_add_f32 %s, %s, %s op_sel:[0,0] op_sel_hi:[1,0] neg_lo:[0,1] neg_hi:[0,1]' % (vr(fU + 2 * hh, 2), vr(r + 2 * hh, 2), vr(fM, 2)))
    rnd4()
    for hh in range(2):
        e('v_pk_mul_f32 %s, %s, %s op_sel:[0,1] op_sel_hi:[1,1]' % (vr(fU + 2 * hh, 2), vr(fU + 2 * hh, 2), vr(fM, 2)))
    rnd4()
    for hh in range(2):
        e('v_pk_mul_f32 %s, %s, %s' % (vr(fU + 2 * hh, 2), vr(fU + 2 * hh, 2), vr(fD + 2 * hh, 2)))
    rnd4()
    for hh in range(2):
        e('v_pk_add_f32 %s, %s, %s' % (vr(r + 2 * hh, 2), vr(r + 2 * hh, 2), vr(fU + 2 * hh, 2)))
    for hh in range(2):
        e('v_pk_add_f32 %s, %s, %s' % (vr(r + 2 * hh, 2), vr(r + 2 * hh, 2), vr(fB + 2 * hh, 2)))

F2 = Q()
e('v_lshrrev_b32 %s, 3, %s' % (vr(vRR), vr(vLO4)))
e('v_lshlrev_b32 %s, 12, %s' % (vr(vRR), vr(vRR)))
e('v_lshl_add_u32 %s, %s, 8, %s' % (vr(vRR), vr(vHI5), vr(vRR)))
e('v_and_b32 %s, 0x17, %s' % (vr(vRR2), vr(vLANE)))
e('v_and_b32 %s, 7, %s' % (vr(vRW), vr(vLANE)))
e('v_add_u32 %s, %s, %s' % (vr(vRR2), vr(vRR2), vr(vRW)))
e('v_lshl_add_u32 %s, %s, 3, %s' % (vr(vRR), vr(vRR2), vr(vRR)))
S('s_lshl_b32 %s, %s, 13', sT0, sTH)
S('s_lshl_b32 %s, %s, 11', sT1, sPH)
S('s_add_u32 %s, %s, %s', sT0, sT0, sT1)
e('v_add_u32 %s, %s, %s' % (vr(vRR), sr(sT0), vr(vRR)))
e('v_add_u32 %s, 0x10000, %s' % (vr(vRR2), vr(vRR)))
S('s_lshl_b32 m0, %s, 14', sW)
S('s_add_u32 %s, %s, %s', sP1, sH1, sSSM)
S('s_add_u32 %s, %s, %s', sP2, sH2, sSSM)
S('s_movk_i32 %s, 0xff', sBM)
for i in range(4):
    e('v_bfe_u32 %s, %s, %d, 8' % (vr(TB + i), vr(vTAG), 8 * i))
if OPT['RQ'] == -1:
    pa_issue()
res_pre()
A.wait_lg0()
stamp('xw')
e('s_barrier')
stamp('bx')
for q in range(5):
    if q == OPT['RQ']:
        pa_issue()
    if q < 4:
        res_q(q)
e('v_lshlrev_b32 %s, 1, %s' % (vr(vOO), vr(vXO)))
stamp('res')
A.wait_vm('HS')
stamp('HSdone')
flag(WS_FB, 'fb')
def hs_touch():
    e('v_lshlrev_b32 %s, 5, %s' % (vr(vCT), vr(vTM)))
    e('s_mov_b32 exec_hi, 0')
    A.vmem('buffer_load_dword %s, %s, %s, %s offen sc1' % (vr(vSCR), vr(vCT), sr(dWS, 4), sr(sHS)), 'touch')
    e('s_mov_b32 exec_hi, -1')
if OPT['PTOUCH'] & 2:
    hs_touch()
stamp('fb')
A.wait_vm('pa')
stamp('pa1')
retry_loop('pa', pa_issue, p_check, 60)
stamp('paok')
for i in range(OPT['NPRE']):
    hload()
if OPT['PTOUCH'] & 4:
    hs_touch()
e('v_lshrrev_b32 %s, 1, %s' % (vr(vPF), vr(vPF)))
assert OPT['NPRE'] <= FS - OPT['PBD']
M1 = 16320
def red_write(t, k):
    A.ds('ds_write_addtid_b32 %s offset:%d' % (vr(64 * t + k), t * (65536 - M1) + 256 * k), 'rw')
def red_read(t, q, part):
    A.ds('ds_read_b128 %s, %s offset:%d' % (vr(RD + 16 * q + 4 * part, 4), vr(vRR2 if t else vRR), part * 16384 + (q >> 1) * 1024 + (q & 1) * 512), 'rr%d' % q)
def px_issue():
    for k in range(4):
        A.vmem('buffer_load_dwordx4 %s, %s, %s, %s offen offset:%d sc1' % (vr(PXR + 4 * k, 4), vr(vL16), sr(dWS, 4), sr(sPX), k * 1024), 'px')
def px_check():
    for k in range(16):
        e('v_xor_b32 %s, %s, %s' % (vr(PXR + k), vr(TB + (k & 3)), vr(PXR + k)))
    for k in range(4):
        e('v_or3_b32 %s, %s, %s, %s' % (vr(pT + k), vr(PXR + 4 * k), vr(PXR + 4 * k + 1), vr(PXR + 4 * k + 2)))
    e('v_or3_b32 %s, %s, %s, %s' % (vr(pT), vr(pT), vr(PXR + 3), vr(PXR + 7)))
    e('v_or3_b32 %s, %s, %s, %s' % (vr(pT + 1), vr(pT + 1), vr(PXR + 11), vr(PXR + 15)))
    e('v_or3_b32 %s, %s, %s, %s' % (vr(pT), vr(pT), vr(pT + 2), vr(pT + 3)))
    e('v_or_b32 %s, %s, %s' % (vr(pT), vr(pT), vr(pT + 1)))
    e('v_and_b32 %s, %s, %s' % (vr(pT), sr(sBM), vr(pT)))
    e('v_cmp_ne_u32 vcc, 0, %s' % vr(pT))
def al_issue(opt=True):
    e('v_lshlrev_b32 v8, 7, %s' % vr(vLANE))
    for i in range(4):
        S('s_mov_b32 %s, %s', sT0, hex(WS_G + 8192 * i))
        A.vmem('buffer_load_dword v%d, v8, %s, %s offen offset:12 sc1' % (i, sr(dWS, 4), sr(sT0)), 'alp', opt=opt)
def al_check():
    for i in range(4):
        e('v_xor_b32 v%d, %s, v%d' % (4 + i, sr(sTAG), i))
    e('v_or3_b32 v4, v4, v5, v6')
    e('v_or_b32 v4, v4, v7')
    e('v_cmp_ne_u32 vcc, 0, v4')

left = [2] * 76
last = {}
for n, (f, dh) in enumerate(MF):
    last[(LD[f][0], LD[f][2], dh)] = n
clk = [0, -4 * OPT['HINT']]
seen = set()
for n, (f, dh) in enumerate(MF):
    t, s, hh = LD[f]
    for (tq_, hq, dq), m in sorted(last.items()):
        if n == m + 2:
            o = Ops()
            if (tq_, hq, dq) == (1, 0, 0):
                o.s('s_add_u32 m0, m0, %d' % M1)
            for k in range(16):
                o.f(lambda k=k, tq_=tq_, hq=hq, dq=dq: red_write(tq_, 32 * hq + 16 * dq + k), OPT['WC'])
            F2.add(o)
            if (tq_, hq, dq) != (0, 1, 1):
                continue
            o = Ops()
            def bar1():
                A.wait_lg0()
                e('s_barrier')
                stamp('bar1')
            o.f(lambda: None, 8)
            o.f(bar1, 4)
            for q in range(4):
                for part in range(4):
                    o.f(lambda q=q, part=part: red_read(0, q, part), 2)
            for q in range(4):
                o.f(lambda q=q: A.wait_lg('rr%d' % q))
                b = RD + 16 * q
                for i in range(4):
                    o.v('v_add_f32 %s, %s, %s' % (vr(b + i), vr(b + i), vr(b + 4 + i)))
                for i in range(4):
                    o.v('v_add_f32 %s, %s, %s' % (vr(b + 8 + i), vr(b + 8 + i), vr(b + 12 + i)))
                for i in range(4):
                    o.v('v_add_f32 %s, %s, %s' % (vr(b + i), vr(b + i), vr(b + 8 + i)))
                for i in range(4):
                    o.v('v_bfi_b32 %s, %s, %s, %s' % (vr(b + i), sr(sBM), vr(TB + i), vr(b + i)))
                o.f(lambda q=q, b=b: A.vmem('buffer_store_dwordx4 %s, %s, %s, %s offen offset:%d sc1' % (vr(b, 4), vr(vL16), sr(dWS, 4), sr(sPX), q * 1024), 'pxs'), 4)
            o.s('s_xor_b32 %s, %s, 0x4000', sPX, sPX)
            o.f(lambda: (stamp('pxs'), seen.add('pxs'), print('px stores done at step', clk[2] / 4, 'loads issued', hf[0])), 0)
            F2.add(o)
    clk[2:] = [n]
    if n == 4 * OPT['PXPOS']:
        assert 'pxs' in seen
        px_issue()
        lab = newlab('nal')
        S('s_cmp_lg_u32 %s, 3', sGW)
        e('s_cbranch_scc1 %s' % lab)
        al_issue()
        A.label(lab)
    u = 0
    if f not in seen:
        assert hf[0] > f
        A.wait_vm('h%d' % f)
        seen.add(f)
    if n // 4 in HST and n % 4 == 0:
        stamp('h%d' % (n // 4))
    acc = vr(64 * t + 32 * hh + 16 * dh, 16)
    if not OPT['X'] & 8:
        e('v_mfma_f32_32x32x16_bf16 %s, %s, %s, %s' % (acc, ar(RING + 4 * (f % NR), 4), ar(8 * s + 4 * dh, 4), acc if s else '0'))
    left[f] -= 1
    if n + 1 < len(MF) and MF[n + 1][0] not in seen:
        u = 1
    if hf[0] < 76 and (hf[0] < NR or left[hf[0] - NR] == 0) and clk[0] >= clk[1]:
        u += hload()
        clk[1] += OPT['HINT']
    while F2.ready() and (u + F2.cost() <= OPT['RPOP'] or u <= 1):
        u += F2.cost()
        F2.pop1()
    clk[0] += max(32, 8 + 4 * u)
assert hf[0] == 76
stamp('mfma2')
print('F2 left', len(F2.q))
F2.flush()
for key, m in sorted(last.items()):
    if m + 2 >= len(MF):
        assert key != (1, 0, 0)
        for k in range(16):
            red_write(1, 32 * key[1] + 16 * key[2] + k)
A.wait_lg0()
e('s_barrier')
stamp('bar2')
for q in range(4):
    for part in range(4):
        red_read(1, q, part)
A.wait_vm('px')
retry_loop('px', px_issue, px_check, 62)
stamp('pxok')
for v in range(0, 16, 2):
    e('v_pk_add_f32 %s, %s, %s' % (vr(RES + v, 2), vr(RES + v, 2), vr(PXR + v, 2)))
for q in range(4):
    A.wait_lg('rr%d' % q)
    b, r = RD + 16 * q, RES + 4 * q
    for h in (0, 2):
        e('v_pk_add_f32 %s, %s, %s' % (vr(b + h, 2), vr(b + h, 2), vr(b + 4 + h, 2)))
        e('v_pk_add_f32 %s, %s, %s' % (vr(b + 8 + h, 2), vr(b + 8 + h, 2), vr(b + 12 + h, 2)))
    for h in (0, 2):
        e('v_pk_add_f32 %s, %s, %s' % (vr(r + h, 2), vr(r + h, 2), vr(b + h, 2)))
    for h in (0, 2):
        e('v_pk_add_f32 %s, %s, %s' % (vr(r + h, 2), vr(r + h, 2), vr(b + 8 + h, 2)))
    S('s_mov_b32 %s, %s', sT0, str(QR[q] * 8192))
    A.vmem('buffer_store_dwordx4 %s, %s, %s, %s offen%s' % (vr(r, 4), vr(vOO), sr(dO, 4), sr(sT0), ['', ' sc1', ' nt', ' sc0 sc1'][OPT['OUTSC']]), 'out')
lab = newlab('nep')
S('s_cmp_lg_u32 %s, 3', sGW)
e('s_cbranch_scc1 %s' % lab)
A.wait_vm('alp')
retry_loop('al', al_issue, al_check, 63)
one_lane_store(8, '0', 'ep')
A.label(lab)
if PROF:
    stamp('stored')
    e('s_waitcnt vmcnt(0)')
    stamp('drained')
    stamp('rt1', True)
    A.wait_lg0()
    e('v_lshlrev_b32 v16, 2, %s' % vr(vLANE))
    S('s_lshl_b32 %s, %s, 8', sT0, sGW)
    S('s_add_u32 %s, %s, %s', sT0, sT0, hex(WS_PROF))
    e('buffer_store_dword %s, v16, %s, %s offen' % (vr(vSTAMP), sr(dWS, 4), sr(sT0)))
    json.dump(SNAMES, open(OUT + '.names', 'w'))
A.label('L_end')
e('s_endpgm')

body, nops = hazard_pass(A.lines)
head = open('cdna_kernels/%s.s.ref' % NAME).read().split('; Override launch')[0]
txt = head + '; @launch grid=(256,1,1) block=(256,1,1) lds=%d\n' % LDS_BYTES
txt += '''.amdgcn_target "amdgcn-amd-amdhsa--gfx950"
.text
.globl %s_kernel
.p2align 8
.type %s_kernel,@function
%s_kernel:
''' % (NAME, NAME, NAME)
txt += '\n'.join(body) + '\n'
txt += '''.section .rodata,"a"
.p2align 6
.amdhsa_kernel %s_kernel
  .amdhsa_next_free_vgpr 512
  .amdhsa_next_free_sgpr 102
  .amdhsa_accum_offset 256
  .amdhsa_group_segment_fixed_size 0
  .amdhsa_kernarg_size 136
  .amdhsa_user_sgpr_count 2
  .amdhsa_user_sgpr_kernarg_segment_ptr 1
  .amdhsa_system_sgpr_workgroup_id_x 1
.end_amdhsa_kernel
''' % NAME
open(OUT, 'w').write(txt)
print('wrote', OUT, 'lines', len(body), 'nops', nops)
```

```python
import sys, math, struct, json
from asmlib import *

NAME = 'parallel_sum__ssm_conv_s5__mixer_channel_mlp__prompt'
DBGT = '--dbgt' in sys.argv
PROF = '--prof' in sys.argv or DBGT
OUT = [a for a in sys.argv[1:] if not a.startswith('--') and '=' not in a]
OUT = OUT[0] if OUT else 'cdna_kernels/%s.s' % NAME
OPT = dict(ROT=9, DINT=72, LBPOS=6, OUTSC=0, PXPOS=39, RPOP=8, HINT=60, PTOUCH=0, DCOST=2, D1A=0, BUD0=2, NB0=4, X=0,
           EINT=100, NB1=3, PBD=12, SDG=5, NPRE=10, WPF=3, WT0=9, STL=4, RQ=3,
           PB=1, PINT=20, SPF=0, D1B=7, B1P=2, B1G=3, XS=0, TL0=6, TL1=6, WC=2, FAP=0, XWP=0, PXS=0, CJ0=6, WG0=0, WNT=0, FL0=0, NTX=-1, NTW=-1, NTS=0, WPK=0, WINT=92, WCL=4, SMP=0, STD=0)
for a in sys.argv[1:]:
    if '=' in a:
        k, v = a.split('=')
        assert k in OPT, k
        OPT[k] = int(v)

def f2u(x):
    return '0x%08x' % struct.unpack('<I', struct.pack('<f', x))[0]

WS_AL = 0x1000
WS_G = 0x8000
WS_SG = 0x10000
WS_PROF = 0x40000
WS_FA = 0x80000
WS_FB = 0xA0000
WS_FC = 0xC0000
WS_PX = 0x100000
WS_H = 0x800000
WS_SIZE = 0x1200000
HR = 152 * 2048

SLOT, PIECE = 36864, 9216
TAB, TROW = 147456, 272
CSX = TAB + 25 * TROW
PE = 155648
assert CSX + 1280 <= PE and CSX % 16 == 0
LDS_BYTES = 160 * 1024

sW, sRB, sJ, sKH, sC, sRBL, sTAG, sGW, sT2, sT3, sPC = 4, 5, 6, 7, 8, 9, 10, 11, 12, 13, 14
pX, pLRE, pLIM, pBRE, pBIM, pCRE, pCIM, pLDT, pDSK, pBX, pW1, pB1, pW2, pB2, pOUT, pDBG, pWS = [16 + 2 * i for i in range(17)]
sPERM, sCNT = 50, 51
dX, dWS, dB, dW1, dW2, dO = 52, 56, 60, 64, 68, 72
sM0, sSX, sSW, sOFF, sM8, sME, sWS, sBM, sU0, sCG, sT0, sT1 = range(76, 88)
sCO = sOFF
sMSK = [88, 90, 92, 94]
sTH, sPH, sJT = 34, 35, 46
sD0, sSG, sSGO, sHM, sHS, sFL, sPA, sPB, sH1, sH2 = range(16, 26)
sSSM, sGR, sPX, sP1, sP2, sHC, sF0, sF1 = 30, 31, 32, 33, 36, 37, 38, 39

vLANE, vL16, vLO4, vG, vLO5, vHI5, vSTAMP, vSCR = 255, 254, 253, 252, 251, 250, 249, 248

A = Asm()
AUTO = dict(on=False, t=0, nxt=0, busy=False, any=False, int=OPT['EINT'])
_e = A.e
def e_time(s):
    mn = s.split()[0]
    AUTO['t'] += 8 if mn in TRANS else 12 if mn.startswith(('buffer_', 'ds_write')) else 4
    _e(s)
A.e = e_time
def e(s):
    A.e(s)
    ok = s.startswith('v_') or (AUTO['any'] and s.startswith('s_') and not s.startswith(('s_cmp', 's_bitcmp', 's_memtime', 's_wait')))
    if AUTO['on'] and not AUTO['busy'] and ok and DQ.ready() and AUTO['t'] >= AUTO['nxt']:
        AUTO['busy'] = True
        AUTO['nxt'] = max(AUTO['nxt'], AUTO['t'] - 2 * AUTO['int']) + AUTO['int']
        DQ.popD()
        AUTO['busy'] = False
def auto(on):
    AUTO['on'] = on
EXPECT = dict([('st%d' % v, 9) for v in range(8)] + [('stat', 4), ('W', 38), ('b1', 5), ('srow', 2), ('lb', 4), ('px', 4), ('res', 8)])
ISSUED = {}
_vm, _wv = A.vmem, A.wait_vm
def vm_hook(s, tag='x', opt=False):
    ISSUED[tag] = ISSUED.get(tag, 0) + 1
    if OPT['X'] & 1 and ' lds' in s and tag not in ('st0', 'st1'):
        return
    _vm(s, tag, opt)
def wv_hook(tags):
    for t in ([tags] if isinstance(tags, str) else tags):
        assert ISSUED.get(t, 0) >= EXPECT.get(t, 1), (t, ISSUED.get(t, 0))
    _wv(tags)
A.vmem, A.wait_vm = vm_hook, wv_hook
DSN = {}
_ds = A.ds
def ds_hook(s, tag='x'):
    DSN[tag] = DSN.get(tag, 0) + 1
    if OPT['X'] & 4 and tag[0] in 'xa' and tag[1].isdigit():
        return
    if OPT['X'] & 32 and tag == 'csw' or OPT['X'] & 64 and tag == 'cso':
        return
    _ds(s, tag)
A.ds = ds_hook
SNAMES = {}
import os
SKIP = os.environ.get('SKIP', 'b1,b3,fa,fb,d0,tab').split(',')
HST = [int(x) for x in os.environ.get('HST', '0,6,12,19,26,32').split(',')]
pending = []
SPAIRS = [96, 98, 100]
def flush_stamps():
    for (i, p) in pending:
        e('v_writelane_b32 %s, %s, %d' % (vr(vSTAMP), sr(p), i))
    del pending[:]
_wl0 = A.wait_lg0
def wait_lg0_hook():
    _wl0()
    flush_stamps()
A.wait_lg0 = wait_lg0_hook
DT = os.environ.get('DT', 'rt0,t0,karg,lam,st0,a3,kloop,Spub,gelu,Sgot,epi,paok,pbok,mfma2,pxok,drained').split(',')
def stamp(name, real=False):
    if not PROF or name in SKIP:
        return
    if DBGT:
        if name not in DT:
            return
        real = True
    assert name not in SNAMES
    SNAMES[name] = len(SNAMES)
    i = SNAMES[name]
    assert i < 57
    if len(pending) == len(SPAIRS):
        A.wait_lg0()
    used = [p for (_, p) in pending]
    p = [q for q in SPAIRS if q not in used][0]
    e('%s %s' % ('s_memrealtime' if real else 's_memtime', sr(p, 2)))
    pending.append((i, p))
def count(slot):
    if PROF:
        e('v_writelane_b32 %s, %s, %d' % (vr(vSTAMP), sr(sCNT), slot))

def srd(d, p, size):
    e('s_mov_b32 %s, %s' % (sr(d), sr(p)))
    e('s_mov_b32 %s, %s' % (sr(d + 1), sr(p + 1)))
    e('s_mov_b32 %s, 0x%x' % (sr(d + 2), size))
    e('s_mov_b32 %s, 0x20000' % sr(d + 3))

def cmul(dr, di, ar_, ai, br, bi):
    e('v_mul_f32 %s, %s, %s' % (vr(dr), vr(ar_), vr(br)))
    e('v_mul_f32 %s, %s, %s' % (vr(di), vr(ar_), vr(bi)))
    e('v_fma_f32 %s, -%s, %s, %s' % (vr(dr), vr(ai), vr(bi), vr(dr)))
    e('v_fma_f32 %s, %s, %s, %s' % (vr(di), vr(ai), vr(br), vr(di)))

def cfma(dr, di, ar_, ai, br, bi, cr, ci):
    e('v_fma_f32 %s, %s, %s, %s' % (vr(dr), vr(ar_), vr(br), vr(cr)))
    e('v_fma_f32 %s, %s, %s, %s' % (vr(di), vr(ar_), vr(bi), vr(ci)))
    e('v_fma_f32 %s, -%s, %s, %s' % (vr(dr), vr(ai), vr(bi), vr(dr)))
    e('v_fma_f32 %s, %s, %s, %s' % (vr(di), vr(ai), vr(br), vr(di)))

NEG1 = 'neg_lo:[0,1,0] neg_hi:[0,1,0]'
def pk_cfma4(dr, di, ar_, ai, k, cr, ci):
    for h in (0, 2):
        e('v_pk_fma_f32 %s, %s, %s, %s' % (vr(dr + h, 2), vr(ar_ + h, 2), vr(k + h, 2), vr(cr + h, 2)))
    for h in (0, 2):
        e('v_pk_fma_f32 %s, %s, %s, %s' % (vr(di + h, 2), vr(ai + h, 2), vr(k + h, 2), vr(ci + h, 2)))
    for h in (0, 2):
        e('v_pk_fma_f32 %s, %s, %s, %s %s' % (vr(dr + h, 2), vr(ai + h, 2), vr(k + 4 + h, 2), vr(dr + h, 2), NEG1))
    for h in (0, 2):
        e('v_pk_fma_f32 %s, %s, %s, %s' % (vr(di + h, 2), vr(ar_ + h, 2), vr(k + 4 + h, 2), vr(di + h, 2)))

labn = [0]
def newlab(s):
    labn[0] += 1
    return 'L_%s_%d' % (s, labn[0])

def S(fmt, *a):
    e(fmt % tuple(sr(x) if isinstance(x, int) else x for x in a))

def retry_loop(name, issue, check, slot, first=True):
    lo, ld = newlab(name + 'l'), newlab(name + 'd')
    if first:
        check()
    if PROF:
        S('s_mov_b32 %s, 0', sCNT)
    e('s_cbranch_vccz %s' % ld)
    S('s_mov_b32 %s, 0', sCNT)
    A.label(lo)
    sv = list(A.vm)
    issue()
    e('s_waitcnt vmcnt(0)')
    A.vm = sv
    check()
    S('s_add_u32 %s, %s, 1', sCNT, sCNT)
    e('s_cbranch_vccz %s' % ld)
    S('s_cmp_le_u32 %s, 0x20000', sCNT)
    e('s_cbranch_scc1 %s' % lo)
    A.label(ld)
    count(slot)

def one_lane_store(vt, soff, tag, opt=False, sc=' sc1'):
    e('v_mov_b32 %s, %s' % (vr(vt), sr(sTAG)))
    e('v_mov_b32 %s, 0' % vr(vt + 1))
    e('s_mov_b64 exec, 1')
    A.vmem('buffer_store_dword %s, %s, %s, %s offen%s' % (vr(vt), vr(vt + 1), sr(dWS, 4), soff, sc), tag, opt=opt)
    e('s_mov_b64 exec, -1')
def flag(off, tag):
    S('s_add_u32 %s, %s, %s', sT0, sFL, hex(off))
    e('s_mov_b32 exec_hi, 0')
    A.vmem('buffer_store_dword %s, %s, %s, %s offen sc1' % (vr(vTAG), vr(vTM), sr(dWS, 4), sr(sT0)), tag)
    e('s_mov_b32 exec_hi, -1')

class Q:
    def __init__(self):
        self.q = []
        self.open = set([None])
    def add(self, ops, gate=None):
        self.q += [(c, f, gate) for (c, f) in ops]
    def ready(self):
        return bool(self.q) and self.q[0][2] in self.open
    def cost(self):
        return self.q[0][0]
    def pop1(self):
        self.q.pop(0)[1]()
    def popD(self, n=1):
        while n > 0 and self.ready():
            if self.cost() == 'D':
                n -= 1
            self.pop1()
    def pop(self, n):
        while n > 0 and self.ready():
            c = self.cost()
            n -= 2 if c == 'D' else c
            self.pop1()
    def flush(self):
        while self.q:
            assert self.ready(), self.q[0][2]
            self.pop1()

class Ops(list):
    def v(self, s, c=1):
        self.append((c, lambda: e(s)))
    def s(self, fmt, *a):
        self.append((1, lambda: S(fmt, *a)))
    def f(self, fn, c=1):
        self.append((c, fn))

DQ = Q()
FQ = Q()
ACC, CS, XF, AF, ONE = 0, 80, 100, 132, 152
XA, BA, WA = 156, 160, 164
vX, vB, vW1, vW2 = 168, 170, 172, 175
B1, ST, SS, TMP = 180, 188, 204, 212
BU = TMP + 4
vTB, vTI, vTC, vTG, vSXW, vSXR, vCW, vCR, vPF, vTM, vXO, vGO = range(TMP + 16, TMP + 28)
vPA = TMP + 28
vSA, vTRL, vTAG = 177, 178, 179
vWT, vCT, vPW, vCO = 244, 245, 246, 247
sPM = 40
U0, U1 = 186, 187
SR = ST

e('s_cmp_ge_u32 s2, 256')
e('s_cbranch_scc1 L_end')
if PROF:
    e('v_mov_b32 %s, 0' % vr(vSTAMP))
    stamp('rt0', True)
    stamp('t0')
e('s_load_dwordx16 s[16:31], s[0:1], 0')
e('s_load_dwordx16 s[32:47], s[0:1], 64')
e('s_load_dwordx2 s[48:49], s[0:1], 128')
e('s_getpc_b64 %s' % sr(sPC, 2))
A.label('L_pc')
e('v_and_b32 %s, 63, v0' % vr(vLANE))
e('v_lshrrev_b32 v1, 6, v0')
e('v_lshlrev_b32 %s, 4, %s' % (vr(vL16), vr(vLANE)))
e('v_readfirstlane_b32 %s, v1' % sr(sW))
e('v_lshlrev_b32 v2, 7, v0')
e('v_min_u32 v2, L_end-L_pc, v2')
lab = newlab('npf')
e('s_cmp_ge_u32 s2, 16')
e('s_cbranch_scc1 %s' % lab)
A.vmem('global_load_dword %s, v2, %s' % (vr(vSCR), sr(sPC, 2)), 'pf', opt=True)
A.label(lab)
S('s_and_b32 %s, s2, 1', sKH)
S('s_lshr_b32 %s, s2, 6', sRBL)
S('s_bfe_u32 %s, s2, 0x30003', sC)
S('s_bfe_u32 s3, s2, 0x20001')
S('s_lshl2_add_u32 %s, s3, %s', sRB, sRBL)
S('s_lshl3_add_u32 %s, %s, %s', sJ, sKH, sC)
S('s_lshl2_add_u32 %s, s2, %s', sGW, sW)
if OPT['ROT'] == 0:
    S('s_mov_b32 %s, 0x76543210', sPERM)
elif OPT['ROT'] == 9:
    PT = [[0, 4, 1, 2, 3, 5, 6, 7], [1, 2, 5, 3, 0, 4, 6, 7], [2, 3, 0, 6, 1, 4, 5, 7], [3, 0, 1, 2, 7, 4, 5, 6]]
    PT = [hex(sum(x << (4 * i) for i, x in enumerate(p))) for p in PT]
    S('s_add_u32 %s, %s, %s', sT0, sRBL, sC)
    S('s_mov_b32 %s, %s', sPERM, PT[0])
    S('s_mov_b32 %s, %s', sT1, PT[2])
    S('s_bitcmp1_b32 %s, 0', sT0)
    S('s_cselect_b32 %s, %s, %s', sPERM, PT[1], sPERM)
    S('s_cselect_b32 %s, %s, %s', sT1, PT[3], sT1)
    S('s_bitcmp1_b32 %s, 1', sT0)
    S('s_cselect_b32 %s, %s, %s', sPERM, sT1, sPERM)
    S('s_add_u32 %s, s3, %s', sT1, sKH)
    S('s_bitcmp1_b32 %s, 0', sT1)
    S('s_cselect_b32 %s, 0x44444444, 0', sT1)
    S('s_xor_b32 %s, %s, %s', sPERM, sPERM, sT1)
elif OPT['ROT'] == 8:
    S('s_lshl1_add_u32 %s, %s, %s', sT0, sRBL, sC)
    S('s_add_u32 %s, %s, s3', sT0, sT0)
    S('s_and_b32 %s, %s, 7', sT0, sT0)
    S('s_mul_i32 %s, %s, 0x11111111', sT0, sT0)
    S('s_add_u32 %s, %s, 0x76543210', sT0, sT0)
    S('s_and_b32 %s, %s, 0x77777777', sPERM, sT0)
else:
    S('s_add_u32 %s, %s, %s', sT0, sRBL, sC)
    S('s_and_b32 %s, %s, 3', sT0, sT0)
    S('s_mul_i32 %s, %s, 0x11111111', sT0, sT0)
    S('s_add_u32 %s, %s, 0x32103210', sT0, sT0)
    S('s_and_b32 %s, %s, 0x33333333', sT0, sT0)
    if OPT['ROT'] == 4:
        S('s_add_u32 %s, s3, %s', sT1, sKH)
    elif OPT['ROT'] == 6:
        S('s_mov_b32 %s, 0', sT1)
    else:
        S('s_lshr_b32 %s, %s, 2', sT1, sC)
        S('s_add_u32 %s, %s, s3', sT1, sT1)
    S('s_bitcmp0_b32 %s, 0', sT1)
    S('s_mov_b32 %s, 0x4444', sT1)
    S('s_cselect_b32 %s, 0x44440000, %s', sT1, sT1)
    S('s_or_b32 %s, %s, %s', sPERM, sT0, sT1)
e('v_lshrrev_b32 %s, 5, %s' % (vr(vHI5), vr(vLANE)))
e('v_and_b32 %s, 31, %s' % (vr(vLO5), vr(vLANE)))
e('v_lshrrev_b32 %s, 4, %s' % (vr(vG), vr(vLANE)))
e('v_and_b32 %s, 15, %s' % (vr(vLO4), vr(vLANE)))
S('s_lshr_b32 %s, %s, 1', sT2, sW)
S('s_and_b32 %s, %s, 1', sT3, sW)
e('v_and_b32 v1, 7, %s' % vr(vLANE))
e('v_lshrrev_b32 v3, 3, %s' % vr(vLANE))
e('v_xor_b32 v4, v1, %s' % vr(vG))
e('v_lshlrev_b32 v4, 4, v4')
S('s_lshl1_add_u32 %s, %s, %s', sT0, sRB, sT2)
S('s_lshl_b32 %s, %s, 6', sT0, sT0)
S('s_add_u32 %s, %s, %s', sT0, sT0, sT3)
S('s_lshl_b32 %s, %s, 10', sT0, sT0)
e('v_lshl_add_u32 v5, v3, 12, v4')
e('v_add_u32 %s, %s, v5' % (vr(vX), sr(sT0)))
e('v_xor_b32 %s, 64, %s' % (vr(vX + 1), vr(vX)))
e('v_add_u32 %s, %d, %s' % (vr(vX + 1), 31 * 1024, vr(vX + 1)))
S('s_lshl1_add_u32 %s, %s, %s', sCG, sJ, sT2)
S('s_lshl_b32 %s, %s, 14', sCG, sCG)
e('v_lshl_add_u32 v5, v3, 10, v4')
e('v_add_u32 %s, %s, v5' % (vr(vB), sr(sCG)))
e('v_xor_b32 %s, 64, %s' % (vr(vB + 1), vr(vB)))
e('v_add_u32 %s, %d, %s' % (vr(vB + 1), 7 * 1024, vr(vB + 1)))
S('s_lshr_b32 %s, %s, 2', sT0, sJ)
S('s_mul_i32 %s, %s, 22', sT0, sT0)
S('s_and_b32 %s, %s, 3', sT1, sJ)
S('s_mul_i32 %s, %s, 6', sT1, sT1)
S('s_add_u32 %s, %s, %s', sOFF, sT0, sT1)
S('s_lshl_b32 %s, %s, 5', sSW, sOFF)
S('s_mul_i32 %s, %s, %s', sT0, sW, str(16 * 2752))
S('s_add_u32 %s, %s, %s', sSW, sSW, sT0)
S('s_movk_i32 %s, 5462', sT0)
S('s_movk_i32 %s, 2752', sT1)
for i in range(3):
    e('v_add_u32 v6, %d, %s' % (64 * i, vr(vLANE)))
    e('v_mul_u32_u24 v7, %s, v6' % sr(sT0))
    e('v_lshrrev_b32 v7, 16, v7')
    e('v_mul_u32_u24 v8, 12, v7')
    e('v_sub_u32 v6, v6, v8')
    e('v_lshrrev_b32 v8, 3, v7')
    e('v_lshlrev_b32 v8, 1, v8')
    e('v_xor_b32 v6, v6, v8')
    e('v_mul_u32_u24 v7, %s, v7' % sr(sT1))
    e('v_lshl_add_u32 v6, v6, 4, v7')
    e('v_add_u32 %s, %s, v6' % (vr(vW1 + i), sr(sSW)))
    if i < 2:
        S('s_sub_u32 %s, %s, 1024', sSW, sSW)
S('s_mul_i32 %s, %s, %s', sM0, sW, str(PIECE))
S('s_lshl_b32 %s, %s, 6', sT0, sJ)
e('v_lshl_add_u32 v9, %s, 1, %s' % (vr(vLO5), sr(sT0)))
e('v_mov_b32 v10, 0')
S('s_mov_b32 %s, 0x200000', dX + 2)
S('s_mov_b32 %s, 0x20000', dX + 3)
S('s_mov_b32 %s, 0x80000', dB + 2)
S('s_mov_b32 %s, 0x20000', dB + 3)
S('s_mov_b32 %s, %s', dW1 + 2, str(512 * 2752))
S('s_mov_b32 %s, 0x20000', dW1 + 3)
S('s_mov_b32 %s, %s', dWS + 2, hex(WS_SIZE))
S('s_mov_b32 %s, 0x20000', dWS + 3)

def stage_dma(v):
    slot = v & 3
    tag = 'st%d' % v
    ops = []
    sc = lambda fmt, *a: ops.append((1, lambda: S(fmt, *a)))
    dm = lambda txt: ops.append(('D', lambda: A.vmem(txt, tag)))
    sc('s_bfe_u32 %s, %s, %s', sSW, sPERM, '0x%x' % (4 * v + 0x30000))
    sc('s_add_u32 m0, %s, %s', sM0, str(slot * SLOT + 4096))
    sc('s_lshl_b32 %s, %s, 7', sSX, sSW)
    for i in range(2):
        dm('buffer_load_dwordx4 %s, %s, %s offen offset:%d%s lds' % (vr(vB + i), sr(dB, 4), sr(sSX), i * 1024, ' nt' if v <= OPT['NTW'] else ''))
    sc('s_add_u32 m0, %s, %s', sM0, str(slot * SLOT + 6144))
    sc('s_mul_i32 %s, %s, %s', sSW, sSW, str(64 * 2752))
    for i in range(3):
        dm('buffer_load_dwordx4 %s, %s, %s offen offset:%d%s lds' % (vr(vW1 + i), sr(dW1, 4), sr(sSW), i * 1024, ' nt' if v <= OPT['NTW'] else ''))
    sc('s_add_u32 m0, %s, %s', sM0, str(slot * SLOT))
    for i in range(4):
        dm('buffer_load_dwordx4 %s, %s, %s offen offset:%d%s lds' % (vr(vX + (i & 1)), sr(dX, 4), sr(sSX), i * 1024, ' nt' if v <= OPT['NTX'] else ''))
    return ops

S('s_lshl1_add_u32 %s, %s, %s', sT0, sRB, sKH)
S('s_and_b32 %s, %s, 1', sT1, sJ)
S('s_lshl1_add_u32 %s, %s, %s', sT0, sT0, sT1)
S('s_lshl2_add_u32 %s, %s, %s', sT0, sT0, sW)
S('s_bfe_u32 %s, %s, 0x20001', sT1, sJ)
S('s_lshl3_add_u32 %s, %s, %s', sT0, sT0, sT1)
S('s_lshl_b32 %s, %s, 10', sM8, sT0)
e('v_lshlrev_b32 %s, 12, %s' % (vr(vSA), vr(vHI5)))
e('v_lshl_add_u32 %s, %s, 4, %s' % (vr(vSA), vr(vLO5), vr(vSA)))
d0 = stage_dma(0)
for (c, f) in d0[:3]:
    f()
S('s_cmp_eq_u32 %s, 0', sT3)
A.wait_lg0()
stamp('karg')
S('s_cselect_b64 %s, %s, %s', sr(dB, 2), sr(pBRE, 2), sr(pBIM, 2))
S('s_mov_b64 %s, %s', sr(dX, 2), sr(pX, 2))
S('s_mov_b64 %s, %s', sr(dWS, 2), sr(pWS, 2))
lre, lim, ldt, vEP = 11, 12, 13, 14
A.vmem('global_load_ushort %s, v9, %s' % (vr(lre), sr(pLRE, 2)) + (' nt' if OPT['NTS'] & 2 else ''), 'lam')
A.vmem('global_load_ushort %s, v9, %s' % (vr(lim), sr(pLIM, 2)) + (' nt' if OPT['NTS'] & 2 else ''), 'lam')
A.vmem('global_load_ushort %s, v9, %s' % (vr(ldt), sr(pLDT, 2)) + (' nt' if OPT['NTS'] & 2 else ''), 'lam')
A.vmem('buffer_load_dword %s, v10, %s, 0 offen sc1' % (vr(vEP), sr(dWS, 4)), 'lam')
S('s_mov_b64 %s, %s', sr(dW1, 2), sr(pW1, 2))
for i in range(2):
    A.vmem('buffer_load_dwordx4 %s, %s, %s, %s offen offset:%d' % (vr(SR + 4 * i, 4), vr(vSA), sr(dX, 4), sr(sM8), 512 * i) + (' nt' if OPT['NTS'] & 1 else ''), 'srow')
def spf(lo, hi):
    l = [(dW2 if lo else pW2, sU0, 128 * i) for i in range(11)] + [(p, sBM, 128 * i) for i in range(4) for p in (pCRE, pCIM)]
    for (p, so, off) in l[lo:hi]:
        if OPT['SPF'] == 1:
            e('s_load_dword s0, %s, %s offset:%d' % (sr(p, 2), sr(so), off))
        else:
            e('s_load_dwordx2 s[0:1], %s, %s offset:%d' % (sr(p, 2), sr(so), off + 60))
if OPT['PB']:
    e('s_barrier')
    DQ.add(d0[3:])
    DQ.popD(2)
    AUTO.update(on=True, any=True, int=OPT['PINT'], nxt=AUTO['t'])
else:
    for (c, f) in d0[3:]:
        f()
    stamp('d0')
if OPT['SPF']:
    S('s_mul_i32 %s, %s, 1376', sU0, sGW)
    S('s_lshl_b32 %s, %s, 9', sBM, sGW)
    S('s_and_b32 %s, %s, -128', sU0, sU0)
    spf(0, 13 if OPT['SPF'] == 1 else 6)

S('s_mov_b32 %s, %s', sTH, sT2)
S('s_mov_b32 %s, %s', sPH, sT3)
S('s_mov_b32 %s, %s', sJT, sOFF)
srd(dO, pB1, 2752)
srd(dW2, pW2, 1376 * 1024)
S('s_mov_b64 %s, %s', sr(sPC, 2), sr(pDSK, 2))
e('v_lshrrev_b32 v1, 1, %s' % vr(vLO4))
e('v_xor_b32 v1, v1, %s' % vr(vG))
e('v_lshlrev_b32 v1, 4, v1')
e('v_lshl_add_u32 v1, %s, 7, v1' % vr(vLO4))
S('s_lshl_b32 %s, %s, 6', sT0, sTH)
e('v_xor_b32 v1, %s, v1' % sr(sT0))
e('v_xor_b32 v2, 64, v1')
S('s_mul_i32 %s, %s, %s', sT0, sTH, str(2 * PIECE))
S('s_mul_i32 %s, %s, %s', sT1, sPH, str(2 * PIECE))
S('s_add_u32 %s, %s, 4096', sT1, sT1)
for k in range(2):
    e('v_add_u32 %s, %s, v%d' % (vr(XA + 2 * k), sr(sT0), 1 + k))
    e('v_add_u32 %s, %s, v%d' % (vr(BA + 2 * k), sr(sT1), 1 + k))
    e('v_add_u32 %s, %d, %s' % (vr(XA + 2 * k + 1), 2 * SLOT, vr(XA + 2 * k)))
    e('v_add_u32 %s, %d, %s' % (vr(BA + 2 * k + 1), 2 * SLOT, vr(BA + 2 * k)))
e('v_bfe_u32 v1, %s, 2, 2' % vr(vLANE))
e('v_bfe_u32 v2, %s, 4, 1' % vr(vLANE))
e('v_lshl_add_u32 v3, v2, 3, v1')
e('v_mul_u32_u24 v3, 192, v3')
e('v_xor_b32 v4, %s, v2' % sr(sPH))
e('v_lshl_add_u32 v3, v4, 5, v3')
e('v_and_b32 v4, 3, %s' % vr(vLANE))
e('v_lshl_add_u32 v3, v4, 3, v3')
S('s_movk_i32 %s, %s', sT1, str(PIECE))
e('v_mad_u32_u24 v3, %s, %s, v3' % (vr(vHI5), sr(sT1)))
S('s_add_u32 %s, %s, 6144', sT1, sT0)
S('s_sub_u32 %s, %s, %s', sT0, str(2 * PIECE + 6144), sT0)
e('v_add_u32 %s, %s, v3' % (vr(WA), sr(sT1)))
e('v_add_u32 %s, %s, v3' % (vr(WA + 2), sr(sT0)))
e('v_add_u32 %s, %d, %s' % (vr(WA + 1), 2 * SLOT, vr(WA)))
e('v_add_u32 %s, %d, %s' % (vr(WA + 3), 2 * SLOT, vr(WA + 2)))
e('v_and_b32 v5, 7, %s' % vr(vLANE))
e('v_lshlrev_b32 v6, 2, v2')
e('v_xor_b32 v5, v5, v6')
e('v_lshlrev_b32 v5, 4, v5')
e('v_lshrrev_b32 v6, 3, %s' % vr(vLANE))
e('v_lshl_add_u32 %s, v6, 10, v5' % vr(vW2))
e('v_add_u32 %s, %d, %s' % (vr(vW2 + 1), 7 * 1024, vr(vW2)))
e('v_lshl_add_u32 v5, %s, 3, v1' % vr(vHI5))
e('v_lshlrev_b32 v5, 7, v5')
e('v_lshrrev_b32 v6, 1, v1')
e('v_lshl_add_u32 v5, v6, 6, v5')
e('v_lshl_add_u32 v5, v2, 5, v5')
e('v_lshl_add_u32 %s, v4, 3, v5' % vr(vTRL))
e('v_mov_b32 %s, 0x3f803f80' % vr(ONE))
for q in range(5):
    e('v_cmp_eq_u32 vcc, %d, %s' % (q, vr(vLO4)))
    for i in range(4):
        e('v_cndmask_b32 %s, 0, %s, vcc' % (vr(CS + 4 * q + i), vr(ONE)))
S('s_lshl_b32 %s, %s, 13', sM8, sW)
S('s_mul_i32 %s, %s, %s', sME, sTH, str(SLOT))
S('s_lshl_b32 %s, %s, 11', sT0, sPH)
S('s_add_u32 %s, %s, %s', sME, sME, sT0)
S('s_add_u32 %s, %s, 32768', sME, sME)
S('s_lshl2_add_u32 %s, %s, %s', sT2, sKH, sW)
S('s_lshl_b32 %s, %s, 9', sCO, sC)
S('s_add_u32 %s, %s, %s', sCO, sCO, sT2)
S('s_lshl_b32 %s, %s, 7', sCO, sCO)
S('s_lshr_b32 %s, %s, 1', sT0, sT2)
S('s_mul_i32 %s, %s, 22', sT0, sT0)
S('s_add_u32 %s, %s, %s', sT0, sT0, sPH)
S('s_lshl_b32 %s, %s, 7', sWS, sT0)
S('s_add_u32 %s, %s, %s', sWS, sWS, sC)
S('s_lshl_b32 %s, %s, 7', sWS, sWS)
S('s_lshl_b32 %s, %s, 11', sT0, sT0)
S('s_lshl_b32 %s, %s, 14', sSSM, sT2)
S('s_sub_u32 %s, %s, %s', sSSM, sSSM, sT0)
S('s_add_u32 %s, %s, %s', sSSM, sSSM, str(88 * 2048))
S('s_add_u32 %s, %s, %s', sT0, sT0, hex(WS_H))
S('s_lshl1_add_u32 %s, %s, %s', sT1, sRB, sKH)
S('s_mul_i32 %s, %s, %s', sH2, sT1, str(HR))
S('s_add_u32 %s, %s, %s', sH2, sH2, sT0)
S('s_xor_b32 %s, %s, 1', sT3, sT1)
S('s_mul_i32 %s, %s, %s', sH1, sT3, str(HR))
S('s_add_u32 %s, %s, %s', sH1, sH1, sT0)
S('s_lshl1_add_u32 %s, %s, %s', sPA, sT1, sTH)
S('s_lshl4_add_u32 %s, %s, %s', sPA, sPA, sPH)
S('s_lshl_b32 %s, %s, 7', sPA, sPA)
S('s_add_u32 %s, %s, %s', sPA, sPA, hex(WS_FA))
S('s_lshl2_add_u32 %s, %s, %s', sPB, sT1, sW)
S('s_lshl_b32 %s, %s, 8', sGR, sPB)
S('s_add_u32 %s, %s, %s', sGR, sGR, hex(WS_G + 8))
S('s_lshl_b32 %s, %s, 10', sPB, sPB)
S('s_add_u32 %s, %s, %s', sPB, sPB, hex(WS_FB))
S('s_lshl1_add_u32 %s, %s, %s', sT0, sJ, sPH)
S('s_lshl_b32 %s, %s, 12', sT0, sT0)
S('s_add_u32 %s, %s, %s', sSG, sT0, hex(WS_SG))
S('s_lshl_b32 %s, %s, 8', sSGO, sRB)
S('s_add_u32 %s, %s, %s', sSGO, sSGO, sSG)
S('s_lshl1_add_u32 %s, %s, %s', sT1, sRB, sTH)
S('s_mul_i32 %s, %s, %s', sT1, sT1, str(HR))
S('s_add_u32 %s, %s, %s', sHS, sT0, sT1)
S('s_add_u32 %s, %s, %s', sHS, sHS, hex(WS_H + 88 * 2048))
S('s_add_u32 %s, %s, %s', sHM, sJT, sPH)
S('s_lshl_b32 %s, %s, 11', sHM, sHM)
S('s_add_u32 %s, %s, %s', sHM, sHM, sT1)
S('s_add_u32 %s, %s, %s', sHM, sHM, hex(WS_H))
S('s_lshl4_add_u32 %s, %s, %s', sFL, sRB, sJ)
S('s_lshl2_add_u32 %s, %s, %s', sFL, sFL, sW)
S('s_lshl_b32 %s, %s, 5', sF0, sFL)
S('s_add_u32 %s, %s, %s', sF0, sF0, hex(WS_G))
S('s_lshl_b32 %s, %s, 7', sFL, sFL)
S('s_lshl_b32 %s, %s, 12', sPX, sGW)
S('s_add_u32 %s, %s, %s', sPX, sPX, hex(WS_PX))
def prep_ops():
    o = Ops()
    o.s('s_lshl_b32 %s, %s, 6', sT0, sPH)
    o.s('s_add_u32 %s, %s, %s', sT0, sT0, str(TAB))
    o.s('s_movk_i32 %s, %s', sT1, str(TROW))
    o.v('v_lshl_add_u32 %s, %s, 4, %s' % (vr(vTB), vr(vG), sr(sT0)))
    o.v('v_lshl_add_u32 %s, %s, 2, %s' % (vr(vTC), vr(vLO4), sr(sT0)))
    o.v('v_mad_u32_u24 %s, %s, %s, %s' % (vr(vTI), vr(vLO4), sr(sT1), vr(vTB)))
    o.v('v_min_u32 %s, 1, %s' % (vr(U0), vr(vG)))
    o.v('v_lshl_add_u32 %s, %s, 4, %s' % (vr(U0), vr(U0), vr(vG)))
    o.v('v_mad_u32_u24 %s, %s, %s, %s' % (vr(vTG), vr(U0), sr(sT1), vr(vTC)))
    o.s('s_mul_i32 %s, %s, 320', sT0, sW)
    o.s('s_add_u32 %s, %s, %s', sT0, sT0, str(CSX))
    o.v('v_lshl_add_u32 %s, %s, 4, %s' % (vr(vCO), vr(vG), sr(sT0)))
    o.v('v_lshl_add_u32 %s, %s, 6, %s' % (vr(vCW), vr(vLO4), vr(vCO)))
    o.s('s_xor_b32 %s, %s, 2', sT0, sW)
    o.s('s_mul_i32 %s, %s, 320', sT0, sT0)
    o.s('s_add_u32 %s, %s, %s', sT0, sT0, str(CSX))
    o.v('v_lshl_add_u32 %s, %s, 4, %s' % (vr(vCR), vr(vG), sr(sT0)))
    o.v('v_lshl_add_u32 %s, %s, 2, %s' % (vr(vSXW), vr(vLO4), sr(sT0)))
    o.s('s_mul_i32 %s, %s, 320', sT0, sPH)
    o.s('s_add_u32 %s, %s, %s', sT0, sT0, str(CSX))
    o.v('v_lshl_add_u32 %s, %s, 2, %s' % (vr(vSXR), vr(vLO4), sr(sT0)))
    o.s('s_sub_u32 %s, %s, 1', sT0, sRB)
    o.v('v_sub_u32 %s, %s, %s' % (vr(U0), sr(sT0), vr(vG)))
    o.v('v_lshlrev_b32 %s, 4, %s' % (vr(U1), vr(vLO4)))
    for i in range(4):
        o.v('v_subrev_u32 %s, %d, %s' % (vr(vPA + i), 4 * i, vr(U0)))
        o.v('v_cmp_le_i32 %s, 0, %s' % (sr(sMSK[i], 2), vr(vPA + i)))
        o.v('v_max_i32 %s, 0, %s' % (vr(vPA + i), vr(vPA + i)))
        o.v('v_lshl_add_u32 %s, %s, 8, %s' % (vr(vPA + i), vr(vPA + i), vr(U1)))
    o.v('v_and_b32 %s, 7, %s' % (vr(vPF), vr(vLANE)))
    o.v('v_lshlrev_b32 %s, 8, %s' % (vr(vPF), vr(vPF)))
    o.s('s_and_b32 %s, %s, 3', sT0, sJ)
    o.s('s_cmp_eq_u32 %s, 3', sT0)
    o.s('s_cselect_b32 %s, 0, 0xffff', sF1)
    o.v('v_lshlrev_b32 %s, 2, %s' % (vr(vTM), vr(vLO5)))
    o.v('v_mul_u32_u24 %s, 96, %s' % (vr(U0), vr(vG)))
    o.v('v_add_lshl_u32 %s, %s, %s, 10' % (vr(vWT), vr(U0), vr(vLO4)))
    o.v('v_lshlrev_b32 %s, 10, %s' % (vr(vCT), vr(vLANE)))
    o.v('v_and_b32 %s, 3, %s' % (vr(U1), vr(vLANE)))
    o.v('v_lshrrev_b32 %s, 2, %s' % (vr(U0), vr(vLANE)))
    o.v('v_mad_u32_u24 %s, %s, 3, %s' % (vr(U0), vr(U1), vr(U0)))
    o.s('s_lshl2_add_u32 %s, %s, s3', sT0, sRBL)
    o.s('s_lshl_b32 %s, %s, 10', sT1, sT0)
    o.v('v_lshl_add_u32 %s, %s, 15, %s' % (vr(vPW), vr(U0), sr(sT1)))
    o.s('s_lshl_b32 %s, %s, 2', sT0, sT0)
    o.s('s_lshl_b64 %s, 15, %s', sr(sPM, 2), sT0)
    o.s('s_lshl1_add_u32 %s, %s, %s', sT0, sRB, sKH)
    o.s('s_lshl_b32 %s, %s, 6', sT0, sT0)
    o.s('s_add_u32 %s, %s, %s', sT0, sT0, sW)
    o.v('v_and_b32 %s, 1, %s' % (vr(vGO), vr(vG)))
    o.v('v_lshl_add_u32 %s, %s, 2, %s' % (vr(vGO), vr(vGO), vr(vHI5)))
    o.v('v_lshl_add_u32 %s, %s, 2, %s' % (vr(U0), vr(vGO), sr(sT0)))
    o.s('s_lshl_b32 %s, %s, 7', sT1, sC)
    o.v('v_lshl_add_u32 %s, %s, 3, %s' % (vr(U1), vr(vLO4), sr(sT1)))
    o.v('v_lshl_add_u32 %s, %s, 10, %s' % (vr(vXO), vr(U0), vr(U1)))
    o.v('v_lshlrev_b32 %s, 4, %s' % (vr(vGO), vr(vGO)))
    o.v('v_lshlrev_b32 %s, 3, %s' % (vr(U0), vr(vG)))
    return o

for (c, f) in prep_ops():
    f()
stamp('prep')
if OPT['PB']:
    print('DQ left after prep', len(DQ.q))
    DQ.flush()
    AUTO.update(on=False, any=False, int=OPT['EINT'])
    stamp('d0')
A.wait_vm('lam')
stamp('lam')
if OPT['SPF']:
    spf(13 if OPT['SPF'] == 1 else 6, 19 if OPT['SPF'] == 1 else 12)
LOG2E = math.log2(math.e)
e('v_readfirstlane_b32 %s, %s' % (sr(sTAG), vr(vEP)))
for r in (lre, lim, ldt):
    e('v_lshlrev_b32 %s, 16, %s' % (vr(r), vr(r)))
e('v_mul_f32 %s, %s, %s' % (vr(ldt), f2u(LOG2E), vr(ldt)))
e('v_exp_f32 %s, %s' % (vr(ldt), vr(ldt)))
S('s_add_u32 %s, %s, 1', sTAG, sTAG)
e('v_add_u32 %s, 1, %s' % (vr(vTAG), vr(vEP)))
S('s_lshl_b32 %s, %s, 1', sT0, sW)
e('v_add_u32 v1, %s, %s' % (sr(sT0), vr(vHI5)))
e('v_cvt_pk_bf16_f32 %s, %s, %s' % (vr(ldt), vr(ldt), vr(ldt)))
e('v_cvt_f32_u32 v2, v1')
e('v_lshlrev_b32 %s, 16, %s' % (vr(ldt), vr(ldt)))
e('v_cmp_lt_u32 vcc, 4, v1')
e('v_mul_u32_u24 v3, %d, v1' % TROW)
e('v_mul_f32 v5, %s, %s' % (vr(ldt), vr(lre)))
e('v_mul_f32 v6, %s, %s' % (vr(ldt), vr(lim)))
e('v_lshl_add_u32 v3, %s, 2, v3' % vr(vLO5))
e('v_mul_f32 v5, %s, v5' % f2u(LOG2E))
e('v_mul_f32 v6, 0.15915494, v6')
e('v_add_u32 v3, %d, v3' % TAB)
e('v_mul_f32 v20, 4.0, v2')
e('v_add_f32 v21, %s, v20' % f2u(32.0))
e('v_mul_f32 v22, %s, v2' % f2u(128.0))
e('v_max_f32 v22, %s, v22' % f2u(64.0))
e('v_add_f32 v23, -4.0, v2')
e('v_cndmask_b32 v22, v22, v23, vcc')
for r in range(3):
    e('v_mul_f32 v%d, v%d, v5' % (24 + r, 20 + r))
    e('v_mul_f32 v%d, v%d, v6' % (28 + r, 20 + r))
for r in range(3):
    e('v_exp_f32 v%d, v%d' % (24 + r, 24 + r))
    e('v_rndne_f32 v%d, v%d' % (20 + r, 28 + r))
for r in range(3):
    e('v_sub_f32 v%d, v%d, v%d' % (28 + r, 28 + r, 20 + r))
for r in range(3):
    e('v_cos_f32 v%d, v%d' % (20 + r, 28 + r))
    e('v_sin_f32 v%d, v%d' % (28 + r, 28 + r))
for r in range(3):
    e('v_mul_f32 v%d, v%d, v%d' % (20 + r, 20 + r, 24 + r))
    e('v_mul_f32 v%d, v%d, v%d' % (28 + r, 28 + r, 24 + r))
for r in range(3):
    A.ds('ds_write_b32 v3, v%d offset:%d' % (20 + r, 8 * r * TROW), 'tab')
    A.ds('ds_write_b32 v3, v%d offset:%d' % (28 + r, 8 * r * TROW + 128), 'tab')
lab = newlab('ncf')
S('s_cmp_lg_u32 %s, 2', sW)
e('s_cbranch_scc1 %s' % lab)
e('v_mul_f32 v24, %s, %s' % (vr(lre), vr(lre)))
e('v_fma_f32 v24, %s, %s, v24' % (vr(lim), vr(lim)))
e('v_rcp_f32 v24, v24')
e('v_add_f32 v25, -1.0, v22')
e('v_mul_f32 v26, v25, %s' % vr(lre))
e('v_mul_f32 v27, v30, %s' % vr(lre))
e('v_add_f32 v24, v24, v24')
e('v_fma_f32 v26, v30, %s, v26' % vr(lim))
e('v_fma_f32 v27, -v25, %s, v27' % vr(lim))
e('v_mul_f32 v26, v26, v24')
e('v_mul_f32 v27, v27, v24')
e('s_mov_b32 exec_lo, 0')
e('ds_write_b32 v3, v26 offset:%d' % (19 * TROW))
e('ds_write_b32 v3, v27 offset:%d' % (19 * TROW + 128))
e('s_mov_b32 exec_lo, -1')
A.label(lab)
stamp('tab')
R_L64, R_L512, R_L1, R_L2, R_L3, R_CF = 16, 20, 21, 22, 23, 24

def stat_compute_ops():
    o = Ops()
    t = SR + 8
    o.f(lambda: A.wait_vm('srow'))
    o.v('v_dot2_f32_bf16 v%d, v%d, v%d, 0' % (t, SR, ONE), 2)
    o.v('v_dot2_f32_bf16 v%d, v%d, v%d, 0' % (t + 1, SR, SR), 2)
    for i in range(1, 8):
        o.v('v_dot2_f32_bf16 v%d, v%d, v%d, v%d' % (t, SR + i, ONE, t), 2)
        o.v('v_dot2_f32_bf16 v%d, v%d, v%d, v%d' % (t + 1, SR + i, SR + i, t + 1), 2)
    for sh in (1, 2, 4, 8):
        for r in (t, t + 1):
            o.v('v_add_f32_dpp v%d, v%d, v%d row_shr:%d row_mask:0xf bank_mask:0xf bound_ctrl:0' % (r, r, r, sh))
    for r in (t, t + 1):
        o.v('v_add_f32_dpp v%d, v%d, v%d row_bcast:15 row_mask:0xa bank_mask:0xf' % (r, r, r))
    mean, var, sb, rs, m2, v2_, mb = t, t + 1, t + 2, t + 3, t + 8, t + 9, t + 10
    g0 = t + 4
    def rnd(d, s):
        o.v('v_cvt_pk_bf16_f32 v%d, v%d, v%d' % (d, s, s))
        o.v('v_lshlrev_b32 v%d, 16, v%d' % (d, d))
    o.v('v_mul_f32 v%d, %s, v%d' % (mean, f2u(1.0 / 512), mean))
    o.v('v_mul_f32 v%d, %s, v%d' % (var, f2u(1.0 / 512), var))
    o.v('v_fma_f32 v%d, -v%d, v%d, v%d' % (var, mean, mean, var))
    o.v('v_max_f32 v%d, 0, v%d' % (var, var))
    rnd(mb, mean)
    rnd(sb, var)
    o.v('v_add_f32 v%d, %s, v%d' % (sb, f2u(1e-5), sb))
    rnd(sb, sb)
    o.v('v_sqrt_f32 v%d, v%d' % (sb, sb), 2)
    o.v('v_sub_f32 v%d, v%d, v%d' % (m2, mean, mb))
    rnd(sb, sb)
    o.v('v_rcp_f32 v%d, v%d' % (rs, sb), 2)
    o.v('v_cvt_pk_bf16_f32 v%d, v%d, v%d' % (g0 + 2, mb, sb))
    o.v('v_mul_f32 v%d, v%d, v%d' % (m2, m2, rs))
    o.v('v_mul_f32 v%d, v%d, v%d' % (v2_, var, rs))
    rnd(m2, m2)
    o.v('v_mul_f32 v%d, v%d, v%d' % (v2_, v2_, rs))
    o.v('v_fma_f32 v%d, v%d, v%d, v%d' % (g0, m2, sb, mb))
    rnd(v2_, v2_)
    o.v('v_add_f32 v%d, %s, v%d' % (v2_, f2u(1e-5), v2_))
    rnd(v2_, v2_)
    o.v('v_sqrt_f32 v%d, v%d' % (v2_, v2_), 2)
    o.v('v_mov_b32 v%d, %s' % (g0 + 3, sr(sTAG)))
    rnd(v2_, v2_)
    o.v('v_mul_f32 v%d, v%d, v%d' % (g0 + 1, v2_, sb))
    o.s('s_lshl_b32 %s, %s, 5', sT0, sW)
    o.s('s_add_u32 %s, %s, %s', sT0, sT0, str(CSX))
    o.v('v_lshl_add_u32 v%d, %s, 4, %s' % (t, vr(vHI5), sr(sT0)))
    o.v('v_add_u32 v%d, %d, %s' % (SR, CSX, vr(vL16)))
    o.v('s_mov_b32 exec_lo, 0x80000000')
    o.v('s_mov_b32 exec_hi, 0x80000000')
    o.f(lambda: A.ds('ds_write_b128 v%d, %s offset:%d' % (t, vr(g0, 4), 0), 'gw'))
    o.v('s_mov_b64 exec, -1')
    o.f(lambda: stamp('gs'))
    o.s('s_lshl1_add_u32 %s, %s, %s', sD0, sRB, sTH)
    o.s('s_lshl_b32 %s, %s, 10', sD0, sD0)
    o.s('s_add_u32 %s, %s, %s', sD0, sD0, hex(WS_G))
    o.v('v_lshlrev_b32 %s, 4, %s' % (vr(vSA), vr(vLO4)))
    return o
def b1_loads():
    o = Ops()
    o.s('s_add_u32 %s, %s, %s', sSX, sJT, sPH)
    o.s('s_lshl_b32 %s, %s, 5', sSX, sSX)
    for v in range(3):
        o.f(lambda v=v: A.vmem('buffer_load_dwordx2 %s, %s, %s, %s offen offset:%d' % (vr(B1 + 2 * v, 2), vr(U0), sr(dO, 4), sr(sSX), 64 * v), 'b1'), 2)
    o.f(lambda: A.vmem('global_load_dwordx2 a[248:249], %s, %s' % (vr(U1), sr(sPC, 2)), 'b1'), 2)
    o.f(lambda: A.vmem('global_load_dwordx2 a[250:251], %s, %s' % (vr(U1), sr(pB2, 2)), 'b1'), 2)
    o.s('s_mov_b32 %s, 0x80000', dO + 2)
    o.f(lambda: FQ.open.add('b1'), 0)
    return o

if OPT['B1P'] == 0:
    for (c, f) in b1_loads():
        f()
DQ.add(stage_dma(1))
DQ.popD(OPT['D1A'])
if OPT['SPF'] == 2:
    spf(12, 19)
for (c, f) in stat_compute_ops():
    f()
DQ.popD(OPT['D1B'] - OPT['D1A'])
A.wait_lg0()
stamp('d1')
def b1_ops():
    o = Ops()
    o.f(lambda: A.wait_vm('b1'), 0)
    for v in range(3):
        for hh in range(2):
            o.v('v_lshlrev_b32 %s, 16, %s' % (vr(BU + 4 * v + 2 * hh), vr(B1 + 2 * v + hh)))
            o.v('v_and_b32 %s, 0xffff0000, %s' % (vr(BU + 4 * v + 2 * hh + 1), vr(B1 + 2 * v + hh)))
    return o
def stat_loads():
    return [('D' if OPT['STD'] else 2, lambda T=T: A.vmem('buffer_load_dwordx4 %s, %s, %s, %s offen offset:%d sc1' % (vr(ST + 4 * T, 4), vr(vSA), sr(dWS, 4), sr(sD0), 256 * T), 'stat')) for T in range(4)]
def stat_issue():
    for (c, f) in stat_loads():
        f()
def stat_check(e=e):
    t = TMP
    for T in range(4):
        e('v_xor_b32 v%d, %s, %s' % (t + T, sr(sTAG), vr(ST + 4 * T + 3)))
    e('v_or3_b32 v%d, v%d, v%d, v%d' % (t, t, t + 1, t + 2))
    e('v_or_b32 v%d, v%d, v%d' % (t, t, t + 3))
    e('v_cmp_ne_u32 vcc, 0, v%d' % t)
C0 = -2.0 * math.sqrt(2.0 / math.pi) * math.log2(math.e)
def stat_derive_ops():
    o = Ops()
    o.f(lambda: A.wait_vm('stat'))
    stat_check(o.v)
    o.f(lambda: retry_loop('st', stat_issue, stat_check, 58, False), 2)
    for T in range(4):
        b = ST + 4 * T
        o.v('v_rcp_f32 v%d, v%d' % (TMP + T, b + 1), 2)
        o.v('v_lshlrev_b32 v%d, 16, v%d' % (SS + 2 * T, b + 2))
        o.v('v_and_b32 v%d, 0xffff0000, v%d' % (SS + 2 * T + 1, b + 2))
    for T in range(4):
        b = ST + 4 * T
        o.v('v_rcp_f32 v%d, v%d' % (SS + 2 * T + 1, SS + 2 * T + 1), 2)
        o.v('v_mul_f32 v%d, %s, v%d' % (b + 2, f2u(C0), TMP + T))
        o.v('v_mul_f32 v%d, v%d, v%d' % (b + 3, TMP + T, TMP + T))
    for T in range(4):
        b = ST + 4 * T
        o.v('v_mul_f32 v%d, v%d, v%d' % (b + 3, b + 3, b + 2))
        o.v('v_mul_f32 v%d, %s, v%d' % (b + 3, f2u(0.044715), b + 3))
    return o

TOFF = [6 * (st & 3) + 2 * (st >> 2) for st in range(11)]
KS = [0]
def w_prefetch():
    o = Ops()
    def f():
        e('s_mov_b64 exec, 0x7ff')
        A.vmem('buffer_load_dword %s, %s, %s, %s offen' % (vr(vSCR), vr(vPW), sr(dW2, 4), sr(sWS)) + (' nt' if OPT['WNT'] else ''), 'touch')
        e('s_mov_b64 exec, -1')
    o.f(f, 4)
    for p in (pCRE, pCIM):
        o.s('s_mov_b64 %s, %s', sr(dO, 2), sr(p, 2))
        def f():
            e('s_mov_b64 exec, %s' % sr(sPM, 2))
            A.vmem('buffer_load_dword %s, %s, %s, %s offen' % (vr(vSCR), vr(vCT), sr(dO, 4), sr(sCO)) + (' nt' if OPT['WNT'] else ''), 'touch')
            e('s_mov_b64 exec, -1')
        o.f(f, 4)
    return o
def w_prefetch_cls(k):
    def f():
        lab = newlab('pf')
        if OPT['WCL'] == 4:
            S('s_cmp_lg_u32 %s, %s', sRBL, str(k))
        else:
            S('s_bitcmp%d_b32 %%s, 0' % (1 - k), sRBL)
        e('s_cbranch_scc1 %s' % lab)
        e('s_mov_b64 exec, 0x7ff')
        A.vmem('buffer_load_dword %s, %s, %s, %s offen' % (vr(vSCR), vr(vPW), sr(dW2, 4), sr(sWS)), 'touch', opt=True)
        e('s_mov_b64 exec, %s' % sr(sPM, 2))
        for p in (pCRE, pCIM):
            S('s_mov_b64 %s, %s', sr(dO, 2), sr(p, 2))
            A.vmem('buffer_load_dword %s, %s, %s, %s offen' % (vr(vSCR), vr(vCT), sr(dO, 4), sr(sCO)), 'touch', opt=True)
        e('s_mov_b64 exec, -1')
        A.label(lab)
    return [(4, f)]
def w_touch(p):
    o = Ops()
    if p >= 2:
        o.s('s_mov_b64 %s, %s', sr(dO, 2), sr(pCIM if p == 3 else pCRE, 2))
    o.f(lambda: (S('s_cmp_eq_u32 %s, %s', sRBL, str(p)), S('s_cselect_b32 %s, 0, 0x40000000', sSW)), 2)
    if p < 2:
        o.s('s_add_u32 %s, %s, %s', sSW, sSW, sWS)
        o.s('s_add_u32 %s, %s, %s', sSX, sSW, str(p * 32768))
        o.f(lambda: A.vmem('buffer_load_dword %s, %s, %s, %s offen' % (vr(vSCR), vr(vWT), sr(dW2, 4), sr(sSX)), 'touch'), 'D')
    else:
        o.s('s_add_u32 %s, %s, %s', sSX, sSW, sCO)
        o.f(lambda: A.vmem('buffer_load_dword %s, %s, %s, %s offen' % (vr(vSCR), vr(vCT), sr(dO, 4), sr(sSX)), 'touch'), 'D')
        if p == 2:
            o.s('s_add_u32 %s, %s, %s', sSW, sSW, sWS)
    if p < 3:
        o.s('s_add_u32 %s, %s, %s', sSX, sSW, str(TOFF[8 + p] * 16384))
        def f():
            e('s_mov_b64 exec, 0xffff')
            A.vmem('buffer_load_dword %s, %s, %s, %s offen' % (vr(vSCR), vr(vWT), sr(dW2, 4), sr(sSX)), 'touch')
            e('s_mov_b64 exec, -1')
        o.f(f, 4)
    return o
def w2_step(st):
    o = Ops()
    odd = 0
    if st == 0:
        o.s('s_lshl_b32 %s, %s, 11', sSX, sW)
        o.s('s_add_u32 m0, %s, %s', sSX, str(PE))
    elif st <= 8:
        odd = (st - 1) & 1
        if not odd:
            o.s('s_add_u32 m0, %s, %s', sM8, str(((st - 1) // 4) * SLOT + ((st - 1) % 4) * 2048))
    else:
        o.s('s_add_u32 m0, %s, %s', sME, str((st - 9) * 2 * SLOT))
    o.s('s_add_u32 %s, %s, %s', sSW, sWS, str(TOFF[st] * 16384 - odd * 2048))
    for i in range(2):
        o.f(lambda i=i: A.vmem('buffer_load_dwordx4 %s, %s, %s offen offset:%d lds' % (vr(vW2 + i), sr(dW2, 4), sr(sSW), odd * 2048 + i * 1024), 'W'), 'D')
    return o
def c_job(part):
    o = Ops()
    o.s('s_mov_b64 %s, %s', sr(dB, 2), sr(pCIM if part else pCRE, 2))
    if part == 0:
        o.v('v_subrev_u32 %s, %s, %s' % (vr(vB), sr(sCG), vr(vB)))
        o.v('v_subrev_u32 %s, %s, %s' % (vr(vB + 1), sr(sCG), vr(vB + 1)))
    for k in range(4):
        odd = k & 1
        if not odd:
            o.s('s_add_u32 m0, %s, %s', sM8, str((2 + part) * SLOT + k * 2048))
        o.s('s_add_u32 %s, %s, %s', sSX, sCO, str(k * 16384 - odd * 2048))
        for i in range(2):
            o.f(lambda i=i, odd=odd: A.vmem('buffer_load_dwordx4 %s, %s, %s offen offset:%d lds' % (vr(vB + i), sr(dB, 4), sr(sSX), odd * 2048 + i * 1024), 'W'), 'D')
    return o
QR = [0, 2, 8, 10]
def resx_loads():
    o = Ops()
    for q in range(4):
        o.s('s_mov_b32 %s, %s', sSX, str(QR[q] * 4096))
        o.f(lambda q=q: A.vmem('buffer_load_dwordx2 %s, %s, %s, %s offen' % (ar(240 + 2 * q, 2), vr(vXO), sr(dX, 4), sr(sSX)), 'res'), 'D' if q & 1 else 2)
    return o
def resg_loads():
    return [(2, lambda q=q: A.vmem('buffer_load_dword %s, %s, %s, %s offen offset:%d sc1' % (ar(252 + q), vr(vGO), sr(dWS, 4), sr(sGR), QR[q] * 16), 'res')) for q in range(4)]

for v in range(1, 8):
    if v > 1:
        sd = stage_dma(v)
        if v == OPT['WPF'] and OPT['WPK']:
            sd, rest = sd[:-5], sd[-5:]
        DQ.add(sd, None if v < 4 else 'mid%d' % (v - 4))
    if v == OPT['B1P']:
        DQ.add(b1_loads())
    if OPT['WCL'] == 4 and 0 <= v - OPT['WPF'] < 4:
        DQ.add(w_prefetch_cls(v - OPT['WPF']))
    if OPT['WCL'] in (2, 3) and v - OPT['WPF'] in (0, OPT['WCL']):
        DQ.add(w_prefetch_cls(int(v > OPT['WPF'])))
    if v == OPT['WPF'] and not OPT['WCL']:
        DQ.add([(0, lambda: print('prefetch at step', KS[0]))])
        DQ.add(w_prefetch())
        if OPT['WPK']:
            DQ.add(rest)
    if v == OPT['STL']:
        DQ.add(stat_loads())
        DQ.add([(0, lambda: FQ.open.add('stl'))])
    if 0 <= v - OPT['WT0'] < 4:
        DQ.add(w_touch(v - OPT['WT0']))
assert OPT['WPF'] < OPT['WT0'] and (OPT['B1P'] <= OPT['WPF'] or OPT['WPF'] == 0)
o = Ops()
o.s('s_mov_b64 %s, %s', sr(dO, 2), sr(pOUT, 2))
o.s('s_mov_b32 %s, 0x400000', dO + 2)
DQ.add(o)
DQ.add([(0, lambda: (print('st7 issued at step', KS[0]), OPT.update(DINT=OPT['WINT'])))])
DQ.add(w2_step(0), 'k%d' % OPT['WG0'])
for st in range(1, 10):
    DQ.add(w2_step(st), 'mid4' if st < 5 else 'mid5')
DQ.add(c_job(0), 'mid%d' % OPT['CJ0'])
DQ.add(resx_loads())
DQ.add(w2_step(10), 'mid7')
DQ.add(c_job(1), 'mid7')
FQ.add([(0, lambda: None)], 'b1')
FQ.add(b1_ops(), 'mid%d' % OPT['B1G'])
FQ.add([(0, lambda: None)], 'stl')
FQ.add(stat_derive_ops(), 'mid%d' % OPT['SDG'])

RQ = Q()
def rd_x(step, T):
    v, ks = step // 2, step % 2
    slot = v & 3
    return [(1, lambda: A.ds('ds_read_b128 %s, %s offset:%d' % (vr(XF + 16 * ks + 4 * T, 4), vr(XA + 2 * ks + (slot >> 1)), (slot & 1) * SLOT + (T & 1) * PIECE + (T >> 1) * 2048), 'x%d' % step))]
def rd_a(step, a):
    v, ks = step // 2, step % 2
    slot = v & 3
    if a < 2:
        return [(1, lambda: A.ds('ds_read_b128 %s, %s offset:%d' % (vr(AF + 4 * a, 4), vr(BA + 2 * ks + (slot >> 1)), (slot & 1) * SLOT + a * PIECE), 'a%d_%d' % (step, a)))]
    return [(1, lambda half=half: A.ds('ds_read_b64_tr_b16 %s, %s offset:%d' % (vr(AF + 4 * a + 2 * half, 2), vr(WA + 2 * ks + (slot >> 1)), (slot & 1) * SLOT + half * 768 + 64 * (a - 2)), 'a%d_%d' % (step, a))) for half in range(2)]

A.wait_vm('st0')
stamp('st0')
e('s_barrier')
RQ.add(rd_a(0, 0))
for T in range(4):
    RQ.add(rd_x(0, T))
for a in range(1, 5):
    RQ.add(rd_a(0, a))
RQ.flush()
A.ds('ds_read_b128 %s, %s' % (vr(SR + 4, 4), vr(SR)), 'gr')
def g_store():
    A.wait_lg('gr')
    lab = newlab('gs')
    S('s_cmp_lg_u32 %s, 0', sW)
    e('s_cbranch_scc1 %s' % lab)
    e('s_mov_b64 exec, 0xff')
    A.vmem('buffer_store_dwordx4 %s, %s, %s, %s offen sc1' % (vr(SR + 4, 4), vr(vL16), sr(dWS, 4), sr(sF0)), 'gs', opt=True)
    e('s_mov_b64 exec, -1')
    A.label(lab)
clk = [0, 0]
def gap(budget, base):
    used = 0
    while used < budget:
        if RQ.ready():
            used += RQ.cost()
            RQ.pop1()
        elif DQ.ready() and (DQ.cost() != 'D' or (clk[0] >= clk[1] and used + OPT['DCOST'] <= max(budget, OPT['DCOST']))):
            if DQ.cost() == 'D':
                used += OPT['DCOST']
                clk[1] = max(clk[1], clk[0] - 2 * OPT['DINT']) + OPT['DINT']
            elif used + DQ.cost() > max(budget, DQ.cost()):
                break
            else:
                used += DQ.cost()
                if DQ.cost() >= 2:
                    clk[1] += OPT['SMP']
            DQ.pop1()
        elif FQ.ready() and used + FQ.cost() <= max(budget, FQ.cost()):
            used += FQ.cost()
            FQ.pop1()
        else:
            break
    clk[0] += max(base, 8 + 4 * used)

K0, K1, SA, SE = 116, 124, 136, 144
def tab_rd(dst, row, tag, addr=None):
    for part in range(2):
        A.ds('ds_read_b128 %s, %s offset:%d' % (vr(dst + 4 * part, 4), vr(vTB if addr is None else addr), row * TROW + part * 128), tag)
for step in range(16):
    v, ks = step // 2, step % 2
    gate = 'mid%d' % v if ks == 1 else None
    for a in range(5):
        KS[0] = step + a / 5
        DQ.open.add('k%d' % (5 * step + a))
        if ks == 1 and a == 2:
            for u in range(5):
                assert DSN.get('a%d_%d' % (step, u), 0) == (1 if u < 2 else 2), (step, u)
            if v == 7:
                assert DSN.get('csw', 0) == 1 and DSN.get('cso', 0) == 5
            A.wait_lg0()
            stamp('a%d' % v)
            if v < 7:
                A.wait_vm('st%d' % (v + 1))
                if v in (1, 3, 6):
                    stamp('b%d' % v)
            if not OPT['X'] & 2:
                e('s_barrier')
            clk[0] += 40
            for q in (DQ, FQ, RQ):
                q.open.add('mid%d' % v)
            if v == 7:
                for q in range(5):
                    RQ.add([(1, lambda q=q: A.ds('ds_read_b128 %s, %s offset:%d' % (vr((XF + 4 * q) if q < 4 else AF, 4), vr(vCR), 64 * q), 'csr'))])
        if a in (0, 2, 4):
            assert DSN.get('x%d' % step, 0) == 4, (step, a)
            for u in (a, a + 1):
                assert u > 4 or DSN.get('a%d_%d' % (step, u), 0) == (1 if u < 2 else 2), (step, a, u)
            A.wait_lg(['x%d' % step] + ['a%d_%d' % (step, u) for u in (a, a + 1)])
        if OPT['XS'] and step in (14, 15) and a == 0:
            stamp('s%d' % step)
        if step == 0 and a == 4:
            g_store()
        ms = []
        if ks == 0:
            ms.append((ONE, CS + 4 * a))
        for T in range(4):
            ms.append((ACC + 16 * a + 4 * T, XF + 16 * ks + 4 * T))
        for i, (acc, b) in enumerate(ms):
            e('v_mfma_f32_16x16x32_bf16 %s, %s, %s, %s' % (vr(acc, 4), vr(AF + 4 * a, 4), vr(b, 4), '0' if step == 0 and (acc != ONE or a == 0) else vr(acc, 4)))
            last = i == len(ms) - 1
            if step < 15:
                if last:
                    RQ.add(rd_a(step + 1, a), gate)
                if (a == 0 and last) if ks == 1 else (a == 0 and i == 1):
                    for T in range(4):
                        RQ.add(rd_x(step + 1, T), gate)
            if step == 15 and a == 0 and i == 0:
                def csw():
                    e('s_mov_b32 exec_lo, 0x1f001f')
                    e('s_mov_b32 exec_hi, 0x1f001f')
                    A.ds('ds_write_b128 %s, %s' % (vr(vCW), vr(ONE, 4)), 'csw')
                    e('s_mov_b64 exec, -1')
                RQ.add([(2, csw)])
                for q in range(5):
                    RQ.add([(1, lambda q=q: A.ds('ds_read_b128 %s, %s offset:%d' % (vr(CS + 4 * q, 4), vr(vCO), 64 * q), 'cso'))])
            bud = OPT['BUD0'] if step < OPT['NB0'] else 2
            if last and a in (1, 3, 4) and not (ks == 1 and a == 3):
                bud = 0 if (ks == 1 and a == 1) else 1
            if bud == 0:
                while RQ.ready():
                    RQ.pop1()
            gap(bud, 16)
print('K loop estimate', clk[0], 'left DQ', len(DQ.q), 'FQ', len(FQ.q))
FQ.flush()
RQ.flush()
stamp('kloop')

DQ.add(resg_loads(), 'sx')
tab_rd(K0, R_CF, 'k0')
tab_rd(K1, R_L1, 'k1')
A.wait_lg('csr')
AUTO['nxt'] = AUTO['t'] + max(0, clk[1] - clk[0])
auto(True)
for q in range(5):
    src = (XF + 4 * q) if q < 4 else AF
    for h in (0, 2):
        e('v_pk_add_f32 %s, %s, %s' % (vr(CS + 4 * q + h, 2), vr(CS + 4 * q + h, 2), vr(src + h, 2)))
LOB = 'op_sel:[0,0,0] op_sel_hi:[1,0,1]'
HIB = 'op_sel:[0,1,0] op_sel_hi:[1,1,1]'
RR, II = ACC, ACC + 16
tq = XF
tZ, tO = tq, B1
def gelu_tile(v, tag, mid=None):
    for hh in range(2):
        prs = [(2 * hh + a, h) for a in range(2) for h in range(2)]
        accp = lambda T, h: ACC + 32 + 16 * v + 4 * T + 2 * h
        for (T, h) in prs:
            e('v_pk_fma_f32 %s, %s, %s, %s %s' % (vr(accp(T, h), 2), vr(BU + 4 * v + 2 * h, 2), vr(ST + 4 * T, 2), vr(accp(T, h), 2), HIB))
        for (T, h) in prs:
            e('v_pk_fma_f32 %s, %s, %s, %s %s %s' % (vr(accp(T, h), 2), vr(CS + 8 + 4 * v + 2 * h, 2), vr(ST + 4 * T, 2), vr(accp(T, h), 2), LOB, NEG1))
        for i, (T, h) in enumerate(prs):
            e('v_pk_mul_f32 %s, %s, %s' % (vr(tZ + 2 * i, 2), vr(accp(T, h), 2), vr(accp(T, h), 2)))
        for i, (T, h) in enumerate(prs):
            e('v_pk_fma_f32 %s, %s, %s, %s op_sel:[0,1,0] op_sel_hi:[1,1,0]' % (vr(tZ + 2 * i, 2), vr(tZ + 2 * i, 2), vr(ST + 4 * T + 2, 2), vr(ST + 4 * T + 2, 2)))
        for i, (T, h) in enumerate(prs):
            e('v_pk_mul_f32 %s, %s, %s' % (vr(tZ + 2 * i, 2), vr(tZ + 2 * i, 2), vr(accp(T, h), 2)))
        for i in range(8):
            e('v_exp_f32 %s, %s' % (vr(tZ + i), vr(tZ + i)))
        for i, (T, h) in enumerate(prs):
            e('v_pk_fma_f32 %s, %s, %s, %s op_sel:[0,1,1] op_sel_hi:[1,1,1]' % (vr(tZ + 2 * i, 2), vr(tZ + 2 * i, 2), vr(ST + 4 * T, 2), vr(ST + 4 * T, 2)))
        for i in range(8):
            e('v_rcp_f32 %s, %s' % (vr(tZ + i), vr(tZ + i)))
        for i, (T, h) in enumerate(prs):
            e('v_pk_mul_f32 %s, %s, %s' % (vr(tZ + 2 * i, 2), vr(tZ + 2 * i, 2), vr(accp(T, h), 2)))
        o = tO + 4 * hh
        for i in (0, 2, 1, 3):
            e('v_cvt_pk_bf16_f32 %s, %s, %s' % (vr(o + i), vr(tZ + 2 * i), vr(tZ + 2 * i + 1)))
        if mid:
            mid(hh)
        auto(False)
        e('v_permlane16_swap_b32 %s, %s' % (vr(o), vr(o + 2)))
        so = sHM
        if v:
            so = sU0
            if hh == 0:
                S('s_add_u32 %s, %s, %s', sU0, sHM, str(4096 * v))
        if v == 2:
            S('s_cmp_eq_u32 %s, 0', sF1)
        e('v_permlane16_swap_b32 %s, %s' % (vr(o + 1), vr(o + 3)))
        if v == 2:
            lab = newlab('skip')
            e('s_cbranch_scc1 %s' % lab)
        A.vmem('buffer_store_dwordx4 %s, %s, %s, %s offen offset:%d sc1' % (vr(o, 4), vr(vL16), sr(dWS, 4), sr(so), 1024 * hh), tag, opt=(v == 2))
        if v == 2:
            A.label(lab)
        auto(True)
for T in range(4):
    for part in range(2):
        for h in (0, 2):
            r = ACC + 16 * part + 4 * T + h
            e('v_pk_fma_f32 %s, %s, %s, %s %s %s' % (vr(r, 2), vr(CS + 4 * part + h, 2), vr(SS + 2 * T, 2), vr(r, 2), LOB, NEG1))
    if T == 0:
        A.wait_lg('k0')
    for q in (0, 2, 4, 6):
        e('v_pk_mul_f32 %s, %s, %s op_sel:[0,1] op_sel_hi:[1,1]' % (vr(tq + q, 2), vr(K0 + q, 2), vr(SS + 2 * T, 2)))
    if T == 3:
        tab_rd(K0, 1, 'k0')
    for h in (0, 2):
        e('v_pk_mul_f32 %s, %s, %s' % (vr(tq + 8 + h, 2), vr(RR + 4 * T + h, 2), vr(tq + 4 + h, 2)))
    for h in (0, 2):
        e('v_pk_mul_f32 %s, %s, %s' % (vr(RR + 4 * T + h, 2), vr(RR + 4 * T + h, 2), vr(tq + h, 2)))
    for h in (0, 2):
        e('v_pk_fma_f32 %s, %s, %s, %s %s' % (vr(RR + 4 * T + h, 2), vr(II + 4 * T + h, 2), vr(tq + 4 + h, 2), vr(RR + 4 * T + h, 2), NEG1))
    for h in (0, 2):
        e('v_pk_fma_f32 %s, %s, %s, %s' % (vr(II + 4 * T + h, 2), vr(II + 4 * T + h, 2), vr(tq + h, 2), vr(tq + 8 + h, 2)))
tab_rd(tq, 2, 'k2')
tab_rd(tq + 8, 4, 'k3')
A.wait_lg('k1')
for T in range(1, 4):
    pk_cfma4(RR + 4 * T, II + 4 * T, RR + 4 * T - 4, II + 4 * T - 4, K1, RR + 4 * T, II + 4 * T)
tab_rd(K1, 8, 'k1')
cur = (RR + 12, II + 12)
L64, L512, P128, S0 = K0, K0 + 2, K0 + 4, K0 + 6
for lv in range(4):
    k = [K0, tq, tq + 8, K1][lv]
    for part in range(2):
        for i in range(4):
            e('v_mov_b32_dpp %s, %s row_shr:%d row_mask:0xf bank_mask:0xf bound_ctrl:0' % (vr(SE + 4 * part + i), vr(cur[part] + i), 1 << lv))
    if lv in (0, 3):
        A.wait_lg(['k3', 'k3', 'k3', 'k1'][lv])
    pk_cfma4(SA, SA + 4, SE, SE + 4, k, cur[0], cur[1])
    cur = (SA, SA + 4)
    if lv == 0:
        for (dst, row, ad) in ((L64, R_L64, vTC), (L512, R_L512, vTC), (P128, 0, vTG)):
            for part in range(2):
                A.ds('ds_read_b32 %s, %s offset:%d' % (vr(dst + part), vr(ad), row * TROW + part * 128), 'kc')
auto(False)
e('s_mov_b32 exec_lo, 0x80008000')
e('s_mov_b32 exec_hi, 0x80008000')
A.ds('ds_write_b128 %s, %s' % (vr(vCR), vr(SA, 4)), 'sx')
A.ds('ds_write_b128 %s, %s offset:64' % (vr(vCR), vr(SA + 4, 4)), 'sx')
e('s_mov_b64 exec, -1')
GR = tq + 12
for part in range(2):
    for i in range(4):
        e('v_mov_b32_dpp %s, %s row_shr:1 row_mask:0xf bank_mask:0xf bound_ctrl:0' % (vr(SE + 4 * part + i), vr(SA + 4 * part + i)))
e('v_mov_b32 %s, %s' % (vr(GR + 2), sr(sTAG)))
e('v_mov_b32 %s, %s' % (vr(GR + 3), sr(sTAG)))
A.wait_lg0()
e('s_barrier')
A.ds('ds_read2_b32 %s, %s offset0:160 offset1:176' % (vr(S0, 2), vr(vSXR)), 's0')
A.ds('ds_read2_b32 %s, %s offset0:0 offset1:16' % (vr(GR, 2), vr(vSXR)), 's0')
DQ.open.add('sx')
print('DQ left at Spub', len(DQ.q))
lab = newlab('np')
S('s_cmp_eq_u32 %s, 0', sTH)
e('s_cbranch_scc1 %s' % lab)
e('s_waitcnt lgkmcnt(0)')
cfma(GR, GR + 1, S0, S0 + 1, L64, L64 + 1, GR, GR + 1)
e('s_mov_b64 exec, 0xffff')
A.vmem('buffer_store_dwordx4 %s, %s, %s, %s offen sc1' % (vr(GR, 4), vr(vL16), sr(dWS, 4), sr(sSGO)), 'S', opt=True)
e('s_mov_b64 exec, -1')
A.label(lab)
stamp('Spub')
auto(True)

vQ = 152
vPD = vWT
def lb_issue():
    for i in range(4):
        A.vmem('buffer_load_dwordx4 %s, %s, %s, %s offen sc1' % (vr(vQ + 4 * i, 4), vr(vPA + i), sr(dWS, 4), sr(sSG)), 'lb')
def lb_check():
    for i in range(4):
        e('v_xor_b32 %s, %s, %s' % (vr(vQ + 4 * i + 3), sr(sTAG), vr(vQ + 4 * i + 2)))
    for i in range(4):
        e('v_cndmask_b32 %s, 0, %s, %s' % (vr(vQ + 4 * i + 3), vr(vQ + 4 * i + 3), sr(sMSK[i], 2)))
    e('v_or3_b32 %s, %s, %s, %s' % (vr(vQ + 3), vr(vQ + 3), vr(vQ + 7), vr(vQ + 11)))
    e('v_or_b32 %s, %s, %s' % (vr(vQ + 3), vr(vQ + 3), vr(vQ + 15)))
    e('v_cmp_ne_u32 vcc, 0, %s' % vr(vQ + 3))
def poll(tag, so):
    return lambda: A.vmem('buffer_load_dword %s, %s, %s, %s offen sc1' % (vr(vPD), vr(vPF), sr(dWS, 4), sr(so)), tag)
def p_check():
    e('v_cmp_ne_u32 vcc, %s, %s' % (sr(sTAG), vr(vPD)))
pa_issue, pb_issue = poll('pa', sPA), poll('pb', sPB)
def lbp(k):
    if k == 0:
        print('DQ left at the first HM store', len(DQ.q))
        if OPT['FL0']:
            DQ.flush()
    if k == 6:
        DQ.flush()
    if OPT['LBPOS'] == k:
        lb_issue()
for i, v in enumerate((2, 0, 1)):
    gelu_tile(v, 'HM', lambda hh: lbp(2 * i + hh))
stamp('gelu')
auto(False)
lbp(6)
KP = [tq, tq + 8, CS, CS + 8]
tab_rd(K1, 0, 'kp', vTI)
for T, row in enumerate((R_L1, R_L2, R_L3, 1)):
    tab_rd(KP[T], row, 'kp')
NR, RING = 22, 152
LD, MF = [], []
for (t, s0, s1) in ((0, 0, 11), (1, 0, OPT['NB1']), (0, 11, 19), (1, OPT['NB1'], 19)):
    tl = OPT['TL%d' % t] if s1 == 19 else 0
    for s in range(s0, s1 - tl):
        for hh in range(2):
            MF += [(len(LD), 0), (len(LD), 1)]
            LD.append((t, s, hh))
    for hh in range(2):
        for dh in range(2):
            MF += [(len(LD) + k, dh) for k in range(tl)]
        LD += [(t, s, hh) for s in range(s1 - tl, s1)]
FS = LD.index((0, 11, 0))
hf = [0]
cur = [None, 0]
def hload():
    f = hf[0]
    t, s, hh = LD[f]
    n = 3
    if f == FS - OPT['PBD']:
        pb_issue()
        n += 2
    if f == FS:
        A.wait_vm('pb')
        retry_loop('pb', pb_issue, p_check, 61)
        stamp('pbok')
        n += 3
    base = (sH2 if t else sH1) if s < 11 else (sP2 if t else sP1)
    off = (TOFF[s] if s < 11 else s - 11) * 2048 + hh * 1024
    if off < 4096:
        so = base
    else:
        so = sHC
        if cur[0] != base or not 0 <= off - cur[1] < 4096:
            cur[0], cur[1] = base, off
            S('s_add_u32 %s, %s, %s', sHC, base, str(off))
            n += 1
        off -= cur[1]
    A.vmem('buffer_load_dwordx4 %s, %s, %s, %s offen offset:%d%s' % (ar(RING + 4 * (f % NR), 4), vr(vL16), sr(dWS, 4), sr(so), off, '' if OPT['X'] & 16 else ' sc1'), 'h%d' % f)
    hf[0] += 1
    return n

RD, RES, PXR, pT, TB = 128, 192, 208, 224, 240
vOO, vRW, vRR, vRR2 = vGO, vCW, vCR, vSXR
TILE = 64 * 272
AD, vCA = 32, 40
def xw_block(k):
    if OPT['XWP'] != k:
        return
    S('s_lshl_b32 %s, %s, 11', sT0, sW)
    S('s_add_u32 %s, %s, %s', sT0, sT0, str(PE))
    S('s_add_u32 %s, %s, %s', sT1, sME, str(2 * SLOT))
    for i, sb in enumerate((sT0, sM8, sME, sT1)):
        e('v_add_u32 %s, %s, %s' % (vr(AD + 2 * i), sr(sb), vr(vTRL)))
        e('v_xor_b32 %s, 64, %s' % (vr(AD + 2 * i + 1), vr(AD + 2 * i)))
    e('v_bfe_u32 %s, %s, 1, 3' % (vr(vCA), vr(vLANE)))
    e('v_xor_b32 %s, %s, %s' % (vr(vCA), vr(vCA), vr(vHI5)))
    e('v_lshlrev_b32 %s, 4, %s' % (vr(vCA), vr(vCA)))
    e('v_lshl_add_u32 %s, %s, 7, %s' % (vr(vCA), vr(vLO5), vr(vCA)))
    S('s_add_u32 %s, %s, %s', sT0, sM8, str(2 * SLOT))
    e('v_add_u32 %s, %s, %s' % (vr(vCA), sr(sT0), vr(vCA)))
    for sub in range(1, 4):
        e('v_xor_b32 %s, %d, %s' % (vr(vCA + sub), 32 * sub, vr(vCA)))
    A.wait_vm('W')
    for st in range(11):
        for dh in range(2):
            for half in range(2):
                if st == 0:
                    ad, off = AD, 0
                elif st <= 8:
                    ad, off = AD + 2, ((st - 1) // 4) * SLOT + ((st - 1) % 4) * 2048
                else:
                    ad, off = AD + 4 + 2 * (st - 9), 0
                A.ds('ds_read_b64_tr_b16 %s, %s offset:%d' % (ar(8 * st + 4 * dh + 2 * half, 2), vr(ad + dh), off + half * 512), 'xw')
    for part in range(2):
        for sub in range(4):
            for dh in range(2):
                A.ds('ds_read_b128 %s, %s offset:%d' % (ar(8 * (11 + 2 * sub + part) + 4 * dh, 4), vr(vCA + sub), part * SLOT + dh * 4096), 'xw')
xw_block(0)
def fap(k):
    if OPT['FAP'] == k:
        A.wait_vm('HM')
        stamp('HMdone')
        flag(WS_FA, 'fa')
        if OPT['PTOUCH'] & 1:
            e('v_lshlrev_b32 %s, 7, %s' % (vr(vCT), vr(vLO4)))
            e('v_lshl_add_u32 %s, %s, 12, %s' % (vr(vCT), vr(vG), vr(vCT)))
            S('s_mov_b32 exec_hi, %s', sF1)
            A.vmem('buffer_load_dword %s, %s, %s, %s offen sc1' % (vr(vSCR), vr(vCT), sr(dWS, 4), sr(sHM)), 'touch')
            e('s_mov_b32 exec_hi, -1')
        stamp('fa')
A.wait_vm('lb')
stamp('lb1')
fap(0)
retry_loop('lb', lb_issue, lb_check, 59)
stamp('Sgot')
for i in range(4):
    e('v_cndmask_b32 %s, 0, %s, %s' % (vr(vQ + 4 * i), vr(vQ + 4 * i), sr(sMSK[i], 2)))
    e('v_cndmask_b32 %s, 0, %s, %s' % (vr(vQ + 4 * i + 1), vr(vQ + 4 * i + 1), sr(sMSK[i], 2)))
for i in (2, 1, 0):
    cfma(vQ + 4 * i, vQ + 4 * i + 1, vQ + 4 * i + 4, vQ + 4 * i + 5, L512, L512 + 1, vQ + 4 * i, vQ + 4 * i + 1)
hr, hi_, h2, h3 = vQ + 4, vQ + 5, vQ + 6, vQ + 7
cmul(hr, hi_, vQ, vQ + 1, P128, P128 + 1)
for sw in ('v_permlane16_swap_b32', 'v_permlane32_swap_b32'):
    e('v_mov_b32 %s, %s' % (vr(h2), vr(hr)))
    e('v_mov_b32 %s, %s' % (vr(h3), vr(hi_)))
    e('%s %s, %s' % (sw, vr(hr), vr(h2)))
    e('%s %s, %s' % (sw, vr(hi_), vr(h3)))
    e('v_add_f32 %s, %s, %s' % (vr(hr), vr(hr), vr(h2)))
    e('v_add_f32 %s, %s, %s' % (vr(hi_), vr(hi_), vr(h3)))
auto(False)
A.wait_lg('s0')
lab = newlab('t0')
S('s_cmp_eq_u32 %s, 0', sTH)
e('s_cbranch_scc1 %s' % lab)
cfma(S0, S0 + 1, hr, hi_, L64, L64 + 1, S0, S0 + 1)
e('v_mov_b32 %s, %s' % (vr(hr), vr(S0)))
e('v_mov_b32 %s, %s' % (vr(hi_), vr(S0 + 1)))
A.label(lab)
A.ds('ds_write2_b32 %s, %s, %s offset0:32 offset1:48' % (vr(vSXW), vr(hr), vr(hi_)), 'cy')
A.ds('ds_read_b128 %s, %s offset:128' % (vr(SA, 4), vr(vCR)), 'cy')
A.ds('ds_read_b128 %s, %s offset:192' % (vr(SA + 4, 4), vr(vCR)), 'cy')
fap(1)
A.wait_lg0()
pk_cfma4(SE, SE + 4, SA, SA + 4, K1, SE, SE + 4)
for hh in range(2):
    for T in (2 * hh, 2 * hh + 1):
        pk_cfma4(RR + 4 * T, II + 4 * T, SE, SE + 4, KP[T], RR + 4 * T, II + 4 * T)
    for part in range(2):
        o = vQ + 8 * hh + 4 * part
        b = ACC + 16 * part + 8 * hh
        ng = '-' if part else ''
        for i in range(4):
            e('v_cvt_pk_bf16_f32 %s, %s%s, %s%s' % (vr(o + i), ng, vr(b + 2 * i), ng, vr(b + 2 * i + 1)))
    if hh == 0:
        fap(2)
    for part in range(2):
        o = vQ + 8 * hh + 4 * part
        e('v_permlane16_swap_b32 %s, %s' % (vr(o), vr(o + 2)))
        e('v_permlane16_swap_b32 %s, %s' % (vr(o + 1), vr(o + 3)))
        A.vmem('buffer_store_dwordx4 %s, %s, %s, %s offen offset:%d sc1' % (vr(o, 4), vr(vL16), sr(dWS, 4), sr(sHS), 2048 * part + 1024 * hh), 'HS')
stamp('epi')

xw_block(1)
eX, eS, eD = 128, 136, 140
fD, fB, fU, fM = 144, 148, 152, 156
def res_pre():
    A.wait_vm('res')
    for i in range(16):
        e('v_accvgpr_read_b32 %s, a%d' % (vr(eX + [0, 1, 2, 3, 4, 5, 6, 7, 12, 13, 14, 15, 8, 9, 10, 11][i]), 240 + i))
    for (dst, src) in ((fD, eD), (fB, eD + 2)):
        for hh in range(2):
            e('v_lshlrev_b32 %s, 16, %s' % (vr(dst + 2 * hh), vr(src + hh)))
            e('v_and_b32 %s, 0xffff0000, %s' % (vr(dst + 2 * hh + 1), vr(src + hh)))
def res_q(q):
    r = RES + 4 * q
    e('v_and_b32 %s, 0xffff0000, %s' % (vr(fM + 1), vr(eS + q)))
    e('v_lshlrev_b32 %s, 16, %s' % (vr(fM), vr(eS + q)))
    e('v_rcp_f32 %s, %s' % (vr(fM + 1), vr(fM + 1)))
    for hh in range(2):
        e('v_lshlrev_b32 %s, 16, %s' % (vr(r + 2 * hh), vr(eX + 2 * q + hh)))
        e('v_and_b32 %s, 0xffff0000, %s' % (vr(r + 2 * hh + 1), vr(eX + 2 * q + hh)))
    def rnd4():
        e('v_cvt_pk_bf16_f32 %s, %s, %s' % (vr(fU + 1), vr(fU), vr(fU + 1)))
        e('v_cvt_pk_bf16_f32 %s, %s, %s' % (vr(fU + 3), vr(fU + 2), vr(fU + 3)))
        e('v_lshlrev_b32 %s, 16, %s' % (vr(fU), vr(fU + 1)))
        e('v_lshlrev_b32 %s, 16, %s' % (vr(fU + 2), vr(fU + 3)))
        e('v_and_b32 %s, 0xffff0000, %s' % (vr(fU + 1), vr(fU + 1)))
        e('v_and_b32 %s, 0xffff0000, %s' % (vr(fU + 3), vr(fU + 3)))
    for hh in range(2):
        e('v_pk_add_f32 %s, %s, %s op_sel:[0,0] op_sel_hi:[1,0] neg_lo:[0,1] neg_hi:[0,1]' % (vr(fU + 2 * hh, 2), vr(r + 2 * hh, 2), vr(fM, 2)))
    rnd4()
    for hh in range(2):
        e('v_pk_mul_f32 %s, %s, %s op_sel:[0,1] op_sel_hi:[1,1]' % (vr(fU + 2 * hh, 2), vr(fU + 2 * hh, 2), vr(fM, 2)))
    rnd4()
    for hh in range(2):
        e('v_pk_mul_f32 %s, %s, %s' % (vr(fU + 2 * hh, 2), vr(fU + 2 * hh, 2), vr(fD + 2 * hh, 2)))
    rnd4()
    for hh in range(2):
        e('v_pk_add_f32 %s, %s, %s' % (vr(r + 2 * hh, 2), vr(r + 2 * hh, 2), vr(fU + 2 * hh, 2)))
    for hh in range(2):
        e('v_pk_add_f32 %s, %s, %s' % (vr(r + 2 * hh, 2), vr(r + 2 * hh, 2), vr(fB + 2 * hh, 2)))

F2 = Q()
e('v_lshrrev_b32 %s, 3, %s' % (vr(vRR), vr(vLO4)))
e('v_lshlrev_b32 %s, 12, %s' % (vr(vRR), vr(vRR)))
e('v_lshl_add_u32 %s, %s, 8, %s' % (vr(vRR), vr(vHI5), vr(vRR)))
e('v_and_b32 %s, 0x17, %s' % (vr(vRR2), vr(vLANE)))
e('v_and_b32 %s, 7, %s' % (vr(vRW), vr(vLANE)))
e('v_add_u32 %s, %s, %s' % (vr(vRR2), vr(vRR2), vr(vRW)))
e('v_lshl_add_u32 %s, %s, 3, %s' % (vr(vRR), vr(vRR2), vr(vRR)))
S('s_lshl_b32 %s, %s, 13', sT0, sTH)
S('s_lshl_b32 %s, %s, 11', sT1, sPH)
S('s_add_u32 %s, %s, %s', sT0, sT0, sT1)
e('v_add_u32 %s, %s, %s' % (vr(vRR), sr(sT0), vr(vRR)))
e('v_add_u32 %s, 0x10000, %s' % (vr(vRR2), vr(vRR)))
S('s_lshl_b32 m0, %s, 14', sW)
S('s_add_u32 %s, %s, %s', sP1, sH1, sSSM)
S('s_add_u32 %s, %s, %s', sP2, sH2, sSSM)
S('s_movk_i32 %s, 0xff', sBM)
for i in range(4):
    e('v_bfe_u32 %s, %s, %d, 8' % (vr(TB + i), vr(vTAG), 8 * i))
if OPT['RQ'] == -1:
    pa_issue()
res_pre()
A.wait_lg0()
stamp('xw')
e('s_barrier')
stamp('bx')
for q in range(5):
    if q == OPT['RQ']:
        pa_issue()
    if q < 4:
        res_q(q)
e('v_lshlrev_b32 %s, 1, %s' % (vr(vOO), vr(vXO)))
stamp('res')
A.wait_vm('HS')
stamp('HSdone')
flag(WS_FB, 'fb')
def hs_touch():
    e('v_lshlrev_b32 %s, 5, %s' % (vr(vCT), vr(vTM)))
    e('s_mov_b32 exec_hi, 0')
    A.vmem('buffer_load_dword %s, %s, %s, %s offen sc1' % (vr(vSCR), vr(vCT), sr(dWS, 4), sr(sHS)), 'touch')
    e('s_mov_b32 exec_hi, -1')
if OPT['PTOUCH'] & 2:
    hs_touch()
stamp('fb')
A.wait_vm('pa')
stamp('pa1')
retry_loop('pa', pa_issue, p_check, 60)
stamp('paok')
for i in range(OPT['NPRE']):
    hload()
if OPT['PTOUCH'] & 4:
    hs_touch()
e('v_lshrrev_b32 %s, 1, %s' % (vr(vPF), vr(vPF)))
assert OPT['NPRE'] <= FS - OPT['PBD']
M1 = 16320
def red_write(t, k):
    A.ds('ds_write_addtid_b32 %s offset:%d' % (vr(64 * t + k), t * (65536 - M1) + 256 * k), 'rw')
def red_read(t, q, part):
    A.ds('ds_read_b128 %s, %s offset:%d' % (vr(RD + 16 * q + 4 * part, 4), vr(vRR2 if t else vRR), part * 16384 + (q >> 1) * 1024 + (q & 1) * 512), 'rr%d' % q)
def px_issue():
    for k in range(4):
        A.vmem('buffer_load_dwordx4 %s, %s, %s, %s offen offset:%d sc1' % (vr(PXR + 4 * k, 4), vr(vL16), sr(dWS, 4), sr(sPX), k * 1024), 'px')
def px_check():
    for k in range(16):
        e('v_xor_b32 %s, %s, %s' % (vr(PXR + k), vr(TB + (k & 3)), vr(PXR + k)))
    for k in range(4):
        e('v_or3_b32 %s, %s, %s, %s' % (vr(pT + k), vr(PXR + 4 * k), vr(PXR + 4 * k + 1), vr(PXR + 4 * k + 2)))
    e('v_or3_b32 %s, %s, %s, %s' % (vr(pT), vr(pT), vr(PXR + 3), vr(PXR + 7)))
    e('v_or3_b32 %s, %s, %s, %s' % (vr(pT + 1), vr(pT + 1), vr(PXR + 11), vr(PXR + 15)))
    e('v_or3_b32 %s, %s, %s, %s' % (vr(pT), vr(pT), vr(pT + 2), vr(pT + 3)))
    e('v_or_b32 %s, %s, %s' % (vr(pT), vr(pT), vr(pT + 1)))
    e('v_and_b32 %s, %s, %s' % (vr(pT), sr(sBM), vr(pT)))
    e('v_cmp_ne_u32 vcc, 0, %s' % vr(pT))
def al_issue(opt=True):
    e('v_lshlrev_b32 v8, 7, %s' % vr(vLANE))
    for i in range(4):
        S('s_mov_b32 %s, %s', sT0, hex(WS_G + 8192 * i))
        A.vmem('buffer_load_dword v%d, v8, %s, %s offen offset:12 sc1' % (i, sr(dWS, 4), sr(sT0)), 'alp', opt=opt)
def al_check():
    for i in range(4):
        e('v_xor_b32 v%d, %s, v%d' % (4 + i, sr(sTAG), i))
    e('v_or3_b32 v4, v4, v5, v6')
    e('v_or_b32 v4, v4, v7')
    e('v_cmp_ne_u32 vcc, 0, v4')

left = [2] * 76
last = {}
for n, (f, dh) in enumerate(MF):
    last[(LD[f][0], LD[f][2], dh)] = n
clk = [0, -4 * OPT['HINT']]
seen = set()
for n, (f, dh) in enumerate(MF):
    t, s, hh = LD[f]
    for (tq_, hq, dq), m in sorted(last.items()):
        if n == m + 2:
            o = Ops()
            if (tq_, hq, dq) == (1, 0, 0):
                o.s('s_add_u32 m0, m0, %d' % M1)
            for k in range(16):
                o.f(lambda k=k, tq_=tq_, hq=hq, dq=dq: red_write(tq_, 32 * hq + 16 * dq + k), OPT['WC'])
            F2.add(o)
            if (tq_, hq, dq) != (0, 1, 1):
                continue
            o = Ops()
            def bar1():
                A.wait_lg0()
                e('s_barrier')
                stamp('bar1')
            o.f(lambda: None, 8)
            o.f(bar1, 4)
            for q in range(4):
                for part in range(4):
                    o.f(lambda q=q, part=part: red_read(0, q, part), 2)
            for q in range(4):
                o.f(lambda q=q: A.wait_lg('rr%d' % q))
                b = RD + 16 * q
                for i in range(4):
                    o.v('v_add_f32 %s, %s, %s' % (vr(b + i), vr(b + i), vr(b + 4 + i)))
                for i in range(4):
                    o.v('v_add_f32 %s, %s, %s' % (vr(b + 8 + i), vr(b + 8 + i), vr(b + 12 + i)))
                for i in range(4):
                    o.v('v_add_f32 %s, %s, %s' % (vr(b + i), vr(b + i), vr(b + 8 + i)))
                for i in range(4):
                    o.v('v_bfi_b32 %s, %s, %s, %s' % (vr(b + i), sr(sBM), vr(TB + i), vr(b + i)))
                o.f(lambda q=q, b=b: A.vmem('buffer_store_dwordx4 %s, %s, %s, %s offen offset:%d sc1' % (vr(b, 4), vr(vL16), sr(dWS, 4), sr(sPX), q * 1024), 'pxs'), 4)
                o.f(lambda: print(' px store at step', clk[2] / 4, 'loads issued', hf[0]), 0)
                for i in range(OPT['PXS'] if q < 3 else 0):
                    o.f(lambda: None, 5)
            o.s('s_xor_b32 %s, %s, 0x4000', sPX, sPX)
            o.f(lambda: (stamp('pxs'), seen.add('pxs'), print('px stores done at step', clk[2] / 4, 'loads issued', hf[0])), 0)
            F2.add(o)
    clk[2:] = [n]
    if n == 4 * OPT['PXPOS']:
        assert 'pxs' in seen
        px_issue()
    if n == 4 * min(37, OPT['PXPOS']):
        lab = newlab('nal')
        S('s_cmp_lg_u32 %s, 3', sGW)
        e('s_cbranch_scc1 %s' % lab)
        al_issue()
        A.label(lab)
    u = 0
    if f not in seen:
        assert hf[0] > f
        A.wait_vm('h%d' % f)
        seen.add(f)
    if n // 4 in HST and n % 4 == 0:
        stamp('h%d' % (n // 4))
    acc = vr(64 * t + 32 * hh + 16 * dh, 16)
    if not OPT['X'] & 8:
        e('v_mfma_f32_32x32x16_bf16 %s, %s, %s, %s' % (acc, ar(RING + 4 * (f % NR), 4), ar(8 * s + 4 * dh, 4), acc if s else '0'))
    left[f] -= 1
    if n + 1 < len(MF) and MF[n + 1][0] not in seen:
        u = 1
    if hf[0] < 76 and (hf[0] < NR or left[hf[0] - NR] == 0) and clk[0] >= clk[1]:
        u += hload()
        clk[1] += OPT['HINT']
    while F2.ready() and (u + F2.cost() <= OPT['RPOP'] or u <= 1):
        u += F2.cost()
        F2.pop1()
    clk[0] += max(32, 8 + 4 * u)
assert hf[0] == 76
stamp('mfma2')
if OPT['PXPOS'] == 38:
    px_issue()
print('F2 left', len(F2.q))
F2.flush()
for key, m in sorted(last.items()):
    if m + 2 >= len(MF):
        assert key != (1, 0, 0)
        for k in range(16):
            red_write(1, 32 * key[1] + 16 * key[2] + k)
A.wait_lg0()
e('s_barrier')
stamp('bar2')
if OPT['PXPOS'] == 39:
    px_issue()
for q in range(4):
    for part in range(4):
        red_read(1, q, part)
if OPT['PXPOS'] == 40:
    A.wait_vm('pxs')
    stamp('pxack')
    px_issue()
def own_sum(q):
    A.wait_lg('rr%d' % q)
    b, r = RD + 16 * q, RES + 4 * q
    for h in (0, 2):
        e('v_pk_add_f32 %s, %s, %s' % (vr(b + h, 2), vr(b + h, 2), vr(b + 4 + h, 2)))
        e('v_pk_add_f32 %s, %s, %s' % (vr(b + 8 + h, 2), vr(b + 8 + h, 2), vr(b + 12 + h, 2)))
    for h in (0, 2):
        e('v_pk_add_f32 %s, %s, %s' % (vr(r + h, 2), vr(r + h, 2), vr(b + h, 2)))
    for h in (0, 2):
        e('v_pk_add_f32 %s, %s, %s' % (vr(r + h, 2), vr(r + h, 2), vr(b + 8 + h, 2)))
for q in range(4):
    own_sum(q)
A.wait_vm('px')
stamp('px1')
retry_loop('px', px_issue, px_check, 62)
stamp('pxok')
for q in range(4):
    r = RES + 4 * q
    for h in (0, 2):
        e('v_pk_add_f32 %s, %s, %s' % (vr(r + h, 2), vr(r + h, 2), vr(PXR + 4 * q + h, 2)))
    S('s_mov_b32 %s, %s', sT0, str(QR[q] * 8192))
    A.vmem('buffer_store_dwordx4 %s, %s, %s, %s offen%s' % (vr(r, 4), vr(vOO), sr(dO, 4), sr(sT0), ['', ' sc1', ' nt', ' sc0 sc1'][OPT['OUTSC']]), 'out')
lab = newlab('nep')
S('s_cmp_lg_u32 %s, 3', sGW)
e('s_cbranch_scc1 %s' % lab)
A.wait_vm('alp')
retry_loop('al', al_issue, al_check, 63)
one_lane_store(8, '0', 'ep')
A.label(lab)
if PROF:
    stamp('stored')
    e('s_waitcnt vmcnt(0)')
    stamp('drained')
    stamp('rt1', True)
    A.wait_lg0()
    e('v_lshlrev_b32 v16, 2, %s' % vr(vLANE))
    if DBGT:
        e('s_load_dwordx2 s[40:41], s[0:1], 120')
        e('v_not_b32 v17, %s' % vr(vSTAMP))
        e('v_cmp_eq_u32 vcc, 0, %s' % vr(vLANE))
        e('s_nop 1')
        e('v_cndmask_b32 v17, %s, v17, vcc' % vr(vSTAMP))
        e('s_waitcnt lgkmcnt(0)')
        e('s_mov_b64 exec, 0xffff')
        e('global_atomic_umax v16, v17, s[40:41] sc1')
        e('s_mov_b64 exec, -1')
    S('s_lshl_b32 %s, %s, 8', sT0, sGW)
    S('s_add_u32 %s, %s, %s', sT0, sT0, hex(WS_PROF))
    e('buffer_store_dword %s, v16, %s, %s offen' % (vr(vSTAMP), sr(dWS, 4), sr(sT0)))
    json.dump(SNAMES, open(OUT + '.names', 'w'))
A.label('L_end')
e('s_endpgm')

body, nops = hazard_pass(A.lines)
head = open('cdna_kernels/%s.s.ref' % NAME).read().split('; Override launch')[0]
txt = head + '; @launch grid=(256,1,1) block=(256,1,1) lds=%d\n' % LDS_BYTES
txt += '''.amdgcn_target "amdgcn-amd-amdhsa--gfx950"
.text
.globl %s_kernel
.p2align 8
.type %s_kernel,@function
%s_kernel:
''' % (NAME, NAME, NAME)
txt += '\n'.join(body) + '\n'
txt += '''.section .rodata,"a"
.p2align 6
.amdhsa_kernel %s_kernel
  .amdhsa_next_free_vgpr 512
  .amdhsa_next_free_sgpr 102
  .amdhsa_accum_offset 256
  .amdhsa_group_segment_fixed_size 0
  .amdhsa_kernarg_size 136
  .amdhsa_user_sgpr_count 2
  .amdhsa_user_sgpr_kernarg_segment_ptr 1
  .amdhsa_system_sgpr_workgroup_id_x 1
.end_amdhsa_kernel
''' % NAME
open(OUT, 'w').write(txt)
print('wrote', OUT, 'lines', len(body), 'nops', nops)
```

```python
import re

REG_RE = re.compile(r'^(-?)(?:abs\()?([vas])(?:(\d+)|\[(\d+):(\d+)\])\)?$')
TRANS = ('v_exp_f32', 'v_rcp_f32', 'v_rsq_f32', 'v_sqrt_f32', 'v_sin_f32', 'v_cos_f32', 'v_log_f32')


def regs_of(op):
    op = op.strip()
    if op == 'vcc':
        return {('s', 'vcc')}
    if op == 'exec':
        return {('s', 'exec')}
    if op == 'm0':
        return {('s', 'm0')}
    m = REG_RE.match(op)
    if not m:
        return set()
    k = m.group(2)
    if m.group(3) is not None:
        return {(k, int(m.group(3)))}
    return {(k, i) for i in range(int(m.group(4)), int(m.group(5)) + 1)}


class Ins:
    def __init__(self, text):
        self.text = text
        t = text.split(';')[0].strip()
        parts = t.split(None, 1)
        self.mn = parts[0]
        rest = parts[1] if len(parts) > 1 else ''
        ops = [o.strip() for o in re.split(r',(?![^\[]*\])', rest)] if rest else []
        self.mods = ''
        if ops:
            last = ops[-1].split(None, 1)
            ops[-1] = last[0]
            if len(last) > 1:
                self.mods = last[1]
        self.ops = ops
        mn = self.mn
        self.w = set()
        self.r = set()
        self.kind = 'other'
        self.states = 1
        R = [regs_of(o) for o in ops]
        allr = lambda xs: set().union(*xs) if xs else set()
        if mn.startswith('v_mfma'):
            self.kind = 'mfma'
            self.passes = 8 if '32x32' in mn else 4
            self.w = R[0]
            self.rA, self.rB, self.rC = R[1], R[2], R[3]
            self.r = R[1] | R[2] | R[3]
        elif mn.startswith('v_'):
            self.kind = 'valu'
            self.w = set(R[0])
            self.r = allr(R[1:])
            if 'permlane' in mn and 'swap' in mn:
                self.w = R[0] | R[1]
                self.r = R[0] | R[1]
            if mn.startswith('v_fmac') or mn.startswith('v_dot2c') or '_dpp' in mn:
                self.r |= R[0]
            if mn.startswith('v_cndmask') and len(ops) == 3:
                self.r |= {('s', 'vcc')}
            if mn == 'v_nop':
                self.kind = 'other'
        elif mn.startswith('ds_'):
            self.kind = 'ds'
            if mn.startswith('ds_read') or 'permute' in mn or 'swizzle' in mn:
                self.w = R[0]
                self.r = allr(R[1:])
            else:
                self.r = allr(R)
        elif mn.startswith('buffer_') or mn.startswith('global_'):
            self.kind = 'vmem'
            self.lds = ' lds' in (' ' + self.mods)
            if 'load' in mn and not self.lds:
                self.w = R[0]
                self.r = allr(R[1:])
            else:
                self.r = allr(R)
                if self.lds:
                    self.r |= {('s', 'm0')}
            self.wide_store = ('store' in mn) and ('x4' in mn or 'x3' in mn)
            if self.wide_store:
                self.data = R[0] if mn.startswith('buffer_') else R[1]
        elif mn.startswith('s_'):
            self.kind = 'salu'
            if mn == 's_nop':
                self.states = int(ops[0], 0) + 1
            elif mn.startswith(('s_cmp', 's_waitcnt', 's_barrier', 's_branch', 's_cbranch', 's_endpgm', 's_sleep', 's_setprio', 's_bitcmp')):
                self.r = allr(R)
            else:
                self.w = set(R[0]) if R else set()
                self.r = allr(R[1:])
                if 'saveexec' in mn:
                    self.w |= {('s', 'exec')}
        self.trans = mn.replace('_e32', '').replace('_e64', '') in TRANS
        self.dpp = '_dpp' in mn
        self.perml = 'permlane' in mn
        self.rdl = mn.startswith('v_readlane') or mn.startswith('v_readfirstlane')
        self.dot = mn.startswith('v_dot')


def isv(s):
    return {x for x in s if x[0] in 'va'}


def iss(s):
    return {x for x in s if x[0] == 's'}


def need(p, c):
    n = 0
    if p.kind == 'valu':
        pv = isv(p.w)
        ps = iss(p.w)
        if c.kind == 'mfma' and pv & c.r:
            n = max(n, 2)
        if c.kind == 'valu':
            if p.trans and not c.trans and pv & c.r:
                n = max(n, 1)
            if (c.dpp or c.perml) and pv & c.r:
                n = max(n, 2)
            if c.rdl and pv & c.r:
                n = max(n, 1)
            if ps & c.r:
                n = max(n, 4 if c.rdl else 2)
            if p.dot and pv & (c.r | c.w):
                if not (c.mn == p.mn and not (pv & (regs_of(c.ops[1]) | regs_of(c.ops[2])))):
                    n = max(n, 3)
        if p.dot and c.kind in ('vmem', 'ds', 'mfma') and pv & (c.r | c.w):
            n = max(n, 3)
        if c.kind == 'vmem' and ps & c.r:
            n = max(n, 5)
        if c.kind == 'salu' and ps & c.r:
            n = max(n, 1)
    if p.kind == 'mfma':
        big = 12 if p.passes == 8 else 8
        if c.kind == 'mfma':
            if p.w & (c.rA | c.rB):
                n = max(n, big)
            if p.w & c.rC:
                if not (p.w == c.rC and p.passes == c.passes):
                    n = max(n, big - 2)
            elif p.w & c.w:
                n = max(n, big)
        elif c.kind in ('valu', 'vmem', 'ds'):
            if p.w & (c.r | c.w):
                n = max(n, big)
            if c.kind == 'valu' and p.rC & c.w:
                n = max(n, 7 if p.passes == 8 else 3)
    if p.kind == 'salu' and ('s', 'm0') in p.w and c.kind == 'vmem' and getattr(c, 'lds', False):
        n = max(n, 1)
    if p.kind == 'salu' and ('s', 'm0') in p.w and 'addtid' in c.mn:
        n = max(n, 1)
    if p.kind == 'vmem' and getattr(p, 'wide_store', False) and p.data & c.w:
        n = max(n, 2)
    return n


def hazard_pass(lines):
    out = []
    hist = [[]]
    saved = {}
    nops = 0
    W = 24
    for ln in lines:
        s = ln.strip()
        if not s or s.startswith(';') or s.startswith('.'):
            out.append(ln)
            continue
        if s.endswith(':'):
            lab = s[:-1]
            hist = hist + saved.pop(lab, [])
            uniq = []
            for h in hist:
                if h not in uniq:
                    uniq.append(h)
            hist = uniq
            out.append(ln)
            continue
        c = Ins(s)
        req = 0
        for h in hist:
            d = 0
            for p in reversed(h):
                n = need(p, c)
                if n - d > req:
                    req = n - d
                d += p.states
                if d >= W:
                    break
        while req > 0:
            k = min(req, 16)
            nop = Ins('s_nop %d' % (k - 1))
            out.append('    s_nop %d' % (k - 1))
            nops += 1
            hist = [(h + [nop])[-W:] for h in hist]
            req -= k
        out.append(ln)
        hist = [(h + [c])[-W:] for h in hist]
        if c.mn.startswith('s_cbranch') or c.mn == 's_branch':
            saved.setdefault(c.ops[0], []).extend([list(h) for h in hist])
            if c.mn == 's_branch':
                hist = []
        if c.mn == 's_endpgm':
            hist = []
        if not hist:
            hist = [[]] if c.mn not in ('s_branch', 's_endpgm') else []
        if len(hist) > 1:
            uniq = []
            for h in hist:
                if h not in uniq:
                    uniq.append(h)
            hist = uniq
    return out, nops


class Asm:
    def __init__(self):
        self.lines = []
        self.vm = []
        self.lg = []

    def e(self, s):
        self.lines.append('    ' + s)

    def c(self, s):
        self.lines.append('    ; ' + s)

    def label(self, s):
        self.lines.append(s + ':')

    def vmem(self, s, tag='x', opt=False):
        self.e(s)
        self.vm.append((tag, opt))

    def ds(self, s, tag='x'):
        self.e(s)
        self.lg.append(tag)

    def vm_n(self, tags):
        if isinstance(tags, str):
            tags = [tags]
        idx = [i for i, (t, o) in enumerate(self.vm) if t in tags]
        if not idx:
            return None
        last = idx[-1]
        n = sum(1 for (t, o) in self.vm[last + 1:] if not o)
        return n, last

    def wait_vm(self, tags):
        r = self.vm_n(tags)
        if r is None:
            return
        n, last = r
        n = min(n, 63)
        self.e('s_waitcnt vmcnt(%d)' % n)
        self.vm = self.vm[last + 1:]

    def wait_vm0(self):
        self.e('s_waitcnt vmcnt(0)')
        self.vm = []

    def wait_lg(self, tags):
        if isinstance(tags, str):
            tags = [tags]
        idx = [i for i, t in enumerate(self.lg) if t in tags]
        if not idx:
            return
        last = idx[-1]
        n = len(self.lg) - 1 - last
        if n > 15:
            last = len(self.lg) - 1 - 15
            n = 15
        self.e('s_waitcnt lgkmcnt(%d)' % n)
        self.lg = self.lg[last + 1:]

    def wait_lg0(self):
        self.e('s_waitcnt lgkmcnt(0)')
        self.lg = []


def vr(a, n=1):
    return 'v%d' % a if n == 1 else 'v[%d:%d]' % (a, a + n - 1)


def ar(a, n=1):
    return 'a%d' % a if n == 1 else 'a[%d:%d]' % (a, a + n - 1)


def sr(a, n=1):
    return 's%d' % a if n == 1 else 's[%d:%d]' % (a, a + n - 1)


NOWIDE = ('v_readfirstlane', 'v_permlane', 'v_nop', 'v_fmac', 'v_madak', 'v_madmk')


def inst_sizes(lines):
    import subprocess, tempfile, os
    d = tempfile.mkdtemp()
    src = [l for l in lines if not l.strip().startswith('.p2align')]
    open(d + '/a.s', 'w').write('.amdgcn_target "amdgcn-amd-amdhsa--gfx950"\n.text\n' + '\n'.join(src) + '\n')
    subprocess.check_call(['clang', '-x', 'assembler', '-target', 'amdgcn-amd-amdhsa', '-mcpu=gfx950', '-c', d + '/a.s', '-o', d + '/a.o'])
    t = subprocess.check_output(['llvm-objdump', '-d', d + '/a.o'], text=True)
    out = []
    for l in t.splitlines():
        m = re.search(r'^\s+(\S+).*// [0-9A-F]+: ([0-9A-F ]+)', l)
        if m:
            out.append((m.group(1), 4 * len(m.group(2).split())))
    return out


def is_inst(l):
    s = l.strip()
    return bool(s) and not s.startswith((';', '.')) and not s.endswith(':')


def align_pass(lines, nopcost=4.0):
    sz = inst_sizes(lines)
    idx = [i for i, l in enumerate(lines) if is_inst(l)]
    assert len(idx) == len(sz), (len(idx), len(sz))
    n = len(idx)
    mn = [lines[i].split()[0] for i in idx]
    def cost(m):
        return 8 if m in TRANS or m.startswith('v_mfma') else 12 if m.startswith(('buffer_', 'global_')) else 8 if m.startswith('ds_write') else 4
    slack = [0] * n
    k = 0
    while k < n:
        if mn[k].startswith('v_mfma'):
            j = k + 1
            while j < n and not mn[j].startswith('v_mfma') and j - k < 12:
                j += 1
            if j < n and mn[j].startswith('v_mfma'):
                s = (32 if '32x32' in mn[k] else 16) - sum(cost(m) for m in mn[k:j])
                for q in range(k, j):
                    slack[q] = s if s > 0 else (1 if '16x16' in mn[k] else 0)
            k = j
        else:
            k += 1
    reset = set()
    p = 0
    for q, i in enumerate(idx):
        if any(l.strip().startswith('.p2align') for l in lines[p:i]):
            reset.add(q)
        p = i
    INF = 1e18
    cur = {(0, 0): (0.0, None)}
    hist = []
    for q in range(n):
        if q in reset:
            b = min(cur, key=lambda s: cur[s][0])
            src = {(0, 0): (cur[b][0], b)}
        else:
            src = {s: (cur[s][0], s) for s in cur}
        nx = {}
        wide_ok = sz[q][1] == 4 and sz[q][0].endswith('_e32') and not mn[q].startswith(NOWIDE)
        for (par, p8), (c0, prev) in src.items():
            for nop in (0, 1):
                for wide in ((0, 1) if wide_ok else (0,)):
                    c = c0
                    pa, pp = par, p8
                    if nop:
                        c += (0.5 if q and slack[q - 1] >= 4 else nopcost)
                        pa ^= 1
                        pp = 0
                    size = 8 if wide else sz[q][1]
                    c += 0.05 * wide
                    if size == 8:
                        if pa:
                            c += 0.1 if slack[q] > 0 else (1.0 if pp else 0.3)
                        st = (pa, 0 if cost(mn[q]) > 4 else 1)
                    else:
                        st = (pa ^ 1, 0)
                    if st not in nx or c < nx[st][0]:
                        nx[st] = (c, (prev, nop, wide))
        hist.append(nx)
        cur = nx
    st = min(cur, key=lambda s: cur[s][0])
    total = cur[st][0]
    out = list(lines)
    nn = nw = 0
    for q in range(n - 1, -1, -1):
        prev, nop, wide = hist[q][st][1]
        l = out[idx[q]]
        if wide:
            l = l.replace(mn[q], mn[q] + '_e64', 1)
            nw += 1
        if nop:
            l = '    s_nop 0\n' + l
            nn += 1
        out[idx[q]] = l
        st = prev
    return '\n'.join(out).split('\n'), nn, nw, total


def layout(lines, base):
    sz = iter(inst_sizes(lines))
    out = []
    a = base
    for l in lines:
        if l.strip().startswith('.p2align'):
            g = 1 << int(l.split()[1])
            a = (a + g - 1) // g * g
        if is_inst(l):
            out.append(a)
            a += next(sz)[1]
        else:
            out.append(None)
    return out, a


def stub_pass(lines, base, first, count, nopcost, off=0):
    lines = list(lines)
    tail = ['L_stub_%d:' % k for k in range(count)]
    def build(ls, k):
        ls = ls + ['L_stub_%d:' % q for q in range(k, count)]
        marked = [l + ' ; #%d' % i if is_inst(l) else l for i, l in enumerate(ls)]
        al = align_pass(marked, nopcost) if nopcost else (marked, 0, 0, 0)
        ad, end = layout(al[0], base)
        pos = {}
        for l, a in zip(al[0], ad):
            m = re.search(r' ; #(\d+)$', l)
            if m:
                pos[int(m.group(1))] = a
        return al, pos, end
    for k in range(count):
        P = (first + k) * 4096 + off
        al, pos, end = build(lines, k)
        assert end > P, 'no such page'
        cand = sorted(i for i in pos if pos[i] >= P)[:4]
        for i in cand:
            t = lines[:i] + ['L_stub_%d:' % k, '    s_cbranch_execz L_back'] + lines[i:]
            al, pos, end = build(t, k + 1)
            if P <= pos[i + 1] < P + 48:
                lines = t
                break
        else:
            assert False
    al, pos, end = build(lines, count)
    for k in range(count):
        i = lines.index('L_stub_%d:' % k)
        P = (first + k) * 4096 + off
        assert P <= pos[i + 1] < P + 60, (k, hex(pos[i + 1]))
    return [re.sub(r' ; #\d+$', '', l) for l in al[0]], al[1], al[2], al[3]
```

```python
import sys, math, struct, json
from asmlib import *

NAME = 'parallel_sum__ssm_conv_s5__mixer_channel_mlp__prompt'
DBGT = '--dbgt' in sys.argv
PROF = '--prof' in sys.argv or DBGT
OUT = [a for a in sys.argv[1:] if not a.startswith('--') and '=' not in a]
OUT = OUT[0] if OUT else 'cdna_kernels/%s.s' % NAME
OPT = dict(ROT=9, DINT=72, LBPOS=6, OUTSC=0, PXPOS=39, RPOP=8, HINT=60, PTOUCH=0, DCOST=2, D1A=0, BUD0=2, NB0=4, X=0,
           EINT=100, NB1=3, PBD=12, SDG=5, NPRE=10, WPF=3, WT0=9, STL=4, RQ=3,
           PB=1, PINT=20, SPF=0, D1B=7, B1P=2, B1G=3, XS=0, TL0=6, TL1=6, WC=2, FAP=0, XWP=0, PXS=0, CJ0=6, WG0=0, WNT=0, FL0=0, NTX=-1, NTW=-1, NTS=0, WPK=0, WINT=92, WCL=4, SMP=0, STD=0, AL=5, PG=0, PGA=3, PGH=19, PGT=0, HP=0, WB=-1, WBM=0)
for a in sys.argv[1:]:
    if '=' in a:
        k, v = a.split('=')
        assert k in OPT, k
        OPT[k] = int(v)

def f2u(x):
    return '0x%08x' % struct.unpack('<I', struct.pack('<f', x))[0]

WS_AL = 0x1000
WS_G = 0x8000
WS_SG = 0x10000
WS_PROF = 0x40000
WS_FA = 0x80000
WS_FB = 0xA0000
WS_FC = 0xC0000
WS_PX = 0x100000
WS_H = 0x800000
WS_SIZE = 0x1200000
HR = 152 * 2048

SLOT, PIECE = 36864, 9216
TAB, TROW = 147456, 272
CSX = TAB + 25 * TROW
PE = 155648
assert CSX + 1280 <= PE and CSX % 16 == 0
LDS_BYTES = 160 * 1024

sW, sRB, sJ, sKH, sC, sRBL, sTAG, sGW, sT2, sT3, sPC = 4, 5, 6, 7, 8, 9, 10, 11, 12, 13, 14
pX, pLRE, pLIM, pBRE, pBIM, pCRE, pCIM, pLDT, pDSK, pBX, pW1, pB1, pW2, pB2, pOUT, pDBG, pWS = [16 + 2 * i for i in range(17)]
sPERM, sCNT = 50, 51
dX, dWS, dB, dW1, dW2, dO = 52, 56, 60, 64, 68, 72
sM0, sSX, sSW, sOFF, sM8, sME, sWS, sBM, sU0, sCG, sT0, sT1 = range(76, 88)
sCO = sOFF
sMSK = [88, 90, 92, 94]
sTH, sPH, sJT = 34, 35, 46
sD0, sSG, sSGO, sHM, sHS, sFL, sPA, sPB, sH1, sH2 = range(16, 26)
sSSM, sGR, sPX, sP1, sP2, sHC, sF0, sF1 = 30, 31, 32, 33, 36, 37, 38, 39

vLANE, vL16, vLO4, vG, vLO5, vHI5, vSTAMP, vSCR = 255, 254, 253, 252, 251, 250, 249, 248

A = Asm()
AUTO = dict(on=False, t=0, nxt=0, busy=False, any=False, int=OPT['EINT'])
_e = A.e
def e_time(s):
    mn = s.split()[0]
    AUTO['t'] += 8 if mn in TRANS else 12 if mn.startswith(('buffer_', 'ds_write')) else 4
    _e(s)
A.e = e_time
def e(s):
    A.e(s)
    ok = s.startswith('v_') or (AUTO['any'] and s.startswith('s_') and not s.startswith(('s_cmp', 's_bitcmp', 's_memtime', 's_wait')))
    if AUTO['on'] and not AUTO['busy'] and ok and DQ.ready() and AUTO['t'] >= AUTO['nxt']:
        AUTO['busy'] = True
        AUTO['nxt'] = max(AUTO['nxt'], AUTO['t'] - 2 * AUTO['int']) + AUTO['int']
        DQ.popD()
        AUTO['busy'] = False
def auto(on):
    AUTO['on'] = on
EXPECT = dict([('st%d' % v, 9) for v in range(8)] + [('stat', 4), ('W', 38), ('b1', 5), ('srow', 2), ('lb', 4), ('px', 4), ('res', 8)])
ISSUED = {}
_vm, _wv = A.vmem, A.wait_vm
def vm_hook(s, tag='x', opt=False):
    ISSUED[tag] = ISSUED.get(tag, 0) + 1
    if OPT['X'] & 1 and ' lds' in s and tag not in ('st0', 'st1'):
        return
    if OPT['HP'] & 1 and tag in ('HM', 'HS') or OPT['HP'] & 2 and tag in ('fa', 'fb'):
        s = s.replace(' sc1', ' nt' if OPT['HP'] & 4 else '')
    _vm(s, tag, opt)
def wv_hook(tags):
    for t in ([tags] if isinstance(tags, str) else tags):
        assert ISSUED.get(t, 0) >= EXPECT.get(t, 1), (t, ISSUED.get(t, 0))
    _wv(tags)
A.vmem, A.wait_vm = vm_hook, wv_hook
DSN = {}
_ds = A.ds
def ds_hook(s, tag='x'):
    DSN[tag] = DSN.get(tag, 0) + 1
    if OPT['X'] & 4 and tag[0] in 'xa' and tag[1].isdigit():
        return
    if OPT['X'] & 32 and tag == 'csw' or OPT['X'] & 64 and tag == 'cso':
        return
    _ds(s, tag)
A.ds = ds_hook
SNAMES = {}
import os
SKIP = os.environ.get('SKIP', 'b1,b3,fa,fb,d0,tab').split(',')
HST = [int(x) for x in os.environ.get('HST', '0,6,12,19,26,32').split(',')]
pending = []
SPAIRS = [96, 98, 100]
def flush_stamps():
    for (i, p) in pending:
        e('v_writelane_b32 %s, %s, %d' % (vr(vSTAMP), sr(p), i))
    del pending[:]
_wl0 = A.wait_lg0
def wait_lg0_hook():
    _wl0()
    flush_stamps()
A.wait_lg0 = wait_lg0_hook
DT = os.environ.get('DT', 'rt0,t0,karg,lam,st0,a3,kloop,Spub,gelu,Sgot,epi,paok,pbok,mfma2,pxok,drained').split(',')
def stamp(name, real=False):
    if not PROF:
        A.label('L_m_' + name)
    if not PROF or name in SKIP:
        return
    if os.environ.get('ONLY') and name not in ('rt0', 't0', 'drained', 'rt1'):
        return
    if DBGT:
        if name not in DT:
            return
        real = True
    assert name not in SNAMES
    SNAMES[name] = len(SNAMES)
    i = SNAMES[name]
    assert i < 57
    if len(pending) == len(SPAIRS):
        A.wait_lg0()
    used = [p for (_, p) in pending]
    p = [q for q in SPAIRS if q not in used][0]
    e('%s %s' % ('s_memrealtime' if real else 's_memtime', sr(p, 2)))
    pending.append((i, p))
def count(slot):
    if PROF and not os.environ.get('ONLY'):
        e('v_writelane_b32 %s, %s, %d' % (vr(vSTAMP), sr(sCNT), slot))

def srd(d, p, size):
    e('s_mov_b32 %s, %s' % (sr(d), sr(p)))
    e('s_mov_b32 %s, %s' % (sr(d + 1), sr(p + 1)))
    e('s_mov_b32 %s, 0x%x' % (sr(d + 2), size))
    e('s_mov_b32 %s, 0x20000' % sr(d + 3))

def cmul(dr, di, ar_, ai, br, bi):
    e('v_mul_f32 %s, %s, %s' % (vr(dr), vr(ar_), vr(br)))
    e('v_mul_f32 %s, %s, %s' % (vr(di), vr(ar_), vr(bi)))
    e('v_fma_f32 %s, -%s, %s, %s' % (vr(dr), vr(ai), vr(bi), vr(dr)))
    e('v_fma_f32 %s, %s, %s, %s' % (vr(di), vr(ai), vr(br), vr(di)))

def cfma(dr, di, ar_, ai, br, bi, cr, ci):
    e('v_fma_f32 %s, %s, %s, %s' % (vr(dr), vr(ar_), vr(br), vr(cr)))
    e('v_fma_f32 %s, %s, %s, %s' % (vr(di), vr(ar_), vr(bi), vr(ci)))
    e('v_fma_f32 %s, -%s, %s, %s' % (vr(dr), vr(ai), vr(bi), vr(dr)))
    e('v_fma_f32 %s, %s, %s, %s' % (vr(di), vr(ai), vr(br), vr(di)))

NEG1 = 'neg_lo:[0,1,0] neg_hi:[0,1,0]'
def pk_cfma4(dr, di, ar_, ai, k, cr, ci):
    for h in (0, 2):
        e('v_pk_fma_f32 %s, %s, %s, %s' % (vr(dr + h, 2), vr(ar_ + h, 2), vr(k + h, 2), vr(cr + h, 2)))
    for h in (0, 2):
        e('v_pk_fma_f32 %s, %s, %s, %s' % (vr(di + h, 2), vr(ai + h, 2), vr(k + h, 2), vr(ci + h, 2)))
    for h in (0, 2):
        e('v_pk_fma_f32 %s, %s, %s, %s %s' % (vr(dr + h, 2), vr(ai + h, 2), vr(k + 4 + h, 2), vr(dr + h, 2), NEG1))
    for h in (0, 2):
        e('v_pk_fma_f32 %s, %s, %s, %s' % (vr(di + h, 2), vr(ar_ + h, 2), vr(k + 4 + h, 2), vr(di + h, 2)))

labn = [0]
def newlab(s):
    labn[0] += 1
    return 'L_%s_%d' % (s, labn[0])

PGS = os.environ.get('PGS', 'st0,aA,a7,sx,lb,pa,hH').split(',')
def page(name):
    if name not in PGS or not OPT['PG'] & 6:
        return
    k = PGS.index(name)
    A.e('s_branch L_pg_%d' % k)
    if OPT['PG'] & 2:
        A.lines.append('.p2align 12')
    if OPT['PG'] & 4:
        A.label('L_stub_%d' % k)
        A.e('s_branch %s' % ('L_stub_%d' % (k + 4) if 0 < k < len(PGS) - 4 else 'L_back'))
    A.label('L_pg_%d' % k)
def touch_pages(k):
    if OPT['PG'] & 8 and OPT['PGT'] == k:
        A.e('s_mov_b64 exec, 0')
        for w in range(3):
            A.e('s_cmp_eq_u32 %s, %d' % (sr(sW), w))
            A.e('s_cbranch_scc1 L_stub_%d' % w)
        A.e('s_branch L_stub_3')
        A.label('L_back')
        A.e('s_mov_b64 exec, -1')
    if not OPT['PG'] & 4 or OPT['PGT'] != k:
        return
    for w in range(3):
        A.e('s_cmp_eq_u32 %s, %d' % (sr(sW), w))
        A.e('s_cbranch_scc1 L_stub_%d' % (w + 1))
    A.e('s_branch L_stub_4')
    A.label('L_back')

def S(fmt, *a):
    e(fmt % tuple(sr(x) if isinstance(x, int) else x for x in a))

def retry_loop(name, issue, check, slot, first=True):
    lo, ld = newlab(name + 'l'), newlab(name + 'd')
    if first:
        check()
    if PROF:
        S('s_mov_b32 %s, 0', sCNT)
    e('s_cbranch_vccz %s' % ld)
    S('s_mov_b32 %s, 0', sCNT)
    A.label(lo)
    sv = list(A.vm)
    issue()
    e('s_waitcnt vmcnt(0)')
    A.vm = sv
    check()
    S('s_add_u32 %s, %s, 1', sCNT, sCNT)
    e('s_cbranch_vccz %s' % ld)
    S('s_cmp_le_u32 %s, 0x20000', sCNT)
    e('s_cbranch_scc1 %s' % lo)
    A.label(ld)
    count(slot)

def one_lane_store(vt, soff, tag, opt=False, sc=' sc1'):
    e('v_mov_b32 %s, %s' % (vr(vt), sr(sTAG)))
    e('v_mov_b32 %s, 0' % vr(vt + 1))
    e('s_mov_b64 exec, 1')
    A.vmem('buffer_store_dword %s, %s, %s, %s offen%s' % (vr(vt), vr(vt + 1), sr(dWS, 4), soff, sc), tag, opt=opt)
    e('s_mov_b64 exec, -1')
def flag(off, tag):
    S('s_add_u32 %s, %s, %s', sT0, sFL, hex(off))
    e('s_mov_b32 exec_hi, 0')
    A.vmem('buffer_store_dword %s, %s, %s, %s offen sc1' % (vr(vTAG), vr(vTM), sr(dWS, 4), sr(sT0)), tag)
    e('s_mov_b32 exec_hi, -1')

class Q:
    def __init__(self):
        self.q = []
        self.open = set([None])
    def add(self, ops, gate=None):
        self.q += [(c, f, gate) for (c, f) in ops]
    def ready(self):
        return bool(self.q) and self.q[0][2] in self.open
    def cost(self):
        return self.q[0][0]
    def pop1(self):
        self.q.pop(0)[1]()
    def popD(self, n=1):
        while n > 0 and self.ready():
            if self.cost() == 'D':
                n -= 1
            self.pop1()
    def pop(self, n):
        while n > 0 and self.ready():
            c = self.cost()
            n -= 2 if c == 'D' else c
            self.pop1()
    def flush(self):
        while self.q:
            assert self.ready(), self.q[0][2]
            self.pop1()

class Ops(list):
    def v(self, s, c=1):
        self.append((c, lambda: e(s)))
    def s(self, fmt, *a):
        self.append((1, lambda: S(fmt, *a)))
    def f(self, fn, c=1):
        self.append((c, fn))

DQ = Q()
FQ = Q()
ACC, CS, XF, AF, ONE = 0, 80, 100, 132, 152
XA, BA, WA = 156, 160, 164
vX, vB, vW1, vW2 = 168, 170, 172, 175
B1, ST, SS, TMP = 180, 188, 204, 212
BU = TMP + 4
vTB, vTI, vTC, vTG, vSXW, vSXR, vCW, vCR, vPF, vTM, vXO, vGO = range(TMP + 16, TMP + 28)
vPA = TMP + 28
vSA, vTRL, vTAG = 177, 178, 179
vWT, vCT, vPW, vCO = 244, 245, 246, 247
sPM = 40
U0, U1 = 186, 187
SR = ST

e('s_cmp_ge_u32 s2, 256')
e('s_cbranch_scc1 L_end')
if PROF:
    e('v_mov_b32 %s, 0' % vr(vSTAMP))
    stamp('rt0', True)
    stamp('t0')
e('s_load_dwordx16 s[16:31], s[0:1], 0')
e('s_load_dwordx16 s[32:47], s[0:1], 64')
e('s_load_dwordx2 s[48:49], s[0:1], 128')
e('s_getpc_b64 %s' % sr(sPC, 2))
A.label('L_pc')
e('v_and_b32 %s, 63, v0' % vr(vLANE))
e('v_lshrrev_b32 v1, 6, v0')
e('v_lshlrev_b32 %s, 4, %s' % (vr(vL16), vr(vLANE)))
e('v_readfirstlane_b32 %s, v1' % sr(sW))
e('v_lshlrev_b32 v2, 7, v0')
e('v_min_u32 v2, L_end-L_pc, v2')
lab = newlab('npf')
e('s_cmp_ge_u32 s2, 16')
e('s_cbranch_scc1 %s' % lab)
A.vmem('global_load_dword %s, v2, %s' % (vr(vSCR), sr(sPC, 2)), 'pf', opt=True)
A.label(lab)
S('s_and_b32 %s, s2, 1', sKH)
S('s_lshr_b32 %s, s2, 6', sRBL)
S('s_bfe_u32 %s, s2, 0x30003', sC)
S('s_bfe_u32 s3, s2, 0x20001')
S('s_lshl2_add_u32 %s, s3, %s', sRB, sRBL)
S('s_lshl3_add_u32 %s, %s, %s', sJ, sKH, sC)
S('s_lshl2_add_u32 %s, s2, %s', sGW, sW)
if OPT['ROT'] == 0:
    S('s_mov_b32 %s, 0x76543210', sPERM)
elif OPT['ROT'] == 9:
    PT = [[0, 4, 1, 2, 3, 5, 6, 7], [1, 2, 5, 3, 0, 4, 6, 7], [2, 3, 0, 6, 1, 4, 5, 7], [3, 0, 1, 2, 7, 4, 5, 6]]
    PT = [hex(sum(x << (4 * i) for i, x in enumerate(p))) for p in PT]
    S('s_add_u32 %s, %s, %s', sT0, sRBL, sC)
    S('s_mov_b32 %s, %s', sPERM, PT[0])
    S('s_mov_b32 %s, %s', sT1, PT[2])
    S('s_bitcmp1_b32 %s, 0', sT0)
    S('s_cselect_b32 %s, %s, %s', sPERM, PT[1], sPERM)
    S('s_cselect_b32 %s, %s, %s', sT1, PT[3], sT1)
    S('s_bitcmp1_b32 %s, 1', sT0)
    S('s_cselect_b32 %s, %s, %s', sPERM, sT1, sPERM)
    S('s_add_u32 %s, s3, %s', sT1, sKH)
    S('s_bitcmp1_b32 %s, 0', sT1)
    S('s_cselect_b32 %s, 0x44444444, 0', sT1)
    S('s_xor_b32 %s, %s, %s', sPERM, sPERM, sT1)
elif OPT['ROT'] == 8:
    S('s_lshl1_add_u32 %s, %s, %s', sT0, sRBL, sC)
    S('s_add_u32 %s, %s, s3', sT0, sT0)
    S('s_and_b32 %s, %s, 7', sT0, sT0)
    S('s_mul_i32 %s, %s, 0x11111111', sT0, sT0)
    S('s_add_u32 %s, %s, 0x76543210', sT0, sT0)
    S('s_and_b32 %s, %s, 0x77777777', sPERM, sT0)
else:
    S('s_add_u32 %s, %s, %s', sT0, sRBL, sC)
    S('s_and_b32 %s, %s, 3', sT0, sT0)
    S('s_mul_i32 %s, %s, 0x11111111', sT0, sT0)
    S('s_add_u32 %s, %s, 0x32103210', sT0, sT0)
    S('s_and_b32 %s, %s, 0x33333333', sT0, sT0)
    if OPT['ROT'] == 4:
        S('s_add_u32 %s, s3, %s', sT1, sKH)
    elif OPT['ROT'] == 6:
        S('s_mov_b32 %s, 0', sT1)
    else:
        S('s_lshr_b32 %s, %s, 2', sT1, sC)
        S('s_add_u32 %s, %s, s3', sT1, sT1)
    S('s_bitcmp0_b32 %s, 0', sT1)
    S('s_mov_b32 %s, 0x4444', sT1)
    S('s_cselect_b32 %s, 0x44440000, %s', sT1, sT1)
    S('s_or_b32 %s, %s, %s', sPERM, sT0, sT1)
e('v_lshrrev_b32 %s, 5, %s' % (vr(vHI5), vr(vLANE)))
e('v_and_b32 %s, 31, %s' % (vr(vLO5), vr(vLANE)))
e('v_lshrrev_b32 %s, 4, %s' % (vr(vG), vr(vLANE)))
e('v_and_b32 %s, 15, %s' % (vr(vLO4), vr(vLANE)))
S('s_lshr_b32 %s, %s, 1', sT2, sW)
S('s_and_b32 %s, %s, 1', sT3, sW)
e('v_and_b32 v1, 7, %s' % vr(vLANE))
e('v_lshrrev_b32 v3, 3, %s' % vr(vLANE))
e('v_xor_b32 v4, v1, %s' % vr(vG))
e('v_lshlrev_b32 v4, 4, v4')
S('s_lshl1_add_u32 %s, %s, %s', sT0, sRB, sT2)
S('s_lshl_b32 %s, %s, 6', sT0, sT0)
S('s_add_u32 %s, %s, %s', sT0, sT0, sT3)
S('s_lshl_b32 %s, %s, 10', sT0, sT0)
e('v_lshl_add_u32 v5, v3, 12, v4')
e('v_add_u32 %s, %s, v5' % (vr(vX), sr(sT0)))
e('v_xor_b32 %s, 64, %s' % (vr(vX + 1), vr(vX)))
e('v_add_u32 %s, %d, %s' % (vr(vX + 1), 31 * 1024, vr(vX + 1)))
S('s_lshl1_add_u32 %s, %s, %s', sCG, sJ, sT2)
S('s_lshl_b32 %s, %s, 14', sCG, sCG)
e('v_lshl_add_u32 v5, v3, 10, v4')
e('v_add_u32 %s, %s, v5' % (vr(vB), sr(sCG)))
e('v_xor_b32 %s, 64, %s' % (vr(vB + 1), vr(vB)))
e('v_add_u32 %s, %d, %s' % (vr(vB + 1), 7 * 1024, vr(vB + 1)))
S('s_lshr_b32 %s, %s, 2', sT0, sJ)
S('s_mul_i32 %s, %s, 22', sT0, sT0)
S('s_and_b32 %s, %s, 3', sT1, sJ)
S('s_mul_i32 %s, %s, 6', sT1, sT1)
S('s_add_u32 %s, %s, %s', sOFF, sT0, sT1)
S('s_lshl_b32 %s, %s, 5', sSW, sOFF)
S('s_mul_i32 %s, %s, %s', sT0, sW, str(16 * 2752))
S('s_add_u32 %s, %s, %s', sSW, sSW, sT0)
S('s_movk_i32 %s, 5462', sT0)
S('s_movk_i32 %s, 2752', sT1)
for i in range(3):
    e('v_add_u32 v6, %d, %s' % (64 * i, vr(vLANE)))
    e('v_mul_u32_u24 v7, %s, v6' % sr(sT0))
    e('v_lshrrev_b32 v7, 16, v7')
    e('v_mul_u32_u24 v8, 12, v7')
    e('v_sub_u32 v6, v6, v8')
    e('v_lshrrev_b32 v8, 3, v7')
    e('v_lshlrev_b32 v8, 1, v8')
    e('v_xor_b32 v6, v6, v8')
    e('v_mul_u32_u24 v7, %s, v7' % sr(sT1))
    e('v_lshl_add_u32 v6, v6, 4, v7')
    e('v_add_u32 %s, %s, v6' % (vr(vW1 + i), sr(sSW)))
    if i < 2:
        S('s_sub_u32 %s, %s, 1024', sSW, sSW)
S('s_mul_i32 %s, %s, %s', sM0, sW, str(PIECE))
S('s_lshl_b32 %s, %s, 6', sT0, sJ)
e('v_lshl_add_u32 v9, %s, 1, %s' % (vr(vLO5), sr(sT0)))
e('v_mov_b32 v10, 0')
S('s_mov_b32 %s, 0x200000', dX + 2)
S('s_mov_b32 %s, 0x20000', dX + 3)
S('s_mov_b32 %s, 0x80000', dB + 2)
S('s_mov_b32 %s, 0x20000', dB + 3)
S('s_mov_b32 %s, %s', dW1 + 2, str(512 * 2752))
S('s_mov_b32 %s, 0x20000', dW1 + 3)
S('s_mov_b32 %s, %s', dWS + 2, hex(WS_SIZE))
S('s_mov_b32 %s, 0x20000', dWS + 3)

def stage_dma(v):
    slot = v & 3
    tag = 'st%d' % v
    ops = []
    sc = lambda fmt, *a: ops.append((1, lambda: S(fmt, *a)))
    dm = lambda txt: ops.append(('D', lambda: A.vmem(txt, tag)))
    sc('s_bfe_u32 %s, %s, %s', sSW, sPERM, '0x%x' % (4 * v + 0x30000))
    sc('s_add_u32 m0, %s, %s', sM0, str(slot * SLOT + 4096))
    sc('s_lshl_b32 %s, %s, 7', sSX, sSW)
    for i in range(2):
        dm('buffer_load_dwordx4 %s, %s, %s offen offset:%d%s lds' % (vr(vB + i), sr(dB, 4), sr(sSX), i * 1024, ' nt' if v <= OPT['NTW'] else ''))
    sc('s_add_u32 m0, %s, %s', sM0, str(slot * SLOT + 6144))
    sc('s_mul_i32 %s, %s, %s', sSW, sSW, str(64 * 2752))
    for i in range(3):
        dm('buffer_load_dwordx4 %s, %s, %s offen offset:%d%s lds' % (vr(vW1 + i), sr(dW1, 4), sr(sSW), i * 1024, ' nt' if v <= OPT['NTW'] else ''))
    sc('s_add_u32 m0, %s, %s', sM0, str(slot * SLOT))
    for i in range(4):
        dm('buffer_load_dwordx4 %s, %s, %s offen offset:%d%s lds' % (vr(vX + (i & 1)), sr(dX, 4), sr(sSX), i * 1024, ' nt' if v <= OPT['NTX'] else ''))
    return ops

S('s_lshl1_add_u32 %s, %s, %s', sT0, sRB, sKH)
S('s_and_b32 %s, %s, 1', sT1, sJ)
S('s_lshl1_add_u32 %s, %s, %s', sT0, sT0, sT1)
S('s_lshl2_add_u32 %s, %s, %s', sT0, sT0, sW)
S('s_bfe_u32 %s, %s, 0x20001', sT1, sJ)
S('s_lshl3_add_u32 %s, %s, %s', sT0, sT0, sT1)
S('s_lshl_b32 %s, %s, 10', sM8, sT0)
e('v_lshlrev_b32 %s, 12, %s' % (vr(vSA), vr(vHI5)))
e('v_lshl_add_u32 %s, %s, 4, %s' % (vr(vSA), vr(vLO5), vr(vSA)))
d0 = stage_dma(0)
for (c, f) in d0[:3]:
    f()
S('s_cmp_eq_u32 %s, 0', sT3)
A.wait_lg0()
stamp('karg')
S('s_cselect_b64 %s, %s, %s', sr(dB, 2), sr(pBRE, 2), sr(pBIM, 2))
S('s_mov_b64 %s, %s', sr(dX, 2), sr(pX, 2))
S('s_mov_b64 %s, %s', sr(dWS, 2), sr(pWS, 2))
lre, lim, ldt, vEP = 11, 12, 13, 14
A.vmem('global_load_ushort %s, v9, %s' % (vr(lre), sr(pLRE, 2)) + (' nt' if OPT['NTS'] & 2 else ''), 'lam')
A.vmem('global_load_ushort %s, v9, %s' % (vr(lim), sr(pLIM, 2)) + (' nt' if OPT['NTS'] & 2 else ''), 'lam')
A.vmem('global_load_ushort %s, v9, %s' % (vr(ldt), sr(pLDT, 2)) + (' nt' if OPT['NTS'] & 2 else ''), 'lam')
A.vmem('buffer_load_dword %s, v10, %s, 0 offen sc1' % (vr(vEP), sr(dWS, 4)), 'lam')
S('s_mov_b64 %s, %s', sr(dW1, 2), sr(pW1, 2))
for i in range(2):
    A.vmem('buffer_load_dwordx4 %s, %s, %s, %s offen offset:%d' % (vr(SR + 4 * i, 4), vr(vSA), sr(dX, 4), sr(sM8), 512 * i) + (' nt' if OPT['NTS'] & 1 else ''), 'srow')
def spf(lo, hi):
    l = [(dW2 if lo else pW2, sU0, 128 * i) for i in range(11)] + [(p, sBM, 128 * i) for i in range(4) for p in (pCRE, pCIM)]
    for (p, so, off) in l[lo:hi]:
        if OPT['SPF'] == 1:
            e('s_load_dword s0, %s, %s offset:%d' % (sr(p, 2), sr(so), off))
        else:
            e('s_load_dwordx2 s[0:1], %s, %s offset:%d' % (sr(p, 2), sr(so), off + 60))
if OPT['PB']:
    e('s_barrier')
    DQ.add(d0[3:])
    DQ.popD(2)
    AUTO.update(on=True, any=True, int=OPT['PINT'], nxt=AUTO['t'])
else:
    for (c, f) in d0[3:]:
        f()
    stamp('d0')
if OPT['SPF']:
    S('s_mul_i32 %s, %s, 1376', sU0, sGW)
    S('s_lshl_b32 %s, %s, 9', sBM, sGW)
    S('s_and_b32 %s, %s, -128', sU0, sU0)
    spf(0, 13 if OPT['SPF'] == 1 else 6)

S('s_mov_b32 %s, %s', sTH, sT2)
S('s_mov_b32 %s, %s', sPH, sT3)
S('s_mov_b32 %s, %s', sJT, sOFF)
srd(dO, pB1, 2752)
srd(dW2, pW2, 1376 * 1024)
S('s_mov_b64 %s, %s', sr(sPC, 2), sr(pDSK, 2))
e('v_lshrrev_b32 v1, 1, %s' % vr(vLO4))
e('v_xor_b32 v1, v1, %s' % vr(vG))
e('v_lshlrev_b32 v1, 4, v1')
e('v_lshl_add_u32 v1, %s, 7, v1' % vr(vLO4))
S('s_lshl_b32 %s, %s, 6', sT0, sTH)
e('v_xor_b32 v1, %s, v1' % sr(sT0))
e('v_xor_b32 v2, 64, v1')
S('s_mul_i32 %s, %s, %s', sT0, sTH, str(2 * PIECE))
S('s_mul_i32 %s, %s, %s', sT1, sPH, str(2 * PIECE))
S('s_add_u32 %s, %s, 4096', sT1, sT1)
for k in range(2):
    e('v_add_u32 %s, %s, v%d' % (vr(XA + 2 * k), sr(sT0), 1 + k))
    e('v_add_u32 %s, %s, v%d' % (vr(BA + 2 * k), sr(sT1), 1 + k))
    e('v_add_u32 %s, %d, %s' % (vr(XA + 2 * k + 1), 2 * SLOT, vr(XA + 2 * k)))
    e('v_add_u32 %s, %d, %s' % (vr(BA + 2 * k + 1), 2 * SLOT, vr(BA + 2 * k)))
e('v_bfe_u32 v1, %s, 2, 2' % vr(vLANE))
e('v_bfe_u32 v2, %s, 4, 1' % vr(vLANE))
e('v_lshl_add_u32 v3, v2, 3, v1')
e('v_mul_u32_u24 v3, 192, v3')
e('v_xor_b32 v4, %s, v2' % sr(sPH))
e('v_lshl_add_u32 v3, v4, 5, v3')
e('v_and_b32 v4, 3, %s' % vr(vLANE))
e('v_lshl_add_u32 v3, v4, 3, v3')
S('s_movk_i32 %s, %s', sT1, str(PIECE))
e('v_mad_u32_u24 v3, %s, %s, v3' % (vr(vHI5), sr(sT1)))
S('s_add_u32 %s, %s, 6144', sT1, sT0)
S('s_sub_u32 %s, %s, %s', sT0, str(2 * PIECE + 6144), sT0)
e('v_add_u32 %s, %s, v3' % (vr(WA), sr(sT1)))
e('v_add_u32 %s, %s, v3' % (vr(WA + 2), sr(sT0)))
e('v_add_u32 %s, %d, %s' % (vr(WA + 1), 2 * SLOT, vr(WA)))
e('v_add_u32 %s, %d, %s' % (vr(WA + 3), 2 * SLOT, vr(WA + 2)))
e('v_and_b32 v5, 7, %s' % vr(vLANE))
e('v_lshlrev_b32 v6, 2, v2')
e('v_xor_b32 v5, v5, v6')
e('v_lshlrev_b32 v5, 4, v5')
e('v_lshrrev_b32 v6, 3, %s' % vr(vLANE))
e('v_lshl_add_u32 %s, v6, 10, v5' % vr(vW2))
e('v_add_u32 %s, %d, %s' % (vr(vW2 + 1), 7 * 1024, vr(vW2)))
e('v_lshl_add_u32 v5, %s, 3, v1' % vr(vHI5))
e('v_lshlrev_b32 v5, 7, v5')
e('v_lshrrev_b32 v6, 1, v1')
e('v_lshl_add_u32 v5, v6, 6, v5')
e('v_lshl_add_u32 v5, v2, 5, v5')
e('v_lshl_add_u32 %s, v4, 3, v5' % vr(vTRL))
e('v_mov_b32 %s, 0x3f803f80' % vr(ONE))
for q in range(5):
    e('v_cmp_eq_u32 vcc, %d, %s' % (q, vr(vLO4)))
    for i in range(4):
        e('v_cndmask_b32 %s, 0, %s, vcc' % (vr(CS + 4 * q + i), vr(ONE)))
S('s_lshl_b32 %s, %s, 13', sM8, sW)
S('s_mul_i32 %s, %s, %s', sME, sTH, str(SLOT))
S('s_lshl_b32 %s, %s, 11', sT0, sPH)
S('s_add_u32 %s, %s, %s', sME, sME, sT0)
S('s_add_u32 %s, %s, 32768', sME, sME)
S('s_lshl2_add_u32 %s, %s, %s', sT2, sKH, sW)
S('s_lshl_b32 %s, %s, 9', sCO, sC)
S('s_add_u32 %s, %s, %s', sCO, sCO, sT2)
S('s_lshl_b32 %s, %s, 7', sCO, sCO)
S('s_lshr_b32 %s, %s, 1', sT0, sT2)
S('s_mul_i32 %s, %s, 22', sT0, sT0)
S('s_add_u32 %s, %s, %s', sT0, sT0, sPH)
S('s_lshl_b32 %s, %s, 7', sWS, sT0)
S('s_add_u32 %s, %s, %s', sWS, sWS, sC)
S('s_lshl_b32 %s, %s, 7', sWS, sWS)
S('s_lshl_b32 %s, %s, 11', sT0, sT0)
S('s_lshl_b32 %s, %s, 14', sSSM, sT2)
S('s_sub_u32 %s, %s, %s', sSSM, sSSM, sT0)
S('s_add_u32 %s, %s, %s', sSSM, sSSM, str(88 * 2048))
S('s_add_u32 %s, %s, %s', sT0, sT0, hex(WS_H))
S('s_lshl1_add_u32 %s, %s, %s', sT1, sRB, sKH)
S('s_mul_i32 %s, %s, %s', sH2, sT1, str(HR))
S('s_add_u32 %s, %s, %s', sH2, sH2, sT0)
S('s_xor_b32 %s, %s, 1', sT3, sT1)
S('s_mul_i32 %s, %s, %s', sH1, sT3, str(HR))
S('s_add_u32 %s, %s, %s', sH1, sH1, sT0)
S('s_lshl1_add_u32 %s, %s, %s', sPA, sT1, sTH)
S('s_lshl4_add_u32 %s, %s, %s', sPA, sPA, sPH)
S('s_lshl_b32 %s, %s, 7', sPA, sPA)
S('s_add_u32 %s, %s, %s', sPA, sPA, hex(WS_FA))
S('s_lshl2_add_u32 %s, %s, %s', sPB, sT1, sW)
S('s_lshl_b32 %s, %s, 8', sGR, sPB)
S('s_add_u32 %s, %s, %s', sGR, sGR, hex(WS_G + 8))
S('s_lshl_b32 %s, %s, 10', sPB, sPB)
S('s_add_u32 %s, %s, %s', sPB, sPB, hex(WS_FB))
S('s_lshl1_add_u32 %s, %s, %s', sT0, sJ, sPH)
S('s_lshl_b32 %s, %s, 12', sT0, sT0)
S('s_add_u32 %s, %s, %s', sSG, sT0, hex(WS_SG))
S('s_lshl_b32 %s, %s, 8', sSGO, sRB)
S('s_add_u32 %s, %s, %s', sSGO, sSGO, sSG)
S('s_lshl1_add_u32 %s, %s, %s', sT1, sRB, sTH)
S('s_mul_i32 %s, %s, %s', sT1, sT1, str(HR))
S('s_add_u32 %s, %s, %s', sHS, sT0, sT1)
S('s_add_u32 %s, %s, %s', sHS, sHS, hex(WS_H + 88 * 2048))
S('s_add_u32 %s, %s, %s', sHM, sJT, sPH)
S('s_lshl_b32 %s, %s, 11', sHM, sHM)
S('s_add_u32 %s, %s, %s', sHM, sHM, sT1)
S('s_add_u32 %s, %s, %s', sHM, sHM, hex(WS_H))
S('s_lshl4_add_u32 %s, %s, %s', sFL, sRB, sJ)
S('s_lshl2_add_u32 %s, %s, %s', sFL, sFL, sW)
S('s_lshl_b32 %s, %s, 5', sF0, sFL)
S('s_add_u32 %s, %s, %s', sF0, sF0, hex(WS_G))
S('s_lshl_b32 %s, %s, 7', sFL, sFL)
S('s_lshl_b32 %s, %s, 12', sPX, sGW)
S('s_add_u32 %s, %s, %s', sPX, sPX, hex(WS_PX))
def prep_ops():
    o = Ops()
    o.s('s_lshl_b32 %s, %s, 6', sT0, sPH)
    o.s('s_add_u32 %s, %s, %s', sT0, sT0, str(TAB))
    o.s('s_movk_i32 %s, %s', sT1, str(TROW))
    o.v('v_lshl_add_u32 %s, %s, 4, %s' % (vr(vTB), vr(vG), sr(sT0)))
    o.v('v_lshl_add_u32 %s, %s, 2, %s' % (vr(vTC), vr(vLO4), sr(sT0)))
    o.v('v_mad_u32_u24 %s, %s, %s, %s' % (vr(vTI), vr(vLO4), sr(sT1), vr(vTB)))
    o.v('v_min_u32 %s, 1, %s' % (vr(U0), vr(vG)))
    o.v('v_lshl_add_u32 %s, %s, 4, %s' % (vr(U0), vr(U0), vr(vG)))
    o.v('v_mad_u32_u24 %s, %s, %s, %s' % (vr(vTG), vr(U0), sr(sT1), vr(vTC)))
    o.s('s_mul_i32 %s, %s, 320', sT0, sW)
    o.s('s_add_u32 %s, %s, %s', sT0, sT0, str(CSX))
    o.v('v_lshl_add_u32 %s, %s, 4, %s' % (vr(vCO), vr(vG), sr(sT0)))
    o.v('v_lshl_add_u32 %s, %s, 6, %s' % (vr(vCW), vr(vLO4), vr(vCO)))
    o.s('s_xor_b32 %s, %s, 2', sT0, sW)
    o.s('s_mul_i32 %s, %s, 320', sT0, sT0)
    o.s('s_add_u32 %s, %s, %s', sT0, sT0, str(CSX))
    o.v('v_lshl_add_u32 %s, %s, 4, %s' % (vr(vCR), vr(vG), sr(sT0)))
    o.v('v_lshl_add_u32 %s, %s, 2, %s' % (vr(vSXW), vr(vLO4), sr(sT0)))
    o.s('s_mul_i32 %s, %s, 320', sT0, sPH)
    o.s('s_add_u32 %s, %s, %s', sT0, sT0, str(CSX))
    o.v('v_lshl_add_u32 %s, %s, 2, %s' % (vr(vSXR), vr(vLO4), sr(sT0)))
    o.s('s_sub_u32 %s, %s, 1', sT0, sRB)
    o.v('v_sub_u32 %s, %s, %s' % (vr(U0), sr(sT0), vr(vG)))
    o.v('v_lshlrev_b32 %s, 4, %s' % (vr(U1), vr(vLO4)))
    for i in range(4):
        o.v('v_subrev_u32 %s, %d, %s' % (vr(vPA + i), 4 * i, vr(U0)))
        o.v('v_cmp_le_i32 %s, 0, %s' % (sr(sMSK[i], 2), vr(vPA + i)))
        o.v('v_max_i32 %s, 0, %s' % (vr(vPA + i), vr(vPA + i)))
        o.v('v_lshl_add_u32 %s, %s, 8, %s' % (vr(vPA + i), vr(vPA + i), vr(U1)))
    o.v('v_and_b32 %s, 7, %s' % (vr(vPF), vr(vLANE)))
    o.v('v_lshlrev_b32 %s, 8, %s' % (vr(vPF), vr(vPF)))
    o.s('s_and_b32 %s, %s, 3', sT0, sJ)
    o.s('s_cmp_eq_u32 %s, 3', sT0)
    o.s('s_cselect_b32 %s, 0, 0xffff', sF1)
    o.v('v_lshlrev_b32 %s, 2, %s' % (vr(vTM), vr(vLO5)))
    o.v('v_mul_u32_u24 %s, 96, %s' % (vr(U0), vr(vG)))
    o.v('v_add_lshl_u32 %s, %s, %s, 10' % (vr(vWT), vr(U0), vr(vLO4)))
    o.v('v_lshlrev_b32 %s, 10, %s' % (vr(vCT), vr(vLANE)))
    o.v('v_and_b32 %s, 3, %s' % (vr(U1), vr(vLANE)))
    o.v('v_lshrrev_b32 %s, 2, %s' % (vr(U0), vr(vLANE)))
    o.v('v_mad_u32_u24 %s, %s, 3, %s' % (vr(U0), vr(U1), vr(U0)))
    o.s('s_lshl2_add_u32 %s, %s, s3', sT0, sRBL)
    o.s('s_lshl_b32 %s, %s, 10', sT1, sT0)
    o.v('v_lshl_add_u32 %s, %s, 15, %s' % (vr(vPW), vr(U0), sr(sT1)))
    o.s('s_lshl_b32 %s, %s, 2', sT0, sT0)
    o.s('s_lshl_b64 %s, 15, %s', sr(sPM, 2), sT0)
    o.s('s_lshl1_add_u32 %s, %s, %s', sT0, sRB, sKH)
    o.s('s_lshl_b32 %s, %s, 6', sT0, sT0)
    o.s('s_add_u32 %s, %s, %s', sT0, sT0, sW)
    o.v('v_and_b32 %s, 1, %s' % (vr(vGO), vr(vG)))
    o.v('v_lshl_add_u32 %s, %s, 2, %s' % (vr(vGO), vr(vGO), vr(vHI5)))
    o.v('v_lshl_add_u32 %s, %s, 2, %s' % (vr(U0), vr(vGO), sr(sT0)))
    o.s('s_lshl_b32 %s, %s, 7', sT1, sC)
    o.v('v_lshl_add_u32 %s, %s, 3, %s' % (vr(U1), vr(vLO4), sr(sT1)))
    o.v('v_lshl_add_u32 %s, %s, 10, %s' % (vr(vXO), vr(U0), vr(U1)))
    o.v('v_lshlrev_b32 %s, 4, %s' % (vr(vGO), vr(vGO)))
    o.v('v_lshlrev_b32 %s, 3, %s' % (vr(U0), vr(vG)))
    return o

for (c, f) in prep_ops():
    f()
stamp('prep')
if OPT['PB']:
    print('DQ left after prep', len(DQ.q))
    DQ.flush()
    AUTO.update(on=False, any=False, int=OPT['EINT'])
    stamp('d0')
touch_pages(1)
A.wait_vm('lam')
stamp('lam')
if OPT['SPF']:
    spf(13 if OPT['SPF'] == 1 else 6, 19 if OPT['SPF'] == 1 else 12)
LOG2E = math.log2(math.e)
e('v_readfirstlane_b32 %s, %s' % (sr(sTAG), vr(vEP)))
for r in (lre, lim, ldt):
    e('v_lshlrev_b32 %s, 16, %s' % (vr(r), vr(r)))
e('v_mul_f32 %s, %s, %s' % (vr(ldt), f2u(LOG2E), vr(ldt)))
e('v_exp_f32 %s, %s' % (vr(ldt), vr(ldt)))
S('s_add_u32 %s, %s, 1', sTAG, sTAG)
e('v_add_u32 %s, 1, %s' % (vr(vTAG), vr(vEP)))
S('s_lshl_b32 %s, %s, 1', sT0, sW)
e('v_add_u32 v1, %s, %s' % (sr(sT0), vr(vHI5)))
e('v_cvt_pk_bf16_f32 %s, %s, %s' % (vr(ldt), vr(ldt), vr(ldt)))
e('v_cvt_f32_u32 v2, v1')
e('v_lshlrev_b32 %s, 16, %s' % (vr(ldt), vr(ldt)))
e('v_cmp_lt_u32 vcc, 4, v1')
e('v_mul_u32_u24 v3, %d, v1' % TROW)
e('v_mul_f32 v5, %s, %s' % (vr(ldt), vr(lre)))
e('v_mul_f32 v6, %s, %s' % (vr(ldt), vr(lim)))
e('v_lshl_add_u32 v3, %s, 2, v3' % vr(vLO5))
e('v_mul_f32 v5, %s, v5' % f2u(LOG2E))
e('v_mul_f32 v6, 0.15915494, v6')
e('v_add_u32 v3, %d, v3' % TAB)
e('v_mul_f32 v20, 4.0, v2')
e('v_add_f32 v21, %s, v20' % f2u(32.0))
e('v_mul_f32 v22, %s, v2' % f2u(128.0))
e('v_max_f32 v22, %s, v22' % f2u(64.0))
e('v_add_f32 v23, -4.0, v2')
e('v_cndmask_b32 v22, v22, v23, vcc')
for r in range(3):
    e('v_mul_f32 v%d, v%d, v5' % (24 + r, 20 + r))
    e('v_mul_f32 v%d, v%d, v6' % (28 + r, 20 + r))
for r in range(3):
    e('v_exp_f32 v%d, v%d' % (24 + r, 24 + r))
    e('v_rndne_f32 v%d, v%d' % (20 + r, 28 + r))
for r in range(3):
    e('v_sub_f32 v%d, v%d, v%d' % (28 + r, 28 + r, 20 + r))
for r in range(3):
    e('v_cos_f32 v%d, v%d' % (20 + r, 28 + r))
    e('v_sin_f32 v%d, v%d' % (28 + r, 28 + r))
for r in range(3):
    e('v_mul_f32 v%d, v%d, v%d' % (20 + r, 20 + r, 24 + r))
    e('v_mul_f32 v%d, v%d, v%d' % (28 + r, 28 + r, 24 + r))
for r in range(3):
    A.ds('ds_write_b32 v3, v%d offset:%d' % (20 + r, 8 * r * TROW), 'tab')
    A.ds('ds_write_b32 v3, v%d offset:%d' % (28 + r, 8 * r * TROW + 128), 'tab')
lab = newlab('ncf')
S('s_cmp_lg_u32 %s, 2', sW)
e('s_cbranch_scc1 %s' % lab)
e('v_mul_f32 v24, %s, %s' % (vr(lre), vr(lre)))
e('v_fma_f32 v24, %s, %s, v24' % (vr(lim), vr(lim)))
e('v_rcp_f32 v24, v24')
e('v_add_f32 v25, -1.0, v22')
e('v_mul_f32 v26, v25, %s' % vr(lre))
e('v_mul_f32 v27, v30, %s' % vr(lre))
e('v_add_f32 v24, v24, v24')
e('v_fma_f32 v26, v30, %s, v26' % vr(lim))
e('v_fma_f32 v27, -v25, %s, v27' % vr(lim))
e('v_mul_f32 v26, v26, v24')
e('v_mul_f32 v27, v27, v24')
e('s_mov_b32 exec_lo, 0')
e('ds_write_b32 v3, v26 offset:%d' % (19 * TROW))
e('ds_write_b32 v3, v27 offset:%d' % (19 * TROW + 128))
e('s_mov_b32 exec_lo, -1')
A.label(lab)
stamp('tab')
R_L64, R_L512, R_L1, R_L2, R_L3, R_CF = 16, 20, 21, 22, 23, 24

def stat_compute_ops():
    o = Ops()
    t = SR + 8
    o.f(lambda: A.wait_vm('srow'))
    o.v('v_dot2_f32_bf16 v%d, v%d, v%d, 0' % (t, SR, ONE), 2)
    o.v('v_dot2_f32_bf16 v%d, v%d, v%d, 0' % (t + 1, SR, SR), 2)
    for i in range(1, 8):
        o.v('v_dot2_f32_bf16 v%d, v%d, v%d, v%d' % (t, SR + i, ONE, t), 2)
        o.v('v_dot2_f32_bf16 v%d, v%d, v%d, v%d' % (t + 1, SR + i, SR + i, t + 1), 2)
    for sh in (1, 2, 4, 8):
        for r in (t, t + 1):
            o.v('v_add_f32_dpp v%d, v%d, v%d row_shr:%d row_mask:0xf bank_mask:0xf bound_ctrl:0' % (r, r, r, sh))
    for r in (t, t + 1):
        o.v('v_add_f32_dpp v%d, v%d, v%d row_bcast:15 row_mask:0xa bank_mask:0xf' % (r, r, r))
    mean, var, sb, rs, m2, v2_, mb = t, t + 1, t + 2, t + 3, t + 8, t + 9, t + 10
    g0 = t + 4
    def rnd(d, s):
        o.v('v_cvt_pk_bf16_f32 v%d, v%d, v%d' % (d, s, s))
        o.v('v_lshlrev_b32 v%d, 16, v%d' % (d, d))
    o.v('v_mul_f32 v%d, %s, v%d' % (mean, f2u(1.0 / 512), mean))
    o.v('v_mul_f32 v%d, %s, v%d' % (var, f2u(1.0 / 512), var))
    o.v('v_fma_f32 v%d, -v%d, v%d, v%d' % (var, mean, mean, var))
    o.v('v_max_f32 v%d, 0, v%d' % (var, var))
    rnd(mb, mean)
    rnd(sb, var)
    o.v('v_add_f32 v%d, %s, v%d' % (sb, f2u(1e-5), sb))
    rnd(sb, sb)
    o.v('v_sqrt_f32 v%d, v%d' % (sb, sb), 2)
    o.v('v_sub_f32 v%d, v%d, v%d' % (m2, mean, mb))
    rnd(sb, sb)
    o.v('v_rcp_f32 v%d, v%d' % (rs, sb), 2)
    o.v('v_cvt_pk_bf16_f32 v%d, v%d, v%d' % (g0 + 2, mb, sb))
    o.v('v_mul_f32 v%d, v%d, v%d' % (m2, m2, rs))
    o.v('v_mul_f32 v%d, v%d, v%d' % (v2_, var, rs))
    rnd(m2, m2)
    o.v('v_mul_f32 v%d, v%d, v%d' % (v2_, v2_, rs))
    o.v('v_fma_f32 v%d, v%d, v%d, v%d' % (g0, m2, sb, mb))
    rnd(v2_, v2_)
    o.v('v_add_f32 v%d, %s, v%d' % (v2_, f2u(1e-5), v2_))
    rnd(v2_, v2_)
    o.v('v_sqrt_f32 v%d, v%d' % (v2_, v2_), 2)
    o.v('v_mov_b32 v%d, %s' % (g0 + 3, sr(sTAG)))
    rnd(v2_, v2_)
    o.v('v_mul_f32 v%d, v%d, v%d' % (g0 + 1, v2_, sb))
    o.s('s_lshl_b32 %s, %s, 5', sT0, sW)
    o.s('s_add_u32 %s, %s, %s', sT0, sT0, str(CSX))
    o.v('v_lshl_add_u32 v%d, %s, 4, %s' % (t, vr(vHI5), sr(sT0)))
    o.v('v_add_u32 v%d, %d, %s' % (SR, CSX, vr(vL16)))
    o.v('s_mov_b32 exec_lo, 0x80000000')
    o.v('s_mov_b32 exec_hi, 0x80000000')
    o.f(lambda: A.ds('ds_write_b128 v%d, %s offset:%d' % (t, vr(g0, 4), 0), 'gw'))
    o.v('s_mov_b64 exec, -1')
    o.f(lambda: stamp('gs'))
    o.s('s_lshl1_add_u32 %s, %s, %s', sD0, sRB, sTH)
    o.s('s_lshl_b32 %s, %s, 10', sD0, sD0)
    o.s('s_add_u32 %s, %s, %s', sD0, sD0, hex(WS_G))
    o.v('v_lshlrev_b32 %s, 4, %s' % (vr(vSA), vr(vLO4)))
    return o
def b1_loads():
    o = Ops()
    o.s('s_add_u32 %s, %s, %s', sSX, sJT, sPH)
    o.s('s_lshl_b32 %s, %s, 5', sSX, sSX)
    for v in range(3):
        o.f(lambda v=v: A.vmem('buffer_load_dwordx2 %s, %s, %s, %s offen offset:%d' % (vr(B1 + 2 * v, 2), vr(U0), sr(dO, 4), sr(sSX), 64 * v), 'b1'), 2)
    o.f(lambda: A.vmem('global_load_dwordx2 a[248:249], %s, %s' % (vr(U1), sr(sPC, 2)), 'b1'), 2)
    o.f(lambda: A.vmem('global_load_dwordx2 a[250:251], %s, %s' % (vr(U1), sr(pB2, 2)), 'b1'), 2)
    o.s('s_mov_b32 %s, 0x80000', dO + 2)
    o.f(lambda: FQ.open.add('b1'), 0)
    return o

if OPT['B1P'] == 0:
    for (c, f) in b1_loads():
        f()
DQ.add(stage_dma(1))
DQ.popD(OPT['D1A'])
if OPT['SPF'] == 2:
    spf(12, 19)
for (c, f) in stat_compute_ops():
    f()
DQ.popD(OPT['D1B'] - OPT['D1A'])
A.wait_lg0()
stamp('d1')
def b1_ops():
    o = Ops()
    o.f(lambda: A.wait_vm('b1'), 0)
    for v in range(3):
        for hh in range(2):
            o.v('v_lshlrev_b32 %s, 16, %s' % (vr(BU + 4 * v + 2 * hh), vr(B1 + 2 * v + hh)))
            o.v('v_and_b32 %s, 0xffff0000, %s' % (vr(BU + 4 * v + 2 * hh + 1), vr(B1 + 2 * v + hh)))
    return o
def stat_loads():
    return [('D' if OPT['STD'] else 2, lambda T=T: A.vmem('buffer_load_dwordx4 %s, %s, %s, %s offen offset:%d sc1' % (vr(ST + 4 * T, 4), vr(vSA), sr(dWS, 4), sr(sD0), 256 * T), 'stat')) for T in range(4)]
def stat_issue():
    for (c, f) in stat_loads():
        f()
def stat_check(e=e):
    t = TMP
    for T in range(4):
        e('v_xor_b32 v%d, %s, %s' % (t + T, sr(sTAG), vr(ST + 4 * T + 3)))
    e('v_or3_b32 v%d, v%d, v%d, v%d' % (t, t, t + 1, t + 2))
    e('v_or_b32 v%d, v%d, v%d' % (t, t, t + 3))
    e('v_cmp_ne_u32 vcc, 0, v%d' % t)
C0 = -2.0 * math.sqrt(2.0 / math.pi) * math.log2(math.e)
def stat_derive_ops():
    o = Ops()
    o.f(lambda: A.wait_vm('stat'))
    stat_check(o.v)
    o.f(lambda: retry_loop('st', stat_issue, stat_check, 58, False), 2)
    for T in range(4):
        b = ST + 4 * T
        o.v('v_rcp_f32 v%d, v%d' % (TMP + T, b + 1), 2)
        o.v('v_lshlrev_b32 v%d, 16, v%d' % (SS + 2 * T, b + 2))
        o.v('v_and_b32 v%d, 0xffff0000, v%d' % (SS + 2 * T + 1, b + 2))
    for T in range(4):
        b = ST + 4 * T
        o.v('v_rcp_f32 v%d, v%d' % (SS + 2 * T + 1, SS + 2 * T + 1), 2)
        o.v('v_mul_f32 v%d, %s, v%d' % (b + 2, f2u(C0), TMP + T))
        o.v('v_mul_f32 v%d, v%d, v%d' % (b + 3, TMP + T, TMP + T))
    for T in range(4):
        b = ST + 4 * T
        o.v('v_mul_f32 v%d, v%d, v%d' % (b + 3, b + 3, b + 2))
        o.v('v_mul_f32 v%d, %s, v%d' % (b + 3, f2u(0.044715), b + 3))
    return o

TOFF = [6 * (st & 3) + 2 * (st >> 2) for st in range(11)]
KS = [0]
def w_prefetch():
    o = Ops()
    def f():
        e('s_mov_b64 exec, 0x7ff')
        A.vmem('buffer_load_dword %s, %s, %s, %s offen' % (vr(vSCR), vr(vPW), sr(dW2, 4), sr(sWS)) + (' nt' if OPT['WNT'] else ''), 'touch')
        e('s_mov_b64 exec, -1')
    o.f(f, 4)
    for p in (pCRE, pCIM):
        o.s('s_mov_b64 %s, %s', sr(dO, 2), sr(p, 2))
        def f():
            e('s_mov_b64 exec, %s' % sr(sPM, 2))
            A.vmem('buffer_load_dword %s, %s, %s, %s offen' % (vr(vSCR), vr(vCT), sr(dO, 4), sr(sCO)) + (' nt' if OPT['WNT'] else ''), 'touch')
            e('s_mov_b64 exec, -1')
        o.f(f, 4)
    return o
def w_prefetch_cls(k):
    def f():
        lab = newlab('pf')
        if OPT['WCL'] == 4:
            S('s_cmp_lg_u32 %s, %s', sRBL, str(k))
        else:
            S('s_bitcmp%d_b32 %%s, 0' % (1 - k), sRBL)
        e('s_cbranch_scc1 %s' % lab)
        e('s_mov_b64 exec, 0x7ff')
        A.vmem('buffer_load_dword %s, %s, %s, %s offen' % (vr(vSCR), vr(vPW), sr(dW2, 4), sr(sWS)), 'touch', opt=True)
        e('s_mov_b64 exec, %s' % sr(sPM, 2))
        for p in (pCRE, pCIM):
            S('s_mov_b64 %s, %s', sr(dO, 2), sr(p, 2))
            A.vmem('buffer_load_dword %s, %s, %s, %s offen' % (vr(vSCR), vr(vCT), sr(dO, 4), sr(sCO)), 'touch', opt=True)
        e('s_mov_b64 exec, -1')
        A.label(lab)
    return [(4, f)]
def w_touch(p):
    o = Ops()
    if p >= 2:
        o.s('s_mov_b64 %s, %s', sr(dO, 2), sr(pCIM if p == 3 else pCRE, 2))
    o.f(lambda: (S('s_cmp_eq_u32 %s, %s', sRBL, str(p)), S('s_cselect_b32 %s, 0, 0x40000000', sSW)), 2)
    if p < 2:
        o.s('s_add_u32 %s, %s, %s', sSW, sSW, sWS)
        o.s('s_add_u32 %s, %s, %s', sSX, sSW, str(p * 32768))
        o.f(lambda: A.vmem('buffer_load_dword %s, %s, %s, %s offen' % (vr(vSCR), vr(vWT), sr(dW2, 4), sr(sSX)), 'touch'), 'D')
    else:
        o.s('s_add_u32 %s, %s, %s', sSX, sSW, sCO)
        o.f(lambda: A.vmem('buffer_load_dword %s, %s, %s, %s offen' % (vr(vSCR), vr(vCT), sr(dO, 4), sr(sSX)), 'touch'), 'D')
        if p == 2:
            o.s('s_add_u32 %s, %s, %s', sSW, sSW, sWS)
    if p < 3:
        o.s('s_add_u32 %s, %s, %s', sSX, sSW, str(TOFF[8 + p] * 16384))
        def f():
            e('s_mov_b64 exec, 0xffff')
            A.vmem('buffer_load_dword %s, %s, %s, %s offen' % (vr(vSCR), vr(vWT), sr(dW2, 4), sr(sSX)), 'touch')
            e('s_mov_b64 exec, -1')
        o.f(f, 4)
    return o
def w2_step(st):
    o = Ops()
    odd = 0
    if st == 0:
        o.s('s_lshl_b32 %s, %s, 11', sSX, sW)
        o.s('s_add_u32 m0, %s, %s', sSX, str(PE))
    elif st <= 8:
        odd = (st - 1) & 1
        if not odd:
            o.s('s_add_u32 m0, %s, %s', sM8, str(((st - 1) // 4) * SLOT + ((st - 1) % 4) * 2048))
    else:
        o.s('s_add_u32 m0, %s, %s', sME, str((st - 9) * 2 * SLOT))
    o.s('s_add_u32 %s, %s, %s', sSW, sWS, str(TOFF[st] * 16384 - odd * 2048))
    for i in range(2):
        o.f(lambda i=i: A.vmem('buffer_load_dwordx4 %s, %s, %s offen offset:%d lds' % (vr(vW2 + i), sr(dW2, 4), sr(sSW), odd * 2048 + i * 1024), 'W'), 'D')
    return o
def c_job(part):
    o = Ops()
    o.s('s_mov_b64 %s, %s', sr(dB, 2), sr(pCIM if part else pCRE, 2))
    if part == 0:
        o.v('v_subrev_u32 %s, %s, %s' % (vr(vB), sr(sCG), vr(vB)))
        o.v('v_subrev_u32 %s, %s, %s' % (vr(vB + 1), sr(sCG), vr(vB + 1)))
    for k in range(4):
        odd = k & 1
        if not odd:
            o.s('s_add_u32 m0, %s, %s', sM8, str((2 + part) * SLOT + k * 2048))
        o.s('s_add_u32 %s, %s, %s', sSX, sCO, str(k * 16384 - odd * 2048))
        for i in range(2):
            o.f(lambda i=i, odd=odd: A.vmem('buffer_load_dwordx4 %s, %s, %s offen offset:%d lds' % (vr(vB + i), sr(dB, 4), sr(sSX), odd * 2048 + i * 1024), 'W'), 'D')
    return o
QR = [0, 2, 8, 10]
def resx_loads():
    o = Ops()
    for q in range(4):
        o.s('s_mov_b32 %s, %s', sSX, str(QR[q] * 4096))
        o.f(lambda q=q: A.vmem('buffer_load_dwordx2 %s, %s, %s, %s offen' % (ar(240 + 2 * q, 2), vr(vXO), sr(dX, 4), sr(sSX)), 'res'), 'D' if q & 1 else 2)
    return o
def resg_loads():
    return [(2, lambda q=q: A.vmem('buffer_load_dword %s, %s, %s, %s offen offset:%d sc1' % (ar(252 + q), vr(vGO), sr(dWS, 4), sr(sGR), QR[q] * 16), 'res')) for q in range(4)]

for v in range(1, 8):
    if v > 1:
        sd = stage_dma(v)
        if v == OPT['WPF'] and OPT['WPK']:
            sd, rest = sd[:-5], sd[-5:]
        DQ.add(sd, None if v < 4 else 'mid%d' % (v - 4))
    if v == OPT['B1P']:
        DQ.add(b1_loads())
    if OPT['WCL'] == 4 and 0 <= v - OPT['WPF'] < 4:
        DQ.add(w_prefetch_cls(v - OPT['WPF']))
    if OPT['WCL'] in (2, 3) and v - OPT['WPF'] in (0, OPT['WCL']):
        DQ.add(w_prefetch_cls(int(v > OPT['WPF'])))
    if v == OPT['WPF'] and not OPT['WCL']:
        DQ.add([(0, lambda: print('prefetch at step', KS[0]))])
        DQ.add(w_prefetch())
        if OPT['WPK']:
            DQ.add(rest)
    if v == OPT['STL']:
        DQ.add(stat_loads())
        DQ.add([(0, lambda: FQ.open.add('stl'))])
    if 0 <= v - OPT['WT0'] < 4:
        DQ.add(w_touch(v - OPT['WT0']))
assert OPT['WPF'] < OPT['WT0'] and (OPT['B1P'] <= OPT['WPF'] or OPT['WPF'] == 0)
o = Ops()
o.s('s_mov_b64 %s, %s', sr(dO, 2), sr(pOUT, 2))
o.s('s_mov_b32 %s, 0x400000', dO + 2)
DQ.add(o)
DQ.add([(0, lambda: (print('st7 issued at step', KS[0]), OPT.update(DINT=OPT['WINT'])))])
DQ.add(w2_step(0), 'k%d' % OPT['WG0'])
for st in range(1, 10):
    DQ.add(w2_step(st), 'mid4' if st < 5 else 'mid5')
DQ.add(c_job(0), 'mid%d' % OPT['CJ0'])
DQ.add(resx_loads())
DQ.add(w2_step(10), 'mid7')
DQ.add(c_job(1), 'mid7')
FQ.add([(0, lambda: None)], 'b1')
FQ.add(b1_ops(), 'mid%d' % OPT['B1G'])
FQ.add([(0, lambda: None)], 'stl')
FQ.add(stat_derive_ops(), 'mid%d' % OPT['SDG'])

RQ = Q()
def rd_x(step, T):
    v, ks = step // 2, step % 2
    slot = v & 3
    return [(1, lambda: A.ds('ds_read_b128 %s, %s offset:%d' % (vr(XF + 16 * ks + 4 * T, 4), vr(XA + 2 * ks + (slot >> 1)), (slot & 1) * SLOT + (T & 1) * PIECE + (T >> 1) * 2048), 'x%d' % step))]
def rd_a(step, a):
    v, ks = step // 2, step % 2
    slot = v & 3
    if a < 2:
        return [(1, lambda: A.ds('ds_read_b128 %s, %s offset:%d' % (vr(AF + 4 * a, 4), vr(BA + 2 * ks + (slot >> 1)), (slot & 1) * SLOT + a * PIECE), 'a%d_%d' % (step, a)))]
    return [(1, lambda half=half: A.ds('ds_read_b64_tr_b16 %s, %s offset:%d' % (vr(AF + 4 * a + 2 * half, 2), vr(WA + 2 * ks + (slot >> 1)), (slot & 1) * SLOT + half * 768 + 64 * (a - 2)), 'a%d_%d' % (step, a))) for half in range(2)]

touch_pages(0)
page('st0')
A.wait_vm('st0')
stamp('st0')
e('s_barrier')
RQ.add(rd_a(0, 0))
for T in range(4):
    RQ.add(rd_x(0, T))
for a in range(1, 5):
    RQ.add(rd_a(0, a))
RQ.flush()
A.ds('ds_read_b128 %s, %s' % (vr(SR + 4, 4), vr(SR)), 'gr')
def g_store():
    A.wait_lg('gr')
    lab = newlab('gs')
    S('s_cmp_lg_u32 %s, 0', sW)
    e('s_cbranch_scc1 %s' % lab)
    e('s_mov_b64 exec, 0xff')
    A.vmem('buffer_store_dwordx4 %s, %s, %s, %s offen sc1' % (vr(SR + 4, 4), vr(vL16), sr(dWS, 4), sr(sF0)), 'gs', opt=True)
    e('s_mov_b64 exec, -1')
    A.label(lab)
clk = [0, 0]
def gap(budget, base):
    used = 0
    while used < budget:
        if RQ.ready():
            used += RQ.cost()
            RQ.pop1()
        elif DQ.ready() and (DQ.cost() != 'D' or (clk[0] >= clk[1] and used + OPT['DCOST'] <= max(budget, OPT['DCOST']))):
            if DQ.cost() == 'D':
                used += OPT['DCOST']
                clk[1] = max(clk[1], clk[0] - 2 * OPT['DINT']) + OPT['DINT']
            elif used + DQ.cost() > max(budget, DQ.cost()):
                break
            else:
                used += DQ.cost()
                if DQ.cost() >= 2:
                    clk[1] += OPT['SMP']
            DQ.pop1()
        elif FQ.ready() and used + FQ.cost() <= max(budget, FQ.cost()):
            used += FQ.cost()
            FQ.pop1()
        else:
            break
    clk[0] += max(base, 8 + 4 * used)

K0, K1, SA, SE = 116, 124, 136, 144
def tab_rd(dst, row, tag, addr=None):
    for part in range(2):
        A.ds('ds_read_b128 %s, %s offset:%d' % (vr(dst + 4 * part, 4), vr(vTB if addr is None else addr), row * TROW + part * 128), tag)
for step in range(16):
    v, ks = step // 2, step % 2
    gate = 'mid%d' % v if ks == 1 else None
    for a in range(5):
        KS[0] = step + a / 5
        DQ.open.add('k%d' % (5 * step + a))
        if ks == 1 and a == 2:
            for u in range(5):
                assert DSN.get('a%d_%d' % (step, u), 0) == (1 if u < 2 else 2), (step, u)
            if v == 7:
                assert DSN.get('csw', 0) == 1 and DSN.get('cso', 0) == 5
            page('aA' if v == OPT['PGA'] else 'a%d' % v)
            A.wait_lg0()
            stamp('a%d' % v)
            if v < 7:
                A.wait_vm('st%d' % (v + 1))
                if v in (1, 3, 6):
                    stamp('b%d' % v)
            if not OPT['X'] & 2:
                e('s_barrier')
            clk[0] += 40
            for q in (DQ, FQ, RQ):
                q.open.add('mid%d' % v)
            if v == 7:
                for q in range(5):
                    RQ.add([(1, lambda q=q: A.ds('ds_read_b128 %s, %s offset:%d' % (vr((XF + 4 * q) if q < 4 else AF, 4), vr(vCR), 64 * q), 'csr'))])
        if a in (0, 2, 4):
            assert DSN.get('x%d' % step, 0) == 4, (step, a)
            for u in (a, a + 1):
                assert u > 4 or DSN.get('a%d_%d' % (step, u), 0) == (1 if u < 2 else 2), (step, a, u)
            A.wait_lg(['x%d' % step] + ['a%d_%d' % (step, u) for u in (a, a + 1)])
        if OPT['XS'] and step in (14, 15) and a == 0:
            stamp('s%d' % step)
        if step == 0 and a == 4:
            g_store()
        ms = []
        if ks == 0:
            ms.append((ONE, CS + 4 * a))
        for T in range(4):
            ms.append((ACC + 16 * a + 4 * T, XF + 16 * ks + 4 * T))
        for i, (acc, b) in enumerate(ms):
            e('v_mfma_f32_16x16x32_bf16 %s, %s, %s, %s' % (vr(acc, 4), vr(AF + 4 * a, 4), vr(b, 4), '0' if step == 0 and (acc != ONE or a == 0) else vr(acc, 4)))
            last = i == len(ms) - 1
            if step < 15:
                if last:
                    RQ.add(rd_a(step + 1, a), gate)
                if (a == 0 and last) if ks == 1 else (a == 0 and i == 1):
                    for T in range(4):
                        RQ.add(rd_x(step + 1, T), gate)
            if step == 15 and a == 0 and i == 0:
                def csw():
                    e('s_mov_b32 exec_lo, 0x1f001f')
                    e('s_mov_b32 exec_hi, 0x1f001f')
                    A.ds('ds_write_b128 %s, %s' % (vr(vCW), vr(ONE, 4)), 'csw')
                    e('s_mov_b64 exec, -1')
                RQ.add([(2, csw)])
                for q in range(5):
                    RQ.add([(1, lambda q=q: A.ds('ds_read_b128 %s, %s offset:%d' % (vr(CS + 4 * q, 4), vr(vCO), 64 * q), 'cso'))])
            bud = OPT['BUD0'] if step < OPT['NB0'] else 2
            if last and a in (1, 3, 4) and not (ks == 1 and a == 3):
                bud = 0 if (ks == 1 and a == 1) else 1
            if bud == 0:
                while RQ.ready():
                    RQ.pop1()
            gap(bud, 16)
print('K loop estimate', clk[0], 'left DQ', len(DQ.q), 'FQ', len(FQ.q))
FQ.flush()
RQ.flush()
stamp('kloop')

DQ.add(resg_loads(), 'sx')
tab_rd(K0, R_CF, 'k0')
tab_rd(K1, R_L1, 'k1')
A.wait_lg('csr')
AUTO['nxt'] = AUTO['t'] + max(0, clk[1] - clk[0])
auto(True)
for q in range(5):
    src = (XF + 4 * q) if q < 4 else AF
    for h in (0, 2):
        e('v_pk_add_f32 %s, %s, %s' % (vr(CS + 4 * q + h, 2), vr(CS + 4 * q + h, 2), vr(src + h, 2)))
LOB = 'op_sel:[0,0,0] op_sel_hi:[1,0,1]'
HIB = 'op_sel:[0,1,0] op_sel_hi:[1,1,1]'
RR, II = ACC, ACC + 16
tq = XF
tZ, tO = tq, B1
def gelu_tile(v, tag, mid=None):
    for hh in range(2):
        prs = [(2 * hh + a, h) for a in range(2) for h in range(2)]
        accp = lambda T, h: ACC + 32 + 16 * v + 4 * T + 2 * h
        for (T, h) in prs:
            e('v_pk_fma_f32 %s, %s, %s, %s %s' % (vr(accp(T, h), 2), vr(BU + 4 * v + 2 * h, 2), vr(ST + 4 * T, 2), vr(accp(T, h), 2), HIB))
        for (T, h) in prs:
            e('v_pk_fma_f32 %s, %s, %s, %s %s %s' % (vr(accp(T, h), 2), vr(CS + 8 + 4 * v + 2 * h, 2), vr(ST + 4 * T, 2), vr(accp(T, h), 2), LOB, NEG1))
        for i, (T, h) in enumerate(prs):
            e('v_pk_mul_f32 %s, %s, %s' % (vr(tZ + 2 * i, 2), vr(accp(T, h), 2), vr(accp(T, h), 2)))
        for i, (T, h) in enumerate(prs):
            e('v_pk_fma_f32 %s, %s, %s, %s op_sel:[0,1,0] op_sel_hi:[1,1,0]' % (vr(tZ + 2 * i, 2), vr(tZ + 2 * i, 2), vr(ST + 4 * T + 2, 2), vr(ST + 4 * T + 2, 2)))
        for i, (T, h) in enumerate(prs):
            e('v_pk_mul_f32 %s, %s, %s' % (vr(tZ + 2 * i, 2), vr(tZ + 2 * i, 2), vr(accp(T, h), 2)))
        for i in range(8):
            e('v_exp_f32 %s, %s' % (vr(tZ + i), vr(tZ + i)))
        for i, (T, h) in enumerate(prs):
            e('v_pk_fma_f32 %s, %s, %s, %s op_sel:[0,1,1] op_sel_hi:[1,1,1]' % (vr(tZ + 2 * i, 2), vr(tZ + 2 * i, 2), vr(ST + 4 * T, 2), vr(ST + 4 * T, 2)))
        for i in range(8):
            e('v_rcp_f32 %s, %s' % (vr(tZ + i), vr(tZ + i)))
        for i, (T, h) in enumerate(prs):
            e('v_pk_mul_f32 %s, %s, %s' % (vr(tZ + 2 * i, 2), vr(tZ + 2 * i, 2), vr(accp(T, h), 2)))
        o = tO + 4 * hh
        for i in (0, 2, 1, 3):
            e('v_cvt_pk_bf16_f32 %s, %s, %s' % (vr(o + i), vr(tZ + 2 * i), vr(tZ + 2 * i + 1)))
        if mid:
            mid(hh)
        auto(False)
        e('v_permlane16_swap_b32 %s, %s' % (vr(o), vr(o + 2)))
        so = sHM
        if v:
            so = sU0
            if hh == 0:
                S('s_add_u32 %s, %s, %s', sU0, sHM, str(4096 * v))
        if v == 2:
            S('s_cmp_eq_u32 %s, 0', sF1)
        e('v_permlane16_swap_b32 %s, %s' % (vr(o + 1), vr(o + 3)))
        if v == 2:
            lab = newlab('skip')
            e('s_cbranch_scc1 %s' % lab)
        A.vmem('buffer_store_dwordx4 %s, %s, %s, %s offen offset:%d sc1' % (vr(o, 4), vr(vL16), sr(dWS, 4), sr(so), 1024 * hh), tag, opt=(v == 2))
        if v == 2:
            A.label(lab)
        auto(True)
for T in range(4):
    for part in range(2):
        for h in (0, 2):
            r = ACC + 16 * part + 4 * T + h
            e('v_pk_fma_f32 %s, %s, %s, %s %s %s' % (vr(r, 2), vr(CS + 4 * part + h, 2), vr(SS + 2 * T, 2), vr(r, 2), LOB, NEG1))
    if T == 0:
        A.wait_lg('k0')
    for q in (0, 2, 4, 6):
        e('v_pk_mul_f32 %s, %s, %s op_sel:[0,1] op_sel_hi:[1,1]' % (vr(tq + q, 2), vr(K0 + q, 2), vr(SS + 2 * T, 2)))
    if T == 3:
        tab_rd(K0, 1, 'k0')
    for h in (0, 2):
        e('v_pk_mul_f32 %s, %s, %s' % (vr(tq + 8 + h, 2), vr(RR + 4 * T + h, 2), vr(tq + 4 + h, 2)))
    for h in (0, 2):
        e('v_pk_mul_f32 %s, %s, %s' % (vr(RR + 4 * T + h, 2), vr(RR + 4 * T + h, 2), vr(tq + h, 2)))
    for h in (0, 2):
        e('v_pk_fma_f32 %s, %s, %s, %s %s' % (vr(RR + 4 * T + h, 2), vr(II + 4 * T + h, 2), vr(tq + 4 + h, 2), vr(RR + 4 * T + h, 2), NEG1))
    for h in (0, 2):
        e('v_pk_fma_f32 %s, %s, %s, %s' % (vr(II + 4 * T + h, 2), vr(II + 4 * T + h, 2), vr(tq + h, 2), vr(tq + 8 + h, 2)))
tab_rd(tq, 2, 'k2')
tab_rd(tq + 8, 4, 'k3')
A.wait_lg('k1')
for T in range(1, 4):
    pk_cfma4(RR + 4 * T, II + 4 * T, RR + 4 * T - 4, II + 4 * T - 4, K1, RR + 4 * T, II + 4 * T)
tab_rd(K1, 8, 'k1')
cur = (RR + 12, II + 12)
L64, L512, P128, S0 = K0, K0 + 2, K0 + 4, K0 + 6
for lv in range(4):
    k = [K0, tq, tq + 8, K1][lv]
    for part in range(2):
        for i in range(4):
            e('v_mov_b32_dpp %s, %s row_shr:%d row_mask:0xf bank_mask:0xf bound_ctrl:0' % (vr(SE + 4 * part + i), vr(cur[part] + i), 1 << lv))
    if lv in (0, 3):
        A.wait_lg(['k3', 'k3', 'k3', 'k1'][lv])
    pk_cfma4(SA, SA + 4, SE, SE + 4, k, cur[0], cur[1])
    cur = (SA, SA + 4)
    if lv == 0:
        for (dst, row, ad) in ((L64, R_L64, vTC), (L512, R_L512, vTC), (P128, 0, vTG)):
            for part in range(2):
                A.ds('ds_read_b32 %s, %s offset:%d' % (vr(dst + part), vr(ad), row * TROW + part * 128), 'kc')
auto(False)
e('s_mov_b32 exec_lo, 0x80008000')
e('s_mov_b32 exec_hi, 0x80008000')
A.ds('ds_write_b128 %s, %s' % (vr(vCR), vr(SA, 4)), 'sx')
A.ds('ds_write_b128 %s, %s offset:64' % (vr(vCR), vr(SA + 4, 4)), 'sx')
e('s_mov_b64 exec, -1')
GR = tq + 12
for part in range(2):
    for i in range(4):
        e('v_mov_b32_dpp %s, %s row_shr:1 row_mask:0xf bank_mask:0xf bound_ctrl:0' % (vr(SE + 4 * part + i), vr(SA + 4 * part + i)))
e('v_mov_b32 %s, %s' % (vr(GR + 2), sr(sTAG)))
e('v_mov_b32 %s, %s' % (vr(GR + 3), sr(sTAG)))
page('sx')
A.wait_lg0()
e('s_barrier')
A.ds('ds_read2_b32 %s, %s offset0:160 offset1:176' % (vr(S0, 2), vr(vSXR)), 's0')
A.ds('ds_read2_b32 %s, %s offset0:0 offset1:16' % (vr(GR, 2), vr(vSXR)), 's0')
DQ.open.add('sx')
print('DQ left at Spub', len(DQ.q))
lab = newlab('np')
S('s_cmp_eq_u32 %s, 0', sTH)
e('s_cbranch_scc1 %s' % lab)
e('s_waitcnt lgkmcnt(0)')
cfma(GR, GR + 1, S0, S0 + 1, L64, L64 + 1, GR, GR + 1)
e('s_mov_b64 exec, 0xffff')
A.vmem('buffer_store_dwordx4 %s, %s, %s, %s offen sc1' % (vr(GR, 4), vr(vL16), sr(dWS, 4), sr(sSGO)), 'S', opt=True)
e('s_mov_b64 exec, -1')
A.label(lab)
stamp('Spub')
auto(True)

vQ = 152
vPD = vWT
def lb_issue():
    for i in range(4):
        A.vmem('buffer_load_dwordx4 %s, %s, %s, %s offen sc1' % (vr(vQ + 4 * i, 4), vr(vPA + i), sr(dWS, 4), sr(sSG)), 'lb')
def lb_check():
    for i in range(4):
        e('v_xor_b32 %s, %s, %s' % (vr(vQ + 4 * i + 3), sr(sTAG), vr(vQ + 4 * i + 2)))
    for i in range(4):
        e('v_cndmask_b32 %s, 0, %s, %s' % (vr(vQ + 4 * i + 3), vr(vQ + 4 * i + 3), sr(sMSK[i], 2)))
    e('v_or3_b32 %s, %s, %s, %s' % (vr(vQ + 3), vr(vQ + 3), vr(vQ + 7), vr(vQ + 11)))
    e('v_or_b32 %s, %s, %s' % (vr(vQ + 3), vr(vQ + 3), vr(vQ + 15)))
    e('v_cmp_ne_u32 vcc, 0, %s' % vr(vQ + 3))
def poll(tag, so):
    return lambda: A.vmem('buffer_load_dword %s, %s, %s, %s offen sc1' % (vr(vPD), vr(vPF), sr(dWS, 4), sr(so)), tag)
def p_check():
    e('v_cmp_ne_u32 vcc, %s, %s' % (sr(sTAG), vr(vPD)))
pa_issue, pb_issue = poll('pa', sPA), poll('pb', sPB)
def lbp(k):
    if k == 0:
        print('DQ left at the first HM store', len(DQ.q))
        if OPT['FL0']:
            DQ.flush()
    if k == 6:
        DQ.flush()
    if OPT['LBPOS'] == k:
        lb_issue()
for i, v in enumerate((2, 0, 1)):
    gelu_tile(v, 'HM', lambda hh: lbp(2 * i + hh))
stamp('gelu')
auto(False)
lbp(6)
KP = [tq, tq + 8, CS, CS + 8]
tab_rd(K1, 0, 'kp', vTI)
for T, row in enumerate((R_L1, R_L2, R_L3, 1)):
    tab_rd(KP[T], row, 'kp')
NR, RING = 22, 152
LD, MF = [], []
for (t, s0, s1) in ((0, 0, 11), (1, 0, OPT['NB1']), (0, 11, 19), (1, OPT['NB1'], 19)):
    tl = OPT['TL%d' % t] if s1 == 19 else 0
    for s in range(s0, s1 - tl):
        for hh in range(2):
            MF += [(len(LD), 0), (len(LD), 1)]
            LD.append((t, s, hh))
    for hh in range(2):
        for dh in range(2):
            MF += [(len(LD) + k, dh) for k in range(tl)]
        LD += [(t, s, hh) for s in range(s1 - tl, s1)]
FS = LD.index((0, 11, 0))
hf = [0]
cur = [None, 0]
def hload():
    f = hf[0]
    t, s, hh = LD[f]
    n = 3
    if f == FS - OPT['PBD']:
        pb_issue()
        n += 2
    if f == FS:
        A.wait_vm('pb')
        retry_loop('pb', pb_issue, p_check, 61)
        stamp('pbok')
        n += 3
    base = (sH2 if t else sH1) if s < 11 else (sP2 if t else sP1)
    off = (TOFF[s] if s < 11 else s - 11) * 2048 + hh * 1024
    if off < 4096:
        so = base
    else:
        so = sHC
        if cur[0] != base or not 0 <= off - cur[1] < 4096:
            cur[0], cur[1] = base, off
            S('s_add_u32 %s, %s, %s', sHC, base, str(off))
            n += 1
        off -= cur[1]
    A.vmem('buffer_load_dwordx4 %s, %s, %s, %s offen offset:%d%s' % (ar(RING + 4 * (f % NR), 4), vr(vL16), sr(dWS, 4), sr(so), off, '' if OPT['X'] & 16 else ' sc1'), 'h%d' % f)
    hf[0] += 1
    return n

RD, RES, PXR, pT, TB = 128, 192, 208, 224, 240
vOO, vRW, vRR, vRR2 = vGO, vCW, vCR, vSXR
TILE = 64 * 272
AD, vCA = 32, 40
def xw_block(k):
    if OPT['XWP'] != k:
        return
    S('s_lshl_b32 %s, %s, 11', sT0, sW)
    S('s_add_u32 %s, %s, %s', sT0, sT0, str(PE))
    S('s_add_u32 %s, %s, %s', sT1, sME, str(2 * SLOT))
    for i, sb in enumerate((sT0, sM8, sME, sT1)):
        e('v_add_u32 %s, %s, %s' % (vr(AD + 2 * i), sr(sb), vr(vTRL)))
        e('v_xor_b32 %s, 64, %s' % (vr(AD + 2 * i + 1), vr(AD + 2 * i)))
    e('v_bfe_u32 %s, %s, 1, 3' % (vr(vCA), vr(vLANE)))
    e('v_xor_b32 %s, %s, %s' % (vr(vCA), vr(vCA), vr(vHI5)))
    e('v_lshlrev_b32 %s, 4, %s' % (vr(vCA), vr(vCA)))
    e('v_lshl_add_u32 %s, %s, 7, %s' % (vr(vCA), vr(vLO5), vr(vCA)))
    S('s_add_u32 %s, %s, %s', sT0, sM8, str(2 * SLOT))
    e('v_add_u32 %s, %s, %s' % (vr(vCA), sr(sT0), vr(vCA)))
    for sub in range(1, 4):
        e('v_xor_b32 %s, %d, %s' % (vr(vCA + sub), 32 * sub, vr(vCA)))
    A.wait_vm('W')
    for st in range(11):
        for dh in range(2):
            for half in range(2):
                if st == 0:
                    ad, off = AD, 0
                elif st <= 8:
                    ad, off = AD + 2, ((st - 1) // 4) * SLOT + ((st - 1) % 4) * 2048
                else:
                    ad, off = AD + 4 + 2 * (st - 9), 0
                A.ds('ds_read_b64_tr_b16 %s, %s offset:%d' % (ar(8 * st + 4 * dh + 2 * half, 2), vr(ad + dh), off + half * 512), 'xw')
    for part in range(2):
        for sub in range(4):
            for dh in range(2):
                A.ds('ds_read_b128 %s, %s offset:%d' % (ar(8 * (11 + 2 * sub + part) + 4 * dh, 4), vr(vCA + sub), part * SLOT + dh * 4096), 'xw')
xw_block(0)
def fap(k):
    if OPT['FAP'] == k:
        A.wait_vm('HM')
        stamp('HMdone')
        flag(WS_FA, 'fa')
        if OPT['PTOUCH'] & 1:
            e('v_lshlrev_b32 %s, 7, %s' % (vr(vCT), vr(vLO4)))
            e('v_lshl_add_u32 %s, %s, 12, %s' % (vr(vCT), vr(vG), vr(vCT)))
            S('s_mov_b32 exec_hi, %s', sF1)
            A.vmem('buffer_load_dword %s, %s, %s, %s offen sc1' % (vr(vSCR), vr(vCT), sr(dWS, 4), sr(sHM)), 'touch')
            e('s_mov_b32 exec_hi, -1')
        stamp('fa')
page('lb')
A.wait_vm('lb')
stamp('lb1')
fap(0)
retry_loop('lb', lb_issue, lb_check, 59)
stamp('Sgot')
for i in range(4):
    e('v_cndmask_b32 %s, 0, %s, %s' % (vr(vQ + 4 * i), vr(vQ + 4 * i), sr(sMSK[i], 2)))
    e('v_cndmask_b32 %s, 0, %s, %s' % (vr(vQ + 4 * i + 1), vr(vQ + 4 * i + 1), sr(sMSK[i], 2)))
for i in (2, 1, 0):
    cfma(vQ + 4 * i, vQ + 4 * i + 1, vQ + 4 * i + 4, vQ + 4 * i + 5, L512, L512 + 1, vQ + 4 * i, vQ + 4 * i + 1)
hr, hi_, h2, h3 = vQ + 4, vQ + 5, vQ + 6, vQ + 7
cmul(hr, hi_, vQ, vQ + 1, P128, P128 + 1)
for sw in ('v_permlane16_swap_b32', 'v_permlane32_swap_b32'):
    e('v_mov_b32 %s, %s' % (vr(h2), vr(hr)))
    e('v_mov_b32 %s, %s' % (vr(h3), vr(hi_)))
    e('%s %s, %s' % (sw, vr(hr), vr(h2)))
    e('%s %s, %s' % (sw, vr(hi_), vr(h3)))
    e('v_add_f32 %s, %s, %s' % (vr(hr), vr(hr), vr(h2)))
    e('v_add_f32 %s, %s, %s' % (vr(hi_), vr(hi_), vr(h3)))
auto(False)
A.wait_lg('s0')
lab = newlab('t0')
S('s_cmp_eq_u32 %s, 0', sTH)
e('s_cbranch_scc1 %s' % lab)
cfma(S0, S0 + 1, hr, hi_, L64, L64 + 1, S0, S0 + 1)
e('v_mov_b32 %s, %s' % (vr(hr), vr(S0)))
e('v_mov_b32 %s, %s' % (vr(hi_), vr(S0 + 1)))
A.label(lab)
A.ds('ds_write2_b32 %s, %s, %s offset0:32 offset1:48' % (vr(vSXW), vr(hr), vr(hi_)), 'cy')
A.ds('ds_read_b128 %s, %s offset:128' % (vr(SA, 4), vr(vCR)), 'cy')
A.ds('ds_read_b128 %s, %s offset:192' % (vr(SA + 4, 4), vr(vCR)), 'cy')
fap(1)
A.wait_lg0()
pk_cfma4(SE, SE + 4, SA, SA + 4, K1, SE, SE + 4)
for hh in range(2):
    for T in (2 * hh, 2 * hh + 1):
        pk_cfma4(RR + 4 * T, II + 4 * T, SE, SE + 4, KP[T], RR + 4 * T, II + 4 * T)
    for part in range(2):
        o = vQ + 8 * hh + 4 * part
        b = ACC + 16 * part + 8 * hh
        ng = '-' if part else ''
        for i in range(4):
            e('v_cvt_pk_bf16_f32 %s, %s%s, %s%s' % (vr(o + i), ng, vr(b + 2 * i), ng, vr(b + 2 * i + 1)))
    if hh == 0:
        fap(2)
    for part in range(2):
        o = vQ + 8 * hh + 4 * part
        e('v_permlane16_swap_b32 %s, %s' % (vr(o), vr(o + 2)))
        e('v_permlane16_swap_b32 %s, %s' % (vr(o + 1), vr(o + 3)))
        A.vmem('buffer_store_dwordx4 %s, %s, %s, %s offen offset:%d sc1' % (vr(o, 4), vr(vL16), sr(dWS, 4), sr(sHS), 2048 * part + 1024 * hh), 'HS')
stamp('epi')

xw_block(1)
eX, eS, eD = 128, 136, 140
fD, fB, fU, fM = 144, 148, 152, 156
def res_pre():
    A.wait_vm('res')
    for i in range(16):
        e('v_accvgpr_read_b32 %s, a%d' % (vr(eX + [0, 1, 2, 3, 4, 5, 6, 7, 12, 13, 14, 15, 8, 9, 10, 11][i]), 240 + i))
    for (dst, src) in ((fD, eD), (fB, eD + 2)):
        for hh in range(2):
            e('v_lshlrev_b32 %s, 16, %s' % (vr(dst + 2 * hh), vr(src + hh)))
            e('v_and_b32 %s, 0xffff0000, %s' % (vr(dst + 2 * hh + 1), vr(src + hh)))
def res_q(q):
    r = RES + 4 * q
    e('v_and_b32 %s, 0xffff0000, %s' % (vr(fM + 1), vr(eS + q)))
    e('v_lshlrev_b32 %s, 16, %s' % (vr(fM), vr(eS + q)))
    e('v_rcp_f32 %s, %s' % (vr(fM + 1), vr(fM + 1)))
    for hh in range(2):
        e('v_lshlrev_b32 %s, 16, %s' % (vr(r + 2 * hh), vr(eX + 2 * q + hh)))
        e('v_and_b32 %s, 0xffff0000, %s' % (vr(r + 2 * hh + 1), vr(eX + 2 * q + hh)))
    def rnd4():
        e('v_cvt_pk_bf16_f32 %s, %s, %s' % (vr(fU + 1), vr(fU), vr(fU + 1)))
        e('v_cvt_pk_bf16_f32 %s, %s, %s' % (vr(fU + 3), vr(fU + 2), vr(fU + 3)))
        e('v_lshlrev_b32 %s, 16, %s' % (vr(fU), vr(fU + 1)))
        e('v_lshlrev_b32 %s, 16, %s' % (vr(fU + 2), vr(fU + 3)))
        e('v_and_b32 %s, 0xffff0000, %s' % (vr(fU + 1), vr(fU + 1)))
        e('v_and_b32 %s, 0xffff0000, %s' % (vr(fU + 3), vr(fU + 3)))
    for hh in range(2):
        e('v_pk_add_f32 %s, %s, %s op_sel:[0,0] op_sel_hi:[1,0] neg_lo:[0,1] neg_hi:[0,1]' % (vr(fU + 2 * hh, 2), vr(r + 2 * hh, 2), vr(fM, 2)))
    rnd4()
    for hh in range(2):
        e('v_pk_mul_f32 %s, %s, %s op_sel:[0,1] op_sel_hi:[1,1]' % (vr(fU + 2 * hh, 2), vr(fU + 2 * hh, 2), vr(fM, 2)))
    rnd4()
    for hh in range(2):
        e('v_pk_mul_f32 %s, %s, %s' % (vr(fU + 2 * hh, 2), vr(fU + 2 * hh, 2), vr(fD + 2 * hh, 2)))
    rnd4()
    for hh in range(2):
        e('v_pk_add_f32 %s, %s, %s' % (vr(r + 2 * hh, 2), vr(r + 2 * hh, 2), vr(fU + 2 * hh, 2)))
    for hh in range(2):
        e('v_pk_add_f32 %s, %s, %s' % (vr(r + 2 * hh, 2), vr(r + 2 * hh, 2), vr(fB + 2 * hh, 2)))

F2 = Q()
e('v_lshrrev_b32 %s, 3, %s' % (vr(vRR), vr(vLO4)))
e('v_lshlrev_b32 %s, 12, %s' % (vr(vRR), vr(vRR)))
e('v_lshl_add_u32 %s, %s, 8, %s' % (vr(vRR), vr(vHI5), vr(vRR)))
e('v_and_b32 %s, 0x17, %s' % (vr(vRR2), vr(vLANE)))
e('v_and_b32 %s, 7, %s' % (vr(vRW), vr(vLANE)))
e('v_add_u32 %s, %s, %s' % (vr(vRR2), vr(vRR2), vr(vRW)))
e('v_lshl_add_u32 %s, %s, 3, %s' % (vr(vRR), vr(vRR2), vr(vRR)))
S('s_lshl_b32 %s, %s, 13', sT0, sTH)
S('s_lshl_b32 %s, %s, 11', sT1, sPH)
S('s_add_u32 %s, %s, %s', sT0, sT0, sT1)
e('v_add_u32 %s, %s, %s' % (vr(vRR), sr(sT0), vr(vRR)))
e('v_add_u32 %s, 0x10000, %s' % (vr(vRR2), vr(vRR)))
S('s_lshl_b32 m0, %s, 14', sW)
S('s_add_u32 %s, %s, %s', sP1, sH1, sSSM)
S('s_add_u32 %s, %s, %s', sP2, sH2, sSSM)
S('s_movk_i32 %s, 0xff', sBM)
for i in range(4):
    e('v_bfe_u32 %s, %s, %d, 8' % (vr(TB + i), vr(vTAG), 8 * i))
if OPT['RQ'] == -1:
    pa_issue()
res_pre()
A.wait_lg0()
stamp('xw')
e('s_barrier')
stamp('bx')
for q in range(5):
    if q == OPT['RQ']:
        pa_issue()
    if q < 4:
        res_q(q)
e('v_lshlrev_b32 %s, 1, %s' % (vr(vOO), vr(vXO)))
stamp('res')
A.wait_vm('HS')
stamp('HSdone')
flag(WS_FB, 'fb')
def hs_touch():
    e('v_lshlrev_b32 %s, 5, %s' % (vr(vCT), vr(vTM)))
    e('s_mov_b32 exec_hi, 0')
    A.vmem('buffer_load_dword %s, %s, %s, %s offen sc1' % (vr(vSCR), vr(vCT), sr(dWS, 4), sr(sHS)), 'touch')
    e('s_mov_b32 exec_hi, -1')
if OPT['PTOUCH'] & 2:
    hs_touch()
stamp('fb')
page('pa')
A.wait_vm('pa')
stamp('pa1')
retry_loop('pa', pa_issue, p_check, 60)
stamp('paok')
for i in range(OPT['NPRE']):
    hload()
if OPT['PTOUCH'] & 4:
    hs_touch()
e('v_lshrrev_b32 %s, 1, %s' % (vr(vPF), vr(vPF)))
assert OPT['NPRE'] <= FS - OPT['PBD']
M1 = 16320
def red_write(t, k):
    A.ds('ds_write_addtid_b32 %s offset:%d' % (vr(64 * t + k), t * (65536 - M1) + 256 * k), 'rw')
def red_read(t, q, part):
    A.ds('ds_read_b128 %s, %s offset:%d' % (vr(RD + 16 * q + 4 * part, 4), vr(vRR2 if t else vRR), part * 16384 + (q >> 1) * 1024 + (q & 1) * 512), 'rr%d' % q)
def px_issue():
    for k in range(4):
        A.vmem('buffer_load_dwordx4 %s, %s, %s, %s offen offset:%d sc1' % (vr(PXR + 4 * k, 4), vr(vL16), sr(dWS, 4), sr(sPX), k * 1024), 'px')
def px_check():
    for k in range(16):
        e('v_xor_b32 %s, %s, %s' % (vr(PXR + k), vr(TB + (k & 3)), vr(PXR + k)))
    for k in range(4):
        e('v_or3_b32 %s, %s, %s, %s' % (vr(pT + k), vr(PXR + 4 * k), vr(PXR + 4 * k + 1), vr(PXR + 4 * k + 2)))
    e('v_or3_b32 %s, %s, %s, %s' % (vr(pT), vr(pT), vr(PXR + 3), vr(PXR + 7)))
    e('v_or3_b32 %s, %s, %s, %s' % (vr(pT + 1), vr(pT + 1), vr(PXR + 11), vr(PXR + 15)))
    e('v_or3_b32 %s, %s, %s, %s' % (vr(pT), vr(pT), vr(pT + 2), vr(pT + 3)))
    e('v_or_b32 %s, %s, %s' % (vr(pT), vr(pT), vr(pT + 1)))
    e('v_and_b32 %s, %s, %s' % (vr(pT), sr(sBM), vr(pT)))
    e('v_cmp_ne_u32 vcc, 0, %s' % vr(pT))
def al_issue(opt=True):
    e('v_lshlrev_b32 v8, 7, %s' % vr(vLANE))
    for i in range(4):
        S('s_mov_b32 %s, %s', sT0, hex(WS_G + 8192 * i))
        A.vmem('buffer_load_dword v%d, v8, %s, %s offen offset:12 sc1' % (i, sr(dWS, 4), sr(sT0)), 'alp', opt=opt)
def al_check():
    for i in range(4):
        e('v_xor_b32 v%d, %s, v%d' % (4 + i, sr(sTAG), i))
    e('v_or3_b32 v4, v4, v5, v6')
    e('v_or_b32 v4, v4, v7')
    e('v_cmp_ne_u32 vcc, 0, v4')

left = [2] * 76
last = {}
for n, (f, dh) in enumerate(MF):
    last[(LD[f][0], LD[f][2], dh)] = n
clk = [0, -4 * OPT['HINT']]
seen = set()
for n, (f, dh) in enumerate(MF):
    t, s, hh = LD[f]
    for (tq_, hq, dq), m in sorted(last.items()):
        if n == m + 2:
            o = Ops()
            if (tq_, hq, dq) == (1, 0, 0):
                o.s('s_add_u32 m0, m0, %d' % M1)
            for k in range(16):
                o.f(lambda k=k, tq_=tq_, hq=hq, dq=dq: red_write(tq_, 32 * hq + 16 * dq + k), OPT['WC'])
            F2.add(o)
            if (tq_, hq, dq) != (0, 1, 1):
                continue
            o = Ops()
            def bar1():
                A.wait_lg0()
                e('s_barrier')
                stamp('bar1')
            o.f(lambda: None, 8)
            o.f(bar1, 4)
            for q in range(4):
                for part in range(4):
                    o.f(lambda q=q, part=part: red_read(0, q, part), 2)
            for q in range(4):
                o.f(lambda q=q: A.wait_lg('rr%d' % q))
                b = RD + 16 * q
                for i in range(4):
                    o.v('v_add_f32 %s, %s, %s' % (vr(b + i), vr(b + i), vr(b + 4 + i)))
                for i in range(4):
                    o.v('v_add_f32 %s, %s, %s' % (vr(b + 8 + i), vr(b + 8 + i), vr(b + 12 + i)))
                for i in range(4):
                    o.v('v_add_f32 %s, %s, %s' % (vr(b + i), vr(b + i), vr(b + 8 + i)))
                for i in range(4):
                    o.v('v_bfi_b32 %s, %s, %s, %s' % (vr(b + i), sr(sBM), vr(TB + i), vr(b + i)))
                o.f(lambda q=q, b=b: A.vmem('buffer_store_dwordx4 %s, %s, %s, %s offen offset:%d sc1' % (vr(b, 4), vr(vL16), sr(dWS, 4), sr(sPX), q * 1024), 'pxs'), 4)
                o.f(lambda: print(' px store at step', clk[2] / 4, 'loads issued', hf[0]), 0)
                for i in range(OPT['PXS'] if q < 3 else 0):
                    o.f(lambda: None, 5)
            o.s('s_xor_b32 %s, %s, 0x4000', sPX, sPX)
            o.f(lambda: (stamp('pxs'), seen.add('pxs'), print('px stores done at step', clk[2] / 4, 'loads issued', hf[0])), 0)
            F2.add(o)
    clk[2:] = [n]
    if n == 4 * OPT['WB']:
        lab = newlab('wb')
        S('s_and_b32 %s, %s, %s', sT0, sGW, ['3', '0x3e3', '0x63'][OPT['WBM']])
        S('s_cmp_lg_u32 %s, 1', sT0)
        e('s_cbranch_scc1 %s' % lab)
        A.vmem('buffer_wbl2 sc1', 'wb', opt=True)
        A.label(lab)
    if n == 4 * OPT['PXPOS']:
        assert 'pxs' in seen
        px_issue()
    if n == 4 * min(37, OPT['PXPOS']):
        lab = newlab('nal')
        S('s_cmp_lg_u32 %s, 3', sGW)
        e('s_cbranch_scc1 %s' % lab)
        al_issue()
        A.label(lab)
    u = 0
    if n % 4 == 0:
        page('hH' if n == 4 * OPT['PGH'] else 'h%d' % (n // 4))
    if f not in seen:
        assert hf[0] > f
        A.wait_vm('h%d' % f)
        seen.add(f)
    if n // 4 in HST and n % 4 == 0:
        stamp('h%d' % (n // 4))
    acc = vr(64 * t + 32 * hh + 16 * dh, 16)
    if not OPT['X'] & 8:
        e('v_mfma_f32_32x32x16_bf16 %s, %s, %s, %s' % (acc, ar(RING + 4 * (f % NR), 4), ar(8 * s + 4 * dh, 4), acc if s else '0'))
    left[f] -= 1
    if n + 1 < len(MF) and MF[n + 1][0] not in seen:
        u = 1
    if hf[0] < 76 and (hf[0] < NR or left[hf[0] - NR] == 0) and clk[0] >= clk[1]:
        u += hload()
        clk[1] += OPT['HINT']
    while F2.ready() and (u + F2.cost() <= OPT['RPOP'] or u <= 1):
        u += F2.cost()
        F2.pop1()
    clk[0] += max(32, 8 + 4 * u)
assert hf[0] == 76
stamp('mfma2')
if OPT['PXPOS'] == 38:
    px_issue()
print('F2 left', len(F2.q))
F2.flush()
for key, m in sorted(last.items()):
    if m + 2 >= len(MF):
        assert key != (1, 0, 0)
        for k in range(16):
            red_write(1, 32 * key[1] + 16 * key[2] + k)
A.wait_lg0()
e('s_barrier')
stamp('bar2')
if OPT['PXPOS'] == 39:
    px_issue()
for q in range(4):
    for part in range(4):
        red_read(1, q, part)
if OPT['PXPOS'] == 40:
    A.wait_vm('pxs')
    stamp('pxack')
    px_issue()
def own_sum(q):
    A.wait_lg('rr%d' % q)
    b, r = RD + 16 * q, RES + 4 * q
    for h in (0, 2):
        e('v_pk_add_f32 %s, %s, %s' % (vr(b + h, 2), vr(b + h, 2), vr(b + 4 + h, 2)))
        e('v_pk_add_f32 %s, %s, %s' % (vr(b + 8 + h, 2), vr(b + 8 + h, 2), vr(b + 12 + h, 2)))
    for h in (0, 2):
        e('v_pk_add_f32 %s, %s, %s' % (vr(r + h, 2), vr(r + h, 2), vr(b + h, 2)))
    for h in (0, 2):
        e('v_pk_add_f32 %s, %s, %s' % (vr(r + h, 2), vr(r + h, 2), vr(b + 8 + h, 2)))
for q in range(4):
    own_sum(q)
A.wait_vm('px')
stamp('px1')
retry_loop('px', px_issue, px_check, 62)
stamp('pxok')
for q in range(4):
    r = RES + 4 * q
    for h in (0, 2):
        e('v_pk_add_f32 %s, %s, %s' % (vr(r + h, 2), vr(r + h, 2), vr(PXR + 4 * q + h, 2)))
    S('s_mov_b32 %s, %s', sT0, str(QR[q] * 8192))
    A.vmem('buffer_store_dwordx4 %s, %s, %s, %s offen%s' % (vr(r, 4), vr(vOO), sr(dO, 4), sr(sT0), ['', ' sc1', ' nt', ' sc0 sc1'][OPT['OUTSC']]), 'out')
lab = newlab('nep')
S('s_cmp_lg_u32 %s, 3', sGW)
e('s_cbranch_scc1 %s' % lab)
A.wait_vm('alp')
retry_loop('al', al_issue, al_check, 63)
one_lane_store(8, '0', 'ep')
A.label(lab)
if PROF:
    stamp('stored')
    e('s_waitcnt vmcnt(0)')
    stamp('drained')
    stamp('rt1', True)
    A.wait_lg0()
    e('v_lshlrev_b32 v16, 2, %s' % vr(vLANE))
    if DBGT and os.environ.get('AMP'):
        x0, x1 = os.environ['AMP'].split('-')
        e('v_readlane_b32 s40, %s, %d' % (vr(vSTAMP), SNAMES[x0]))
        e('v_readlane_b32 s41, %s, %d' % (vr(vSTAMP), SNAMES[x1]))
        e('v_readlane_b32 s42, %s, %d' % (vr(vSTAMP), SNAMES['drained']))
        e('s_nop 4')
        e('s_sub_u32 s40, s41, s40')
        e('s_lshl_b32 s40, s40, 2')
        e('s_min_u32 s40, s40, 20000')
        e('s_mov_b32 s43, 0')
        A.label('L_amp')
        e('s_memrealtime s[44:45]')
        e('s_waitcnt lgkmcnt(0)')
        e('s_add_u32 s43, s43, 1')
        e('s_cmp_gt_u32 s43, 0x4000')
        e('s_cbranch_scc1 L_ampd')
        e('s_sub_u32 s44, s44, s42')
        e('s_cmp_lt_u32 s44, s40')
        e('s_cbranch_scc1 L_amp')
        A.label('L_ampd')
    elif DBGT:
        e('s_load_dwordx2 s[40:41], s[0:1], 120')
        e('v_not_b32 v17, %s' % vr(vSTAMP))
        e('v_cmp_eq_u32 vcc, 0, %s' % vr(vLANE))
        e('s_nop 1')
        e('v_cndmask_b32 v17, %s, v17, vcc' % vr(vSTAMP))
        e('s_waitcnt lgkmcnt(0)')
        e('s_mov_b64 exec, 0xffff')
        e('global_atomic_umax v16, v17, s[40:41] sc1')
        e('s_mov_b64 exec, -1')
    S('s_lshl_b32 %s, %s, 8', sT0, sGW)
    S('s_add_u32 %s, %s, %s', sT0, sT0, hex(WS_PROF))
    e('buffer_store_dword %s, v16, %s, %s offen' % (vr(vSTAMP), sr(dWS, 4), sr(sT0)))
    json.dump(SNAMES, open(OUT + '.names', 'w'))
A.label('L_end')
e('s_endpgm')

body, nops = hazard_pass(A.lines)
if OPT['PG'] & 8:
    body, n1, n2, tot = stub_pass(body, 0x300, 2, 4, OPT['AL'])
    print('alignment: nops', n1, 'widened', n2, 'cost', tot)
elif OPT['AL']:
    body, n1, n2, tot = align_pass(body, OPT['AL'])
    print('alignment: nops', n1, 'widened', n2, 'cost', tot)
head = open('cdna_kernels/%s.s.ref' % NAME).read().split('; Override launch')[0]
txt = head + '; @launch grid=(256,1,1) block=(256,1,1) lds=%d\n' % LDS_BYTES
txt += '''.amdgcn_target "amdgcn-amd-amdhsa--gfx950"
.text
.globl %s_kernel
.p2align %d
.type %s_kernel,@function
%s_kernel:
''' % (NAME, 12 if OPT['PG'] & 1 else 8, NAME, NAME)
txt += '\n'.join(body) + '\n'
txt += '''.section .rodata,"a"
.p2align 6
.amdhsa_kernel %s_kernel
  .amdhsa_next_free_vgpr 512
  .amdhsa_next_free_sgpr 102
  .amdhsa_accum_offset 256
  .amdhsa_group_segment_fixed_size 0
  .amdhsa_kernarg_size 136
  .amdhsa_user_sgpr_count 2
  .amdhsa_user_sgpr_kernarg_segment_ptr 1
  .amdhsa_system_sgpr_workgroup_id_x 1
.end_amdhsa_kernel
''' % NAME
open(OUT, 'w').write(txt)
print('wrote', OUT, 'lines', len(body), 'nops', nops)
```

```python
import sys, math, struct, json
from asmlib import *

NAME = 'parallel_sum__ssm_conv_s5__mixer_channel_mlp__prompt'
DBGT = '--dbgt' in sys.argv
PROF = '--prof' in sys.argv or DBGT
OUT = [a for a in sys.argv[1:] if not a.startswith('--') and '=' not in a]
OUT = OUT[0] if OUT else 'cdna_kernels/%s.s' % NAME
OPT = dict(ROT=9, DINT=72, LBPOS=6, OUTSC=0, PXPOS=39, RPOP=8, HINT=60, PTOUCH=0, DCOST=2, D1A=0, BUD0=2, NB0=4, X=0,
           EINT=100, NB1=3, PBD=12, SDG=5, NPRE=10, WPF=3, WT0=9, STL=4, RQ=3,
           PB=1, PINT=20, SPF=0, D1B=7, B1P=2, B1G=3, XS=0, TL0=6, TL1=6, WC=2, FAP=0, XWP=0, PXS=0, CJ0=6, WG0=0, WNT=0, FL0=0, NTX=-1, NTW=-1, NTS=0, WPK=0, WINT=92, WCL=4, SMP=0, STD=0, AL=5, PG=0, PGA=3, PGH=19, PGT=0, HP=0, WB=-1, WBM=0)
for a in sys.argv[1:]:
    if '=' in a:
        k, v = a.split('=')
        assert k in OPT, k
        OPT[k] = int(v)

def f2u(x):
    return '0x%08x' % struct.unpack('<I', struct.pack('<f', x))[0]

WS_AL = 0x1000
WS_G = 0x8000
WS_SG = 0x10000
WS_PROF = 0x40000
WS_FA = 0x80000
WS_FB = 0xA0000
WS_FC = 0xC0000
WS_PX = 0x100000
WS_H = 0x800000
WS_SIZE = 0x1200000
HR = 152 * 2048

SLOT, PIECE = 36864, 9216
TAB, TROW = 147456, 272
CSX = TAB + 25 * TROW
PE = 155648
assert CSX + 1280 <= PE and CSX % 16 == 0
LDS_BYTES = 160 * 1024

sW, sRB, sJ, sKH, sC, sRBL, sTAG, sGW, sT2, sT3, sPC = 4, 5, 6, 7, 8, 9, 10, 11, 12, 13, 14
pX, pLRE, pLIM, pBRE, pBIM, pCRE, pCIM, pLDT, pDSK, pBX, pW1, pB1, pW2, pB2, pOUT, pDBG, pWS = [16 + 2 * i for i in range(17)]
sPERM, sCNT = 50, 51
dX, dWS, dB, dW1, dW2, dO = 52, 56, 60, 64, 68, 72
sM0, sSX, sSW, sOFF, sM8, sME, sWS, sBM, sU0, sCG, sT0, sT1 = range(76, 88)
sCO = sOFF
sMSK = [88, 90, 92, 94]
sTH, sPH, sJT = 34, 35, 46
sD0, sSG, sSGO, sHM, sHS, sFL, sPA, sPB, sH1, sH2 = range(16, 26)
sSSM, sGR, sPX, sP1, sP2, sHC, sF0, sF1 = 30, 31, 32, 33, 36, 37, 38, 39

vLANE, vL16, vLO4, vG, vLO5, vHI5, vSTAMP, vSCR = 255, 254, 253, 252, 251, 250, 249, 248

A = Asm()
AUTO = dict(on=False, t=0, nxt=0, busy=False, any=False, int=OPT['EINT'])
_e = A.e
def e_time(s):
    mn = s.split()[0]
    AUTO['t'] += 8 if mn in TRANS else 12 if mn.startswith(('buffer_', 'ds_write')) else 4
    _e(s)
A.e = e_time
def e(s):
    A.e(s)
    ok = s.startswith('v_') or (AUTO['any'] and s.startswith('s_') and not s.startswith(('s_cmp', 's_bitcmp', 's_memtime', 's_wait')))
    if AUTO['on'] and not AUTO['busy'] and ok and DQ.ready() and AUTO['t'] >= AUTO['nxt']:
        AUTO['busy'] = True
        AUTO['nxt'] = max(AUTO['nxt'], AUTO['t'] - 2 * AUTO['int']) + AUTO['int']
        DQ.popD()
        AUTO['busy'] = False
def auto(on):
    AUTO['on'] = on
EXPECT = dict([('st%d' % v, 9) for v in range(8)] + [('stat', 4), ('W', 38), ('b1', 5), ('srow', 2), ('lb', 4), ('px', 4), ('res', 8)])
ISSUED = {}
_vm, _wv = A.vmem, A.wait_vm
def vm_hook(s, tag='x', opt=False):
    ISSUED[tag] = ISSUED.get(tag, 0) + 1
    if OPT['X'] & 1 and ' lds' in s and tag not in ('st0', 'st1'):
        return
    if OPT['HP'] & 1 and tag in ('HM', 'HS') or OPT['HP'] & 2 and tag in ('fa', 'fb'):
        s = s.replace(' sc1', ' nt' if OPT['HP'] & 4 else '')
    _vm(s, tag, opt)
def wv_hook(tags):
    for t in ([tags] if isinstance(tags, str) else tags):
        assert ISSUED.get(t, 0) >= EXPECT.get(t, 1), (t, ISSUED.get(t, 0))
    _wv(tags)
A.vmem, A.wait_vm = vm_hook, wv_hook
DSN = {}
_ds = A.ds
def ds_hook(s, tag='x'):
    DSN[tag] = DSN.get(tag, 0) + 1
    if OPT['X'] & 4 and tag[0] in 'xa' and tag[1].isdigit():
        return
    if OPT['X'] & 32 and tag == 'csw' or OPT['X'] & 64 and tag == 'cso':
        return
    _ds(s, tag)
A.ds = ds_hook
SNAMES = {}
import os
SKIP = os.environ.get('SKIP', 'b1,b3,fa,fb,d0,tab').split(',')
HST = [int(x) for x in os.environ.get('HST', '0,6,12,19,26,32').split(',')]
pending = []
SPAIRS = [96, 98, 100]
def flush_stamps():
    for (i, p) in pending:
        e('v_writelane_b32 %s, %s, %d' % (vr(vSTAMP), sr(p), i))
    del pending[:]
_wl0 = A.wait_lg0
def wait_lg0_hook():
    _wl0()
    flush_stamps()
A.wait_lg0 = wait_lg0_hook
DT = os.environ.get('DT', 'rt0,t0,karg,lam,st0,a3,kloop,Spub,gelu,Sgot,epi,paok,pbok,mfma2,pxok,drained').split(',')
def stamp(name, real=False):
    if not PROF:
        A.label('L_m_' + name)
    if not PROF or name in SKIP:
        return
    if os.environ.get('ONLY') and name not in ['rt0', 't0', 'drained', 'rt1'] + os.environ['ONLY'].split(','):
        return
    if DBGT:
        if name not in DT:
            return
        real = True
    if os.environ.get('REAL') and name not in ('t0', 'drained'):
        real = True
    assert name not in SNAMES
    SNAMES[name] = len(SNAMES)
    i = SNAMES[name]
    assert i < 57
    if len(pending) == len(SPAIRS):
        A.wait_lg0()
    used = [p for (_, p) in pending]
    p = [q for q in SPAIRS if q not in used][0]
    e('%s %s' % ('s_memrealtime' if real else 's_memtime', sr(p, 2)))
    pending.append((i, p))
def count(slot):
    if PROF and not os.environ.get('ONLY'):
        e('v_writelane_b32 %s, %s, %d' % (vr(vSTAMP), sr(sCNT), slot))

def srd(d, p, size):
    e('s_mov_b32 %s, %s' % (sr(d), sr(p)))
    e('s_mov_b32 %s, %s' % (sr(d + 1), sr(p + 1)))
    e('s_mov_b32 %s, 0x%x' % (sr(d + 2), size))
    e('s_mov_b32 %s, 0x20000' % sr(d + 3))

def cmul(dr, di, ar_, ai, br, bi):
    e('v_mul_f32 %s, %s, %s' % (vr(dr), vr(ar_), vr(br)))
    e('v_mul_f32 %s, %s, %s' % (vr(di), vr(ar_), vr(bi)))
    e('v_fma_f32 %s, -%s, %s, %s' % (vr(dr), vr(ai), vr(bi), vr(dr)))
    e('v_fma_f32 %s, %s, %s, %s' % (vr(di), vr(ai), vr(br), vr(di)))

def cfma(dr, di, ar_, ai, br, bi, cr, ci):
    e('v_fma_f32 %s, %s, %s, %s' % (vr(dr), vr(ar_), vr(br), vr(cr)))
    e('v_fma_f32 %s, %s, %s, %s' % (vr(di), vr(ar_), vr(bi), vr(ci)))
    e('v_fma_f32 %s, -%s, %s, %s' % (vr(dr), vr(ai), vr(bi), vr(dr)))
    e('v_fma_f32 %s, %s, %s, %s' % (vr(di), vr(ai), vr(br), vr(di)))

NEG1 = 'neg_lo:[0,1,0] neg_hi:[0,1,0]'
def pk_cfma4(dr, di, ar_, ai, k, cr, ci):
    for h in (0, 2):
        e('v_pk_fma_f32 %s, %s, %s, %s' % (vr(dr + h, 2), vr(ar_ + h, 2), vr(k + h, 2), vr(cr + h, 2)))
    for h in (0, 2):
        e('v_pk_fma_f32 %s, %s, %s, %s' % (vr(di + h, 2), vr(ai + h, 2), vr(k + h, 2), vr(ci + h, 2)))
    for h in (0, 2):
        e('v_pk_fma_f32 %s, %s, %s, %s %s' % (vr(dr + h, 2), vr(ai + h, 2), vr(k + 4 + h, 2), vr(dr + h, 2), NEG1))
    for h in (0, 2):
        e('v_pk_fma_f32 %s, %s, %s, %s' % (vr(di + h, 2), vr(ar_ + h, 2), vr(k + 4 + h, 2), vr(di + h, 2)))

labn = [0]
def newlab(s):
    labn[0] += 1
    return 'L_%s_%d' % (s, labn[0])

PGS = os.environ.get('PGS', 'st0,aA,a7,sx,lb,pa,hH').split(',')
def page(name):
    if name not in PGS or not OPT['PG'] & 6:
        return
    k = PGS.index(name)
    A.e('s_branch L_pg_%d' % k)
    if OPT['PG'] & 2:
        A.lines.append('.p2align 12')
    if OPT['PG'] & 4:
        A.label('L_stub_%d' % k)
        A.e('s_branch %s' % ('L_stub_%d' % (k + 4) if 0 < k < len(PGS) - 4 else 'L_back'))
    A.label('L_pg_%d' % k)
def touch_pages(k):
    if OPT['PG'] & 8 and OPT['PGT'] == k:
        A.e('s_mov_b64 exec, 0')
        for w in range(3):
            A.e('s_cmp_eq_u32 %s, %d' % (sr(sW), w))
            A.e('s_cbranch_scc1 L_stub_%d' % w)
        A.e('s_branch L_stub_3')
        A.label('L_back')
        A.e('s_mov_b64 exec, -1')
    if not OPT['PG'] & 4 or OPT['PGT'] != k:
        return
    for w in range(3):
        A.e('s_cmp_eq_u32 %s, %d' % (sr(sW), w))
        A.e('s_cbranch_scc1 L_stub_%d' % (w + 1))
    A.e('s_branch L_stub_4')
    A.label('L_back')

def S(fmt, *a):
    e(fmt % tuple(sr(x) if isinstance(x, int) else x for x in a))

def retry_loop(name, issue, check, slot, first=True):
    lo, ld = newlab(name + 'l'), newlab(name + 'd')
    if first:
        check()
    if PROF:
        S('s_mov_b32 %s, 0', sCNT)
    e('s_cbranch_vccz %s' % ld)
    S('s_mov_b32 %s, 0', sCNT)
    A.label(lo)
    sv = list(A.vm)
    issue()
    e('s_waitcnt vmcnt(0)')
    A.vm = sv
    check()
    S('s_add_u32 %s, %s, 1', sCNT, sCNT)
    e('s_cbranch_vccz %s' % ld)
    S('s_cmp_le_u32 %s, 0x20000', sCNT)
    e('s_cbranch_scc1 %s' % lo)
    A.label(ld)
    count(slot)

def one_lane_store(vt, soff, tag, opt=False, sc=' sc1'):
    e('v_mov_b32 %s, %s' % (vr(vt), sr(sTAG)))
    e('v_mov_b32 %s, 0' % vr(vt + 1))
    e('s_mov_b64 exec, 1')
    A.vmem('buffer_store_dword %s, %s, %s, %s offen%s' % (vr(vt), vr(vt + 1), sr(dWS, 4), soff, sc), tag, opt=opt)
    e('s_mov_b64 exec, -1')
def flag(off, tag):
    S('s_add_u32 %s, %s, %s', sT0, sFL, hex(off))
    e('s_mov_b32 exec_hi, 0')
    A.vmem('buffer_store_dword %s, %s, %s, %s offen sc1' % (vr(vTAG), vr(vTM), sr(dWS, 4), sr(sT0)), tag)
    e('s_mov_b32 exec_hi, -1')

class Q:
    def __init__(self):
        self.q = []
        self.open = set([None])
    def add(self, ops, gate=None):
        self.q += [(c, f, gate) for (c, f) in ops]
    def ready(self):
        return bool(self.q) and self.q[0][2] in self.open
    def cost(self):
        return self.q[0][0]
    def pop1(self):
        self.q.pop(0)[1]()
    def popD(self, n=1):
        while n > 0 and self.ready():
            if self.cost() == 'D':
                n -= 1
            self.pop1()
    def pop(self, n):
        while n > 0 and self.ready():
            c = self.cost()
            n -= 2 if c == 'D' else c
            self.pop1()
    def flush(self):
        while self.q:
            assert self.ready(), self.q[0][2]
            self.pop1()

class Ops(list):
    def v(self, s, c=1):
        self.append((c, lambda: e(s)))
    def s(self, fmt, *a):
        self.append((1, lambda: S(fmt, *a)))
    def f(self, fn, c=1):
        self.append((c, fn))

DQ = Q()
FQ = Q()
ACC, CS, XF, AF, ONE = 0, 80, 100, 132, 152
XA, BA, WA = 156, 160, 164
vX, vB, vW1, vW2 = 168, 170, 172, 175
B1, ST, SS, TMP = 180, 188, 204, 212
BU = TMP + 4
vTB, vTI, vTC, vTG, vSXW, vSXR, vCW, vCR, vPF, vTM, vXO, vGO = range(TMP + 16, TMP + 28)
vPA = TMP + 28
vSA, vTRL, vTAG = 177, 178, 179
vWT, vCT, vPW, vCO = 244, 245, 246, 247
sPM = 40
U0, U1 = 186, 187
SR = ST

e('s_cmp_ge_u32 s2, 256')
e('s_cbranch_scc1 L_end')
if PROF:
    e('v_mov_b32 %s, 0' % vr(vSTAMP))
    stamp('rt0', True)
    stamp('t0')
e('s_load_dwordx16 s[16:31], s[0:1], 0')
e('s_load_dwordx16 s[32:47], s[0:1], 64')
e('s_load_dwordx2 s[48:49], s[0:1], 128')
e('s_getpc_b64 %s' % sr(sPC, 2))
A.label('L_pc')
e('v_and_b32 %s, 63, v0' % vr(vLANE))
e('v_lshrrev_b32 v1, 6, v0')
e('v_lshlrev_b32 %s, 4, %s' % (vr(vL16), vr(vLANE)))
e('v_readfirstlane_b32 %s, v1' % sr(sW))
e('v_lshlrev_b32 v2, 7, v0')
e('v_min_u32 v2, L_end-L_pc, v2')
lab = newlab('npf')
e('s_cmp_ge_u32 s2, 16')
e('s_cbranch_scc1 %s' % lab)
A.vmem('global_load_dword %s, v2, %s' % (vr(vSCR), sr(sPC, 2)), 'pf', opt=True)
A.label(lab)
S('s_and_b32 %s, s2, 1', sKH)
S('s_lshr_b32 %s, s2, 6', sRBL)
S('s_bfe_u32 %s, s2, 0x30003', sC)
S('s_bfe_u32 s3, s2, 0x20001')
S('s_lshl2_add_u32 %s, s3, %s', sRB, sRBL)
S('s_lshl3_add_u32 %s, %s, %s', sJ, sKH, sC)
S('s_lshl2_add_u32 %s, s2, %s', sGW, sW)
if OPT['ROT'] == 0:
    S('s_mov_b32 %s, 0x76543210', sPERM)
elif OPT['ROT'] == 9:
    PT = [[0, 4, 1, 2, 3, 5, 6, 7], [1, 2, 5, 3, 0, 4, 6, 7], [2, 3, 0, 6, 1, 4, 5, 7], [3, 0, 1, 2, 7, 4, 5, 6]]
    PT = [hex(sum(x << (4 * i) for i, x in enumerate(p))) for p in PT]
    S('s_add_u32 %s, %s, %s', sT0, sRBL, sC)
    S('s_mov_b32 %s, %s', sPERM, PT[0])
    S('s_mov_b32 %s, %s', sT1, PT[2])
    S('s_bitcmp1_b32 %s, 0', sT0)
    S('s_cselect_b32 %s, %s, %s', sPERM, PT[1], sPERM)
    S('s_cselect_b32 %s, %s, %s', sT1, PT[3], sT1)
    S('s_bitcmp1_b32 %s, 1', sT0)
    S('s_cselect_b32 %s, %s, %s', sPERM, sT1, sPERM)
    S('s_add_u32 %s, s3, %s', sT1, sKH)
    S('s_bitcmp1_b32 %s, 0', sT1)
    S('s_cselect_b32 %s, 0x44444444, 0', sT1)
    S('s_xor_b32 %s, %s, %s', sPERM, sPERM, sT1)
elif OPT['ROT'] == 8:
    S('s_lshl1_add_u32 %s, %s, %s', sT0, sRBL, sC)
    S('s_add_u32 %s, %s, s3', sT0, sT0)
    S('s_and_b32 %s, %s, 7', sT0, sT0)
    S('s_mul_i32 %s, %s, 0x11111111', sT0, sT0)
    S('s_add_u32 %s, %s, 0x76543210', sT0, sT0)
    S('s_and_b32 %s, %s, 0x77777777', sPERM, sT0)
else:
    S('s_add_u32 %s, %s, %s', sT0, sRBL, sC)
    S('s_and_b32 %s, %s, 3', sT0, sT0)
    S('s_mul_i32 %s, %s, 0x11111111', sT0, sT0)
    S('s_add_u32 %s, %s, 0x32103210', sT0, sT0)
    S('s_and_b32 %s, %s, 0x33333333', sT0, sT0)
    if OPT['ROT'] == 4:
        S('s_add_u32 %s, s3, %s', sT1, sKH)
    elif OPT['ROT'] == 6:
        S('s_mov_b32 %s, 0', sT1)
    else:
        S('s_lshr_b32 %s, %s, 2', sT1, sC)
        S('s_add_u32 %s, %s, s3', sT1, sT1)
    S('s_bitcmp0_b32 %s, 0', sT1)
    S('s_mov_b32 %s, 0x4444', sT1)
    S('s_cselect_b32 %s, 0x44440000, %s', sT1, sT1)
    S('s_or_b32 %s, %s, %s', sPERM, sT0, sT1)
e('v_lshrrev_b32 %s, 5, %s' % (vr(vHI5), vr(vLANE)))
e('v_and_b32 %s, 31, %s' % (vr(vLO5), vr(vLANE)))
e('v_lshrrev_b32 %s, 4, %s' % (vr(vG), vr(vLANE)))
e('v_and_b32 %s, 15, %s' % (vr(vLO4), vr(vLANE)))
S('s_lshr_b32 %s, %s, 1', sT2, sW)
S('s_and_b32 %s, %s, 1', sT3, sW)
e('v_and_b32 v1, 7, %s' % vr(vLANE))
e('v_lshrrev_b32 v3, 3, %s' % vr(vLANE))
e('v_xor_b32 v4, v1, %s' % vr(vG))
e('v_lshlrev_b32 v4, 4, v4')
S('s_lshl1_add_u32 %s, %s, %s', sT0, sRB, sT2)
S('s_lshl_b32 %s, %s, 6', sT0, sT0)
S('s_add_u32 %s, %s, %s', sT0, sT0, sT3)
S('s_lshl_b32 %s, %s, 10', sT0, sT0)
e('v_lshl_add_u32 v5, v3, 12, v4')
e('v_add_u32 %s, %s, v5' % (vr(vX), sr(sT0)))
e('v_xor_b32 %s, 64, %s' % (vr(vX + 1), vr(vX)))
e('v_add_u32 %s, %d, %s' % (vr(vX + 1), 31 * 1024, vr(vX + 1)))
S('s_lshl1_add_u32 %s, %s, %s', sCG, sJ, sT2)
S('s_lshl_b32 %s, %s, 14', sCG, sCG)
e('v_lshl_add_u32 v5, v3, 10, v4')
e('v_add_u32 %s, %s, v5' % (vr(vB), sr(sCG)))
e('v_xor_b32 %s, 64, %s' % (vr(vB + 1), vr(vB)))
e('v_add_u32 %s, %d, %s' % (vr(vB + 1), 7 * 1024, vr(vB + 1)))
S('s_lshr_b32 %s, %s, 2', sT0, sJ)
S('s_mul_i32 %s, %s, 22', sT0, sT0)
S('s_and_b32 %s, %s, 3', sT1, sJ)
S('s_mul_i32 %s, %s, 6', sT1, sT1)
S('s_add_u32 %s, %s, %s', sOFF, sT0, sT1)
S('s_lshl_b32 %s, %s, 5', sSW, sOFF)
S('s_mul_i32 %s, %s, %s', sT0, sW, str(16 * 2752))
S('s_add_u32 %s, %s, %s', sSW, sSW, sT0)
S('s_movk_i32 %s, 5462', sT0)
S('s_movk_i32 %s, 2752', sT1)
for i in range(3):
    e('v_add_u32 v6, %d, %s' % (64 * i, vr(vLANE)))
    e('v_mul_u32_u24 v7, %s, v6' % sr(sT0))
    e('v_lshrrev_b32 v7, 16, v7')
    e('v_mul_u32_u24 v8, 12, v7')
    e('v_sub_u32 v6, v6, v8')
    e('v_lshrrev_b32 v8, 3, v7')
    e('v_lshlrev_b32 v8, 1, v8')
    e('v_xor_b32 v6, v6, v8')
    e('v_mul_u32_u24 v7, %s, v7' % sr(sT1))
    e('v_lshl_add_u32 v6, v6, 4, v7')
    e('v_add_u32 %s, %s, v6' % (vr(vW1 + i), sr(sSW)))
    if i < 2:
        S('s_sub_u32 %s, %s, 1024', sSW, sSW)
S('s_mul_i32 %s, %s, %s', sM0, sW, str(PIECE))
S('s_lshl_b32 %s, %s, 6', sT0, sJ)
e('v_lshl_add_u32 v9, %s, 1, %s' % (vr(vLO5), sr(sT0)))
e('v_mov_b32 v10, 0')
S('s_mov_b32 %s, 0x200000', dX + 2)
S('s_mov_b32 %s, 0x20000', dX + 3)
S('s_mov_b32 %s, 0x80000', dB + 2)
S('s_mov_b32 %s, 0x20000', dB + 3)
S('s_mov_b32 %s, %s', dW1 + 2, str(512 * 2752))
S('s_mov_b32 %s, 0x20000', dW1 + 3)
S('s_mov_b32 %s, %s', dWS + 2, hex(WS_SIZE))
S('s_mov_b32 %s, 0x20000', dWS + 3)

def stage_dma(v):
    slot = v & 3
    tag = 'st%d' % v
    ops = []
    sc = lambda fmt, *a: ops.append((1, lambda: S(fmt, *a)))
    dm = lambda txt: ops.append(('D', lambda: A.vmem(txt, tag)))
    sc('s_bfe_u32 %s, %s, %s', sSW, sPERM, '0x%x' % (4 * v + 0x30000))
    sc('s_add_u32 m0, %s, %s', sM0, str(slot * SLOT + 4096))
    sc('s_lshl_b32 %s, %s, 7', sSX, sSW)
    for i in range(2):
        dm('buffer_load_dwordx4 %s, %s, %s offen offset:%d%s lds' % (vr(vB + i), sr(dB, 4), sr(sSX), i * 1024, ' nt' if v <= OPT['NTW'] else ''))
    sc('s_add_u32 m0, %s, %s', sM0, str(slot * SLOT + 6144))
    sc('s_mul_i32 %s, %s, %s', sSW, sSW, str(64 * 2752))
    for i in range(3):
        dm('buffer_load_dwordx4 %s, %s, %s offen offset:%d%s lds' % (vr(vW1 + i), sr(dW1, 4), sr(sSW), i * 1024, ' nt' if v <= OPT['NTW'] else ''))
    sc('s_add_u32 m0, %s, %s', sM0, str(slot * SLOT))
    for i in range(4):
        dm('buffer_load_dwordx4 %s, %s, %s offen offset:%d%s lds' % (vr(vX + (i & 1)), sr(dX, 4), sr(sSX), i * 1024, ' nt' if v <= OPT['NTX'] else ''))
    return ops

S('s_lshl1_add_u32 %s, %s, %s', sT0, sRB, sKH)
S('s_and_b32 %s, %s, 1', sT1, sJ)
S('s_lshl1_add_u32 %s, %s, %s', sT0, sT0, sT1)
S('s_lshl2_add_u32 %s, %s, %s', sT0, sT0, sW)
S('s_bfe_u32 %s, %s, 0x20001', sT1, sJ)
S('s_lshl3_add_u32 %s, %s, %s', sT0, sT0, sT1)
S('s_lshl_b32 %s, %s, 10', sM8, sT0)
e('v_lshlrev_b32 %s, 12, %s' % (vr(vSA), vr(vHI5)))
e('v_lshl_add_u32 %s, %s, 4, %s' % (vr(vSA), vr(vLO5), vr(vSA)))
d0 = stage_dma(0)
for (c, f) in d0[:3]:
    f()
S('s_cmp_eq_u32 %s, 0', sT3)
A.wait_lg0()
stamp('karg')
S('s_cselect_b64 %s, %s, %s', sr(dB, 2), sr(pBRE, 2), sr(pBIM, 2))
S('s_mov_b64 %s, %s', sr(dX, 2), sr(pX, 2))
S('s_mov_b64 %s, %s', sr(dWS, 2), sr(pWS, 2))
lre, lim, ldt, vEP = 11, 12, 13, 14
A.vmem('global_load_ushort %s, v9, %s' % (vr(lre), sr(pLRE, 2)) + (' nt' if OPT['NTS'] & 2 else ''), 'lam')
A.vmem('global_load_ushort %s, v9, %s' % (vr(lim), sr(pLIM, 2)) + (' nt' if OPT['NTS'] & 2 else ''), 'lam')
A.vmem('global_load_ushort %s, v9, %s' % (vr(ldt), sr(pLDT, 2)) + (' nt' if OPT['NTS'] & 2 else ''), 'lam')
A.vmem('buffer_load_dword %s, v10, %s, 0 offen sc1' % (vr(vEP), sr(dWS, 4)), 'lam')
S('s_mov_b64 %s, %s', sr(dW1, 2), sr(pW1, 2))
for i in range(2):
    A.vmem('buffer_load_dwordx4 %s, %s, %s, %s offen offset:%d' % (vr(SR + 4 * i, 4), vr(vSA), sr(dX, 4), sr(sM8), 512 * i) + (' nt' if OPT['NTS'] & 1 else ''), 'srow')
def spf(lo, hi):
    l = [(dW2 if lo else pW2, sU0, 128 * i) for i in range(11)] + [(p, sBM, 128 * i) for i in range(4) for p in (pCRE, pCIM)]
    for (p, so, off) in l[lo:hi]:
        if OPT['SPF'] == 1:
            e('s_load_dword s0, %s, %s offset:%d' % (sr(p, 2), sr(so), off))
        else:
            e('s_load_dwordx2 s[0:1], %s, %s offset:%d' % (sr(p, 2), sr(so), off + 60))
if OPT['PB']:
    e('s_barrier')
    DQ.add(d0[3:])
    DQ.popD(2)
    AUTO.update(on=True, any=True, int=OPT['PINT'], nxt=AUTO['t'])
else:
    for (c, f) in d0[3:]:
        f()
    stamp('d0')
if OPT['SPF']:
    S('s_mul_i32 %s, %s, 1376', sU0, sGW)
    S('s_lshl_b32 %s, %s, 9', sBM, sGW)
    S('s_and_b32 %s, %s, -128', sU0, sU0)
    spf(0, 13 if OPT['SPF'] == 1 else 6)

S('s_mov_b32 %s, %s', sTH, sT2)
S('s_mov_b32 %s, %s', sPH, sT3)
S('s_mov_b32 %s, %s', sJT, sOFF)
srd(dO, pB1, 2752)
srd(dW2, pW2, 1376 * 1024)
S('s_mov_b64 %s, %s', sr(sPC, 2), sr(pDSK, 2))
e('v_lshrrev_b32 v1, 1, %s' % vr(vLO4))
e('v_xor_b32 v1, v1, %s' % vr(vG))
e('v_lshlrev_b32 v1, 4, v1')
e('v_lshl_add_u32 v1, %s, 7, v1' % vr(vLO4))
S('s_lshl_b32 %s, %s, 6', sT0, sTH)
e('v_xor_b32 v1, %s, v1' % sr(sT0))
e('v_xor_b32 v2, 64, v1')
S('s_mul_i32 %s, %s, %s', sT0, sTH, str(2 * PIECE))
S('s_mul_i32 %s, %s, %s', sT1, sPH, str(2 * PIECE))
S('s_add_u32 %s, %s, 4096', sT1, sT1)
for k in range(2):
    e('v_add_u32 %s, %s, v%d' % (vr(XA + 2 * k), sr(sT0), 1 + k))
    e('v_add_u32 %s, %s, v%d' % (vr(BA + 2 * k), sr(sT1), 1 + k))
    e('v_add_u32 %s, %d, %s' % (vr(XA + 2 * k + 1), 2 * SLOT, vr(XA + 2 * k)))
    e('v_add_u32 %s, %d, %s' % (vr(BA + 2 * k + 1), 2 * SLOT, vr(BA + 2 * k)))
e('v_bfe_u32 v1, %s, 2, 2' % vr(vLANE))
e('v_bfe_u32 v2, %s, 4, 1' % vr(vLANE))
e('v_lshl_add_u32 v3, v2, 3, v1')
e('v_mul_u32_u24 v3, 192, v3')
e('v_xor_b32 v4, %s, v2' % sr(sPH))
e('v_lshl_add_u32 v3, v4, 5, v3')
e('v_and_b32 v4, 3, %s' % vr(vLANE))
e('v_lshl_add_u32 v3, v4, 3, v3')
S('s_movk_i32 %s, %s', sT1, str(PIECE))
e('v_mad_u32_u24 v3, %s, %s, v3' % (vr(vHI5), sr(sT1)))
S('s_add_u32 %s, %s, 6144', sT1, sT0)
S('s_sub_u32 %s, %s, %s', sT0, str(2 * PIECE + 6144), sT0)
e('v_add_u32 %s, %s, v3' % (vr(WA), sr(sT1)))
e('v_add_u32 %s, %s, v3' % (vr(WA + 2), sr(sT0)))
e('v_add_u32 %s, %d, %s' % (vr(WA + 1), 2 * SLOT, vr(WA)))
e('v_add_u32 %s, %d, %s' % (vr(WA + 3), 2 * SLOT, vr(WA + 2)))
e('v_and_b32 v5, 7, %s' % vr(vLANE))
e('v_lshlrev_b32 v6, 2, v2')
e('v_xor_b32 v5, v5, v6')
e('v_lshlrev_b32 v5, 4, v5')
e('v_lshrrev_b32 v6, 3, %s' % vr(vLANE))
e('v_lshl_add_u32 %s, v6, 10, v5' % vr(vW2))
e('v_add_u32 %s, %d, %s' % (vr(vW2 + 1), 7 * 1024, vr(vW2)))
e('v_lshl_add_u32 v5, %s, 3, v1' % vr(vHI5))
e('v_lshlrev_b32 v5, 7, v5')
e('v_lshrrev_b32 v6, 1, v1')
e('v_lshl_add_u32 v5, v6, 6, v5')
e('v_lshl_add_u32 v5, v2, 5, v5')
e('v_lshl_add_u32 %s, v4, 3, v5' % vr(vTRL))
e('v_mov_b32 %s, 0x3f803f80' % vr(ONE))
for q in range(5):
    e('v_cmp_eq_u32 vcc, %d, %s' % (q, vr(vLO4)))
    for i in range(4):
        e('v_cndmask_b32 %s, 0, %s, vcc' % (vr(CS + 4 * q + i), vr(ONE)))
S('s_lshl_b32 %s, %s, 13', sM8, sW)
S('s_mul_i32 %s, %s, %s', sME, sTH, str(SLOT))
S('s_lshl_b32 %s, %s, 11', sT0, sPH)
S('s_add_u32 %s, %s, %s', sME, sME, sT0)
S('s_add_u32 %s, %s, 32768', sME, sME)
S('s_lshl2_add_u32 %s, %s, %s', sT2, sKH, sW)
S('s_lshl_b32 %s, %s, 9', sCO, sC)
S('s_add_u32 %s, %s, %s', sCO, sCO, sT2)
S('s_lshl_b32 %s, %s, 7', sCO, sCO)
S('s_lshr_b32 %s, %s, 1', sT0, sT2)
S('s_mul_i32 %s, %s, 22', sT0, sT0)
S('s_add_u32 %s, %s, %s', sT0, sT0, sPH)
S('s_lshl_b32 %s, %s, 7', sWS, sT0)
S('s_add_u32 %s, %s, %s', sWS, sWS, sC)
S('s_lshl_b32 %s, %s, 7', sWS, sWS)
S('s_lshl_b32 %s, %s, 11', sT0, sT0)
S('s_lshl_b32 %s, %s, 14', sSSM, sT2)
S('s_sub_u32 %s, %s, %s', sSSM, sSSM, sT0)
S('s_add_u32 %s, %s, %s', sSSM, sSSM, str(88 * 2048))
S('s_add_u32 %s, %s, %s', sT0, sT0, hex(WS_H))
S('s_lshl1_add_u32 %s, %s, %s', sT1, sRB, sKH)
S('s_mul_i32 %s, %s, %s', sH2, sT1, str(HR))
S('s_add_u32 %s, %s, %s', sH2, sH2, sT0)
S('s_xor_b32 %s, %s, 1', sT3, sT1)
S('s_mul_i32 %s, %s, %s', sH1, sT3, str(HR))
S('s_add_u32 %s, %s, %s', sH1, sH1, sT0)
S('s_lshl1_add_u32 %s, %s, %s', sPA, sT1, sTH)
S('s_lshl4_add_u32 %s, %s, %s', sPA, sPA, sPH)
S('s_lshl_b32 %s, %s, 7', sPA, sPA)
S('s_add_u32 %s, %s, %s', sPA, sPA, hex(WS_FA))
S('s_lshl2_add_u32 %s, %s, %s', sPB, sT1, sW)
S('s_lshl_b32 %s, %s, 8', sGR, sPB)
S('s_add_u32 %s, %s, %s', sGR, sGR, hex(WS_G + 8))
S('s_lshl_b32 %s, %s, 10', sPB, sPB)
S('s_add_u32 %s, %s, %s', sPB, sPB, hex(WS_FB))
S('s_lshl1_add_u32 %s, %s, %s', sT0, sJ, sPH)
S('s_lshl_b32 %s, %s, 12', sT0, sT0)
S('s_add_u32 %s, %s, %s', sSG, sT0, hex(WS_SG))
S('s_lshl_b32 %s, %s, 8', sSGO, sRB)
S('s_add_u32 %s, %s, %s', sSGO, sSGO, sSG)
S('s_lshl1_add_u32 %s, %s, %s', sT1, sRB, sTH)
S('s_mul_i32 %s, %s, %s', sT1, sT1, str(HR))
S('s_add_u32 %s, %s, %s', sHS, sT0, sT1)
S('s_add_u32 %s, %s, %s', sHS, sHS, hex(WS_H + 88 * 2048))
S('s_add_u32 %s, %s, %s', sHM, sJT, sPH)
S('s_lshl_b32 %s, %s, 11', sHM, sHM)
S('s_add_u32 %s, %s, %s', sHM, sHM, sT1)
S('s_add_u32 %s, %s, %s', sHM, sHM, hex(WS_H))
S('s_lshl4_add_u32 %s, %s, %s', sFL, sRB, sJ)
S('s_lshl2_add_u32 %s, %s, %s', sFL, sFL, sW)
S('s_lshl_b32 %s, %s, 5', sF0, sFL)
S('s_add_u32 %s, %s, %s', sF0, sF0, hex(WS_G))
S('s_lshl_b32 %s, %s, 7', sFL, sFL)
S('s_lshl_b32 %s, %s, 12', sPX, sGW)
S('s_add_u32 %s, %s, %s', sPX, sPX, hex(WS_PX))
def prep_ops():
    o = Ops()
    o.s('s_lshl_b32 %s, %s, 6', sT0, sPH)
    o.s('s_add_u32 %s, %s, %s', sT0, sT0, str(TAB))
    o.s('s_movk_i32 %s, %s', sT1, str(TROW))
    o.v('v_lshl_add_u32 %s, %s, 4, %s' % (vr(vTB), vr(vG), sr(sT0)))
    o.v('v_lshl_add_u32 %s, %s, 2, %s' % (vr(vTC), vr(vLO4), sr(sT0)))
    o.v('v_mad_u32_u24 %s, %s, %s, %s' % (vr(vTI), vr(vLO4), sr(sT1), vr(vTB)))
    o.v('v_min_u32 %s, 1, %s' % (vr(U0), vr(vG)))
    o.v('v_lshl_add_u32 %s, %s, 4, %s' % (vr(U0), vr(U0), vr(vG)))
    o.v('v_mad_u32_u24 %s, %s, %s, %s' % (vr(vTG), vr(U0), sr(sT1), vr(vTC)))
    o.s('s_mul_i32 %s, %s, 320', sT0, sW)
    o.s('s_add_u32 %s, %s, %s', sT0, sT0, str(CSX))
    o.v('v_lshl_add_u32 %s, %s, 4, %s' % (vr(vCO), vr(vG), sr(sT0)))
    o.v('v_lshl_add_u32 %s, %s, 6, %s' % (vr(vCW), vr(vLO4), vr(vCO)))
    o.s('s_xor_b32 %s, %s, 2', sT0, sW)
    o.s('s_mul_i32 %s, %s, 320', sT0, sT0)
    o.s('s_add_u32 %s, %s, %s', sT0, sT0, str(CSX))
    o.v('v_lshl_add_u32 %s, %s, 4, %s' % (vr(vCR), vr(vG), sr(sT0)))
    o.v('v_lshl_add_u32 %s, %s, 2, %s' % (vr(vSXW), vr(vLO4), sr(sT0)))
    o.s('s_mul_i32 %s, %s, 320', sT0, sPH)
    o.s('s_add_u32 %s, %s, %s', sT0, sT0, str(CSX))
    o.v('v_lshl_add_u32 %s, %s, 2, %s' % (vr(vSXR), vr(vLO4), sr(sT0)))
    o.s('s_sub_u32 %s, %s, 1', sT0, sRB)
    o.v('v_sub_u32 %s, %s, %s' % (vr(U0), sr(sT0), vr(vG)))
    o.v('v_lshlrev_b32 %s, 4, %s' % (vr(U1), vr(vLO4)))
    for i in range(4):
        o.v('v_subrev_u32 %s, %d, %s' % (vr(vPA + i), 4 * i, vr(U0)))
        o.v('v_cmp_le_i32 %s, 0, %s' % (sr(sMSK[i], 2), vr(vPA + i)))
        o.v('v_max_i32 %s, 0, %s' % (vr(vPA + i), vr(vPA + i)))
        o.v('v_lshl_add_u32 %s, %s, 8, %s' % (vr(vPA + i), vr(vPA + i), vr(U1)))
    o.v('v_and_b32 %s, 7, %s' % (vr(vPF), vr(vLANE)))
    o.v('v_lshlrev_b32 %s, 8, %s' % (vr(vPF), vr(vPF)))
    o.s('s_and_b32 %s, %s, 3', sT0, sJ)
    o.s('s_cmp_eq_u32 %s, 3', sT0)
    o.s('s_cselect_b32 %s, 0, 0xffff', sF1)
    o.v('v_lshlrev_b32 %s, 2, %s' % (vr(vTM), vr(vLO5)))
    o.v('v_mul_u32_u24 %s, 96, %s' % (vr(U0), vr(vG)))
    o.v('v_add_lshl_u32 %s, %s, %s, 10' % (vr(vWT), vr(U0), vr(vLO4)))
    o.v('v_lshlrev_b32 %s, 10, %s' % (vr(vCT), vr(vLANE)))
    o.v('v_and_b32 %s, 3, %s' % (vr(U1), vr(vLANE)))
    o.v('v_lshrrev_b32 %s, 2, %s' % (vr(U0), vr(vLANE)))
    o.v('v_mad_u32_u24 %s, %s, 3, %s' % (vr(U0), vr(U1), vr(U0)))
    o.s('s_lshl2_add_u32 %s, %s, s3', sT0, sRBL)
    o.s('s_lshl_b32 %s, %s, 10', sT1, sT0)
    o.v('v_lshl_add_u32 %s, %s, 15, %s' % (vr(vPW), vr(U0), sr(sT1)))
    o.s('s_lshl_b32 %s, %s, 2', sT0, sT0)
    o.s('s_lshl_b64 %s, 15, %s', sr(sPM, 2), sT0)
    o.s('s_lshl1_add_u32 %s, %s, %s', sT0, sRB, sKH)
    o.s('s_lshl_b32 %s, %s, 6', sT0, sT0)
    o.s('s_add_u32 %s, %s, %s', sT0, sT0, sW)
    o.v('v_and_b32 %s, 1, %s' % (vr(vGO), vr(vG)))
    o.v('v_lshl_add_u32 %s, %s, 2, %s' % (vr(vGO), vr(vGO), vr(vHI5)))
    o.v('v_lshl_add_u32 %s, %s, 2, %s' % (vr(U0), vr(vGO), sr(sT0)))
    o.s('s_lshl_b32 %s, %s, 7', sT1, sC)
    o.v('v_lshl_add_u32 %s, %s, 3, %s' % (vr(U1), vr(vLO4), sr(sT1)))
    o.v('v_lshl_add_u32 %s, %s, 10, %s' % (vr(vXO), vr(U0), vr(U1)))
    o.v('v_lshlrev_b32 %s, 4, %s' % (vr(vGO), vr(vGO)))
    o.v('v_lshlrev_b32 %s, 3, %s' % (vr(U0), vr(vG)))
    return o

for (c, f) in prep_ops():
    f()
stamp('prep')
if OPT['PB']:
    print('DQ left after prep', len(DQ.q))
    DQ.flush()
    AUTO.update(on=False, any=False, int=OPT['EINT'])
    stamp('d0')
touch_pages(1)
A.wait_vm('lam')
stamp('lam')
if OPT['SPF']:
    spf(13 if OPT['SPF'] == 1 else 6, 19 if OPT['SPF'] == 1 else 12)
LOG2E = math.log2(math.e)
e('v_readfirstlane_b32 %s, %s' % (sr(sTAG), vr(vEP)))
for r in (lre, lim, ldt):
    e('v_lshlrev_b32 %s, 16, %s' % (vr(r), vr(r)))
e('v_mul_f32 %s, %s, %s' % (vr(ldt), f2u(LOG2E), vr(ldt)))
e('v_exp_f32 %s, %s' % (vr(ldt), vr(ldt)))
S('s_add_u32 %s, %s, 1', sTAG, sTAG)
e('v_add_u32 %s, 1, %s' % (vr(vTAG), vr(vEP)))
S('s_lshl_b32 %s, %s, 1', sT0, sW)
e('v_add_u32 v1, %s, %s' % (sr(sT0), vr(vHI5)))
e('v_cvt_pk_bf16_f32 %s, %s, %s' % (vr(ldt), vr(ldt), vr(ldt)))
e('v_cvt_f32_u32 v2, v1')
e('v_lshlrev_b32 %s, 16, %s' % (vr(ldt), vr(ldt)))
e('v_cmp_lt_u32 vcc, 4, v1')
e('v_mul_u32_u24 v3, %d, v1' % TROW)
e('v_mul_f32 v5, %s, %s' % (vr(ldt), vr(lre)))
e('v_mul_f32 v6, %s, %s' % (vr(ldt), vr(lim)))
e('v_lshl_add_u32 v3, %s, 2, v3' % vr(vLO5))
e('v_mul_f32 v5, %s, v5' % f2u(LOG2E))
e('v_mul_f32 v6, 0.15915494, v6')
e('v_add_u32 v3, %d, v3' % TAB)
e('v_mul_f32 v20, 4.0, v2')
e('v_add_f32 v21, %s, v20' % f2u(32.0))
e('v_mul_f32 v22, %s, v2' % f2u(128.0))
e('v_max_f32 v22, %s, v22' % f2u(64.0))
e('v_add_f32 v23, -4.0, v2')
e('v_cndmask_b32 v22, v22, v23, vcc')
for r in range(3):
    e('v_mul_f32 v%d, v%d, v5' % (24 + r, 20 + r))
    e('v_mul_f32 v%d, v%d, v6' % (28 + r, 20 + r))
for r in range(3):
    e('v_exp_f32 v%d, v%d' % (24 + r, 24 + r))
    e('v_rndne_f32 v%d, v%d' % (20 + r, 28 + r))
for r in range(3):
    e('v_sub_f32 v%d, v%d, v%d' % (28 + r, 28 + r, 20 + r))
for r in range(3):
    e('v_cos_f32 v%d, v%d' % (20 + r, 28 + r))
    e('v_sin_f32 v%d, v%d' % (28 + r, 28 + r))
for r in range(3):
    e('v_mul_f32 v%d, v%d, v%d' % (20 + r, 20 + r, 24 + r))
    e('v_mul_f32 v%d, v%d, v%d' % (28 + r, 28 + r, 24 + r))
for r in range(3):
    A.ds('ds_write_b32 v3, v%d offset:%d' % (20 + r, 8 * r * TROW), 'tab')
    A.ds('ds_write_b32 v3, v%d offset:%d' % (28 + r, 8 * r * TROW + 128), 'tab')
lab = newlab('ncf')
S('s_cmp_lg_u32 %s, 2', sW)
e('s_cbranch_scc1 %s' % lab)
e('v_mul_f32 v24, %s, %s' % (vr(lre), vr(lre)))
e('v_fma_f32 v24, %s, %s, v24' % (vr(lim), vr(lim)))
e('v_rcp_f32 v24, v24')
e('v_add_f32 v25, -1.0, v22')
e('v_mul_f32 v26, v25, %s' % vr(lre))
e('v_mul_f32 v27, v30, %s' % vr(lre))
e('v_add_f32 v24, v24, v24')
e('v_fma_f32 v26, v30, %s, v26' % vr(lim))
e('v_fma_f32 v27, -v25, %s, v27' % vr(lim))
e('v_mul_f32 v26, v26, v24')
e('v_mul_f32 v27, v27, v24')
e('s_mov_b32 exec_lo, 0')
e('ds_write_b32 v3, v26 offset:%d' % (19 * TROW))
e('ds_write_b32 v3, v27 offset:%d' % (19 * TROW + 128))
e('s_mov_b32 exec_lo, -1')
A.label(lab)
stamp('tab')
R_L64, R_L512, R_L1, R_L2, R_L3, R_CF = 16, 20, 21, 22, 23, 24

def stat_compute_ops():
    o = Ops()
    t = SR + 8
    o.f(lambda: A.wait_vm('srow'))
    o.v('v_dot2_f32_bf16 v%d, v%d, v%d, 0' % (t, SR, ONE), 2)
    o.v('v_dot2_f32_bf16 v%d, v%d, v%d, 0' % (t + 1, SR, SR), 2)
    for i in range(1, 8):
        o.v('v_dot2_f32_bf16 v%d, v%d, v%d, v%d' % (t, SR + i, ONE, t), 2)
        o.v('v_dot2_f32_bf16 v%d, v%d, v%d, v%d' % (t + 1, SR + i, SR + i, t + 1), 2)
    for sh in (1, 2, 4, 8):
        for r in (t, t + 1):
            o.v('v_add_f32_dpp v%d, v%d, v%d row_shr:%d row_mask:0xf bank_mask:0xf bound_ctrl:0' % (r, r, r, sh))
    for r in (t, t + 1):
        o.v('v_add_f32_dpp v%d, v%d, v%d row_bcast:15 row_mask:0xa bank_mask:0xf' % (r, r, r))
    mean, var, sb, rs, m2, v2_, mb = t, t + 1, t + 2, t + 3, t + 8, t + 9, t + 10
    g0 = t + 4
    def rnd(d, s):
        o.v('v_cvt_pk_bf16_f32 v%d, v%d, v%d' % (d, s, s))
        o.v('v_lshlrev_b32 v%d, 16, v%d' % (d, d))
    o.v('v_mul_f32 v%d, %s, v%d' % (mean, f2u(1.0 / 512), mean))
    o.v('v_mul_f32 v%d, %s, v%d' % (var, f2u(1.0 / 512), var))
    o.v('v_fma_f32 v%d, -v%d, v%d, v%d' % (var, mean, mean, var))
    o.v('v_max_f32 v%d, 0, v%d' % (var, var))
    rnd(mb, mean)
    rnd(sb, var)
    o.v('v_add_f32 v%d, %s, v%d' % (sb, f2u(1e-5), sb))
    rnd(sb, sb)
    o.v('v_sqrt_f32 v%d, v%d' % (sb, sb), 2)
    o.v('v_sub_f32 v%d, v%d, v%d' % (m2, mean, mb))
    rnd(sb, sb)
    o.v('v_rcp_f32 v%d, v%d' % (rs, sb), 2)
    o.v('v_cvt_pk_bf16_f32 v%d, v%d, v%d' % (g0 + 2, mb, sb))
    o.v('v_mul_f32 v%d, v%d, v%d' % (m2, m2, rs))
    o.v('v_mul_f32 v%d, v%d, v%d' % (v2_, var, rs))
    rnd(m2, m2)
    o.v('v_mul_f32 v%d, v%d, v%d' % (v2_, v2_, rs))
    o.v('v_fma_f32 v%d, v%d, v%d, v%d' % (g0, m2, sb, mb))
    rnd(v2_, v2_)
    o.v('v_add_f32 v%d, %s, v%d' % (v2_, f2u(1e-5), v2_))
    rnd(v2_, v2_)
    o.v('v_sqrt_f32 v%d, v%d' % (v2_, v2_), 2)
    o.v('v_mov_b32 v%d, %s' % (g0 + 3, sr(sTAG)))
    rnd(v2_, v2_)
    o.v('v_mul_f32 v%d, v%d, v%d' % (g0 + 1, v2_, sb))
    o.s('s_lshl_b32 %s, %s, 5', sT0, sW)
    o.s('s_add_u32 %s, %s, %s', sT0, sT0, str(CSX))
    o.v('v_lshl_add_u32 v%d, %s, 4, %s' % (t, vr(vHI5), sr(sT0)))
    o.v('v_add_u32 v%d, %d, %s' % (SR, CSX, vr(vL16)))
    o.v('s_mov_b32 exec_lo, 0x80000000')
    o.v('s_mov_b32 exec_hi, 0x80000000')
    o.f(lambda: A.ds('ds_write_b128 v%d, %s offset:%d' % (t, vr(g0, 4), 0), 'gw'))
    o.v('s_mov_b64 exec, -1')
    o.f(lambda: stamp('gs'))
    o.s('s_lshl1_add_u32 %s, %s, %s', sD0, sRB, sTH)
    o.s('s_lshl_b32 %s, %s, 10', sD0, sD0)
    o.s('s_add_u32 %s, %s, %s', sD0, sD0, hex(WS_G))
    o.v('v_lshlrev_b32 %s, 4, %s' % (vr(vSA), vr(vLO4)))
    return o
def b1_loads():
    o = Ops()
    o.s('s_add_u32 %s, %s, %s', sSX, sJT, sPH)
    o.s('s_lshl_b32 %s, %s, 5', sSX, sSX)
    for v in range(3):
        o.f(lambda v=v: A.vmem('buffer_load_dwordx2 %s, %s, %s, %s offen offset:%d' % (vr(B1 + 2 * v, 2), vr(U0), sr(dO, 4), sr(sSX), 64 * v), 'b1'), 2)
    o.f(lambda: A.vmem('global_load_dwordx2 a[248:249], %s, %s' % (vr(U1), sr(sPC, 2)), 'b1'), 2)
    o.f(lambda: A.vmem('global_load_dwordx2 a[250:251], %s, %s' % (vr(U1), sr(pB2, 2)), 'b1'), 2)
    o.s('s_mov_b32 %s, 0x80000', dO + 2)
    o.f(lambda: FQ.open.add('b1'), 0)
    return o

if OPT['B1P'] == 0:
    for (c, f) in b1_loads():
        f()
DQ.add(stage_dma(1))
DQ.popD(OPT['D1A'])
if OPT['SPF'] == 2:
    spf(12, 19)
for (c, f) in stat_compute_ops():
    f()
DQ.popD(OPT['D1B'] - OPT['D1A'])
A.wait_lg0()
stamp('d1')
def b1_ops():
    o = Ops()
    o.f(lambda: A.wait_vm('b1'), 0)
    for v in range(3):
        for hh in range(2):
            o.v('v_lshlrev_b32 %s, 16, %s' % (vr(BU + 4 * v + 2 * hh), vr(B1 + 2 * v + hh)))
            o.v('v_and_b32 %s, 0xffff0000, %s' % (vr(BU + 4 * v + 2 * hh + 1), vr(B1 + 2 * v + hh)))
    return o
def stat_loads():
    return [('D' if OPT['STD'] else 2, lambda T=T: A.vmem('buffer_load_dwordx4 %s, %s, %s, %s offen offset:%d sc1' % (vr(ST + 4 * T, 4), vr(vSA), sr(dWS, 4), sr(sD0), 256 * T), 'stat')) for T in range(4)]
def stat_issue():
    for (c, f) in stat_loads():
        f()
def stat_check(e=e):
    t = TMP
    for T in range(4):
        e('v_xor_b32 v%d, %s, %s' % (t + T, sr(sTAG), vr(ST + 4 * T + 3)))
    e('v_or3_b32 v%d, v%d, v%d, v%d' % (t, t, t + 1, t + 2))
    e('v_or_b32 v%d, v%d, v%d' % (t, t, t + 3))
    e('v_cmp_ne_u32 vcc, 0, v%d' % t)
C0 = -2.0 * math.sqrt(2.0 / math.pi) * math.log2(math.e)
def stat_derive_ops():
    o = Ops()
    o.f(lambda: A.wait_vm('stat'))
    stat_check(o.v)
    o.f(lambda: retry_loop('st', stat_issue, stat_check, 58, False), 2)
    for T in range(4):
        b = ST + 4 * T
        o.v('v_rcp_f32 v%d, v%d' % (TMP + T, b + 1), 2)
        o.v('v_lshlrev_b32 v%d, 16, v%d' % (SS + 2 * T, b + 2))
        o.v('v_and_b32 v%d, 0xffff0000, v%d' % (SS + 2 * T + 1, b + 2))
    for T in range(4):
        b = ST + 4 * T
        o.v('v_rcp_f32 v%d, v%d' % (SS + 2 * T + 1, SS + 2 * T + 1), 2)
        o.v('v_mul_f32 v%d, %s, v%d' % (b + 2, f2u(C0), TMP + T))
        o.v('v_mul_f32 v%d, v%d, v%d' % (b + 3, TMP + T, TMP + T))
    for T in range(4):
        b = ST + 4 * T
        o.v('v_mul_f32 v%d, v%d, v%d' % (b + 3, b + 3, b + 2))
        o.v('v_mul_f32 v%d, %s, v%d' % (b + 3, f2u(0.044715), b + 3))
    return o

TOFF = [6 * (st & 3) + 2 * (st >> 2) for st in range(11)]
KS = [0]
def w_prefetch():
    o = Ops()
    def f():
        e('s_mov_b64 exec, 0x7ff')
        A.vmem('buffer_load_dword %s, %s, %s, %s offen' % (vr(vSCR), vr(vPW), sr(dW2, 4), sr(sWS)) + (' nt' if OPT['WNT'] else ''), 'touch')
        e('s_mov_b64 exec, -1')
    o.f(f, 4)
    for p in (pCRE, pCIM):
        o.s('s_mov_b64 %s, %s', sr(dO, 2), sr(p, 2))
        def f():
            e('s_mov_b64 exec, %s' % sr(sPM, 2))
            A.vmem('buffer_load_dword %s, %s, %s, %s offen' % (vr(vSCR), vr(vCT), sr(dO, 4), sr(sCO)) + (' nt' if OPT['WNT'] else ''), 'touch')
            e('s_mov_b64 exec, -1')
        o.f(f, 4)
    return o
def w_prefetch_cls(k):
    def f():
        lab = newlab('pf')
        if OPT['WCL'] == 4:
            S('s_cmp_lg_u32 %s, %s', sRBL, str(k))
        else:
            S('s_bitcmp%d_b32 %%s, 0' % (1 - k), sRBL)
        e('s_cbranch_scc1 %s' % lab)
        e('s_mov_b64 exec, 0x7ff')
        A.vmem('buffer_load_dword %s, %s, %s, %s offen' % (vr(vSCR), vr(vPW), sr(dW2, 4), sr(sWS)), 'touch', opt=True)
        e('s_mov_b64 exec, %s' % sr(sPM, 2))
        for p in (pCRE, pCIM):
            S('s_mov_b64 %s, %s', sr(dO, 2), sr(p, 2))
            A.vmem('buffer_load_dword %s, %s, %s, %s offen' % (vr(vSCR), vr(vCT), sr(dO, 4), sr(sCO)), 'touch', opt=True)
        e('s_mov_b64 exec, -1')
        A.label(lab)
    return [(4, f)]
def w_touch(p):
    o = Ops()
    if p >= 2:
        o.s('s_mov_b64 %s, %s', sr(dO, 2), sr(pCIM if p == 3 else pCRE, 2))
    o.f(lambda: (S('s_cmp_eq_u32 %s, %s', sRBL, str(p)), S('s_cselect_b32 %s, 0, 0x40000000', sSW)), 2)
    if p < 2:
        o.s('s_add_u32 %s, %s, %s', sSW, sSW, sWS)
        o.s('s_add_u32 %s, %s, %s', sSX, sSW, str(p * 32768))
        o.f(lambda: A.vmem('buffer_load_dword %s, %s, %s, %s offen' % (vr(vSCR), vr(vWT), sr(dW2, 4), sr(sSX)), 'touch'), 'D')
    else:
        o.s('s_add_u32 %s, %s, %s', sSX, sSW, sCO)
        o.f(lambda: A.vmem('buffer_load_dword %s, %s, %s, %s offen' % (vr(vSCR), vr(vCT), sr(dO, 4), sr(sSX)), 'touch'), 'D')
        if p == 2:
            o.s('s_add_u32 %s, %s, %s', sSW, sSW, sWS)
    if p < 3:
        o.s('s_add_u32 %s, %s, %s', sSX, sSW, str(TOFF[8 + p] * 16384))
        def f():
            e('s_mov_b64 exec, 0xffff')
            A.vmem('buffer_load_dword %s, %s, %s, %s offen' % (vr(vSCR), vr(vWT), sr(dW2, 4), sr(sSX)), 'touch')
            e('s_mov_b64 exec, -1')
        o.f(f, 4)
    return o
def w2_step(st):
    o = Ops()
    odd = 0
    if st == 0:
        o.s('s_lshl_b32 %s, %s, 11', sSX, sW)
        o.s('s_add_u32 m0, %s, %s', sSX, str(PE))
    elif st <= 8:
        odd = (st - 1) & 1
        if not odd:
            o.s('s_add_u32 m0, %s, %s', sM8, str(((st - 1) // 4) * SLOT + ((st - 1) % 4) * 2048))
    else:
        o.s('s_add_u32 m0, %s, %s', sME, str((st - 9) * 2 * SLOT))
    o.s('s_add_u32 %s, %s, %s', sSW, sWS, str(TOFF[st] * 16384 - odd * 2048))
    for i in range(2):
        o.f(lambda i=i: A.vmem('buffer_load_dwordx4 %s, %s, %s offen offset:%d lds' % (vr(vW2 + i), sr(dW2, 4), sr(sSW), odd * 2048 + i * 1024), 'W'), 'D')
    return o
def c_job(part):
    o = Ops()
    o.s('s_mov_b64 %s, %s', sr(dB, 2), sr(pCIM if part else pCRE, 2))
    if part == 0:
        o.v('v_subrev_u32 %s, %s, %s' % (vr(vB), sr(sCG), vr(vB)))
        o.v('v_subrev_u32 %s, %s, %s' % (vr(vB + 1), sr(sCG), vr(vB + 1)))
    for k in range(4):
        odd = k & 1
        if not odd:
            o.s('s_add_u32 m0, %s, %s', sM8, str((2 + part) * SLOT + k * 2048))
        o.s('s_add_u32 %s, %s, %s', sSX, sCO, str(k * 16384 - odd * 2048))
        for i in range(2):
            o.f(lambda i=i, odd=odd: A.vmem('buffer_load_dwordx4 %s, %s, %s offen offset:%d lds' % (vr(vB + i), sr(dB, 4), sr(sSX), odd * 2048 + i * 1024), 'W'), 'D')
    return o
QR = [0, 2, 8, 10]
def resx_loads():
    o = Ops()
    for q in range(4):
        o.s('s_mov_b32 %s, %s', sSX, str(QR[q] * 4096))
        o.f(lambda q=q: A.vmem('buffer_load_dwordx2 %s, %s, %s, %s offen' % (ar(240 + 2 * q, 2), vr(vXO), sr(dX, 4), sr(sSX)), 'res'), 'D' if q & 1 else 2)
    return o
def resg_loads():
    return [(2, lambda q=q: A.vmem('buffer_load_dword %s, %s, %s, %s offen offset:%d sc1' % (ar(252 + q), vr(vGO), sr(dWS, 4), sr(sGR), QR[q] * 16), 'res')) for q in range(4)]

for v in range(1, 8):
    if v > 1:
        sd = stage_dma(v)
        if v == OPT['WPF'] and OPT['WPK']:
            sd, rest = sd[:-5], sd[-5:]
        DQ.add(sd, None if v < 4 else 'mid%d' % (v - 4))
    if v == OPT['B1P']:
        DQ.add(b1_loads())
    if OPT['WCL'] == 4 and 0 <= v - OPT['WPF'] < 4:
        DQ.add(w_prefetch_cls(v - OPT['WPF']))
    if OPT['WCL'] in (2, 3) and v - OPT['WPF'] in (0, OPT['WCL']):
        DQ.add(w_prefetch_cls(int(v > OPT['WPF'])))
    if v == OPT['WPF'] and not OPT['WCL']:
        DQ.add([(0, lambda: print('prefetch at step', KS[0]))])
        DQ.add(w_prefetch())
        if OPT['WPK']:
            DQ.add(rest)
    if v == OPT['STL']:
        DQ.add(stat_loads())
        DQ.add([(0, lambda: FQ.open.add('stl'))])
    if 0 <= v - OPT['WT0'] < 4:
        DQ.add(w_touch(v - OPT['WT0']))
assert OPT['WPF'] < OPT['WT0'] and (OPT['B1P'] <= OPT['WPF'] or OPT['WPF'] == 0)
o = Ops()
o.s('s_mov_b64 %s, %s', sr(dO, 2), sr(pOUT, 2))
o.s('s_mov_b32 %s, 0x400000', dO + 2)
DQ.add(o)
DQ.add([(0, lambda: (print('st7 issued at step', KS[0]), OPT.update(DINT=OPT['WINT'])))])
DQ.add(w2_step(0), 'k%d' % OPT['WG0'])
for st in range(1, 10):
    DQ.add(w2_step(st), 'mid4' if st < 5 else 'mid5')
DQ.add(c_job(0), 'mid%d' % OPT['CJ0'])
DQ.add(resx_loads())
DQ.add(w2_step(10), 'mid7')
DQ.add(c_job(1), 'mid7')
FQ.add([(0, lambda: None)], 'b1')
FQ.add(b1_ops(), 'mid%d' % OPT['B1G'])
FQ.add([(0, lambda: None)], 'stl')
FQ.add(stat_derive_ops(), 'mid%d' % OPT['SDG'])

RQ = Q()
def rd_x(step, T):
    v, ks = step // 2, step % 2
    slot = v & 3
    return [(1, lambda: A.ds('ds_read_b128 %s, %s offset:%d' % (vr(XF + 16 * ks + 4 * T, 4), vr(XA + 2 * ks + (slot >> 1)), (slot & 1) * SLOT + (T & 1) * PIECE + (T >> 1) * 2048), 'x%d' % step))]
def rd_a(step, a):
    v, ks = step // 2, step % 2
    slot = v & 3
    if a < 2:
        return [(1, lambda: A.ds('ds_read_b128 %s, %s offset:%d' % (vr(AF + 4 * a, 4), vr(BA + 2 * ks + (slot >> 1)), (slot & 1) * SLOT + a * PIECE), 'a%d_%d' % (step, a)))]
    return [(1, lambda half=half: A.ds('ds_read_b64_tr_b16 %s, %s offset:%d' % (vr(AF + 4 * a + 2 * half, 2), vr(WA + 2 * ks + (slot >> 1)), (slot & 1) * SLOT + half * 768 + 64 * (a - 2)), 'a%d_%d' % (step, a))) for half in range(2)]

touch_pages(0)
page('st0')
A.wait_vm('st0')
stamp('st0')
e('s_barrier')
RQ.add(rd_a(0, 0))
for T in range(4):
    RQ.add(rd_x(0, T))
for a in range(1, 5):
    RQ.add(rd_a(0, a))
RQ.flush()
A.ds('ds_read_b128 %s, %s' % (vr(SR + 4, 4), vr(SR)), 'gr')
def g_store():
    A.wait_lg('gr')
    lab = newlab('gs')
    S('s_cmp_lg_u32 %s, 0', sW)
    e('s_cbranch_scc1 %s' % lab)
    e('s_mov_b64 exec, 0xff')
    A.vmem('buffer_store_dwordx4 %s, %s, %s, %s offen sc1' % (vr(SR + 4, 4), vr(vL16), sr(dWS, 4), sr(sF0)), 'gs', opt=True)
    e('s_mov_b64 exec, -1')
    A.label(lab)
clk = [0, 0]
def gap(budget, base):
    used = 0
    while used < budget:
        if RQ.ready():
            used += RQ.cost()
            RQ.pop1()
        elif DQ.ready() and (DQ.cost() != 'D' or (clk[0] >= clk[1] and used + OPT['DCOST'] <= max(budget, OPT['DCOST']))):
            if DQ.cost() == 'D':
                used += OPT['DCOST']
                clk[1] = max(clk[1], clk[0] - 2 * OPT['DINT']) + OPT['DINT']
            elif used + DQ.cost() > max(budget, DQ.cost()):
                break
            else:
                used += DQ.cost()
                if DQ.cost() >= 2:
                    clk[1] += OPT['SMP']
            DQ.pop1()
        elif FQ.ready() and used + FQ.cost() <= max(budget, FQ.cost()):
            used += FQ.cost()
            FQ.pop1()
        else:
            break
    clk[0] += max(base, 8 + 4 * used)

K0, K1, SA, SE = 116, 124, 136, 144
def tab_rd(dst, row, tag, addr=None):
    for part in range(2):
        A.ds('ds_read_b128 %s, %s offset:%d' % (vr(dst + 4 * part, 4), vr(vTB if addr is None else addr), row * TROW + part * 128), tag)
for step in range(16):
    v, ks = step // 2, step % 2
    gate = 'mid%d' % v if ks == 1 else None
    for a in range(5):
        KS[0] = step + a / 5
        DQ.open.add('k%d' % (5 * step + a))
        if ks == 1 and a == 2:
            for u in range(5):
                assert DSN.get('a%d_%d' % (step, u), 0) == (1 if u < 2 else 2), (step, u)
            if v == 7:
                assert DSN.get('csw', 0) == 1 and DSN.get('cso', 0) == 5
            page('aA' if v == OPT['PGA'] else 'a%d' % v)
            A.wait_lg0()
            stamp('a%d' % v)
            if v < 7:
                A.wait_vm('st%d' % (v + 1))
                if v in (1, 3, 6):
                    stamp('b%d' % v)
            if not OPT['X'] & 2:
                e('s_barrier')
            clk[0] += 40
            for q in (DQ, FQ, RQ):
                q.open.add('mid%d' % v)
            if v == 7:
                for q in range(5):
                    RQ.add([(1, lambda q=q: A.ds('ds_read_b128 %s, %s offset:%d' % (vr((XF + 4 * q) if q < 4 else AF, 4), vr(vCR), 64 * q), 'csr'))])
        if a in (0, 2, 4):
            assert DSN.get('x%d' % step, 0) == 4, (step, a)
            for u in (a, a + 1):
                assert u > 4 or DSN.get('a%d_%d' % (step, u), 0) == (1 if u < 2 else 2), (step, a, u)
            A.wait_lg(['x%d' % step] + ['a%d_%d' % (step, u) for u in (a, a + 1)])
        if OPT['XS'] and step in (14, 15) and a == 0:
            stamp('s%d' % step)
        if step == 0 and a == 4:
            g_store()
        ms = []
        if ks == 0:
            ms.append((ONE, CS + 4 * a))
        for T in range(4):
            ms.append((ACC + 16 * a + 4 * T, XF + 16 * ks + 4 * T))
        for i, (acc, b) in enumerate(ms):
            e('v_mfma_f32_16x16x32_bf16 %s, %s, %s, %s' % (vr(acc, 4), vr(AF + 4 * a, 4), vr(b, 4), '0' if step == 0 and (acc != ONE or a == 0) else vr(acc, 4)))
            last = i == len(ms) - 1
            if step < 15:
                if last:
                    RQ.add(rd_a(step + 1, a), gate)
                if (a == 0 and last) if ks == 1 else (a == 0 and i == 1):
                    for T in range(4):
                        RQ.add(rd_x(step + 1, T), gate)
            if step == 15 and a == 0 and i == 0:
                def csw():
                    e('s_mov_b32 exec_lo, 0x1f001f')
                    e('s_mov_b32 exec_hi, 0x1f001f')
                    A.ds('ds_write_b128 %s, %s' % (vr(vCW), vr(ONE, 4)), 'csw')
                    e('s_mov_b64 exec, -1')
                RQ.add([(2, csw)])
                for q in range(5):
                    RQ.add([(1, lambda q=q: A.ds('ds_read_b128 %s, %s offset:%d' % (vr(CS + 4 * q, 4), vr(vCO), 64 * q), 'cso'))])
            bud = OPT['BUD0'] if step < OPT['NB0'] else 2
            if last and a in (1, 3, 4) and not (ks == 1 and a == 3):
                bud = 0 if (ks == 1 and a == 1) else 1
            if bud == 0:
                while RQ.ready():
                    RQ.pop1()
            gap(bud, 16)
print('K loop estimate', clk[0], 'left DQ', len(DQ.q), 'FQ', len(FQ.q))
FQ.flush()
RQ.flush()
stamp('kloop')

DQ.add(resg_loads(), 'sx')
tab_rd(K0, R_CF, 'k0')
tab_rd(K1, R_L1, 'k1')
A.wait_lg('csr')
AUTO['nxt'] = AUTO['t'] + max(0, clk[1] - clk[0])
auto(True)
for q in range(5):
    src = (XF + 4 * q) if q < 4 else AF
    for h in (0, 2):
        e('v_pk_add_f32 %s, %s, %s' % (vr(CS + 4 * q + h, 2), vr(CS + 4 * q + h, 2), vr(src + h, 2)))
LOB = 'op_sel:[0,0,0] op_sel_hi:[1,0,1]'
HIB = 'op_sel:[0,1,0] op_sel_hi:[1,1,1]'
RR, II = ACC, ACC + 16
tq = XF
tZ, tO = tq, B1
def gelu_tile(v, tag, mid=None):
    for hh in range(2):
        prs = [(2 * hh + a, h) for a in range(2) for h in range(2)]
        accp = lambda T, h: ACC + 32 + 16 * v + 4 * T + 2 * h
        for (T, h) in prs:
            e('v_pk_fma_f32 %s, %s, %s, %s %s' % (vr(accp(T, h), 2), vr(BU + 4 * v + 2 * h, 2), vr(ST + 4 * T, 2), vr(accp(T, h), 2), HIB))
        for (T, h) in prs:
            e('v_pk_fma_f32 %s, %s, %s, %s %s %s' % (vr(accp(T, h), 2), vr(CS + 8 + 4 * v + 2 * h, 2), vr(ST + 4 * T, 2), vr(accp(T, h), 2), LOB, NEG1))
        for i, (T, h) in enumerate(prs):
            e('v_pk_mul_f32 %s, %s, %s' % (vr(tZ + 2 * i, 2), vr(accp(T, h), 2), vr(accp(T, h), 2)))
        for i, (T, h) in enumerate(prs):
            e('v_pk_fma_f32 %s, %s, %s, %s op_sel:[0,1,0] op_sel_hi:[1,1,0]' % (vr(tZ + 2 * i, 2), vr(tZ + 2 * i, 2), vr(ST + 4 * T + 2, 2), vr(ST + 4 * T + 2, 2)))
        for i, (T, h) in enumerate(prs):
            e('v_pk_mul_f32 %s, %s, %s' % (vr(tZ + 2 * i, 2), vr(tZ + 2 * i, 2), vr(accp(T, h), 2)))
        for i in range(8):
            e('v_exp_f32 %s, %s' % (vr(tZ + i), vr(tZ + i)))
        for i, (T, h) in enumerate(prs):
            e('v_pk_fma_f32 %s, %s, %s, %s op_sel:[0,1,1] op_sel_hi:[1,1,1]' % (vr(tZ + 2 * i, 2), vr(tZ + 2 * i, 2), vr(ST + 4 * T, 2), vr(ST + 4 * T, 2)))
        for i in range(8):
            e('v_rcp_f32 %s, %s' % (vr(tZ + i), vr(tZ + i)))
        for i, (T, h) in enumerate(prs):
            e('v_pk_mul_f32 %s, %s, %s' % (vr(tZ + 2 * i, 2), vr(tZ + 2 * i, 2), vr(accp(T, h), 2)))
        o = tO + 4 * hh
        for i in (0, 2, 1, 3):
            e('v_cvt_pk_bf16_f32 %s, %s, %s' % (vr(o + i), vr(tZ + 2 * i), vr(tZ + 2 * i + 1)))
        if mid:
            mid(hh)
        auto(False)
        e('v_permlane16_swap_b32 %s, %s' % (vr(o), vr(o + 2)))
        so = sHM
        if v:
            so = sU0
            if hh == 0:
                S('s_add_u32 %s, %s, %s', sU0, sHM, str(4096 * v))
        if v == 2:
            S('s_cmp_eq_u32 %s, 0', sF1)
        e('v_permlane16_swap_b32 %s, %s' % (vr(o + 1), vr(o + 3)))
        if v == 2:
            lab = newlab('skip')
            e('s_cbranch_scc1 %s' % lab)
        A.vmem('buffer_store_dwordx4 %s, %s, %s, %s offen offset:%d sc1' % (vr(o, 4), vr(vL16), sr(dWS, 4), sr(so), 1024 * hh), tag, opt=(v == 2))
        if v == 2:
            A.label(lab)
        auto(True)
for T in range(4):
    for part in range(2):
        for h in (0, 2):
            r = ACC + 16 * part + 4 * T + h
            e('v_pk_fma_f32 %s, %s, %s, %s %s %s' % (vr(r, 2), vr(CS + 4 * part + h, 2), vr(SS + 2 * T, 2), vr(r, 2), LOB, NEG1))
    if T == 0:
        A.wait_lg('k0')
    for q in (0, 2, 4, 6):
        e('v_pk_mul_f32 %s, %s, %s op_sel:[0,1] op_sel_hi:[1,1]' % (vr(tq + q, 2), vr(K0 + q, 2), vr(SS + 2 * T, 2)))
    if T == 3:
        tab_rd(K0, 1, 'k0')
    for h in (0, 2):
        e('v_pk_mul_f32 %s, %s, %s' % (vr(tq + 8 + h, 2), vr(RR + 4 * T + h, 2), vr(tq + 4 + h, 2)))
    for h in (0, 2):
        e('v_pk_mul_f32 %s, %s, %s' % (vr(RR + 4 * T + h, 2), vr(RR + 4 * T + h, 2), vr(tq + h, 2)))
    for h in (0, 2):
        e('v_pk_fma_f32 %s, %s, %s, %s %s' % (vr(RR + 4 * T + h, 2), vr(II + 4 * T + h, 2), vr(tq + 4 + h, 2), vr(RR + 4 * T + h, 2), NEG1))
    for h in (0, 2):
        e('v_pk_fma_f32 %s, %s, %s, %s' % (vr(II + 4 * T + h, 2), vr(II + 4 * T + h, 2), vr(tq + h, 2), vr(tq + 8 + h, 2)))
tab_rd(tq, 2, 'k2')
tab_rd(tq + 8, 4, 'k3')
A.wait_lg('k1')
for T in range(1, 4):
    pk_cfma4(RR + 4 * T, II + 4 * T, RR + 4 * T - 4, II + 4 * T - 4, K1, RR + 4 * T, II + 4 * T)
tab_rd(K1, 8, 'k1')
cur = (RR + 12, II + 12)
L64, L512, P128, S0 = K0, K0 + 2, K0 + 4, K0 + 6
for lv in range(4):
    k = [K0, tq, tq + 8, K1][lv]
    for part in range(2):
        for i in range(4):
            e('v_mov_b32_dpp %s, %s row_shr:%d row_mask:0xf bank_mask:0xf bound_ctrl:0' % (vr(SE + 4 * part + i), vr(cur[part] + i), 1 << lv))
    if lv in (0, 3):
        A.wait_lg(['k3', 'k3', 'k3', 'k1'][lv])
    pk_cfma4(SA, SA + 4, SE, SE + 4, k, cur[0], cur[1])
    cur = (SA, SA + 4)
    if lv == 0:
        for (dst, row, ad) in ((L64, R_L64, vTC), (L512, R_L512, vTC), (P128, 0, vTG)):
            for part in range(2):
                A.ds('ds_read_b32 %s, %s offset:%d' % (vr(dst + part), vr(ad), row * TROW + part * 128), 'kc')
auto(False)
e('s_mov_b32 exec_lo, 0x80008000')
e('s_mov_b32 exec_hi, 0x80008000')
A.ds('ds_write_b128 %s, %s' % (vr(vCR), vr(SA, 4)), 'sx')
A.ds('ds_write_b128 %s, %s offset:64' % (vr(vCR), vr(SA + 4, 4)), 'sx')
e('s_mov_b64 exec, -1')
GR = tq + 12
for part in range(2):
    for i in range(4):
        e('v_mov_b32_dpp %s, %s row_shr:1 row_mask:0xf bank_mask:0xf bound_ctrl:0' % (vr(SE + 4 * part + i), vr(SA + 4 * part + i)))
e('v_mov_b32 %s, %s' % (vr(GR + 2), sr(sTAG)))
e('v_mov_b32 %s, %s' % (vr(GR + 3), sr(sTAG)))
page('sx')
A.wait_lg0()
e('s_barrier')
A.ds('ds_read2_b32 %s, %s offset0:160 offset1:176' % (vr(S0, 2), vr(vSXR)), 's0')
A.ds('ds_read2_b32 %s, %s offset0:0 offset1:16' % (vr(GR, 2), vr(vSXR)), 's0')
DQ.open.add('sx')
print('DQ left at Spub', len(DQ.q))
lab = newlab('np')
S('s_cmp_eq_u32 %s, 0', sTH)
e('s_cbranch_scc1 %s' % lab)
e('s_waitcnt lgkmcnt(0)')
cfma(GR, GR + 1, S0, S0 + 1, L64, L64 + 1, GR, GR + 1)
e('s_mov_b64 exec, 0xffff')
A.vmem('buffer_store_dwordx4 %s, %s, %s, %s offen sc1' % (vr(GR, 4), vr(vL16), sr(dWS, 4), sr(sSGO)), 'S', opt=True)
e('s_mov_b64 exec, -1')
A.label(lab)
stamp('Spub')
auto(True)

vQ = 152
vPD = vWT
def lb_issue():
    for i in range(4):
        A.vmem('buffer_load_dwordx4 %s, %s, %s, %s offen sc1' % (vr(vQ + 4 * i, 4), vr(vPA + i), sr(dWS, 4), sr(sSG)), 'lb')
def lb_check():
    for i in range(4):
        e('v_xor_b32 %s, %s, %s' % (vr(vQ + 4 * i + 3), sr(sTAG), vr(vQ + 4 * i + 2)))
    for i in range(4):
        e('v_cndmask_b32 %s, 0, %s, %s' % (vr(vQ + 4 * i + 3), vr(vQ + 4 * i + 3), sr(sMSK[i], 2)))
    e('v_or3_b32 %s, %s, %s, %s' % (vr(vQ + 3), vr(vQ + 3), vr(vQ + 7), vr(vQ + 11)))
    e('v_or_b32 %s, %s, %s' % (vr(vQ + 3), vr(vQ + 3), vr(vQ + 15)))
    e('v_cmp_ne_u32 vcc, 0, %s' % vr(vQ + 3))
def poll(tag, so):
    return lambda: A.vmem('buffer_load_dword %s, %s, %s, %s offen sc1' % (vr(vPD), vr(vPF), sr(dWS, 4), sr(so)), tag)
def p_check():
    e('v_cmp_ne_u32 vcc, %s, %s' % (sr(sTAG), vr(vPD)))
pa_issue, pb_issue = poll('pa', sPA), poll('pb', sPB)
def lbp(k):
    if k == 0:
        print('DQ left at the first HM store', len(DQ.q))
        if OPT['FL0']:
            DQ.flush()
    if k == 6:
        DQ.flush()
    if OPT['LBPOS'] == k:
        lb_issue()
for i, v in enumerate((2, 0, 1)):
    gelu_tile(v, 'HM', lambda hh: lbp(2 * i + hh))
stamp('gelu')
auto(False)
lbp(6)
KP = [tq, tq + 8, CS, CS + 8]
tab_rd(K1, 0, 'kp', vTI)
for T, row in enumerate((R_L1, R_L2, R_L3, 1)):
    tab_rd(KP[T], row, 'kp')
NR, RING = 22, 152
LD, MF = [], []
for (t, s0, s1) in ((0, 0, 11), (1, 0, OPT['NB1']), (0, 11, 19), (1, OPT['NB1'], 19)):
    tl = OPT['TL%d' % t] if s1 == 19 else 0
    for s in range(s0, s1 - tl):
        for hh in range(2):
            MF += [(len(LD), 0), (len(LD), 1)]
            LD.append((t, s, hh))
    for hh in range(2):
        for dh in range(2):
            MF += [(len(LD) + k, dh) for k in range(tl)]
        LD += [(t, s, hh) for s in range(s1 - tl, s1)]
FS = LD.index((0, 11, 0))
hf = [0]
cur = [None, 0]
def hload():
    f = hf[0]
    t, s, hh = LD[f]
    n = 3
    if f == FS - OPT['PBD']:
        pb_issue()
        n += 2
    if f == FS:
        A.wait_vm('pb')
        retry_loop('pb', pb_issue, p_check, 61)
        stamp('pbok')
        n += 3
    base = (sH2 if t else sH1) if s < 11 else (sP2 if t else sP1)
    off = (TOFF[s] if s < 11 else s - 11) * 2048 + hh * 1024
    if off < 4096:
        so = base
    else:
        so = sHC
        if cur[0] != base or not 0 <= off - cur[1] < 4096:
            cur[0], cur[1] = base, off
            S('s_add_u32 %s, %s, %s', sHC, base, str(off))
            n += 1
        off -= cur[1]
    A.vmem('buffer_load_dwordx4 %s, %s, %s, %s offen offset:%d%s' % (ar(RING + 4 * (f % NR), 4), vr(vL16), sr(dWS, 4), sr(so), off, '' if OPT['X'] & 16 else ' sc1'), 'h%d' % f)
    hf[0] += 1
    return n

RD, RES, PXR, pT, TB = 128, 192, 208, 224, 240
vOO, vRW, vRR, vRR2 = vGO, vCW, vCR, vSXR
TILE = 64 * 272
AD, vCA = 32, 40
def xw_block(k):
    if OPT['XWP'] != k:
        return
    S('s_lshl_b32 %s, %s, 11', sT0, sW)
    S('s_add_u32 %s, %s, %s', sT0, sT0, str(PE))
    S('s_add_u32 %s, %s, %s', sT1, sME, str(2 * SLOT))
    for i, sb in enumerate((sT0, sM8, sME, sT1)):
        e('v_add_u32 %s, %s, %s' % (vr(AD + 2 * i), sr(sb), vr(vTRL)))
        e('v_xor_b32 %s, 64, %s' % (vr(AD + 2 * i + 1), vr(AD + 2 * i)))
    e('v_bfe_u32 %s, %s, 1, 3' % (vr(vCA), vr(vLANE)))
    e('v_xor_b32 %s, %s, %s' % (vr(vCA), vr(vCA), vr(vHI5)))
    e('v_lshlrev_b32 %s, 4, %s' % (vr(vCA), vr(vCA)))
    e('v_lshl_add_u32 %s, %s, 7, %s' % (vr(vCA), vr(vLO5), vr(vCA)))
    S('s_add_u32 %s, %s, %s', sT0, sM8, str(2 * SLOT))
    e('v_add_u32 %s, %s, %s' % (vr(vCA), sr(sT0), vr(vCA)))
    for sub in range(1, 4):
        e('v_xor_b32 %s, %d, %s' % (vr(vCA + sub), 32 * sub, vr(vCA)))
    A.wait_vm('W')
    for st in range(11):
        for dh in range(2):
            for half in range(2):
                if st == 0:
                    ad, off = AD, 0
                elif st <= 8:
                    ad, off = AD + 2, ((st - 1) // 4) * SLOT + ((st - 1) % 4) * 2048
                else:
                    ad, off = AD + 4 + 2 * (st - 9), 0
                A.ds('ds_read_b64_tr_b16 %s, %s offset:%d' % (ar(8 * st + 4 * dh + 2 * half, 2), vr(ad + dh), off + half * 512), 'xw')
    for part in range(2):
        for sub in range(4):
            for dh in range(2):
                A.ds('ds_read_b128 %s, %s offset:%d' % (ar(8 * (11 + 2 * sub + part) + 4 * dh, 4), vr(vCA + sub), part * SLOT + dh * 4096), 'xw')
xw_block(0)
def fap(k):
    if OPT['FAP'] == k:
        A.wait_vm('HM')
        stamp('HMdone')
        flag(WS_FA, 'fa')
        if OPT['PTOUCH'] & 1:
            e('v_lshlrev_b32 %s, 7, %s' % (vr(vCT), vr(vLO4)))
            e('v_lshl_add_u32 %s, %s, 12, %s' % (vr(vCT), vr(vG), vr(vCT)))
            S('s_mov_b32 exec_hi, %s', sF1)
            A.vmem('buffer_load_dword %s, %s, %s, %s offen sc1' % (vr(vSCR), vr(vCT), sr(dWS, 4), sr(sHM)), 'touch')
            e('s_mov_b32 exec_hi, -1')
        stamp('fa')
page('lb')
A.wait_vm('lb')
stamp('lb1')
fap(0)
retry_loop('lb', lb_issue, lb_check, 59)
stamp('Sgot')
for i in range(4):
    e('v_cndmask_b32 %s, 0, %s, %s' % (vr(vQ + 4 * i), vr(vQ + 4 * i), sr(sMSK[i], 2)))
    e('v_cndmask_b32 %s, 0, %s, %s' % (vr(vQ + 4 * i + 1), vr(vQ + 4 * i + 1), sr(sMSK[i], 2)))
for i in (2, 1, 0):
    cfma(vQ + 4 * i, vQ + 4 * i + 1, vQ + 4 * i + 4, vQ + 4 * i + 5, L512, L512 + 1, vQ + 4 * i, vQ + 4 * i + 1)
hr, hi_, h2, h3 = vQ + 4, vQ + 5, vQ + 6, vQ + 7
cmul(hr, hi_, vQ, vQ + 1, P128, P128 + 1)
for sw in ('v_permlane16_swap_b32', 'v_permlane32_swap_b32'):
    e('v_mov_b32 %s, %s' % (vr(h2), vr(hr)))
    e('v_mov_b32 %s, %s' % (vr(h3), vr(hi_)))
    e('%s %s, %s' % (sw, vr(hr), vr(h2)))
    e('%s %s, %s' % (sw, vr(hi_), vr(h3)))
    e('v_add_f32 %s, %s, %s' % (vr(hr), vr(hr), vr(h2)))
    e('v_add_f32 %s, %s, %s' % (vr(hi_), vr(hi_), vr(h3)))
auto(False)
A.wait_lg('s0')
lab = newlab('t0')
S('s_cmp_eq_u32 %s, 0', sTH)
e('s_cbranch_scc1 %s' % lab)
cfma(S0, S0 + 1, hr, hi_, L64, L64 + 1, S0, S0 + 1)
e('v_mov_b32 %s, %s' % (vr(hr), vr(S0)))
e('v_mov_b32 %s, %s' % (vr(hi_), vr(S0 + 1)))
A.label(lab)
A.ds('ds_write2_b32 %s, %s, %s offset0:32 offset1:48' % (vr(vSXW), vr(hr), vr(hi_)), 'cy')
A.ds('ds_read_b128 %s, %s offset:128' % (vr(SA, 4), vr(vCR)), 'cy')
A.ds('ds_read_b128 %s, %s offset:192' % (vr(SA + 4, 4), vr(vCR)), 'cy')
fap(1)
A.wait_lg0()
pk_cfma4(SE, SE + 4, SA, SA + 4, K1, SE, SE + 4)
for hh in range(2):
    for T in (2 * hh, 2 * hh + 1):
        pk_cfma4(RR + 4 * T, II + 4 * T, SE, SE + 4, KP[T], RR + 4 * T, II + 4 * T)
    for part in range(2):
        o = vQ + 8 * hh + 4 * part
        b = ACC + 16 * part + 8 * hh
        ng = '-' if part else ''
        for i in range(4):
            e('v_cvt_pk_bf16_f32 %s, %s%s, %s%s' % (vr(o + i), ng, vr(b + 2 * i), ng, vr(b + 2 * i + 1)))
    if hh == 0:
        fap(2)
    for part in range(2):
        o = vQ + 8 * hh + 4 * part
        e('v_permlane16_swap_b32 %s, %s' % (vr(o), vr(o + 2)))
        e('v_permlane16_swap_b32 %s, %s' % (vr(o + 1), vr(o + 3)))
        A.vmem('buffer_store_dwordx4 %s, %s, %s, %s offen offset:%d sc1' % (vr(o, 4), vr(vL16), sr(dWS, 4), sr(sHS), 2048 * part + 1024 * hh), 'HS')
stamp('epi')

xw_block(1)
eX, eS, eD = 128, 136, 140
fD, fB, fU, fM = 144, 148, 152, 156
def res_pre():
    A.wait_vm('res')
    for i in range(16):
        e('v_accvgpr_read_b32 %s, a%d' % (vr(eX + [0, 1, 2, 3, 4, 5, 6, 7, 12, 13, 14, 15, 8, 9, 10, 11][i]), 240 + i))
    for (dst, src) in ((fD, eD), (fB, eD + 2)):
        for hh in range(2):
            e('v_lshlrev_b32 %s, 16, %s' % (vr(dst + 2 * hh), vr(src + hh)))
            e('v_and_b32 %s, 0xffff0000, %s' % (vr(dst + 2 * hh + 1), vr(src + hh)))
def res_q(q):
    r = RES + 4 * q
    e('v_and_b32 %s, 0xffff0000, %s' % (vr(fM + 1), vr(eS + q)))
    e('v_lshlrev_b32 %s, 16, %s' % (vr(fM), vr(eS + q)))
    e('v_rcp_f32 %s, %s' % (vr(fM + 1), vr(fM + 1)))
    for hh in range(2):
        e('v_lshlrev_b32 %s, 16, %s' % (vr(r + 2 * hh), vr(eX + 2 * q + hh)))
        e('v_and_b32 %s, 0xffff0000, %s' % (vr(r + 2 * hh + 1), vr(eX + 2 * q + hh)))
    def rnd4():
        e('v_cvt_pk_bf16_f32 %s, %s, %s' % (vr(fU + 1), vr(fU), vr(fU + 1)))
        e('v_cvt_pk_bf16_f32 %s, %s, %s' % (vr(fU + 3), vr(fU + 2), vr(fU + 3)))
        e('v_lshlrev_b32 %s, 16, %s' % (vr(fU), vr(fU + 1)))
        e('v_lshlrev_b32 %s, 16, %s' % (vr(fU + 2), vr(fU + 3)))
        e('v_and_b32 %s, 0xffff0000, %s' % (vr(fU + 1), vr(fU + 1)))
        e('v_and_b32 %s, 0xffff0000, %s' % (vr(fU + 3), vr(fU + 3)))
    for hh in range(2):
        e('v_pk_add_f32 %s, %s, %s op_sel:[0,0] op_sel_hi:[1,0] neg_lo:[0,1] neg_hi:[0,1]' % (vr(fU + 2 * hh, 2), vr(r + 2 * hh, 2), vr(fM, 2)))
    rnd4()
    for hh in range(2):
        e('v_pk_mul_f32 %s, %s, %s op_sel:[0,1] op_sel_hi:[1,1]' % (vr(fU + 2 * hh, 2), vr(fU + 2 * hh, 2), vr(fM, 2)))
    rnd4()
    for hh in range(2):
        e('v_pk_mul_f32 %s, %s, %s' % (vr(fU + 2 * hh, 2), vr(fU + 2 * hh, 2), vr(fD + 2 * hh, 2)))
    rnd4()
    for hh in range(2):
        e('v_pk_add_f32 %s, %s, %s' % (vr(r + 2 * hh, 2), vr(r + 2 * hh, 2), vr(fU + 2 * hh, 2)))
    for hh in range(2):
        e('v_pk_add_f32 %s, %s, %s' % (vr(r + 2 * hh, 2), vr(r + 2 * hh, 2), vr(fB + 2 * hh, 2)))

F2 = Q()
e('v_lshrrev_b32 %s, 3, %s' % (vr(vRR), vr(vLO4)))
e('v_lshlrev_b32 %s, 12, %s' % (vr(vRR), vr(vRR)))
e('v_lshl_add_u32 %s, %s, 8, %s' % (vr(vRR), vr(vHI5), vr(vRR)))
e('v_and_b32 %s, 0x17, %s' % (vr(vRR2), vr(vLANE)))
e('v_and_b32 %s, 7, %s' % (vr(vRW), vr(vLANE)))
e('v_add_u32 %s, %s, %s' % (vr(vRR2), vr(vRR2), vr(vRW)))
e('v_lshl_add_u32 %s, %s, 3, %s' % (vr(vRR), vr(vRR2), vr(vRR)))
S('s_lshl_b32 %s, %s, 13', sT0, sTH)
S('s_lshl_b32 %s, %s, 11', sT1, sPH)
S('s_add_u32 %s, %s, %s', sT0, sT0, sT1)
e('v_add_u32 %s, %s, %s' % (vr(vRR), sr(sT0), vr(vRR)))
e('v_add_u32 %s, 0x10000, %s' % (vr(vRR2), vr(vRR)))
S('s_lshl_b32 m0, %s, 14', sW)
S('s_add_u32 %s, %s, %s', sP1, sH1, sSSM)
S('s_add_u32 %s, %s, %s', sP2, sH2, sSSM)
S('s_movk_i32 %s, 0xff', sBM)
for i in range(4):
    e('v_bfe_u32 %s, %s, %d, 8' % (vr(TB + i), vr(vTAG), 8 * i))
if OPT['RQ'] == -1:
    pa_issue()
res_pre()
A.wait_lg0()
stamp('xw')
e('s_barrier')
stamp('bx')
for q in range(5):
    if q == OPT['RQ']:
        pa_issue()
    if q < 4:
        res_q(q)
e('v_lshlrev_b32 %s, 1, %s' % (vr(vOO), vr(vXO)))
stamp('res')
A.wait_vm('HS')
stamp('HSdone')
flag(WS_FB, 'fb')
def hs_touch():
    e('v_lshlrev_b32 %s, 5, %s' % (vr(vCT), vr(vTM)))
    e('s_mov_b32 exec_hi, 0')
    A.vmem('buffer_load_dword %s, %s, %s, %s offen sc1' % (vr(vSCR), vr(vCT), sr(dWS, 4), sr(sHS)), 'touch')
    e('s_mov_b32 exec_hi, -1')
if OPT['PTOUCH'] & 2:
    hs_touch()
stamp('fb')
page('pa')
A.wait_vm('pa')
stamp('pa1')
retry_loop('pa', pa_issue, p_check, 60)
stamp('paok')
for i in range(OPT['NPRE']):
    hload()
if OPT['PTOUCH'] & 4:
    hs_touch()
e('v_lshrrev_b32 %s, 1, %s' % (vr(vPF), vr(vPF)))
assert OPT['NPRE'] <= FS - OPT['PBD']
M1 = 16320
def red_write(t, k):
    A.ds('ds_write_addtid_b32 %s offset:%d' % (vr(64 * t + k), t * (65536 - M1) + 256 * k), 'rw')
def red_read(t, q, part):
    A.ds('ds_read_b128 %s, %s offset:%d' % (vr(RD + 16 * q + 4 * part, 4), vr(vRR2 if t else vRR), part * 16384 + (q >> 1) * 1024 + (q & 1) * 512), 'rr%d' % q)
def px_issue():
    for k in range(4):
        A.vmem('buffer_load_dwordx4 %s, %s, %s, %s offen offset:%d sc1' % (vr(PXR + 4 * k, 4), vr(vL16), sr(dWS, 4), sr(sPX), k * 1024), 'px')
def px_check():
    for k in range(16):
        e('v_xor_b32 %s, %s, %s' % (vr(PXR + k), vr(TB + (k & 3)), vr(PXR + k)))
    for k in range(4):
        e('v_or3_b32 %s, %s, %s, %s' % (vr(pT + k), vr(PXR + 4 * k), vr(PXR + 4 * k + 1), vr(PXR + 4 * k + 2)))
    e('v_or3_b32 %s, %s, %s, %s' % (vr(pT), vr(pT), vr(PXR + 3), vr(PXR + 7)))
    e('v_or3_b32 %s, %s, %s, %s' % (vr(pT + 1), vr(pT + 1), vr(PXR + 11), vr(PXR + 15)))
    e('v_or3_b32 %s, %s, %s, %s' % (vr(pT), vr(pT), vr(pT + 2), vr(pT + 3)))
    e('v_or_b32 %s, %s, %s' % (vr(pT), vr(pT), vr(pT + 1)))
    e('v_and_b32 %s, %s, %s' % (vr(pT), sr(sBM), vr(pT)))
    e('v_cmp_ne_u32 vcc, 0, %s' % vr(pT))
def al_issue(opt=True):
    e('v_lshlrev_b32 v8, 7, %s' % vr(vLANE))
    for i in range(4):
        S('s_mov_b32 %s, %s', sT0, hex(WS_G + 8192 * i))
        A.vmem('buffer_load_dword v%d, v8, %s, %s offen offset:12 sc1' % (i, sr(dWS, 4), sr(sT0)), 'alp', opt=opt)
def al_check():
    for i in range(4):
        e('v_xor_b32 v%d, %s, v%d' % (4 + i, sr(sTAG), i))
    e('v_or3_b32 v4, v4, v5, v6')
    e('v_or_b32 v4, v4, v7')
    e('v_cmp_ne_u32 vcc, 0, v4')

left = [2] * 76
last = {}
for n, (f, dh) in enumerate(MF):
    last[(LD[f][0], LD[f][2], dh)] = n
clk = [0, -4 * OPT['HINT']]
seen = set()
for n, (f, dh) in enumerate(MF):
    t, s, hh = LD[f]
    for (tq_, hq, dq), m in sorted(last.items()):
        if n == m + 2:
            o = Ops()
            if (tq_, hq, dq) == (1, 0, 0):
                o.s('s_add_u32 m0, m0, %d' % M1)
            for k in range(16):
                o.f(lambda k=k, tq_=tq_, hq=hq, dq=dq: red_write(tq_, 32 * hq + 16 * dq + k), OPT['WC'])
            F2.add(o)
            if (tq_, hq, dq) != (0, 1, 1):
                continue
            o = Ops()
            def bar1():
                A.wait_lg0()
                e('s_barrier')
                stamp('bar1')
            o.f(lambda: None, 8)
            o.f(bar1, 4)
            for q in range(4):
                for part in range(4):
                    o.f(lambda q=q, part=part: red_read(0, q, part), 2)
            for q in range(4):
                o.f(lambda q=q: A.wait_lg('rr%d' % q))
                b = RD + 16 * q
                for i in range(4):
                    o.v('v_add_f32 %s, %s, %s' % (vr(b + i), vr(b + i), vr(b + 4 + i)))
                for i in range(4):
                    o.v('v_add_f32 %s, %s, %s' % (vr(b + 8 + i), vr(b + 8 + i), vr(b + 12 + i)))
                for i in range(4):
                    o.v('v_add_f32 %s, %s, %s' % (vr(b + i), vr(b + i), vr(b + 8 + i)))
                for i in range(4):
                    o.v('v_bfi_b32 %s, %s, %s, %s' % (vr(b + i), sr(sBM), vr(TB + i), vr(b + i)))
                o.f(lambda q=q, b=b: A.vmem('buffer_store_dwordx4 %s, %s, %s, %s offen offset:%d sc1' % (vr(b, 4), vr(vL16), sr(dWS, 4), sr(sPX), q * 1024), 'pxs'), 4)
                o.f(lambda: print(' px store at step', clk[2] / 4, 'loads issued', hf[0]), 0)
                for i in range(OPT['PXS'] if q < 3 else 0):
                    o.f(lambda: None, 5)
            o.s('s_xor_b32 %s, %s, 0x4000', sPX, sPX)
            o.f(lambda: (stamp('pxs'), seen.add('pxs'), print('px stores done at step', clk[2] / 4, 'loads issued', hf[0])), 0)
            F2.add(o)
    clk[2:] = [n]
    if n == 4 * OPT['WB']:
        lab = newlab('wb')
        S('s_and_b32 %s, %s, %s', sT0, sGW, ['3', '0x3e3', '0x63'][OPT['WBM']])
        S('s_cmp_lg_u32 %s, 1', sT0)
        e('s_cbranch_scc1 %s' % lab)
        A.vmem('buffer_wbl2 sc1', 'wb', opt=True)
        A.label(lab)
    if n == 4 * OPT['PXPOS']:
        assert 'pxs' in seen
        px_issue()
    if n == 4 * min(37, OPT['PXPOS']):
        lab = newlab('nal')
        S('s_cmp_lg_u32 %s, 3', sGW)
        e('s_cbranch_scc1 %s' % lab)
        al_issue()
        A.label(lab)
    u = 0
    if n % 4 == 0:
        page('hH' if n == 4 * OPT['PGH'] else 'h%d' % (n // 4))
    if f not in seen:
        assert hf[0] > f
        A.wait_vm('h%d' % f)
        seen.add(f)
    if n // 4 in HST and n % 4 == 0:
        stamp('h%d' % (n // 4))
    acc = vr(64 * t + 32 * hh + 16 * dh, 16)
    def m16(k):
        acc = vr(64 * t + 32 * hh + 16 * dh + 8 * (s & 1) + 4 * k, 4)
        e('v_mfma_f32_16x16x32_bf16 %s, %s, %s, %s' % (acc, ar(RING + 4 * (f % NR), 4), ar(8 * s + 4 * (dh ^ k), 4), acc if s > 1 else '0'))
    if OPT['X'] & 256:
        m16(0)
    elif not OPT['X'] & 8:
        e('v_mfma_f32_32x32x16_bf16 %s, %s, %s, %s' % (acc, ar(RING + 4 * (f % NR), 4), ar(8 * s + 4 * dh, 4), acc if s else '0'))
    left[f] -= 1
    if n + 1 < len(MF) and MF[n + 1][0] not in seen:
        u = 1
    if hf[0] < 76 and (hf[0] < NR or left[hf[0] - NR] == 0) and clk[0] >= clk[1]:
        u += hload()
        clk[1] += OPT['HINT']
    if OPT['X'] & 256:
        while F2.ready() and (u + F2.cost() <= OPT['RPOP'] // 2):
            u += F2.cost()
            F2.pop1()
        m16(1)
    while F2.ready() and (u + F2.cost() <= OPT['RPOP'] or u <= 1):
        u += F2.cost()
        F2.pop1()
    clk[0] += max(32, (16 if OPT['X'] & 256 else 8) + 4 * u)
assert hf[0] == 76
stamp('mfma2')
if OPT['PXPOS'] == 38:
    px_issue()
print('F2 left', len(F2.q))
F2.flush()
for key, m in sorted(last.items()):
    if m + 2 >= len(MF):
        assert key != (1, 0, 0)
        for k in range(16):
            red_write(1, 32 * key[1] + 16 * key[2] + k)
A.wait_lg0()
e('s_barrier')
stamp('bar2')
if OPT['PXPOS'] == 39:
    px_issue()
for q in range(4):
    for part in range(4):
        red_read(1, q, part)
if OPT['PXPOS'] == 40:
    A.wait_vm('pxs')
    stamp('pxack')
    px_issue()
def own_sum(q):
    A.wait_lg('rr%d' % q)
    b, r = RD + 16 * q, RES + 4 * q
    for h in (0, 2):
        e('v_pk_add_f32 %s, %s, %s' % (vr(b + h, 2), vr(b + h, 2), vr(b + 4 + h, 2)))
        e('v_pk_add_f32 %s, %s, %s' % (vr(b + 8 + h, 2), vr(b + 8 + h, 2), vr(b + 12 + h, 2)))
    for h in (0, 2):
        e('v_pk_add_f32 %s, %s, %s' % (vr(r + h, 2), vr(r + h, 2), vr(b + h, 2)))
    for h in (0, 2):
        e('v_pk_add_f32 %s, %s, %s' % (vr(r + h, 2), vr(r + h, 2), vr(b + 8 + h, 2)))
for q in range(4):
    own_sum(q)
A.wait_vm('px')
stamp('px1')
retry_loop('px', px_issue, px_check, 62)
stamp('pxok')
for q in range(4):
    r = RES + 4 * q
    for h in (0, 2):
        e('v_pk_add_f32 %s, %s, %s' % (vr(r + h, 2), vr(r + h, 2), vr(PXR + 4 * q + h, 2)))
    S('s_mov_b32 %s, %s', sT0, str(QR[q] * 8192))
    A.vmem('buffer_store_dwordx4 %s, %s, %s, %s offen%s' % (vr(r, 4), vr(vOO), sr(dO, 4), sr(sT0), ['', ' sc1', ' nt', ' sc0 sc1'][OPT['OUTSC']]), 'out')
lab = newlab('nep')
S('s_cmp_lg_u32 %s, 3', sGW)
e('s_cbranch_scc1 %s' % lab)
A.wait_vm('alp')
retry_loop('al', al_issue, al_check, 63)
one_lane_store(8, '0', 'ep')
A.label(lab)
if PROF:
    stamp('stored')
    e('s_waitcnt vmcnt(0)')
    stamp('drained')
    stamp('rt1', True)
    A.wait_lg0()
    e('v_lshlrev_b32 v16, 2, %s' % vr(vLANE))
    if DBGT and os.environ.get('AMP'):
        x0, x1 = os.environ['AMP'].split('-')
        e('v_readlane_b32 s40, %s, %d' % (vr(vSTAMP), SNAMES[x0]))
        e('v_readlane_b32 s41, %s, %d' % (vr(vSTAMP), SNAMES[x1]))
        e('v_readlane_b32 s42, %s, %d' % (vr(vSTAMP), SNAMES['drained']))
        e('s_nop 4')
        e('s_sub_u32 s40, s41, s40')
        e('s_lshl_b32 s40, s40, 2')
        e('s_min_u32 s40, s40, 20000')
        e('s_mov_b32 s43, 0')
        A.label('L_amp')
        e('s_memrealtime s[44:45]')
        e('s_waitcnt lgkmcnt(0)')
        e('s_add_u32 s43, s43, 1')
        e('s_cmp_gt_u32 s43, 0x4000')
        e('s_cbranch_scc1 L_ampd')
        e('s_sub_u32 s44, s44, s42')
        e('s_cmp_lt_u32 s44, s40')
        e('s_cbranch_scc1 L_amp')
        A.label('L_ampd')
    elif DBGT:
        e('s_load_dwordx2 s[40:41], s[0:1], 120')
        e('v_not_b32 v17, %s' % vr(vSTAMP))
        e('v_cmp_eq_u32 vcc, 0, %s' % vr(vLANE))
        e('s_nop 1')
        e('v_cndmask_b32 v17, %s, v17, vcc' % vr(vSTAMP))
        e('s_waitcnt lgkmcnt(0)')
        e('s_mov_b64 exec, 0xffff')
        e('global_atomic_umax v16, v17, s[40:41] sc1')
        e('s_mov_b64 exec, -1')
    S('s_lshl_b32 %s, %s, 8', sT0, sGW)
    S('s_add_u32 %s, %s, %s', sT0, sT0, hex(WS_PROF))
    e('buffer_store_dword %s, v16, %s, %s offen' % (vr(vSTAMP), sr(dWS, 4), sr(sT0)))
    json.dump(SNAMES, open(OUT + '.names', 'w'))
A.label('L_end')
e('s_endpgm')

body, nops = hazard_pass(A.lines)
if OPT['PG'] & 8:
    body, n1, n2, tot = stub_pass(body, 0x300, 2, 4, OPT['AL'])
    print('alignment: nops', n1, 'widened', n2, 'cost', tot)
elif OPT['AL']:
    body, n1, n2, tot = align_pass(body, OPT['AL'])
    print('alignment: nops', n1, 'widened', n2, 'cost', tot)
head = open('cdna_kernels/%s.s.ref' % NAME).read().split('; Override launch')[0]
txt = head + '; @launch grid=(256,1,1) block=(256,1,1) lds=%d\n' % LDS_BYTES
txt += '''.amdgcn_target "amdgcn-amd-amdhsa--gfx950"
.text
.globl %s_kernel
.p2align %d
.type %s_kernel,@function
%s_kernel:
''' % (NAME, 12 if OPT['PG'] & 1 else 8, NAME, NAME)
txt += '\n'.join(body) + '\n'
txt += '''.section .rodata,"a"
.p2align 6
.amdhsa_kernel %s_kernel
  .amdhsa_next_free_vgpr 512
  .amdhsa_next_free_sgpr 102
  .amdhsa_accum_offset 256
  .amdhsa_group_segment_fixed_size 0
  .amdhsa_kernarg_size 136
  .amdhsa_user_sgpr_count 2
  .amdhsa_user_sgpr_kernarg_segment_ptr 1
  .amdhsa_system_sgpr_workgroup_id_x 1
.end_amdhsa_kernel
''' % NAME
open(OUT, 'w').write(txt)
print('wrote', OUT, 'lines', len(body), 'nops', nops)
```

```python
import sys, math, struct, json
from asmlib import *

NAME = 'parallel_sum__ssm_conv_s5__mixer_channel_mlp__prompt'
DBGT = '--dbgt' in sys.argv
PROF = '--prof' in sys.argv or DBGT
OUT = [a for a in sys.argv[1:] if not a.startswith('--') and '=' not in a]
OUT = OUT[0] if OUT else 'cdna_kernels/%s.s' % NAME
OPT = dict(EP=0, PAP=1, R0=1, R1=3, N0=4, HI2=70, BXP=8, D0A=2, NPK=20, LATE=1, ROT=10, DINT=72, LBPOS=6, OUTSC=0, PXPOS=39, RPOP=8, HINT=60, PTOUCH=0, DCOST=2, D1A=0, BUD0=2, NB0=4, X=0,
           EINT=100, NB1=3, PBD=12, SDG=5, NPRE=10, WPF=3, WT0=9, STL=4, RQ=3,
           PB=1, PINT=110, SPF=0, D1B=7, B1P=-1, B1G=3, XS=0, TL0=6, TL1=6, WC=2, FAP=0, XWP=0, PXS=0, CJ0=6, WG0=0, WNT=0, FL0=0, NTX=-1, NTW=-1, NTS=0, WPK=0, WINT=92, WCL=4, SMP=0, STD=0, AL=5, PG=11, PGA=3, PGH=19, PGT=0, HP=0, WB=-1, WBM=0)
for a in sys.argv[1:]:
    if '=' in a:
        k, v = a.split('=')
        assert k in OPT, k
        OPT[k] = int(v)

def f2u(x):
    return '0x%08x' % struct.unpack('<I', struct.pack('<f', x))[0]

WS_AL = 0x1000
WS_G = 0x8000
WS_SG = 0x10000
WS_PROF = 0x40000
WS_FA = 0x80000
WS_FB = 0xA0000
WS_FC = 0xC0000
WS_PX = 0x100000
WS_H = 0x800000
WS_SIZE = 0x1200000
HR = 152 * 2048

SLOT, PIECE = 36864, 9216
TAB, TROW = 147456, 272
CSX = TAB + 25 * TROW
PE = 155648
assert CSX + 1280 <= PE and CSX % 16 == 0
LDS_BYTES = 160 * 1024

sW, sRB, sJ, sKH, sC, sRBL, sTAG, sGW, sTH, sPH, sPC = 4, 5, 6, 7, 8, 9, 10, 11, 12, 13, 14
sJT = sPC
pX, pLRE, pLIM, pBRE, pBIM, pCRE, pCIM, pLDT, pDSK, pBX, pW1, pB1, pW2, pB2, pOUT, pDBG, pWS = [16 + 2 * i for i in range(17)]
sPERM, sCNT = 50, 51
dX, dWS, dB, dW1, dW2, dO = 52, 56, 60, 64, 68, 72
sM0, sSX, sSW, sOFF, sM8, sME, sWS, sBM, sU0, sCG, sT0, sT1 = range(76, 88)
sCO = sOFF
sMSK = [88, 90, 92, 94]
sT2, sT3 = 34, 35
sD0, sSG, sSGO, sHM, sHS, sFL, sPA, sPB, sH1, sH2 = range(16, 26)
sSSM, sGR, sPX, sP1, sP2, sHC, sF0, sF1 = 30, 31, 32, 33, 36, 37, 38, 39

vLANE, vL16, vLO4, vG, vLO5, vHI5, vSTAMP, vSCR = 255, 254, 253, 252, 251, 250, 249, 248

A = Asm()
AUTO = dict(on=False, t=0, nxt=0, busy=False, any=False, int=OPT['EINT'])
_e = A.e
def e_time(s):
    mn = s.split()[0]
    AUTO['t'] += 8 if mn in TRANS else 12 if mn.startswith(('buffer_', 'ds_write')) else 4
    _e(s)
A.e = e_time
def e(s):
    A.e(s)
    ok = s.startswith('v_') or (AUTO['any'] and s.startswith('s_') and not s.startswith(('s_cmp', 's_bitcmp', 's_memtime', 's_wait')))
    if AUTO['on'] and not AUTO['busy'] and ok and DQ.ready() and AUTO['t'] >= AUTO['nxt']:
        AUTO['busy'] = True
        AUTO['nxt'] = max(AUTO['nxt'], AUTO['t'] - 2 * AUTO['int']) + AUTO['int']
        DQ.popD()
        AUTO['busy'] = False
def auto(on):
    AUTO['on'] = on
EXPECT = dict([('st%d' % v, 9) for v in range(8)] + [('stat', 4), ('W', 38), ('b1', 5), ('srow', 2), ('lb', 4), ('px', 4), ('res', 8)])
ISSUED = {}
_vm, _wv = A.vmem, A.wait_vm
def vm_hook(s, tag='x', opt=False):
    ISSUED[tag] = ISSUED.get(tag, 0) + 1
    if OPT['X'] & 1 and ' lds' in s and tag not in ('st0', 'st1'):
        return
    if OPT['HP'] & 1 and tag in ('HM', 'HS') or OPT['HP'] & 2 and tag in ('fa', 'fb'):
        s = s.replace(' sc1', ' nt' if OPT['HP'] & 4 else '')
    _vm(s, tag, opt)
def wv_hook(tags):
    for t in ([tags] if isinstance(tags, str) else tags):
        assert ISSUED.get(t, 0) >= EXPECT.get(t, 1), (t, ISSUED.get(t, 0))
    _wv(tags)
A.vmem, A.wait_vm = vm_hook, wv_hook
DSN = {}
_ds = A.ds
def ds_hook(s, tag='x'):
    DSN[tag] = DSN.get(tag, 0) + 1
    if OPT['X'] & 4 and tag[0] in 'xa' and tag[1].isdigit():
        return
    if OPT['X'] & 32 and tag == 'csw' or OPT['X'] & 64 and tag == 'cso':
        return
    _ds(s, tag)
A.ds = ds_hook
SNAMES = {}
import os
SKIP = os.environ.get('SKIP', 'b1,b3,fa,fb,d0,tab').split(',')
HST = [int(x) for x in os.environ.get('HST', '0,6,12,19,26,32').split(',')]
pending = []
SPAIRS = [96, 98, 100]
def flush_stamps():
    for (i, p) in pending:
        e('v_writelane_b32 %s, %s, %d' % (vr(vSTAMP), sr(p), i))
    del pending[:]
_wl0 = A.wait_lg0
def wait_lg0_hook():
    _wl0()
    flush_stamps()
A.wait_lg0 = wait_lg0_hook
DT = os.environ.get('DT', 'rt0,t0,karg,lam,st0,a3,kloop,Spub,gelu,Sgot,epi,paok,pbok,mfma2,pxok,drained').split(',')
def stamp(name, real=False):
    if not PROF:
        A.label('L_m_' + name)
    if not PROF or name in SKIP:
        return
    if os.environ.get('ONLY') and name not in ['rt0', 't0', 'drained', 'rt1'] + os.environ['ONLY'].split(','):
        return
    if DBGT:
        if name not in DT:
            return
        real = True
    if os.environ.get('REAL') and name not in ('t0', 'drained'):
        real = True
    assert name not in SNAMES
    SNAMES[name] = len(SNAMES)
    i = SNAMES[name]
    assert i < 57
    if len(pending) == len(SPAIRS):
        A.wait_lg0()
    used = [p for (_, p) in pending]
    p = [q for q in SPAIRS if q not in used][0]
    e('%s %s' % ('s_memrealtime' if real else 's_memtime', sr(p, 2)))
    pending.append((i, p))
def count(slot):
    if PROF and not os.environ.get('ONLY'):
        e('v_writelane_b32 %s, %s, %d' % (vr(vSTAMP), sr(sCNT), slot))

def srd(d, p, size):
    e('s_mov_b32 %s, %s' % (sr(d), sr(p)))
    e('s_mov_b32 %s, %s' % (sr(d + 1), sr(p + 1)))
    e('s_mov_b32 %s, 0x%x' % (sr(d + 2), size))
    e('s_mov_b32 %s, 0x20000' % sr(d + 3))

def cmul(dr, di, ar_, ai, br, bi):
    e('v_mul_f32 %s, %s, %s' % (vr(dr), vr(ar_), vr(br)))
    e('v_mul_f32 %s, %s, %s' % (vr(di), vr(ar_), vr(bi)))
    e('v_fma_f32 %s, -%s, %s, %s' % (vr(dr), vr(ai), vr(bi), vr(dr)))
    e('v_fma_f32 %s, %s, %s, %s' % (vr(di), vr(ai), vr(br), vr(di)))

def cfma(dr, di, ar_, ai, br, bi, cr, ci):
    e('v_fma_f32 %s, %s, %s, %s' % (vr(dr), vr(ar_), vr(br), vr(cr)))
    e('v_fma_f32 %s, %s, %s, %s' % (vr(di), vr(ar_), vr(bi), vr(ci)))
    e('v_fma_f32 %s, -%s, %s, %s' % (vr(dr), vr(ai), vr(bi), vr(dr)))
    e('v_fma_f32 %s, %s, %s, %s' % (vr(di), vr(ai), vr(br), vr(di)))

NEG1 = 'neg_lo:[0,1,0] neg_hi:[0,1,0]'
def pk_cfma4(dr, di, ar_, ai, k, cr, ci):
    for h in (0, 2):
        e('v_pk_fma_f32 %s, %s, %s, %s' % (vr(dr + h, 2), vr(ar_ + h, 2), vr(k + h, 2), vr(cr + h, 2)))
    for h in (0, 2):
        e('v_pk_fma_f32 %s, %s, %s, %s' % (vr(di + h, 2), vr(ai + h, 2), vr(k + h, 2), vr(ci + h, 2)))
    for h in (0, 2):
        e('v_pk_fma_f32 %s, %s, %s, %s %s' % (vr(dr + h, 2), vr(ai + h, 2), vr(k + 4 + h, 2), vr(dr + h, 2), NEG1))
    for h in (0, 2):
        e('v_pk_fma_f32 %s, %s, %s, %s' % (vr(di + h, 2), vr(ar_ + h, 2), vr(k + 4 + h, 2), vr(di + h, 2)))

labn = [0]
def newlab(s):
    labn[0] += 1
    return 'L_%s_%d' % (s, labn[0])

PGS = os.environ.get('PGS', 'st0').split(',')
def page(name):
    if name not in PGS or not OPT['PG'] & 6:
        return
    k = PGS.index(name)
    A.e('s_branch L_pg_%d' % k)
    if OPT['PG'] & 2:
        A.lines.append('.p2align 12')
    if OPT['PG'] & 4:
        A.label('L_stub_%d' % k)
        A.e('s_branch %s' % ('L_stub_%d' % (k + 4) if 0 < k < len(PGS) - 4 else 'L_back'))
    A.label('L_pg_%d' % k)
def touch_pages(k):
    if OPT['PG'] & 8 and OPT['PGT'] == k:
        A.e('s_mov_b64 exec, 0')
        for w in range(3):
            A.e('s_cmp_eq_u32 %s, %d' % (sr(sW), w))
            A.e('s_cbranch_scc1 L_stub_%d' % w)
        A.e('s_branch L_stub_3')
        A.label('L_back')
        A.e('s_mov_b64 exec, -1')
    if not OPT['PG'] & 4 or OPT['PGT'] != k:
        return
    for w in range(3):
        A.e('s_cmp_eq_u32 %s, %d' % (sr(sW), w))
        A.e('s_cbranch_scc1 L_stub_%d' % (w + 1))
    A.e('s_branch L_stub_4')
    A.label('L_back')

def S(fmt, *a):
    e(fmt % tuple(sr(x) if isinstance(x, int) else x for x in a))

def retry_loop(name, issue, check, slot, first=True, after=None):
    lo, ld = newlab(name + 'l'), newlab(name + 'd')
    if first:
        check()
    if PROF:
        S('s_mov_b32 %s, 0', sCNT)
    e('s_cbranch_vccz %s' % ld)
    S('s_mov_b32 %s, 0', sCNT)
    A.label(lo)
    sv = list(A.vm)
    issue()
    e('s_waitcnt vmcnt(0)')
    if after:
        after()
    A.vm = sv
    check()
    S('s_add_u32 %s, %s, 1', sCNT, sCNT)
    e('s_cbranch_vccz %s' % ld)
    S('s_cmp_le_u32 %s, 0x20000', sCNT)
    e('s_cbranch_scc1 %s' % lo)
    A.label(ld)
    count(slot)

def one_lane_store(vt, soff, tag, opt=False, sc=' sc1'):
    e('v_mov_b32 %s, %s' % (vr(vt), sr(sTAG)))
    e('v_mov_b32 %s, 0' % vr(vt + 1))
    e('s_mov_b64 exec, 1')
    A.vmem('buffer_store_dword %s, %s, %s, %s offen%s' % (vr(vt), vr(vt + 1), sr(dWS, 4), soff, sc), tag, opt=opt)
    e('s_mov_b64 exec, -1')
def flag(off, tag):
    S('s_add_u32 %s, %s, %s', sT0, sFL, hex(off))
    e('s_mov_b32 exec_hi, 0')
    A.vmem('buffer_store_dword %s, %s, %s, %s offen sc1' % (vr(vTAG), vr(vTM), sr(dWS, 4), sr(sT0)), tag)
    e('s_mov_b32 exec_hi, -1')

class Q:
    def __init__(self):
        self.q = []
        self.open = set([None])
    def add(self, ops, gate=None):
        self.q += [(c, f, gate) for (c, f) in ops]
    def ready(self):
        return bool(self.q) and self.q[0][2] in self.open
    def cost(self):
        return self.q[0][0]
    def pop1(self):
        self.q.pop(0)[1]()
    def popD(self, n=1):
        while n > 0 and self.ready():
            if self.cost() == 'D':
                n -= 1
            self.pop1()
    def pop(self, n):
        while n > 0 and self.ready():
            c = self.cost()
            n -= 2 if c == 'D' else c
            self.pop1()
    def flush(self):
        while self.q:
            assert self.ready(), self.q[0][2]
            self.pop1()

class Ops(list):
    def v(self, s, c=1):
        self.append((c, lambda: e(s)))
    def s(self, fmt, *a):
        self.append((1, lambda: S(fmt, *a)))
    def f(self, fn, c=1):
        self.append((c, fn))

DQ = Q()
FQ = Q()
ACC, CS, XF, AF, ONE = 0, 80, 100, 132, 152
XA, BA, WA = 156, 160, 164
vX, vB, vW1, vW2 = 168, 170, 172, 175
B1, ST, SS, TMP = 180, 188, 204, 212
BU = TMP + 4
vTB, vTI, vTC, vTG, vSXW, vSXR, vCW, vCR, vPF, vTM, vXO, vGO = range(TMP + 16, TMP + 28)
vPA = TMP + 28
vSA, vTRL, vTAG = 177, 178, 179
vWT, vCT, vPW, vCO = 244, 245, 246, 247
sPM = 40
U0, U1 = 186, 187
SR = ST

e('s_cmp_ge_u32 s2, 256')
e('s_cbranch_scc1 L_end')
if PROF:
    e('v_mov_b32 %s, 0' % vr(vSTAMP))
    stamp('rt0', True)
    stamp('t0')
e('s_load_dwordx16 s[16:31], s[0:1], 0')
e('s_load_dwordx16 s[32:47], s[0:1], 64')
e('s_load_dwordx2 s[48:49], s[0:1], 128')
e('s_getpc_b64 %s' % sr(sPC, 2))
A.label('L_pc')
e('v_and_b32 %s, 63, v0' % vr(vLANE))
e('v_lshrrev_b32 v1, 6, v0')
e('v_lshlrev_b32 %s, 4, %s' % (vr(vL16), vr(vLANE)))
e('v_readfirstlane_b32 %s, v1' % sr(sW))
e('v_lshlrev_b32 v2, 7, v0')
e('v_min_u32 v2, L_end-L_pc, v2')
lab = newlab('npf')
e('s_cmp_ge_u32 s2, 16')
e('s_cbranch_scc1 %s' % lab)
A.vmem('global_load_dword %s, v2, %s' % (vr(vSCR), sr(sPC, 2)), 'pf', opt=True)
A.label(lab)
S('s_and_b32 %s, s2, 1', sKH)
S('s_lshr_b32 %s, s2, 6', sRBL)
S('s_bfe_u32 %s, s2, 0x30003', sC)
S('s_bfe_u32 s3, s2, 0x20001')
S('s_lshl2_add_u32 %s, s3, %s', sRB, sRBL)
S('s_lshl3_add_u32 %s, %s, %s', sJ, sKH, sC)
S('s_lshl2_add_u32 %s, s2, %s', sGW, sW)
if OPT['ROT'] == 0:
    S('s_mov_b32 %s, 0x76543210', sPERM)
elif OPT['ROT'] == 9:
    PT = [[0, 4, 1, 2, 3, 5, 6, 7], [1, 2, 5, 3, 0, 4, 6, 7], [2, 3, 0, 6, 1, 4, 5, 7], [3, 0, 1, 2, 7, 4, 5, 6]]
    PT = [hex(sum(x << (4 * i) for i, x in enumerate(p))) for p in PT]
    S('s_add_u32 %s, %s, %s', sT0, sRBL, sC)
    S('s_mov_b32 %s, %s', sPERM, PT[0])
    S('s_mov_b32 %s, %s', sT1, PT[2])
    S('s_bitcmp1_b32 %s, 0', sT0)
    S('s_cselect_b32 %s, %s, %s', sPERM, PT[1], sPERM)
    S('s_cselect_b32 %s, %s, %s', sT1, PT[3], sT1)
    S('s_bitcmp1_b32 %s, 1', sT0)
    S('s_cselect_b32 %s, %s, %s', sPERM, sT1, sPERM)
    S('s_add_u32 %s, s3, %s', sT1, sKH)
    S('s_bitcmp1_b32 %s, 0', sT1)
    S('s_cselect_b32 %s, 0x44444444, 0', sT1)
    S('s_xor_b32 %s, %s, %s', sPERM, sPERM, sT1)
elif OPT['ROT'] == 10:
    PT = [[int(c) for c in p] for p in os.environ.get('PT', '01423567,02136457,10253467,13024756').split(',')]
    assert all(sorted(p) == list(range(8)) for p in PT)
    PT = [hex(sum(x << (4 * i) for i, x in enumerate(p))) for p in PT]
    S('s_add_u32 %s, %s, %s', sT0, sRBL, sC)
    S('s_mov_b32 %s, %s', sPERM, PT[0])
    S('s_mov_b32 %s, %s', sT1, PT[2])
    S('s_bitcmp1_b32 %s, 0', sT0)
    S('s_cselect_b32 %s, %s, %s', sPERM, PT[1], sPERM)
    S('s_cselect_b32 %s, %s, %s', sT1, PT[3], sT1)
    S('s_bitcmp1_b32 %s, 1', sT0)
    S('s_cselect_b32 %s, %s, %s', sPERM, sT1, sPERM)
    S('s_lshl1_add_u32 %s, %s, s3', sT1, sKH)
    S('s_and_b32 %s, %s, 3', sT1, sT1)
    S('s_mul_i32 %s, %s, 0x22222222', sT1, sT1)
    S('s_xor_b32 %s, %s, %s', sPERM, sPERM, sT1)
elif OPT['ROT'] == 8:
    S('s_lshl1_add_u32 %s, %s, %s', sT0, sRBL, sC)
    S('s_add_u32 %s, %s, s3', sT0, sT0)
    S('s_and_b32 %s, %s, 7', sT0, sT0)
    S('s_mul_i32 %s, %s, 0x11111111', sT0, sT0)
    S('s_add_u32 %s, %s, 0x76543210', sT0, sT0)
    S('s_and_b32 %s, %s, 0x77777777', sPERM, sT0)
else:
    S('s_add_u32 %s, %s, %s', sT0, sRBL, sC)
    S('s_and_b32 %s, %s, 3', sT0, sT0)
    S('s_mul_i32 %s, %s, 0x11111111', sT0, sT0)
    S('s_add_u32 %s, %s, 0x32103210', sT0, sT0)
    S('s_and_b32 %s, %s, 0x33333333', sT0, sT0)
    if OPT['ROT'] == 4:
        S('s_add_u32 %s, s3, %s', sT1, sKH)
    elif OPT['ROT'] == 6:
        S('s_mov_b32 %s, 0', sT1)
    else:
        S('s_lshr_b32 %s, %s, 2', sT1, sC)
        S('s_add_u32 %s, %s, s3', sT1, sT1)
    S('s_bitcmp0_b32 %s, 0', sT1)
    S('s_mov_b32 %s, 0x4444', sT1)
    S('s_cselect_b32 %s, 0x44440000, %s', sT1, sT1)
    S('s_or_b32 %s, %s, %s', sPERM, sT0, sT1)
e('v_lshrrev_b32 %s, 5, %s' % (vr(vHI5), vr(vLANE)))
e('v_and_b32 %s, 31, %s' % (vr(vLO5), vr(vLANE)))
e('v_lshrrev_b32 %s, 4, %s' % (vr(vG), vr(vLANE)))
e('v_and_b32 %s, 15, %s' % (vr(vLO4), vr(vLANE)))
S('s_lshr_b32 %s, %s, 1', sTH, sW)
S('s_and_b32 %s, %s, 1', sPH, sW)
e('v_and_b32 v1, 7, %s' % vr(vLANE))
e('v_lshrrev_b32 v3, 3, %s' % vr(vLANE))
e('v_xor_b32 v4, v1, %s' % vr(vG))
e('v_lshlrev_b32 v4, 4, v4')
S('s_lshl1_add_u32 %s, %s, %s', sT0, sRB, sTH)
S('s_lshl_b32 %s, %s, 6', sT0, sT0)
S('s_add_u32 %s, %s, %s', sT0, sT0, sPH)
S('s_lshl_b32 %s, %s, 10', sT0, sT0)
e('v_lshl_add_u32 v5, v3, 12, v4')
e('v_add_u32 %s, %s, v5' % (vr(vX), sr(sT0)))
e('v_xor_b32 %s, 64, %s' % (vr(vX + 1), vr(vX)))
e('v_add_u32 %s, %d, %s' % (vr(vX + 1), 31 * 1024, vr(vX + 1)))
S('s_lshl1_add_u32 %s, %s, %s', sCG, sJ, sTH)
S('s_lshl_b32 %s, %s, 14', sCG, sCG)
e('v_lshl_add_u32 v5, v3, 10, v4')
e('v_add_u32 %s, %s, v5' % (vr(vB), sr(sCG)))
e('v_xor_b32 %s, 64, %s' % (vr(vB + 1), vr(vB)))
e('v_add_u32 %s, %d, %s' % (vr(vB + 1), 7 * 1024, vr(vB + 1)))
S('s_lshr_b32 %s, %s, 2', sT0, sJ)
S('s_mul_i32 %s, %s, 22', sT0, sT0)
S('s_and_b32 %s, %s, 3', sT1, sJ)
S('s_mul_i32 %s, %s, 6', sT1, sT1)
S('s_add_u32 %s, %s, %s', sJT, sT0, sT1)
S('s_lshl_b32 %s, %s, 5', sSW, sJT)
S('s_mul_i32 %s, %s, %s', sT0, sW, str(16 * 2752))
S('s_add_u32 %s, %s, %s', sSW, sSW, sT0)
S('s_movk_i32 %s, 5462', sT0)
S('s_movk_i32 %s, 2752', sT1)
for i in range(3):
    e('v_add_u32 v6, %d, %s' % (64 * i, vr(vLANE)))
    e('v_mul_u32_u24 v7, %s, v6' % sr(sT0))
    e('v_lshrrev_b32 v7, 16, v7')
    e('v_mul_u32_u24 v8, 12, v7')
    e('v_sub_u32 v6, v6, v8')
    e('v_lshrrev_b32 v8, 3, v7')
    e('v_lshlrev_b32 v8, 1, v8')
    e('v_xor_b32 v6, v6, v8')
    e('v_mul_u32_u24 v7, %s, v7' % sr(sT1))
    e('v_lshl_add_u32 v6, v6, 4, v7')
    e('v_add_u32 %s, %s, v6' % (vr(vW1 + i), sr(sSW)))
    if i < 2:
        S('s_sub_u32 %s, %s, 1024', sSW, sSW)
S('s_mul_i32 %s, %s, %s', sM0, sW, str(PIECE))
S('s_lshl_b32 %s, %s, 6', sT0, sJ)
e('v_lshl_add_u32 v9, %s, 1, %s' % (vr(vLO5), sr(sT0)))
e('v_mov_b32 v10, 0')
S('s_mov_b32 %s, 0x200000', dX + 2)
S('s_mov_b32 %s, 0x20000', dX + 3)
S('s_mov_b32 %s, 0x80000', dB + 2)
S('s_mov_b32 %s, 0x20000', dB + 3)
S('s_mov_b32 %s, %s', dW1 + 2, str(512 * 2752))
S('s_mov_b32 %s, 0x20000', dW1 + 3)
S('s_mov_b32 %s, %s', dWS + 2, hex(WS_SIZE))
S('s_mov_b32 %s, 0x20000', dWS + 3)
S('s_movk_i32 %s, 2752', dO + 2)
S('s_mov_b32 %s, 0x20000', dO + 3)
S('s_add_u32 %s, %s, %s', sT0, sJT, sPH)
S('s_lshl_b32 %s, %s, 5', sT0, sT0)
e('v_lshl_add_u32 v15, %s, 3, %s' % (vr(vG), sr(sT0)))
S('s_lshl_b32 %s, %s, 7', sT1, sC)
e('v_lshl_add_u32 v16, %s, 3, %s' % (vr(vLO4), sr(sT1)))

def stage_dma(v):
    slot = v & 3
    tag = 'st%d' % v
    ops = []
    sc = lambda fmt, *a: ops.append((1, lambda: S(fmt, *a)))
    dm = lambda txt: ops.append(('D', lambda: A.vmem(txt, tag)))
    sc('s_bfe_u32 %s, %s, %s', sSW, sPERM, '0x%x' % (4 * v + 0x30000))
    sc('s_add_u32 m0, %s, %s', sM0, str(slot * SLOT + 4096))
    sc('s_lshl_b32 %s, %s, 7', sSX, sSW)
    for i in range(2):
        dm('buffer_load_dwordx4 %s, %s, %s offen offset:%d%s lds' % (vr(vB + i), sr(dB, 4), sr(sSX), i * 1024, ' nt' if v <= OPT['NTW'] else ''))
    sc('s_add_u32 m0, %s, %s', sM0, str(slot * SLOT + 6144))
    sc('s_mul_i32 %s, %s, %s', sSW, sSW, str(64 * 2752))
    for i in range(3):
        dm('buffer_load_dwordx4 %s, %s, %s offen offset:%d%s lds' % (vr(vW1 + i), sr(dW1, 4), sr(sSW), i * 1024, ' nt' if v <= OPT['NTW'] else ''))
    sc('s_add_u32 m0, %s, %s', sM0, str(slot * SLOT))
    for i in range(4):
        dm('buffer_load_dwordx4 %s, %s, %s offen offset:%d%s lds' % (vr(vX + (i & 1)), sr(dX, 4), sr(sSX), i * 1024, ' nt' if v <= OPT['NTX'] else ''))
    return ops

S('s_lshl1_add_u32 %s, %s, %s', sT0, sRB, sKH)
S('s_and_b32 %s, %s, 1', sT1, sJ)
S('s_lshl1_add_u32 %s, %s, %s', sT0, sT0, sT1)
S('s_lshl2_add_u32 %s, %s, %s', sT0, sT0, sW)
S('s_bfe_u32 %s, %s, 0x20001', sT1, sJ)
S('s_lshl3_add_u32 %s, %s, %s', sT0, sT0, sT1)
S('s_lshl_b32 %s, %s, 10', sM8, sT0)
e('v_lshlrev_b32 %s, 12, %s' % (vr(vSA), vr(vHI5)))
e('v_lshl_add_u32 %s, %s, 4, %s' % (vr(vSA), vr(vLO5), vr(vSA)))
d0 = stage_dma(0)
for (c, f) in d0[:3]:
    f()
P = Ops()
P.v('v_lshrrev_b32 v1, 1, %s' % vr(vLO4))
P.v('v_xor_b32 v1, v1, %s' % vr(vG))
P.v('v_lshlrev_b32 v1, 4, v1')
P.v('v_lshl_add_u32 v1, %s, 7, v1' % vr(vLO4))
P.s('s_lshl_b32 %s, %s, 6', sT0, sTH)
P.v('v_xor_b32 v1, %s, v1' % sr(sT0))
P.v('v_xor_b32 v2, 64, v1')
P.s('s_mul_i32 %s, %s, %s', sT0, sTH, str(2 * PIECE))
P.s('s_mul_i32 %s, %s, %s', sT1, sPH, str(2 * PIECE))
P.s('s_add_u32 %s, %s, 4096', sT1, sT1)
for k in range(2):
    P.v('v_add_u32 %s, %s, v%d' % (vr(XA + 2 * k), sr(sT0), 1 + k))
    P.v('v_add_u32 %s, %s, v%d' % (vr(BA + 2 * k), sr(sT1), 1 + k))
    P.v('v_add_u32 %s, %d, %s' % (vr(XA + 2 * k + 1), 2 * SLOT, vr(XA + 2 * k)))
    P.v('v_add_u32 %s, %d, %s' % (vr(BA + 2 * k + 1), 2 * SLOT, vr(BA + 2 * k)))
P.v('v_bfe_u32 v1, %s, 2, 2' % vr(vLANE))
P.v('v_bfe_u32 v2, %s, 4, 1' % vr(vLANE))
P.v('v_lshl_add_u32 v3, v2, 3, v1')
P.v('v_mul_u32_u24 v3, 192, v3')
P.v('v_xor_b32 v4, %s, v2' % sr(sPH))
P.v('v_lshl_add_u32 v3, v4, 5, v3')
P.v('v_and_b32 v4, 3, %s' % vr(vLANE))
P.v('v_lshl_add_u32 v3, v4, 3, v3')
P.s('s_movk_i32 %s, %s', sT1, str(PIECE))
P.v('v_mad_u32_u24 v3, %s, %s, v3' % (vr(vHI5), sr(sT1)))
P.s('s_add_u32 %s, %s, 6144', sT1, sT0)
P.s('s_sub_u32 %s, %s, %s', sT0, str(2 * PIECE + 6144), sT0)
P.v('v_add_u32 %s, %s, v3' % (vr(WA), sr(sT1)))
P.v('v_add_u32 %s, %s, v3' % (vr(WA + 2), sr(sT0)))
P.v('v_add_u32 %s, %d, %s' % (vr(WA + 1), 2 * SLOT, vr(WA)))
P.v('v_add_u32 %s, %d, %s' % (vr(WA + 3), 2 * SLOT, vr(WA + 2)))
P.v('v_and_b32 v5, 7, %s' % vr(vLANE))
P.v('v_lshlrev_b32 v6, 2, v2')
P.v('v_xor_b32 v5, v5, v6')
P.v('v_lshlrev_b32 v5, 4, v5')
P.v('v_lshrrev_b32 v6, 3, %s' % vr(vLANE))
P.v('v_lshl_add_u32 %s, v6, 10, v5' % vr(vW2))
P.v('v_add_u32 %s, %d, %s' % (vr(vW2 + 1), 7 * 1024, vr(vW2)))
P.v('v_lshl_add_u32 v5, %s, 3, v1' % vr(vHI5))
P.v('v_lshlrev_b32 v5, 7, v5')
P.v('v_lshrrev_b32 v6, 1, v1')
P.v('v_lshl_add_u32 v5, v6, 6, v5')
P.v('v_lshl_add_u32 v5, v2, 5, v5')
P.v('v_lshl_add_u32 %s, v4, 3, v5' % vr(vTRL))
P.v('v_mov_b32 %s, 0x3f803f80' % vr(ONE))
for q in range(5):
    P.v('v_cmp_eq_u32 %s, %d, %s' % (sr(sMSK[q & 3], 2) if q < 4 else 'vcc', q, vr(vLO4)))
for q in range(5):
    P.v('v_cndmask_b32 %s, 0, %s, %s' % (vr(CS + 4 * q), vr(ONE), sr(sMSK[q & 3], 2) if q < 4 else 'vcc'))
for q in range(5):
    P.v('v_mov_b32 %s, %s' % (vr(CS + 4 * q + 1), vr(CS + 4 * q)))
for q in range(5):
    P.v('v_mov_b64 %s, %s' % (vr(CS + 4 * q + 2, 2), vr(CS + 4 * q, 2)))
P.s('s_lshl2_add_u32 %s, %s, %s', sT1, sKH, sW)
P.s('s_lshl_b32 %s, %s, 9', sCO, sC)
P.s('s_add_u32 %s, %s, %s', sCO, sCO, sT1)
P.s('s_lshl_b32 %s, %s, 7', sCO, sCO)
P.s('s_lshr_b32 %s, %s, 1', sT0, sT1)
P.s('s_mul_i32 %s, %s, 22', sT0, sT0)
P.s('s_add_u32 %s, %s, %s', sT0, sT0, sPH)
P.s('s_lshl_b32 %s, %s, 7', sWS, sT0)
P.s('s_add_u32 %s, %s, %s', sWS, sWS, sC)
P.s('s_lshl_b32 %s, %s, 7', sWS, sWS)
P.v('v_lshlrev_b32 %s, 10, %s' % (vr(vCT), vr(vLANE)))
P.v('v_lshrrev_b32 %s, 2, %s' % (vr(U0), vr(vLANE)))
P.v('v_mad_u32_u24 %s, v4, 3, %s' % (vr(U0), vr(U0)))
P.s('s_lshl2_add_u32 %s, %s, s3', sU0, sRBL)
P.s('s_lshl_b32 %s, %s, 10', sT1, sU0)
P.v('v_lshl_add_u32 %s, %s, 15, %s' % (vr(vPW), vr(U0), sr(sT1)))
P.s('s_lshl_b32 %s, %s, 2', sU0, sU0)
P.s('s_mov_b32 %s, %s', dW2 + 2, str(1376 * 1024))
P.s('s_mov_b32 %s, 0x20000', dW2 + 3)
P.s('s_mul_i32 %s, %s, %s', sME, sTH, str(SLOT))
P.s('s_lshl_b32 %s, %s, 11', sT0, sPH)
P.s('s_add_u32 %s, %s, %s', sME, sME, sT0)
P.s('s_add_u32 %s, %s, 32768', sME, sME)
P.s('s_lshl_b32 %s, %s, 6', sT0, sPH)
P.s('s_add_u32 %s, %s, %s', sT0, sT0, str(TAB))
P.s('s_movk_i32 %s, %s', sT1, str(TROW))
P.v('v_lshl_add_u32 %s, %s, 4, %s' % (vr(vTB), vr(vG), sr(sT0)))
P.v('v_lshl_add_u32 %s, %s, 2, %s' % (vr(vTC), vr(vLO4), sr(sT0)))
P.v('v_mad_u32_u24 %s, %s, %s, %s' % (vr(vTI), vr(vLO4), sr(sT1), vr(vTB)))
P.v('v_min_u32 %s, 1, %s' % (vr(U0), vr(vG)))
P.v('v_lshl_add_u32 %s, %s, 4, %s' % (vr(U0), vr(U0), vr(vG)))
P.v('v_mad_u32_u24 %s, %s, %s, %s' % (vr(vTG), vr(U0), sr(sT1), vr(vTC)))
P.s('s_mul_i32 %s, %s, 320', sT0, sW)
P.s('s_add_u32 %s, %s, %s', sT0, sT0, str(CSX))
P.v('v_lshl_add_u32 %s, %s, 4, %s' % (vr(vCO), vr(vG), sr(sT0)))
P.v('v_lshl_add_u32 %s, %s, 6, %s' % (vr(vCW), vr(vLO4), vr(vCO)))
P.s('s_xor_b32 %s, %s, 2', sT0, sW)
P.s('s_mul_i32 %s, %s, 320', sT0, sT0)
P.s('s_add_u32 %s, %s, %s', sT0, sT0, str(CSX))
P.v('v_lshl_add_u32 %s, %s, 4, %s' % (vr(vCR), vr(vG), sr(sT0)))
P.v('v_lshl_add_u32 %s, %s, 2, %s' % (vr(vSXW), vr(vLO4), sr(sT0)))
P.s('s_mul_i32 %s, %s, 320', sT0, sPH)
P.s('s_add_u32 %s, %s, %s', sT0, sT0, str(CSX))
P.v('v_lshl_add_u32 %s, %s, 2, %s' % (vr(vSXR), vr(vLO4), sr(sT0)))
P.s('s_sub_u32 %s, %s, 1', sT0, sRB)
P.v('v_sub_u32 %s, %s, %s' % (vr(U0), sr(sT0), vr(vG)))
P.v('v_lshlrev_b32 %s, 4, %s' % (vr(U1), vr(vLO4)))
for i in range(4):
    P.v('v_subrev_u32 %s, %d, %s' % (vr(vPA + i), 4 * i, vr(U0)))
    P.v('v_cmp_le_i32 %s, 0, %s' % (sr(sMSK[i], 2), vr(vPA + i)))
    P.v('v_max_i32 %s, 0, %s' % (vr(vPA + i), vr(vPA + i)))
    P.v('v_lshl_add_u32 %s, %s, 8, %s' % (vr(vPA + i), vr(vPA + i), vr(U1)))
P.v('v_lshlrev_b32 %s, 2, %s' % (vr(vTM), vr(vLO5)))
P.s('s_lshl1_add_u32 %s, %s, %s', sT0, sRB, sKH)
P.s('s_lshl_b32 %s, %s, 6', sT0, sT0)
P.s('s_add_u32 %s, %s, %s', sT0, sT0, sW)
P.v('v_and_b32 %s, 1, %s' % (vr(vGO), vr(vG)))
P.v('v_lshl_add_u32 %s, %s, 2, %s' % (vr(vGO), vr(vGO), vr(vHI5)))
P.v('v_lshl_add_u32 %s, %s, 2, %s' % (vr(U0), vr(vGO), sr(sT0)))
P.v('v_lshl_add_u32 %s, %s, 10, v16' % (vr(vXO), vr(U0)))
P.v('v_lshlrev_b32 %s, 4, %s' % (vr(vGO), vr(vGO)))
print('argument-free prologue ops', len(P))
for (c, f) in P[:OPT['NPK']]:
    f()
S('s_cmp_eq_u32 %s, 0', sPH)
stamp('pre')
A.wait_lg0()
stamp('karg')
S('s_cselect_b64 %s, %s, %s', sr(dB, 2), sr(pBRE, 2), sr(pBIM, 2))
S('s_mov_b64 %s, %s', sr(dX, 2), sr(pX, 2))
S('s_mov_b64 %s, %s', sr(dWS, 2), sr(pWS, 2))
lre, lim, ldt, vEP = 11, 12, 13, 14
A.vmem('global_load_ushort %s, v9, %s' % (vr(lre), sr(pLRE, 2)), 'lam')
A.vmem('global_load_ushort %s, v9, %s' % (vr(lim), sr(pLIM, 2)), 'lam')
A.vmem('global_load_ushort %s, v9, %s' % (vr(ldt), sr(pLDT, 2)), 'lam')
A.vmem('buffer_load_dword %s, v10, %s, 0 offen sc1' % (vr(vEP), sr(dWS, 4)), 'lam')
S('s_mov_b64 %s, %s', sr(dW1, 2), sr(pW1, 2))
for i in range(2):
    A.vmem('buffer_load_dwordx4 %s, %s, %s, %s offen offset:%d' % (vr(SR + 4 * i, 4), vr(vSA), sr(dX, 4), sr(sM8), 512 * i), 'srow')
S('s_mov_b64 %s, %s', sr(dO, 2), sr(pB1, 2))
def b1_loads():
    o = Ops()
    for v in range(3):
        o.f(lambda v=v: A.vmem('buffer_load_dwordx2 %s, v15, %s, 0 offen offset:%d' % (vr(B1 + 2 * v, 2), sr(dO, 4), 64 * v), 'b1'), 2)
    o.f(lambda: A.vmem('global_load_dwordx2 a[248:249], v16, %s' % sr(pDSK, 2), 'b1'), 2)
    o.f(lambda: A.vmem('global_load_dwordx2 a[250:251], v16, %s' % sr(pB2, 2), 'b1'), 2)
    o.s('s_mov_b32 %s, 0x80000', dO + 2)
    o.f(lambda: FQ.open.add('b1'), 0)
    return o
if OPT['B1P'] == -1:
    for (c, f) in b1_loads():
        f()
if OPT['PB']:
    e('s_barrier')
DQ.add(d0[3:])
if OPT['B1P'] == 0:
    DQ.add(b1_loads())
DQ.popD(OPT['D0A'])
AUTO.update(on=True, any=True, int=OPT['PINT'], nxt=AUTO['t'])
S('s_mov_b64 %s, %s', sr(dW2, 2), sr(pW2, 2))
S('s_lshl_b32 %s, %s, 13', sM8, sW)
for (c, f) in P[OPT['NPK']:]:
    f()
S('s_lshl_b64 %s, 15, %s', sr(sPM, 2), sU0)
S('s_lshl1_add_u32 %s, %s, %s', sT1, sRB, sKH)
S('s_lshl2_add_u32 %s, %s, %s', sGR, sT1, sW)
S('s_lshl_b32 %s, %s, 8', sGR, sGR)
S('s_add_u32 %s, %s, %s', sGR, sGR, hex(WS_G + 8))
S('s_lshl1_add_u32 %s, %s, %s', sT0, sJ, sPH)
S('s_lshl_b32 %s, %s, 12', sT0, sT0)
S('s_add_u32 %s, %s, %s', sSG, sT0, hex(WS_SG))
S('s_lshl_b32 %s, %s, 8', sSGO, sRB)
S('s_add_u32 %s, %s, %s', sSGO, sSGO, sSG)
S('s_lshl1_add_u32 %s, %s, %s', sT1, sRB, sTH)
S('s_mul_i32 %s, %s, %s', sT1, sT1, str(HR))
S('s_add_u32 %s, %s, %s', sHS, sT0, sT1)
S('s_add_u32 %s, %s, %s', sHS, sHS, hex(WS_H + 88 * 2048))
S('s_add_u32 %s, %s, %s', sHM, sJT, sPH)
S('s_lshl_b32 %s, %s, 11', sHM, sHM)
S('s_add_u32 %s, %s, %s', sHM, sHM, sT1)
S('s_add_u32 %s, %s, %s', sHM, sHM, hex(WS_H))
S('s_lshl4_add_u32 %s, %s, %s', sFL, sRB, sJ)
S('s_lshl2_add_u32 %s, %s, %s', sFL, sFL, sW)
S('s_lshl_b32 %s, %s, 5', sF0, sFL)
S('s_add_u32 %s, %s, %s', sF0, sF0, hex(WS_G))
S('s_lshl_b32 %s, %s, 7', sFL, sFL)
S('s_add_u32 %s, %s, 1', sF1, sJ)
S('s_and_b32 %s, %s, 3', sF1, sF1)
def late_scalars():
    S('s_lshr_b32 %s, %s, 14', sT0, sWS)
    S('s_lshl_b32 %s, %s, 11', sT0, sT0)
    S('s_add_u32 %s, %s, %s', sT0, sT0, hex(WS_H))
    S('s_lshl2_add_u32 %s, %s, %s', sT2, sKH, sW)
    S('s_lshl_b32 %s, %s, 14', sT2, sT2)
    S('s_add_u32 %s, %s, %s', sT2, sT2, hex(WS_H + 88 * 2048))
    S('s_lshl1_add_u32 %s, %s, %s', sT1, sRB, sKH)
    S('s_mul_i32 %s, %s, %s', sT3, sT1, str(HR))
    S('s_add_u32 %s, %s, %s', sH2, sT3, sT0)
    S('s_add_u32 %s, %s, %s', sP2, sT3, sT2)
    S('s_xor_b32 %s, %s, 1', sT3, sT1)
    S('s_mul_i32 %s, %s, %s', sT3, sT3, str(HR))
    S('s_add_u32 %s, %s, %s', sH1, sT3, sT0)
    S('s_add_u32 %s, %s, %s', sP1, sT3, sT2)
    S('s_lshl1_add_u32 %s, %s, %s', sPA, sT1, sTH)
    S('s_lshl4_add_u32 %s, %s, %s', sPA, sPA, sPH)
    S('s_lshl_b32 %s, %s, 7', sPA, sPA)
    S('s_add_u32 %s, %s, %s', sPA, sPA, hex(WS_FA))
    S('s_lshl2_add_u32 %s, %s, %s', sPB, sT1, sW)
    S('s_lshl_b32 %s, %s, 10', sPB, sPB)
    S('s_add_u32 %s, %s, %s', sPB, sPB, hex(WS_FB))
    S('s_lshl_b32 %s, %s, 12', sPX, sGW)
    S('s_add_u32 %s, %s, %s', sPX, sPX, hex(WS_PX))
    e('v_and_b32 %s, 7, %s' % (vr(vPF), vr(vLANE)))
    e('v_lshlrev_b32 %s, 8, %s' % (vr(vPF), vr(vPF)))
stamp('prep')
print('DQ left after prep', len(DQ.q))
DQ.flush()
AUTO.update(on=False, any=False, int=OPT['EINT'])
def w_prefetch():
    o = Ops()
    def f():
        e('s_mov_b64 exec, 0x7ff')
        A.vmem('buffer_load_dword %s, %s, %s, %s offen' % (vr(vSCR), vr(vPW), sr(dW2, 4), sr(sWS)), 'touch')
        e('s_mov_b64 exec, %s' % sr(sPM, 2))
        for p in (pCRE, pCIM):
            S('s_mov_b64 %s, %s', sr(dO, 2), sr(p, 2))
            A.vmem('buffer_load_dword %s, %s, %s, %s offen' % (vr(vSCR), vr(vCT), sr(dO, 4), sr(sCO)), 'touch')
        e('s_mov_b64 exec, -1')
    o.f(f, 8)
    return o
if OPT['WPF'] == -2:
    w_prefetch()[0][1]()
stamp('d0')
touch_pages(1)
A.wait_vm('lam')
stamp('lam')
LOG2E = math.log2(math.e)
e('v_readfirstlane_b32 %s, %s' % (sr(sTAG), vr(vEP)))
for r in (lre, lim, ldt):
    e('v_lshlrev_b32 %s, 16, %s' % (vr(r), vr(r)))
e('v_mul_f32 %s, %s, %s' % (vr(ldt), f2u(LOG2E), vr(ldt)))
e('v_exp_f32 %s, %s' % (vr(ldt), vr(ldt)))
S('s_add_u32 %s, %s, 1', sTAG, sTAG)
e('v_add_u32 %s, 1, %s' % (vr(vTAG), vr(vEP)))
S('s_lshl_b32 %s, %s, 1', sT0, sW)
e('v_add_u32 v1, %s, %s' % (sr(sT0), vr(vHI5)))
e('v_cvt_pk_bf16_f32 %s, %s, %s' % (vr(ldt), vr(ldt), vr(ldt)))
e('v_cvt_f32_u32 v2, v1')
e('v_lshlrev_b32 %s, 16, %s' % (vr(ldt), vr(ldt)))
e('v_cmp_lt_u32 vcc, 4, v1')
e('v_mul_u32_u24 v3, %d, v1' % TROW)
e('v_mul_f32 v5, %s, %s' % (vr(ldt), vr(lre)))
e('v_mul_f32 v6, %s, %s' % (vr(ldt), vr(lim)))
e('v_lshl_add_u32 v3, %s, 2, v3' % vr(vLO5))
e('v_mul_f32 v5, %s, v5' % f2u(LOG2E))
e('v_mul_f32 v6, 0.15915494, v6')
e('v_add_u32 v3, %d, v3' % TAB)
e('v_mul_f32 v20, 4.0, v2')
e('v_add_f32 v21, %s, v20' % f2u(32.0))
e('v_mul_f32 v22, %s, v2' % f2u(128.0))
e('v_max_f32 v22, %s, v22' % f2u(64.0))
e('v_add_f32 v23, -4.0, v2')
e('v_cndmask_b32 v22, v22, v23, vcc')
for r in range(3):
    e('v_mul_f32 v%d, v%d, v5' % (24 + r, 20 + r))
    e('v_mul_f32 v%d, v%d, v6' % (28 + r, 20 + r))
for r in range(3):
    e('v_exp_f32 v%d, v%d' % (24 + r, 24 + r))
    e('v_rndne_f32 v%d, v%d' % (20 + r, 28 + r))
for r in range(3):
    e('v_sub_f32 v%d, v%d, v%d' % (28 + r, 28 + r, 20 + r))
for r in range(3):
    e('v_cos_f32 v%d, v%d' % (20 + r, 28 + r))
    e('v_sin_f32 v%d, v%d' % (28 + r, 28 + r))
for r in range(3):
    e('v_mul_f32 v%d, v%d, v%d' % (20 + r, 20 + r, 24 + r))
    e('v_mul_f32 v%d, v%d, v%d' % (28 + r, 28 + r, 24 + r))
for r in range(3):
    A.ds('ds_write_b32 v3, v%d offset:%d' % (20 + r, 8 * r * TROW), 'tab')
    A.ds('ds_write_b32 v3, v%d offset:%d' % (28 + r, 8 * r * TROW + 128), 'tab')
lab = newlab('ncf')
S('s_cmp_lg_u32 %s, 2', sW)
e('s_cbranch_scc1 %s' % lab)
e('v_mul_f32 v24, %s, %s' % (vr(lre), vr(lre)))
e('v_fma_f32 v24, %s, %s, v24' % (vr(lim), vr(lim)))
e('v_rcp_f32 v24, v24')
e('v_add_f32 v25, -1.0, v22')
e('v_mul_f32 v26, v25, %s' % vr(lre))
e('v_mul_f32 v27, v30, %s' % vr(lre))
e('v_add_f32 v24, v24, v24')
e('v_fma_f32 v26, v30, %s, v26' % vr(lim))
e('v_fma_f32 v27, -v25, %s, v27' % vr(lim))
e('v_mul_f32 v26, v26, v24')
e('v_mul_f32 v27, v27, v24')
e('s_mov_b32 exec_lo, 0')
e('ds_write_b32 v3, v26 offset:%d' % (19 * TROW))
e('ds_write_b32 v3, v27 offset:%d' % (19 * TROW + 128))
e('s_mov_b32 exec_lo, -1')
A.label(lab)
stamp('tab')
R_L64, R_L512, R_L1, R_L2, R_L3, R_CF = 16, 20, 21, 22, 23, 24

def stat_compute_ops():
    o = Ops()
    t = SR + 8
    o.f(lambda: A.wait_vm('srow'))
    o.v('v_dot2_f32_bf16 v%d, v%d, v%d, 0' % (t, SR, ONE), 2)
    o.v('v_dot2_f32_bf16 v%d, v%d, v%d, 0' % (t + 1, SR, SR), 2)
    for i in range(1, 8):
        o.v('v_dot2_f32_bf16 v%d, v%d, v%d, v%d' % (t, SR + i, ONE, t), 2)
        o.v('v_dot2_f32_bf16 v%d, v%d, v%d, v%d' % (t + 1, SR + i, SR + i, t + 1), 2)
    for sh in (1, 2, 4, 8):
        for r in (t, t + 1):
            o.v('v_add_f32_dpp v%d, v%d, v%d row_shr:%d row_mask:0xf bank_mask:0xf bound_ctrl:0' % (r, r, r, sh))
    for r in (t, t + 1):
        o.v('v_add_f32_dpp v%d, v%d, v%d row_bcast:15 row_mask:0xa bank_mask:0xf' % (r, r, r))
    mean, var, sb, rs, m2, v2_, mb = t, t + 1, t + 2, t + 3, t + 8, t + 9, t + 10
    g0 = t + 4
    def rnd(d, s):
        o.v('v_cvt_pk_bf16_f32 v%d, v%d, v%d' % (d, s, s))
        o.v('v_lshlrev_b32 v%d, 16, v%d' % (d, d))
    o.v('v_mul_f32 v%d, %s, v%d' % (mean, f2u(1.0 / 512), mean))
    o.v('v_mul_f32 v%d, %s, v%d' % (var, f2u(1.0 / 512), var))
    o.v('v_fma_f32 v%d, -v%d, v%d, v%d' % (var, mean, mean, var))
    o.v('v_max_f32 v%d, 0, v%d' % (var, var))
    rnd(mb, mean)
    rnd(sb, var)
    o.v('v_add_f32 v%d, %s, v%d' % (sb, f2u(1e-5), sb))
    rnd(sb, sb)
    o.v('v_sqrt_f32 v%d, v%d' % (sb, sb), 2)
    o.v('v_sub_f32 v%d, v%d, v%d' % (m2, mean, mb))
    rnd(sb, sb)
    o.v('v_rcp_f32 v%d, v%d' % (rs, sb), 2)
    o.v('v_cvt_pk_bf16_f32 v%d, v%d, v%d' % (g0 + 2, mb, sb))
    o.v('v_mul_f32 v%d, v%d, v%d' % (m2, m2, rs))
    o.v('v_mul_f32 v%d, v%d, v%d' % (v2_, var, rs))
    rnd(m2, m2)
    o.v('v_mul_f32 v%d, v%d, v%d' % (v2_, v2_, rs))
    o.v('v_fma_f32 v%d, v%d, v%d, v%d' % (g0, m2, sb, mb))
    rnd(v2_, v2_)
    o.v('v_add_f32 v%d, %s, v%d' % (v2_, f2u(1e-5), v2_))
    rnd(v2_, v2_)
    o.v('v_sqrt_f32 v%d, v%d' % (v2_, v2_), 2)
    o.v('v_mov_b32 v%d, %s' % (g0 + 3, sr(sTAG)))
    rnd(v2_, v2_)
    o.v('v_mul_f32 v%d, v%d, v%d' % (g0 + 1, v2_, sb))
    o.s('s_lshl_b32 %s, %s, 5', sT0, sW)
    o.s('s_add_u32 %s, %s, %s', sT0, sT0, str(CSX))
    o.v('v_lshl_add_u32 v%d, %s, 4, %s' % (t, vr(vHI5), sr(sT0)))
    o.v('v_add_u32 v%d, %d, %s' % (SR, CSX, vr(vL16)))
    o.v('s_mov_b32 exec_lo, 0x80000000')
    o.v('s_mov_b32 exec_hi, 0x80000000')
    o.f(lambda: A.ds('ds_write_b128 v%d, %s offset:%d' % (t, vr(g0, 4), 0), 'gw'))
    o.v('s_mov_b64 exec, -1')
    o.f(lambda: stamp('gs'))
    o.s('s_lshl1_add_u32 %s, %s, %s', sD0, sRB, sTH)
    o.s('s_lshl_b32 %s, %s, 10', sD0, sD0)
    o.s('s_add_u32 %s, %s, %s', sD0, sD0, hex(WS_G))
    o.v('v_lshlrev_b32 %s, 4, %s' % (vr(vSA), vr(vLO4)))
    return o
if OPT['WPF'] == -1:
    w_prefetch()[0][1]()
DQ.add(stage_dma(1))
DQ.popD(OPT['D1A'])
for (c, f) in stat_compute_ops():
    f()
touch_pages(2)
if OPT['WPF'] == -3:
    w_prefetch()[0][1]()
DQ.popD(OPT['D1B'] - OPT['D1A'])
A.wait_lg0()
stamp('d1')
def b1_ops():
    o = Ops()
    o.f(lambda: A.wait_vm('b1'), 0)
    for v in range(3):
        for hh in range(2):
            o.v('v_lshlrev_b32 %s, 16, %s' % (vr(BU + 4 * v + 2 * hh), vr(B1 + 2 * v + hh)))
            o.v('v_and_b32 %s, 0xffff0000, %s' % (vr(BU + 4 * v + 2 * hh + 1), vr(B1 + 2 * v + hh)))
    return o
def stat_loads():
    return [('D' if OPT['STD'] else 2, lambda T=T: A.vmem('buffer_load_dwordx4 %s, %s, %s, %s offen offset:%d sc1' % (vr(ST + 4 * T, 4), vr(vSA), sr(dWS, 4), sr(sD0), 256 * T), 'stat')) for T in range(4)]
def stat_issue():
    for (c, f) in stat_loads():
        f()
def stat_check(e=e):
    t = TMP
    for T in range(4):
        e('v_xor_b32 v%d, %s, %s' % (t + T, sr(sTAG), vr(ST + 4 * T + 3)))
    e('v_or3_b32 v%d, v%d, v%d, v%d' % (t, t, t + 1, t + 2))
    e('v_or_b32 v%d, v%d, v%d' % (t, t, t + 3))
    e('v_cmp_ne_u32 vcc, 0, v%d' % t)
C0 = -2.0 * math.sqrt(2.0 / math.pi) * math.log2(math.e)
def stat_derive_ops():
    o = Ops()
    o.f(lambda: A.wait_vm('stat'))
    stat_check(o.v)
    o.f(lambda: retry_loop('st', stat_issue, stat_check, 58, False), 2)
    for T in range(4):
        b = ST + 4 * T
        o.v('v_rcp_f32 v%d, v%d' % (TMP + T, b + 1), 2)
        o.v('v_lshlrev_b32 v%d, 16, v%d' % (SS + 2 * T, b + 2))
        o.v('v_and_b32 v%d, 0xffff0000, v%d' % (SS + 2 * T + 1, b + 2))
    for T in range(4):
        b = ST + 4 * T
        o.v('v_rcp_f32 v%d, v%d' % (SS + 2 * T + 1, SS + 2 * T + 1), 2)
        o.v('v_mul_f32 v%d, %s, v%d' % (b + 2, f2u(C0), TMP + T))
        o.v('v_mul_f32 v%d, v%d, v%d' % (b + 3, TMP + T, TMP + T))
    for T in range(4):
        b = ST + 4 * T
        o.v('v_mul_f32 v%d, v%d, v%d' % (b + 3, b + 3, b + 2))
        o.v('v_mul_f32 v%d, %s, v%d' % (b + 3, f2u(0.044715), b + 3))
    return o

TOFF = [6 * (st & 3) + 2 * (st >> 2) for st in range(11)]
KS = [0]
def w_prefetch_cls(k):
    def f():
        lab = newlab('pf')
        if OPT['WCL'] == 4:
            S('s_cmp_lg_u32 %s, %s', sRBL, str(k))
        else:
            S('s_bitcmp%d_b32 %%s, 0' % (1 - k), sRBL)
        e('s_cbranch_scc1 %s' % lab)
        e('s_mov_b64 exec, 0x7ff')
        A.vmem('buffer_load_dword %s, %s, %s, %s offen' % (vr(vSCR), vr(vPW), sr(dW2, 4), sr(sWS)), 'touch', opt=True)
        e('s_mov_b64 exec, %s' % sr(sPM, 2))
        for p in (pCRE, pCIM):
            S('s_mov_b64 %s, %s', sr(dO, 2), sr(p, 2))
            A.vmem('buffer_load_dword %s, %s, %s, %s offen' % (vr(vSCR), vr(vCT), sr(dO, 4), sr(sCO)), 'touch', opt=True)
        e('s_mov_b64 exec, -1')
        A.label(lab)
    return [(4, f)]
def w2_step(st):
    o = Ops()
    odd = 0
    if st == 0:
        o.s('s_lshl_b32 %s, %s, 11', sSX, sW)
        o.s('s_add_u32 m0, %s, %s', sSX, str(PE))
    elif st <= 8:
        odd = (st - 1) & 1
        if not odd:
            o.s('s_add_u32 m0, %s, %s', sM8, str(((st - 1) // 4) * SLOT + ((st - 1) % 4) * 2048))
    else:
        o.s('s_add_u32 m0, %s, %s', sME, str((st - 9) * 2 * SLOT))
    o.s('s_add_u32 %s, %s, %s', sSW, sWS, str(TOFF[st] * 16384 - odd * 2048))
    for i in range(2):
        o.f(lambda i=i: A.vmem('buffer_load_dwordx4 %s, %s, %s offen offset:%d lds' % (vr(vW2 + i), sr(dW2, 4), sr(sSW), odd * 2048 + i * 1024), 'W'), 'D')
    return o
def c_job(part):
    o = Ops()
    o.s('s_mov_b64 %s, %s', sr(dB, 2), sr(pCIM if part else pCRE, 2))
    if part == 0:
        o.v('v_subrev_u32 %s, %s, %s' % (vr(vB), sr(sCG), vr(vB)))
        o.v('v_subrev_u32 %s, %s, %s' % (vr(vB + 1), sr(sCG), vr(vB + 1)))
    for k in range(4):
        odd = k & 1
        if not odd:
            o.s('s_add_u32 m0, %s, %s', sM8, str((2 + part) * SLOT + k * 2048))
        o.s('s_add_u32 %s, %s, %s', sSX, sCO, str(k * 16384 - odd * 2048))
        for i in range(2):
            o.f(lambda i=i, odd=odd: A.vmem('buffer_load_dwordx4 %s, %s, %s offen offset:%d lds' % (vr(vB + i), sr(dB, 4), sr(sSX), odd * 2048 + i * 1024), 'W'), 'D')
    return o
QR = [0, 2, 8, 10]
def resx_loads():
    o = Ops()
    for q in range(4):
        o.s('s_mov_b32 %s, %s', sSX, str(QR[q] * 4096))
        o.f(lambda q=q: A.vmem('buffer_load_dwordx2 %s, %s, %s, %s offen' % (ar(240 + 2 * q, 2), vr(vXO), sr(dX, 4), sr(sSX)), 'res'), 'D' if q & 1 else 2)
    return o
def resg_loads():
    return [(2, lambda q=q: A.vmem('buffer_load_dword %s, %s, %s, %s offen offset:%d sc1' % (ar(252 + q), vr(vGO), sr(dWS, 4), sr(sGR), QR[q] * 16), 'res')) for q in range(4)]

for v in range(1, 8):
    if v > 1:
        sd = stage_dma(v)
        if v == OPT['WPF'] and OPT['WPK']:
            sd, rest = sd[:-5], sd[-5:]
        DQ.add(sd, None if v < 4 else 'mid%d' % (v - 4))
    if OPT['WCL'] == 4 and OPT['WPF'] > 0 and 0 <= v - OPT['WPF'] < 4:
        DQ.add(w_prefetch_cls(v - OPT['WPF']))
    if OPT['WCL'] in (2, 3) and v - OPT['WPF'] in (0, OPT['WCL']):
        DQ.add(w_prefetch_cls(int(v > OPT['WPF'])))
    if v == OPT['WPF'] and not OPT['WCL']:
        DQ.add([(0, lambda: print('prefetch at step', KS[0]))])
        DQ.add(w_prefetch())
        if OPT['WPK']:
            DQ.add(rest)
    if v == OPT['STL']:
        DQ.add(stat_loads())
        DQ.add([(0, lambda: FQ.open.add('stl'))])
o = Ops()
o.s('s_mov_b64 %s, %s', sr(dO, 2), sr(pOUT, 2))
o.s('s_mov_b32 %s, 0x400000', dO + 2)
DQ.add(o)
DQ.add([(0, lambda: (print('st7 issued at step', KS[0]), OPT.update(DINT=OPT['WINT'])))])
DQ.add(w2_step(0), 'k%d' % OPT['WG0'])
for st in range(1, 10):
    DQ.add(w2_step(st), 'mid4' if st < 5 else 'mid5')
DQ.add(c_job(0), 'mid%d' % OPT['CJ0'])
DQ.add(resx_loads())
DQ.add(w2_step(10), 'mid7')
DQ.add(c_job(1), 'mid7')
FQ.add([(0, lambda: None)], 'b1')
FQ.add(b1_ops(), 'mid%d' % OPT['B1G'])
FQ.add([(0, lambda: None)], 'stl')
FQ.add(stat_derive_ops(), 'mid%d' % OPT['SDG'])

RQ = Q()
def rd_x(step, T):
    v, ks = step // 2, step % 2
    slot = v & 3
    return [(1, lambda: A.ds('ds_read_b128 %s, %s offset:%d' % (vr(XF + 16 * ks + 4 * T, 4), vr(XA + 2 * ks + (slot >> 1)), (slot & 1) * SLOT + (T & 1) * PIECE + (T >> 1) * 2048), 'x%d' % step))]
def rd_a(step, a):
    v, ks = step // 2, step % 2
    slot = v & 3
    if a < 2:
        return [(1, lambda: A.ds('ds_read_b128 %s, %s offset:%d' % (vr(AF + 4 * a, 4), vr(BA + 2 * ks + (slot >> 1)), (slot & 1) * SLOT + a * PIECE), 'a%d_%d' % (step, a)))]
    return [(1, lambda half=half: A.ds('ds_read_b64_tr_b16 %s, %s offset:%d' % (vr(AF + 4 * a + 2 * half, 2), vr(WA + 2 * ks + (slot >> 1)), (slot & 1) * SLOT + half * 768 + 64 * (a - 2)), 'a%d_%d' % (step, a))) for half in range(2)]

touch_pages(0)
stamp('tch')
page('st0')
A.wait_vm('st0')
stamp('st0')
e('s_barrier')
RQ.add(rd_a(0, 0))
for T in range(4):
    RQ.add(rd_x(0, T))
for a in range(1, 5):
    RQ.add(rd_a(0, a))
RQ.flush()
A.ds('ds_read_b128 %s, %s' % (vr(SR + 4, 4), vr(SR)), 'gr')
def g_store():
    A.wait_lg('gr')
    lab = newlab('gs')
    S('s_cmp_lg_u32 %s, 0', sW)
    e('s_cbranch_scc1 %s' % lab)
    e('s_mov_b64 exec, 0xff')
    A.vmem('buffer_store_dwordx4 %s, %s, %s, %s offen sc1' % (vr(SR + 4, 4), vr(vL16), sr(dWS, 4), sr(sF0)), 'gs', opt=True)
    e('s_mov_b64 exec, -1')
    A.label(lab)
clk = [0, 0]
def gap(budget, base):
    used = 0
    while used < budget:
        if RQ.ready():
            used += RQ.cost()
            RQ.pop1()
        elif DQ.ready() and (DQ.cost() != 'D' or (clk[0] >= clk[1] and used + OPT['DCOST'] <= max(budget, OPT['DCOST']))):
            if DQ.cost() == 'D':
                used += OPT['DCOST']
                clk[1] = max(clk[1], clk[0] - 2 * OPT['DINT']) + OPT['DINT']
            elif used + DQ.cost() > max(budget, DQ.cost()):
                break
            else:
                used += DQ.cost()
                if DQ.cost() >= 2:
                    clk[1] += OPT['SMP']
            DQ.pop1()
        elif FQ.ready() and used + FQ.cost() <= max(budget, FQ.cost()):
            used += FQ.cost()
            FQ.pop1()
        else:
            break
    clk[0] += max(base, 8 + 4 * used)

K0, K1, SA, SE = 116, 124, 136, 144
def tab_rd(dst, row, tag, addr=None):
    for part in range(2):
        A.ds('ds_read_b128 %s, %s offset:%d' % (vr(dst + 4 * part, 4), vr(vTB if addr is None else addr), row * TROW + part * 128), tag)
for step in range(16):
    v, ks = step // 2, step % 2
    gate = 'mid%d' % v if ks == 1 else None
    for a in range(5):
        KS[0] = step + a / 5
        DQ.open.add('k%d' % (5 * step + a))
        if ks == 1 and a == 2:
            for u in range(5):
                assert DSN.get('a%d_%d' % (step, u), 0) == (1 if u < 2 else 2), (step, u)
            if v == 7:
                assert DSN.get('csw', 0) == 1 and DSN.get('cso', 0) == 5
            page('aA' if v == OPT['PGA'] else 'a%d' % v)
            A.wait_lg0()
            stamp('a%d' % v)
            if v < 7:
                A.wait_vm('st%d' % (v + 1))
                if v in (1, 3, 6):
                    stamp('b%d' % v)
            if not OPT['X'] & 2:
                e('s_barrier')
            clk[0] += 40
            for q in (DQ, FQ, RQ):
                q.open.add('mid%d' % v)
            if v == 7:
                for q in range(5):
                    RQ.add([(1, lambda q=q: A.ds('ds_read_b128 %s, %s offset:%d' % (vr((XF + 4 * q) if q < 4 else AF, 4), vr(vCR), 64 * q), 'csr'))])
        if a in (0, 2, 4):
            assert DSN.get('x%d' % step, 0) == 4, (step, a)
            for u in (a, a + 1):
                assert u > 4 or DSN.get('a%d_%d' % (step, u), 0) == (1 if u < 2 else 2), (step, a, u)
            A.wait_lg(['x%d' % step] + ['a%d_%d' % (step, u) for u in (a, a + 1)])
        if OPT['XS'] and step in (14, 15) and a == 0:
            stamp('s%d' % step)
        if step == 0 and a == 4:
            g_store()
        ms = []
        if ks == 0:
            ms.append((ONE, CS + 4 * a))
        for T in range(4):
            ms.append((ACC + 16 * a + 4 * T, XF + 16 * ks + 4 * T))
        for i, (acc, b) in enumerate(ms):
            e('v_mfma_f32_16x16x32_bf16 %s, %s, %s, %s' % (vr(acc, 4), vr(AF + 4 * a, 4), vr(b, 4), '0' if step == 0 and (acc != ONE or a == 0) else vr(acc, 4)))
            last = i == len(ms) - 1
            if step < 15:
                if last:
                    RQ.add(rd_a(step + 1, a), gate)
                if (a == 0 and last) if ks == 1 else (a == 0 and i == 1):
                    for T in range(4):
                        RQ.add(rd_x(step + 1, T), gate)
            if step == 15 and a == 0 and i == 0:
                def csw():
                    e('s_mov_b32 exec_lo, 0x1f001f')
                    e('s_mov_b32 exec_hi, 0x1f001f')
                    A.ds('ds_write_b128 %s, %s' % (vr(vCW), vr(ONE, 4)), 'csw')
                    e('s_mov_b64 exec, -1')
                RQ.add([(2, csw)])
                for q in range(5):
                    RQ.add([(1, lambda q=q: A.ds('ds_read_b128 %s, %s offset:%d' % (vr(CS + 4 * q, 4), vr(vCO), 64 * q), 'cso'))])
            bud = OPT['BUD0'] if step < OPT['NB0'] else 2
            if last and a in (1, 3, 4) and not (ks == 1 and a == 3):
                bud = 0 if (ks == 1 and a == 1) else 1
            if bud == 0:
                while RQ.ready():
                    RQ.pop1()
            gap(bud, 16)
print('K loop estimate', clk[0], 'left DQ', len(DQ.q), 'FQ', len(FQ.q))
FQ.flush()
RQ.flush()
stamp('kloop')

DQ.add(resg_loads(), 'sx')
tab_rd(K0, R_CF, 'k0')
tab_rd(K1, R_L1, 'k1')
A.wait_lg('csr')
AUTO['nxt'] = AUTO['t'] + max(0, clk[1] - clk[0])
auto(True)
for q in range(5):
    src = (XF + 4 * q) if q < 4 else AF
    for h in (0, 2):
        e('v_pk_add_f32 %s, %s, %s' % (vr(CS + 4 * q + h, 2), vr(CS + 4 * q + h, 2), vr(src + h, 2)))
LOB = 'op_sel:[0,0,0] op_sel_hi:[1,0,1]'
HIB = 'op_sel:[0,1,0] op_sel_hi:[1,1,1]'
RR, II = ACC, ACC + 16
tq = XF
tZ, tO = tq, B1
def gelu_tile(v, tag, mid=None):
    for hh in range(2):
        prs = [(2 * hh + a, h) for a in range(2) for h in range(2)]
        accp = lambda T, h: ACC + 32 + 16 * v + 4 * T + 2 * h
        for (T, h) in prs:
            e('v_pk_fma_f32 %s, %s, %s, %s %s' % (vr(accp(T, h), 2), vr(BU + 4 * v + 2 * h, 2), vr(ST + 4 * T, 2), vr(accp(T, h), 2), HIB))
        for (T, h) in prs:
            e('v_pk_fma_f32 %s, %s, %s, %s %s %s' % (vr(accp(T, h), 2), vr(CS + 8 + 4 * v + 2 * h, 2), vr(ST + 4 * T, 2), vr(accp(T, h), 2), LOB, NEG1))
        for i, (T, h) in enumerate(prs):
            e('v_pk_mul_f32 %s, %s, %s' % (vr(tZ + 2 * i, 2), vr(accp(T, h), 2), vr(accp(T, h), 2)))
        for i, (T, h) in enumerate(prs):
            e('v_pk_fma_f32 %s, %s, %s, %s op_sel:[0,1,0] op_sel_hi:[1,1,0]' % (vr(tZ + 2 * i, 2), vr(tZ + 2 * i, 2), vr(ST + 4 * T + 2, 2), vr(ST + 4 * T + 2, 2)))
        for i, (T, h) in enumerate(prs):
            e('v_pk_mul_f32 %s, %s, %s' % (vr(tZ + 2 * i, 2), vr(tZ + 2 * i, 2), vr(accp(T, h), 2)))
        for i in range(8):
            e('v_exp_f32 %s, %s' % (vr(tZ + i), vr(tZ + i)))
        for i, (T, h) in enumerate(prs):
            e('v_pk_fma_f32 %s, %s, %s, %s op_sel:[0,1,1] op_sel_hi:[1,1,1]' % (vr(tZ + 2 * i, 2), vr(tZ + 2 * i, 2), vr(ST + 4 * T, 2), vr(ST + 4 * T, 2)))
        for i in range(8):
            e('v_rcp_f32 %s, %s' % (vr(tZ + i), vr(tZ + i)))
        for i, (T, h) in enumerate(prs):
            e('v_pk_mul_f32 %s, %s, %s' % (vr(tZ + 2 * i, 2), vr(tZ + 2 * i, 2), vr(accp(T, h), 2)))
        o = tO + 4 * hh
        for i in (0, 2, 1, 3):
            e('v_cvt_pk_bf16_f32 %s, %s, %s' % (vr(o + i), vr(tZ + 2 * i), vr(tZ + 2 * i + 1)))
        if mid:
            mid(hh)
        auto(False)
        e('v_permlane16_swap_b32 %s, %s' % (vr(o), vr(o + 2)))
        so = sHM
        if v:
            so = sU0
            if hh == 0:
                S('s_add_u32 %s, %s, %s', sU0, sHM, str(4096 * v))
        if v == 2:
            S('s_cmp_eq_u32 %s, 0', sF1)
        e('v_permlane16_swap_b32 %s, %s' % (vr(o + 1), vr(o + 3)))
        if v == 2:
            lab = newlab('skip')
            e('s_cbranch_scc1 %s' % lab)
        A.vmem('buffer_store_dwordx4 %s, %s, %s, %s offen offset:%d sc1' % (vr(o, 4), vr(vL16), sr(dWS, 4), sr(so), 1024 * hh), tag, opt=(v == 2))
        if v == 2:
            A.label(lab)
        auto(True)
for T in range(4):
    for part in range(2):
        for h in (0, 2):
            r = ACC + 16 * part + 4 * T + h
            e('v_pk_fma_f32 %s, %s, %s, %s %s %s' % (vr(r, 2), vr(CS + 4 * part + h, 2), vr(SS + 2 * T, 2), vr(r, 2), LOB, NEG1))
    if T == 0:
        A.wait_lg('k0')
    for q in (0, 2, 4, 6):
        e('v_pk_mul_f32 %s, %s, %s op_sel:[0,1] op_sel_hi:[1,1]' % (vr(tq + q, 2), vr(K0 + q, 2), vr(SS + 2 * T, 2)))
    if T == 3:
        tab_rd(K0, 1, 'k0')
    for h in (0, 2):
        e('v_pk_mul_f32 %s, %s, %s' % (vr(tq + 8 + h, 2), vr(RR + 4 * T + h, 2), vr(tq + 4 + h, 2)))
    for h in (0, 2):
        e('v_pk_mul_f32 %s, %s, %s' % (vr(RR + 4 * T + h, 2), vr(RR + 4 * T + h, 2), vr(tq + h, 2)))
    for h in (0, 2):
        e('v_pk_fma_f32 %s, %s, %s, %s %s' % (vr(RR + 4 * T + h, 2), vr(II + 4 * T + h, 2), vr(tq + 4 + h, 2), vr(RR + 4 * T + h, 2), NEG1))
    for h in (0, 2):
        e('v_pk_fma_f32 %s, %s, %s, %s' % (vr(II + 4 * T + h, 2), vr(II + 4 * T + h, 2), vr(tq + h, 2), vr(tq + 8 + h, 2)))
tab_rd(tq, 2, 'k2')
tab_rd(tq + 8, 4, 'k3')
A.wait_lg('k1')
for T in range(1, 4):
    pk_cfma4(RR + 4 * T, II + 4 * T, RR + 4 * T - 4, II + 4 * T - 4, K1, RR + 4 * T, II + 4 * T)
tab_rd(K1, 8, 'k1')
cur = (RR + 12, II + 12)
L64, L512, P128, S0 = K0, K0 + 2, K0 + 4, K0 + 6
for lv in range(4):
    k = [K0, tq, tq + 8, K1][lv]
    for part in range(2):
        for i in range(4):
            e('v_mov_b32_dpp %s, %s row_shr:%d row_mask:0xf bank_mask:0xf bound_ctrl:0' % (vr(SE + 4 * part + i), vr(cur[part] + i), 1 << lv))
    if lv in (0, 3):
        A.wait_lg(['k3', 'k3', 'k3', 'k1'][lv])
    pk_cfma4(SA, SA + 4, SE, SE + 4, k, cur[0], cur[1])
    cur = (SA, SA + 4)
    if lv == 0:
        for (dst, row, ad) in ((L64, R_L64, vTC), (L512, R_L512, vTC), (P128, 0, vTG)):
            for part in range(2):
                A.ds('ds_read_b32 %s, %s offset:%d' % (vr(dst + part), vr(ad), row * TROW + part * 128), 'kc')
auto(False)
e('s_mov_b32 exec_lo, 0x80008000')
e('s_mov_b32 exec_hi, 0x80008000')
A.ds('ds_write_b128 %s, %s' % (vr(vCR), vr(SA, 4)), 'sx')
A.ds('ds_write_b128 %s, %s offset:64' % (vr(vCR), vr(SA + 4, 4)), 'sx')
e('s_mov_b64 exec, -1')
GR = tq + 12
for part in range(2):
    for i in range(4):
        e('v_mov_b32_dpp %s, %s row_shr:1 row_mask:0xf bank_mask:0xf bound_ctrl:0' % (vr(SE + 4 * part + i), vr(SA + 4 * part + i)))
e('v_mov_b32 %s, %s' % (vr(GR + 2), sr(sTAG)))
e('v_mov_b32 %s, %s' % (vr(GR + 3), sr(sTAG)))
page('sx')
A.wait_lg0()
e('s_barrier')
A.ds('ds_read2_b32 %s, %s offset0:160 offset1:176' % (vr(S0, 2), vr(vSXR)), 's0')
A.ds('ds_read2_b32 %s, %s offset0:0 offset1:16' % (vr(GR, 2), vr(vSXR)), 's0')
DQ.open.add('sx')
print('DQ left at Spub', len(DQ.q))
lab = newlab('np')
S('s_cmp_eq_u32 %s, 0', sTH)
e('s_cbranch_scc1 %s' % lab)
e('s_waitcnt lgkmcnt(0)')
cfma(GR, GR + 1, S0, S0 + 1, L64, L64 + 1, GR, GR + 1)
e('s_mov_b64 exec, 0xffff')
A.vmem('buffer_store_dwordx4 %s, %s, %s, %s offen sc1' % (vr(GR, 4), vr(vL16), sr(dWS, 4), sr(sSGO)), 'S', opt=True)
e('s_mov_b64 exec, -1')
A.label(lab)
stamp('Spub')
auto(True)

vQ = 152
vPD = vWT
def lb_issue():
    for i in range(4):
        A.vmem('buffer_load_dwordx4 %s, %s, %s, %s offen sc1' % (vr(vQ + 4 * i, 4), vr(vPA + i), sr(dWS, 4), sr(sSG)), 'lb')
def lb_check():
    for i in range(4):
        e('v_xor_b32 %s, %s, %s' % (vr(vQ + 4 * i + 3), sr(sTAG), vr(vQ + 4 * i + 2)))
    for i in range(4):
        e('v_cndmask_b32 %s, 0, %s, %s' % (vr(vQ + 4 * i + 3), vr(vQ + 4 * i + 3), sr(sMSK[i], 2)))
    e('v_or3_b32 %s, %s, %s, %s' % (vr(vQ + 3), vr(vQ + 3), vr(vQ + 7), vr(vQ + 11)))
    e('v_or_b32 %s, %s, %s' % (vr(vQ + 3), vr(vQ + 3), vr(vQ + 15)))
    e('v_cmp_ne_u32 vcc, 0, %s' % vr(vQ + 3))
def poll(tag, so):
    return lambda: A.vmem('buffer_load_dword %s, %s, %s, %s offen sc1' % (vr(vPD), vr(vPF), sr(dWS, 4), sr(so)), tag)
def p_check():
    e('v_cmp_ne_u32 vcc, %s, %s' % (sr(sTAG), vr(vPD)))
pa_issue, pb_issue = poll('pa', sPA), poll('pb', sPB)
def lbp(k):
    if k == 0:
        print('DQ left at the first HM store', len(DQ.q))
        if OPT['FL0']:
            DQ.flush()
    if k == 6:
        DQ.flush()
    if OPT['LBPOS'] == k:
        lb_issue()
for i, v in enumerate((2, 0, 1)):
    gelu_tile(v, 'HM', lambda hh: lbp(2 * i + hh))
stamp('gelu')
auto(False)
lbp(6)
KP = [tq, tq + 8, CS, CS + 8]
tab_rd(K1, 0, 'kp', vTI)
for T, row in enumerate((R_L1, R_L2, R_L3, 1)):
    tab_rd(KP[T], row, 'kp')
NR, RING = 22, 152
LD, MF = [], []
for (t, s0, s1) in ((0, 0, 11), (1, 0, OPT['NB1']), (0, 11, 19), (1, OPT['NB1'], 19)):
    tl = OPT['TL%d' % t] if s1 == 19 else 0
    for s in range(s0, s1 - tl):
        for hh in range(2):
            MF += [(len(LD), 0), (len(LD), 1)]
            LD.append((t, s, hh))
    for hh in range(2):
        for dh in range(2):
            MF += [(len(LD) + k, dh) for k in range(tl)]
        LD += [(t, s, hh) for s in range(s1 - tl, s1)]
FS = LD.index((0, 11, 0))
hf = [0]
cur = [None, 0]
def hload():
    f = hf[0]
    t, s, hh = LD[f]
    n = 3
    if f == FS - OPT['PBD']:
        pb_issue()
        n += 2
    if f == FS:
        A.wait_vm('pb')
        retry_loop('pb', pb_issue, p_check, 61)
        stamp('pbok')
        n += 3
    base = (sH2 if t else sH1) if s < 11 else (sP2 if t else sP1)
    off = (TOFF[s] if s < 11 else s - 11) * 2048 + hh * 1024
    if off < 4096:
        so = base
    else:
        so = sHC
        if cur[0] != base or not 0 <= off - cur[1] < 4096:
            cur[0], cur[1] = base, off
            S('s_add_u32 %s, %s, %s', sHC, base, str(off))
            n += 1
        off -= cur[1]
    A.vmem('buffer_load_dwordx4 %s, %s, %s, %s offen offset:%d%s' % (ar(RING + 4 * (f % NR), 4), vr(vL16), sr(dWS, 4), sr(so), off, '' if OPT['X'] & 16 else ' sc1'), 'h%d' % f)
    hf[0] += 1
    return n

RD, RES, PXR, pT, TB = 128, 192, 208, 224, 240
vOO, vRW, vRR, vRR2 = vGO, vCW, vCR, vSXR
TILE = 64 * 272
AD, vCA = 32, 40
def xw_block(k):
    if OPT['XWP'] != k:
        return
    S('s_lshl_b32 %s, %s, 11', sT0, sW)
    S('s_add_u32 %s, %s, %s', sT0, sT0, str(PE))
    S('s_add_u32 %s, %s, %s', sT1, sME, str(2 * SLOT))
    for i, sb in enumerate((sT0, sM8, sME, sT1)):
        e('v_add_u32 %s, %s, %s' % (vr(AD + 2 * i), sr(sb), vr(vTRL)))
        e('v_xor_b32 %s, 64, %s' % (vr(AD + 2 * i + 1), vr(AD + 2 * i)))
    e('v_bfe_u32 %s, %s, 1, 3' % (vr(vCA), vr(vLANE)))
    e('v_xor_b32 %s, %s, %s' % (vr(vCA), vr(vCA), vr(vHI5)))
    e('v_lshlrev_b32 %s, 4, %s' % (vr(vCA), vr(vCA)))
    e('v_lshl_add_u32 %s, %s, 7, %s' % (vr(vCA), vr(vLO5), vr(vCA)))
    S('s_add_u32 %s, %s, %s', sT0, sM8, str(2 * SLOT))
    e('v_add_u32 %s, %s, %s' % (vr(vCA), sr(sT0), vr(vCA)))
    for sub in range(1, 4):
        e('v_xor_b32 %s, %d, %s' % (vr(vCA + sub), 32 * sub, vr(vCA)))
    A.wait_vm('W')
    for st in range(11):
        for dh in range(2):
            for half in range(2):
                if st == 0:
                    ad, off = AD, 0
                elif st <= 8:
                    ad, off = AD + 2, ((st - 1) // 4) * SLOT + ((st - 1) % 4) * 2048
                else:
                    ad, off = AD + 4 + 2 * (st - 9), 0
                A.ds('ds_read_b64_tr_b16 %s, %s offset:%d' % (ar(8 * st + 4 * dh + 2 * half, 2), vr(ad + dh), off + half * 512), 'xw')
    for part in range(2):
        for sub in range(4):
            for dh in range(2):
                A.ds('ds_read_b128 %s, %s offset:%d' % (ar(8 * (11 + 2 * sub + part) + 4 * dh, 4), vr(vCA + sub), part * SLOT + dh * 4096), 'xw')
xw_block(0)
late_scalars()
def fap(k):
    if OPT['FAP'] == k:
        A.wait_vm('HM')
        stamp('HMdone')
        flag(WS_FA, 'fa')
        if OPT['PTOUCH'] & 1:
            e('v_lshlrev_b32 %s, 7, %s' % (vr(vCT), vr(vLO4)))
            e('v_lshl_add_u32 %s, %s, 12, %s' % (vr(vCT), vr(vG), vr(vCT)))
            S('s_mov_b32 exec_hi, %s', sF1)
            A.vmem('buffer_load_dword %s, %s, %s, %s offen sc1' % (vr(vSCR), vr(vCT), sr(dWS, 4), sr(sHM)), 'touch')
            e('s_mov_b32 exec_hi, -1')
        stamp('fa')
page('lb')
A.wait_vm('lb')
stamp('lb1')
fap(0)
retry_loop('lb', lb_issue, lb_check, 59)
stamp('Sgot')
for i in range(4):
    e('v_cndmask_b32 %s, 0, %s, %s' % (vr(vQ + 4 * i), vr(vQ + 4 * i), sr(sMSK[i], 2)))
    e('v_cndmask_b32 %s, 0, %s, %s' % (vr(vQ + 4 * i + 1), vr(vQ + 4 * i + 1), sr(sMSK[i], 2)))
for i in (2, 1, 0):
    cfma(vQ + 4 * i, vQ + 4 * i + 1, vQ + 4 * i + 4, vQ + 4 * i + 5, L512, L512 + 1, vQ + 4 * i, vQ + 4 * i + 1)
hr, hi_, h2, h3 = vQ + 4, vQ + 5, vQ + 6, vQ + 7
cmul(hr, hi_, vQ, vQ + 1, P128, P128 + 1)
for sw in ('v_permlane16_swap_b32', 'v_permlane32_swap_b32'):
    e('v_mov_b32 %s, %s' % (vr(h2), vr(hr)))
    e('v_mov_b32 %s, %s' % (vr(h3), vr(hi_)))
    e('%s %s, %s' % (sw, vr(hr), vr(h2)))
    e('%s %s, %s' % (sw, vr(hi_), vr(h3)))
    e('v_add_f32 %s, %s, %s' % (vr(hr), vr(hr), vr(h2)))
    e('v_add_f32 %s, %s, %s' % (vr(hi_), vr(hi_), vr(h3)))
auto(False)
A.wait_lg('s0')
lab = newlab('t0')
S('s_cmp_eq_u32 %s, 0', sTH)
e('s_cbranch_scc1 %s' % lab)
cfma(S0, S0 + 1, hr, hi_, L64, L64 + 1, S0, S0 + 1)
e('v_mov_b32 %s, %s' % (vr(hr), vr(S0)))
e('v_mov_b32 %s, %s' % (vr(hi_), vr(S0 + 1)))
A.label(lab)
A.ds('ds_write2_b32 %s, %s, %s offset0:32 offset1:48' % (vr(vSXW), vr(hr), vr(hi_)), 'cy')
A.ds('ds_read_b128 %s, %s offset:128' % (vr(SA, 4), vr(vCR)), 'cy')
A.ds('ds_read_b128 %s, %s offset:192' % (vr(SA + 4, 4), vr(vCR)), 'cy')
fap(1)
A.wait_lg0()
pk_cfma4(SE, SE + 4, SA, SA + 4, K1, SE, SE + 4)
for hh in range(2):
    for T in (2 * hh, 2 * hh + 1):
        pk_cfma4(RR + 4 * T, II + 4 * T, SE, SE + 4, KP[T], RR + 4 * T, II + 4 * T)
    for part in range(2):
        o = vQ + 8 * hh + 4 * part
        b = ACC + 16 * part + 8 * hh
        ng = '-' if part else ''
        for i in range(4):
            e('v_cvt_pk_bf16_f32 %s, %s%s, %s%s' % (vr(o + i), ng, vr(b + 2 * i), ng, vr(b + 2 * i + 1)))
    if OPT['EP'] and OPT['PAP'] == hh:
        pa_issue()
    for part in range(2):
        o = vQ + 8 * hh + 4 * part
        e('v_permlane16_swap_b32 %s, %s' % (vr(o), vr(o + 2)))
        e('v_permlane16_swap_b32 %s, %s' % (vr(o + 1), vr(o + 3)))
        A.vmem('buffer_store_dwordx4 %s, %s, %s, %s offen offset:%d sc1' % (vr(o, 4), vr(vL16), sr(dWS, 4), sr(sHS), 2048 * part + 1024 * hh), 'HS')
if OPT['EP'] and OPT['PAP'] == 2:
    pa_issue()
stamp('epi')

xw_block(1)
eX, eS, eD = 128, 136, 140
fD, fB, fU, fM = 144, 148, 152, 156
def res_pre():
    A.wait_vm('res')
    for i in range(16):
        e('v_accvgpr_read_b32 %s, a%d' % (vr(eX + [0, 1, 2, 3, 4, 5, 6, 7, 12, 13, 14, 15, 8, 9, 10, 11][i]), 240 + i))
    for (dst, src) in ((fD, eD), (fB, eD + 2)):
        for hh in range(2):
            e('v_lshlrev_b32 %s, 16, %s' % (vr(dst + 2 * hh), vr(src + hh)))
            e('v_and_b32 %s, 0xffff0000, %s' % (vr(dst + 2 * hh + 1), vr(src + hh)))
def res_q(q):
    r = RES + 4 * q
    e('v_and_b32 %s, 0xffff0000, %s' % (vr(fM + 1), vr(eS + q)))
    e('v_lshlrev_b32 %s, 16, %s' % (vr(fM), vr(eS + q)))
    e('v_rcp_f32 %s, %s' % (vr(fM + 1), vr(fM + 1)))
    for hh in range(2):
        e('v_lshlrev_b32 %s, 16, %s' % (vr(r + 2 * hh), vr(eX + 2 * q + hh)))
        e('v_and_b32 %s, 0xffff0000, %s' % (vr(r + 2 * hh + 1), vr(eX + 2 * q + hh)))
    def rnd4():
        e('v_cvt_pk_bf16_f32 %s, %s, %s' % (vr(fU + 1), vr(fU), vr(fU + 1)))
        e('v_cvt_pk_bf16_f32 %s, %s, %s' % (vr(fU + 3), vr(fU + 2), vr(fU + 3)))
        e('v_lshlrev_b32 %s, 16, %s' % (vr(fU), vr(fU + 1)))
        e('v_lshlrev_b32 %s, 16, %s' % (vr(fU + 2), vr(fU + 3)))
        e('v_and_b32 %s, 0xffff0000, %s' % (vr(fU + 1), vr(fU + 1)))
        e('v_and_b32 %s, 0xffff0000, %s' % (vr(fU + 3), vr(fU + 3)))
    for hh in range(2):
        e('v_pk_add_f32 %s, %s, %s op_sel:[0,0] op_sel_hi:[1,0] neg_lo:[0,1] neg_hi:[0,1]' % (vr(fU + 2 * hh, 2), vr(r + 2 * hh, 2), vr(fM, 2)))
    rnd4()
    for hh in range(2):
        e('v_pk_mul_f32 %s, %s, %s op_sel:[0,1] op_sel_hi:[1,1]' % (vr(fU + 2 * hh, 2), vr(fU + 2 * hh, 2), vr(fM, 2)))
    rnd4()
    for hh in range(2):
        e('v_pk_mul_f32 %s, %s, %s' % (vr(fU + 2 * hh, 2), vr(fU + 2 * hh, 2), vr(fD + 2 * hh, 2)))
    rnd4()
    for hh in range(2):
        e('v_pk_add_f32 %s, %s, %s' % (vr(r + 2 * hh, 2), vr(r + 2 * hh, 2), vr(fU + 2 * hh, 2)))
    for hh in range(2):
        e('v_pk_add_f32 %s, %s, %s' % (vr(r + 2 * hh, 2), vr(r + 2 * hh, 2), vr(fB + 2 * hh, 2)))

F2 = Q()
e('v_lshrrev_b32 %s, 3, %s' % (vr(vRR), vr(vLO4)))
e('v_lshlrev_b32 %s, 12, %s' % (vr(vRR), vr(vRR)))
e('v_lshl_add_u32 %s, %s, 8, %s' % (vr(vRR), vr(vHI5), vr(vRR)))
e('v_and_b32 %s, 0x17, %s' % (vr(vRR2), vr(vLANE)))
e('v_and_b32 %s, 7, %s' % (vr(vRW), vr(vLANE)))
e('v_add_u32 %s, %s, %s' % (vr(vRR2), vr(vRR2), vr(vRW)))
e('v_lshl_add_u32 %s, %s, 3, %s' % (vr(vRR), vr(vRR2), vr(vRR)))
S('s_lshl_b32 %s, %s, 13', sT0, sTH)
S('s_lshl_b32 %s, %s, 11', sT1, sPH)
S('s_add_u32 %s, %s, %s', sT0, sT0, sT1)
e('v_add_u32 %s, %s, %s' % (vr(vRR), sr(sT0), vr(vRR)))
e('v_add_u32 %s, 0x10000, %s' % (vr(vRR2), vr(vRR)))
S('s_lshl_b32 m0, %s, 14', sW)
S('s_movk_i32 %s, 0xff', sBM)
for i in range(4):
    e('v_bfe_u32 %s, %s, %d, 8' % (vr(TB + i), vr(vTAG), 8 * i))
if OPT['EP']:
    if OPT['PAP'] == 3:
        pa_issue()
    res_pre()
    if OPT['PAP'] == 4:
        pa_issue()
    for q in range(OPT['R0']):
        res_q(q)
    stamp('r0')
    A.wait_vm('pa')
    stamp('pa1')
    retry_loop('pa', pa_issue, p_check, 60, after=lambda: flag(WS_FB, 'fb'))
    stamp('paok')
    DQ.add([('D', hload)] * OPT['NPRE'])
    DQ.popD(OPT['N0'])
    AUTO.update(on=True, int=OPT['HI2'], nxt=AUTO['t'] + OPT['HI2'])
    for q in range(OPT['R0'], OPT['R1']):
        res_q(q)
    auto(False)
    stamp('r1')
    A.wait_vm('HS')
    stamp('HSdone')
    flag(WS_FB, 'fb')
    auto(True)
    for q in range(OPT['R1'], 4):
        res_q(q)
    e('v_lshlrev_b32 %s, 1, %s' % (vr(vOO), vr(vXO)))
    auto(False)
    print('H loads left after the residual', len(DQ.q))
    DQ.flush()
    stamp('res')
else:
    if OPT['RQ'] == -1:
        pa_issue()
    res_pre()
    A.wait_lg0()
    stamp('xw')
    e('s_barrier')
    stamp('bx')
    for q in range(5):
        if q == OPT['RQ']:
            pa_issue()
        if q < 4:
            res_q(q)
    e('v_lshlrev_b32 %s, 1, %s' % (vr(vOO), vr(vXO)))
    stamp('res')
    A.wait_vm('HS')
    stamp('HSdone')
    flag(WS_FB, 'fb')
    def hs_touch():
        e('v_lshlrev_b32 %s, 5, %s' % (vr(vCT), vr(vTM)))
        e('s_mov_b32 exec_hi, 0')
        A.vmem('buffer_load_dword %s, %s, %s, %s offen sc1' % (vr(vSCR), vr(vCT), sr(dWS, 4), sr(sHS)), 'touch')
        e('s_mov_b32 exec_hi, -1')
    if OPT['PTOUCH'] & 2:
        hs_touch()
    stamp('fb')
    page('pa')
    A.wait_vm('pa')
    stamp('pa1')
    retry_loop('pa', pa_issue, p_check, 60)
    stamp('paok')
    for i in range(OPT['NPRE']):
        hload()
    if OPT['PTOUCH'] & 4:
        hs_touch()
e('v_lshrrev_b32 %s, 1, %s' % (vr(vPF), vr(vPF)))
assert OPT['NPRE'] <= FS - OPT['PBD']
M1 = 16320
def red_write(t, k):
    A.ds('ds_write_addtid_b32 %s offset:%d' % (vr(64 * t + k), t * (65536 - M1) + 256 * k), 'rw')
def red_read(t, q, part):
    A.ds('ds_read_b128 %s, %s offset:%d' % (vr(RD + 16 * q + 4 * part, 4), vr(vRR2 if t else vRR), part * 16384 + (q >> 1) * 1024 + (q & 1) * 512), 'rr%d' % q)
def px_issue():
    for k in range(4):
        A.vmem('buffer_load_dwordx4 %s, %s, %s, %s offen offset:%d sc1' % (vr(PXR + 4 * k, 4), vr(vL16), sr(dWS, 4), sr(sPX), k * 1024), 'px')
def px_check():
    for k in range(16):
        e('v_xor_b32 %s, %s, %s' % (vr(PXR + k), vr(TB + (k & 3)), vr(PXR + k)))
    for k in range(4):
        e('v_or3_b32 %s, %s, %s, %s' % (vr(pT + k), vr(PXR + 4 * k), vr(PXR + 4 * k + 1), vr(PXR + 4 * k + 2)))
    e('v_or3_b32 %s, %s, %s, %s' % (vr(pT), vr(pT), vr(PXR + 3), vr(PXR + 7)))
    e('v_or3_b32 %s, %s, %s, %s' % (vr(pT + 1), vr(pT + 1), vr(PXR + 11), vr(PXR + 15)))
    e('v_or3_b32 %s, %s, %s, %s' % (vr(pT), vr(pT), vr(pT + 2), vr(pT + 3)))
    e('v_or_b32 %s, %s, %s' % (vr(pT), vr(pT), vr(pT + 1)))
    e('v_and_b32 %s, %s, %s' % (vr(pT), sr(sBM), vr(pT)))
    e('v_cmp_ne_u32 vcc, 0, %s' % vr(pT))
def al_issue(opt=True):
    e('v_lshlrev_b32 v8, 7, %s' % vr(vLANE))
    for i in range(4):
        S('s_mov_b32 %s, %s', sT0, hex(WS_G + 8192 * i))
        A.vmem('buffer_load_dword v%d, v8, %s, %s offen offset:12 sc1' % (i, sr(dWS, 4), sr(sT0)), 'alp', opt=opt)
def al_check():
    for i in range(4):
        e('v_xor_b32 v%d, %s, v%d' % (4 + i, sr(sTAG), i))
    e('v_or3_b32 v4, v4, v5, v6')
    e('v_or_b32 v4, v4, v7')
    e('v_cmp_ne_u32 vcc, 0, v4')

left = [2] * 76
last = {}
for n, (f, dh) in enumerate(MF):
    last[(LD[f][0], LD[f][2], dh)] = n
clk = [0, -4 * OPT['HINT']]
seen = set()
for n, (f, dh) in enumerate(MF):
    t, s, hh = LD[f]
    for (tq_, hq, dq), m in sorted(last.items()):
        if n == m + 2:
            o = Ops()
            if (tq_, hq, dq) == (1, 0, 0):
                o.s('s_add_u32 m0, m0, %d' % M1)
            for k in range(16):
                o.f(lambda k=k, tq_=tq_, hq=hq, dq=dq: red_write(tq_, 32 * hq + 16 * dq + k), OPT['WC'])
            F2.add(o)
            if (tq_, hq, dq) != (0, 1, 1):
                continue
            o = Ops()
            def bar1():
                A.wait_lg0()
                e('s_barrier')
                stamp('bar1')
            o.f(lambda: None, 8)
            o.f(bar1, 4)
            for q in range(4):
                for part in range(4):
                    o.f(lambda q=q, part=part: red_read(0, q, part), 2)
            for q in range(4):
                o.f(lambda q=q: A.wait_lg('rr%d' % q))
                b = RD + 16 * q
                for i in range(4):
                    o.v('v_add_f32 %s, %s, %s' % (vr(b + i), vr(b + i), vr(b + 4 + i)))
                for i in range(4):
                    o.v('v_add_f32 %s, %s, %s' % (vr(b + 8 + i), vr(b + 8 + i), vr(b + 12 + i)))
                for i in range(4):
                    o.v('v_add_f32 %s, %s, %s' % (vr(b + i), vr(b + i), vr(b + 8 + i)))
                for i in range(4):
                    o.v('v_bfi_b32 %s, %s, %s, %s' % (vr(b + i), sr(sBM), vr(TB + i), vr(b + i)))
                o.f(lambda q=q, b=b: A.vmem('buffer_store_dwordx4 %s, %s, %s, %s offen offset:%d sc1' % (vr(b, 4), vr(vL16), sr(dWS, 4), sr(sPX), q * 1024), 'pxs'), 4)
                o.f(lambda: print(' px store at step', clk[2] / 4, 'loads issued', hf[0]), 0)
                for i in range(OPT['PXS'] if q < 3 else 0):
                    o.f(lambda: None, 5)
            o.s('s_xor_b32 %s, %s, 0x4000', sPX, sPX)
            o.f(lambda: (stamp('pxs'), seen.add('pxs'), print('px stores done at step', clk[2] / 4, 'loads issued', hf[0])), 0)
            F2.add(o)
    clk[2:] = [n]
    if OPT['EP'] and n == 4 * OPT['BXP']:
        assert DSN.get('rw', 0) == 0
        e('s_barrier')
    if n == 4 * OPT['WB']:
        lab = newlab('wb')
        S('s_and_b32 %s, %s, %s', sT0, sGW, ['3', '0x3e3', '0x63'][OPT['WBM']])
        S('s_cmp_lg_u32 %s, 1', sT0)
        e('s_cbranch_scc1 %s' % lab)
        A.vmem('buffer_wbl2 sc1', 'wb', opt=True)
        A.label(lab)
    if n == 4 * OPT['PXPOS']:
        assert 'pxs' in seen
        px_issue()
    if n == 4 * min(37, OPT['PXPOS']):
        lab = newlab('nal')
        S('s_cmp_lg_u32 %s, 3', sGW)
        e('s_cbranch_scc1 %s' % lab)
        al_issue()
        A.label(lab)
    u = 0
    if n % 4 == 0:
        page('hH' if n == 4 * OPT['PGH'] else 'h%d' % (n // 4))
    if f not in seen:
        assert hf[0] > f
        A.wait_vm('h%d' % f)
        seen.add(f)
    if n // 4 in HST and n % 4 == 0:
        stamp('h%d' % (n // 4))
    acc = vr(64 * t + 32 * hh + 16 * dh, 16)
    def m16(k):
        acc = vr(64 * t + 32 * hh + 16 * dh + 8 * (s & 1) + 4 * k, 4)
        e('v_mfma_f32_16x16x32_bf16 %s, %s, %s, %s' % (acc, ar(RING + 4 * (f % NR), 4), ar(8 * s + 4 * (dh ^ k), 4), acc if s > 1 else '0'))
    if OPT['X'] & 256:
        m16(0)
    elif not OPT['X'] & 8:
        e('v_mfma_f32_32x32x16_bf16 %s, %s, %s, %s' % (acc, ar(RING + 4 * (f % NR), 4), ar(8 * s + 4 * dh, 4), acc if s else '0'))
    left[f] -= 1
    if n + 1 < len(MF) and MF[n + 1][0] not in seen:
        u = 1
    if hf[0] < 76 and (hf[0] < NR or left[hf[0] - NR] == 0) and clk[0] >= clk[1]:
        u += hload()
        clk[1] += OPT['HINT']
    if OPT['X'] & 256:
        while F2.ready() and (u + F2.cost() <= OPT['RPOP'] // 2):
            u += F2.cost()
            F2.pop1()
        m16(1)
    while F2.ready() and (u + F2.cost() <= OPT['RPOP'] or u <= 1):
        u += F2.cost()
        F2.pop1()
    clk[0] += max(32, (16 if OPT['X'] & 256 else 8) + 4 * u)
assert hf[0] == 76
stamp('mfma2')
if OPT['PXPOS'] == 38:
    px_issue()
print('F2 left', len(F2.q))
F2.flush()
for key, m in sorted(last.items()):
    if m + 2 >= len(MF):
        assert key != (1, 0, 0)
        for k in range(16):
            red_write(1, 32 * key[1] + 16 * key[2] + k)
A.wait_lg0()
e('s_barrier')
stamp('bar2')
if OPT['PXPOS'] == 39:
    px_issue()
for q in range(4):
    for part in range(4):
        red_read(1, q, part)
if OPT['PXPOS'] == 40:
    A.wait_vm('pxs')
    stamp('pxack')
    px_issue()
def own_sum(q):
    A.wait_lg('rr%d' % q)
    b, r = RD + 16 * q, RES + 4 * q
    for h in (0, 2):
        e('v_pk_add_f32 %s, %s, %s' % (vr(b + h, 2), vr(b + h, 2), vr(b + 4 + h, 2)))
        e('v_pk_add_f32 %s, %s, %s' % (vr(b + 8 + h, 2), vr(b + 8 + h, 2), vr(b + 12 + h, 2)))
    for h in (0, 2):
        e('v_pk_add_f32 %s, %s, %s' % (vr(r + h, 2), vr(r + h, 2), vr(b + h, 2)))
    for h in (0, 2):
        e('v_pk_add_f32 %s, %s, %s' % (vr(r + h, 2), vr(r + h, 2), vr(b + 8 + h, 2)))
for q in range(4):
    own_sum(q)
A.wait_vm('px')
stamp('px1')
retry_loop('px', px_issue, px_check, 62)
stamp('pxok')
for q in range(4):
    r = RES + 4 * q
    for h in (0, 2):
        e('v_pk_add_f32 %s, %s, %s' % (vr(r + h, 2), vr(r + h, 2), vr(PXR + 4 * q + h, 2)))
    S('s_mov_b32 %s, %s', sT0, str(QR[q] * 8192))
    A.vmem('buffer_store_dwordx4 %s, %s, %s, %s offen%s' % (vr(r, 4), vr(vOO), sr(dO, 4), sr(sT0), ['', ' sc1', ' nt', ' sc0 sc1'][OPT['OUTSC']]), 'out')
lab = newlab('nep')
S('s_cmp_lg_u32 %s, 3', sGW)
e('s_cbranch_scc1 %s' % lab)
A.wait_vm('alp')
retry_loop('al', al_issue, al_check, 63)
one_lane_store(8, '0', 'ep')
A.label(lab)
if PROF:
    stamp('stored')
    e('s_waitcnt vmcnt(0)')
    stamp('drained')
    stamp('rt1', True)
    A.wait_lg0()
    e('v_lshlrev_b32 v16, 2, %s' % vr(vLANE))
    if DBGT and os.environ.get('AMP'):
        x0, x1 = os.environ['AMP'].split('-')
        e('v_readlane_b32 s40, %s, %d' % (vr(vSTAMP), SNAMES[x0]))
        e('v_readlane_b32 s41, %s, %d' % (vr(vSTAMP), SNAMES[x1]))
        e('v_readlane_b32 s42, %s, %d' % (vr(vSTAMP), SNAMES['drained']))
        e('s_nop 4')
        e('s_sub_u32 s40, s41, s40')
        e('s_lshl_b32 s40, s40, 2')
        e('s_min_u32 s40, s40, 20000')
        e('s_mov_b32 s43, 0')
        A.label('L_amp')
        e('s_memrealtime s[44:45]')
        e('s_waitcnt lgkmcnt(0)')
        e('s_add_u32 s43, s43, 1')
        e('s_cmp_gt_u32 s43, 0x4000')
        e('s_cbranch_scc1 L_ampd')
        e('s_sub_u32 s44, s44, s42')
        e('s_cmp_lt_u32 s44, s40')
        e('s_cbranch_scc1 L_amp')
        A.label('L_ampd')
    elif DBGT:
        e('s_load_dwordx2 s[40:41], s[0:1], 120')
        e('v_not_b32 v17, %s' % vr(vSTAMP))
        e('v_cmp_eq_u32 vcc, 0, %s' % vr(vLANE))
        e('s_nop 1')
        e('v_cndmask_b32 v17, %s, v17, vcc' % vr(vSTAMP))
        e('s_waitcnt lgkmcnt(0)')
        e('s_mov_b64 exec, 0xffff')
        e('global_atomic_umax v16, v17, s[40:41] sc1')
        e('s_mov_b64 exec, -1')
    S('s_lshl_b32 %s, %s, 8', sT0, sGW)
    S('s_add_u32 %s, %s, %s', sT0, sT0, hex(WS_PROF))
    e('buffer_store_dword %s, v16, %s, %s offen' % (vr(vSTAMP), sr(dWS, 4), sr(sT0)))
    json.dump(SNAMES, open(OUT + '.names', 'w'))
A.label('L_end')
e('s_endpgm')

body, nops = hazard_pass(A.lines)
if OPT['PG'] & 8:
    body, n1, n2, tot = stub_pass(body, 0x300, 2, 4, OPT['AL'])
    print('alignment: nops', n1, 'widened', n2, 'cost', tot)
elif OPT['AL']:
    body, n1, n2, tot = align_pass(body, OPT['AL'])
    print('alignment: nops', n1, 'widened', n2, 'cost', tot)
head = open('cdna_kernels/%s.s.ref' % NAME).read().split('; Override launch')[0]
txt = head + '; @launch grid=(256,1,1) block=(256,1,1) lds=%d\n' % LDS_BYTES
txt += '''.amdgcn_target "amdgcn-amd-amdhsa--gfx950"
.text
.globl %s_kernel
.p2align %d
.type %s_kernel,@function
%s_kernel:
''' % (NAME, 12 if OPT['PG'] & 1 else 8, NAME, NAME)
txt += '\n'.join(body) + '\n'
txt += '''.section .rodata,"a"
.p2align 6
.amdhsa_kernel %s_kernel
  .amdhsa_next_free_vgpr 512
  .amdhsa_next_free_sgpr 102
  .amdhsa_accum_offset 256
  .amdhsa_group_segment_fixed_size 0
  .amdhsa_kernarg_size 136
  .amdhsa_user_sgpr_count 2
  .amdhsa_user_sgpr_kernarg_segment_ptr 1
  .amdhsa_system_sgpr_workgroup_id_x 1
.end_amdhsa_kernel
''' % NAME
open(OUT, 'w').write(txt)
print('wrote', OUT, 'lines', len(body), 'nops', nops)
```

```python
import sys, math, struct, json
from asmlib import *

NAME = 'parallel_sum__ssm_conv_s5__mixer_channel_mlp__prompt'
DBGT = '--dbgt' in sys.argv
PROF = '--prof' in sys.argv or DBGT
OUT = [a for a in sys.argv[1:] if not a.startswith('--') and '=' not in a]
OUT = OUT[0] if OUT else 'cdna_kernels/%s.s' % NAME
OPT = dict(FINE=0, FIN1=0, BW=8, DEF=0, DEFR=3, DFI=4, ZJ=1, CPF=1, EP=0, PAP=1, R0=1, R1=3, N0=4, HI2=70, BXP=8, D0A=2, NPK=20, LATE=1, ROT=10, DINT=72, LBPOS=6, OUTSC=0, PXPOS=39, RPOP=8, HINT=60, PTOUCH=0, DCOST=2, D1A=0, BUD0=2, NB0=4, X=0,
           EINT=100, NB1=3, PBD=12, SDG=5, NPRE=10, WPF=3, WT0=9, STL=4, RQ=3,
           PB=1, PINT=110, SPF=0, D1B=7, B1P=-1, B1G=3, XS=0, TL0=6, TL1=6, WC=2, FAP=0, XWP=0, PXS=0, CJ0=6, WG0=0, WNT=0, FL0=0, NTX=-1, NTW=-1, NTS=0, WPK=0, WINT=92, WCL=4, SMP=0, STD=0, AL=5, PG=11, PGA=3, PGH=19, PGT=0, HP=0, WB=-1, WBM=0)
for a in sys.argv[1:]:
    if '=' in a:
        k, v = a.split('=')
        assert k in OPT, k
        OPT[k] = int(v)

def f2u(x):
    return '0x%08x' % struct.unpack('<I', struct.pack('<f', x))[0]

WS_AL = 0x1000
WS_G = 0x8000
WS_SG = 0x10000
WS_PROF = 0x40000
WS_FA = 0x80000
WS_FB = 0xA0000
WS_FC = 0xC0000
WS_PX = 0x100000
WS_H = 0x800000
WS_SIZE = 0x1200000
HR = 152 * 2048

SLOT, PIECE = 36864, 9216
TAB, TROW = 147456, 272
CSX = TAB + 25 * TROW
PE = 155648
assert CSX + 1280 <= PE and CSX % 16 == 0
LDS_BYTES = 160 * 1024

sW, sRB, sJ, sKH, sC, sRBL, sTAG, sGW, sTH, sPH, sPC = 4, 5, 6, 7, 8, 9, 10, 11, 12, 13, 14
sJT = sPC
pX, pLRE, pLIM, pBRE, pBIM, pCRE, pCIM, pLDT, pDSK, pBX, pW1, pB1, pW2, pB2, pOUT, pDBG, pWS = [16 + 2 * i for i in range(17)]
sPERM, sCNT = 50, 51
dX, dWS, dB, dW1, dW2, dO = 52, 56, 60, 64, 68, 72
sM0, sSX, sSW, sOFF, sM8, sME, sWS, sBM, sU0, sCG, sT0, sT1 = range(76, 88)
sCO = sOFF
sMSK = [88, 90, 92, 94]
sT2, sT3 = 34, 35
sD0, sSG, sSGO, sHM, sHS, sFL, sPA, sPB, sH1, sH2 = range(16, 26)
sSSM, sGR, sPX, sP1, sP2, sHC, sF0, sF1 = 30, 31, 32, 33, 36, 37, 38, 39

vLANE, vL16, vLO4, vG, vLO5, vHI5, vSTAMP, vSCR = 255, 254, 253, 252, 251, 250, 249, 248

A = Asm()
AUTO = dict(on=False, t=0, nxt=0, busy=False, any=False, int=OPT['EINT'])
_e = A.e
def e_time(s):
    mn = s.split()[0]
    AUTO['t'] += 8 if mn in TRANS else 12 if mn.startswith(('buffer_', 'ds_write')) else 4
    _e(s)
A.e = e_time
def e(s):
    A.e(s)
    ok = s.startswith('v_') or (AUTO['any'] and s.startswith('s_') and not s.startswith(('s_cmp', 's_bitcmp', 's_memtime', 's_wait')))
    if AUTO['on'] and not AUTO['busy'] and ok and DQ.ready() and AUTO['t'] >= AUTO['nxt']:
        AUTO['busy'] = True
        AUTO['nxt'] = max(AUTO['nxt'], AUTO['t'] - 2 * AUTO['int']) + AUTO['int']
        DQ.popD()
        AUTO['busy'] = False
def auto(on):
    AUTO['on'] = on
EXPECT = dict([('st%d' % v, 9) for v in range(8)] + [('stat', 4), ('W', 38 - 8 * OPT['DEF']), ('Wd', 8 * OPT['DEF']), ('b1', 5), ('srow', 2), ('lb', 4), ('px', 4), ('res', 8)])
ISSUED = {}
_vm, _wv = A.vmem, A.wait_vm
def vm_hook(s, tag='x', opt=False):
    ISSUED[tag] = ISSUED.get(tag, 0) + 1
    if OPT['X'] & 1 and ' lds' in s and tag not in ('st0', 'st1'):
        return
    if OPT['HP'] & 1 and tag in ('HM', 'HS') or OPT['HP'] & 2 and tag in ('fa', 'fb'):
        s = s.replace(' sc1', ' nt' if OPT['HP'] & 4 else '')
    _vm(s, tag, opt)
def wv_hook(tags):
    for t in ([tags] if isinstance(tags, str) else tags):
        assert ISSUED.get(t, 0) >= EXPECT.get(t, 1), (t, ISSUED.get(t, 0))
    _wv(tags)
A.vmem, A.wait_vm = vm_hook, wv_hook
DSN = {}
_ds = A.ds
def ds_hook(s, tag='x'):
    DSN[tag] = DSN.get(tag, 0) + 1
    if OPT['X'] & 4 and tag[0] in 'xa' and tag[1].isdigit():
        return
    if OPT['X'] & 32 and tag == 'csw' or OPT['X'] & 64 and tag == 'cso':
        return
    _ds(s, tag)
A.ds = ds_hook
SNAMES = {}
import os
SKIP = os.environ.get('SKIP', 'b1,b3,fa,fb,d0,tab').split(',')
HST = [int(x) for x in os.environ.get('HST', '0,6,12,19,26,32').split(',')]
pending = []
SPAIRS = [96, 98, 100]
def flush_stamps():
    for (i, p) in pending:
        e('v_writelane_b32 %s, %s, %d' % (vr(vSTAMP), sr(p), i))
    del pending[:]
_wl0 = A.wait_lg0
def wait_lg0_hook():
    _wl0()
    flush_stamps()
A.wait_lg0 = wait_lg0_hook
DT = os.environ.get('DT', 'rt0,t0,karg,lam,st0,a3,kloop,Spub,gelu,Sgot,epi,paok,pbok,mfma2,pxok,drained').split(',')
def stamp(name, real=False):
    if not PROF:
        A.label('L_m_' + name)
    if not PROF or name in SKIP:
        return
    if os.environ.get('ONLY') and name not in ['rt0', 't0', 'drained', 'rt1'] + os.environ['ONLY'].split(','):
        return
    if DBGT:
        if name not in DT:
            return
        real = True
    if os.environ.get('REAL') and name not in ('t0', 'drained'):
        real = True
    assert name not in SNAMES
    SNAMES[name] = len(SNAMES)
    i = SNAMES[name]
    assert i < 57
    if len(pending) == len(SPAIRS):
        A.wait_lg0()
    used = [p for (_, p) in pending]
    p = [q for q in SPAIRS if q not in used][0]
    e('%s %s' % ('s_memrealtime' if real else 's_memtime', sr(p, 2)))
    pending.append((i, p))
def count(slot):
    if PROF and not os.environ.get('ONLY'):
        e('v_writelane_b32 %s, %s, %d' % (vr(vSTAMP), sr(sCNT), slot))

def srd(d, p, size):
    e('s_mov_b32 %s, %s' % (sr(d), sr(p)))
    e('s_mov_b32 %s, %s' % (sr(d + 1), sr(p + 1)))
    e('s_mov_b32 %s, 0x%x' % (sr(d + 2), size))
    e('s_mov_b32 %s, 0x20000' % sr(d + 3))

def cmul(dr, di, ar_, ai, br, bi):
    e('v_mul_f32 %s, %s, %s' % (vr(dr), vr(ar_), vr(br)))
    e('v_mul_f32 %s, %s, %s' % (vr(di), vr(ar_), vr(bi)))
    e('v_fma_f32 %s, -%s, %s, %s' % (vr(dr), vr(ai), vr(bi), vr(dr)))
    e('v_fma_f32 %s, %s, %s, %s' % (vr(di), vr(ai), vr(br), vr(di)))

def cfma(dr, di, ar_, ai, br, bi, cr, ci):
    e('v_fma_f32 %s, %s, %s, %s' % (vr(dr), vr(ar_), vr(br), vr(cr)))
    e('v_fma_f32 %s, %s, %s, %s' % (vr(di), vr(ar_), vr(bi), vr(ci)))
    e('v_fma_f32 %s, -%s, %s, %s' % (vr(dr), vr(ai), vr(bi), vr(dr)))
    e('v_fma_f32 %s, %s, %s, %s' % (vr(di), vr(ai), vr(br), vr(di)))

NEG1 = 'neg_lo:[0,1,0] neg_hi:[0,1,0]'
def pk_cfma4(dr, di, ar_, ai, k, cr, ci):
    for h in (0, 2):
        e('v_pk_fma_f32 %s, %s, %s, %s' % (vr(dr + h, 2), vr(ar_ + h, 2), vr(k + h, 2), vr(cr + h, 2)))
    for h in (0, 2):
        e('v_pk_fma_f32 %s, %s, %s, %s' % (vr(di + h, 2), vr(ai + h, 2), vr(k + h, 2), vr(ci + h, 2)))
    for h in (0, 2):
        e('v_pk_fma_f32 %s, %s, %s, %s %s' % (vr(dr + h, 2), vr(ai + h, 2), vr(k + 4 + h, 2), vr(dr + h, 2), NEG1))
    for h in (0, 2):
        e('v_pk_fma_f32 %s, %s, %s, %s' % (vr(di + h, 2), vr(ar_ + h, 2), vr(k + 4 + h, 2), vr(di + h, 2)))

labn = [0]
def newlab(s):
    labn[0] += 1
    return 'L_%s_%d' % (s, labn[0])

PGS = os.environ.get('PGS', 'st0').split(',')
def page(name):
    if name not in PGS or not OPT['PG'] & 6:
        return
    k = PGS.index(name)
    A.e('s_branch L_pg_%d' % k)
    if OPT['PG'] & 2:
        A.lines.append('.p2align 12')
    if OPT['PG'] & 4:
        A.label('L_stub_%d' % k)
        A.e('s_branch %s' % ('L_stub_%d' % (k + 4) if 0 < k < len(PGS) - 4 else 'L_back'))
    A.label('L_pg_%d' % k)
def touch_pages(k):
    if OPT['PG'] & 8 and OPT['PGT'] == k:
        A.e('s_mov_b64 exec, 0')
        for w in range(3):
            A.e('s_cmp_eq_u32 %s, %d' % (sr(sW), w))
            A.e('s_cbranch_scc1 L_stub_%d' % w)
        A.e('s_branch L_stub_3')
        A.label('L_back')
        A.e('s_mov_b64 exec, -1')
    if not OPT['PG'] & 4 or OPT['PGT'] != k:
        return
    for w in range(3):
        A.e('s_cmp_eq_u32 %s, %d' % (sr(sW), w))
        A.e('s_cbranch_scc1 L_stub_%d' % (w + 1))
    A.e('s_branch L_stub_4')
    A.label('L_back')

def S(fmt, *a):
    e(fmt % tuple(sr(x) if isinstance(x, int) else x for x in a))

def retry_loop(name, issue, check, slot, first=True, after=None):
    lo, ld = newlab(name + 'l'), newlab(name + 'd')
    if first:
        check()
    if PROF:
        S('s_mov_b32 %s, 0', sCNT)
    e('s_cbranch_vccz %s' % ld)
    S('s_mov_b32 %s, 0', sCNT)
    A.label(lo)
    sv = list(A.vm)
    issue()
    e('s_waitcnt vmcnt(0)')
    if after:
        after()
    A.vm = sv
    check()
    S('s_add_u32 %s, %s, 1', sCNT, sCNT)
    e('s_cbranch_vccz %s' % ld)
    S('s_cmp_le_u32 %s, 0x20000', sCNT)
    e('s_cbranch_scc1 %s' % lo)
    A.label(ld)
    count(slot)

def one_lane_store(vt, soff, tag, opt=False, sc=' sc1'):
    e('v_mov_b32 %s, %s' % (vr(vt), sr(sTAG)))
    e('v_mov_b32 %s, 0' % vr(vt + 1))
    e('s_mov_b64 exec, 1')
    A.vmem('buffer_store_dword %s, %s, %s, %s offen%s' % (vr(vt), vr(vt + 1), sr(dWS, 4), soff, sc), tag, opt=opt)
    e('s_mov_b64 exec, -1')
def flag(off, tag):
    S('s_add_u32 %s, %s, %s', sT0, sFL, hex(off))
    e('s_mov_b32 exec_hi, 0')
    A.vmem('buffer_store_dword %s, %s, %s, %s offen sc1' % (vr(vTAG), vr(vTM), sr(dWS, 4), sr(sT0)), tag)
    e('s_mov_b32 exec_hi, -1')

class Q:
    def __init__(self):
        self.q = []
        self.open = set([None])
    def add(self, ops, gate=None):
        self.q += [(c, f, gate) for (c, f) in ops]
    def ready(self):
        return bool(self.q) and self.q[0][2] in self.open
    def cost(self):
        return self.q[0][0]
    def pop1(self):
        self.q.pop(0)[1]()
    def popD(self, n=1):
        while n > 0 and self.ready():
            if self.cost() == 'D':
                n -= 1
            self.pop1()
    def pop(self, n):
        while n > 0 and self.ready():
            c = self.cost()
            n -= 2 if c == 'D' else c
            self.pop1()
    def flush(self):
        while self.q:
            assert self.ready(), self.q[0][2]
            self.pop1()

class Ops(list):
    def v(self, s, c=1):
        self.append((c, lambda: e(s)))
    def s(self, fmt, *a):
        self.append((1, lambda: S(fmt, *a)))
    def f(self, fn, c=1):
        self.append((c, fn))

DQ = Q()
FQ = Q()
ACC, CS, XF, AF, ONE = 0, 80, 100, 132, 152
XA, BA, WA = 156, 160, 164
vX, vB, vW1, vW2 = 168, 170, 172, 175
B1, ST, SS, TMP = 180, 188, 204, 212
BU = TMP + 4
vTB, vTI, vTC, vTG, vSXW, vSXR, vCW, vCR, vPF, vTM, vXO, vGO = range(TMP + 16, TMP + 28)
vPA = TMP + 28
vSA, vTRL, vTAG = 177, 178, 179
vWT, vCT, vPW, vCO = 244, 245, 246, 247
sPM = 40
U0, U1 = 186, 187
SR = ST

e('s_cmp_ge_u32 s2, 256')
e('s_cbranch_scc1 L_end')
if PROF:
    e('v_mov_b32 %s, 0' % vr(vSTAMP))
    stamp('rt0', True)
    stamp('t0')
e('s_load_dwordx16 s[16:31], s[0:1], 0')
e('s_load_dwordx16 s[32:47], s[0:1], 64')
e('s_load_dwordx2 s[48:49], s[0:1], 128')
e('s_getpc_b64 %s' % sr(sPC, 2))
A.label('L_pc')
e('v_and_b32 %s, 63, v0' % vr(vLANE))
e('v_lshrrev_b32 v1, 6, v0')
e('v_lshlrev_b32 %s, 4, %s' % (vr(vL16), vr(vLANE)))
e('v_readfirstlane_b32 %s, v1' % sr(sW))
if OPT['CPF'] == 0:
    e('v_lshlrev_b32 v2, 7, v0')
    e('v_min_u32 v2, L_end-L_pc, v2')
    lab = newlab('npf')
    e('s_cmp_ge_u32 s2, 16')
    e('s_cbranch_scc1 %s' % lab)
    A.vmem('global_load_dword %s, v2, %s' % (vr(vSCR), sr(sPC, 2)), 'pf', opt=True)
    A.label(lab)
else:
    n = OPT['CPF']
    e('v_lshrrev_b32 v2, %d, v0' % (6 - n))
    e('s_and_b32 s3, s2, %d' % (0xf8 >> (n - 1) & 0xf8))
    e('s_lshl_b32 s3, s3, %d' % (6 + n))
    e('v_lshl_add_u32 v2, v2, 7, s3')
    e('v_min_u32 v2, L_end-L_pc, v2')
    A.vmem('global_load_dword %s, v2, %s' % (vr(vSCR), sr(sPC, 2)), 'pf')
S('s_and_b32 %s, s2, 1', sKH)
S('s_lshr_b32 %s, s2, 6', sRBL)
S('s_bfe_u32 %s, s2, 0x30003', sC)
S('s_bfe_u32 s3, s2, 0x20001')
S('s_lshl2_add_u32 %s, s3, %s', sRB, sRBL)
S('s_lshl3_add_u32 %s, %s, %s', sJ, sKH, sC)
S('s_lshl2_add_u32 %s, s2, %s', sGW, sW)
if OPT['ROT'] == 0:
    S('s_mov_b32 %s, 0x76543210', sPERM)
elif OPT['ROT'] == 9:
    PT = [[0, 4, 1, 2, 3, 5, 6, 7], [1, 2, 5, 3, 0, 4, 6, 7], [2, 3, 0, 6, 1, 4, 5, 7], [3, 0, 1, 2, 7, 4, 5, 6]]
    PT = [hex(sum(x << (4 * i) for i, x in enumerate(p))) for p in PT]
    S('s_add_u32 %s, %s, %s', sT0, sRBL, sC)
    S('s_mov_b32 %s, %s', sPERM, PT[0])
    S('s_mov_b32 %s, %s', sT1, PT[2])
    S('s_bitcmp1_b32 %s, 0', sT0)
    S('s_cselect_b32 %s, %s, %s', sPERM, PT[1], sPERM)
    S('s_cselect_b32 %s, %s, %s', sT1, PT[3], sT1)
    S('s_bitcmp1_b32 %s, 1', sT0)
    S('s_cselect_b32 %s, %s, %s', sPERM, sT1, sPERM)
    S('s_add_u32 %s, s3, %s', sT1, sKH)
    S('s_bitcmp1_b32 %s, 0', sT1)
    S('s_cselect_b32 %s, 0x44444444, 0', sT1)
    S('s_xor_b32 %s, %s, %s', sPERM, sPERM, sT1)
elif OPT['ROT'] == 10:
    PT = [[int(c) for c in p] for p in os.environ.get('PT', '01423567,02136457,10253467,13024756').split(',')]
    assert all(sorted(p) == list(range(8)) for p in PT)
    PT = [hex(sum(x << (4 * i) for i, x in enumerate(p))) for p in PT]
    S('s_add_u32 %s, %s, %s', sT0, sRBL, sC)
    S('s_mov_b32 %s, %s', sPERM, PT[0])
    S('s_mov_b32 %s, %s', sT1, PT[2])
    S('s_bitcmp1_b32 %s, 0', sT0)
    S('s_cselect_b32 %s, %s, %s', sPERM, PT[1], sPERM)
    S('s_cselect_b32 %s, %s, %s', sT1, PT[3], sT1)
    S('s_bitcmp1_b32 %s, 1', sT0)
    S('s_cselect_b32 %s, %s, %s', sPERM, sT1, sPERM)
    S('s_lshl1_add_u32 %s, %s, s3', sT1, sKH)
    S('s_and_b32 %s, %s, 3', sT1, sT1)
    S('s_mul_i32 %s, %s, 0x22222222', sT1, sT1)
    S('s_xor_b32 %s, %s, %s', sPERM, sPERM, sT1)
elif OPT['ROT'] == 8:
    S('s_lshl1_add_u32 %s, %s, %s', sT0, sRBL, sC)
    S('s_add_u32 %s, %s, s3', sT0, sT0)
    S('s_and_b32 %s, %s, 7', sT0, sT0)
    S('s_mul_i32 %s, %s, 0x11111111', sT0, sT0)
    S('s_add_u32 %s, %s, 0x76543210', sT0, sT0)
    S('s_and_b32 %s, %s, 0x77777777', sPERM, sT0)
else:
    S('s_add_u32 %s, %s, %s', sT0, sRBL, sC)
    S('s_and_b32 %s, %s, 3', sT0, sT0)
    S('s_mul_i32 %s, %s, 0x11111111', sT0, sT0)
    S('s_add_u32 %s, %s, 0x32103210', sT0, sT0)
    S('s_and_b32 %s, %s, 0x33333333', sT0, sT0)
    if OPT['ROT'] == 4:
        S('s_add_u32 %s, s3, %s', sT1, sKH)
    elif OPT['ROT'] == 6:
        S('s_mov_b32 %s, 0', sT1)
    else:
        S('s_lshr_b32 %s, %s, 2', sT1, sC)
        S('s_add_u32 %s, %s, s3', sT1, sT1)
    S('s_bitcmp0_b32 %s, 0', sT1)
    S('s_mov_b32 %s, 0x4444', sT1)
    S('s_cselect_b32 %s, 0x44440000, %s', sT1, sT1)
    S('s_or_b32 %s, %s, %s', sPERM, sT0, sT1)
e('v_lshrrev_b32 %s, 5, %s' % (vr(vHI5), vr(vLANE)))
e('v_and_b32 %s, 31, %s' % (vr(vLO5), vr(vLANE)))
e('v_lshrrev_b32 %s, 4, %s' % (vr(vG), vr(vLANE)))
e('v_and_b32 %s, 15, %s' % (vr(vLO4), vr(vLANE)))
S('s_lshr_b32 %s, %s, 1', sTH, sW)
S('s_and_b32 %s, %s, 1', sPH, sW)
e('v_and_b32 v1, 7, %s' % vr(vLANE))
e('v_lshrrev_b32 v3, 3, %s' % vr(vLANE))
e('v_xor_b32 v4, v1, %s' % vr(vG))
e('v_lshlrev_b32 v4, 4, v4')
S('s_lshl1_add_u32 %s, %s, %s', sT0, sRB, sTH)
S('s_lshl_b32 %s, %s, 6', sT0, sT0)
S('s_add_u32 %s, %s, %s', sT0, sT0, sPH)
S('s_lshl_b32 %s, %s, 10', sT0, sT0)
e('v_lshl_add_u32 v5, v3, 12, v4')
e('v_add_u32 %s, %s, v5' % (vr(vX), sr(sT0)))
e('v_xor_b32 %s, 64, %s' % (vr(vX + 1), vr(vX)))
e('v_add_u32 %s, %d, %s' % (vr(vX + 1), 31 * 1024, vr(vX + 1)))
S('s_lshl1_add_u32 %s, %s, %s', sCG, sJ, sTH)
S('s_lshl_b32 %s, %s, 14', sCG, sCG)
e('v_lshl_add_u32 v5, v3, 10, v4')
e('v_add_u32 %s, %s, v5' % (vr(vB), sr(sCG)))
e('v_xor_b32 %s, 64, %s' % (vr(vB + 1), vr(vB)))
e('v_add_u32 %s, %d, %s' % (vr(vB + 1), 7 * 1024, vr(vB + 1)))
S('s_lshr_b32 %s, %s, 2', sT0, sJ)
S('s_mul_i32 %s, %s, 22', sT0, sT0)
S('s_and_b32 %s, %s, 3', sT1, sJ)
if OPT['ZJ']:
    S('s_cmp_eq_u32 %s, 3', sT1)
    S('s_cselect_b32 %s, 8, 0', sU0)
S('s_mul_i32 %s, %s, 6', sT1, sT1)
S('s_add_u32 %s, %s, %s', sJT, sT0, sT1)
S('s_lshl_b32 %s, %s, 5', sSW, sJT)
S('s_mul_i32 %s, %s, %s', sT0, sW, str(16 * 2752))
S('s_add_u32 %s, %s, %s', sSW, sSW, sT0)
S('s_movk_i32 %s, 5462', sT0)
S('s_movk_i32 %s, 2752', sT1)
for i in range(3):
    e('v_add_u32 v6, %d, %s' % (64 * i, vr(vLANE)))
    e('v_mul_u32_u24 v7, %s, v6' % sr(sT0))
    e('v_lshrrev_b32 v7, 16, v7')
    e('v_mul_u32_u24 v8, 12, v7')
    e('v_sub_u32 v6, v6, v8')
    e('v_lshrrev_b32 v8, 3, v7')
    e('v_lshlrev_b32 v8, 1, v8')
    e('v_xor_b32 v6, v6, v8')
    e('v_mul_u32_u24 v7, %s, v7' % sr(sT1))
    if OPT['ZJ']:
        e('v_and_b32 v8, %s, v6' % sr(sU0))
        e('v_lshl_add_u32 v7, v8, 27, v7')
    e('v_lshl_add_u32 v6, v6, 4, v7')
    e('v_add_u32 %s, %s, v6' % (vr(vW1 + i), sr(sSW)))
    if i < 2:
        S('s_sub_u32 %s, %s, 1024', sSW, sSW)
S('s_mul_i32 %s, %s, %s', sM0, sW, str(PIECE))
S('s_lshl_b32 %s, %s, 6', sT0, sJ)
e('v_lshl_add_u32 v9, %s, 1, %s' % (vr(vLO5), sr(sT0)))
e('v_mov_b32 v10, 0')
S('s_mov_b32 %s, 0x200000', dX + 2)
S('s_mov_b32 %s, 0x20000', dX + 3)
S('s_mov_b32 %s, 0x80000', dB + 2)
S('s_mov_b32 %s, 0x20000', dB + 3)
S('s_mov_b32 %s, %s', dW1 + 2, str(512 * 2752))
S('s_mov_b32 %s, 0x20000', dW1 + 3)
S('s_mov_b32 %s, %s', dWS + 2, hex(WS_SIZE))
S('s_mov_b32 %s, 0x20000', dWS + 3)
S('s_movk_i32 %s, 2752', dO + 2)
S('s_mov_b32 %s, 0x20000', dO + 3)
S('s_add_u32 %s, %s, %s', sT0, sJT, sPH)
S('s_lshl_b32 %s, %s, 5', sT0, sT0)
e('v_lshl_add_u32 v15, %s, 3, %s' % (vr(vG), sr(sT0)))
S('s_lshl_b32 %s, %s, 7', sT1, sC)
e('v_lshl_add_u32 v16, %s, 3, %s' % (vr(vLO4), sr(sT1)))

def stage_dma(v):
    slot = v & 3
    tag = 'st%d' % v
    ops = []
    sc = lambda fmt, *a: ops.append((1, lambda: S(fmt, *a)))
    dm = lambda txt: ops.append(('D', lambda: A.vmem(txt, tag)))
    sc('s_bfe_u32 %s, %s, %s', sSW, sPERM, '0x%x' % (4 * v + 0x30000))
    sc('s_add_u32 m0, %s, %s', sM0, str(slot * SLOT + 4096))
    sc('s_lshl_b32 %s, %s, 7', sSX, sSW)
    for i in range(2):
        dm('buffer_load_dwordx4 %s, %s, %s offen offset:%d%s lds' % (vr(vB + i), sr(dB, 4), sr(sSX), i * 1024, ' nt' if v <= OPT['NTW'] else ''))
    sc('s_add_u32 m0, %s, %s', sM0, str(slot * SLOT + 6144))
    sc('s_mul_i32 %s, %s, %s', sSW, sSW, str(64 * 2752))
    for i in range(3):
        dm('buffer_load_dwordx4 %s, %s, %s offen offset:%d%s lds' % (vr(vW1 + i), sr(dW1, 4), sr(sSW), i * 1024, ' nt' if v <= OPT['NTW'] else ''))
    sc('s_add_u32 m0, %s, %s', sM0, str(slot * SLOT))
    for i in range(4):
        dm('buffer_load_dwordx4 %s, %s, %s offen offset:%d%s lds' % (vr(vX + (i & 1)), sr(dX, 4), sr(sSX), i * 1024, ' nt' if v <= OPT['NTX'] else ''))
    return ops

S('s_lshl1_add_u32 %s, %s, %s', sT0, sRB, sKH)
S('s_and_b32 %s, %s, 1', sT1, sJ)
S('s_lshl1_add_u32 %s, %s, %s', sT0, sT0, sT1)
S('s_lshl2_add_u32 %s, %s, %s', sT0, sT0, sW)
S('s_bfe_u32 %s, %s, 0x20001', sT1, sJ)
S('s_lshl3_add_u32 %s, %s, %s', sT0, sT0, sT1)
S('s_lshl_b32 %s, %s, 10', sM8, sT0)
e('v_lshlrev_b32 %s, 12, %s' % (vr(vSA), vr(vHI5)))
e('v_lshl_add_u32 %s, %s, 4, %s' % (vr(vSA), vr(vLO5), vr(vSA)))
d0 = stage_dma(0)
for (c, f) in d0[:3]:
    f()
P = Ops()
P.v('v_lshrrev_b32 v1, 1, %s' % vr(vLO4))
P.v('v_xor_b32 v1, v1, %s' % vr(vG))
P.v('v_lshlrev_b32 v1, 4, v1')
P.v('v_lshl_add_u32 v1, %s, 7, v1' % vr(vLO4))
P.s('s_lshl_b32 %s, %s, 6', sT0, sTH)
P.v('v_xor_b32 v1, %s, v1' % sr(sT0))
P.v('v_xor_b32 v2, 64, v1')
P.s('s_mul_i32 %s, %s, %s', sT0, sTH, str(2 * PIECE))
P.s('s_mul_i32 %s, %s, %s', sT1, sPH, str(2 * PIECE))
P.s('s_add_u32 %s, %s, 4096', sT1, sT1)
for k in range(2):
    P.v('v_add_u32 %s, %s, v%d' % (vr(XA + 2 * k), sr(sT0), 1 + k))
    P.v('v_add_u32 %s, %s, v%d' % (vr(BA + 2 * k), sr(sT1), 1 + k))
    P.v('v_add_u32 %s, %d, %s' % (vr(XA + 2 * k + 1), 2 * SLOT, vr(XA + 2 * k)))
    P.v('v_add_u32 %s, %d, %s' % (vr(BA + 2 * k + 1), 2 * SLOT, vr(BA + 2 * k)))
P.v('v_bfe_u32 v1, %s, 2, 2' % vr(vLANE))
P.v('v_bfe_u32 v2, %s, 4, 1' % vr(vLANE))
P.v('v_lshl_add_u32 v3, v2, 3, v1')
P.v('v_mul_u32_u24 v3, 192, v3')
P.v('v_xor_b32 v4, %s, v2' % sr(sPH))
P.v('v_lshl_add_u32 v3, v4, 5, v3')
P.v('v_and_b32 v4, 3, %s' % vr(vLANE))
P.v('v_lshl_add_u32 v3, v4, 3, v3')
P.s('s_movk_i32 %s, %s', sT1, str(PIECE))
P.v('v_mad_u32_u24 v3, %s, %s, v3' % (vr(vHI5), sr(sT1)))
P.s('s_add_u32 %s, %s, 6144', sT1, sT0)
P.s('s_sub_u32 %s, %s, %s', sT0, str(2 * PIECE + 6144), sT0)
P.v('v_add_u32 %s, %s, v3' % (vr(WA), sr(sT1)))
P.v('v_add_u32 %s, %s, v3' % (vr(WA + 2), sr(sT0)))
P.v('v_add_u32 %s, %d, %s' % (vr(WA + 1), 2 * SLOT, vr(WA)))
P.v('v_add_u32 %s, %d, %s' % (vr(WA + 3), 2 * SLOT, vr(WA + 2)))
P.v('v_and_b32 v5, 7, %s' % vr(vLANE))
P.v('v_lshlrev_b32 v6, 2, v2')
P.v('v_xor_b32 v5, v5, v6')
P.v('v_lshlrev_b32 v5, 4, v5')
P.v('v_lshrrev_b32 v6, 3, %s' % vr(vLANE))
P.v('v_lshl_add_u32 %s, v6, 10, v5' % vr(vW2))
P.v('v_add_u32 %s, %d, %s' % (vr(vW2 + 1), 7 * 1024, vr(vW2)))
P.v('v_lshl_add_u32 v5, %s, 3, v1' % vr(vHI5))
P.v('v_lshlrev_b32 v5, 7, v5')
P.v('v_lshrrev_b32 v6, 1, v1')
P.v('v_lshl_add_u32 v5, v6, 6, v5')
P.v('v_lshl_add_u32 v5, v2, 5, v5')
P.v('v_lshl_add_u32 %s, v4, 3, v5' % vr(vTRL))
P.v('v_mov_b32 %s, 0x3f803f80' % vr(ONE))
for q in range(5):
    P.v('v_cmp_eq_u32 %s, %d, %s' % (sr(sMSK[q & 3], 2) if q < 4 else 'vcc', q, vr(vLO4)))
for q in range(5):
    P.v('v_cndmask_b32 %s, 0, %s, %s' % (vr(CS + 4 * q), vr(ONE), sr(sMSK[q & 3], 2) if q < 4 else 'vcc'))
for q in range(5):
    P.v('v_mov_b32 %s, %s' % (vr(CS + 4 * q + 1), vr(CS + 4 * q)))
for q in range(5):
    P.v('v_mov_b64 %s, %s' % (vr(CS + 4 * q + 2, 2), vr(CS + 4 * q, 2)))
P.s('s_lshl2_add_u32 %s, %s, %s', sT1, sKH, sW)
P.s('s_lshl_b32 %s, %s, 9', sCO, sC)
P.s('s_add_u32 %s, %s, %s', sCO, sCO, sT1)
P.s('s_lshl_b32 %s, %s, 7', sCO, sCO)
P.s('s_lshr_b32 %s, %s, 1', sT0, sT1)
P.s('s_mul_i32 %s, %s, 22', sT0, sT0)
P.s('s_add_u32 %s, %s, %s', sT0, sT0, sPH)
P.s('s_lshl_b32 %s, %s, 7', sWS, sT0)
P.s('s_add_u32 %s, %s, %s', sWS, sWS, sC)
P.s('s_lshl_b32 %s, %s, 7', sWS, sWS)
P.v('v_lshlrev_b32 %s, 10, %s' % (vr(vCT), vr(vLANE)))
P.v('v_lshrrev_b32 %s, 2, %s' % (vr(U0), vr(vLANE)))
P.v('v_mad_u32_u24 %s, v4, 3, %s' % (vr(U0), vr(U0)))
P.s('s_lshl2_add_u32 %s, %s, s3', sU0, sRBL)
P.s('s_lshl_b32 %s, %s, 10', sT1, sU0)
P.v('v_lshl_add_u32 %s, %s, 15, %s' % (vr(vPW), vr(U0), sr(sT1)))
P.s('s_lshl_b32 %s, %s, 2', sU0, sU0)
P.s('s_mov_b32 %s, %s', dW2 + 2, str(1376 * 1024))
P.s('s_mov_b32 %s, 0x20000', dW2 + 3)
P.s('s_mul_i32 %s, %s, %s', sME, sTH, str(SLOT))
P.s('s_lshl_b32 %s, %s, 11', sT0, sPH)
P.s('s_add_u32 %s, %s, %s', sME, sME, sT0)
P.s('s_add_u32 %s, %s, 32768', sME, sME)
P.s('s_lshl_b32 %s, %s, 6', sT0, sPH)
P.s('s_add_u32 %s, %s, %s', sT0, sT0, str(TAB))
P.s('s_movk_i32 %s, %s', sT1, str(TROW))
P.v('v_lshl_add_u32 %s, %s, 4, %s' % (vr(vTB), vr(vG), sr(sT0)))
P.v('v_lshl_add_u32 %s, %s, 2, %s' % (vr(vTC), vr(vLO4), sr(sT0)))
P.v('v_mad_u32_u24 %s, %s, %s, %s' % (vr(vTI), vr(vLO4), sr(sT1), vr(vTB)))
P.v('v_min_u32 %s, 1, %s' % (vr(U0), vr(vG)))
P.v('v_lshl_add_u32 %s, %s, 4, %s' % (vr(U0), vr(U0), vr(vG)))
P.v('v_mad_u32_u24 %s, %s, %s, %s' % (vr(vTG), vr(U0), sr(sT1), vr(vTC)))
P.s('s_mul_i32 %s, %s, 320', sT0, sW)
P.s('s_add_u32 %s, %s, %s', sT0, sT0, str(CSX))
P.v('v_lshl_add_u32 %s, %s, 4, %s' % (vr(vCO), vr(vG), sr(sT0)))
P.v('v_lshl_add_u32 %s, %s, 6, %s' % (vr(vCW), vr(vLO4), vr(vCO)))
P.s('s_xor_b32 %s, %s, 2', sT0, sW)
P.s('s_mul_i32 %s, %s, 320', sT0, sT0)
P.s('s_add_u32 %s, %s, %s', sT0, sT0, str(CSX))
P.v('v_lshl_add_u32 %s, %s, 4, %s' % (vr(vCR), vr(vG), sr(sT0)))
P.v('v_lshl_add_u32 %s, %s, 2, %s' % (vr(vSXW), vr(vLO4), sr(sT0)))
P.s('s_mul_i32 %s, %s, 320', sT0, sPH)
P.s('s_add_u32 %s, %s, %s', sT0, sT0, str(CSX))
P.v('v_lshl_add_u32 %s, %s, 2, %s' % (vr(vSXR), vr(vLO4), sr(sT0)))
P.s('s_sub_u32 %s, %s, 1', sT0, sRB)
P.v('v_sub_u32 %s, %s, %s' % (vr(U0), sr(sT0), vr(vG)))
P.v('v_lshlrev_b32 %s, 4, %s' % (vr(U1), vr(vLO4)))
for i in range(4):
    P.v('v_subrev_u32 %s, %d, %s' % (vr(vPA + i), 4 * i, vr(U0)))
    P.v('v_cmp_le_i32 %s, 0, %s' % (sr(sMSK[i], 2), vr(vPA + i)))
    P.v('v_max_i32 %s, 0, %s' % (vr(vPA + i), vr(vPA + i)))
    P.v('v_lshl_add_u32 %s, %s, 8, %s' % (vr(vPA + i), vr(vPA + i), vr(U1)))
P.v('v_lshlrev_b32 %s, 2, %s' % (vr(vTM), vr(vLO5)))
P.s('s_lshl1_add_u32 %s, %s, %s', sT0, sRB, sKH)
P.s('s_lshl1_add_u32 %s, %s, %s', sT0, sT0, sTH)
P.s('s_lshl2_add_u32 %s, %s, %s', sT0, sT0, sPH)
P.s('s_lshl_b32 %s, %s, 3', sT0, sT0)
P.v('v_and_b32 %s, 1, %s' % (vr(vGO), vr(vG)))
P.v('v_lshl_add_u32 %s, %s, 2, %s' % (vr(vGO), vr(vGO), vr(vHI5)))
P.v('v_lshl_add_u32 %s, %s, 2, %s' % (vr(U0), vr(vGO), sr(sT0)))
P.v('v_lshl_add_u32 %s, %s, 10, v16' % (vr(vXO), vr(U0)))
P.v('v_lshlrev_b32 %s, 4, %s' % (vr(vGO), vr(vGO)))
print('argument-free prologue ops', len(P))
for (c, f) in P[:OPT['NPK']]:
    f()
S('s_cmp_eq_u32 %s, 0', sPH)
stamp('pre')
A.wait_lg0()
stamp('karg')
S('s_cselect_b64 %s, %s, %s', sr(dB, 2), sr(pBRE, 2), sr(pBIM, 2))
S('s_mov_b64 %s, %s', sr(dX, 2), sr(pX, 2))
S('s_mov_b64 %s, %s', sr(dWS, 2), sr(pWS, 2))
lre, lim, ldt, vEP = 11, 12, 13, 14
A.vmem('global_load_ushort %s, v9, %s' % (vr(lre), sr(pLRE, 2)), 'lam')
A.vmem('global_load_ushort %s, v9, %s' % (vr(lim), sr(pLIM, 2)), 'lam')
A.vmem('global_load_ushort %s, v9, %s' % (vr(ldt), sr(pLDT, 2)), 'lam')
A.vmem('buffer_load_dword %s, v10, %s, 0 offen sc1' % (vr(vEP), sr(dWS, 4)), 'lam')
S('s_mov_b64 %s, %s', sr(dW1, 2), sr(pW1, 2))
for i in range(2):
    A.vmem('buffer_load_dwordx4 %s, %s, %s, %s offen offset:%d' % (vr(SR + 4 * i, 4), vr(vSA), sr(dX, 4), sr(sM8), 512 * i), 'srow')
S('s_mov_b64 %s, %s', sr(dO, 2), sr(pB1, 2))
def b1_loads():
    o = Ops()
    for v in range(3):
        o.f(lambda v=v: A.vmem('buffer_load_dwordx2 %s, v15, %s, 0 offen offset:%d' % (vr(B1 + 2 * v, 2), sr(dO, 4), 64 * v), 'b1'), 2)
    o.f(lambda: A.vmem('global_load_dwordx2 a[248:249], v16, %s' % sr(pDSK, 2), 'b1'), 2)
    o.f(lambda: A.vmem('global_load_dwordx2 a[250:251], v16, %s' % sr(pB2, 2), 'b1'), 2)
    o.s('s_mov_b32 %s, 0x80000', dO + 2)
    o.f(lambda: FQ.open.add('b1'), 0)
    return o
if OPT['B1P'] == -1:
    for (c, f) in b1_loads():
        f()
if OPT['PB']:
    e('s_barrier')
DQ.add(d0[3:])
if OPT['B1P'] == 0:
    DQ.add(b1_loads())
DQ.popD(OPT['D0A'])
AUTO.update(on=True, any=True, int=OPT['PINT'], nxt=AUTO['t'])
S('s_mov_b64 %s, %s', sr(dW2, 2), sr(pW2, 2))
S('s_lshl_b32 %s, %s, 13', sM8, sW)
for (c, f) in P[OPT['NPK']:]:
    f()
S('s_lshl_b64 %s, 15, %s', sr(sPM, 2), sU0)
S('s_lshl1_add_u32 %s, %s, %s', sT1, sRB, sKH)
S('s_lshl3_add_u32 %s, %s, %s', sGR, sT1, sTH)
S('s_lshl2_add_u32 %s, %s, %s', sGR, sGR, sPH)
S('s_lshl_b32 %s, %s, 5', sGR, sGR)
S('s_add_u32 %s, %s, %s', sGR, sGR, hex(WS_G + 8))
S('s_lshl1_add_u32 %s, %s, %s', sT0, sJ, sPH)
S('s_lshl_b32 %s, %s, 12', sT0, sT0)
S('s_add_u32 %s, %s, %s', sSG, sT0, hex(WS_SG))
S('s_lshl_b32 %s, %s, 8', sSGO, sRB)
S('s_add_u32 %s, %s, %s', sSGO, sSGO, sSG)
S('s_lshl1_add_u32 %s, %s, %s', sT1, sRB, sTH)
S('s_mul_i32 %s, %s, %s', sT1, sT1, str(HR))
S('s_add_u32 %s, %s, %s', sHS, sT0, sT1)
S('s_add_u32 %s, %s, %s', sHS, sHS, hex(WS_H + 88 * 2048))
S('s_add_u32 %s, %s, %s', sHM, sJT, sPH)
S('s_lshl_b32 %s, %s, 11', sHM, sHM)
S('s_add_u32 %s, %s, %s', sHM, sHM, sT1)
S('s_add_u32 %s, %s, %s', sHM, sHM, hex(WS_H))
S('s_lshl4_add_u32 %s, %s, %s', sFL, sRB, sJ)
S('s_lshl2_add_u32 %s, %s, %s', sFL, sFL, sW)
S('s_lshl_b32 %s, %s, 5', sF0, sFL)
S('s_add_u32 %s, %s, %s', sF0, sF0, hex(WS_G))
S('s_lshl_b32 %s, %s, 7', sFL, sFL)
S('s_add_u32 %s, %s, 1', sF1, sJ)
S('s_and_b32 %s, %s, 3', sF1, sF1)
def late_scalars():
    S('s_lshr_b32 %s, %s, 14', sT0, sWS)
    S('s_lshl_b32 %s, %s, 11', sT0, sT0)
    S('s_add_u32 %s, %s, %s', sT0, sT0, hex(WS_H))
    S('s_lshl2_add_u32 %s, %s, %s', sT2, sKH, sW)
    S('s_lshl_b32 %s, %s, 14', sT2, sT2)
    S('s_add_u32 %s, %s, %s', sT2, sT2, hex(WS_H + 88 * 2048))
    S('s_lshl1_add_u32 %s, %s, %s', sT1, sRB, sKH)
    S('s_mul_i32 %s, %s, %s', sT3, sT1, str(HR))
    S('s_add_u32 %s, %s, %s', sH2, sT3, sT0)
    S('s_add_u32 %s, %s, %s', sP2, sT3, sT2)
    S('s_xor_b32 %s, %s, 1', sT3, sT1)
    S('s_mul_i32 %s, %s, %s', sT3, sT3, str(HR))
    S('s_add_u32 %s, %s, %s', sH1, sT3, sT0)
    S('s_add_u32 %s, %s, %s', sP1, sT3, sT2)
    S('s_lshl1_add_u32 %s, %s, %s', sPA, sT1, sTH)
    S('s_lshl4_add_u32 %s, %s, %s', sPA, sPA, sPH)
    S('s_lshl_b32 %s, %s, 7', sPA, sPA)
    S('s_add_u32 %s, %s, %s', sPA, sPA, hex(WS_FA))
    S('s_lshl2_add_u32 %s, %s, %s', sPB, sT1, sW)
    S('s_lshl_b32 %s, %s, 10', sPB, sPB)
    S('s_add_u32 %s, %s, %s', sPB, sPB, hex(WS_FB))
    S('s_lshl_b32 %s, %s, 12', sPX, sGW)
    S('s_add_u32 %s, %s, %s', sPX, sPX, hex(WS_PX))
    e('v_and_b32 %s, 7, %s' % (vr(vPF), vr(vLANE)))
    e('v_lshlrev_b32 %s, 8, %s' % (vr(vPF), vr(vPF)))
stamp('prep')
print('DQ left after prep', len(DQ.q))
DQ.flush()
AUTO.update(on=False, any=False, int=OPT['EINT'])
def w_prefetch():
    o = Ops()
    def f():
        e('s_mov_b64 exec, 0x7ff')
        A.vmem('buffer_load_dword %s, %s, %s, %s offen' % (vr(vSCR), vr(vPW), sr(dW2, 4), sr(sWS)), 'touch')
        e('s_mov_b64 exec, %s' % sr(sPM, 2))
        for p in (pCRE, pCIM):
            S('s_mov_b64 %s, %s', sr(dO, 2), sr(p, 2))
            A.vmem('buffer_load_dword %s, %s, %s, %s offen' % (vr(vSCR), vr(vCT), sr(dO, 4), sr(sCO)), 'touch')
        e('s_mov_b64 exec, -1')
    o.f(f, 8)
    return o
if OPT['WPF'] == -2:
    w_prefetch()[0][1]()
stamp('d0')
touch_pages(1)
A.wait_vm('lam')
stamp('lam')
LOG2E = math.log2(math.e)
e('v_readfirstlane_b32 %s, %s' % (sr(sTAG), vr(vEP)))
for r in (lre, lim, ldt):
    e('v_lshlrev_b32 %s, 16, %s' % (vr(r), vr(r)))
e('v_mul_f32 %s, %s, %s' % (vr(ldt), f2u(LOG2E), vr(ldt)))
e('v_exp_f32 %s, %s' % (vr(ldt), vr(ldt)))
S('s_add_u32 %s, %s, 1', sTAG, sTAG)
e('v_add_u32 %s, 1, %s' % (vr(vTAG), vr(vEP)))
S('s_lshl_b32 %s, %s, 1', sT0, sW)
e('v_add_u32 v1, %s, %s' % (sr(sT0), vr(vHI5)))
e('v_cvt_pk_bf16_f32 %s, %s, %s' % (vr(ldt), vr(ldt), vr(ldt)))
e('v_cvt_f32_u32 v2, v1')
e('v_lshlrev_b32 %s, 16, %s' % (vr(ldt), vr(ldt)))
e('v_cmp_lt_u32 vcc, 4, v1')
e('v_mul_u32_u24 v3, %d, v1' % TROW)
e('v_mul_f32 v5, %s, %s' % (vr(ldt), vr(lre)))
e('v_mul_f32 v6, %s, %s' % (vr(ldt), vr(lim)))
e('v_lshl_add_u32 v3, %s, 2, v3' % vr(vLO5))
e('v_mul_f32 v5, %s, v5' % f2u(LOG2E))
e('v_mul_f32 v6, 0.15915494, v6')
e('v_add_u32 v3, %d, v3' % TAB)
e('v_mul_f32 v20, 4.0, v2')
e('v_add_f32 v21, %s, v20' % f2u(32.0))
e('v_mul_f32 v22, %s, v2' % f2u(128.0))
e('v_max_f32 v22, %s, v22' % f2u(64.0))
e('v_add_f32 v23, -4.0, v2')
e('v_cndmask_b32 v22, v22, v23, vcc')
for r in range(3):
    e('v_mul_f32 v%d, v%d, v5' % (24 + r, 20 + r))
    e('v_mul_f32 v%d, v%d, v6' % (28 + r, 20 + r))
for r in range(3):
    e('v_exp_f32 v%d, v%d' % (24 + r, 24 + r))
    e('v_rndne_f32 v%d, v%d' % (20 + r, 28 + r))
for r in range(3):
    e('v_sub_f32 v%d, v%d, v%d' % (28 + r, 28 + r, 20 + r))
for r in range(3):
    e('v_cos_f32 v%d, v%d' % (20 + r, 28 + r))
    e('v_sin_f32 v%d, v%d' % (28 + r, 28 + r))
for r in range(3):
    e('v_mul_f32 v%d, v%d, v%d' % (20 + r, 20 + r, 24 + r))
    e('v_mul_f32 v%d, v%d, v%d' % (28 + r, 28 + r, 24 + r))
for r in range(3):
    A.ds('ds_write_b32 v3, v%d offset:%d' % (20 + r, 8 * r * TROW), 'tab')
    A.ds('ds_write_b32 v3, v%d offset:%d' % (28 + r, 8 * r * TROW + 128), 'tab')
lab = newlab('ncf')
S('s_cmp_lg_u32 %s, 2', sW)
e('s_cbranch_scc1 %s' % lab)
e('v_mul_f32 v24, %s, %s' % (vr(lre), vr(lre)))
e('v_fma_f32 v24, %s, %s, v24' % (vr(lim), vr(lim)))
e('v_rcp_f32 v24, v24')
e('v_add_f32 v25, -1.0, v22')
e('v_mul_f32 v26, v25, %s' % vr(lre))
e('v_mul_f32 v27, v30, %s' % vr(lre))
e('v_add_f32 v24, v24, v24')
e('v_fma_f32 v26, v30, %s, v26' % vr(lim))
e('v_fma_f32 v27, -v25, %s, v27' % vr(lim))
e('v_mul_f32 v26, v26, v24')
e('v_mul_f32 v27, v27, v24')
e('s_mov_b32 exec_lo, 0')
e('ds_write_b32 v3, v26 offset:%d' % (19 * TROW))
e('ds_write_b32 v3, v27 offset:%d' % (19 * TROW + 128))
e('s_mov_b32 exec_lo, -1')
A.label(lab)
stamp('tab')
R_L64, R_L512, R_L1, R_L2, R_L3, R_CF = 16, 20, 21, 22, 23, 24

def stat_compute_ops():
    o = Ops()
    t = SR + 8
    o.f(lambda: A.wait_vm('srow'))
    o.v('v_dot2_f32_bf16 v%d, v%d, v%d, 0' % (t, SR, ONE), 2)
    o.v('v_dot2_f32_bf16 v%d, v%d, v%d, 0' % (t + 1, SR, SR), 2)
    for i in range(1, 8):
        o.v('v_dot2_f32_bf16 v%d, v%d, v%d, v%d' % (t, SR + i, ONE, t), 2)
        o.v('v_dot2_f32_bf16 v%d, v%d, v%d, v%d' % (t + 1, SR + i, SR + i, t + 1), 2)
    for sh in (1, 2, 4, 8):
        for r in (t, t + 1):
            o.v('v_add_f32_dpp v%d, v%d, v%d row_shr:%d row_mask:0xf bank_mask:0xf bound_ctrl:0' % (r, r, r, sh))
    for r in (t, t + 1):
        o.v('v_add_f32_dpp v%d, v%d, v%d row_bcast:15 row_mask:0xa bank_mask:0xf' % (r, r, r))
    mean, var, sb, rs, m2, v2_, mb = t, t + 1, t + 2, t + 3, t + 8, t + 9, t + 10
    g0 = t + 4
    def rnd(d, s):
        o.v('v_cvt_pk_bf16_f32 v%d, v%d, v%d' % (d, s, s))
        o.v('v_lshlrev_b32 v%d, 16, v%d' % (d, d))
    o.v('v_mul_f32 v%d, %s, v%d' % (mean, f2u(1.0 / 512), mean))
    o.v('v_mul_f32 v%d, %s, v%d' % (var, f2u(1.0 / 512), var))
    o.v('v_fma_f32 v%d, -v%d, v%d, v%d' % (var, mean, mean, var))
    o.v('v_max_f32 v%d, 0, v%d' % (var, var))
    rnd(mb, mean)
    rnd(sb, var)
    o.v('v_add_f32 v%d, %s, v%d' % (sb, f2u(1e-5), sb))
    rnd(sb, sb)
    o.v('v_sqrt_f32 v%d, v%d' % (sb, sb), 2)
    o.v('v_sub_f32 v%d, v%d, v%d' % (m2, mean, mb))
    rnd(sb, sb)
    o.v('v_rcp_f32 v%d, v%d' % (rs, sb), 2)
    o.v('v_cvt_pk_bf16_f32 v%d, v%d, v%d' % (g0 + 2, mb, sb))
    o.v('v_mul_f32 v%d, v%d, v%d' % (m2, m2, rs))
    o.v('v_mul_f32 v%d, v%d, v%d' % (v2_, var, rs))
    rnd(m2, m2)
    o.v('v_mul_f32 v%d, v%d, v%d' % (v2_, v2_, rs))
    o.v('v_fma_f32 v%d, v%d, v%d, v%d' % (g0, m2, sb, mb))
    rnd(v2_, v2_)
    o.v('v_add_f32 v%d, %s, v%d' % (v2_, f2u(1e-5), v2_))
    rnd(v2_, v2_)
    o.v('v_sqrt_f32 v%d, v%d' % (v2_, v2_), 2)
    o.v('v_mov_b32 v%d, %s' % (g0 + 3, sr(sTAG)))
    rnd(v2_, v2_)
    o.v('v_mul_f32 v%d, v%d, v%d' % (g0 + 1, v2_, sb))
    o.s('s_lshl_b32 %s, %s, 5', sT0, sW)
    o.s('s_add_u32 %s, %s, %s', sT0, sT0, str(CSX))
    o.v('v_lshl_add_u32 v%d, %s, 4, %s' % (t, vr(vHI5), sr(sT0)))
    o.v('v_add_u32 v%d, %d, %s' % (SR, CSX, vr(vL16)))
    o.v('s_mov_b32 exec_lo, 0x80000000')
    o.v('s_mov_b32 exec_hi, 0x80000000')
    o.f(lambda: A.ds('ds_write_b128 v%d, %s offset:%d' % (t, vr(g0, 4), 0), 'gw'))
    o.v('s_mov_b64 exec, -1')
    o.f(lambda: stamp('gs'))
    o.s('s_lshl1_add_u32 %s, %s, %s', sD0, sRB, sTH)
    o.s('s_lshl_b32 %s, %s, 10', sD0, sD0)
    o.s('s_add_u32 %s, %s, %s', sD0, sD0, hex(WS_G))
    o.v('v_lshlrev_b32 %s, 4, %s' % (vr(vSA), vr(vLO4)))
    return o
if OPT['WPF'] == -1:
    w_prefetch()[0][1]()
DQ.add(stage_dma(1))
DQ.popD(OPT['D1A'])
for (c, f) in stat_compute_ops():
    f()
touch_pages(2)
if OPT['WPF'] == -3:
    w_prefetch()[0][1]()
DQ.popD(OPT['D1B'] - OPT['D1A'])
A.wait_lg0()
stamp('d1')
def b1_ops():
    o = Ops()
    o.f(lambda: A.wait_vm('b1'), 0)
    for v in range(3):
        for hh in range(2):
            o.v('v_lshlrev_b32 %s, 16, %s' % (vr(BU + 4 * v + 2 * hh), vr(B1 + 2 * v + hh)))
            o.v('v_and_b32 %s, 0xffff0000, %s' % (vr(BU + 4 * v + 2 * hh + 1), vr(B1 + 2 * v + hh)))
    return o
def stat_loads():
    return [('D' if OPT['STD'] else 2, lambda T=T: A.vmem('buffer_load_dwordx4 %s, %s, %s, %s offen offset:%d sc1' % (vr(ST + 4 * T, 4), vr(vSA), sr(dWS, 4), sr(sD0), 256 * T), 'stat')) for T in range(4)]
def stat_issue():
    for (c, f) in stat_loads():
        f()
def stat_check(e=e):
    t = TMP
    for T in range(4):
        e('v_xor_b32 v%d, %s, %s' % (t + T, sr(sTAG), vr(ST + 4 * T + 3)))
    e('v_or3_b32 v%d, v%d, v%d, v%d' % (t, t, t + 1, t + 2))
    e('v_or_b32 v%d, v%d, v%d' % (t, t, t + 3))
    e('v_cmp_ne_u32 vcc, 0, v%d' % t)
C0 = -2.0 * math.sqrt(2.0 / math.pi) * math.log2(math.e)
def stat_derive_ops():
    o = Ops()
    o.f(lambda: A.wait_vm('stat'))
    stat_check(o.v)
    o.f(lambda: retry_loop('st', stat_issue, stat_check, 58, False), 2)
    for T in range(4):
        b = ST + 4 * T
        o.v('v_rcp_f32 v%d, v%d' % (TMP + T, b + 1), 2)
        o.v('v_lshlrev_b32 v%d, 16, v%d' % (SS + 2 * T, b + 2))
        o.v('v_and_b32 v%d, 0xffff0000, v%d' % (SS + 2 * T + 1, b + 2))
    for T in range(4):
        b = ST + 4 * T
        o.v('v_rcp_f32 v%d, v%d' % (SS + 2 * T + 1, SS + 2 * T + 1), 2)
        o.v('v_mul_f32 v%d, %s, v%d' % (b + 2, f2u(C0), TMP + T))
        o.v('v_mul_f32 v%d, v%d, v%d' % (b + 3, TMP + T, TMP + T))
    for T in range(4):
        b = ST + 4 * T
        o.v('v_mul_f32 v%d, v%d, v%d' % (b + 3, b + 3, b + 2))
        o.v('v_mul_f32 v%d, %s, v%d' % (b + 3, f2u(0.044715), b + 3))
    return o

TOFF = [6 * (st & 3) + 2 * (st >> 2) for st in range(11)]
KS = [0]
def w_prefetch_cls(k):
    def f():
        lab = newlab('pf')
        if OPT['WCL'] == 4:
            S('s_cmp_lg_u32 %s, %s', sRBL, str(k))
        else:
            S('s_bitcmp%d_b32 %%s, 0' % (1 - k), sRBL)
        e('s_cbranch_scc1 %s' % lab)
        e('s_mov_b64 exec, 0x7ff')
        A.vmem('buffer_load_dword %s, %s, %s, %s offen' % (vr(vSCR), vr(vPW), sr(dW2, 4), sr(sWS)), 'touch', opt=True)
        e('s_mov_b64 exec, %s' % sr(sPM, 2))
        for p in (pCRE, pCIM):
            S('s_mov_b64 %s, %s', sr(dO, 2), sr(p, 2))
            A.vmem('buffer_load_dword %s, %s, %s, %s offen' % (vr(vSCR), vr(vCT), sr(dO, 4), sr(sCO)), 'touch', opt=True)
        e('s_mov_b64 exec, -1')
        A.label(lab)
    return [(4, f)]
def w2_step(st):
    o = Ops()
    odd = 0
    if st == 0:
        o.s('s_lshl_b32 %s, %s, 11', sSX, sW)
        o.s('s_add_u32 m0, %s, %s', sSX, str(PE))
    elif st <= 8:
        odd = (st - 1) & 1
        if not odd:
            o.s('s_add_u32 m0, %s, %s', sM8, str(((st - 1) // 4) * SLOT + ((st - 1) % 4) * 2048))
    else:
        o.s('s_add_u32 m0, %s, %s', sME, str((st - 9) * 2 * SLOT))
    o.s('s_add_u32 %s, %s, %s', sSW, sWS, str(TOFF[st] * 16384 - odd * 2048))
    for i in range(2):
        o.f(lambda i=i: A.vmem('buffer_load_dwordx4 %s, %s, %s offen offset:%d lds' % (vr(vW2 + i), sr(dW2, 4), sr(sSW), odd * 2048 + i * 1024), 'W'), 'D')
    return o
def c_job(part):
    o = Ops()
    o.s('s_mov_b64 %s, %s', sr(dB, 2), sr(pCIM if part else pCRE, 2))
    if part == 0:
        o.v('v_subrev_u32 %s, %s, %s' % (vr(vB), sr(sCG), vr(vB)))
        o.v('v_subrev_u32 %s, %s, %s' % (vr(vB + 1), sr(sCG), vr(vB + 1)))
    for k in range(4):
        odd = k & 1
        if not odd:
            o.s('s_add_u32 m0, %s, %s', sM8, str((2 + part) * SLOT + k * 2048))
        o.s('s_add_u32 %s, %s, %s', sSX, sCO, str(k * 16384 - odd * 2048))
        for i in range(2):
            o.f(lambda i=i, odd=odd: A.vmem('buffer_load_dwordx4 %s, %s, %s offen offset:%d lds' % (vr(vB + i), sr(dB, 4), sr(sSX), odd * 2048 + i * 1024), 'Wd' if part + OPT['DEF'] >= 2 else 'W'), 'D')
    return o
QR = [0, 2, 8, 10]
def resx_loads():
    o = Ops()
    for q in range(4):
        o.f(lambda q=q: A.vmem('buffer_load_dwordx2 %s, %s, %s, 0 offen offset:%d' % (ar(240 + 2 * q, 2), vr(vXO), sr(dX, 4), q * 1024), 'res'), 'D' if q & 1 else 2)
    return o
def resg_loads():
    return [(2, lambda q=q: A.vmem('buffer_load_dword %s, %s, %s, %s offen offset:%d sc1' % (ar(252 + q), vr(vGO), sr(dWS, 4), sr(sGR), q * 256), 'res')) for q in range(4)]

for v in range(1, 8):
    if v > 1:
        sd = stage_dma(v)
        if v == OPT['WPF'] and OPT['WPK']:
            sd, rest = sd[:-5], sd[-5:]
        DQ.add(sd, None if v < 4 else 'mid%d' % (v - 4))
    if OPT['WCL'] == 4 and OPT['WPF'] > 0 and 0 <= v - OPT['WPF'] < 4:
        DQ.add(w_prefetch_cls(v - OPT['WPF']))
    if OPT['WCL'] in (2, 3) and v - OPT['WPF'] in (0, OPT['WCL']):
        DQ.add(w_prefetch_cls(int(v > OPT['WPF'])))
    if v == OPT['WPF'] and not OPT['WCL']:
        DQ.add([(0, lambda: print('prefetch at step', KS[0]))])
        DQ.add(w_prefetch())
        if OPT['WPK']:
            DQ.add(rest)
    if v == OPT['STL']:
        DQ.add(stat_loads())
        DQ.add([(0, lambda: FQ.open.add('stl'))])
o = Ops()
o.s('s_mov_b64 %s, %s', sr(dO, 2), sr(pOUT, 2))
o.s('s_mov_b32 %s, 0x400000', dO + 2)
DQ.add(o)
DQ.add([(0, lambda: (print('st7 issued at step', KS[0]), OPT.update(DINT=OPT['WINT'])))])
DQ.add(w2_step(0), 'k%d' % OPT['WG0'])
for st in range(1, 10):
    DQ.add(w2_step(st), 'mid4' if st < 5 else 'mid5')
D2 = Q()
if OPT['DEF'] < 2:
    DQ.add(c_job(0), 'mid%d' % OPT['CJ0'])
else:
    D2.add(c_job(0))
if not OPT['DEFR'] & 1:
    DQ.add(resx_loads())
DQ.add(w2_step(10), 'mid7')
if OPT['DEF'] < 1:
    DQ.add(c_job(1), 'mid7')
else:
    D2.add(c_job(1))
if OPT['DEFR'] & 1:
    D2.add(resx_loads())
FQ.add([(0, lambda: None)], 'b1')
FQ.add(b1_ops(), 'mid%d' % OPT['B1G'])
FQ.add([(0, lambda: None)], 'stl')
FQ.add(stat_derive_ops(), 'mid%d' % OPT['SDG'])

RQ = Q()
def rd_x(step, T):
    v, ks = step // 2, step % 2
    slot = v & 3
    return [(1, lambda: A.ds('ds_read_b128 %s, %s offset:%d' % (vr(XF + 16 * ks + 4 * T, 4), vr(XA + 2 * ks + (slot >> 1)), (slot & 1) * SLOT + (T & 1) * PIECE + (T >> 1) * 2048), 'x%d' % step))]
def rd_a(step, a):
    v, ks = step // 2, step % 2
    slot = v & 3
    if a < 2:
        return [(1, lambda: A.ds('ds_read_b128 %s, %s offset:%d' % (vr(AF + 4 * a, 4), vr(BA + 2 * ks + (slot >> 1)), (slot & 1) * SLOT + a * PIECE), 'a%d_%d' % (step, a)))]
    return [(1, lambda half=half: A.ds('ds_read_b64_tr_b16 %s, %s offset:%d' % (vr(AF + 4 * a + 2 * half, 2), vr(WA + 2 * ks + (slot >> 1)), (slot & 1) * SLOT + half * 768 + 64 * (a - 2)), 'a%d_%d' % (step, a))) for half in range(2)]

touch_pages(0)
stamp('tch')
page('st0')
A.wait_vm('st0')
stamp('st0')
e('s_barrier')
RQ.add(rd_a(0, 0))
for T in range(4):
    RQ.add(rd_x(0, T))
for a in range(1, 5):
    RQ.add(rd_a(0, a))
RQ.flush()
A.ds('ds_read_b128 %s, %s' % (vr(SR + 4, 4), vr(SR)), 'gr')
def g_store():
    A.wait_lg('gr')
    lab = newlab('gs')
    S('s_cmp_lg_u32 %s, 0', sW)
    e('s_cbranch_scc1 %s' % lab)
    e('s_mov_b64 exec, 0xff')
    A.vmem('buffer_store_dwordx4 %s, %s, %s, %s offen sc1' % (vr(SR + 4, 4), vr(vL16), sr(dWS, 4), sr(sF0)), 'gs', opt=True)
    e('s_mov_b64 exec, -1')
    A.label(lab)
clk = [0, 0]
def gap(budget, base):
    used = 0
    while used < budget:
        if RQ.ready():
            used += RQ.cost()
            RQ.pop1()
        elif DQ.ready() and (DQ.cost() != 'D' or (clk[0] >= clk[1] and used + OPT['DCOST'] <= max(budget, OPT['DCOST']))):
            if DQ.cost() == 'D':
                used += OPT['DCOST']
                clk[1] = max(clk[1], clk[0] - 2 * OPT['DINT']) + OPT['DINT']
            elif used + DQ.cost() > max(budget, DQ.cost()):
                break
            else:
                used += DQ.cost()
                if DQ.cost() >= 2:
                    clk[1] += OPT['SMP']
            DQ.pop1()
        elif FQ.ready() and used + FQ.cost() <= max(budget, FQ.cost()):
            used += FQ.cost()
            FQ.pop1()
        else:
            break
    clk[0] += max(base, 8 + 4 * used)

K0, K1, SA, SE = 116, 124, 136, 144
def tab_rd(dst, row, tag, addr=None):
    for part in range(2):
        A.ds('ds_read_b128 %s, %s offset:%d' % (vr(dst + 4 * part, 4), vr(vTB if addr is None else addr), row * TROW + part * 128), tag)
for step in range(16):
    v, ks = step // 2, step % 2
    gate = 'mid%d' % v if ks == 1 else None
    for a in range(5):
        KS[0] = step + a / 5
        DQ.open.add('k%d' % (5 * step + a))
        if ks == 1 and a == 2:
            for u in range(5):
                assert DSN.get('a%d_%d' % (step, u), 0) == (1 if u < 2 else 2), (step, u)
            if v == 7:
                assert DSN.get('csw', 0) == 1 and DSN.get('cso', 0) == 5
            page('aA' if v == OPT['PGA'] else 'a%d' % v)
            A.wait_lg0()
            stamp('a%d' % v)
            if v < 7:
                A.wait_vm('st%d' % (v + 1))
                if v in (1, 3, 6):
                    stamp('b%d' % v)
            if not OPT['X'] & 2:
                e('s_barrier')
            clk[0] += 40
            for q in (DQ, FQ, RQ):
                q.open.add('mid%d' % v)
            if v == 7:
                for q in range(5):
                    RQ.add([(1, lambda q=q: A.ds('ds_read_b128 %s, %s offset:%d' % (vr((XF + 4 * q) if q < 4 else AF, 4), vr(vCR), 64 * q), 'csr'))])
        if a in (0, 2, 4):
            assert DSN.get('x%d' % step, 0) == 4, (step, a)
            for u in (a, a + 1):
                assert u > 4 or DSN.get('a%d_%d' % (step, u), 0) == (1 if u < 2 else 2), (step, a, u)
            A.wait_lg(['x%d' % step] + ['a%d_%d' % (step, u) for u in (a, a + 1)])
        if OPT['XS'] and step in (14, 15) and a == 0:
            stamp('s%d' % step)
        if step == 0 and a == 4:
            g_store()
        ms = []
        if ks == 0 and not (OPT['X'] & 1024 and step):
            ms.append((ONE, CS + 4 * a))
        for T in range(4):
            ms.append((ACC + 16 * a + 4 * T, XF + 16 * ks + 4 * T))
        for i, (acc, b) in enumerate(ms):
            e('v_mfma_f32_16x16x32_bf16 %s, %s, %s, %s' % (vr(acc, 4), vr(AF + 4 * a, 4), vr(b, 4), '0' if step == 0 and (acc != ONE or a == 0) else vr(acc, 4)))
            last = i == len(ms) - 1
            if step < 15:
                if last:
                    RQ.add(rd_a(step + 1, a), gate)
                if (a == 0 and last) if ks == 1 else (a == 0 and i == 1):
                    for T in range(4):
                        RQ.add(rd_x(step + 1, T), gate)
            if step == 15 and a == 0 and i == 0:
                def csw():
                    e('s_mov_b32 exec_lo, 0x1f001f')
                    e('s_mov_b32 exec_hi, 0x1f001f')
                    A.ds('ds_write_b128 %s, %s' % (vr(vCW), vr(ONE, 4)), 'csw')
                    e('s_mov_b64 exec, -1')
                RQ.add([(2, csw)])
                for q in range(5):
                    RQ.add([(1, lambda q=q: A.ds('ds_read_b128 %s, %s offset:%d' % (vr(CS + 4 * q, 4), vr(vCO), 64 * q), 'cso'))])
            bud = OPT['BUD0'] if step < OPT['NB0'] else 2
            if last and a in (1, 3, 4) and not (ks == 1 and a == 3):
                bud = 0 if (ks == 1 and a == 1) else 1
            if bud == 0:
                while RQ.ready():
                    RQ.pop1()
            gap(bud, 16)
print('K loop estimate', clk[0], 'left DQ', len(DQ.q), 'FQ', len(FQ.q))
FQ.flush()
RQ.flush()
stamp('kloop')

if OPT['DEFR'] & 2:
    D2.add([('D', f) for (c, f) in resg_loads()])
else:
    DQ.add(resg_loads(), 'sx')
tab_rd(K0, R_CF, 'k0')
tab_rd(K1, R_L1, 'k1')
A.wait_lg('csr')
AUTO['nxt'] = AUTO['t'] + max(0, clk[1] - clk[0])
auto(True)
for q in range(5):
    src = (XF + 4 * q) if q < 4 else AF
    for h in (0, 2):
        e('v_pk_add_f32 %s, %s, %s' % (vr(CS + 4 * q + h, 2), vr(CS + 4 * q + h, 2), vr(src + h, 2)))
LOB = 'op_sel:[0,0,0] op_sel_hi:[1,0,1]'
HIB = 'op_sel:[0,1,0] op_sel_hi:[1,1,1]'
RR, II = ACC, ACC + 16
tq = XF
tZ, tO = tq, B1
def gelu_tile(v, tag, mid=None):
    for hh in range(2):
        prs = [(2 * hh + a, h) for a in range(2) for h in range(2)]
        accp = lambda T, h: ACC + 32 + 16 * v + 4 * T + 2 * h
        for (T, h) in prs:
            e('v_pk_fma_f32 %s, %s, %s, %s %s' % (vr(accp(T, h), 2), vr(BU + 4 * v + 2 * h, 2), vr(ST + 4 * T, 2), vr(accp(T, h), 2), HIB))
        for (T, h) in prs:
            e('v_pk_fma_f32 %s, %s, %s, %s %s %s' % (vr(accp(T, h), 2), vr(CS + 8 + 4 * v + 2 * h, 2), vr(ST + 4 * T, 2), vr(accp(T, h), 2), LOB, NEG1))
        for i, (T, h) in enumerate(prs):
            e('v_pk_mul_f32 %s, %s, %s' % (vr(tZ + 2 * i, 2), vr(accp(T, h), 2), vr(accp(T, h), 2)))
        for i, (T, h) in enumerate(prs):
            e('v_pk_fma_f32 %s, %s, %s, %s op_sel:[0,1,0] op_sel_hi:[1,1,0]' % (vr(tZ + 2 * i, 2), vr(tZ + 2 * i, 2), vr(ST + 4 * T + 2, 2), vr(ST + 4 * T + 2, 2)))
        for i, (T, h) in enumerate(prs):
            e('v_pk_mul_f32 %s, %s, %s' % (vr(tZ + 2 * i, 2), vr(tZ + 2 * i, 2), vr(accp(T, h), 2)))
        for i in range(8):
            e('v_exp_f32 %s, %s' % (vr(tZ + i), vr(tZ + i)))
        for i, (T, h) in enumerate(prs):
            e('v_pk_fma_f32 %s, %s, %s, %s op_sel:[0,1,1] op_sel_hi:[1,1,1]' % (vr(tZ + 2 * i, 2), vr(tZ + 2 * i, 2), vr(ST + 4 * T, 2), vr(ST + 4 * T, 2)))
        for i in range(8):
            e('v_rcp_f32 %s, %s' % (vr(tZ + i), vr(tZ + i)))
        for i, (T, h) in enumerate(prs):
            e('v_pk_mul_f32 %s, %s, %s' % (vr(tZ + 2 * i, 2), vr(tZ + 2 * i, 2), vr(accp(T, h), 2)))
        o = tO + 4 * hh
        for i in (0, 2, 1, 3):
            e('v_cvt_pk_bf16_f32 %s, %s, %s' % (vr(o + i), vr(tZ + 2 * i), vr(tZ + 2 * i + 1)))
        if mid:
            mid(hh)
        auto(False)
        e('v_permlane16_swap_b32 %s, %s' % (vr(o), vr(o + 2)))
        so = sHM
        if v:
            so = sU0
            if hh == 0:
                S('s_add_u32 %s, %s, %s', sU0, sHM, str(4096 * v))
        if v == 2:
            S('s_cmp_eq_u32 %s, 0', sF1)
        e('v_permlane16_swap_b32 %s, %s' % (vr(o + 1), vr(o + 3)))
        if v == 2:
            lab = newlab('skip')
            e('s_cbranch_scc1 %s' % lab)
        A.vmem('buffer_store_dwordx4 %s, %s, %s, %s offen offset:%d sc1' % (vr(o, 4), vr(vL16), sr(dWS, 4), sr(so), 1024 * hh), tag, opt=(v == 2))
        if v == 2:
            A.label(lab)
        auto(True)
for T in range(4):
    for part in range(2):
        for h in (0, 2):
            r = ACC + 16 * part + 4 * T + h
            e('v_pk_fma_f32 %s, %s, %s, %s %s %s' % (vr(r, 2), vr(CS + 4 * part + h, 2), vr(SS + 2 * T, 2), vr(r, 2), LOB, NEG1))
    if T == 0:
        A.wait_lg('k0')
    for q in (0, 2, 4, 6):
        e('v_pk_mul_f32 %s, %s, %s op_sel:[0,1] op_sel_hi:[1,1]' % (vr(tq + q, 2), vr(K0 + q, 2), vr(SS + 2 * T, 2)))
    if T == 3:
        tab_rd(K0, 1, 'k0')
    for h in (0, 2):
        e('v_pk_mul_f32 %s, %s, %s' % (vr(tq + 8 + h, 2), vr(RR + 4 * T + h, 2), vr(tq + 4 + h, 2)))
    for h in (0, 2):
        e('v_pk_mul_f32 %s, %s, %s' % (vr(RR + 4 * T + h, 2), vr(RR + 4 * T + h, 2), vr(tq + h, 2)))
    for h in (0, 2):
        e('v_pk_fma_f32 %s, %s, %s, %s %s' % (vr(RR + 4 * T + h, 2), vr(II + 4 * T + h, 2), vr(tq + 4 + h, 2), vr(RR + 4 * T + h, 2), NEG1))
    for h in (0, 2):
        e('v_pk_fma_f32 %s, %s, %s, %s' % (vr(II + 4 * T + h, 2), vr(II + 4 * T + h, 2), vr(tq + h, 2), vr(tq + 8 + h, 2)))
tab_rd(tq, 2, 'k2')
tab_rd(tq + 8, 4, 'k3')
A.wait_lg('k1')
for T in range(1, 4):
    pk_cfma4(RR + 4 * T, II + 4 * T, RR + 4 * T - 4, II + 4 * T - 4, K1, RR + 4 * T, II + 4 * T)
tab_rd(K1, 8, 'k1')
cur = (RR + 12, II + 12)
L64, L512, P128, S0 = K0, K0 + 2, K0 + 4, K0 + 6
for lv in range(4):
    k = [K0, tq, tq + 8, K1][lv]
    for part in range(2):
        for i in range(4):
            e('v_mov_b32_dpp %s, %s row_shr:%d row_mask:0xf bank_mask:0xf bound_ctrl:0' % (vr(SE + 4 * part + i), vr(cur[part] + i), 1 << lv))
    if lv in (0, 3):
        A.wait_lg(['k3', 'k3', 'k3', 'k1'][lv])
    pk_cfma4(SA, SA + 4, SE, SE + 4, k, cur[0], cur[1])
    cur = (SA, SA + 4)
    if lv == 0:
        for (dst, row, ad) in ((L64, R_L64, vTC), (L512, R_L512, vTC), (P128, 0, vTG)):
            for part in range(2):
                A.ds('ds_read_b32 %s, %s offset:%d' % (vr(dst + part), vr(ad), row * TROW + part * 128), 'kc')
auto(False)
e('s_mov_b32 exec_lo, 0x80008000')
e('s_mov_b32 exec_hi, 0x80008000')
A.ds('ds_write_b128 %s, %s' % (vr(vCR), vr(SA, 4)), 'sx')
A.ds('ds_write_b128 %s, %s offset:64' % (vr(vCR), vr(SA + 4, 4)), 'sx')
e('s_mov_b64 exec, -1')
GR = tq + 12
for part in range(2):
    for i in range(4):
        e('v_mov_b32_dpp %s, %s row_shr:1 row_mask:0xf bank_mask:0xf bound_ctrl:0' % (vr(SE + 4 * part + i), vr(SA + 4 * part + i)))
e('v_mov_b32 %s, %s' % (vr(GR + 2), sr(sTAG)))
e('v_mov_b32 %s, %s' % (vr(GR + 3), sr(sTAG)))
page('sx')
A.wait_lg0()
e('s_barrier')
A.ds('ds_read2_b32 %s, %s offset0:160 offset1:176' % (vr(S0, 2), vr(vSXR)), 's0')
A.ds('ds_read2_b32 %s, %s offset0:0 offset1:16' % (vr(GR, 2), vr(vSXR)), 's0')
DQ.open.add('sx')
print('DQ left at Spub', len(DQ.q))
lab = newlab('np')
S('s_cmp_eq_u32 %s, 0', sTH)
e('s_cbranch_scc1 %s' % lab)
e('s_waitcnt lgkmcnt(0)')
cfma(GR, GR + 1, S0, S0 + 1, L64, L64 + 1, GR, GR + 1)
e('s_mov_b64 exec, 0xffff')
A.vmem('buffer_store_dwordx4 %s, %s, %s, %s offen sc1' % (vr(GR, 4), vr(vL16), sr(dWS, 4), sr(sSGO)), 'S', opt=True)
e('s_mov_b64 exec, -1')
A.label(lab)
stamp('Spub')
auto(True)

vQ = 152
vPD = vWT
def lb_issue():
    for i in range(4):
        A.vmem('buffer_load_dwordx4 %s, %s, %s, %s offen sc1' % (vr(vQ + 4 * i, 4), vr(vPA + i), sr(dWS, 4), sr(sSG)), 'lb')
def lb_check():
    for i in range(4):
        e('v_xor_b32 %s, %s, %s' % (vr(vQ + 4 * i + 3), sr(sTAG), vr(vQ + 4 * i + 2)))
    for i in range(4):
        e('v_cndmask_b32 %s, 0, %s, %s' % (vr(vQ + 4 * i + 3), vr(vQ + 4 * i + 3), sr(sMSK[i], 2)))
    e('v_or3_b32 %s, %s, %s, %s' % (vr(vQ + 3), vr(vQ + 3), vr(vQ + 7), vr(vQ + 11)))
    e('v_or_b32 %s, %s, %s' % (vr(vQ + 3), vr(vQ + 3), vr(vQ + 15)))
    e('v_cmp_ne_u32 vcc, 0, %s' % vr(vQ + 3))
def poll(tag, so):
    return lambda: A.vmem('buffer_load_dword %s, %s, %s, %s offen sc1' % (vr(vPD), vr(vPF), sr(dWS, 4), sr(so)), tag)
def p_check():
    e('v_cmp_ne_u32 vcc, %s, %s' % (sr(sTAG), vr(vPD)))
pa_issue, pb_issue = poll('pa', sPA), poll('pb', sPB)
def lbp(k):
    if k == 0:
        print('DQ left at the first HM store', len(DQ.q))
        if OPT['FL0']:
            DQ.flush()
    if k == 6:
        DQ.flush()
    if OPT['LBPOS'] == k:
        lb_issue()
for i, v in enumerate((2, 0, 1)):
    gelu_tile(v, 'HM', lambda hh: lbp(2 * i + hh))
    if i < 2:
        stamp('g%d' % i)
stamp('gelu')
auto(False)
lbp(6)
KP = [tq, tq + 8, CS, CS + 8]
tab_rd(K1, 0, 'kp', vTI)
for T, row in enumerate((R_L1, R_L2, R_L3, 1)):
    tab_rd(KP[T], row, 'kp')
NR, RING = 22, 152
LD, MF = [], []
for (t, s0, s1) in ((0, 0, 11), (1, 0, OPT['NB1']), (0, 11, 19), (1, OPT['NB1'], 19)):
    tl = OPT['TL%d' % t] if s1 == 19 else 0
    for s in range(s0, s1 - tl):
        for hh in range(2):
            MF += [(len(LD), 0), (len(LD), 1)]
            LD.append((t, s, hh))
    for hh in range(2):
        for dh in range(2):
            MF += [(len(LD) + k, dh) for k in range(tl)]
        LD += [(t, s, hh) for s in range(s1 - tl, s1)]
FS = LD.index((0, 11, 0))
hf = [0]
cur = [None, 0]
def hload():
    f = hf[0]
    t, s, hh = LD[f]
    n = 3
    if f == FS - OPT['PBD']:
        pb_issue()
        n += 2
    if f == FS:
        A.wait_vm('pb')
        retry_loop('pb', pb_issue, p_check, 61)
        stamp('pbok')
        n += 3
    base = (sH2 if t else sH1) if s < 11 else (sP2 if t else sP1)
    off = (TOFF[s] if s < 11 else s - 11) * 2048 + hh * 1024
    if off < 4096:
        so = base
    else:
        so = sHC
        if cur[0] != base or not 0 <= off - cur[1] < 4096:
            cur[0], cur[1] = base, off
            S('s_add_u32 %s, %s, %s', sHC, base, str(off))
            n += 1
        off -= cur[1]
    A.vmem('buffer_load_dwordx4 %s, %s, %s, %s offen offset:%d%s' % (ar(RING + 4 * (f % NR), 4), vr(vL16), sr(dWS, 4), sr(so), off, '' if OPT['X'] & 16 else ' sc1'), 'h%d' % f)
    hf[0] += 1
    return n

RD, RES, PXR, pT, TB = 128, 192, 208, 224, 240
vOO, vRW, vRR, vRR2 = vGO, vCW, vCR, vSXR
TILE = 64 * 272
AD, vCA = 32, 40
def xw_block(k):
    if OPT['XWP'] != k:
        return
    S('s_lshl_b32 %s, %s, 11', sT0, sW)
    S('s_add_u32 %s, %s, %s', sT0, sT0, str(PE))
    S('s_add_u32 %s, %s, %s', sT1, sME, str(2 * SLOT))
    for i, sb in enumerate((sT0, sM8, sME, sT1)):
        e('v_add_u32 %s, %s, %s' % (vr(AD + 2 * i), sr(sb), vr(vTRL)))
        e('v_xor_b32 %s, 64, %s' % (vr(AD + 2 * i + 1), vr(AD + 2 * i)))
    e('v_bfe_u32 %s, %s, 1, 3' % (vr(vCA), vr(vLANE)))
    e('v_xor_b32 %s, %s, %s' % (vr(vCA), vr(vCA), vr(vHI5)))
    e('v_lshlrev_b32 %s, 4, %s' % (vr(vCA), vr(vCA)))
    e('v_lshl_add_u32 %s, %s, 7, %s' % (vr(vCA), vr(vLO5), vr(vCA)))
    S('s_add_u32 %s, %s, %s', sT0, sM8, str(2 * SLOT))
    e('v_add_u32 %s, %s, %s' % (vr(vCA), sr(sT0), vr(vCA)))
    for sub in range(1, 4):
        e('v_xor_b32 %s, %d, %s' % (vr(vCA + sub), 32 * sub, vr(vCA)))
    D2.popD(2)
    A.wait_vm('W')
    for st in range(11):
        for dh in range(2):
            for half in range(2):
                if (4 * st + 2 * dh + half) % OPT['DFI'] == OPT['DFI'] - 1:
                    D2.popD(1)
                if st == 0:
                    ad, off = AD, 0
                elif st <= 8:
                    ad, off = AD + 2, ((st - 1) // 4) * SLOT + ((st - 1) % 4) * 2048
                else:
                    ad, off = AD + 4 + 2 * (st - 9), 0
                A.ds('ds_read_b64_tr_b16 %s, %s offset:%d' % (ar(8 * st + 4 * dh + 2 * half, 2), vr(ad + dh), off + half * 512), 'xw')
    xw_c(range(2 - OPT['DEF']))
def xw_c(parts):
    for part in parts:
        for sub in range(4):
            D2.popD(1)
            for dh in range(2):
                A.ds('ds_read_b128 %s, %s offset:%d' % (ar(8 * (11 + 2 * sub + part) + 4 * dh, 4), vr(vCA + sub), part * SLOT + dh * 4096), 'xw')
xw_block(0)
late_scalars()
print('deferred left', len(D2.q))
D2.flush()
def fap(k):
    if OPT['FAP'] == k:
        A.wait_vm('HM')
        stamp('HMdone')
        flag(WS_FA, 'fa')
        if OPT['PTOUCH'] & 1:
            e('v_lshlrev_b32 %s, 7, %s' % (vr(vCT), vr(vLO4)))
            e('v_lshl_add_u32 %s, %s, 12, %s' % (vr(vCT), vr(vG), vr(vCT)))
            S('s_mov_b32 exec_hi, %s', sF1)
            A.vmem('buffer_load_dword %s, %s, %s, %s offen sc1' % (vr(vSCR), vr(vCT), sr(dWS, 4), sr(sHM)), 'touch')
            e('s_mov_b32 exec_hi, -1')
        stamp('fa')
page('lb')
A.wait_vm('lb')
stamp('lb1')
fap(0)
retry_loop('lb', lb_issue, lb_check, 59)
stamp('Sgot')
for i in range(4):
    e('v_cndmask_b32 %s, 0, %s, %s' % (vr(vQ + 4 * i), vr(vQ + 4 * i), sr(sMSK[i], 2)))
    e('v_cndmask_b32 %s, 0, %s, %s' % (vr(vQ + 4 * i + 1), vr(vQ + 4 * i + 1), sr(sMSK[i], 2)))
for i in (2, 1, 0):
    cfma(vQ + 4 * i, vQ + 4 * i + 1, vQ + 4 * i + 4, vQ + 4 * i + 5, L512, L512 + 1, vQ + 4 * i, vQ + 4 * i + 1)
hr, hi_, h2, h3 = vQ + 4, vQ + 5, vQ + 6, vQ + 7
cmul(hr, hi_, vQ, vQ + 1, P128, P128 + 1)
for sw in ('v_permlane16_swap_b32', 'v_permlane32_swap_b32'):
    e('v_mov_b32 %s, %s' % (vr(h2), vr(hr)))
    e('v_mov_b32 %s, %s' % (vr(h3), vr(hi_)))
    e('%s %s, %s' % (sw, vr(hr), vr(h2)))
    e('%s %s, %s' % (sw, vr(hi_), vr(h3)))
    e('v_add_f32 %s, %s, %s' % (vr(hr), vr(hr), vr(h2)))
    e('v_add_f32 %s, %s, %s' % (vr(hi_), vr(hi_), vr(h3)))
auto(False)
A.wait_lg('s0')
lab = newlab('t0')
S('s_cmp_eq_u32 %s, 0', sTH)
e('s_cbranch_scc1 %s' % lab)
cfma(S0, S0 + 1, hr, hi_, L64, L64 + 1, S0, S0 + 1)
e('v_mov_b32 %s, %s' % (vr(hr), vr(S0)))
e('v_mov_b32 %s, %s' % (vr(hi_), vr(S0 + 1)))
A.label(lab)
A.ds('ds_write2_b32 %s, %s, %s offset0:32 offset1:48' % (vr(vSXW), vr(hr), vr(hi_)), 'cy')
A.ds('ds_read_b128 %s, %s offset:128' % (vr(SA, 4), vr(vCR)), 'cy')
A.ds('ds_read_b128 %s, %s offset:192' % (vr(SA + 4, 4), vr(vCR)), 'cy')
fap(1)
A.wait_lg0()
pk_cfma4(SE, SE + 4, SA, SA + 4, K1, SE, SE + 4)
for hh in range(2):
    for T in (2 * hh, 2 * hh + 1):
        pk_cfma4(RR + 4 * T, II + 4 * T, SE, SE + 4, KP[T], RR + 4 * T, II + 4 * T)
    for part in range(2):
        o = vQ + 8 * hh + 4 * part
        b = ACC + 16 * part + 8 * hh
        ng = '-' if part else ''
        for i in range(4):
            e('v_cvt_pk_bf16_f32 %s, %s%s, %s%s' % (vr(o + i), ng, vr(b + 2 * i), ng, vr(b + 2 * i + 1)))
    if OPT['EP'] and OPT['PAP'] == hh:
        pa_issue()
    for part in range(2):
        o = vQ + 8 * hh + 4 * part
        e('v_permlane16_swap_b32 %s, %s' % (vr(o), vr(o + 2)))
        e('v_permlane16_swap_b32 %s, %s' % (vr(o + 1), vr(o + 3)))
        A.vmem('buffer_store_dwordx4 %s, %s, %s, %s offen offset:%d sc1' % (vr(o, 4), vr(vL16), sr(dWS, 4), sr(sHS), 2048 * part + 1024 * hh), 'HS')
if OPT['EP'] and OPT['PAP'] == 2:
    pa_issue()
stamp('epi')

xw_block(1)
eX, eS, eD = 128, 136, 140
fD, fB, fU, fM = 144, 148, 152, 156
def res_pre():
    A.wait_vm('res')
    for i in range(16):
        e('v_accvgpr_read_b32 %s, a%d' % (vr(eX + [0, 1, 2, 3, 4, 5, 6, 7, 12, 13, 14, 15, 8, 9, 10, 11][i]), 240 + i))
    for (dst, src) in ((fD, eD), (fB, eD + 2)):
        for hh in range(2):
            e('v_lshlrev_b32 %s, 16, %s' % (vr(dst + 2 * hh), vr(src + hh)))
            e('v_and_b32 %s, 0xffff0000, %s' % (vr(dst + 2 * hh + 1), vr(src + hh)))
def res_q(q):
    r = RES + 4 * q
    e('v_and_b32 %s, 0xffff0000, %s' % (vr(fM + 1), vr(eS + q)))
    e('v_lshlrev_b32 %s, 16, %s' % (vr(fM), vr(eS + q)))
    e('v_rcp_f32 %s, %s' % (vr(fM + 1), vr(fM + 1)))
    for hh in range(2):
        e('v_lshlrev_b32 %s, 16, %s' % (vr(r + 2 * hh), vr(eX + 2 * q + hh)))
        e('v_and_b32 %s, 0xffff0000, %s' % (vr(r + 2 * hh + 1), vr(eX + 2 * q + hh)))
    def rnd4():
        e('v_cvt_pk_bf16_f32 %s, %s, %s' % (vr(fU + 1), vr(fU), vr(fU + 1)))
        e('v_cvt_pk_bf16_f32 %s, %s, %s' % (vr(fU + 3), vr(fU + 2), vr(fU + 3)))
        e('v_lshlrev_b32 %s, 16, %s' % (vr(fU), vr(fU + 1)))
        e('v_lshlrev_b32 %s, 16, %s' % (vr(fU + 2), vr(fU + 3)))
        e('v_and_b32 %s, 0xffff0000, %s' % (vr(fU + 1), vr(fU + 1)))
        e('v_and_b32 %s, 0xffff0000, %s' % (vr(fU + 3), vr(fU + 3)))
    for hh in range(2):
        e('v_pk_add_f32 %s, %s, %s op_sel:[0,0] op_sel_hi:[1,0] neg_lo:[0,1] neg_hi:[0,1]' % (vr(fU + 2 * hh, 2), vr(r + 2 * hh, 2), vr(fM, 2)))
    rnd4()
    for hh in range(2):
        e('v_pk_mul_f32 %s, %s, %s op_sel:[0,1] op_sel_hi:[1,1]' % (vr(fU + 2 * hh, 2), vr(fU + 2 * hh, 2), vr(fM, 2)))
    rnd4()
    for hh in range(2):
        e('v_pk_mul_f32 %s, %s, %s' % (vr(fU + 2 * hh, 2), vr(fU + 2 * hh, 2), vr(fD + 2 * hh, 2)))
    rnd4()
    for hh in range(2):
        e('v_pk_add_f32 %s, %s, %s' % (vr(r + 2 * hh, 2), vr(r + 2 * hh, 2), vr(fU + 2 * hh, 2)))
    for hh in range(2):
        e('v_pk_add_f32 %s, %s, %s' % (vr(r + 2 * hh, 2), vr(r + 2 * hh, 2), vr(fB + 2 * hh, 2)))

F2 = Q()
e('v_lshrrev_b32 %s, 3, %s' % (vr(vRR), vr(vLO4)))
e('v_lshlrev_b32 %s, 12, %s' % (vr(vRR), vr(vRR)))
e('v_lshl_add_u32 %s, %s, 8, %s' % (vr(vRR), vr(vHI5), vr(vRR)))
e('v_and_b32 %s, 0x17, %s' % (vr(vRR2), vr(vLANE)))
e('v_and_b32 %s, 7, %s' % (vr(vRW), vr(vLANE)))
e('v_add_u32 %s, %s, %s' % (vr(vRR2), vr(vRR2), vr(vRW)))
e('v_lshl_add_u32 %s, %s, 3, %s' % (vr(vRR), vr(vRR2), vr(vRR)))
S('s_lshl_b32 %s, %s, 9', sT0, sW)
e('v_add_u32 %s, %s, %s' % (vr(vRR), sr(sT0), vr(vRR)))
e('v_add_u32 %s, 0x10000, %s' % (vr(vRR2), vr(vRR)))
S('s_lshl_b32 m0, %s, 14', sW)
S('s_movk_i32 %s, 0xff', sBM)
for i in range(4):
    e('v_bfe_u32 %s, %s, %d, 8' % (vr(TB + i), vr(vTAG), 8 * i))
if OPT['EP']:
    if OPT['PAP'] == 3:
        pa_issue()
    res_pre()
    if OPT['PAP'] == 4:
        pa_issue()
    for q in range(OPT['R0']):
        res_q(q)
    stamp('r0')
    A.wait_vm('pa')
    stamp('pa1')
    retry_loop('pa', pa_issue, p_check, 60, after=lambda: flag(WS_FB, 'fb'))
    stamp('paok')
    DQ.add([('D', hload)] * OPT['NPRE'])
    DQ.popD(OPT['N0'])
    AUTO.update(on=True, int=OPT['HI2'], nxt=AUTO['t'] + OPT['HI2'])
    for q in range(OPT['R0'], OPT['R1']):
        res_q(q)
    auto(False)
    stamp('r1')
    A.wait_vm('HS')
    stamp('HSdone')
    flag(WS_FB, 'fb')
    auto(True)
    for q in range(OPT['R1'], 4):
        res_q(q)
    e('v_lshlrev_b32 %s, 1, %s' % (vr(vOO), vr(vXO)))
    auto(False)
    print('H loads left after the residual', len(DQ.q))
    DQ.flush()
    stamp('res')
else:
    if OPT['RQ'] == -1:
        pa_issue()
    if OPT['DEF']:
        A.wait_vm('Wd')
        xw_c(range(2 - OPT['DEF'], 2))
    res_pre()
    A.wait_lg0()
    stamp('xw')
    e('s_barrier')
    stamp('bx')
    for q in range(5):
        if q == OPT['RQ']:
            pa_issue()
        if q < 4:
            res_q(q)
    e('v_lshlrev_b32 %s, 1, %s' % (vr(vOO), vr(vXO)))
    stamp('res')
    A.wait_vm('HS')
    stamp('HSdone')
    flag(WS_FB, 'fb')
    def hs_touch():
        e('v_lshlrev_b32 %s, 5, %s' % (vr(vCT), vr(vTM)))
        e('s_mov_b32 exec_hi, 0')
        A.vmem('buffer_load_dword %s, %s, %s, %s offen sc1' % (vr(vSCR), vr(vCT), sr(dWS, 4), sr(sHS)), 'touch')
        e('s_mov_b32 exec_hi, -1')
    if OPT['PTOUCH'] & 2:
        hs_touch()
    stamp('fb')
    page('pa')
    A.wait_vm('pa')
    stamp('pa1')
    retry_loop('pa', pa_issue, p_check, 60)
    stamp('paok')
    for i in range(OPT['NPRE']):
        hload()
    if OPT['PTOUCH'] & 4:
        hs_touch()
e('v_lshrrev_b32 %s, 1, %s' % (vr(vPF), vr(vPF)))
assert OPT['NPRE'] <= FS - OPT['PBD']
M1 = 16320
def red_write(t, k):
    A.ds('ds_write_addtid_b32 %s offset:%d' % (vr(64 * t + k), t * (65536 - M1) + 256 * k), 'rw')
def red_read(t, q, part):
    A.ds('ds_read_b128 %s, %s offset:%d' % (vr(RD + 16 * q + 4 * part, 4), vr(vRR2 if t else vRR), part * 16384 + (q >> 1) * 8192 + (q & 1) * 2048), 'rr%d' % q)
def px_issue():
    for k in range(4):
        A.vmem('buffer_load_dwordx4 %s, %s, %s, %s offen offset:%d sc1' % (vr(PXR + 4 * k, 4), vr(vL16), sr(dWS, 4), sr(sPX), k * 1024), 'px')
def px_check():
    for k in range(16):
        e('v_xor_b32 %s, %s, %s' % (vr(PXR + k), vr(TB + (k & 3)), vr(PXR + k)))
    for k in range(4):
        e('v_or3_b32 %s, %s, %s, %s' % (vr(pT + k), vr(PXR + 4 * k), vr(PXR + 4 * k + 1), vr(PXR + 4 * k + 2)))
    e('v_or3_b32 %s, %s, %s, %s' % (vr(pT), vr(pT), vr(PXR + 3), vr(PXR + 7)))
    e('v_or3_b32 %s, %s, %s, %s' % (vr(pT + 1), vr(pT + 1), vr(PXR + 11), vr(PXR + 15)))
    e('v_or3_b32 %s, %s, %s, %s' % (vr(pT), vr(pT), vr(pT + 2), vr(pT + 3)))
    e('v_or_b32 %s, %s, %s' % (vr(pT), vr(pT), vr(pT + 1)))
    e('v_and_b32 %s, %s, %s' % (vr(pT), sr(sBM), vr(pT)))
    e('v_cmp_ne_u32 vcc, 0, %s' % vr(pT))
def al_issue(opt=True):
    e('v_lshlrev_b32 v8, 7, %s' % vr(vLANE))
    for i in range(4):
        S('s_mov_b32 %s, %s', sT0, hex(WS_G + 8192 * i))
        A.vmem('buffer_load_dword v%d, v8, %s, %s offen offset:12 sc1' % (i, sr(dWS, 4), sr(sT0)), 'alp', opt=opt)
def al_check():
    for i in range(4):
        e('v_xor_b32 v%d, %s, v%d' % (4 + i, sr(sTAG), i))
    e('v_or3_b32 v4, v4, v5, v6')
    e('v_or_b32 v4, v4, v7')
    e('v_cmp_ne_u32 vcc, 0, v4')

left = [2] * 76
last = {}
for n, (f, dh) in enumerate(MF):
    last[(LD[f][0], LD[f][2], dh)] = n
clk = [0, -4 * OPT['HINT']]
seen = set()
for n, (f, dh) in enumerate(MF):
    t, s, hh = LD[f]
    for (tq_, hq, dq), m in sorted(last.items()):
        if n == m + 2:
            o = Ops()
            if (tq_, hq, dq) == (1, 0, 0):
                o.s('s_add_u32 m0, m0, %d' % M1)
            for k in range(16):
                o.f(lambda k=k, tq_=tq_, hq=hq, dq=dq: red_write(tq_, 32 * hq + 16 * dq + k), OPT['WC'])
            F2.add(o)
            if dq == 0 or (tq_, hq) == (1, 1) or (hq == 0 and not OPT['FIN1' if tq_ else 'FINE']):
                continue
            qs = (0, 1) if hq == 0 else (2, 3) if OPT['FINE'] else range(4)
            o = Ops()
            def bar1(nm='bar%d%d' % (tq_, hq)):
                A.wait_lg0()
                e('s_barrier')
                stamp('bar1' if nm == 'bar01' else nm)
            o.f(lambda: None, OPT['BW'])
            o.f(bar1, 4)
            for q in qs:
                for part in range(4):
                    o.f(lambda q=q, part=part, tq_=tq_: red_read(tq_, q, part), 2)
            for q in qs:
                o.f(lambda q=q: A.wait_lg('rr%d' % q))
                b = RD + 16 * q
                for i in range(4):
                    o.v('v_add_f32 %s, %s, %s' % (vr(b + i), vr(b + i), vr(b + 4 + i)))
                for i in range(4):
                    o.v('v_add_f32 %s, %s, %s' % (vr(b + 8 + i), vr(b + 8 + i), vr(b + 12 + i)))
                if tq_:
                    for i in range(8):
                        o.v('v_add_f32 %s, %s, %s' % (vr(RES + 4 * q + (i & 3)), vr(RES + 4 * q + (i & 3)), vr(b + 2 * (i & 4) + (i & 3))))
                    continue
                for i in range(4):
                    o.v('v_add_f32 %s, %s, %s' % (vr(b + i), vr(b + i), vr(b + 8 + i)))
                for i in range(4):
                    o.v('v_bfi_b32 %s, %s, %s, %s' % (vr(b + i), sr(sBM), vr(TB + i), vr(b + i)))
                o.f(lambda q=q, b=b: A.vmem('buffer_store_dwordx4 %s, %s, %s, %s offen offset:%d sc1' % (vr(b, 4), vr(vL16), sr(dWS, 4), sr(sPX), q * 1024), 'pxs'), 4)
                o.f(lambda: print(' px store at step', clk[2] / 4, 'loads issued', hf[0]), 0)
            if (tq_, hq) == (0, 1):
                o.s('s_xor_b32 %s, %s, 0x4000', sPX, sPX)
                o.f(lambda: (stamp('pxs'), seen.add('pxs'), print('px stores done at step', clk[2] / 4, 'loads issued', hf[0])), 0)
            F2.add(o)
    clk[2:] = [n]
    if OPT['EP'] and n == 4 * OPT['BXP']:
        assert DSN.get('rw', 0) == 0
        e('s_barrier')
    if n == 4 * OPT['WB']:
        lab = newlab('wb')
        S('s_and_b32 %s, %s, %s', sT0, sGW, ['3', '0x3e3', '0x63'][OPT['WBM']])
        S('s_cmp_lg_u32 %s, 1', sT0)
        e('s_cbranch_scc1 %s' % lab)
        A.vmem('buffer_wbl2 sc1', 'wb', opt=True)
        A.label(lab)
    if n == 4 * OPT['PXPOS']:
        assert 'pxs' in seen
        px_issue()
    if n == 4 * min(37, OPT['PXPOS']):
        lab = newlab('nal')
        S('s_cmp_lg_u32 %s, 3', sGW)
        e('s_cbranch_scc1 %s' % lab)
        al_issue()
        A.label(lab)
    u = 0
    if n % 4 == 0:
        page('hH' if n == 4 * OPT['PGH'] else 'h%d' % (n // 4))
    if f not in seen:
        assert hf[0] > f
        A.wait_vm('h%d' % f)
        seen.add(f)
    if n // 4 in HST and n % 4 == 0:
        stamp('h%d' % (n // 4))
    acc = vr(64 * t + 32 * hh + 16 * dh, 16)
    def m16(k):
        acc = vr(64 * t + 32 * hh + 16 * dh + 8 * (s & 1) + 4 * k, 4)
        e('v_mfma_f32_16x16x32_bf16 %s, %s, %s, %s' % (acc, ar(RING + 4 * (f % NR), 4), ar(8 * s + 4 * (dh ^ k), 4), acc if s > 1 else '0'))
    if OPT['X'] & 256:
        m16(0)
    elif not OPT['X'] & 8:
        e('v_mfma_f32_32x32x16_bf16 %s, %s, %s, %s' % (acc, ar(RING + 4 * (f % NR), 4), ar(8 * s + 4 * dh, 4), acc if s else '0'))
    left[f] -= 1
    if n + 1 < len(MF) and MF[n + 1][0] not in seen:
        u = 1
    if hf[0] < 76 and (hf[0] < NR or left[hf[0] - NR] == 0) and clk[0] >= clk[1]:
        u += hload()
        clk[1] += OPT['HINT']
    if OPT['X'] & 256:
        while F2.ready() and (u + F2.cost() <= OPT['RPOP'] // 2):
            u += F2.cost()
            F2.pop1()
        m16(1)
    while F2.ready() and (u + F2.cost() <= OPT['RPOP'] or u <= 1):
        u += F2.cost()
        F2.pop1()
    clk[0] += max(32, (16 if OPT['X'] & 256 else 8) + 4 * u)
assert hf[0] == 76
stamp('mfma2')
if OPT['PXPOS'] == 38:
    px_issue()
print('F2 left', len(F2.q))
F2.flush()
for key, m in sorted(last.items()):
    if m + 2 >= len(MF):
        assert key != (1, 0, 0)
        for k in range(16):
            red_write(1, 32 * key[1] + 16 * key[2] + k)
A.wait_lg0()
e('s_barrier')
stamp('bar2')
if OPT['PXPOS'] == 39:
    px_issue()
Q1 = range(2 if OPT['FIN1'] else 0, 4)
for q in Q1:
    for part in range(4):
        red_read(1, q, part)
if OPT['PXPOS'] == 40:
    A.wait_vm('pxs')
    stamp('pxack')
    px_issue()
def own_sum(q):
    A.wait_lg('rr%d' % q)
    b, r = RD + 16 * q, RES + 4 * q
    for h in (0, 2):
        e('v_pk_add_f32 %s, %s, %s' % (vr(b + h, 2), vr(b + h, 2), vr(b + 4 + h, 2)))
        e('v_pk_add_f32 %s, %s, %s' % (vr(b + 8 + h, 2), vr(b + 8 + h, 2), vr(b + 12 + h, 2)))
    for h in (0, 2):
        e('v_pk_add_f32 %s, %s, %s' % (vr(r + h, 2), vr(r + h, 2), vr(b + h, 2)))
    for h in (0, 2):
        e('v_pk_add_f32 %s, %s, %s' % (vr(r + h, 2), vr(r + h, 2), vr(b + 8 + h, 2)))
for q in Q1:
    own_sum(q)
A.wait_vm('px')
stamp('px1')
retry_loop('px', px_issue, px_check, 62)
stamp('pxok')
for q in range(4):
    r = RES + 4 * q
    for h in (0, 2):
        e('v_pk_add_f32 %s, %s, %s' % (vr(r + h, 2), vr(r + h, 2), vr(PXR + 4 * q + h, 2)))
    if q == 2:
        S('s_movk_i32 %s, 4096', sT0)
    A.vmem('buffer_store_dwordx4 %s, %s, %s, %s offen offset:%d%s' % (vr(r, 4), vr(vOO), sr(dO, 4), sr(sT0) if q > 1 else '0', (q & 1) * 2048, ['', ' sc1', ' nt', ' sc0 sc1'][OPT['OUTSC']]), 'out')
lab = newlab('nep')
S('s_cmp_lg_u32 %s, 3', sGW)
e('s_cbranch_scc1 %s' % lab)
A.wait_vm('alp')
retry_loop('al', al_issue, al_check, 63)
one_lane_store(8, '0', 'ep')
A.label(lab)
if PROF:
    stamp('stored')
    e('s_waitcnt vmcnt(0)')
    stamp('drained')
    stamp('rt1', True)
    A.wait_lg0()
    e('v_lshlrev_b32 v16, 2, %s' % vr(vLANE))
    if DBGT and os.environ.get('AMP'):
        x0, x1 = os.environ['AMP'].split('-')
        e('v_readlane_b32 s40, %s, %d' % (vr(vSTAMP), SNAMES[x0]))
        e('v_readlane_b32 s41, %s, %d' % (vr(vSTAMP), SNAMES[x1]))
        e('v_readlane_b32 s42, %s, %d' % (vr(vSTAMP), SNAMES['drained']))
        e('s_nop 4')
        e('s_sub_u32 s40, s41, s40')
        e('s_lshl_b32 s40, s40, 2')
        e('s_min_u32 s40, s40, 20000')
        e('s_mov_b32 s43, 0')
        A.label('L_amp')
        e('s_memrealtime s[44:45]')
        e('s_waitcnt lgkmcnt(0)')
        e('s_add_u32 s43, s43, 1')
        e('s_cmp_gt_u32 s43, 0x4000')
        e('s_cbranch_scc1 L_ampd')
        e('s_sub_u32 s44, s44, s42')
        e('s_cmp_lt_u32 s44, s40')
        e('s_cbranch_scc1 L_amp')
        A.label('L_ampd')
    elif DBGT:
        e('s_load_dwordx2 s[40:41], s[0:1], 120')
        e('v_not_b32 v17, %s' % vr(vSTAMP))
        e('v_cmp_eq_u32 vcc, 0, %s' % vr(vLANE))
        e('s_nop 1')
        e('v_cndmask_b32 v17, %s, v17, vcc' % vr(vSTAMP))
        e('s_waitcnt lgkmcnt(0)')
        e('s_mov_b64 exec, 0xffff')
        e('global_atomic_umax v16, v17, s[40:41] sc1')
        e('s_mov_b64 exec, -1')
    S('s_lshl_b32 %s, %s, 8', sT0, sGW)
    S('s_add_u32 %s, %s, %s', sT0, sT0, hex(WS_PROF))
    e('buffer_store_dword %s, v16, %s, %s offen' % (vr(vSTAMP), sr(dWS, 4), sr(sT0)))
    json.dump(SNAMES, open(OUT + '.names', 'w'))
A.label('L_end')
e('s_endpgm')

body, nops = hazard_pass(A.lines)
if OPT['PG'] & 8:
    body, n1, n2, tot = stub_pass(body, 0x300, 2, 4, OPT['AL'])
    print('alignment: nops', n1, 'widened', n2, 'cost', tot)
elif OPT['AL']:
    body, n1, n2, tot = align_pass(body, OPT['AL'])
    print('alignment: nops', n1, 'widened', n2, 'cost', tot)
head = open('cdna_kernels/%s.s.ref' % NAME).read().split('; Override launch')[0]
txt = head + '; @launch grid=(256,1,1) block=(256,1,1) lds=%d\n' % LDS_BYTES
txt += '''.amdgcn_target "amdgcn-amd-amdhsa--gfx950"
.text
.globl %s_kernel
.p2align %d
.type %s_kernel,@function
%s_kernel:
''' % (NAME, 12 if OPT['PG'] & 1 else 8, NAME, NAME)
txt += '\n'.join(body) + '\n'
txt += '''.section .rodata,"a"
.p2align 6
.amdhsa_kernel %s_kernel
  .amdhsa_next_free_vgpr 512
  .amdhsa_next_free_sgpr 102
  .amdhsa_accum_offset 256
  .amdhsa_group_segment_fixed_size 0
  .amdhsa_kernarg_size 136
  .amdhsa_user_sgpr_count 2
  .amdhsa_user_sgpr_kernarg_segment_ptr 1
  .amdhsa_system_sgpr_workgroup_id_x 1
.end_amdhsa_kernel
''' % NAME
open(OUT, 'w').write(txt)
print('wrote', OUT, 'lines', len(body), 'nops', nops)
```

```python
import sys, math, struct, json
from asmlib import *

NAME = 'parallel_sum__ssm_conv_s5__mixer_channel_mlp__prompt'
DBGT = '--dbgt' in sys.argv
PROF = '--prof' in sys.argv or DBGT
OUT = [a for a in sys.argv[1:] if not a.startswith('--') and '=' not in a]
OUT = OUT[0] if OUT else 'cdna_kernels/%s.s' % NAME
OPT = dict(GF=0, LBX=-1, NE=22, HOLD=0, PH=0, PAX=6, AI=40, LDB=0, PBM=6, LDC=0, PCM=6, CU=2, F3=0, FEP=0, N1=2, PCD=6, XG=0, XI=28, XC0=2, XC1=5, XAD=1, DS=0, FINE=0, FIN1=0, BW=8, DEF=0, DEFR=3, DFI=4, ZJ=1, CPF=1, EP=0, PAP=1, R0=1, R1=3, N0=4, HI2=70, BXP=8, D0A=2, NPK=20, LATE=1, ROT=10, DINT=72, LBPOS=6, OUTSC=0, PXPOS=39, RPOP=8, HINT=60, PTOUCH=0, DCOST=2, D1A=0, BUD0=2, NB0=4, X=0,
           EINT=100, NB1=3, PBD=12, SDG=5, NPRE=10, WPF=3, WT0=9, STL=4, RQ=3,
           PB=1, PINT=110, SPF=0, D1B=7, B1P=-1, B1G=3, XS=0, TL0=6, TL1=6, WC=2, FAP=0, XWP=0, PXS=0, CJ0=6, WG0=0, WNT=0, FL0=0, NTX=-1, NTW=-1, NTS=0, WPK=0, WINT=92, WCL=4, SMP=0, STD=0, AL=5, PG=11, PGA=3, PGH=19, PGT=0, HP=0, WB=-1, WBM=0)
for a in sys.argv[1:]:
    if '=' in a:
        k, v = a.split('=')
        assert k in OPT, k
        OPT[k] = int(v)

def f2u(x):
    return '0x%08x' % struct.unpack('<I', struct.pack('<f', x))[0]

WS_AL = 0x1000
WS_G = 0x8000
WS_SG = 0x10000
WS_PROF = 0x40000
WS_FA = 0x80000
WS_FB = 0xA0000
WS_FC = 0xC0000
WS_PX = 0x100000
WS_H = 0x800000
WS_SIZE = 0x1200000
HR = 152 * 2048

SLOT, PIECE = 36864, 9216
TAB, TROW = 147456, 272
CSX = TAB + 25 * TROW
PE = 155648
assert CSX + 1280 <= PE and CSX % 16 == 0
LDS_BYTES = 160 * 1024

sW, sRB, sJ, sKH, sC, sRBL, sTAG, sGW, sTH, sPH, sPC = 4, 5, 6, 7, 8, 9, 10, 11, 12, 13, 14
sJT = sPC
pX, pLRE, pLIM, pBRE, pBIM, pCRE, pCIM, pLDT, pDSK, pBX, pW1, pB1, pW2, pB2, pOUT, pDBG, pWS = [16 + 2 * i for i in range(17)]
sPERM, sCNT = 50, 51
dX, dWS, dB, dW1, dW2, dO = 52, 56, 60, 64, 68, 72
sM0, sSX, sSW, sOFF, sM8, sME, sWS, sBM, sU0, sCG, sT0, sT1 = range(76, 88)
sCO = sOFF
sMSK = [88, 90, 92, 94]
sT2, sT3 = 34, 35
sD0, sSG, sSGO, sHM, sHS, sFL, sPA, sPB, sH1, sH2 = range(16, 26)
sSSM, sGR, sPX, sP1, sP2, sHC, sF0, sF1 = 30, 31, 32, 33, 36, 37, 38, 39

vLANE, vL16, vLO4, vG, vLO5, vHI5, vSTAMP, vSCR = 255, 254, 253, 252, 251, 250, 249, 248

A = Asm()
AUTO = dict(on=False, t=0, nxt=0, xn=0, busy=False, any=False, int=OPT['EINT'])
_e = A.e
def e_time(s):
    mn = s.split()[0]
    AUTO['t'] += 8 if mn in TRANS else 12 if mn.startswith(('buffer_', 'ds_write')) else 4
    _e(s)
A.e = e_time
def e(s):
    A.e(s)
    ok = s.startswith('v_') or (AUTO['any'] and s.startswith('s_') and not s.startswith(('s_cmp', 's_bitcmp', 's_memtime', 's_wait')))
    if AUTO['on'] and not AUTO['busy'] and ok and DQ.ready() and AUTO['t'] >= AUTO['nxt']:
        AUTO['busy'] = True
        AUTO['nxt'] = max(AUTO['nxt'], AUTO['t'] - 2 * AUTO['int']) + AUTO['int']
        DQ.popD()
        AUTO['busy'] = False
    elif AUTO['on'] and not AUTO['busy'] and ok and XQ.ready() and AUTO['t'] >= AUTO['xn']:
        AUTO['busy'] = True
        AUTO['xn'] = max(AUTO['xn'], AUTO['t'] - 2 * OPT['XI']) + OPT['XI'] * XQ.cost()
        XQ.pop1()
        AUTO['busy'] = False
def auto(on):
    AUTO['on'] = on
EXPECT = dict([('st%d' % v, 9) for v in range(8)] + [('stat', 4), ('W', 38 - 8 * OPT['DEF']), ('Wd', 8 * OPT['DEF']), ('Wa', 20), ('Wb', 2), ('Wc0', 8), ('Wc1', 8), ('b1', 5), ('srow', 2), ('lb', 4), ('px', 2 if OPT['PH'] else 4), ('res', 8)])
ISSUED = {}
_vm, _wv = A.vmem, A.wait_vm
def vm_hook(s, tag='x', opt=False):
    ISSUED[tag] = ISSUED.get(tag, 0) + 1
    if OPT['X'] & 1 and ' lds' in s and tag not in ('st0', 'st1'):
        return
    if OPT['HP'] & 1 and tag in ('HM', 'HS') or OPT['HP'] & 2 and tag in ('fa', 'fb'):
        s = s.replace(' sc1', ' nt' if OPT['HP'] & 4 else '')
    _vm(s, tag, opt)
def wv_hook(tags):
    for t in ([tags] if isinstance(tags, str) else tags):
        assert ISSUED.get(t, 0) >= EXPECT.get(t, 1), (t, ISSUED.get(t, 0))
    _wv(tags)
A.vmem, A.wait_vm = vm_hook, wv_hook
DSN = {}
_ds = A.ds
def ds_hook(s, tag='x'):
    DSN[tag] = DSN.get(tag, 0) + 1
    if OPT['X'] & 4 and tag[0] in 'xa' and tag[1].isdigit():
        return
    if OPT['X'] & 32 and tag == 'csw' or OPT['X'] & 64 and tag == 'cso':
        return
    _ds(s, tag)
A.ds = ds_hook
SNAMES = {}
import os
SKIP = os.environ.get('SKIP', 'b1,b3,fa,fb,d0,tab').split(',')
HST = [int(x) for x in os.environ.get('HST', '0,6,12,19,26,32').split(',')]
pending = []
SPAIRS = [96, 98, 100]
def flush_stamps():
    for (i, p) in pending:
        e('v_writelane_b32 %s, %s, %d' % (vr(vSTAMP), sr(p), i))
    del pending[:]
_wl0 = A.wait_lg0
def wait_lg0_hook():
    _wl0()
    flush_stamps()
A.wait_lg0 = wait_lg0_hook
DT = os.environ.get('DT', 'rt0,t0,karg,lam,st0,a3,kloop,Spub,gelu,Sgot,epi,paok,pbok,mfma2,pxok,drained').split(',')
def stamp(name, real=False):
    if not PROF:
        A.label('L_m_' + name)
    if not PROF or name in SKIP:
        return
    if os.environ.get('ONLY') and name not in ['rt0', 't0', 'drained', 'rt1'] + os.environ['ONLY'].split(','):
        return
    if DBGT:
        if name not in DT:
            return
        real = True
    if os.environ.get('REAL') and name not in ('t0', 'drained'):
        real = True
    assert name not in SNAMES
    SNAMES[name] = len(SNAMES)
    i = SNAMES[name]
    assert i < 57
    if len(pending) == len(SPAIRS):
        A.wait_lg0()
    used = [p for (_, p) in pending]
    p = [q for q in SPAIRS if q not in used][0]
    e('%s %s' % ('s_memrealtime' if real else 's_memtime', sr(p, 2)))
    pending.append((i, p))
def count(slot):
    if PROF and not os.environ.get('ONLY'):
        e('v_writelane_b32 %s, %s, %d' % (vr(vSTAMP), sr(sCNT), slot))

def srd(d, p, size):
    e('s_mov_b32 %s, %s' % (sr(d), sr(p)))
    e('s_mov_b32 %s, %s' % (sr(d + 1), sr(p + 1)))
    e('s_mov_b32 %s, 0x%x' % (sr(d + 2), size))
    e('s_mov_b32 %s, 0x20000' % sr(d + 3))

def cmul(dr, di, ar_, ai, br, bi):
    e('v_mul_f32 %s, %s, %s' % (vr(dr), vr(ar_), vr(br)))
    e('v_mul_f32 %s, %s, %s' % (vr(di), vr(ar_), vr(bi)))
    e('v_fma_f32 %s, -%s, %s, %s' % (vr(dr), vr(ai), vr(bi), vr(dr)))
    e('v_fma_f32 %s, %s, %s, %s' % (vr(di), vr(ai), vr(br), vr(di)))

def cfma(dr, di, ar_, ai, br, bi, cr, ci):
    e('v_fma_f32 %s, %s, %s, %s' % (vr(dr), vr(ar_), vr(br), vr(cr)))
    e('v_fma_f32 %s, %s, %s, %s' % (vr(di), vr(ar_), vr(bi), vr(ci)))
    e('v_fma_f32 %s, -%s, %s, %s' % (vr(dr), vr(ai), vr(bi), vr(dr)))
    e('v_fma_f32 %s, %s, %s, %s' % (vr(di), vr(ai), vr(br), vr(di)))

NEG1 = 'neg_lo:[0,1,0] neg_hi:[0,1,0]'
def pk_cfma4(dr, di, ar_, ai, k, cr, ci):
    for h in (0, 2):
        e('v_pk_fma_f32 %s, %s, %s, %s' % (vr(dr + h, 2), vr(ar_ + h, 2), vr(k + h, 2), vr(cr + h, 2)))
    for h in (0, 2):
        e('v_pk_fma_f32 %s, %s, %s, %s' % (vr(di + h, 2), vr(ai + h, 2), vr(k + h, 2), vr(ci + h, 2)))
    for h in (0, 2):
        e('v_pk_fma_f32 %s, %s, %s, %s %s' % (vr(dr + h, 2), vr(ai + h, 2), vr(k + 4 + h, 2), vr(dr + h, 2), NEG1))
    for h in (0, 2):
        e('v_pk_fma_f32 %s, %s, %s, %s' % (vr(di + h, 2), vr(ar_ + h, 2), vr(k + 4 + h, 2), vr(di + h, 2)))

labn = [0]
def newlab(s):
    labn[0] += 1
    return 'L_%s_%d' % (s, labn[0])

PGS = os.environ.get('PGS', 'st0').split(',')
def page(name):
    if name not in PGS or not OPT['PG'] & 6:
        return
    k = PGS.index(name)
    A.e('s_branch L_pg_%d' % k)
    if OPT['PG'] & 2:
        A.lines.append('.p2align 12')
    if OPT['PG'] & 4:
        A.label('L_stub_%d' % k)
        A.e('s_branch %s' % ('L_stub_%d' % (k + 4) if 0 < k < len(PGS) - 4 else 'L_back'))
    A.label('L_pg_%d' % k)
def touch_pages(k):
    if OPT['PG'] & 8 and OPT['PGT'] == k:
        A.e('s_mov_b64 exec, 0')
        for w in range(3):
            A.e('s_cmp_eq_u32 %s, %d' % (sr(sW), w))
            A.e('s_cbranch_scc1 L_stub_%d' % w)
        A.e('s_branch L_stub_3')
        A.label('L_back')
        A.e('s_mov_b64 exec, -1')
    if not OPT['PG'] & 4 or OPT['PGT'] != k:
        return
    for w in range(3):
        A.e('s_cmp_eq_u32 %s, %d' % (sr(sW), w))
        A.e('s_cbranch_scc1 L_stub_%d' % (w + 1))
    A.e('s_branch L_stub_4')
    A.label('L_back')

def S(fmt, *a):
    e(fmt % tuple(sr(x) if isinstance(x, int) else x for x in a))

def retry_loop(name, issue, check, slot, first=True, after=None):
    lo, ld = newlab(name + 'l'), newlab(name + 'd')
    if first:
        check()
    if PROF:
        S('s_mov_b32 %s, 0', sCNT)
    e('s_cbranch_vccz %s' % ld)
    S('s_mov_b32 %s, 0', sCNT)
    A.label(lo)
    sv = list(A.vm)
    issue()
    e('s_waitcnt vmcnt(0)')
    if after:
        after()
    A.vm = sv
    check()
    S('s_add_u32 %s, %s, 1', sCNT, sCNT)
    e('s_cbranch_vccz %s' % ld)
    S('s_cmp_le_u32 %s, 0x20000', sCNT)
    e('s_cbranch_scc1 %s' % lo)
    A.label(ld)
    count(slot)

def one_lane_store(vt, soff, tag, opt=False, sc=' sc1'):
    e('v_mov_b32 %s, %s' % (vr(vt), sr(sTAG)))
    e('v_mov_b32 %s, 0' % vr(vt + 1))
    e('s_mov_b64 exec, 1')
    A.vmem('buffer_store_dword %s, %s, %s, %s offen%s' % (vr(vt), vr(vt + 1), sr(dWS, 4), soff, sc), tag, opt=opt)
    e('s_mov_b64 exec, -1')
def flag(off, tag):
    S('s_add_u32 %s, %s, %s', sT0, sFL, hex(off))
    e('s_mov_b32 exec_hi, 0')
    A.vmem('buffer_store_dword %s, %s, %s, %s offen sc1' % (vr(vTAG), vr(vTM), sr(dWS, 4), sr(sT0)), tag)
    e('s_mov_b32 exec_hi, -1')

class Q:
    def __init__(self):
        self.q = []
        self.open = set([None])
    def add(self, ops, gate=None):
        self.q += [(c, f, gate) for (c, f) in ops]
    def ready(self):
        return bool(self.q) and self.q[0][2] in self.open
    def cost(self):
        return self.q[0][0]
    def pop1(self):
        self.q.pop(0)[1]()
    def popD(self, n=1):
        while n > 0 and self.ready():
            if self.cost() == 'D':
                n -= 1
            self.pop1()
    def pop(self, n):
        while n > 0 and self.ready():
            c = self.cost()
            n -= 2 if c == 'D' else c
            self.pop1()
    def flush(self):
        while self.q:
            assert self.ready(), self.q[0][2]
            self.pop1()

class Ops(list):
    def v(self, s, c=1):
        self.append((c, lambda: e(s)))
    def s(self, fmt, *a):
        self.append((1, lambda: S(fmt, *a)))
    def f(self, fn, c=1):
        self.append((c, fn))

DQ = Q()
XQ = Q()
FQ = Q()
ACC, CS, XF, AF, ONE = 0, 80, 100, 132, 152
XA, BA, WA = 156, 160, 164
vX, vB, vW1, vW2 = 168, 170, 172, 175
B1, ST, SS, TMP = 180, 188, 204, 212
BU = TMP + 4
vTB, vTI, vTC, vTG, vSXW, vSXR, vCW, vCR, vPF, vTM, vXO, vGO = range(TMP + 16, TMP + 28)
vPA = TMP + 28
vSA, vTRL, vTAG = 177, 178, 179
vWT, vCT, vPW, vCO = 244, 245, 246, 247
sPM = 40
U0, U1 = 186, 187
SR = ST

e('s_cmp_ge_u32 s2, 256')
e('s_cbranch_scc1 L_end')
if PROF:
    e('v_mov_b32 %s, 0' % vr(vSTAMP))
    stamp('rt0', True)
    stamp('t0')
e('s_load_dwordx16 s[16:31], s[0:1], 0')
e('s_load_dwordx16 s[32:47], s[0:1], 64')
e('s_load_dwordx2 s[48:49], s[0:1], 128')
e('s_getpc_b64 %s' % sr(sPC, 2))
A.label('L_pc')
e('v_and_b32 %s, 63, v0' % vr(vLANE))
e('v_lshrrev_b32 v1, 6, v0')
e('v_lshlrev_b32 %s, 4, %s' % (vr(vL16), vr(vLANE)))
e('v_readfirstlane_b32 %s, v1' % sr(sW))
if OPT['CPF'] == 0:
    e('v_lshlrev_b32 v2, 7, v0')
    e('v_min_u32 v2, L_end-L_pc, v2')
    lab = newlab('npf')
    e('s_cmp_ge_u32 s2, 16')
    e('s_cbranch_scc1 %s' % lab)
    A.vmem('global_load_dword %s, v2, %s' % (vr(vSCR), sr(sPC, 2)), 'pf', opt=True)
    A.label(lab)
else:
    n = OPT['CPF']
    e('v_lshrrev_b32 v2, %d, v0' % (6 - n))
    e('s_and_b32 s3, s2, %d' % (0xf8 >> (n - 1) & 0xf8))
    e('s_lshl_b32 s3, s3, %d' % (6 + n))
    e('v_lshl_add_u32 v2, v2, 7, s3')
    e('v_min_u32 v2, L_end-L_pc, v2')
    A.vmem('global_load_dword %s, v2, %s' % (vr(vSCR), sr(sPC, 2)), 'pf')
S('s_and_b32 %s, s2, 1', sKH)
S('s_lshr_b32 %s, s2, 6', sRBL)
S('s_bfe_u32 %s, s2, 0x30003', sC)
S('s_bfe_u32 s3, s2, 0x20001')
S('s_lshl2_add_u32 %s, s3, %s', sRB, sRBL)
S('s_lshl3_add_u32 %s, %s, %s', sJ, sKH, sC)
S('s_lshl2_add_u32 %s, s2, %s', sGW, sW)
if OPT['ROT'] == 0:
    S('s_mov_b32 %s, 0x76543210', sPERM)
elif OPT['ROT'] == 9:
    PT = [[0, 4, 1, 2, 3, 5, 6, 7], [1, 2, 5, 3, 0, 4, 6, 7], [2, 3, 0, 6, 1, 4, 5, 7], [3, 0, 1, 2, 7, 4, 5, 6]]
    PT = [hex(sum(x << (4 * i) for i, x in enumerate(p))) for p in PT]
    S('s_add_u32 %s, %s, %s', sT0, sRBL, sC)
    S('s_mov_b32 %s, %s', sPERM, PT[0])
    S('s_mov_b32 %s, %s', sT1, PT[2])
    S('s_bitcmp1_b32 %s, 0', sT0)
    S('s_cselect_b32 %s, %s, %s', sPERM, PT[1], sPERM)
    S('s_cselect_b32 %s, %s, %s', sT1, PT[3], sT1)
    S('s_bitcmp1_b32 %s, 1', sT0)
    S('s_cselect_b32 %s, %s, %s', sPERM, sT1, sPERM)
    S('s_add_u32 %s, s3, %s', sT1, sKH)
    S('s_bitcmp1_b32 %s, 0', sT1)
    S('s_cselect_b32 %s, 0x44444444, 0', sT1)
    S('s_xor_b32 %s, %s, %s', sPERM, sPERM, sT1)
elif OPT['ROT'] == 10:
    PT = [[int(c) for c in p] for p in os.environ.get('PT', '01423567,02136457,10253467,13024756').split(',')]
    assert all(sorted(p) == list(range(8)) for p in PT)
    PT = [hex(sum(x << (4 * i) for i, x in enumerate(p))) for p in PT]
    S('s_add_u32 %s, %s, %s', sT0, sRBL, sC)
    S('s_mov_b32 %s, %s', sPERM, PT[0])
    S('s_mov_b32 %s, %s', sT1, PT[2])
    S('s_bitcmp1_b32 %s, 0', sT0)
    S('s_cselect_b32 %s, %s, %s', sPERM, PT[1], sPERM)
    S('s_cselect_b32 %s, %s, %s', sT1, PT[3], sT1)
    S('s_bitcmp1_b32 %s, 1', sT0)
    S('s_cselect_b32 %s, %s, %s', sPERM, sT1, sPERM)
    S('s_lshl1_add_u32 %s, %s, s3', sT1, sKH)
    S('s_and_b32 %s, %s, 3', sT1, sT1)
    S('s_mul_i32 %s, %s, 0x22222222', sT1, sT1)
    S('s_xor_b32 %s, %s, %s', sPERM, sPERM, sT1)
elif OPT['ROT'] == 8:
    S('s_lshl1_add_u32 %s, %s, %s', sT0, sRBL, sC)
    S('s_add_u32 %s, %s, s3', sT0, sT0)
    S('s_and_b32 %s, %s, 7', sT0, sT0)
    S('s_mul_i32 %s, %s, 0x11111111', sT0, sT0)
    S('s_add_u32 %s, %s, 0x76543210', sT0, sT0)
    S('s_and_b32 %s, %s, 0x77777777', sPERM, sT0)
else:
    S('s_add_u32 %s, %s, %s', sT0, sRBL, sC)
    S('s_and_b32 %s, %s, 3', sT0, sT0)
    S('s_mul_i32 %s, %s, 0x11111111', sT0, sT0)
    S('s_add_u32 %s, %s, 0x32103210', sT0, sT0)
    S('s_and_b32 %s, %s, 0x33333333', sT0, sT0)
    if OPT['ROT'] == 4:
        S('s_add_u32 %s, s3, %s', sT1, sKH)
    elif OPT['ROT'] == 6:
        S('s_mov_b32 %s, 0', sT1)
    else:
        S('s_lshr_b32 %s, %s, 2', sT1, sC)
        S('s_add_u32 %s, %s, s3', sT1, sT1)
    S('s_bitcmp0_b32 %s, 0', sT1)
    S('s_mov_b32 %s, 0x4444', sT1)
    S('s_cselect_b32 %s, 0x44440000, %s', sT1, sT1)
    S('s_or_b32 %s, %s, %s', sPERM, sT0, sT1)
e('v_lshrrev_b32 %s, 5, %s' % (vr(vHI5), vr(vLANE)))
e('v_and_b32 %s, 31, %s' % (vr(vLO5), vr(vLANE)))
e('v_lshrrev_b32 %s, 4, %s' % (vr(vG), vr(vLANE)))
e('v_and_b32 %s, 15, %s' % (vr(vLO4), vr(vLANE)))
S('s_lshr_b32 %s, %s, 1', sTH, sW)
S('s_and_b32 %s, %s, 1', sPH, sW)
e('v_and_b32 v1, 7, %s' % vr(vLANE))
e('v_lshrrev_b32 v3, 3, %s' % vr(vLANE))
e('v_xor_b32 v4, v1, %s' % vr(vG))
e('v_lshlrev_b32 v4, 4, v4')
S('s_lshl1_add_u32 %s, %s, %s', sT0, sRB, sTH)
S('s_lshl_b32 %s, %s, 6', sT0, sT0)
S('s_add_u32 %s, %s, %s', sT0, sT0, sPH)
S('s_lshl_b32 %s, %s, 10', sT0, sT0)
e('v_lshl_add_u32 v5, v3, 12, v4')
e('v_add_u32 %s, %s, v5' % (vr(vX), sr(sT0)))
e('v_xor_b32 %s, 64, %s' % (vr(vX + 1), vr(vX)))
e('v_add_u32 %s, %d, %s' % (vr(vX + 1), 31 * 1024, vr(vX + 1)))
S('s_lshl1_add_u32 %s, %s, %s', sCG, sJ, sTH)
S('s_lshl_b32 %s, %s, 14', sCG, sCG)
e('v_lshl_add_u32 v5, v3, 10, v4')
e('v_add_u32 %s, %s, v5' % (vr(vB), sr(sCG)))
e('v_xor_b32 %s, 64, %s' % (vr(vB + 1), vr(vB)))
e('v_add_u32 %s, %d, %s' % (vr(vB + 1), 7 * 1024, vr(vB + 1)))
S('s_lshr_b32 %s, %s, 2', sT0, sJ)
S('s_mul_i32 %s, %s, 22', sT0, sT0)
S('s_and_b32 %s, %s, 3', sT1, sJ)
if OPT['ZJ']:
    S('s_cmp_eq_u32 %s, 3', sT1)
    S('s_cselect_b32 %s, 8, 0', sU0)
S('s_mul_i32 %s, %s, 6', sT1, sT1)
S('s_add_u32 %s, %s, %s', sJT, sT0, sT1)
S('s_lshl_b32 %s, %s, 5', sSW, sJT)
S('s_mul_i32 %s, %s, %s', sT0, sW, str(16 * 2752))
S('s_add_u32 %s, %s, %s', sSW, sSW, sT0)
S('s_movk_i32 %s, 5462', sT0)
S('s_movk_i32 %s, 2752', sT1)
for i in range(3):
    e('v_add_u32 v6, %d, %s' % (64 * i, vr(vLANE)))
    e('v_mul_u32_u24 v7, %s, v6' % sr(sT0))
    e('v_lshrrev_b32 v7, 16, v7')
    e('v_mul_u32_u24 v8, 12, v7')
    e('v_sub_u32 v6, v6, v8')
    e('v_lshrrev_b32 v8, 3, v7')
    e('v_lshlrev_b32 v8, 1, v8')
    e('v_xor_b32 v6, v6, v8')
    e('v_mul_u32_u24 v7, %s, v7' % sr(sT1))
    if OPT['ZJ']:
        e('v_and_b32 v8, %s, v6' % sr(sU0))
        e('v_lshl_add_u32 v7, v8, 27, v7')
    e('v_lshl_add_u32 v6, v6, 4, v7')
    e('v_add_u32 %s, %s, v6' % (vr(vW1 + i), sr(sSW)))
    if i < 2:
        S('s_sub_u32 %s, %s, 1024', sSW, sSW)
S('s_mul_i32 %s, %s, %s', sM0, sW, str(PIECE))
S('s_lshl_b32 %s, %s, 6', sT0, sJ)
e('v_lshl_add_u32 v9, %s, 1, %s' % (vr(vLO5), sr(sT0)))
e('v_mov_b32 v10, 0')
S('s_mov_b32 %s, 0x200000', dX + 2)
S('s_mov_b32 %s, 0x20000', dX + 3)
S('s_mov_b32 %s, 0x80000', dB + 2)
S('s_mov_b32 %s, 0x20000', dB + 3)
S('s_mov_b32 %s, %s', dW1 + 2, str(512 * 2752))
S('s_mov_b32 %s, 0x20000', dW1 + 3)
S('s_mov_b32 %s, %s', dWS + 2, hex(WS_SIZE))
S('s_mov_b32 %s, 0x20000', dWS + 3)
S('s_movk_i32 %s, 2752', dO + 2)
S('s_mov_b32 %s, 0x20000', dO + 3)
S('s_add_u32 %s, %s, %s', sT0, sJT, sPH)
S('s_lshl_b32 %s, %s, 5', sT0, sT0)
e('v_lshl_add_u32 v15, %s, 3, %s' % (vr(vG), sr(sT0)))
S('s_lshl_b32 %s, %s, 7', sT1, sC)
e('v_lshl_add_u32 v16, %s, 3, %s' % (vr(vLO4), sr(sT1)))

def stage_dma(v):
    slot = v & 3
    tag = 'st%d' % v
    ops = []
    sc = lambda fmt, *a: ops.append((1, lambda: S(fmt, *a)))
    dm = lambda txt: ops.append(('D', lambda: A.vmem(txt, tag)))
    sc('s_bfe_u32 %s, %s, %s', sSW, sPERM, '0x%x' % (4 * v + 0x30000))
    sc('s_add_u32 m0, %s, %s', sM0, str(slot * SLOT + 4096))
    sc('s_lshl_b32 %s, %s, 7', sSX, sSW)
    for i in range(2):
        dm('buffer_load_dwordx4 %s, %s, %s offen offset:%d%s lds' % (vr(vB + i), sr(dB, 4), sr(sSX), i * 1024, ' nt' if v <= OPT['NTW'] else ''))
    sc('s_add_u32 m0, %s, %s', sM0, str(slot * SLOT + 6144))
    sc('s_mul_i32 %s, %s, %s', sSW, sSW, str(64 * 2752))
    for i in range(3):
        dm('buffer_load_dwordx4 %s, %s, %s offen offset:%d%s lds' % (vr(vW1 + i), sr(dW1, 4), sr(sSW), i * 1024, ' nt' if v <= OPT['NTW'] else ''))
    sc('s_add_u32 m0, %s, %s', sM0, str(slot * SLOT))
    for i in range(4):
        dm('buffer_load_dwordx4 %s, %s, %s offen offset:%d%s lds' % (vr(vX + (i & 1)), sr(dX, 4), sr(sSX), i * 1024, ' nt' if v <= OPT['NTX'] else ''))
    return ops

S('s_lshl1_add_u32 %s, %s, %s', sT0, sRB, sKH)
S('s_and_b32 %s, %s, 1', sT1, sJ)
S('s_lshl1_add_u32 %s, %s, %s', sT0, sT0, sT1)
S('s_lshl2_add_u32 %s, %s, %s', sT0, sT0, sW)
S('s_bfe_u32 %s, %s, 0x20001', sT1, sJ)
S('s_lshl3_add_u32 %s, %s, %s', sT0, sT0, sT1)
S('s_lshl_b32 %s, %s, 10', sM8, sT0)
e('v_lshlrev_b32 %s, 12, %s' % (vr(vSA), vr(vHI5)))
e('v_lshl_add_u32 %s, %s, 4, %s' % (vr(vSA), vr(vLO5), vr(vSA)))
d0 = stage_dma(0)
for (c, f) in d0[:3]:
    f()
P = Ops()
P.v('v_lshrrev_b32 v1, 1, %s' % vr(vLO4))
P.v('v_xor_b32 v1, v1, %s' % vr(vG))
P.v('v_lshlrev_b32 v1, 4, v1')
P.v('v_lshl_add_u32 v1, %s, 7, v1' % vr(vLO4))
P.s('s_lshl_b32 %s, %s, 6', sT0, sTH)
P.v('v_xor_b32 v1, %s, v1' % sr(sT0))
P.v('v_xor_b32 v2, 64, v1')
P.s('s_mul_i32 %s, %s, %s', sT0, sTH, str(2 * PIECE))
P.s('s_mul_i32 %s, %s, %s', sT1, sPH, str(2 * PIECE))
P.s('s_add_u32 %s, %s, 4096', sT1, sT1)
for k in range(2):
    P.v('v_add_u32 %s, %s, v%d' % (vr(XA + 2 * k), sr(sT0), 1 + k))
    P.v('v_add_u32 %s, %s, v%d' % (vr(BA + 2 * k), sr(sT1), 1 + k))
    P.v('v_add_u32 %s, %d, %s' % (vr(XA + 2 * k + 1), 2 * SLOT, vr(XA + 2 * k)))
    P.v('v_add_u32 %s, %d, %s' % (vr(BA + 2 * k + 1), 2 * SLOT, vr(BA + 2 * k)))
P.v('v_bfe_u32 v1, %s, 2, 2' % vr(vLANE))
P.v('v_bfe_u32 v2, %s, 4, 1' % vr(vLANE))
P.v('v_lshl_add_u32 v3, v2, 3, v1')
P.v('v_mul_u32_u24 v3, 192, v3')
P.v('v_xor_b32 v4, %s, v2' % sr(sPH))
P.v('v_lshl_add_u32 v3, v4, 5, v3')
P.v('v_and_b32 v4, 3, %s' % vr(vLANE))
P.v('v_lshl_add_u32 v3, v4, 3, v3')
P.s('s_movk_i32 %s, %s', sT1, str(PIECE))
P.v('v_mad_u32_u24 v3, %s, %s, v3' % (vr(vHI5), sr(sT1)))
P.s('s_add_u32 %s, %s, 6144', sT1, sT0)
P.s('s_sub_u32 %s, %s, %s', sT0, str(2 * PIECE + 6144), sT0)
P.v('v_add_u32 %s, %s, v3' % (vr(WA), sr(sT1)))
P.v('v_add_u32 %s, %s, v3' % (vr(WA + 2), sr(sT0)))
P.v('v_add_u32 %s, %d, %s' % (vr(WA + 1), 2 * SLOT, vr(WA)))
P.v('v_add_u32 %s, %d, %s' % (vr(WA + 3), 2 * SLOT, vr(WA + 2)))
P.v('v_and_b32 v5, 7, %s' % vr(vLANE))
P.v('v_lshlrev_b32 v6, 2, v2')
P.v('v_xor_b32 v5, v5, v6')
P.v('v_lshlrev_b32 v5, 4, v5')
P.v('v_lshrrev_b32 v6, 3, %s' % vr(vLANE))
P.v('v_lshl_add_u32 %s, v6, 10, v5' % vr(vW2))
P.v('v_add_u32 %s, %d, %s' % (vr(vW2 + 1), 7 * 1024, vr(vW2)))
P.v('v_lshl_add_u32 v5, %s, 3, v1' % vr(vHI5))
P.v('v_lshlrev_b32 v5, 7, v5')
P.v('v_lshrrev_b32 v6, 1, v1')
P.v('v_lshl_add_u32 v5, v6, 6, v5')
P.v('v_lshl_add_u32 v5, v2, 5, v5')
P.v('v_lshl_add_u32 %s, v4, 3, v5' % vr(vTRL))
P.v('v_mov_b32 %s, 0x3f803f80' % vr(ONE))
for q in range(5):
    P.v('v_cmp_eq_u32 %s, %d, %s' % (sr(sMSK[q & 3], 2) if q < 4 else 'vcc', q, vr(vLO4)))
for q in range(5):
    P.v('v_cndmask_b32 %s, 0, %s, %s' % (vr(CS + 4 * q), vr(ONE), sr(sMSK[q & 3], 2) if q < 4 else 'vcc'))
for q in range(5):
    P.v('v_mov_b32 %s, %s' % (vr(CS + 4 * q + 1), vr(CS + 4 * q)))
for q in range(5):
    P.v('v_mov_b64 %s, %s' % (vr(CS + 4 * q + 2, 2), vr(CS + 4 * q, 2)))
P.s('s_lshl2_add_u32 %s, %s, %s', sT1, sKH, sW)
P.s('s_lshl_b32 %s, %s, 9', sCO, sC)
P.s('s_add_u32 %s, %s, %s', sCO, sCO, sT1)
P.s('s_lshl_b32 %s, %s, 7', sCO, sCO)
P.s('s_lshr_b32 %s, %s, 1', sT0, sT1)
P.s('s_mul_i32 %s, %s, 22', sT0, sT0)
P.s('s_add_u32 %s, %s, %s', sT0, sT0, sPH)
P.s('s_lshl_b32 %s, %s, 7', sWS, sT0)
P.s('s_add_u32 %s, %s, %s', sWS, sWS, sC)
P.s('s_lshl_b32 %s, %s, 7', sWS, sWS)
P.v('v_lshlrev_b32 %s, 10, %s' % (vr(vCT), vr(vLANE)))
P.v('v_lshrrev_b32 %s, 2, %s' % (vr(U0), vr(vLANE)))
P.v('v_mad_u32_u24 %s, v4, 3, %s' % (vr(U0), vr(U0)))
P.s('s_lshl2_add_u32 %s, %s, s3', sU0, sRBL)
P.s('s_lshl_b32 %s, %s, 10', sT1, sU0)
P.v('v_lshl_add_u32 %s, %s, 15, %s' % (vr(vPW), vr(U0), sr(sT1)))
P.s('s_lshl_b32 %s, %s, 2', sU0, sU0)
P.s('s_mov_b32 %s, %s', dW2 + 2, str(1376 * 1024))
P.s('s_mov_b32 %s, 0x20000', dW2 + 3)
P.s('s_mul_i32 %s, %s, %s', sME, sTH, str(SLOT))
P.s('s_lshl_b32 %s, %s, 11', sT0, sPH)
P.s('s_add_u32 %s, %s, %s', sME, sME, sT0)
P.s('s_add_u32 %s, %s, 32768', sME, sME)
P.s('s_lshl_b32 %s, %s, 6', sT0, sPH)
P.s('s_add_u32 %s, %s, %s', sT0, sT0, str(TAB))
P.s('s_movk_i32 %s, %s', sT1, str(TROW))
P.v('v_lshl_add_u32 %s, %s, 4, %s' % (vr(vTB), vr(vG), sr(sT0)))
P.v('v_lshl_add_u32 %s, %s, 2, %s' % (vr(vTC), vr(vLO4), sr(sT0)))
P.v('v_mad_u32_u24 %s, %s, %s, %s' % (vr(vTI), vr(vLO4), sr(sT1), vr(vTB)))
P.v('v_min_u32 %s, 1, %s' % (vr(U0), vr(vG)))
P.v('v_lshl_add_u32 %s, %s, 4, %s' % (vr(U0), vr(U0), vr(vG)))
P.v('v_mad_u32_u24 %s, %s, %s, %s' % (vr(vTG), vr(U0), sr(sT1), vr(vTC)))
P.s('s_mul_i32 %s, %s, 320', sT0, sW)
P.s('s_add_u32 %s, %s, %s', sT0, sT0, str(CSX))
P.v('v_lshl_add_u32 %s, %s, 4, %s' % (vr(vCO), vr(vG), sr(sT0)))
P.v('v_lshl_add_u32 %s, %s, 6, %s' % (vr(vCW), vr(vLO4), vr(vCO)))
P.s('s_xor_b32 %s, %s, 2', sT0, sW)
P.s('s_mul_i32 %s, %s, 320', sT0, sT0)
P.s('s_add_u32 %s, %s, %s', sT0, sT0, str(CSX))
P.v('v_lshl_add_u32 %s, %s, 4, %s' % (vr(vCR), vr(vG), sr(sT0)))
P.v('v_lshl_add_u32 %s, %s, 2, %s' % (vr(vSXW), vr(vLO4), sr(sT0)))
P.s('s_mul_i32 %s, %s, 320', sT0, sPH)
P.s('s_add_u32 %s, %s, %s', sT0, sT0, str(CSX))
P.v('v_lshl_add_u32 %s, %s, 2, %s' % (vr(vSXR), vr(vLO4), sr(sT0)))
P.s('s_sub_u32 %s, %s, 1', sT0, sRB)
P.v('v_sub_u32 %s, %s, %s' % (vr(U0), sr(sT0), vr(vG)))
P.v('v_lshlrev_b32 %s, 4, %s' % (vr(U1), vr(vLO4)))
for i in range(4):
    P.v('v_subrev_u32 %s, %d, %s' % (vr(vPA + i), 4 * i, vr(U0)))
    P.v('v_cmp_le_i32 %s, 0, %s' % (sr(sMSK[i], 2), vr(vPA + i)))
    P.v('v_max_i32 %s, 0, %s' % (vr(vPA + i), vr(vPA + i)))
    P.v('v_lshl_add_u32 %s, %s, 8, %s' % (vr(vPA + i), vr(vPA + i), vr(U1)))
P.v('v_lshlrev_b32 %s, 2, %s' % (vr(vTM), vr(vLO5)))
P.s('s_lshl1_add_u32 %s, %s, %s', sT0, sRB, sKH)
P.s('s_lshl1_add_u32 %s, %s, %s', sT0, sT0, sTH)
P.s('s_lshl2_add_u32 %s, %s, %s', sT0, sT0, sPH)
P.s('s_lshl_b32 %s, %s, 3', sT0, sT0)
P.v('v_and_b32 %s, 1, %s' % (vr(vGO), vr(vG)))
P.v('v_lshl_add_u32 %s, %s, 2, %s' % (vr(vGO), vr(vGO), vr(vHI5)))
P.v('v_lshl_add_u32 %s, %s, 2, %s' % (vr(U0), vr(vGO), sr(sT0)))
P.v('v_lshl_add_u32 %s, %s, 10, v16' % (vr(vXO), vr(U0)))
P.v('v_lshlrev_b32 %s, 4, %s' % (vr(vGO), vr(vGO)))
print('argument-free prologue ops', len(P))
for (c, f) in P[:OPT['NPK']]:
    f()
S('s_cmp_eq_u32 %s, 0', sPH)
stamp('pre')
A.wait_lg0()
stamp('karg')
S('s_cselect_b64 %s, %s, %s', sr(dB, 2), sr(pBRE, 2), sr(pBIM, 2))
S('s_mov_b64 %s, %s', sr(dX, 2), sr(pX, 2))
S('s_mov_b64 %s, %s', sr(dWS, 2), sr(pWS, 2))
lre, lim, ldt, vEP = 11, 12, 13, 14
A.vmem('global_load_ushort %s, v9, %s' % (vr(lre), sr(pLRE, 2)), 'lam')
A.vmem('global_load_ushort %s, v9, %s' % (vr(lim), sr(pLIM, 2)), 'lam')
A.vmem('global_load_ushort %s, v9, %s' % (vr(ldt), sr(pLDT, 2)), 'lam')
A.vmem('buffer_load_dword %s, v10, %s, 0 offen sc1' % (vr(vEP), sr(dWS, 4)), 'lam')
S('s_mov_b64 %s, %s', sr(dW1, 2), sr(pW1, 2))
for i in range(2):
    A.vmem('buffer_load_dwordx4 %s, %s, %s, %s offen offset:%d' % (vr(SR + 4 * i, 4), vr(vSA), sr(dX, 4), sr(sM8), 512 * i), 'srow')
S('s_mov_b64 %s, %s', sr(dO, 2), sr(pB1, 2))
def b1_loads():
    o = Ops()
    for v in range(3):
        o.f(lambda v=v: A.vmem('buffer_load_dwordx2 %s, v15, %s, 0 offen offset:%d' % (vr(B1 + 2 * v, 2), sr(dO, 4), 64 * v), 'b1'), 2)
    o.f(lambda: A.vmem('global_load_dwordx2 a[248:249], v16, %s' % sr(pDSK, 2), 'b1'), 2)
    o.f(lambda: A.vmem('global_load_dwordx2 a[250:251], v16, %s' % sr(pB2, 2), 'b1'), 2)
    o.s('s_mov_b32 %s, 0x80000', dO + 2)
    o.f(lambda: FQ.open.add('b1'), 0)
    return o
if OPT['B1P'] == -1:
    for (c, f) in b1_loads():
        f()
if OPT['PB']:
    e('s_barrier')
DQ.add(d0[3:])
if OPT['B1P'] == 0:
    DQ.add(b1_loads())
DQ.popD(OPT['D0A'])
AUTO.update(on=True, any=True, int=OPT['PINT'], nxt=AUTO['t'])
S('s_mov_b64 %s, %s', sr(dW2, 2), sr(pW2, 2))
S('s_lshl_b32 %s, %s, 13', sM8, sW)
for (c, f) in P[OPT['NPK']:]:
    f()
S('s_lshl_b64 %s, 15, %s', sr(sPM, 2), sU0)
S('s_lshl1_add_u32 %s, %s, %s', sT1, sRB, sKH)
S('s_lshl3_add_u32 %s, %s, %s', sGR, sT1, sTH)
S('s_lshl2_add_u32 %s, %s, %s', sGR, sGR, sPH)
S('s_lshl_b32 %s, %s, 5', sGR, sGR)
S('s_add_u32 %s, %s, %s', sGR, sGR, hex(WS_G + 8))
S('s_lshl1_add_u32 %s, %s, %s', sT0, sJ, sPH)
S('s_lshl_b32 %s, %s, 12', sT0, sT0)
S('s_add_u32 %s, %s, %s', sSG, sT0, hex(WS_SG))
S('s_lshl_b32 %s, %s, 8', sSGO, sRB)
S('s_add_u32 %s, %s, %s', sSGO, sSGO, sSG)
S('s_lshl1_add_u32 %s, %s, %s', sT1, sRB, sTH)
S('s_mul_i32 %s, %s, %s', sT1, sT1, str(HR))
S('s_add_u32 %s, %s, %s', sHS, sT0, sT1)
S('s_add_u32 %s, %s, %s', sHS, sHS, hex(WS_H + 88 * 2048))
S('s_add_u32 %s, %s, %s', sHM, sJT, sPH)
S('s_lshl_b32 %s, %s, 11', sHM, sHM)
S('s_add_u32 %s, %s, %s', sHM, sHM, sT1)
S('s_add_u32 %s, %s, %s', sHM, sHM, hex(WS_H))
S('s_lshl4_add_u32 %s, %s, %s', sFL, sRB, sJ)
S('s_lshl2_add_u32 %s, %s, %s', sFL, sFL, sW)
S('s_lshl_b32 %s, %s, 5', sF0, sFL)
S('s_add_u32 %s, %s, %s', sF0, sF0, hex(WS_G))
S('s_lshl_b32 %s, %s, 7', sFL, sFL)
S('s_add_u32 %s, %s, 1', sF1, sJ)
S('s_and_b32 %s, %s, 3', sF1, sF1)
def late_scalars():
    S('s_lshr_b32 %s, %s, 14', sT0, sWS)
    S('s_lshl_b32 %s, %s, 11', sT0, sT0)
    S('s_add_u32 %s, %s, %s', sT0, sT0, hex(WS_H))
    S('s_lshl2_add_u32 %s, %s, %s', sT2, sKH, sW)
    S('s_lshl_b32 %s, %s, 14', sT2, sT2)
    S('s_add_u32 %s, %s, %s', sT2, sT2, hex(WS_H + 88 * 2048))
    S('s_lshl1_add_u32 %s, %s, %s', sT1, sRB, sKH)
    S('s_mul_i32 %s, %s, %s', sT3, sT1, str(HR))
    S('s_add_u32 %s, %s, %s', sH2, sT3, sT0)
    S('s_add_u32 %s, %s, %s', sP2, sT3, sT2)
    S('s_xor_b32 %s, %s, 1', sT3, sT1)
    S('s_mul_i32 %s, %s, %s', sT3, sT3, str(HR))
    S('s_add_u32 %s, %s, %s', sH1, sT3, sT0)
    S('s_add_u32 %s, %s, %s', sP1, sT3, sT2)
    S('s_lshl1_add_u32 %s, %s, %s', sPA, sT1, sTH)
    S('s_lshl4_add_u32 %s, %s, %s', sPA, sPA, sPH)
    S('s_lshl_b32 %s, %s, 7', sPA, sPA)
    S('s_add_u32 %s, %s, %s', sPA, sPA, hex(WS_FA))
    S('s_lshl2_add_u32 %s, %s, %s', sPB, sT1, sW)
    S('s_lshl_b32 %s, %s, 10', sPB, sPB)
    S('s_add_u32 %s, %s, %s', sPB, sPB, hex(WS_FB))
    S('s_lshl_b32 %s, %s, %s', sPX, sGW, '11' if OPT['PH'] else '12')
    S('s_add_u32 %s, %s, %s', sPX, sPX, hex(WS_PX))
    e('v_and_b32 %s, 7, %s' % (vr(vPF), vr(vLANE)))
    e('v_lshlrev_b32 %s, 8, %s' % (vr(vPF), vr(vPF)))
stamp('prep')
print('DQ left after prep', len(DQ.q))
DQ.flush()
AUTO.update(on=False, any=False, int=OPT['EINT'])
def w_prefetch():
    o = Ops()
    def f():
        e('s_mov_b64 exec, 0x7ff')
        A.vmem('buffer_load_dword %s, %s, %s, %s offen' % (vr(vSCR), vr(vPW), sr(dW2, 4), sr(sWS)), 'touch')
        e('s_mov_b64 exec, %s' % sr(sPM, 2))
        for p in (pCRE, pCIM):
            S('s_mov_b64 %s, %s', sr(dO, 2), sr(p, 2))
            A.vmem('buffer_load_dword %s, %s, %s, %s offen' % (vr(vSCR), vr(vCT), sr(dO, 4), sr(sCO)), 'touch')
        e('s_mov_b64 exec, -1')
    o.f(f, 8)
    return o
if OPT['WPF'] == -2:
    w_prefetch()[0][1]()
stamp('d0')
touch_pages(1)
A.wait_vm('lam')
stamp('lam')
LOG2E = math.log2(math.e)
e('v_readfirstlane_b32 %s, %s' % (sr(sTAG), vr(vEP)))
for r in (lre, lim, ldt):
    e('v_lshlrev_b32 %s, 16, %s' % (vr(r), vr(r)))
e('v_mul_f32 %s, %s, %s' % (vr(ldt), f2u(LOG2E), vr(ldt)))
e('v_exp_f32 %s, %s' % (vr(ldt), vr(ldt)))
S('s_add_u32 %s, %s, 1', sTAG, sTAG)
e('v_add_u32 %s, 1, %s' % (vr(vTAG), vr(vEP)))
S('s_lshl_b32 %s, %s, 1', sT0, sW)
e('v_add_u32 v1, %s, %s' % (sr(sT0), vr(vHI5)))
e('v_cvt_pk_bf16_f32 %s, %s, %s' % (vr(ldt), vr(ldt), vr(ldt)))
e('v_cvt_f32_u32 v2, v1')
e('v_lshlrev_b32 %s, 16, %s' % (vr(ldt), vr(ldt)))
e('v_cmp_lt_u32 vcc, 4, v1')
e('v_mul_u32_u24 v3, %d, v1' % TROW)
e('v_mul_f32 v5, %s, %s' % (vr(ldt), vr(lre)))
e('v_mul_f32 v6, %s, %s' % (vr(ldt), vr(lim)))
e('v_lshl_add_u32 v3, %s, 2, v3' % vr(vLO5))
e('v_mul_f32 v5, %s, v5' % f2u(LOG2E))
e('v_mul_f32 v6, 0.15915494, v6')
e('v_add_u32 v3, %d, v3' % TAB)
e('v_mul_f32 v20, 4.0, v2')
e('v_add_f32 v21, %s, v20' % f2u(32.0))
e('v_mul_f32 v22, %s, v2' % f2u(128.0))
e('v_max_f32 v22, %s, v22' % f2u(64.0))
e('v_add_f32 v23, -4.0, v2')
e('v_cndmask_b32 v22, v22, v23, vcc')
for r in range(3):
    e('v_mul_f32 v%d, v%d, v5' % (24 + r, 20 + r))
    e('v_mul_f32 v%d, v%d, v6' % (28 + r, 20 + r))
for r in range(3):
    e('v_exp_f32 v%d, v%d' % (24 + r, 24 + r))
    e('v_rndne_f32 v%d, v%d' % (20 + r, 28 + r))
for r in range(3):
    e('v_sub_f32 v%d, v%d, v%d' % (28 + r, 28 + r, 20 + r))
for r in range(3):
    e('v_cos_f32 v%d, v%d' % (20 + r, 28 + r))
    e('v_sin_f32 v%d, v%d' % (28 + r, 28 + r))
for r in range(3):
    e('v_mul_f32 v%d, v%d, v%d' % (20 + r, 20 + r, 24 + r))
    e('v_mul_f32 v%d, v%d, v%d' % (28 + r, 28 + r, 24 + r))
for r in range(3):
    A.ds('ds_write_b32 v3, v%d offset:%d' % (20 + r, 8 * r * TROW), 'tab')
    A.ds('ds_write_b32 v3, v%d offset:%d' % (28 + r, 8 * r * TROW + 128), 'tab')
lab = newlab('ncf')
S('s_cmp_lg_u32 %s, 2', sW)
e('s_cbranch_scc1 %s' % lab)
e('v_mul_f32 v24, %s, %s' % (vr(lre), vr(lre)))
e('v_fma_f32 v24, %s, %s, v24' % (vr(lim), vr(lim)))
e('v_rcp_f32 v24, v24')
e('v_add_f32 v25, -1.0, v22')
e('v_mul_f32 v26, v25, %s' % vr(lre))
e('v_mul_f32 v27, v30, %s' % vr(lre))
e('v_add_f32 v24, v24, v24')
e('v_fma_f32 v26, v30, %s, v26' % vr(lim))
e('v_fma_f32 v27, -v25, %s, v27' % vr(lim))
e('v_mul_f32 v26, v26, v24')
e('v_mul_f32 v27, v27, v24')
e('s_mov_b32 exec_lo, 0')
e('ds_write_b32 v3, v26 offset:%d' % (19 * TROW))
e('ds_write_b32 v3, v27 offset:%d' % (19 * TROW + 128))
e('s_mov_b32 exec_lo, -1')
A.label(lab)
stamp('tab')
R_L64, R_L512, R_L1, R_L2, R_L3, R_CF = 16, 20, 21, 22, 23, 24

def stat_compute_ops():
    o = Ops()
    t = SR + 8
    o.f(lambda: A.wait_vm('srow'))
    o.v('v_dot2_f32_bf16 v%d, v%d, v%d, 0' % (t, SR, ONE), 2)
    o.v('v_dot2_f32_bf16 v%d, v%d, v%d, 0' % (t + 1, SR, SR), 2)
    for i in range(1, 8):
        o.v('v_dot2_f32_bf16 v%d, v%d, v%d, v%d' % (t, SR + i, ONE, t), 2)
        o.v('v_dot2_f32_bf16 v%d, v%d, v%d, v%d' % (t + 1, SR + i, SR + i, t + 1), 2)
    for sh in (1, 2, 4, 8):
        for r in (t, t + 1):
            o.v('v_add_f32_dpp v%d, v%d, v%d row_shr:%d row_mask:0xf bank_mask:0xf bound_ctrl:0' % (r, r, r, sh))
    for r in (t, t + 1):
        o.v('v_add_f32_dpp v%d, v%d, v%d row_bcast:15 row_mask:0xa bank_mask:0xf' % (r, r, r))
    mean, var, sb, rs, m2, v2_, mb = t, t + 1, t + 2, t + 3, t + 8, t + 9, t + 10
    g0 = t + 4
    def rnd(d, s):
        o.v('v_cvt_pk_bf16_f32 v%d, v%d, v%d' % (d, s, s))
        o.v('v_lshlrev_b32 v%d, 16, v%d' % (d, d))
    o.v('v_mul_f32 v%d, %s, v%d' % (mean, f2u(1.0 / 512), mean))
    o.v('v_mul_f32 v%d, %s, v%d' % (var, f2u(1.0 / 512), var))
    o.v('v_fma_f32 v%d, -v%d, v%d, v%d' % (var, mean, mean, var))
    o.v('v_max_f32 v%d, 0, v%d' % (var, var))
    rnd(mb, mean)
    rnd(sb, var)
    o.v('v_add_f32 v%d, %s, v%d' % (sb, f2u(1e-5), sb))
    rnd(sb, sb)
    o.v('v_sqrt_f32 v%d, v%d' % (sb, sb), 2)
    o.v('v_sub_f32 v%d, v%d, v%d' % (m2, mean, mb))
    rnd(sb, sb)
    o.v('v_rcp_f32 v%d, v%d' % (rs, sb), 2)
    o.v('v_cvt_pk_bf16_f32 v%d, v%d, v%d' % (g0 + 2, mb, sb))
    o.v('v_mul_f32 v%d, v%d, v%d' % (m2, m2, rs))
    o.v('v_mul_f32 v%d, v%d, v%d' % (v2_, var, rs))
    rnd(m2, m2)
    o.v('v_mul_f32 v%d, v%d, v%d' % (v2_, v2_, rs))
    o.v('v_fma_f32 v%d, v%d, v%d, v%d' % (g0, m2, sb, mb))
    rnd(v2_, v2_)
    o.v('v_add_f32 v%d, %s, v%d' % (v2_, f2u(1e-5), v2_))
    rnd(v2_, v2_)
    o.v('v_sqrt_f32 v%d, v%d' % (v2_, v2_), 2)
    o.v('v_mov_b32 v%d, %s' % (g0 + 3, sr(sTAG)))
    rnd(v2_, v2_)
    o.v('v_mul_f32 v%d, v%d, v%d' % (g0 + 1, v2_, sb))
    o.s('s_lshl_b32 %s, %s, 5', sT0, sW)
    o.s('s_add_u32 %s, %s, %s', sT0, sT0, str(CSX))
    o.v('v_lshl_add_u32 v%d, %s, 4, %s' % (t, vr(vHI5), sr(sT0)))
    o.v('v_add_u32 v%d, %d, %s' % (SR, CSX, vr(vL16)))
    o.v('s_mov_b32 exec_lo, 0x80000000')
    o.v('s_mov_b32 exec_hi, 0x80000000')
    o.f(lambda: A.ds('ds_write_b128 v%d, %s offset:%d' % (t, vr(g0, 4), 0), 'gw'))
    o.v('s_mov_b64 exec, -1')
    o.f(lambda: stamp('gs'))
    o.s('s_lshl1_add_u32 %s, %s, %s', sD0, sRB, sTH)
    o.s('s_lshl_b32 %s, %s, 10', sD0, sD0)
    o.s('s_add_u32 %s, %s, %s', sD0, sD0, hex(WS_G))
    o.v('v_lshlrev_b32 %s, 4, %s' % (vr(vSA), vr(vLO4)))
    return o
if OPT['WPF'] == -1:
    w_prefetch()[0][1]()
DQ.add(stage_dma(1))
DQ.popD(OPT['D1A'])
for (c, f) in stat_compute_ops():
    f()
touch_pages(2)
if OPT['WPF'] == -3:
    w_prefetch()[0][1]()
DQ.popD(OPT['D1B'] - OPT['D1A'])
A.wait_lg0()
stamp('d1')
def b1_ops():
    o = Ops()
    o.f(lambda: A.wait_vm('b1'), 0)
    for v in range(3):
        for hh in range(2):
            o.v('v_lshlrev_b32 %s, 16, %s' % (vr(BU + 4 * v + 2 * hh), vr(B1 + 2 * v + hh)))
            o.v('v_and_b32 %s, 0xffff0000, %s' % (vr(BU + 4 * v + 2 * hh + 1), vr(B1 + 2 * v + hh)))
    return o
def stat_loads():
    return [('D' if OPT['STD'] else 2, lambda T=T: A.vmem('buffer_load_dwordx4 %s, %s, %s, %s offen offset:%d sc1' % (vr(ST + 4 * T, 4), vr(vSA), sr(dWS, 4), sr(sD0), 256 * T), 'stat')) for T in range(4)]
def stat_issue():
    for (c, f) in stat_loads():
        f()
def stat_check(e=e):
    t = TMP
    for T in range(4):
        e('v_xor_b32 v%d, %s, %s' % (t + T, sr(sTAG), vr(ST + 4 * T + 3)))
    e('v_or3_b32 v%d, v%d, v%d, v%d' % (t, t, t + 1, t + 2))
    e('v_or_b32 v%d, v%d, v%d' % (t, t, t + 3))
    e('v_cmp_ne_u32 vcc, 0, v%d' % t)
C0 = -2.0 * math.sqrt(2.0 / math.pi) * math.log2(math.e)
def stat_derive_ops():
    o = Ops()
    o.f(lambda: A.wait_vm('stat'))
    stat_check(o.v)
    o.f(lambda: retry_loop('st', stat_issue, stat_check, 58, False), 2)
    for T in range(4):
        b = ST + 4 * T
        o.v('v_rcp_f32 v%d, v%d' % (TMP + T, b + 1), 2)
        o.v('v_lshlrev_b32 v%d, 16, v%d' % (SS + 2 * T, b + 2))
        o.v('v_and_b32 v%d, 0xffff0000, v%d' % (SS + 2 * T + 1, b + 2))
    for T in range(4):
        b = ST + 4 * T
        o.v('v_rcp_f32 v%d, v%d' % (SS + 2 * T + 1, SS + 2 * T + 1), 2)
        o.v('v_mul_f32 v%d, %s, v%d' % (b + 2, f2u(C0), TMP + T))
        o.v('v_mul_f32 v%d, v%d, v%d' % (b + 3, TMP + T, TMP + T))
    for T in range(4):
        b = ST + 4 * T
        o.v('v_mul_f32 v%d, v%d, v%d' % (b + 3, b + 3, b + 2))
        o.v('v_mul_f32 v%d, %s, v%d' % (b + 3, f2u(0.044715), b + 3))
    return o

TOFF = [6 * (st & 3) + 2 * (st >> 2) for st in range(11)]
KS = [0]
def w_prefetch_cls(k):
    def f():
        lab = newlab('pf')
        if OPT['WCL'] == 4:
            S('s_cmp_lg_u32 %s, %s', sRBL, str(k))
        else:
            S('s_bitcmp%d_b32 %%s, 0' % (1 - k), sRBL)
        e('s_cbranch_scc1 %s' % lab)
        e('s_mov_b64 exec, 0x7ff')
        A.vmem('buffer_load_dword %s, %s, %s, %s offen' % (vr(vSCR), vr(vPW), sr(dW2, 4), sr(sWS)), 'touch', opt=True)
        e('s_mov_b64 exec, %s' % sr(sPM, 2))
        for p in (pCRE, pCIM):
            S('s_mov_b64 %s, %s', sr(dO, 2), sr(p, 2))
            A.vmem('buffer_load_dword %s, %s, %s, %s offen' % (vr(vSCR), vr(vCT), sr(dO, 4), sr(sCO)), 'touch', opt=True)
        e('s_mov_b64 exec, -1')
        A.label(lab)
    return [(4, f)]
def w2_step(st):
    o = Ops()
    odd = 0
    if st == 0:
        o.s('s_lshl_b32 %s, %s, 11', sSX, sW)
        o.s('s_add_u32 m0, %s, %s', sSX, str(PE))
    elif st <= 8:
        odd = (st - 1) & 1
        if not odd:
            o.s('s_add_u32 m0, %s, %s', sM8, str(((st - 1) // 4) * SLOT + ((st - 1) % 4) * 2048))
    else:
        o.s('s_add_u32 m0, %s, %s', sME, str((st - 9) * 2 * SLOT))
    o.s('s_add_u32 %s, %s, %s', sSW, sWS, str(TOFF[st] * 16384 - odd * 2048))
    for i in range(2):
        o.f(lambda i=i: A.vmem('buffer_load_dwordx4 %s, %s, %s offen offset:%d lds' % (vr(vW2 + i), sr(dW2, 4), sr(sSW), odd * 2048 + i * 1024), ('Wa' if st < 10 else 'Wb') if OPT['XG'] else 'W'), 'D')
    return o
def c_job(part):
    o = Ops()
    o.s('s_mov_b64 %s, %s', sr(dB, 2), sr(pCIM if part else pCRE, 2))
    if part == 0:
        o.v('v_subrev_u32 %s, %s, %s' % (vr(vB), sr(sCG), vr(vB)))
        o.v('v_subrev_u32 %s, %s, %s' % (vr(vB + 1), sr(sCG), vr(vB + 1)))
    for k in range(4):
        odd = k & 1
        if not odd:
            o.s('s_add_u32 m0, %s, %s', sM8, str((2 + part) * SLOT + k * 2048))
        o.s('s_add_u32 %s, %s, %s', sSX, sCO, str(k * 16384 - odd * 2048))
        for i in range(2):
            o.f(lambda i=i, odd=odd: A.vmem('buffer_load_dwordx4 %s, %s, %s offen offset:%d lds' % (vr(vB + i), sr(dB, 4), sr(sSX), odd * 2048 + i * 1024), 'Wc%d' % part if OPT['XG'] else 'Wd' if part + OPT['DEF'] >= 2 else 'W'), 'D')
    return o
QR = [0, 2, 8, 10]
def resx_loads():
    o = Ops()
    for q in range(4):
        o.f(lambda q=q: A.vmem('buffer_load_dwordx2 %s, %s, %s, 0 offen offset:%d' % (ar(240 + 2 * q, 2), vr(vXO), sr(dX, 4), q * 1024), 'res'), 'D' if q & 1 else 2)
    return o
def resg_loads():
    return [(2, lambda q=q: A.vmem('buffer_load_dword %s, %s, %s, %s offen offset:%d sc1' % (ar(252 + q), vr(vGO), sr(dWS, 4), sr(sGR), q * 256), 'res')) for q in range(4)]

for v in range(1, 8):
    if v > 1:
        sd = stage_dma(v)
        if v == OPT['WPF'] and OPT['WPK']:
            sd, rest = sd[:-5], sd[-5:]
        DQ.add(sd, None if v < 4 else 'mid%d' % (v - 4))
    if OPT['WCL'] == 4 and OPT['WPF'] > 0 and 0 <= v - OPT['WPF'] < 4:
        DQ.add(w_prefetch_cls(v - OPT['WPF']))
    if OPT['WCL'] in (2, 3) and v - OPT['WPF'] in (0, OPT['WCL']):
        DQ.add(w_prefetch_cls(int(v > OPT['WPF'])))
    if v == OPT['WPF'] and not OPT['WCL']:
        DQ.add([(0, lambda: print('prefetch at step', KS[0]))])
        DQ.add(w_prefetch())
        if OPT['WPK']:
            DQ.add(rest)
    if v == OPT['STL']:
        DQ.add(stat_loads())
        DQ.add([(0, lambda: FQ.open.add('stl'))])
o = Ops()
o.s('s_mov_b64 %s, %s', sr(dO, 2), sr(pOUT, 2))
o.s('s_mov_b32 %s, 0x400000', dO + 2)
DQ.add(o)
DQ.add([(0, lambda: (print('st7 issued at step', KS[0]), OPT.update(DINT=OPT['WINT'])))])
DQ.add(w2_step(0), 'k%d' % OPT['WG0'])
for st in range(1, 10):
    DQ.add(w2_step(st), 'mid4' if st < 5 else 'mid5')
D2 = Q()
if OPT['DEF'] < 2:
    DQ.add(c_job(0), 'mid%d' % OPT['CJ0'])
else:
    D2.add(c_job(0))
if not OPT['DEFR'] & 1:
    DQ.add(resx_loads())
DQ.add(w2_step(10), 'mid7')
if OPT['DEF'] < 1:
    DQ.add(c_job(1), 'mid7')
else:
    D2.add(c_job(1))
if OPT['DEFR'] & 1:
    D2.add(resx_loads())
FQ.add([(0, lambda: None)], 'b1')
FQ.add(b1_ops(), 'mid%d' % OPT['B1G'])
FQ.add([(0, lambda: None)], 'stl')
FQ.add(stat_derive_ops(), 'mid%d' % OPT['SDG'])

AD, vCA = (156, 164) if OPT['XG'] else (32, 40)
def xw_addr():
    o = Ops()
    o.s('s_lshl_b32 %s, %s, 11', sT0, sW)
    o.s('s_add_u32 %s, %s, %s', sT0, sT0, str(PE))
    o.s('s_add_u32 %s, %s, %s', sT1, sME, str(2 * SLOT))
    for i, sb in enumerate((sT0, sM8, sME, sT1)):
        o.v('v_add_u32 %s, %s, %s' % (vr(AD + 2 * i), sr(sb), vr(vTRL)))
        o.v('v_xor_b32 %s, 64, %s' % (vr(AD + 2 * i + 1), vr(AD + 2 * i)))
    o.v('v_bfe_u32 %s, %s, 1, 3' % (vr(vCA), vr(vLANE)))
    o.v('v_xor_b32 %s, %s, %s' % (vr(vCA), vr(vCA), vr(vHI5)))
    o.v('v_lshlrev_b32 %s, 4, %s' % (vr(vCA), vr(vCA)))
    o.v('v_lshl_add_u32 %s, %s, 7, %s' % (vr(vCA), vr(vLO5), vr(vCA)))
    o.s('s_add_u32 %s, %s, %s', sT0, sM8, str(2 * SLOT))
    o.v('v_add_u32 %s, %s, %s' % (vr(vCA), sr(sT0), vr(vCA)))
    for sub in range(1, 4):
        o.v('v_xor_b32 %s, %d, %s' % (vr(vCA + sub), 32 * sub, vr(vCA)))
    return o
def xw_w(st, dh, half):
    if st == 0:
        ad, off = AD, 0
    elif st <= 8:
        ad, off = AD + 2, ((st - 1) // 4) * SLOT + ((st - 1) % 4) * 2048
    else:
        ad, off = AD + 4 + 2 * (st - 9), 0
    A.wait_vm('Wa' if st < 10 else 'Wb')
    A.ds('ds_read_b64_tr_b16 %s, %s offset:%d' % (ar(8 * st + 4 * dh + 2 * half, 2), vr(ad + dh), off + half * 512), 'xw')
def xw_1(part, sub, dh):
    A.wait_vm('Wc%d' % part)
    A.ds('ds_read_b128 %s, %s offset:%d' % (ar(8 * (11 + 2 * sub + part) + 4 * dh, 4), vr(vCA + sub), part * SLOT + dh * 4096), 'xw')
if OPT['XG']:
    if OPT['XAD']:
        FQ.add(xw_addr(), 'mid7')
    XQ.add([(1, lambda st=st, dh=dh, half=half: xw_w(st, dh, half)) for st in range(10) for dh in range(2) for half in range(2)], 'x0')
    XQ.add([(2, lambda sub=sub, dh=dh: xw_1(0, sub, dh)) for sub in range(4) for dh in range(2)], 'x1')
    XQ.add([(1, lambda dh=dh, half=half: xw_w(10, dh, half)) for dh in range(2) for half in range(2)], 'x1')
    XQ.add([(2, lambda sub=sub, dh=dh: xw_1(1, sub, dh)) for sub in range(4) for dh in range(2)], 'x2')

RQ = Q()
def rd_x(step, T):
    v, ks = step // 2, step % 2
    slot = v & 3
    return [(1, lambda: A.ds('ds_read_b128 %s, %s offset:%d' % (vr(XF + 16 * ks + 4 * T, 4), vr(XA + 2 * ks + (slot >> 1)), (slot & 1) * SLOT + (T & 1) * PIECE + (T >> 1) * 2048), 'x%d' % step))]
def rd_a(step, a):
    v, ks = step // 2, step % 2
    slot = v & 3
    if a < 2:
        return [(1, lambda: A.ds('ds_read_b128 %s, %s offset:%d' % (vr(AF + 4 * a, 4), vr(BA + 2 * ks + (slot >> 1)), (slot & 1) * SLOT + a * PIECE), 'a%d_%d' % (step, a)))]
    return [(1, lambda half=half: A.ds('ds_read_b64_tr_b16 %s, %s offset:%d' % (vr(AF + 4 * a + 2 * half, 2), vr(WA + 2 * ks + (slot >> 1)), (slot & 1) * SLOT + half * 768 + 64 * (a - 2)), 'a%d_%d' % (step, a))) for half in range(2)]

touch_pages(0)
stamp('tch')
page('st0')
A.wait_vm('st0')
stamp('st0')
e('s_barrier')
RQ.add(rd_a(0, 0))
for T in range(4):
    RQ.add(rd_x(0, T))
for a in range(1, 5):
    RQ.add(rd_a(0, a))
RQ.flush()
A.ds('ds_read_b128 %s, %s' % (vr(SR + 4, 4), vr(SR)), 'gr')
def g_store():
    A.wait_lg('gr')
    lab = newlab('gs')
    S('s_cmp_lg_u32 %s, 0', sW)
    e('s_cbranch_scc1 %s' % lab)
    e('s_mov_b64 exec, 0xff')
    A.vmem('buffer_store_dwordx4 %s, %s, %s, %s offen sc1' % (vr(SR + 4, 4), vr(vL16), sr(dWS, 4), sr(sF0)), 'gs', opt=True)
    e('s_mov_b64 exec, -1')
    A.label(lab)
clk = [0, 0]
def gap(budget, base):
    used = 0
    while used < budget:
        if RQ.ready():
            used += RQ.cost()
            RQ.pop1()
        elif DQ.ready() and (DQ.cost() != 'D' or (clk[0] >= clk[1] and used + OPT['DCOST'] <= max(budget, OPT['DCOST']))):
            if DQ.cost() == 'D':
                used += OPT['DCOST']
                clk[1] = max(clk[1], clk[0] - 2 * OPT['DINT']) + OPT['DINT']
            elif used + DQ.cost() > max(budget, DQ.cost()):
                break
            else:
                used += DQ.cost()
                if DQ.cost() >= 2:
                    clk[1] += OPT['SMP']
            DQ.pop1()
        elif FQ.ready() and used + FQ.cost() <= max(budget, FQ.cost()):
            used += FQ.cost()
            FQ.pop1()
        else:
            break
    clk[0] += max(base, 8 + 4 * used)

K0, K1, SA, SE = 116, 124, 136, 144
def tab_rd(dst, row, tag, addr=None):
    for part in range(2):
        A.ds('ds_read_b128 %s, %s offset:%d' % (vr(dst + 4 * part, 4), vr(vTB if addr is None else addr), row * TROW + part * 128), tag)
for step in range(16):
    v, ks = step // 2, step % 2
    gate = 'mid%d' % v if ks == 1 else None
    for a in range(5):
        KS[0] = step + a / 5
        DQ.open.add('k%d' % (5 * step + a))
        if ks == 1 and a == 2:
            for u in range(5):
                assert DSN.get('a%d_%d' % (step, u), 0) == (1 if u < 2 else 2), (step, u)
            if v == 7:
                assert DSN.get('csw', 0) == 1 and DSN.get('cso', 0) == 5
            page('aA' if v == OPT['PGA'] else 'a%d' % v)
            A.wait_lg0()
            stamp('a%d' % v)
            if v < 7:
                A.wait_vm('st%d' % (v + 1))
                if v in (1, 3, 6):
                    stamp('b%d' % v)
            if not OPT['X'] & 2:
                e('s_barrier')
            clk[0] += 40
            for q in (DQ, FQ, RQ):
                q.open.add('mid%d' % v)
            if v == 7:
                for q in range(5):
                    RQ.add([(1, lambda q=q: A.ds('ds_read_b128 %s, %s offset:%d' % (vr((XF + 4 * q) if q < 4 else AF, 4), vr(vCR), 64 * q), 'csr'))])
        if a in (0, 2, 4):
            assert DSN.get('x%d' % step, 0) == 4, (step, a)
            for u in (a, a + 1):
                assert u > 4 or DSN.get('a%d_%d' % (step, u), 0) == (1 if u < 2 else 2), (step, a, u)
            A.wait_lg(['x%d' % step] + ['a%d_%d' % (step, u) for u in (a, a + 1)])
        if OPT['XS'] and step in (14, 15) and a == 0:
            stamp('s%d' % step)
        if step == 0 and a == 4:
            g_store()
        ms = []
        if ks == 0 and not (OPT['X'] & 1024 and step):
            ms.append((ONE, CS + 4 * a))
        for T in range(4):
            if a < 2 and step >= 16 - OPT['DS'] and T < 3 + (ks == 0) - (a == 0 and ks == 0):
                continue
            ms.append((ACC + 16 * a + 4 * T, XF + 16 * ks + 4 * T))
        for i, (acc, b) in enumerate(ms):
            e('v_mfma_f32_16x16x32_bf16 %s, %s, %s, %s' % (vr(acc, 4), vr(AF + 4 * a, 4), vr(b, 4), '0' if step == 0 and (acc != ONE or a == 0) else vr(acc, 4)))
            last = i == len(ms) - 1
            if step < 15:
                if last:
                    RQ.add(rd_a(step + 1, a), gate)
                if (a == 0 and last) if ks == 1 else (a == 0 and i == 1):
                    for T in range(4):
                        RQ.add(rd_x(step + 1, T), gate)
            if step == 15 and a == 0 and i == 0:
                def csw():
                    e('s_mov_b32 exec_lo, 0x1f001f')
                    e('s_mov_b32 exec_hi, 0x1f001f')
                    A.ds('ds_write_b128 %s, %s' % (vr(vCW), vr(ONE, 4)), 'csw')
                    e('s_mov_b64 exec, -1')
                RQ.add([(2, csw)])
                for q in range(5):
                    RQ.add([(1, lambda q=q: A.ds('ds_read_b128 %s, %s offset:%d' % (vr(CS + 4 * q, 4), vr(vCO), 64 * q), 'cso'))])
            bud = OPT['BUD0'] if step < OPT['NB0'] else 2
            if last and a in (1, 3, 4) and not (ks == 1 and a == 3):
                bud = 0 if (ks == 1 and a == 1) else 1
            if bud == 0:
                while RQ.ready():
                    RQ.pop1()
            gap(bud, 16)
print('K loop estimate', clk[0], 'left DQ', len(DQ.q), 'FQ', len(FQ.q))
FQ.flush()
RQ.flush()
stamp('kloop')

if OPT['DEFR'] & 2:
    D2.add([('D', f) for (c, f) in resg_loads()])
else:
    DQ.add(resg_loads(), 'sx')
tab_rd(K0, R_CF, 'k0')
tab_rd(K1, R_L1, 'k1')
A.wait_lg('csr')
AUTO['nxt'] = AUTO['t'] + max(0, clk[1] - clk[0])
auto(True)
for q in range(5):
    src = (XF + 4 * q) if q < 4 else AF
    for h in (0, 2):
        e('v_pk_add_f32 %s, %s, %s' % (vr(CS + 4 * q + h, 2), vr(CS + 4 * q + h, 2), vr(src + h, 2)))
LOB = 'op_sel:[0,0,0] op_sel_hi:[1,0,1]'
HIB = 'op_sel:[0,1,0] op_sel_hi:[1,1,1]'
RR, II = ACC, ACC + 16
tq = XF
tZ, tO = tq, B1
def gelu_tile(v, tag, mid=None):
    for hh in range(2):
        prs = [(2 * hh + a, h) for a in range(2) for h in range(2)]
        accp = lambda T, h: ACC + 32 + 16 * v + 4 * T + 2 * h
        for (T, h) in prs:
            e('v_pk_fma_f32 %s, %s, %s, %s %s' % (vr(accp(T, h), 2), vr(BU + 4 * v + 2 * h, 2), vr(ST + 4 * T, 2), vr(accp(T, h), 2), HIB))
        for (T, h) in prs:
            e('v_pk_fma_f32 %s, %s, %s, %s %s %s' % (vr(accp(T, h), 2), vr(CS + 8 + 4 * v + 2 * h, 2), vr(ST + 4 * T, 2), vr(accp(T, h), 2), LOB, NEG1))
        for i, (T, h) in enumerate(prs):
            e('v_pk_mul_f32 %s, %s, %s' % (vr(tZ + 2 * i, 2), vr(accp(T, h), 2), vr(accp(T, h), 2)))
        for i, (T, h) in enumerate(prs):
            e('v_pk_fma_f32 %s, %s, %s, %s op_sel:[0,1,0] op_sel_hi:[1,1,0]' % (vr(tZ + 2 * i, 2), vr(tZ + 2 * i, 2), vr(ST + 4 * T + 2, 2), vr(ST + 4 * T + 2, 2)))
        for i, (T, h) in enumerate(prs):
            e('v_pk_mul_f32 %s, %s, %s' % (vr(tZ + 2 * i, 2), vr(tZ + 2 * i, 2), vr(accp(T, h), 2)))
        for i in range(8):
            e('v_exp_f32 %s, %s' % (vr(tZ + i), vr(tZ + i)))
        for i, (T, h) in enumerate(prs):
            e('v_pk_fma_f32 %s, %s, %s, %s op_sel:[0,1,1] op_sel_hi:[1,1,1]' % (vr(tZ + 2 * i, 2), vr(tZ + 2 * i, 2), vr(ST + 4 * T, 2), vr(ST + 4 * T, 2)))
        for i in range(8):
            e('v_rcp_f32 %s, %s' % (vr(tZ + i), vr(tZ + i)))
        for i, (T, h) in enumerate(prs):
            e('v_pk_mul_f32 %s, %s, %s' % (vr(tZ + 2 * i, 2), vr(tZ + 2 * i, 2), vr(accp(T, h), 2)))
        o = tO + 4 * hh
        for i in (0, 2, 1, 3):
            e('v_cvt_pk_bf16_f32 %s, %s, %s' % (vr(o + i), vr(tZ + 2 * i), vr(tZ + 2 * i + 1)))
        if mid:
            mid(hh)
        auto(False)
        e('v_permlane16_swap_b32 %s, %s' % (vr(o), vr(o + 2)))
        so = sHM
        if v:
            so = sU0
            if hh == 0:
                S('s_add_u32 %s, %s, %s', sU0, sHM, str(4096 * v))
        if v == 2:
            S('s_cmp_eq_u32 %s, 0', sF1)
        e('v_permlane16_swap_b32 %s, %s' % (vr(o + 1), vr(o + 3)))
        if v == 2:
            lab = newlab('skip')
            e('s_cbranch_scc1 %s' % lab)
        A.vmem('buffer_store_dwordx4 %s, %s, %s, %s offen offset:%d sc1' % (vr(o, 4), vr(vL16), sr(dWS, 4), sr(so), 1024 * hh), tag, opt=(v == 2))
        if v == 2:
            A.label(lab)
        auto(True)
def fep(k):
    if OPT['F3'] and OPT['FEP'] == k:
        on = AUTO['on']
        auto(False)
        A.wait_vm('HE')
        stamp('HEdone')
        flag(WS_FA, 'fa')
        auto(on)
for i, v in enumerate((2, 0, 1)[:OPT['GF']]):
    gelu_tile(v, 'HE' if i < OPT['F3'] else 'HM')
if OPT['GF']:
    print('DQ left after the first GELU tiles', len(DQ.q))
    stamp('ge')
for T in range(4):
    for part in range(2):
        for h in (0, 2):
            r = ACC + 16 * part + 4 * T + h
            e('v_pk_fma_f32 %s, %s, %s, %s %s %s' % (vr(r, 2), vr(CS + 4 * part + h, 2), vr(SS + 2 * T, 2), vr(r, 2), LOB, NEG1))
    if T == 0:
        A.wait_lg('k0')
    for q in (0, 2, 4, 6):
        e('v_pk_mul_f32 %s, %s, %s op_sel:[0,1] op_sel_hi:[1,1]' % (vr(tq + q, 2), vr(K0 + q, 2), vr(SS + 2 * T, 2)))
    if T == 3:
        tab_rd(K0, 1, 'k0')
    for h in (0, 2):
        e('v_pk_mul_f32 %s, %s, %s' % (vr(tq + 8 + h, 2), vr(RR + 4 * T + h, 2), vr(tq + 4 + h, 2)))
    for h in (0, 2):
        e('v_pk_mul_f32 %s, %s, %s' % (vr(RR + 4 * T + h, 2), vr(RR + 4 * T + h, 2), vr(tq + h, 2)))
    for h in (0, 2):
        e('v_pk_fma_f32 %s, %s, %s, %s %s' % (vr(RR + 4 * T + h, 2), vr(II + 4 * T + h, 2), vr(tq + 4 + h, 2), vr(RR + 4 * T + h, 2), NEG1))
    for h in (0, 2):
        e('v_pk_fma_f32 %s, %s, %s, %s' % (vr(II + 4 * T + h, 2), vr(II + 4 * T + h, 2), vr(tq + h, 2), vr(tq + 8 + h, 2)))
tab_rd(tq, 2, 'k2')
tab_rd(tq + 8, 4, 'k3')
A.wait_lg('k1')
for T in range(1, 4):
    pk_cfma4(RR + 4 * T, II + 4 * T, RR + 4 * T - 4, II + 4 * T - 4, K1, RR + 4 * T, II + 4 * T)
tab_rd(K1, 8, 'k1')
cur = (RR + 12, II + 12)
L64, L512, P128, S0 = K0, K0 + 2, K0 + 4, K0 + 6
for lv in range(4):
    fep(-20 + lv)
    k = [K0, tq, tq + 8, K1][lv]
    for part in range(2):
        for i in range(4):
            e('v_mov_b32_dpp %s, %s row_shr:%d row_mask:0xf bank_mask:0xf bound_ctrl:0' % (vr(SE + 4 * part + i), vr(cur[part] + i), 1 << lv))
    if lv in (0, 3):
        A.wait_lg(['k3', 'k3', 'k3', 'k1'][lv])
    pk_cfma4(SA, SA + 4, SE, SE + 4, k, cur[0], cur[1])
    cur = (SA, SA + 4)
    if lv == 0:
        for (dst, row, ad) in ((L64, R_L64, vTC), (L512, R_L512, vTC), (P128, 0, vTG)):
            for part in range(2):
                A.ds('ds_read_b32 %s, %s offset:%d' % (vr(dst + part), vr(ad), row * TROW + part * 128), 'kc')
auto(False)
e('s_mov_b32 exec_lo, 0x80008000')
e('s_mov_b32 exec_hi, 0x80008000')
A.ds('ds_write_b128 %s, %s' % (vr(vCR), vr(SA, 4)), 'sx')
A.ds('ds_write_b128 %s, %s offset:64' % (vr(vCR), vr(SA + 4, 4)), 'sx')
e('s_mov_b64 exec, -1')
GR = tq + 12
for part in range(2):
    for i in range(4):
        e('v_mov_b32_dpp %s, %s row_shr:1 row_mask:0xf bank_mask:0xf bound_ctrl:0' % (vr(SE + 4 * part + i), vr(SA + 4 * part + i)))
e('v_mov_b32 %s, %s' % (vr(GR + 2), sr(sTAG)))
e('v_mov_b32 %s, %s' % (vr(GR + 3), sr(sTAG)))
fep(-11)
page('sx')
A.wait_lg0()
e('s_barrier')
A.ds('ds_read2_b32 %s, %s offset0:160 offset1:176' % (vr(S0, 2), vr(vSXR)), 's0')
A.ds('ds_read2_b32 %s, %s offset0:0 offset1:16' % (vr(GR, 2), vr(vSXR)), 's0')
DQ.open.add('sx')
print('DQ left at Spub', len(DQ.q))
lab = newlab('np')
S('s_cmp_eq_u32 %s, 0', sTH)
e('s_cbranch_scc1 %s' % lab)
e('s_waitcnt lgkmcnt(0)')
cfma(GR, GR + 1, S0, S0 + 1, L64, L64 + 1, GR, GR + 1)
e('s_mov_b64 exec, 0xffff')
A.vmem('buffer_store_dwordx4 %s, %s, %s, %s offen sc1' % (vr(GR, 4), vr(vL16), sr(dWS, 4), sr(sSGO)), 'S', opt=True)
e('s_mov_b64 exec, -1')
A.label(lab)
stamp('Spub')
fep(-10)
auto(True)

vQ = 64 if OPT['XG'] else 152
if OPT['XG']:
    assert OPT['LBPOS'] >= 2
    if not OPT['XAD']:
        for (c, f) in xw_addr():
            f()
    XQ.open.add('x0')
    AUTO['xn'] = AUTO['t']
vPD = vWT
def lb_issue():
    for i in range(4):
        A.vmem('buffer_load_dwordx4 %s, %s, %s, %s offen sc1' % (vr(vQ + 4 * i, 4), vr(vPA + i), sr(dWS, 4), sr(sSG)), 'lb')
def lb_check():
    for i in range(4):
        e('v_xor_b32 %s, %s, %s' % (vr(vQ + 4 * i + 3), sr(sTAG), vr(vQ + 4 * i + 2)))
    for i in range(4):
        e('v_cndmask_b32 %s, 0, %s, %s' % (vr(vQ + 4 * i + 3), vr(vQ + 4 * i + 3), sr(sMSK[i], 2)))
    e('v_or3_b32 %s, %s, %s, %s' % (vr(vQ + 3), vr(vQ + 3), vr(vQ + 7), vr(vQ + 11)))
    e('v_or_b32 %s, %s, %s' % (vr(vQ + 3), vr(vQ + 3), vr(vQ + 15)))
    e('v_cmp_ne_u32 vcc, 0, %s' % vr(vQ + 3))
def poll(tag, so):
    return lambda: A.vmem('buffer_load_dword %s, %s, %s, %s offen sc1' % (vr(vPD), vr(vPF), sr(dWS, 4), sr(so)), tag)
def p_check():
    e('v_cmp_ne_u32 vcc, %s, %s' % (sr(sTAG), vr(vPD)))
pa_issue, pb_issue = poll('pa', sPA), poll('pb', sPB)
def lbp(k):
    if k == 5:
        fep(-1)
    if k in (2, 3, 4):
        fep(-k - 1)
    if k == 0:
        print('DQ left at the first HM store', len(DQ.q))
        if OPT['FL0']:
            DQ.flush()
    if k == 6:
        DQ.flush()
    if k == OPT['XC0']:
        XQ.open.add('x1')
    if k == OPT['XC1']:
        DQ.flush()
        XQ.open.add('x2')
    if OPT['LBPOS'] == k and OPT['LBX'] < 0:
        lb_issue()
for i, v in enumerate((2, 0, 1)):
    if i < OPT['GF']:
        continue
    gelu_tile(v, 'HE' if i < OPT['F3'] else 'HM', lambda hh: lbp(2 * i + hh))
    if i < 2:
        stamp('g%d' % i)
stamp('gelu')
auto(False)
fep(-2)
lbp(6)
fep(0)
KP = [tq, tq + 8, CS, CS + 8]
tab_rd(K1, 0, 'kp', vTI)
for T, row in enumerate((R_L1, R_L2, R_L3, 1)):
    tab_rd(KP[T], row, 'kp')
fep(1)
NR, RING = 22, 152
LD, MF = [], []
SO = [list(range(11)), [8, 9, 10, 0, 1, 2, 3, 4, 5, 6, 7], [0, 1, 2, 3, 8, 9, 10, 4, 5, 6, 7]][OPT['F3']] + list(range(11, 19))
NA = [0, 3, 7][OPT['F3']]
SEG = ((0, 0, 11), (1, 0, OPT['NB1']), (0, 11, 19), (1, OPT['NB1'], 19))
if OPT['F3']:
    assert OPT['N1'] <= min(NA, OPT['NB1'])
    SEG = ((0, 0, NA), (1, 0, OPT['N1']), (0, NA, 11), (1, OPT['N1'], OPT['NB1']), (0, 11, 19), (1, OPT['NB1'], 19))
for (t, s0, s1) in SEG:
    tl = OPT['TL%d' % t] if s1 == 19 else 0
    for s in SO[s0:s1 - tl]:
        for hh in range(2):
            MF += [(len(LD), 0), (len(LD), 1)]
            LD.append((t, s, hh))
    for hh in range(2):
        for dh in range(2):
            MF += [(len(LD) + k, dh) for k in range(tl)]
        LD += [(t, s, hh) for s in range(s1 - tl, s1)]
FS = LD.index((0, 11, 0))
FC = LD.index((0, SO[NA], 0)) if OPT['F3'] else -99
EA = OPT['F3'] and not OPT['EP']
assert FC <= FS - OPT['PBD'] or OPT['LDB']
pc_issue = poll('pc', sPA)
hf = [0]
cur = [None, 0]
def hload():
    f = hf[0]
    t, s, hh = LD[f]
    n = 3
    if f == FC - OPT['PCD'] and not OPT['LDC']:
        S('s_add_u32 %s, %s, %s', sPA, sPA, hex(WS_FC - WS_FA))
        pc_issue()
        n += 3
    if f == FC:
        A.wait_vm('pc')
        retry_loop('pc', pc_issue, p_check, 57)
        stamp('pcok')
        e('v_lshrrev_b32 %s, 1, %s' % (vr(vPF), vr(vPF)))
        n += 4
    if f == FS - OPT['PBD'] and not OPT['LDB']:
        pb_issue()
        n += 2
    if f == FS:
        A.wait_vm('pb')
        retry_loop('pb', pb_issue, p_check, 61)
        stamp('pbok')
        n += 3
    base = (sH2 if t else sH1) if s < 11 else (sP2 if t else sP1)
    off = (TOFF[s] if s < 11 else s - 11) * 2048 + hh * 1024
    if off < 4096:
        so = base
    else:
        so = sHC
        if cur[0] != base or not 0 <= off - cur[1] < 4096:
            cur[0], cur[1] = base, off
            S('s_add_u32 %s, %s, %s', sHC, base, str(off))
            n += 1
        off -= cur[1]
    A.vmem('buffer_load_dwordx4 %s, %s, %s, %s offen offset:%d%s' % (ar(RING + 4 * (f % NR), 4), vr(vL16), sr(dWS, 4), sr(so), off, '' if OPT['X'] & 16 else ' sc1'), 'h%d' % f)
    hf[0] += 1
    return n

RD, RES, PXR, pT, TB = 128, 192, 208, 224, 240
vOO, vRW, vRR, vRR2 = vGO, vCW, vCR, vSXR
TILE = 64 * 272
def xw_block(k):
    if OPT['XWP'] != k:
        return
    if OPT['XG']:
        D2.popD(2)
        print('XQ left', len(XQ.q))
        XQ.open.update(['x0', 'x1', 'x2'])
        XQ.flush()
        return
    for (c, f) in xw_addr():
        f()
    D2.popD(2)
    fep(2)
    A.wait_vm('W')
    for st in range(11):
        for dh in range(2):
            for half in range(2):
                if (4 * st + 2 * dh + half) % OPT['DFI'] == OPT['DFI'] - 1:
                    D2.popD(1)
                if dh + half == 0:
                    fep(3 + st)
                    if EA and OPT['PAX'] == st:
                        pa_issue()
                    if OPT['LBX'] == st:
                        lb_issue()
                    fap(10 + st)
                if st == 0:
                    ad, off = AD, 0
                elif st <= 8:
                    ad, off = AD + 2, ((st - 1) // 4) * SLOT + ((st - 1) % 4) * 2048
                else:
                    ad, off = AD + 4 + 2 * (st - 9), 0
                A.ds('ds_read_b64_tr_b16 %s, %s offset:%d' % (ar(8 * st + 4 * dh + 2 * half, 2), vr(ad + dh), off + half * 512), 'xw')
    xw_c(range(2 - OPT['DEF']))
def xw_c(parts):
    for part in parts:
        for sub in range(4):
            D2.popD(1)
            for dh in range(2):
                A.ds('ds_read_b128 %s, %s offset:%d' % (ar(8 * (11 + 2 * sub + part) + 4 * dh, 4), vr(vCA + sub), part * SLOT + dh * 4096), 'xw')
def fap(k):
    if OPT['FAP'] == k:
        A.wait_vm('HM')
        stamp('HMdone')
        flag(WS_FC if OPT['F3'] else WS_FA, 'fa')
        if OPT['PTOUCH'] & 1:
            e('v_lshlrev_b32 %s, 7, %s' % (vr(vCT), vr(vLO4)))
            e('v_lshl_add_u32 %s, %s, 12, %s' % (vr(vCT), vr(vG), vr(vCT)))
            S('s_mov_b32 exec_hi, %s', sF1)
            A.vmem('buffer_load_dword %s, %s, %s, %s offen sc1' % (vr(vSCR), vr(vCT), sr(dWS, 4), sr(sHM)), 'touch')
            e('s_mov_b32 exec_hi, -1')
        stamp('fa')
if EA:
    late_scalars()
xw_block(0)
if not EA:
    late_scalars()
if EA and OPT['PAX'] == 11:
    pa_issue()
if OPT['LBX'] == 11:
    lb_issue()
print('deferred left', len(D2.q))
D2.flush()
def ea_start():
    A.wait_vm('pa')
    stamp('pa1')
    retry_loop('pa', pa_issue, p_check, 60)
    stamp('paok')
    S('s_add_u32 %s, %s, %s', sPA, sPA, hex(WS_FC - WS_FA))
    DQ.add([('D', hload)] * min(FC, OPT['NE']))
    DQ.popD(OPT['N0'])
    AUTO.update(on=True, int=OPT['AI'], nxt=AUTO['t'] + OPT['AI'])
if EA and OPT['PAP'] == -3:
    ea_start()
    auto(False)
page('lb')
A.wait_vm('lb')
stamp('lb1')
fap(0)
retry_loop('lb', lb_issue, lb_check, 59)
stamp('Sgot')
if EA and OPT['PAX'] == 12:
    pa_issue()
if EA and OPT['PAP'] == -1:
    ea_start()
if EA and OPT['PAP'] == -3:
    auto(True)
if OPT['EP'] and OPT['PAP'] == -1:
    pa_issue()
for i in range(4):
    e('v_cndmask_b32 %s, 0, %s, %s' % (vr(vQ + 4 * i), vr(vQ + 4 * i), sr(sMSK[i], 2)))
    e('v_cndmask_b32 %s, 0, %s, %s' % (vr(vQ + 4 * i + 1), vr(vQ + 4 * i + 1), sr(sMSK[i], 2)))
for i in (2, 1, 0):
    cfma(vQ + 4 * i, vQ + 4 * i + 1, vQ + 4 * i + 4, vQ + 4 * i + 5, L512, L512 + 1, vQ + 4 * i, vQ + 4 * i + 1)
hr, hi_, h2, h3 = vQ + 4, vQ + 5, vQ + 6, vQ + 7
cmul(hr, hi_, vQ, vQ + 1, P128, P128 + 1)
for sw in ('v_permlane16_swap_b32', 'v_permlane32_swap_b32'):
    e('v_mov_b32 %s, %s' % (vr(h2), vr(hr)))
    e('v_mov_b32 %s, %s' % (vr(h3), vr(hi_)))
    e('%s %s, %s' % (sw, vr(hr), vr(h2)))
    e('%s %s, %s' % (sw, vr(hi_), vr(h3)))
    e('v_add_f32 %s, %s, %s' % (vr(hr), vr(hr), vr(h2)))
    e('v_add_f32 %s, %s, %s' % (vr(hi_), vr(hi_), vr(h3)))
auto(False)
A.wait_lg('s0')
lab = newlab('t0')
S('s_cmp_eq_u32 %s, 0', sTH)
e('s_cbranch_scc1 %s' % lab)
cfma(S0, S0 + 1, hr, hi_, L64, L64 + 1, S0, S0 + 1)
e('v_mov_b32 %s, %s' % (vr(hr), vr(S0)))
e('v_mov_b32 %s, %s' % (vr(hi_), vr(S0 + 1)))
A.label(lab)
A.ds('ds_write2_b32 %s, %s, %s offset0:32 offset1:48' % (vr(vSXW), vr(hr), vr(hi_)), 'cy')
A.ds('ds_read_b128 %s, %s offset:128' % (vr(SA, 4), vr(vCR)), 'cy')
A.ds('ds_read_b128 %s, %s offset:192' % (vr(SA + 4, 4), vr(vCR)), 'cy')
fap(1)
if OPT['EP'] and OPT['PAP'] == -2:
    pa_issue()
if EA and OPT['PAP'] == -2:
    ea_start()
A.wait_lg0()
if EA and OPT['PAP'] < 0:
    auto(True)
pk_cfma4(SE, SE + 4, SA, SA + 4, K1, SE, SE + 4)
for hh in range(2):
    for T in (2 * hh, 2 * hh + 1):
        pk_cfma4(RR + 4 * T, II + 4 * T, SE, SE + 4, KP[T], RR + 4 * T, II + 4 * T)
    for part in range(2):
        o = vQ + 8 * hh + 4 * part
        b = ACC + 16 * part + 8 * hh
        ng = '-' if part else ''
        for i in range(4):
            e('v_cvt_pk_bf16_f32 %s, %s%s, %s%s' % (vr(o + i), ng, vr(b + 2 * i), ng, vr(b + 2 * i + 1)))
    if OPT['EP'] and OPT['PAP'] == hh:
        pa_issue()
    if EA and OPT['PAP'] < 0 and hh == 0:
        print('early loads left at the first HS store', len(DQ.q))
        DQ.flush()
    for part in range(2):
        o = vQ + 8 * hh + 4 * part
        e('v_permlane16_swap_b32 %s, %s' % (vr(o), vr(o + 2)))
        e('v_permlane16_swap_b32 %s, %s' % (vr(o + 1), vr(o + 3)))
        A.vmem('buffer_store_dwordx4 %s, %s, %s, %s offen offset:%d sc1' % (vr(o, 4), vr(vL16), sr(dWS, 4), sr(sHS), 2048 * part + 1024 * hh), 'HS')
if OPT['EP'] and OPT['PAP'] == 2:
    pa_issue()
stamp('epi')
if EA and OPT['PAP'] >= 0:
    ea_start()

xw_block(1)
eX, eS, eD = 128, 136, 140
fD, fB, fU, fM = 144, 148, 152, 156
def res_pre():
    A.wait_vm('res')
    for i in range(16):
        e('v_accvgpr_read_b32 %s, a%d' % (vr(eX + [0, 1, 2, 3, 4, 5, 6, 7, 12, 13, 14, 15, 8, 9, 10, 11][i]), 240 + i))
    for (dst, src) in ((fD, eD), (fB, eD + 2)):
        for hh in range(2):
            e('v_lshlrev_b32 %s, 16, %s' % (vr(dst + 2 * hh), vr(src + hh)))
            e('v_and_b32 %s, 0xffff0000, %s' % (vr(dst + 2 * hh + 1), vr(src + hh)))
def res_q(q):
    r = RES + 4 * q
    e('v_and_b32 %s, 0xffff0000, %s' % (vr(fM + 1), vr(eS + q)))
    e('v_lshlrev_b32 %s, 16, %s' % (vr(fM), vr(eS + q)))
    e('v_rcp_f32 %s, %s' % (vr(fM + 1), vr(fM + 1)))
    for hh in range(2):
        e('v_lshlrev_b32 %s, 16, %s' % (vr(r + 2 * hh), vr(eX + 2 * q + hh)))
        e('v_and_b32 %s, 0xffff0000, %s' % (vr(r + 2 * hh + 1), vr(eX + 2 * q + hh)))
    def rnd4():
        e('v_cvt_pk_bf16_f32 %s, %s, %s' % (vr(fU + 1), vr(fU), vr(fU + 1)))
        e('v_cvt_pk_bf16_f32 %s, %s, %s' % (vr(fU + 3), vr(fU + 2), vr(fU + 3)))
        e('v_lshlrev_b32 %s, 16, %s' % (vr(fU), vr(fU + 1)))
        e('v_lshlrev_b32 %s, 16, %s' % (vr(fU + 2), vr(fU + 3)))
        e('v_and_b32 %s, 0xffff0000, %s' % (vr(fU + 1), vr(fU + 1)))
        e('v_and_b32 %s, 0xffff0000, %s' % (vr(fU + 3), vr(fU + 3)))
    for hh in range(2):
        e('v_pk_add_f32 %s, %s, %s op_sel:[0,0] op_sel_hi:[1,0] neg_lo:[0,1] neg_hi:[0,1]' % (vr(fU + 2 * hh, 2), vr(r + 2 * hh, 2), vr(fM, 2)))
    rnd4()
    for hh in range(2):
        e('v_pk_mul_f32 %s, %s, %s op_sel:[0,1] op_sel_hi:[1,1]' % (vr(fU + 2 * hh, 2), vr(fU + 2 * hh, 2), vr(fM, 2)))
    rnd4()
    for hh in range(2):
        e('v_pk_mul_f32 %s, %s, %s' % (vr(fU + 2 * hh, 2), vr(fU + 2 * hh, 2), vr(fD + 2 * hh, 2)))
    rnd4()
    for hh in range(2):
        e('v_pk_add_f32 %s, %s, %s' % (vr(r + 2 * hh, 2), vr(r + 2 * hh, 2), vr(fU + 2 * hh, 2)))
    for hh in range(2):
        e('v_pk_add_f32 %s, %s, %s' % (vr(r + 2 * hh, 2), vr(r + 2 * hh, 2), vr(fB + 2 * hh, 2)))

F2 = Q()
e('v_lshrrev_b32 %s, 3, %s' % (vr(vRR), vr(vLO4)))
e('v_lshlrev_b32 %s, 12, %s' % (vr(vRR), vr(vRR)))
e('v_lshl_add_u32 %s, %s, 8, %s' % (vr(vRR), vr(vHI5), vr(vRR)))
e('v_and_b32 %s, 0x17, %s' % (vr(vRR2), vr(vLANE)))
e('v_and_b32 %s, 7, %s' % (vr(vRW), vr(vLANE)))
e('v_add_u32 %s, %s, %s' % (vr(vRR2), vr(vRR2), vr(vRW)))
e('v_lshl_add_u32 %s, %s, 3, %s' % (vr(vRR), vr(vRR2), vr(vRR)))
S('s_lshl_b32 %s, %s, 9', sT0, sW)
e('v_add_u32 %s, %s, %s' % (vr(vRR), sr(sT0), vr(vRR)))
e('v_add_u32 %s, 0x10000, %s' % (vr(vRR2), vr(vRR)))
S('s_lshl_b32 m0, %s, 14', sW)
if OPT['PH']:
    S('s_mov_b32 %s, 0x10001', sBM)
    S('s_mul_i32 %s, %s, 0x9e3779b1', sT0, sTAG)
    e('v_and_b32 %s, 3, %s' % (vr(TB), vr(vLANE)))
    e('v_lshlrev_b32 %s, 3, %s' % (vr(TB), vr(TB)))
    e('v_lshrrev_b32 %s, %s, %s' % (vr(TB), vr(TB), sr(sT0)))
    e('v_and_b32 %s, 0xff, %s' % (vr(TB), vr(TB)))
    e('v_lshl_or_b32 %s, %s, 12, %s' % (vr(TB), vr(TB), vr(TB)))
    for i in (3, 2, 1):
        e('v_lshrrev_b32 %s, %d, %s' % (vr(TB + i), i, vr(TB)))
    for i in range(4):
        e('v_and_b32 %s, %s, %s' % (vr(TB + i), sr(sBM), vr(TB + i)))
else:
    S('s_movk_i32 %s, 0xff', sBM)
    for i in range(4):
        e('v_bfe_u32 %s, %s, %d, 8' % (vr(TB + i), vr(vTAG), 8 * i))
if OPT['EP']:
    if OPT['PAP'] == 3:
        pa_issue()
    res_pre()
    if OPT['PAP'] == 4:
        pa_issue()
    for q in range(OPT['R0']):
        res_q(q)
    stamp('r0')
    A.wait_vm('pa')
    stamp('pa1')
    retry_loop('pa', pa_issue, p_check, 60, after=lambda: flag(WS_FB, 'fb'))
    stamp('paok')
    DQ.add([('D', hload)] * OPT['NPRE'])
    DQ.popD(OPT['N0'])
    AUTO.update(on=True, int=OPT['HI2'], nxt=AUTO['t'] + OPT['HI2'])
    for q in range(OPT['R0'], OPT['R1']):
        res_q(q)
    auto(False)
    stamp('r1')
    A.wait_vm('HS')
    stamp('HSdone')
    flag(WS_FB, 'fb')
    auto(True)
    for q in range(OPT['R1'], 4):
        res_q(q)
    e('v_lshlrev_b32 %s, 1, %s' % (vr(vOO), vr(vXO)))
    auto(False)
    print('H loads left after the residual', len(DQ.q))
    DQ.flush()
    stamp('res')
else:
    if OPT['RQ'] == -1:
        pa_issue()
    if OPT['DEF']:
        A.wait_vm('Wd')
        xw_c(range(2 - OPT['DEF'], 2))
    res_pre()
    A.wait_lg0()
    stamp('xw')
    e('s_barrier')
    stamp('bx')
    for q in range(5):
        if q == OPT['RQ']:
            if EA:
                print('early loads left', len(DQ.q))
                DQ.flush()
                auto(False)
            (pc_issue if EA else pa_issue)()
        if q < 4:
            res_q(q)
    e('v_lshlrev_b32 %s, 1, %s' % (vr(vOO), vr(vXO)))
    stamp('res')
    A.wait_vm('HS')
    stamp('HSdone')
    flag(WS_FB, 'fb')
    def hs_touch():
        e('v_lshlrev_b32 %s, 5, %s' % (vr(vCT), vr(vTM)))
        e('s_mov_b32 exec_hi, 0')
        A.vmem('buffer_load_dword %s, %s, %s, %s offen sc1' % (vr(vSCR), vr(vCT), sr(dWS, 4), sr(sHS)), 'touch')
        e('s_mov_b32 exec_hi, -1')
    if OPT['PTOUCH'] & 2:
        hs_touch()
    stamp('fb')
    page('pa')
    if not EA:
        A.wait_vm('pa')
        stamp('pa1')
        retry_loop('pa', pa_issue, p_check, 60)
        stamp('paok')
        for i in range(OPT['NPRE']):
            hload()
    if OPT['PTOUCH'] & 4:
        hs_touch()
if not OPT['F3']:
    e('v_lshrrev_b32 %s, 1, %s' % (vr(vPF), vr(vPF)))
assert (OPT['NPRE'] <= FS - OPT['PBD'] or OPT['LDB']) and (hf[0] <= FC - OPT['PCD'] or not OPT['F3'] or OPT['LDC'])
M1 = 16320
def red_write(t, k):
    A.ds('ds_write_addtid_b32 %s offset:%d' % (vr(64 * t + k), t * (65536 - M1) + 256 * k), 'rw')
def red_read(t, q, part):
    A.ds('ds_read_b128 %s, %s offset:%d' % (vr(RD + 16 * q + 4 * part, 4), vr(vRR2 if t else vRR), part * 16384 + (q >> 1) * 8192 + (q & 1) * 2048), 'rr%d' % q)
def px_issue():
    for k in range(2 if OPT['PH'] else 4):
        A.vmem('buffer_load_dwordx4 %s, %s, %s, %s offen offset:%d sc1' % (vr(PXR + 4 * k, 4), vr(vL16), sr(dWS, 4), sr(sPX), k * 1024), 'px')
def px_check():
    if OPT['PH']:
        for k in range(8):
            e('v_xor_b32 %s, %s, %s' % (vr(PXR + k), vr(TB + (k & 3)), vr(PXR + k)))
        e('v_or3_b32 %s, %s, %s, %s' % (vr(pT), vr(PXR), vr(PXR + 1), vr(PXR + 2)))
        e('v_or3_b32 %s, %s, %s, %s' % (vr(pT + 1), vr(PXR + 3), vr(PXR + 4), vr(PXR + 5)))
        e('v_or3_b32 %s, %s, %s, %s' % (vr(pT), vr(pT), vr(PXR + 6), vr(PXR + 7)))
        e('v_or_b32 %s, %s, %s' % (vr(pT), vr(pT), vr(pT + 1)))
        e('v_and_b32 %s, %s, %s' % (vr(pT), sr(sBM), vr(pT)))
        e('v_cmp_ne_u32 vcc, 0, %s' % vr(pT))
        return
    for k in range(16):
        e('v_xor_b32 %s, %s, %s' % (vr(PXR + k), vr(TB + (k & 3)), vr(PXR + k)))
    for k in range(4):
        e('v_or3_b32 %s, %s, %s, %s' % (vr(pT + k), vr(PXR + 4 * k), vr(PXR + 4 * k + 1), vr(PXR + 4 * k + 2)))
    e('v_or3_b32 %s, %s, %s, %s' % (vr(pT), vr(pT), vr(PXR + 3), vr(PXR + 7)))
    e('v_or3_b32 %s, %s, %s, %s' % (vr(pT + 1), vr(pT + 1), vr(PXR + 11), vr(PXR + 15)))
    e('v_or3_b32 %s, %s, %s, %s' % (vr(pT), vr(pT), vr(pT + 2), vr(pT + 3)))
    e('v_or_b32 %s, %s, %s' % (vr(pT), vr(pT), vr(pT + 1)))
    e('v_and_b32 %s, %s, %s' % (vr(pT), sr(sBM), vr(pT)))
    e('v_cmp_ne_u32 vcc, 0, %s' % vr(pT))
def al_issue(opt=True):
    e('v_lshlrev_b32 v8, 7, %s' % vr(vLANE))
    for i in range(4):
        S('s_mov_b32 %s, %s', sT0, hex(WS_G + 8192 * i))
        A.vmem('buffer_load_dword v%d, v8, %s, %s offen offset:12 sc1' % (i, sr(dWS, 4), sr(sT0)), 'alp', opt=opt)
def al_check():
    for i in range(4):
        e('v_xor_b32 v%d, %s, v%d' % (4 + i, sr(sTAG), i))
    e('v_or3_b32 v4, v4, v5, v6')
    e('v_or_b32 v4, v4, v7')
    e('v_cmp_ne_u32 vcc, 0, v4')

left = [2] * 76
last = {}
for n, (f, dh) in enumerate(MF):
    last[(LD[f][0], LD[f][2], dh)] = n
clk = [0, -4 * OPT['HINT']]
seen = set()
for n, (f, dh) in enumerate(MF):
    t, s, hh = LD[f]
    for (tq_, hq, dq), m in sorted(last.items()):
        if n == m + 2:
            o = Ops()
            if (tq_, hq, dq) == (1, 0, 0):
                o.s('s_add_u32 m0, m0, %d' % M1)
            for k in range(16):
                o.f(lambda k=k, tq_=tq_, hq=hq, dq=dq: red_write(tq_, 32 * hq + 16 * dq + k), OPT['WC'])
            F2.add(o)
            if dq == 0 or (tq_, hq) == (1, 1) or (hq == 0 and not OPT['FIN1' if tq_ else 'FINE']):
                continue
            qs = (0, 1) if hq == 0 else (2, 3) if OPT['FINE'] else range(4)
            o = Ops()
            def bar1(nm='bar%d%d' % (tq_, hq)):
                A.wait_lg0()
                e('s_barrier')
                stamp('bar1' if nm == 'bar01' else nm)
            o.f(lambda: None, OPT['BW'])
            o.f(bar1, 4)
            for q in qs:
                for part in range(4):
                    o.f(lambda q=q, part=part, tq_=tq_: red_read(tq_, q, part), 2)
            for q in qs:
                o.f(lambda q=q: A.wait_lg('rr%d' % q))
                b = RD + 16 * q
                for i in range(4):
                    o.v('v_add_f32 %s, %s, %s' % (vr(b + i), vr(b + i), vr(b + 4 + i)))
                for i in range(4):
                    o.v('v_add_f32 %s, %s, %s' % (vr(b + 8 + i), vr(b + 8 + i), vr(b + 12 + i)))
                if tq_:
                    for i in range(8):
                        o.v('v_add_f32 %s, %s, %s' % (vr(RES + 4 * q + (i & 3)), vr(RES + 4 * q + (i & 3)), vr(b + 2 * (i & 4) + (i & 3))))
                    continue
                for i in range(4):
                    o.v('v_add_f32 %s, %s, %s' % (vr(b + i), vr(b + i), vr(b + 8 + i)))
                if OPT['PH']:
                    g = RD + 32 * (q >> 1) + 4
                    for i in range(2):
                        o.v('v_cvt_pk_f16_f32 %s, %s, %s' % (vr(g + 2 * (q & 1) + i), vr(b + 2 * i), vr(b + 2 * i + 1)))
                    for i in range(2):
                        k = 2 * (q & 1) + i
                        o.v('v_bfi_b32 %s, %s, %s, %s' % (vr(g + k), sr(sBM), vr(TB + k), vr(g + k)))
                    if q & 1:
                        o.f(lambda q=q, g=g: A.vmem('buffer_store_dwordx4 %s, %s, %s, %s offen offset:%d sc1' % (vr(g, 4), vr(vL16), sr(dWS, 4), sr(sPX), (q >> 1) * 1024), 'pxs'), 4)
                    continue
                for i in range(4):
                    o.v('v_bfi_b32 %s, %s, %s, %s' % (vr(b + i), sr(sBM), vr(TB + i), vr(b + i)))
                o.f(lambda q=q, b=b: A.vmem('buffer_store_dwordx4 %s, %s, %s, %s offen offset:%d sc1' % (vr(b, 4), vr(vL16), sr(dWS, 4), sr(sPX), q * 1024), 'pxs'), 4)
                o.f(lambda: print(' px store at step', clk[2] / 4, 'loads issued', hf[0]), 0)
            if (tq_, hq) == (0, 1):
                o.s('s_xor_b32 %s, %s, %s', sPX, sPX, '0x2000' if OPT['PH'] else '0x4000')
                o.f(lambda: (stamp('pxs'), seen.add('pxs'), print('px stores done at step', clk[2] / 4, 'loads issued', hf[0])), 0)
            F2.add(o)
    clk[2:] = [n]
    if OPT['EP'] and n == 4 * OPT['BXP']:
        assert DSN.get('rw', 0) == 0
        e('s_barrier')
    if n == 4 * OPT['WB']:
        lab = newlab('wb')
        S('s_and_b32 %s, %s, %s', sT0, sGW, ['3', '0x3e3', '0x63'][OPT['WBM']])
        S('s_cmp_lg_u32 %s, 1', sT0)
        e('s_cbranch_scc1 %s' % lab)
        A.vmem('buffer_wbl2 sc1', 'wb', opt=True)
        A.label(lab)
    if n == 4 * OPT['PXPOS']:
        assert 'pxs' in seen
        px_issue()
    if n == 4 * min(37, OPT['PXPOS']):
        lab = newlab('nal')
        S('s_cmp_lg_u32 %s, 3', sGW)
        e('s_cbranch_scc1 %s' % lab)
        al_issue()
        A.label(lab)
    u = 0
    if n % 4 == 0:
        page('hH' if n == 4 * OPT['PGH'] else 'h%d' % (n // 4))
    if f not in seen:
        assert hf[0] > f
        A.wait_vm('h%d' % f)
        seen.add(f)
    if n // 4 in HST and n % 4 == 0:
        stamp('h%d' % (n // 4))
    acc = vr(64 * t + 32 * hh + 16 * dh, 16)
    def m16(k):
        acc = vr(64 * t + 32 * hh + 16 * dh + 8 * (s & 1) + 4 * k, 4)
        e('v_mfma_f32_16x16x32_bf16 %s, %s, %s, %s' % (acc, ar(RING + 4 * (f % NR), 4), ar(8 * s + 4 * (dh ^ k), 4), acc if s > 1 else '0'))
    if OPT['X'] & 256:
        m16(0)
    elif not OPT['X'] & 8:
        e('v_mfma_f32_32x32x16_bf16 %s, %s, %s, %s' % (acc, ar(RING + 4 * (f % NR), 4), ar(8 * s + 4 * dh, 4), acc if s != SO[0] else '0'))
    left[f] -= 1
    if n + 1 < len(MF) and MF[n + 1][0] not in seen:
        u = 1
    if OPT['LDC'] and not EA and n == max(0, 2 * (FC - OPT['LDC'] - OPT['PCM'])):
        assert hf[0] <= FC
        S('s_add_u32 %s, %s, %s', sPA, sPA, hex(WS_FC - WS_FA))
        pc_issue()
        u += 3
    if OPT['LDB'] and n == 2 * (FS - OPT['LDB'] - OPT['PBM']):
        assert FC < hf[0] <= FS, (FC, hf[0], FS)
        pb_issue()
        u += 2
    held = n < OPT['HOLD'] or (OPT['LDC'] and hf[0] == FC and n < 2 * (FC - OPT['LDC'])) or (OPT['LDB'] and hf[0] == FS and n < 2 * (FS - OPT['LDB']))
    if held:
        clk[1] = max(clk[1], clk[0] - OPT['CU'] * OPT['HINT'])
    elif hf[0] < 76 and (hf[0] < NR or left[hf[0] - NR] == 0) and clk[0] >= clk[1]:
        u += hload()
        clk[1] += OPT['HINT']
    if OPT['X'] & 256:
        while F2.ready() and (u + F2.cost() <= OPT['RPOP'] // 2):
            u += F2.cost()
            F2.pop1()
        m16(1)
    while F2.ready() and (u + F2.cost() <= OPT['RPOP'] or u <= 1):
        u += F2.cost()
        F2.pop1()
    clk[0] += max(32, (16 if OPT['X'] & 256 else 8) + 4 * u)
assert hf[0] == 76
stamp('mfma2')
if OPT['PXPOS'] == 38:
    px_issue()
print('F2 left', len(F2.q))
F2.flush()
for key, m in sorted(last.items()):
    if m + 2 >= len(MF):
        assert key != (1, 0, 0)
        for k in range(16):
            red_write(1, 32 * key[1] + 16 * key[2] + k)
A.wait_lg0()
e('s_barrier')
stamp('bar2')
if OPT['PXPOS'] == 39:
    px_issue()
Q1 = range(2 if OPT['FIN1'] else 0, 4)
for q in Q1:
    for part in range(4):
        red_read(1, q, part)
if OPT['PXPOS'] == 40:
    A.wait_vm('pxs')
    stamp('pxack')
    px_issue()
def own_sum(q):
    A.wait_lg('rr%d' % q)
    b, r = RD + 16 * q, RES + 4 * q
    for h in (0, 2):
        e('v_pk_add_f32 %s, %s, %s' % (vr(b + h, 2), vr(b + h, 2), vr(b + 4 + h, 2)))
        e('v_pk_add_f32 %s, %s, %s' % (vr(b + 8 + h, 2), vr(b + 8 + h, 2), vr(b + 12 + h, 2)))
    for h in (0, 2):
        e('v_pk_add_f32 %s, %s, %s' % (vr(r + h, 2), vr(r + h, 2), vr(b + h, 2)))
    for h in (0, 2):
        e('v_pk_add_f32 %s, %s, %s' % (vr(r + h, 2), vr(r + h, 2), vr(b + 8 + h, 2)))
for q in Q1:
    own_sum(q)
A.wait_vm('px')
stamp('px1')
retry_loop('px', px_issue, px_check, 62)
stamp('pxok')
for q in range(4):
    r = RES + 4 * q
    for h in (0, 2):
        if OPT['PH']:
            for lo in range(2):
                e('v_fma_mix_f32 %s, %s, 1.0, %s op_sel:[%d,0,0] op_sel_hi:[1,0,0]' % (vr(r + h + lo), vr(PXR + 2 * q + h // 2), vr(r + h + lo), lo))
        else:
            e('v_pk_add_f32 %s, %s, %s' % (vr(r + h, 2), vr(r + h, 2), vr(PXR + 4 * q + h, 2)))
    if q == 2:
        S('s_movk_i32 %s, 4096', sT0)
    A.vmem('buffer_store_dwordx4 %s, %s, %s, %s offen offset:%d%s' % (vr(r, 4), vr(vOO), sr(dO, 4), sr(sT0) if q > 1 else '0', (q & 1) * 2048, ['', ' sc1', ' nt', ' sc0 sc1'][OPT['OUTSC']]), 'out')
lab = newlab('nep')
S('s_cmp_lg_u32 %s, 3', sGW)
e('s_cbranch_scc1 %s' % lab)
A.wait_vm('alp')
retry_loop('al', al_issue, al_check, 63)
one_lane_store(8, '0', 'ep')
A.label(lab)
if PROF:
    stamp('stored')
    e('s_waitcnt vmcnt(0)')
    stamp('drained')
    stamp('rt1', True)
    A.wait_lg0()
    e('v_lshlrev_b32 v16, 2, %s' % vr(vLANE))
    if DBGT and os.environ.get('AMP'):
        x0, x1 = os.environ['AMP'].split('-')
        e('v_readlane_b32 s40, %s, %d' % (vr(vSTAMP), SNAMES[x0]))
        e('v_readlane_b32 s41, %s, %d' % (vr(vSTAMP), SNAMES[x1]))
        e('v_readlane_b32 s42, %s, %d' % (vr(vSTAMP), SNAMES['drained']))
        e('s_nop 4')
        e('s_sub_u32 s40, s41, s40')
        e('s_lshl_b32 s40, s40, 2')
        e('s_min_u32 s40, s40, 20000')
        e('s_mov_b32 s43, 0')
        A.label('L_amp')
        e('s_memrealtime s[44:45]')
        e('s_waitcnt lgkmcnt(0)')
        e('s_add_u32 s43, s43, 1')
        e('s_cmp_gt_u32 s43, 0x4000')
        e('s_cbranch_scc1 L_ampd')
        e('s_sub_u32 s44, s44, s42')
        e('s_cmp_lt_u32 s44, s40')
        e('s_cbranch_scc1 L_amp')
        A.label('L_ampd')
    elif DBGT:
        e('s_load_dwordx2 s[40:41], s[0:1], 120')
        e('v_not_b32 v17, %s' % vr(vSTAMP))
        e('v_cmp_eq_u32 vcc, 0, %s' % vr(vLANE))
        e('s_nop 1')
        e('v_cndmask_b32 v17, %s, v17, vcc' % vr(vSTAMP))
        e('s_waitcnt lgkmcnt(0)')
        e('s_mov_b64 exec, 0xffff')
        e('global_atomic_umax v16, v17, s[40:41] sc1')
        e('s_mov_b64 exec, -1')
    S('s_lshl_b32 %s, %s, 8', sT0, sGW)
    S('s_add_u32 %s, %s, %s', sT0, sT0, hex(WS_PROF))
    e('buffer_store_dword %s, v16, %s, %s offen' % (vr(vSTAMP), sr(dWS, 4), sr(sT0)))
    json.dump(SNAMES, open(OUT + '.names', 'w'))
A.label('L_end')
e('s_endpgm')

body, nops = hazard_pass(A.lines)
if OPT['PG'] & 8:
    body, n1, n2, tot = stub_pass(body, 0x300, 2, 4, OPT['AL'])
    print('alignment: nops', n1, 'widened', n2, 'cost', tot)
elif OPT['AL']:
    body, n1, n2, tot = align_pass(body, OPT['AL'])
    print('alignment: nops', n1, 'widened', n2, 'cost', tot)
head = open('cdna_kernels/%s.s.ref' % NAME).read().split('; Override launch')[0]
txt = head + '; @launch grid=(256,1,1) block=(256,1,1) lds=%d\n' % LDS_BYTES
txt += '''.amdgcn_target "amdgcn-amd-amdhsa--gfx950"
.text
.globl %s_kernel
.p2align %d
.type %s_kernel,@function
%s_kernel:
''' % (NAME, 12 if OPT['PG'] & 1 else 8, NAME, NAME)
txt += '\n'.join(body) + '\n'
txt += '''.section .rodata,"a"
.p2align 6
.amdhsa_kernel %s_kernel
  .amdhsa_next_free_vgpr 512
  .amdhsa_next_free_sgpr 102
  .amdhsa_accum_offset 256
  .amdhsa_group_segment_fixed_size 0
  .amdhsa_kernarg_size 136
  .amdhsa_user_sgpr_count 2
  .amdhsa_user_sgpr_kernarg_segment_ptr 1
  .amdhsa_system_sgpr_workgroup_id_x 1
.end_amdhsa_kernel
''' % NAME
open(OUT, 'w').write(txt)
print('wrote', OUT, 'lines', len(body), 'nops', nops)
```

```python
import sys, math, struct, json
from asmlib import *

NAME = 'parallel_sum__ssm_conv_s5__mixer_channel_mlp__prompt'
DBGT = '--dbgt' in sys.argv
PROF = '--prof' in sys.argv or DBGT
OUT = [a for a in sys.argv[1:] if not a.startswith('--') and '=' not in a]
OUT = OUT[0] if OUT else 'cdna_kernels/%s.s' % NAME
OPT = dict(DP=0, DPN=1, XL=11, LSP=0, CL=1, BF=0, SWP=0, SWB=0, CT=0, CTP=0, SRP=0, PXE=0, TW=0, GF=0, LBX=-1, NE=22, HOLD=0, PH=1, PAX=6, AI=40, LDB=0, PBM=6, LDC=0, PCM=6, CU=2, F3=0, FEP=0, N1=2, PCD=6, XG=0, XI=28, XC0=2, XC1=5, XAD=1, DS=0, FINE=0, FIN1=0, BW=8, DEF=0, DEFR=3, DFI=4, ZJ=1, CPF=1, EP=0, PAP=1, R0=1, R1=3, N0=4, HI2=70, BXP=8, D0A=2, NPK=20, LATE=1, ROT=10, DINT=72, LBPOS=6, OUTSC=0, PXPOS=38, RPOP=8, HINT=60, PTOUCH=0, DCOST=2, D1A=0, BUD0=2, NB0=4, X=0,
           EINT=100, NB1=3, PBD=12, SDG=5, NPRE=10, WPF=3, WT0=9, STL=4, RQ=3,
           PB=1, PINT=110, SPF=0, D1B=7, B1P=-1, B1G=3, XS=0, TL0=6, TL1=6, WC=2, FAP=0, XWP=0, PXS=0, CJ0=6, WG0=0, WNT=0, FL0=0, NTX=-1, NTW=-1, NTS=0, WPK=0, WINT=92, WCL=4, SMP=0, STD=0, AL=5, PG=11, PGA=3, PGH=19, PGT=0, HP=0, WB=-1, WBM=0)
for a in sys.argv[1:]:
    if '=' in a:
        k, v = a.split('=')
        assert k in OPT, k
        OPT[k] = int(v)

def f2u(x):
    return '0x%08x' % struct.unpack('<I', struct.pack('<f', x))[0]

WS_AL = 0x1000
WS_G = 0x8000
WS_SG = 0x10000
WS_PROF = 0x40000
WS_FA = 0x80000
WS_FB = 0xA0000
WS_FC = 0xC0000
WS_PX = 0x100000
WS_H = 0x800000
WS_SIZE = 0x1200000
HR = 152 * 2048

SLOT, PIECE = 36864, 9216
TAB, TROW = 147456, 272
CSX = TAB + 25 * TROW
PE = 155648
assert CSX + 1280 <= PE and CSX % 16 == 0
LDS_BYTES = 160 * 1024

sW, sRB, sJ, sKH, sC, sRBL, sTAG, sGW, sTH, sPH, sPC = 4, 5, 6, 7, 8, 9, 10, 11, 12, 13, 14
sJT = sPC
pX, pLRE, pLIM, pBRE, pBIM, pCRE, pCIM, pLDT, pDSK, pBX, pW1, pB1, pW2, pB2, pOUT, pDBG, pWS = [16 + 2 * i for i in range(17)]
sPERM, sCNT = 50, 51
dX, dWS, dB, dW1, dW2, dO = 52, 56, 60, 64, 68, 72
sM0, sSX, sSW, sOFF, sM8, sME, sWS, sBM, sU0, sCG, sT0, sT1 = range(76, 88)
sCO = sOFF
sMSK = [88, 90, 92, 94]
sT2, sT3 = 34, 35
sD0, sSG, sSGO, sHM, sHS, sFL, sPA, sPB, sH1, sH2 = range(16, 26)
sSSM, sGR, sPX, sP1, sP2, sHC, sF0, sF1 = 30, 31, 32, 33, 36, 37, 38, 39

vLANE, vL16, vLO4, vG, vLO5, vHI5, vSTAMP, vSCR = 255, 254, 253, 252, 251, 250, 249, 248

A = Asm()
AUTO = dict(on=False, t=0, nxt=0, xn=0, busy=False, any=False, int=OPT['EINT'])
_e = A.e
def e_time(s):
    mn = s.split()[0]
    AUTO['t'] += 8 if mn in TRANS else 12 if mn.startswith(('buffer_', 'ds_write')) else 4
    _e(s)
A.e = e_time
def e(s):
    A.e(s)
    ok = s.startswith('v_') or (AUTO['any'] and s.startswith('s_') and not s.startswith(('s_cmp', 's_bitcmp', 's_memtime', 's_wait')))
    if AUTO['on'] and not AUTO['busy'] and ok and DQ.ready() and AUTO['t'] >= AUTO['nxt']:
        AUTO['busy'] = True
        AUTO['nxt'] = max(AUTO['nxt'], AUTO['t'] - 2 * AUTO['int']) + AUTO['int']
        DQ.popD()
        AUTO['busy'] = False
    elif AUTO['on'] and not AUTO['busy'] and ok and XQ.ready() and AUTO['t'] >= AUTO['xn']:
        AUTO['busy'] = True
        AUTO['xn'] = max(AUTO['xn'], AUTO['t'] - 2 * OPT['XI']) + OPT['XI'] * XQ.cost()
        XQ.pop1()
        AUTO['busy'] = False
def auto(on):
    AUTO['on'] = on
EXPECT = dict([('st%d' % v, 9) for v in range(8)] + [('stat', 4), ('W', 38 - 8 * OPT['DEF']), ('Wd', 8 * OPT['DEF']), ('Wa', 20), ('Wb', 2), ('Wc0', 8), ('Wc1', 8), ('b1', 5), ('srow', 2), ('lb', 4), ('px', 2 if OPT['PH'] else 4), ('res', 8)])
ISSUED = {}
_vm, _wv = A.vmem, A.wait_vm
def vm_hook(s, tag='x', opt=False):
    ISSUED[tag] = ISSUED.get(tag, 0) + 1
    if OPT['X'] & 1 and ' lds' in s and tag not in ('st0', 'st1'):
        return
    if OPT['HP'] & 1 and tag in ('HM', 'HS') or OPT['HP'] & 2 and tag in ('fa', 'fb'):
        s = s.replace(' sc1', ' nt' if OPT['HP'] & 4 else '')
    if tag in ('HM', 'HS', 'HE') and OPT['HP'] & 24:
        s = s.replace(' sc1', ' sc1 nt' if OPT['HP'] & 8 else ' sc0 sc1')
    if tag == 'pxs' and OPT['HP'] & 96:
        s = s.replace(' sc1', ' sc1 nt' if OPT['HP'] & 32 else ' sc0 sc1')
    if tag[0] == 'h' and tag[1:].isdigit() and OPT['HP'] & 384:
        s = s.replace(' sc1', ' sc1 nt' if OPT['HP'] & 128 else ' sc0')
    _vm(s, tag, opt)
def wv_hook(tags):
    for t in ([tags] if isinstance(tags, str) else tags):
        assert ISSUED.get(t, 0) >= EXPECT.get(t, 1), (t, ISSUED.get(t, 0))
    _wv(tags)
A.vmem, A.wait_vm = vm_hook, wv_hook
DSN = {}
_ds = A.ds
def ds_hook(s, tag='x'):
    DSN[tag] = DSN.get(tag, 0) + 1
    if OPT['X'] & 4 and tag[0] in 'xa' and tag[1].isdigit():
        return
    if OPT['X'] & 32 and tag == 'csw' or OPT['X'] & 64 and tag == 'cso':
        return
    _ds(s, tag)
A.ds = ds_hook
SNAMES = {}
import os
SKIP = os.environ.get('SKIP', 'b1,b3,fa,fb,d0,tab').split(',')
HST = [int(x) for x in os.environ.get('HST', '0,6,12,19,26,32').split(',')]
pending = []
SPAIRS = [96, 98, 100]
def flush_stamps():
    for (i, p) in pending:
        e('v_writelane_b32 %s, %s, %d' % (vr(vSTAMP), sr(p), i))
    del pending[:]
_wl0 = A.wait_lg0
def wait_lg0_hook():
    _wl0()
    flush_stamps()
A.wait_lg0 = wait_lg0_hook
DT = os.environ.get('DT', 'rt0,t0,karg,lam,st0,a3,kloop,Spub,gelu,Sgot,epi,paok,pbok,mfma2,pxok,drained').split(',')
def stamp(name, real=False):
    if not PROF:
        A.label('L_m_' + name)
    if not PROF or name in SKIP:
        return
    if os.environ.get('ONLY') and name not in ['rt0', 't0', 'drained', 'rt1'] + os.environ['ONLY'].split(','):
        return
    if DBGT:
        if name not in DT:
            return
        real = True
    if os.environ.get('REAL') and name not in ('t0', 'drained'):
        real = True
    assert name not in SNAMES
    SNAMES[name] = len(SNAMES)
    i = SNAMES[name]
    assert i < 57
    if len(pending) == len(SPAIRS):
        A.wait_lg0()
    used = [p for (_, p) in pending]
    p = [q for q in SPAIRS if q not in used][0]
    e('%s %s' % ('s_memrealtime' if real else 's_memtime', sr(p, 2)))
    pending.append((i, p))
def count(slot):
    if PROF and not os.environ.get('ONLY'):
        e('v_writelane_b32 %s, %s, %d' % (vr(vSTAMP), sr(sCNT), slot))

def srd(d, p, size):
    e('s_mov_b32 %s, %s' % (sr(d), sr(p)))
    e('s_mov_b32 %s, %s' % (sr(d + 1), sr(p + 1)))
    e('s_mov_b32 %s, 0x%x' % (sr(d + 2), size))
    e('s_mov_b32 %s, 0x20000' % sr(d + 3))

def cmul(dr, di, ar_, ai, br, bi):
    e('v_mul_f32 %s, %s, %s' % (vr(dr), vr(ar_), vr(br)))
    e('v_mul_f32 %s, %s, %s' % (vr(di), vr(ar_), vr(bi)))
    e('v_fma_f32 %s, -%s, %s, %s' % (vr(dr), vr(ai), vr(bi), vr(dr)))
    e('v_fma_f32 %s, %s, %s, %s' % (vr(di), vr(ai), vr(br), vr(di)))

def cfma(dr, di, ar_, ai, br, bi, cr, ci):
    e('v_fma_f32 %s, %s, %s, %s' % (vr(dr), vr(ar_), vr(br), vr(cr)))
    e('v_fma_f32 %s, %s, %s, %s' % (vr(di), vr(ar_), vr(bi), vr(ci)))
    e('v_fma_f32 %s, -%s, %s, %s' % (vr(dr), vr(ai), vr(bi), vr(dr)))
    e('v_fma_f32 %s, %s, %s, %s' % (vr(di), vr(ai), vr(br), vr(di)))

NEG1 = 'neg_lo:[0,1,0] neg_hi:[0,1,0]'
def pk_cfma4(dr, di, ar_, ai, k, cr, ci):
    for h in (0, 2):
        e('v_pk_fma_f32 %s, %s, %s, %s' % (vr(dr + h, 2), vr(ar_ + h, 2), vr(k + h, 2), vr(cr + h, 2)))
    for h in (0, 2):
        e('v_pk_fma_f32 %s, %s, %s, %s' % (vr(di + h, 2), vr(ai + h, 2), vr(k + h, 2), vr(ci + h, 2)))
    for h in (0, 2):
        e('v_pk_fma_f32 %s, %s, %s, %s %s' % (vr(dr + h, 2), vr(ai + h, 2), vr(k + 4 + h, 2), vr(dr + h, 2), NEG1))
    for h in (0, 2):
        e('v_pk_fma_f32 %s, %s, %s, %s' % (vr(di + h, 2), vr(ar_ + h, 2), vr(k + 4 + h, 2), vr(di + h, 2)))

labn = [0]
def newlab(s):
    labn[0] += 1
    return 'L_%s_%d' % (s, labn[0])

PGS = os.environ.get('PGS', 'st0').split(',')
def page(name):
    if name not in PGS or not OPT['PG'] & 6:
        return
    k = PGS.index(name)
    A.e('s_branch L_pg_%d' % k)
    if OPT['PG'] & 2:
        A.lines.append('.p2align 12')
    if OPT['PG'] & 4:
        A.label('L_stub_%d' % k)
        A.e('s_branch %s' % ('L_stub_%d' % (k + 4) if 0 < k < len(PGS) - 4 else 'L_back'))
    A.label('L_pg_%d' % k)
def touch_pages(k):
    if OPT['PG'] & 8 and OPT['PGT'] == k:
        A.e('s_mov_b64 exec, 0')
        for w in range(3):
            A.e('s_cmp_eq_u32 %s, %d' % (sr(sW), w))
            A.e('s_cbranch_scc1 L_stub_%d' % w)
        A.e('s_branch L_stub_3')
        A.label('L_back')
        A.e('s_mov_b64 exec, -1')
    if not OPT['PG'] & 4 or OPT['PGT'] != k:
        return
    for w in range(3):
        A.e('s_cmp_eq_u32 %s, %d' % (sr(sW), w))
        A.e('s_cbranch_scc1 L_stub_%d' % (w + 1))
    A.e('s_branch L_stub_4')
    A.label('L_back')

def S(fmt, *a):
    e(fmt % tuple(sr(x) if isinstance(x, int) else x for x in a))

def retry_loop(name, issue, check, slot, first=True, after=None):
    lo, ld = newlab(name + 'l'), newlab(name + 'd')
    if first:
        check()
    if PROF:
        S('s_mov_b32 %s, 0', sCNT)
    e('s_cbranch_vccz %s' % ld)
    S('s_mov_b32 %s, 0', sCNT)
    A.label(lo)
    sv = list(A.vm)
    issue()
    e('s_waitcnt vmcnt(0)')
    if after:
        after()
    A.vm = sv
    check()
    S('s_add_u32 %s, %s, 1', sCNT, sCNT)
    e('s_cbranch_vccz %s' % ld)
    S('s_cmp_le_u32 %s, 0x20000', sCNT)
    e('s_cbranch_scc1 %s' % lo)
    A.label(ld)
    count(slot)

def one_lane_store(vt, soff, tag, opt=False, sc=' sc1'):
    e('v_mov_b32 %s, %s' % (vr(vt), sr(sTAG)))
    e('v_mov_b32 %s, 0' % vr(vt + 1))
    e('s_mov_b64 exec, 1')
    A.vmem('buffer_store_dword %s, %s, %s, %s offen%s' % (vr(vt), vr(vt + 1), sr(dWS, 4), soff, sc), tag, opt=opt)
    e('s_mov_b64 exec, -1')
def flag(off, tag):
    S('s_add_u32 %s, %s, %s', sT0, sFL, hex(off))
    e('s_mov_b32 exec_hi, 0')
    A.vmem('buffer_store_dword %s, %s, %s, %s offen sc1' % (vr(vTAG), vr(vTM), sr(dWS, 4), sr(sT0)), tag)
    e('s_mov_b32 exec_hi, -1')

class Q:
    def __init__(self):
        self.q = []
        self.open = set([None])
    def add(self, ops, gate=None):
        self.q += [(c, f, gate) for (c, f) in ops]
    def ready(self):
        return bool(self.q) and self.q[0][2] in self.open
    def cost(self):
        return self.q[0][0]
    def pop1(self):
        self.q.pop(0)[1]()
    def popD(self, n=1):
        while n > 0 and self.ready():
            if self.cost() == 'D':
                n -= 1
            self.pop1()
    def pop(self, n):
        while n > 0 and self.ready():
            c = self.cost()
            n -= 2 if c == 'D' else c
            self.pop1()
    def flush(self):
        while self.q:
            assert self.ready(), self.q[0][2]
            self.pop1()

class Ops(list):
    def v(self, s, c=1):
        self.append((c, lambda: e(s)))
    def s(self, fmt, *a):
        self.append((1, lambda: S(fmt, *a)))
    def f(self, fn, c=1):
        self.append((c, fn))

DQ = Q()
XQ = Q()
FQ = Q()
ACC, CS, XF, AF, ONE = 0, 80, 100, 132, 152
XA, BA, WA = 156, 160, 164
vX, vB, vW1, vW2 = 168, 170, 172, 175
B1, ST, SS, TMP = 180, 188, 204, 212
BU = TMP + 4
vTB, vTI, vTC, vTG, vSXW, vSXR, vCW, vCR, vPF, vTM, vXO, vGO = range(TMP + 16, TMP + 28)
vPA = TMP + 28
vSA, vTRL, vTAG = 177, 178, 179
vWT, vCT, vPW, vCO = 244, 245, 246, 247
sPM = 40
U0, U1 = 186, 187
SR = ST

e('s_cmp_ge_u32 s2, 256')
e('s_cbranch_scc1 L_end')
if PROF:
    e('v_mov_b32 %s, 0' % vr(vSTAMP))
    stamp('rt0', True)
    stamp('t0')
e('s_load_dwordx16 s[16:31], s[0:1], 0')
e('s_load_dwordx16 s[32:47], s[0:1], 64')
e('s_load_dwordx2 s[48:49], s[0:1], 128')
e('s_getpc_b64 %s' % sr(sPC, 2))
A.label('L_pc')
e('v_and_b32 %s, 63, v0' % vr(vLANE))
e('v_lshrrev_b32 v1, 6, v0')
e('v_lshlrev_b32 %s, 4, %s' % (vr(vL16), vr(vLANE)))
e('v_readfirstlane_b32 %s, v1' % sr(sW))
if OPT['CPF'] == 0:
    e('v_lshlrev_b32 v2, 7, v0')
    e('v_min_u32 v2, L_end-L_pc, v2')
    lab = newlab('npf')
    e('s_cmp_ge_u32 s2, 16')
    e('s_cbranch_scc1 %s' % lab)
    A.vmem('global_load_dword %s, v2, %s' % (vr(vSCR), sr(sPC, 2)), 'pf', opt=True)
    A.label(lab)
else:
    n = OPT['CPF']
    e('v_lshrrev_b32 v2, %d, v0' % (6 - n))
    e('s_and_b32 s3, s2, %d' % (0xf8 >> (n - 1) & 0xf8))
    e('s_lshl_b32 s3, s3, %d' % (6 + n))
    e('v_lshl_add_u32 v2, v2, 7, s3')
    e('v_min_u32 v2, L_end-L_pc, v2')
    A.vmem('global_load_dword %s, v2, %s' % (vr(vSCR), sr(sPC, 2)), 'pf')
S('s_and_b32 %s, s2, 1', sKH)
S('s_lshr_b32 %s, s2, 6', sRBL)
S('s_bfe_u32 %s, s2, 0x30003', sC)
S('s_bfe_u32 s3, s2, 0x20001')
S('s_lshl2_add_u32 %s, s3, %s', sRB, sRBL)
S('s_lshl3_add_u32 %s, %s, %s', sJ, sKH, sC)
S('s_lshl2_add_u32 %s, s2, %s', sGW, sW)
if OPT['ROT'] == 0:
    S('s_mov_b32 %s, 0x76543210', sPERM)
elif OPT['ROT'] == 9:
    PT = [[0, 4, 1, 2, 3, 5, 6, 7], [1, 2, 5, 3, 0, 4, 6, 7], [2, 3, 0, 6, 1, 4, 5, 7], [3, 0, 1, 2, 7, 4, 5, 6]]
    PT = [hex(sum(x << (4 * i) for i, x in enumerate(p))) for p in PT]
    S('s_add_u32 %s, %s, %s', sT0, sRBL, sC)
    S('s_mov_b32 %s, %s', sPERM, PT[0])
    S('s_mov_b32 %s, %s', sT1, PT[2])
    S('s_bitcmp1_b32 %s, 0', sT0)
    S('s_cselect_b32 %s, %s, %s', sPERM, PT[1], sPERM)
    S('s_cselect_b32 %s, %s, %s', sT1, PT[3], sT1)
    S('s_bitcmp1_b32 %s, 1', sT0)
    S('s_cselect_b32 %s, %s, %s', sPERM, sT1, sPERM)
    S('s_add_u32 %s, s3, %s', sT1, sKH)
    S('s_bitcmp1_b32 %s, 0', sT1)
    S('s_cselect_b32 %s, 0x44444444, 0', sT1)
    S('s_xor_b32 %s, %s, %s', sPERM, sPERM, sT1)
elif OPT['ROT'] == 10:
    PT = [[int(c) for c in p] for p in os.environ.get('PT', '01423567,02136457,10253467,13024756').split(',')]
    assert all(sorted(p) == list(range(8)) for p in PT)
    PT = [hex(sum(x << (4 * i) for i, x in enumerate(p))) for p in PT]
    S('s_add_u32 %s, %s, %s', sT0, sRBL, sC)
    S('s_mov_b32 %s, %s', sPERM, PT[0])
    S('s_mov_b32 %s, %s', sT1, PT[2])
    S('s_bitcmp1_b32 %s, 0', sT0)
    S('s_cselect_b32 %s, %s, %s', sPERM, PT[1], sPERM)
    S('s_cselect_b32 %s, %s, %s', sT1, PT[3], sT1)
    S('s_bitcmp1_b32 %s, 1', sT0)
    S('s_cselect_b32 %s, %s, %s', sPERM, sT1, sPERM)
    S('s_lshl1_add_u32 %s, %s, s3', sT1, sKH)
    S('s_and_b32 %s, %s, 3', sT1, sT1)
    S('s_mul_i32 %s, %s, 0x22222222', sT1, sT1)
    S('s_xor_b32 %s, %s, %s', sPERM, sPERM, sT1)
elif OPT['ROT'] == 8:
    S('s_lshl1_add_u32 %s, %s, %s', sT0, sRBL, sC)
    S('s_add_u32 %s, %s, s3', sT0, sT0)
    S('s_and_b32 %s, %s, 7', sT0, sT0)
    S('s_mul_i32 %s, %s, 0x11111111', sT0, sT0)
    S('s_add_u32 %s, %s, 0x76543210', sT0, sT0)
    S('s_and_b32 %s, %s, 0x77777777', sPERM, sT0)
else:
    S('s_add_u32 %s, %s, %s', sT0, sRBL, sC)
    S('s_and_b32 %s, %s, 3', sT0, sT0)
    S('s_mul_i32 %s, %s, 0x11111111', sT0, sT0)
    S('s_add_u32 %s, %s, 0x32103210', sT0, sT0)
    S('s_and_b32 %s, %s, 0x33333333', sT0, sT0)
    if OPT['ROT'] == 4:
        S('s_add_u32 %s, s3, %s', sT1, sKH)
    elif OPT['ROT'] == 6:
        S('s_mov_b32 %s, 0', sT1)
    else:
        S('s_lshr_b32 %s, %s, 2', sT1, sC)
        S('s_add_u32 %s, %s, s3', sT1, sT1)
    S('s_bitcmp0_b32 %s, 0', sT1)
    S('s_mov_b32 %s, 0x4444', sT1)
    S('s_cselect_b32 %s, 0x44440000, %s', sT1, sT1)
    S('s_or_b32 %s, %s, %s', sPERM, sT0, sT1)
e('v_lshrrev_b32 %s, 5, %s' % (vr(vHI5), vr(vLANE)))
e('v_and_b32 %s, 31, %s' % (vr(vLO5), vr(vLANE)))
e('v_lshrrev_b32 %s, 4, %s' % (vr(vG), vr(vLANE)))
e('v_and_b32 %s, 15, %s' % (vr(vLO4), vr(vLANE)))
S('s_lshr_b32 %s, %s, 1', sTH, sW)
S('s_and_b32 %s, %s, 1', sPH, sW)
e('v_and_b32 v1, 7, %s' % vr(vLANE))
e('v_lshrrev_b32 v3, 3, %s' % vr(vLANE))
e('v_xor_b32 v4, v1, %s' % vr(vG))
e('v_lshlrev_b32 v4, 4, v4')
S('s_lshl1_add_u32 %s, %s, %s', sT0, sRB, sTH)
S('s_lshl_b32 %s, %s, 6', sT0, sT0)
S('s_add_u32 %s, %s, %s', sT0, sT0, sPH)
S('s_lshl_b32 %s, %s, 10', sT0, sT0)
e('v_lshl_add_u32 v5, v3, 12, v4')
e('v_add_u32 %s, %s, v5' % (vr(vX), sr(sT0)))
e('v_xor_b32 %s, 64, %s' % (vr(vX + 1), vr(vX)))
e('v_add_u32 %s, %d, %s' % (vr(vX + 1), 31 * 1024, vr(vX + 1)))
S('s_lshl1_add_u32 %s, %s, %s', sCG, sJ, sTH)
S('s_lshl_b32 %s, %s, 14', sCG, sCG)
e('v_lshl_add_u32 v5, v3, 10, v4')
e('v_add_u32 %s, %s, v5' % (vr(vB), sr(sCG)))
e('v_xor_b32 %s, 64, %s' % (vr(vB + 1), vr(vB)))
e('v_add_u32 %s, %d, %s' % (vr(vB + 1), 7 * 1024, vr(vB + 1)))
S('s_lshr_b32 %s, %s, 2', sT0, sJ)
S('s_mul_i32 %s, %s, 22', sT0, sT0)
S('s_and_b32 %s, %s, 3', sT1, sJ)
if OPT['ZJ']:
    S('s_cmp_eq_u32 %s, 3', sT1)
    S('s_cselect_b32 %s, 8, 0', sU0)
S('s_mul_i32 %s, %s, 6', sT1, sT1)
S('s_add_u32 %s, %s, %s', sJT, sT0, sT1)
S('s_lshl_b32 %s, %s, 5', sSW, sJT)
S('s_mul_i32 %s, %s, %s', sT0, sW, str(16 * 2752))
S('s_add_u32 %s, %s, %s', sSW, sSW, sT0)
S('s_movk_i32 %s, 5462', sT0)
S('s_movk_i32 %s, 2752', sT1)
for i in range(3):
    e('v_add_u32 v6, %d, %s' % (64 * i, vr(vLANE)))
    e('v_mul_u32_u24 v7, %s, v6' % sr(sT0))
    e('v_lshrrev_b32 v7, 16, v7')
    e('v_mul_u32_u24 v8, 12, v7')
    e('v_sub_u32 v6, v6, v8')
    e('v_lshrrev_b32 v8, 3, v7')
    e('v_lshlrev_b32 v8, 1, v8')
    e('v_xor_b32 v6, v6, v8')
    e('v_mul_u32_u24 v7, %s, v7' % sr(sT1))
    if OPT['ZJ']:
        e('v_and_b32 v8, %s, v6' % sr(sU0))
        e('v_lshl_add_u32 v7, v8, 27, v7')
    e('v_lshl_add_u32 v6, v6, 4, v7')
    e('v_add_u32 %s, %s, v6' % (vr(vW1 + i), sr(sSW)))
    if i < 2:
        S('s_sub_u32 %s, %s, 1024', sSW, sSW)
S('s_mul_i32 %s, %s, %s', sM0, sW, str(PIECE))
S('s_lshl_b32 %s, %s, 6', sT0, sJ)
e('v_lshl_add_u32 v9, %s, 1, %s' % (vr(vLO5), sr(sT0)))
e('v_mov_b32 v10, 0')
S('s_mov_b32 %s, 0x200000', dX + 2)
S('s_mov_b32 %s, 0x20000', dX + 3)
S('s_mov_b32 %s, 0x80000', dB + 2)
S('s_mov_b32 %s, 0x20000', dB + 3)
S('s_mov_b32 %s, %s', dW1 + 2, str(512 * 2752))
S('s_mov_b32 %s, 0x20000', dW1 + 3)
S('s_mov_b32 %s, %s', dWS + 2, hex(WS_SIZE))
S('s_mov_b32 %s, 0x20000', dWS + 3)
S('s_movk_i32 %s, 2752', dO + 2)
S('s_mov_b32 %s, 0x20000', dO + 3)
S('s_add_u32 %s, %s, %s', sT0, sJT, sPH)
S('s_lshl_b32 %s, %s, 5', sT0, sT0)
e('v_lshl_add_u32 v15, %s, 3, %s' % (vr(vG), sr(sT0)))
S('s_lshl_b32 %s, %s, 7', sT1, sC)
e('v_lshl_add_u32 v16, %s, 3, %s' % (vr(vLO4), sr(sT1)))

def stage_dma(v):
    slot = v & 3
    tag = 'st%d' % v
    ops = []
    sc = lambda fmt, *a: ops.append((1, lambda: S(fmt, *a)))
    dm = lambda txt: ops.append(('D', lambda: A.vmem(txt, tag)))
    sc('s_bfe_u32 %s, %s, %s', sSW, sPERM, '0x%x' % (4 * v + 0x30000))
    sc('s_add_u32 m0, %s, %s', sM0, str(slot * SLOT + 4096))
    sc('s_lshl_b32 %s, %s, 7', sSX, sSW)
    for i in range(2):
        dm('buffer_load_dwordx4 %s, %s, %s offen offset:%d%s lds' % (vr(vB + i), sr(dB, 4), sr(sSX), i * 1024, ' nt' if v <= OPT['NTW'] else ''))
    sc('s_add_u32 m0, %s, %s', sM0, str(slot * SLOT + 6144))
    sc('s_mul_i32 %s, %s, %s', sSW, sSW, str(64 * 2752))
    for i in range(3):
        dm('buffer_load_dwordx4 %s, %s, %s offen offset:%d%s lds' % (vr(vW1 + i), sr(dW1, 4), sr(sSW), i * 1024, ' nt' if v <= OPT['NTW'] else ''))
    sc('s_add_u32 m0, %s, %s', sM0, str(slot * SLOT))
    for i in range(4):
        dm('buffer_load_dwordx4 %s, %s, %s offen offset:%d%s lds' % (vr(vX + (i & 1)), sr(dX, 4), sr(sSX), i * 1024, ' nt' if v <= OPT['NTX'] else ''))
    return ops

S('s_lshl1_add_u32 %s, %s, %s', sT0, sRB, sKH)
S('s_and_b32 %s, %s, 1', sT1, sJ)
S('s_lshl1_add_u32 %s, %s, %s', sT0, sT0, sT1)
S('s_lshl2_add_u32 %s, %s, %s', sT0, sT0, sW)
S('s_bfe_u32 %s, %s, 0x20001', sT1, sJ)
S('s_lshl3_add_u32 %s, %s, %s', sT0, sT0, sT1)
S('s_lshl_b32 %s, %s, 10', sM8, sT0)
e('v_lshlrev_b32 %s, 12, %s' % (vr(vSA), vr(vHI5)))
e('v_lshl_add_u32 %s, %s, 4, %s' % (vr(vSA), vr(vLO5), vr(vSA)))
d0 = stage_dma(0)
for (c, f) in d0[:3]:
    f()
if OPT['CT']:
    e('v_lshrrev_b32 v17, 1, %s' % vr(vLANE))
    e('v_and_b32 v18, 1, %s' % vr(vLANE))
    e('v_lshlrev_b32 v18, 7, v18')
    e('v_lshl_add_u32 v17, v17, 10, v18')
    S('s_and_b32 %s, %s, -256', sT1, sSX)
if OPT['CT'] & 1:
    S('s_lshl3_add_u32 %s, %s, %s', sT0, sRBL, sC)
    S('s_lshl2_add_u32 %s, %s, %s', sT0, sT0, sW)
    S('s_lshr_b32 %s, %s, 1', sU0, sT1)
    S('s_add_u32 %s, %s, %s', sT0, sT0, sU0)
    S('s_mul_i32 %s, %s, 2752', sT0, sT0)
    S('s_mul_i32 %s, %s, 1408', sU0, sKH)
    S('s_add_u32 %s, %s, %s', sT0, sT0, sU0)
    e('v_lshl_add_u32 v19, %s, 7, %s' % (vr(vLANE), sr(sT0)))
if OPT['CT'] & 2:
    S('s_lshl1_add_u32 %s, %s, %s', sT0, sRB, sKH)
    S('s_xor_b32 %s, %s, 1', sT0, sT0)
    S('s_lshl3_add_u32 %s, %s, %s', sT0, sT0, sC)
    S('s_lshl2_add_u32 %s, %s, %s', sT0, sT0, sW)
    S('s_lshl_b32 %s, %s, 11', sT0, sT0)
    S('s_add_u32 %s, %s, %s', sT0, sT0, sT1)
    e('v_add_u32 v18, %s, v17' % sr(sT0))
if OPT['CT'] & 4:
    S('s_lshl2_add_u32 %s, %s, %s', sT0, sJ, sRBL)
    S('s_lshl1_add_u32 %s, %s, %s', sT0, sT0, sTH)
    S('s_lshl_b32 %s, %s, 12', sT0, sT0)
    S('s_add_u32 %s, %s, %s', sT0, sT0, sT1)
    e('v_add_u32 v17, %s, v17' % sr(sT0))
def coop_touch(k):
    if not OPT['CT'] or OPT['CTP'] != k:
        return
    for (bit, m, v, d) in ((1, 0xfff, 19, dW1), (2, 0xf, 18, dX), (4, 0xff, 17, dB)):
        if OPT['CT'] & bit:
            e('s_mov_b64 exec, 0x%x' % m)
            A.vmem('buffer_load_dword %s, v%d, %s, 0 offen' % (vr(vSCR), v, sr(d, 4)), 'touch')
    e('s_mov_b64 exec, -1')
P = Ops()
P.v('v_lshrrev_b32 v1, 1, %s' % vr(vLO4))
P.v('v_xor_b32 v1, v1, %s' % vr(vG))
P.v('v_lshlrev_b32 v1, 4, v1')
P.v('v_lshl_add_u32 v1, %s, 7, v1' % vr(vLO4))
P.s('s_lshl_b32 %s, %s, 6', sT0, sTH)
P.v('v_xor_b32 v1, %s, v1' % sr(sT0))
P.v('v_xor_b32 v2, 64, v1')
P.s('s_mul_i32 %s, %s, %s', sT0, sTH, str(2 * PIECE))
P.s('s_mul_i32 %s, %s, %s', sT1, sPH, str(2 * PIECE))
P.s('s_add_u32 %s, %s, 4096', sT1, sT1)
for k in range(2):
    P.v('v_add_u32 %s, %s, v%d' % (vr(XA + 2 * k), sr(sT0), 1 + k))
    P.v('v_add_u32 %s, %s, v%d' % (vr(BA + 2 * k), sr(sT1), 1 + k))
    P.v('v_add_u32 %s, %d, %s' % (vr(XA + 2 * k + 1), 2 * SLOT, vr(XA + 2 * k)))
    P.v('v_add_u32 %s, %d, %s' % (vr(BA + 2 * k + 1), 2 * SLOT, vr(BA + 2 * k)))
P.v('v_bfe_u32 v1, %s, 2, 2' % vr(vLANE))
P.v('v_bfe_u32 v2, %s, 4, 1' % vr(vLANE))
P.v('v_lshl_add_u32 v3, v2, 3, v1')
P.v('v_mul_u32_u24 v3, 192, v3')
P.v('v_xor_b32 v4, %s, v2' % sr(sPH))
P.v('v_lshl_add_u32 v3, v4, 5, v3')
P.v('v_and_b32 v4, 3, %s' % vr(vLANE))
P.v('v_lshl_add_u32 v3, v4, 3, v3')
P.s('s_movk_i32 %s, %s', sT1, str(PIECE))
P.v('v_mad_u32_u24 v3, %s, %s, v3' % (vr(vHI5), sr(sT1)))
P.s('s_add_u32 %s, %s, 6144', sT1, sT0)
P.s('s_sub_u32 %s, %s, %s', sT0, str(2 * PIECE + 6144), sT0)
P.v('v_add_u32 %s, %s, v3' % (vr(WA), sr(sT1)))
P.v('v_add_u32 %s, %s, v3' % (vr(WA + 2), sr(sT0)))
P.v('v_add_u32 %s, %d, %s' % (vr(WA + 1), 2 * SLOT, vr(WA)))
P.v('v_add_u32 %s, %d, %s' % (vr(WA + 3), 2 * SLOT, vr(WA + 2)))
P.v('v_and_b32 v5, 7, %s' % vr(vLANE))
P.v('v_lshlrev_b32 v6, 2, v2')
P.v('v_xor_b32 v5, v5, v6')
P.v('v_lshlrev_b32 v5, 4, v5')
P.v('v_lshrrev_b32 v6, 3, %s' % vr(vLANE))
P.v('v_lshl_add_u32 %s, v6, 10, v5' % vr(vW2))
P.v('v_add_u32 %s, %d, %s' % (vr(vW2 + 1), 7 * 1024, vr(vW2)))
P.v('v_lshl_add_u32 v5, %s, 3, v1' % vr(vHI5))
P.v('v_lshlrev_b32 v5, 7, v5')
P.v('v_lshrrev_b32 v6, 1, v1')
P.v('v_lshl_add_u32 v5, v6, 6, v5')
P.v('v_lshl_add_u32 v5, v2, 5, v5')
P.v('v_lshl_add_u32 %s, v4, 3, v5' % vr(vTRL))
P.v('v_mov_b32 %s, 0x3f803f80' % vr(ONE))
for q in range(5):
    P.v('v_cmp_eq_u32 %s, %d, %s' % (sr(sMSK[q & 3], 2) if q < 4 else 'vcc', q, vr(vLO4)))
for q in range(5):
    P.v('v_cndmask_b32 %s, 0, %s, %s' % (vr(CS + 4 * q), vr(ONE), sr(sMSK[q & 3], 2) if q < 4 else 'vcc'))
for q in range(5):
    P.v('v_mov_b32 %s, %s' % (vr(CS + 4 * q + 1), vr(CS + 4 * q)))
for q in range(5):
    P.v('v_mov_b64 %s, %s' % (vr(CS + 4 * q + 2, 2), vr(CS + 4 * q, 2)))
P.s('s_lshl2_add_u32 %s, %s, %s', sT1, sKH, sW)
P.s('s_lshl_b32 %s, %s, 9', sCO, sC)
P.s('s_add_u32 %s, %s, %s', sCO, sCO, sT1)
P.s('s_lshl_b32 %s, %s, 7', sCO, sCO)
P.s('s_lshr_b32 %s, %s, 1', sT0, sT1)
P.s('s_mul_i32 %s, %s, 22', sT0, sT0)
P.s('s_add_u32 %s, %s, %s', sT0, sT0, sPH)
P.s('s_lshl_b32 %s, %s, 7', sWS, sT0)
P.s('s_add_u32 %s, %s, %s', sWS, sWS, sC)
P.s('s_lshl_b32 %s, %s, 7', sWS, sWS)
P.v('v_lshlrev_b32 %s, 10, %s' % (vr(vCT), vr(vLANE)))
P.v('v_lshrrev_b32 %s, 2, %s' % (vr(U0), vr(vLANE)))
P.v('v_mad_u32_u24 %s, v4, 3, %s' % (vr(U0), vr(U0)))
P.s('s_lshl2_add_u32 %s, %s, s3', sU0, sRBL)
P.s('s_lshl_b32 %s, %s, 10', sT1, sU0)
P.v('v_lshl_add_u32 %s, %s, 15, %s' % (vr(vPW), vr(U0), sr(sT1)))
P.s('s_lshl_b32 %s, %s, 2', sU0, sU0)
P.s('s_mov_b32 %s, %s', dW2 + 2, str(1376 * 1024))
P.s('s_mov_b32 %s, 0x20000', dW2 + 3)
P.s('s_mul_i32 %s, %s, %s', sME, sTH, str(SLOT))
P.s('s_lshl_b32 %s, %s, 11', sT0, sPH)
P.s('s_add_u32 %s, %s, %s', sME, sME, sT0)
P.s('s_add_u32 %s, %s, 32768', sME, sME)
P.s('s_lshl_b32 %s, %s, 6', sT0, sPH)
P.s('s_add_u32 %s, %s, %s', sT0, sT0, str(TAB))
P.s('s_movk_i32 %s, %s', sT1, str(TROW))
P.v('v_lshl_add_u32 %s, %s, 4, %s' % (vr(vTB), vr(vG), sr(sT0)))
P.v('v_lshl_add_u32 %s, %s, 2, %s' % (vr(vTC), vr(vLO4), sr(sT0)))
P.v('v_mad_u32_u24 %s, %s, %s, %s' % (vr(vTI), vr(vLO4), sr(sT1), vr(vTB)))
P.v('v_min_u32 %s, 1, %s' % (vr(U0), vr(vG)))
P.v('v_lshl_add_u32 %s, %s, 4, %s' % (vr(U0), vr(U0), vr(vG)))
P.v('v_mad_u32_u24 %s, %s, %s, %s' % (vr(vTG), vr(U0), sr(sT1), vr(vTC)))
P.s('s_mul_i32 %s, %s, 320', sT0, sW)
P.s('s_add_u32 %s, %s, %s', sT0, sT0, str(CSX))
P.v('v_lshl_add_u32 %s, %s, 4, %s' % (vr(vCO), vr(vG), sr(sT0)))
P.v('v_lshl_add_u32 %s, %s, 6, %s' % (vr(vCW), vr(vLO4), vr(vCO)))
P.s('s_xor_b32 %s, %s, 2', sT0, sW)
P.s('s_mul_i32 %s, %s, 320', sT0, sT0)
P.s('s_add_u32 %s, %s, %s', sT0, sT0, str(CSX))
P.v('v_lshl_add_u32 %s, %s, 4, %s' % (vr(vCR), vr(vG), sr(sT0)))
P.v('v_lshl_add_u32 %s, %s, 2, %s' % (vr(vSXW), vr(vLO4), sr(sT0)))
P.s('s_mul_i32 %s, %s, 320', sT0, sPH)
P.s('s_add_u32 %s, %s, %s', sT0, sT0, str(CSX))
P.v('v_lshl_add_u32 %s, %s, 2, %s' % (vr(vSXR), vr(vLO4), sr(sT0)))
P.s('s_sub_u32 %s, %s, 1', sT0, sRB)
P.v('v_sub_u32 %s, %s, %s' % (vr(U0), sr(sT0), vr(vG)))
P.v('v_lshlrev_b32 %s, 4, %s' % (vr(U1), vr(vLO4)))
for i in range(4):
    P.v('v_subrev_u32 %s, %d, %s' % (vr(vPA + i), 4 * i, vr(U0)))
    P.v('v_cmp_le_i32 %s, 0, %s' % (sr(sMSK[i], 2), vr(vPA + i)))
    P.v('v_max_i32 %s, 0, %s' % (vr(vPA + i), vr(vPA + i)))
    P.v('v_lshl_add_u32 %s, %s, 8, %s' % (vr(vPA + i), vr(vPA + i), vr(U1)))
P.v('v_lshlrev_b32 %s, 2, %s' % (vr(vTM), vr(vLO5)))
P.s('s_lshl1_add_u32 %s, %s, %s', sT0, sRB, sKH)
P.s('s_lshl1_add_u32 %s, %s, %s', sT0, sT0, sTH)
P.s('s_lshl2_add_u32 %s, %s, %s', sT0, sT0, sPH)
P.s('s_lshl_b32 %s, %s, 3', sT0, sT0)
P.v('v_and_b32 %s, 1, %s' % (vr(vGO), vr(vG)))
P.v('v_lshl_add_u32 %s, %s, 2, %s' % (vr(vGO), vr(vGO), vr(vHI5)))
P.v('v_lshl_add_u32 %s, %s, 2, %s' % (vr(U0), vr(vGO), sr(sT0)))
P.v('v_lshl_add_u32 %s, %s, 10, v16' % (vr(vXO), vr(U0)))
P.v('v_lshlrev_b32 %s, 4, %s' % (vr(vGO), vr(vGO)))
print('argument-free prologue ops', len(P))
for (c, f) in P[:OPT['NPK']]:
    f()
S('s_cmp_eq_u32 %s, 0', sPH)
stamp('pre')
A.wait_lg0()
stamp('karg')
S('s_cselect_b64 %s, %s, %s', sr(dB, 2), sr(pBRE, 2), sr(pBIM, 2))
S('s_mov_b64 %s, %s', sr(dX, 2), sr(pX, 2))
S('s_mov_b64 %s, %s', sr(dWS, 2), sr(pWS, 2))
lre, lim, ldt, vEP = 11, 12, 13, 14
if OPT['CT'] and OPT['CTP'] == 0:
    S('s_mov_b64 %s, %s', sr(dW1, 2), sr(pW1, 2))
coop_touch(0)
A.vmem('global_load_ushort %s, v9, %s' % (vr(lre), sr(pLRE, 2)), 'lam')
A.vmem('global_load_ushort %s, v9, %s' % (vr(lim), sr(pLIM, 2)), 'lam')
A.vmem('global_load_ushort %s, v9, %s' % (vr(ldt), sr(pLDT, 2)), 'lam')
A.vmem('buffer_load_dword %s, v10, %s, 0 offen sc1' % (vr(vEP), sr(dWS, 4)), 'lam')
if not (OPT['CT'] and OPT['CTP'] == 0):
    S('s_mov_b64 %s, %s', sr(dW1, 2), sr(pW1, 2))
coop_touch(1)
srow = [('D', lambda i=i: A.vmem('buffer_load_dwordx4 %s, %s, %s, %s offen offset:%d' % (vr(SR + 4 * i, 4), vr(vSA), sr(dX, 4), sr(sT2 if OPT['SRP'] else sM8), 512 * i), 'srow')) for i in range(2)]
if OPT['SRP']:
    S('s_mov_b32 %s, %s', sT2, sM8)
else:
    for (c, f) in srow:
        f()
S('s_mov_b64 %s, %s', sr(dO, 2), sr(pB1, 2))
def b1_loads():
    o = Ops()
    for v in range(3):
        o.f(lambda v=v: A.vmem('buffer_load_dwordx2 %s, v15, %s, 0 offen offset:%d' % (vr(B1 + 2 * v, 2), sr(dO, 4), 64 * v), 'b1'), 2)
    o.f(lambda: A.vmem('global_load_dwordx2 a[248:249], v16, %s' % sr(pDSK, 2), 'b1'), 2)
    o.f(lambda: A.vmem('global_load_dwordx2 a[250:251], v16, %s' % sr(pB2, 2), 'b1'), 2)
    o.s('s_mov_b32 %s, 0x80000', dO + 2)
    o.f(lambda: FQ.open.add('b1'), 0)
    return o
if OPT['B1P'] == -1:
    for (c, f) in b1_loads():
        f()
if OPT['PB']:
    e('s_barrier')
DQ.add(d0[3:])
if OPT['SRP'] == 1:
    DQ.add(srow)
if OPT['B1P'] == 0:
    DQ.add(b1_loads())
stamp('sm')
DQ.popD(OPT['D0A'])
AUTO.update(on=True, any=True, int=OPT['PINT'], nxt=AUTO['t'])
S('s_mov_b64 %s, %s', sr(dW2, 2), sr(pW2, 2))
S('s_lshl_b32 %s, %s, 13', sM8, sW)
for (c, f) in P[OPT['NPK']:]:
    f()
S('s_lshl_b64 %s, 15, %s', sr(sPM, 2), sU0)
S('s_lshl1_add_u32 %s, %s, %s', sT1, sRB, sKH)
S('s_lshl3_add_u32 %s, %s, %s', sGR, sT1, sTH)
S('s_lshl2_add_u32 %s, %s, %s', sGR, sGR, sPH)
S('s_lshl_b32 %s, %s, 5', sGR, sGR)
S('s_add_u32 %s, %s, %s', sGR, sGR, hex(WS_G + 8))
S('s_lshl1_add_u32 %s, %s, %s', sT0, sJ, sPH)
S('s_lshl_b32 %s, %s, 12', sT0, sT0)
S('s_add_u32 %s, %s, %s', sSG, sT0, hex(WS_SG))
S('s_lshl_b32 %s, %s, 8', sSGO, sRB)
S('s_add_u32 %s, %s, %s', sSGO, sSGO, sSG)
S('s_lshl1_add_u32 %s, %s, %s', sT1, sRB, sTH)
S('s_mul_i32 %s, %s, %s', sT1, sT1, str(HR))
S('s_add_u32 %s, %s, %s', sHS, sT0, sT1)
S('s_add_u32 %s, %s, %s', sHS, sHS, hex(WS_H + 88 * 2048))
S('s_add_u32 %s, %s, %s', sHM, sJT, sPH)
S('s_lshl_b32 %s, %s, 11', sHM, sHM)
S('s_add_u32 %s, %s, %s', sHM, sHM, sT1)
S('s_add_u32 %s, %s, %s', sHM, sHM, hex(WS_H))
S('s_lshl4_add_u32 %s, %s, %s', sFL, sRB, sJ)
S('s_lshl2_add_u32 %s, %s, %s', sFL, sFL, sW)
S('s_lshl_b32 %s, %s, 5', sF0, sFL)
S('s_add_u32 %s, %s, %s', sF0, sF0, hex(WS_G))
S('s_lshl_b32 %s, %s, 7', sFL, sFL)
S('s_add_u32 %s, %s, 1', sF1, sJ)
S('s_and_b32 %s, %s, 3', sF1, sF1)
sCA, sCB = 0, 1
if OPT['SWP']:
    S('s_bfe_u32 %s, %s, %s', sCA, sC, hex(0x10000 + OPT['SWB']))
    S('s_lshl_b32 %s, %s, 12', sCA, sCA)
    S('s_xor_b32 %s, %s, 0x1000', sCB, sCA)
def late_scalars():
    S('s_lshr_b32 %s, %s, 14', sT0, sWS)
    S('s_lshl_b32 %s, %s, 11', sT0, sT0)
    S('s_add_u32 %s, %s, %s', sT0, sT0, hex(WS_H))
    S('s_lshl2_add_u32 %s, %s, %s', sT2, sKH, sW)
    S('s_lshl_b32 %s, %s, 14', sT2, sT2)
    S('s_add_u32 %s, %s, %s', sT2, sT2, hex(WS_H + 88 * 2048))
    S('s_lshl1_add_u32 %s, %s, %s', sT1, sRB, sKH)
    S('s_mul_i32 %s, %s, %s', sT3, sT1, str(HR))
    S('s_add_u32 %s, %s, %s', sH2, sT3, sT0)
    S('s_add_u32 %s, %s, %s', sP2, sT3, sT2)
    S('s_xor_b32 %s, %s, 1', sT3, sT1)
    S('s_mul_i32 %s, %s, %s', sT3, sT3, str(HR))
    S('s_add_u32 %s, %s, %s', sH1, sT3, sT0)
    S('s_add_u32 %s, %s, %s', sP1, sT3, sT2)
    S('s_lshl1_add_u32 %s, %s, %s', sPA, sT1, sTH)
    S('s_lshl4_add_u32 %s, %s, %s', sPA, sPA, sPH)
    S('s_lshl_b32 %s, %s, 7', sPA, sPA)
    S('s_add_u32 %s, %s, %s', sPA, sPA, hex(WS_FA))
    S('s_lshl2_add_u32 %s, %s, %s', sPB, sT1, sW)
    S('s_lshl_b32 %s, %s, 10', sPB, sPB)
    S('s_add_u32 %s, %s, %s', sPB, sPB, hex(WS_FB))
    S('s_lshl_b32 %s, %s, %s', sPX, sGW, '11' if OPT['PH'] else '12')
    S('s_add_u32 %s, %s, %s', sPX, sPX, hex(WS_PX))
    e('v_and_b32 %s, 7, %s' % (vr(vPF), vr(vLANE)))
    e('v_lshlrev_b32 %s, 8, %s' % (vr(vPF), vr(vPF)))
stamp('prep')
print('DQ left after prep', len(DQ.q))
DQ.flush()
AUTO.update(on=False, any=False, int=OPT['EINT'])
def w_prefetch():
    o = Ops()
    def f():
        e('s_mov_b64 exec, 0x7ff')
        A.vmem('buffer_load_dword %s, %s, %s, %s offen' % (vr(vSCR), vr(vPW), sr(dW2, 4), sr(sWS)), 'touch')
        e('s_mov_b64 exec, %s' % sr(sPM, 2))
        for p in (pCRE, pCIM):
            S('s_mov_b64 %s, %s', sr(dO, 2), sr(p, 2))
            A.vmem('buffer_load_dword %s, %s, %s, %s offen' % (vr(vSCR), vr(vCT), sr(dO, 4), sr(sCO)), 'touch')
        e('s_mov_b64 exec, -1')
    o.f(f, 8)
    return o
if OPT['WPF'] == -2:
    w_prefetch()[0][1]()
stamp('d0')
if OPT['X'] & 8192:
    A.wait_vm('lam')
    stamp('ar0')
    A.wait_vm('b1')
    stamp('ar1')
    A.wait_vm('st0')
    stamp('arr')
touch_pages(1)
A.wait_vm('lam')
stamp('lam')
LOG2E = math.log2(math.e)
e('v_readfirstlane_b32 %s, %s' % (sr(sTAG), vr(vEP)))
for r in (lre, lim, ldt):
    e('v_lshlrev_b32 %s, 16, %s' % (vr(r), vr(r)))
e('v_mul_f32 %s, %s, %s' % (vr(ldt), f2u(LOG2E), vr(ldt)))
e('v_exp_f32 %s, %s' % (vr(ldt), vr(ldt)))
S('s_add_u32 %s, %s, 1', sTAG, sTAG)
e('v_add_u32 %s, 1, %s' % (vr(vTAG), vr(vEP)))
S('s_lshl_b32 %s, %s, 1', sT0, sW)
e('v_add_u32 v1, %s, %s' % (sr(sT0), vr(vHI5)))
e('v_cvt_pk_bf16_f32 %s, %s, %s' % (vr(ldt), vr(ldt), vr(ldt)))
e('v_cvt_f32_u32 v2, v1')
e('v_lshlrev_b32 %s, 16, %s' % (vr(ldt), vr(ldt)))
e('v_cmp_lt_u32 vcc, 4, v1')
e('v_mul_u32_u24 v3, %d, v1' % TROW)
e('v_mul_f32 v5, %s, %s' % (vr(ldt), vr(lre)))
e('v_mul_f32 v6, %s, %s' % (vr(ldt), vr(lim)))
e('v_lshl_add_u32 v3, %s, 2, v3' % vr(vLO5))
e('v_mul_f32 v5, %s, v5' % f2u(LOG2E))
e('v_mul_f32 v6, 0.15915494, v6')
e('v_add_u32 v3, %d, v3' % TAB)
e('v_mul_f32 v20, 4.0, v2')
e('v_add_f32 v21, %s, v20' % f2u(32.0))
e('v_mul_f32 v22, %s, v2' % f2u(128.0))
e('v_max_f32 v22, %s, v22' % f2u(64.0))
e('v_add_f32 v23, -4.0, v2')
e('v_cndmask_b32 v22, v22, v23, vcc')
for r in range(3):
    e('v_mul_f32 v%d, v%d, v5' % (24 + r, 20 + r))
    e('v_mul_f32 v%d, v%d, v6' % (28 + r, 20 + r))
for r in range(3):
    e('v_exp_f32 v%d, v%d' % (24 + r, 24 + r))
    e('v_rndne_f32 v%d, v%d' % (20 + r, 28 + r))
for r in range(3):
    e('v_sub_f32 v%d, v%d, v%d' % (28 + r, 28 + r, 20 + r))
for r in range(3):
    e('v_cos_f32 v%d, v%d' % (20 + r, 28 + r))
    e('v_sin_f32 v%d, v%d' % (28 + r, 28 + r))
for r in range(3):
    e('v_mul_f32 v%d, v%d, v%d' % (20 + r, 20 + r, 24 + r))
    e('v_mul_f32 v%d, v%d, v%d' % (28 + r, 28 + r, 24 + r))
for r in range(3):
    A.ds('ds_write_b32 v3, v%d offset:%d' % (20 + r, 8 * r * TROW), 'tab')
    A.ds('ds_write_b32 v3, v%d offset:%d' % (28 + r, 8 * r * TROW + 128), 'tab')
lab = newlab('ncf')
S('s_cmp_lg_u32 %s, 2', sW)
e('s_cbranch_scc1 %s' % lab)
e('v_mul_f32 v24, %s, %s' % (vr(lre), vr(lre)))
e('v_fma_f32 v24, %s, %s, v24' % (vr(lim), vr(lim)))
e('v_rcp_f32 v24, v24')
e('v_add_f32 v25, -1.0, v22')
e('v_mul_f32 v26, v25, %s' % vr(lre))
e('v_mul_f32 v27, v30, %s' % vr(lre))
e('v_add_f32 v24, v24, v24')
e('v_fma_f32 v26, v30, %s, v26' % vr(lim))
e('v_fma_f32 v27, -v25, %s, v27' % vr(lim))
e('v_mul_f32 v26, v26, v24')
e('v_mul_f32 v27, v27, v24')
e('s_mov_b32 exec_lo, 0')
e('ds_write_b32 v3, v26 offset:%d' % (19 * TROW))
e('ds_write_b32 v3, v27 offset:%d' % (19 * TROW + 128))
e('s_mov_b32 exec_lo, -1')
A.label(lab)
stamp('tab')
R_L64, R_L512, R_L1, R_L2, R_L3, R_CF = 16, 20, 21, 22, 23, 24

def stat_compute_ops():
    o = Ops()
    t = SR + 8
    o.f(lambda: A.wait_vm('srow'))
    o.v('v_dot2_f32_bf16 v%d, v%d, v%d, 0' % (t, SR, ONE), 2)
    o.v('v_dot2_f32_bf16 v%d, v%d, v%d, 0' % (t + 1, SR, SR), 2)
    for i in range(1, 8):
        o.v('v_dot2_f32_bf16 v%d, v%d, v%d, v%d' % (t, SR + i, ONE, t), 2)
        o.v('v_dot2_f32_bf16 v%d, v%d, v%d, v%d' % (t + 1, SR + i, SR + i, t + 1), 2)
    for sh in (1, 2, 4, 8):
        for r in (t, t + 1):
            o.v('v_add_f32_dpp v%d, v%d, v%d row_shr:%d row_mask:0xf bank_mask:0xf bound_ctrl:0' % (r, r, r, sh))
    for r in (t, t + 1):
        o.v('v_add_f32_dpp v%d, v%d, v%d row_bcast:15 row_mask:0xa bank_mask:0xf' % (r, r, r))
    mean, var, sb, rs, m2, v2_, mb = t, t + 1, t + 2, t + 3, t + 8, t + 9, t + 10
    g0 = t + 4
    def rnd(d, s):
        o.v('v_cvt_pk_bf16_f32 v%d, v%d, v%d' % (d, s, s))
        o.v('v_lshlrev_b32 v%d, 16, v%d' % (d, d))
    o.v('v_mul_f32 v%d, %s, v%d' % (mean, f2u(1.0 / 512), mean))
    o.v('v_mul_f32 v%d, %s, v%d' % (var, f2u(1.0 / 512), var))
    o.v('v_fma_f32 v%d, -v%d, v%d, v%d' % (var, mean, mean, var))
    o.v('v_max_f32 v%d, 0, v%d' % (var, var))
    rnd(mb, mean)
    rnd(sb, var)
    o.v('v_add_f32 v%d, %s, v%d' % (sb, f2u(1e-5), sb))
    rnd(sb, sb)
    o.v('v_sqrt_f32 v%d, v%d' % (sb, sb), 2)
    o.v('v_sub_f32 v%d, v%d, v%d' % (m2, mean, mb))
    rnd(sb, sb)
    o.v('v_rcp_f32 v%d, v%d' % (rs, sb), 2)
    o.v('v_cvt_pk_bf16_f32 v%d, v%d, v%d' % (g0 + 2, mb, sb))
    o.v('v_mul_f32 v%d, v%d, v%d' % (m2, m2, rs))
    o.v('v_mul_f32 v%d, v%d, v%d' % (v2_, var, rs))
    rnd(m2, m2)
    o.v('v_mul_f32 v%d, v%d, v%d' % (v2_, v2_, rs))
    o.v('v_fma_f32 v%d, v%d, v%d, v%d' % (g0, m2, sb, mb))
    rnd(v2_, v2_)
    o.v('v_add_f32 v%d, %s, v%d' % (v2_, f2u(1e-5), v2_))
    rnd(v2_, v2_)
    o.v('v_sqrt_f32 v%d, v%d' % (v2_, v2_), 2)
    o.v('v_mov_b32 v%d, %s' % (g0 + 3, sr(sTAG)))
    rnd(v2_, v2_)
    o.v('v_mul_f32 v%d, v%d, v%d' % (g0 + 1, v2_, sb))
    o.s('s_lshl_b32 %s, %s, 5', sT0, sW)
    o.s('s_add_u32 %s, %s, %s', sT0, sT0, str(CSX))
    o.v('v_lshl_add_u32 v%d, %s, 4, %s' % (t, vr(vHI5), sr(sT0)))
    o.v('v_add_u32 v%d, %d, %s' % (SR, CSX, vr(vL16)))
    o.v('s_mov_b32 exec_lo, 0x80000000')
    o.v('s_mov_b32 exec_hi, 0x80000000')
    o.f(lambda: A.ds('ds_write_b128 v%d, %s offset:%d' % (t, vr(g0, 4), 0), 'gw'))
    o.v('s_mov_b64 exec, -1')
    o.f(lambda: stamp('gs'))
    o.s('s_lshl1_add_u32 %s, %s, %s', sD0, sRB, sTH)
    o.s('s_lshl_b32 %s, %s, 10', sD0, sD0)
    o.s('s_add_u32 %s, %s, %s', sD0, sD0, hex(WS_G))
    o.v('v_lshlrev_b32 %s, 4, %s' % (vr(vSA), vr(vLO4)))
    return o
if OPT['WPF'] == -1:
    w_prefetch()[0][1]()
DQ.add(stage_dma(1))
DQ.popD(OPT['D1A'])
for (c, f) in stat_compute_ops():
    f()
touch_pages(2)
if OPT['WPF'] == -3:
    w_prefetch()[0][1]()
DQ.popD(OPT['D1B'] - OPT['D1A'])
A.wait_lg0()
stamp('d1')
def b1_ops():
    o = Ops()
    o.f(lambda: A.wait_vm('b1'), 0)
    for v in range(3):
        for hh in range(2):
            o.v('v_lshlrev_b32 %s, 16, %s' % (vr(BU + 4 * v + 2 * hh), vr(B1 + 2 * v + hh)))
            o.v('v_and_b32 %s, 0xffff0000, %s' % (vr(BU + 4 * v + 2 * hh + 1), vr(B1 + 2 * v + hh)))
    return o
def stat_loads():
    return [('D' if OPT['STD'] else 2, lambda T=T: A.vmem('buffer_load_dwordx4 %s, %s, %s, %s offen offset:%d sc1' % (vr(ST + 4 * T, 4), vr(vSA), sr(dWS, 4), sr(sD0), 256 * T), 'stat')) for T in range(4)]
def stat_issue():
    for (c, f) in stat_loads():
        f()
def stat_check(e=e):
    t = TMP
    for T in range(4):
        e('v_xor_b32 v%d, %s, %s' % (t + T, sr(sTAG), vr(ST + 4 * T + 3)))
    e('v_or3_b32 v%d, v%d, v%d, v%d' % (t, t, t + 1, t + 2))
    e('v_or_b32 v%d, v%d, v%d' % (t, t, t + 3))
    e('v_cmp_ne_u32 vcc, 0, v%d' % t)
C0 = -2.0 * math.sqrt(2.0 / math.pi) * math.log2(math.e)
def stat_derive_ops():
    o = Ops()
    o.f(lambda: A.wait_vm('stat'))
    stat_check(o.v)
    o.f(lambda: retry_loop('st', stat_issue, stat_check, 58, False), 2)
    for T in range(4):
        b = ST + 4 * T
        o.v('v_rcp_f32 v%d, v%d' % (TMP + T, b + 1), 2)
        o.v('v_lshlrev_b32 v%d, 16, v%d' % (SS + 2 * T, b + 2))
        o.v('v_and_b32 v%d, 0xffff0000, v%d' % (SS + 2 * T + 1, b + 2))
    for T in range(4):
        b = ST + 4 * T
        o.v('v_rcp_f32 v%d, v%d' % (SS + 2 * T + 1, SS + 2 * T + 1), 2)
        o.v('v_mul_f32 v%d, %s, v%d' % (b + 2, f2u(C0), TMP + T))
        o.v('v_mul_f32 v%d, v%d, v%d' % (b + 3, TMP + T, TMP + T))
    for T in range(4):
        b = ST + 4 * T
        o.v('v_mul_f32 v%d, v%d, v%d' % (b + 3, b + 3, b + 2))
        o.v('v_mul_f32 v%d, %s, v%d' % (b + 3, f2u(0.044715), b + 3))
    return o

TOFF = [6 * (st & 3) + 2 * (st >> 2) for st in range(11)]
KS = [0]
def w_prefetch_cls(k):
    def f():
        lab = newlab('pf')
        if OPT['WCL'] == 4:
            S('s_cmp_lg_u32 %s, %s', sRBL, str(k))
        else:
            S('s_bitcmp%d_b32 %%s, 0' % (1 - k), sRBL)
        e('s_cbranch_scc1 %s' % lab)
        e('s_mov_b64 exec, 0x7ff')
        A.vmem('buffer_load_dword %s, %s, %s, %s offen' % (vr(vSCR), vr(vPW), sr(dW2, 4), sr(sWS)), 'touch', opt=True)
        e('s_mov_b64 exec, %s' % sr(sPM, 2))
        for p in (pCRE, pCIM):
            S('s_mov_b64 %s, %s', sr(dO, 2), sr(p, 2))
            A.vmem('buffer_load_dword %s, %s, %s, %s offen' % (vr(vSCR), vr(vCT), sr(dO, 4), sr(sCO)), 'touch', opt=True)
        e('s_mov_b64 exec, -1')
        A.label(lab)
    return [(4, f)]
def w2_step(st):
    o = Ops()
    odd = 0
    if st == 0:
        o.s('s_lshl_b32 %s, %s, 11', sSX, sW)
        o.s('s_add_u32 m0, %s, %s', sSX, str(PE))
    elif st <= 8:
        odd = (st - 1) & 1
        if not odd:
            o.s('s_add_u32 m0, %s, %s', sM8, str(((st - 1) // 4) * SLOT + ((st - 1) % 4) * 2048))
    else:
        o.s('s_add_u32 m0, %s, %s', sME, str((st - 9) * 2 * SLOT))
    if OPT['SWP'] & 1 and st < 8:
        o.s('s_lshl3_add_u32 %s, %s, %s', sSW, sCB if st >> 2 else sCA, sWS)
        o.s('s_add_u32 %s, %s, %s', sSW, sSW, str(TOFF[st & 3] * 16384 - odd * 2048))
    else:
        o.s('s_add_u32 %s, %s, %s', sSW, sWS, str(TOFF[st] * 16384 - odd * 2048))
    for i in range(2):
        o.f(lambda i=i: A.vmem('buffer_load_dwordx4 %s, %s, %s offen offset:%d lds' % (vr(vW2 + i), sr(dW2, 4), sr(sSW), odd * 2048 + i * 1024), ('Wa' if st < 10 else 'Wb') if OPT['XG'] else 'W'), 'D')
    return o
def c_job(part):
    o = Ops()
    o.s('s_mov_b64 %s, %s', sr(dB, 2), sr(pCIM if part else pCRE, 2))
    if part == 0:
        o.v('v_subrev_u32 %s, %s, %s' % (vr(vB), sr(sCG), vr(vB)))
        o.v('v_subrev_u32 %s, %s, %s' % (vr(vB + 1), sr(sCG), vr(vB + 1)))
    for k in range(4):
        odd = k & 1
        if not odd:
            o.s('s_add_u32 m0, %s, %s', sM8, str((2 + part) * SLOT + k * 2048))
        o.s('s_add_u32 %s, %s, %s', sSX, sCO, str(k * 16384 - odd * 2048))
        for i in range(2):
            o.f(lambda i=i, odd=odd: A.vmem('buffer_load_dwordx4 %s, %s, %s offen offset:%d lds' % (vr(vB + i), sr(dB, 4), sr(sSX), odd * 2048 + i * 1024), 'Wc%d' % part if OPT['XG'] else 'Wd' if part + OPT['DEF'] >= 2 else 'W'), 'D')
    return o
QR = [0, 2, 8, 10]
def resx_loads():
    o = Ops()
    for q in range(4):
        o.f(lambda q=q: A.vmem('buffer_load_dwordx2 %s, %s, %s, 0 offen offset:%d' % (ar(240 + 2 * q, 2), vr(vXO), sr(dX, 4), q * 1024), 'res'), 'D' if q & 1 else 2)
    return o
def resg_loads():
    return [(2, lambda q=q: A.vmem('buffer_load_dword %s, %s, %s, %s offen offset:%d sc1' % (ar(252 + q), vr(vGO), sr(dWS, 4), sr(sGR), q * 256), 'res')) for q in range(4)]

for v in range(1, 8):
    if v > 1:
        sd = stage_dma(v)
        if v == OPT['WPF'] and OPT['WPK']:
            sd, rest = sd[:-5], sd[-5:]
        DQ.add(sd, None if v < 4 else 'mid%d' % (v - 4))
    if OPT['WCL'] == 4 and OPT['WPF'] > 0 and 0 <= v - OPT['WPF'] < 4:
        DQ.add(w_prefetch_cls(v - OPT['WPF']))
    if OPT['WCL'] in (2, 3) and v - OPT['WPF'] in (0, OPT['WCL']):
        DQ.add(w_prefetch_cls(int(v > OPT['WPF'])))
    if v == OPT['WPF'] and not OPT['WCL']:
        DQ.add([(0, lambda: print('prefetch at step', KS[0]))])
        DQ.add(w_prefetch())
        if OPT['WPK']:
            DQ.add(rest)
    if v == OPT['STL']:
        DQ.add(stat_loads())
        DQ.add([(0, lambda: FQ.open.add('stl'))])
o = Ops()
o.s('s_mov_b64 %s, %s', sr(dO, 2), sr(pOUT, 2))
o.s('s_mov_b32 %s, 0x400000', dO + 2)
def tlb_warm():
    e('v_lshlrev_b32 %s, 1, %s' % (vr(vCT), vr(vXO)))
    S('s_lshl_b32 %s, %s, 11', sT0, sGW)
    S('s_add_u32 %s, %s, %s', sT0, sT0, hex(WS_PX))
    e('s_mov_b64 exec, 1')
    if OPT['TW'] & 1:
        A.vmem('buffer_load_dword %s, %s, %s, 0 offen' % (vr(vSCR), vr(vCT), sr(dO, 4)), 'touch')
    if OPT['TW'] & 2:
        A.vmem('buffer_load_dword %s, %s, %s, %s offen sc1' % (vr(vSCR), vr(vL16), sr(dWS, 4), sr(sHM)), 'touch')
        A.vmem('buffer_load_dword %s, %s, %s, %s offen sc1' % (vr(vSCR), vr(vL16), sr(dWS, 4), sr(sHS)), 'touch')
    if OPT['TW'] & 4:
        A.vmem('buffer_load_dword %s, %s, %s, %s offen sc1' % (vr(vSCR), vr(vL16), sr(dWS, 4), sr(sT0)), 'touch')
    e('s_mov_b64 exec, -1')
if OPT['TW']:
    o.f(tlb_warm, 4)
DQ.add(o)
DQ.add([(0, lambda: (print('st7 issued at step', KS[0]), OPT.update(DINT=OPT['WINT'])))])
DQ.add(w2_step(0), 'k%d' % OPT['WG0'])
for st in range(1, 10):
    DQ.add(w2_step(st), 'mid4' if st < 5 else 'mid5')
D2 = Q()
D3 = Q() if OPT['DP'] else D2
if OPT['DEF'] < 2:
    DQ.add(c_job(0), 'mid%d' % OPT['CJ0'])
else:
    D3.add(c_job(0))
if not OPT['DEFR'] & 1:
    DQ.add(resx_loads())
DQ.add(w2_step(10), 'mid7')
if OPT['DEF'] < 1:
    DQ.add(c_job(1), 'mid7')
else:
    D3.add(c_job(1))
if OPT['DEFR'] & 1:
    D2.add(resx_loads())
FQ.add([(0, lambda: None)], 'b1')
FQ.add(b1_ops(), 'mid%d' % OPT['B1G'])
FQ.add([(0, lambda: None)], 'stl')
FQ.add(stat_derive_ops(), 'mid%d' % OPT['SDG'])
if OPT['BF']:
    FQ.add([(0, lambda: print('bias from step', KS[0]))])
    for v in range(3):
        o = Ops()
        for T in range(4):
            for h in range(2):
                r = ACC + 32 + 16 * v + 4 * T + 2 * h
                o.v('v_pk_fma_f32 %s, %s, %s, %s op_sel:[0,1,0] op_sel_hi:[1,1,1]' % (vr(r, 2), vr(BU + 4 * v + 2 * h, 2), vr(ST + 4 * T, 2), vr(r, 2)))
        FQ.add(o, 'bf%d' % (v + 2))
    FQ.add([(0, lambda: print('bias done at step', KS[0]))])

AD, vCA = (156, 164) if OPT['XG'] else (32, 40)
def xw_addr():
    o = Ops()
    o.s('s_lshl_b32 %s, %s, 11', sT0, sW)
    o.s('s_add_u32 %s, %s, %s', sT0, sT0, str(PE))
    o.s('s_add_u32 %s, %s, %s', sT1, sME, str(2 * SLOT))
    for i, sb in enumerate((sT0, sM8, sME, sT1)):
        o.v('v_add_u32 %s, %s, %s' % (vr(AD + 2 * i), sr(sb), vr(vTRL)))
        o.v('v_xor_b32 %s, 64, %s' % (vr(AD + 2 * i + 1), vr(AD + 2 * i)))
    o.v('v_bfe_u32 %s, %s, 1, 3' % (vr(vCA), vr(vLANE)))
    o.v('v_xor_b32 %s, %s, %s' % (vr(vCA), vr(vCA), vr(vHI5)))
    o.v('v_lshlrev_b32 %s, 4, %s' % (vr(vCA), vr(vCA)))
    o.v('v_lshl_add_u32 %s, %s, 7, %s' % (vr(vCA), vr(vLO5), vr(vCA)))
    o.s('s_add_u32 %s, %s, %s', sT0, sM8, str(2 * SLOT))
    o.v('v_add_u32 %s, %s, %s' % (vr(vCA), sr(sT0), vr(vCA)))
    if OPT['SWP'] & 2:
        o.s('s_lshr_b32 %s, %s, 6', sT0, sCA)
        o.v('v_xor_b32 %s, %s, %s' % (vr(vCA), sr(sT0), vr(vCA)))
    for sub in range(1, 4):
        o.v('v_xor_b32 %s, %d, %s' % (vr(vCA + sub), 32 * sub, vr(vCA)))
    return o
def xw_w(st, dh, half):
    if st == 0:
        ad, off = AD, 0
    elif st <= 8:
        ad, off = AD + 2, ((st - 1) // 4) * SLOT + ((st - 1) % 4) * 2048
    else:
        ad, off = AD + 4 + 2 * (st - 9), 0
    A.wait_vm('Wa' if st < 10 else 'Wb')
    A.ds('ds_read_b64_tr_b16 %s, %s offset:%d' % (ar(8 * st + 4 * dh + 2 * half, 2), vr(ad + dh), off + half * 512), 'xw')
def xw_1(part, sub, dh):
    A.wait_vm('Wc%d' % part)
    A.ds('ds_read_b128 %s, %s offset:%d' % (ar(8 * (11 + 2 * sub + part) + 4 * dh, 4), vr(vCA + sub), part * SLOT + dh * 4096), 'xw')
if OPT['XG']:
    if OPT['XAD']:
        FQ.add(xw_addr(), 'mid7')
    XQ.add([(1, lambda st=st, dh=dh, half=half: xw_w(st, dh, half)) for st in range(10) for dh in range(2) for half in range(2)], 'x0')
    XQ.add([(2, lambda sub=sub, dh=dh: xw_1(0, sub, dh)) for sub in range(4) for dh in range(2)], 'x1')
    XQ.add([(1, lambda dh=dh, half=half: xw_w(10, dh, half)) for dh in range(2) for half in range(2)], 'x1')
    XQ.add([(2, lambda sub=sub, dh=dh: xw_1(1, sub, dh)) for sub in range(4) for dh in range(2)], 'x2')

RQ = Q()
def rd_x(step, T):
    v, ks = step // 2, step % 2
    slot = v & 3
    return [(1, lambda: A.ds('ds_read_b128 %s, %s offset:%d' % (vr(XF + 16 * ks + 4 * T, 4), vr(XA + 2 * ks + (slot >> 1)), (slot & 1) * SLOT + (T & 1) * PIECE + (T >> 1) * 2048), 'x%d' % step))]
def rd_a(step, a):
    v, ks = step // 2, step % 2
    slot = v & 3
    if a < 2:
        return [(1, lambda: A.ds('ds_read_b128 %s, %s offset:%d' % (vr(AF + 4 * a, 4), vr(BA + 2 * ks + (slot >> 1)), (slot & 1) * SLOT + a * PIECE), 'a%d_%d' % (step, a)))]
    return [(1, lambda half=half: A.ds('ds_read_b64_tr_b16 %s, %s offset:%d' % (vr(AF + 4 * a + 2 * half, 2), vr(WA + 2 * ks + (slot >> 1)), (slot & 1) * SLOT + half * 768 + 64 * (a - 2)), 'a%d_%d' % (step, a))) for half in range(2)]

touch_pages(0)
stamp('tch')
page('st0')
A.wait_vm('st0')
stamp('st0')
e('s_barrier')
RQ.add(rd_a(0, 0))
for T in range(4):
    RQ.add(rd_x(0, T))
for a in range(1, 5):
    RQ.add(rd_a(0, a))
RQ.flush()
A.ds('ds_read_b128 %s, %s' % (vr(SR + 4, 4), vr(SR)), 'gr')
def g_store():
    A.wait_lg('gr')
    lab = newlab('gs')
    S('s_cmp_lg_u32 %s, 0', sW)
    e('s_cbranch_scc1 %s' % lab)
    e('s_mov_b64 exec, 0xff')
    A.vmem('buffer_store_dwordx4 %s, %s, %s, %s offen sc1' % (vr(SR + 4, 4), vr(vL16), sr(dWS, 4), sr(sF0)), 'gs', opt=True)
    e('s_mov_b64 exec, -1')
    A.label(lab)
clk = [0, 0]
def gap(budget, base):
    used = 0
    while used < budget:
        if RQ.ready():
            used += RQ.cost()
            RQ.pop1()
        elif DQ.ready() and (DQ.cost() != 'D' or (clk[0] >= clk[1] and used + OPT['DCOST'] <= max(budget, OPT['DCOST']))):
            if DQ.cost() == 'D':
                used += OPT['DCOST']
                clk[1] = max(clk[1], clk[0] - 2 * OPT['DINT']) + OPT['DINT']
            elif used + DQ.cost() > max(budget, DQ.cost()):
                break
            else:
                used += DQ.cost()
                if DQ.cost() >= 2:
                    clk[1] += OPT['SMP']
            DQ.pop1()
        elif FQ.ready() and used + FQ.cost() <= max(budget, FQ.cost()):
            used += FQ.cost()
            FQ.pop1()
        else:
            break
    clk[0] += max(base, 8 + 4 * used)

K0, K1, SA, SE = 116, 124, 136, 144
def tab_rd(dst, row, tag, addr=None):
    for part in range(2):
        A.ds('ds_read_b128 %s, %s offset:%d' % (vr(dst + 4 * part, 4), vr(vTB if addr is None else addr), row * TROW + part * 128), tag)
for step in range(16):
    v, ks = step // 2, step % 2
    gate = 'mid%d' % v if ks == 1 else None
    for a in range(5):
        KS[0] = step + a / 5
        DQ.open.add('k%d' % (5 * step + a))
        FQ.open -= set('bf%d' % u for u in range(5))
        FQ.open |= set('bf%d' % ((a - u) % 5) for u in (2, 3))
        if ks == 1 and a == 2:
            for u in range(5):
                assert DSN.get('a%d_%d' % (step, u), 0) == (1 if u < 2 else 2), (step, u)
            if v == 7:
                assert DSN.get('csw', 0) == 1 and DSN.get('cso', 0) == 5
            page('aA' if v == OPT['PGA'] else 'a%d' % v)
            A.wait_lg0()
            stamp('a%d' % v)
            if v < 7:
                A.wait_vm('st%d' % (v + 1))
                if v in (1, 3, 6):
                    stamp('b%d' % v)
            if not OPT['X'] & 2:
                e('s_barrier')
            clk[0] += 40
            for q in (DQ, FQ, RQ):
                q.open.add('mid%d' % v)
            if v == 7:
                for q in range(5):
                    RQ.add([(1, lambda q=q: A.ds('ds_read_b128 %s, %s offset:%d' % (vr((XF + 4 * q) if q < 4 else AF, 4), vr(vCR), 64 * q), 'csr'))])
        if a in (0, 2, 4):
            assert DSN.get('x%d' % step, 0) == 4, (step, a)
            for u in (a, a + 1):
                assert u > 4 or DSN.get('a%d_%d' % (step, u), 0) == (1 if u < 2 else 2), (step, a, u)
            A.wait_lg(['x%d' % step] + ['a%d_%d' % (step, u) for u in (a, a + 1)])
        if OPT['XS'] and step in (14, 15) and a == 0:
            stamp('s%d' % step)
        if step == 0 and a == 4:
            g_store()
        ms = []
        if ks == 0 and not (OPT['X'] & 1024 and step):
            ms.append((ONE, CS + 4 * a))
        for T in range(4):
            if a < 2 and step >= 16 - OPT['DS'] and T < 3 + (ks == 0) - (a == 0 and ks == 0):
                continue
            ms.append((ACC + 16 * a + 4 * T, XF + 16 * ks + 4 * T))
        for i, (acc, b) in enumerate(ms):
            e('v_mfma_f32_16x16x32_bf16 %s, %s, %s, %s' % (vr(acc, 4), vr(AF + 4 * a, 4), vr(b, 4), '0' if step == 0 and (acc != ONE or a == 0) else vr(acc, 4)))
            last = i == len(ms) - 1
            if step < 15:
                if last:
                    RQ.add(rd_a(step + 1, a), gate)
                if (a == 0 and last) if ks == 1 else (a == 0 and i == 1):
                    for T in range(4):
                        RQ.add(rd_x(step + 1, T), gate)
            if step == 15 and a == 0 and i == 0:
                def csw():
                    e('s_mov_b32 exec_lo, 0x1f001f')
                    e('s_mov_b32 exec_hi, 0x1f001f')
                    A.ds('ds_write_b128 %s, %s' % (vr(vCW), vr(ONE, 4)), 'csw')
                    e('s_mov_b64 exec, -1')
                RQ.add([(2, csw)])
                for q in range(5):
                    RQ.add([(1, lambda q=q: A.ds('ds_read_b128 %s, %s offset:%d' % (vr(CS + 4 * q, 4), vr(vCO), 64 * q), 'cso'))])
            bud = OPT['BUD0'] if step < OPT['NB0'] else 2
            if last and a in (1, 3, 4) and not (ks == 1 and a == 3):
                bud = 0 if (ks == 1 and a == 1) else 1
            if bud == 0:
                while RQ.ready():
                    RQ.pop1()
            gap(bud, 16)
print('K loop estimate', clk[0], 'left DQ', len(DQ.q), 'FQ', len(FQ.q))
FQ.open |= set('bf%d' % u for u in range(5))
FQ.flush()
RQ.flush()
stamp('kloop')

if OPT['DEFR'] & 2:
    D2.add([('D', f) for (c, f) in resg_loads()])
else:
    DQ.add(resg_loads(), 'sx')
tab_rd(K0, 1 if OPT['CL'] else R_CF, 'k0')
tab_rd(K1, R_L1, 'k1')
A.wait_lg('csr')
AUTO['nxt'] = AUTO['t'] + max(0, clk[1] - clk[0])
auto(True)
for q in range(5):
    src = (XF + 4 * q) if q < 4 else AF
    for h in (0, 2):
        e('v_pk_add_f32 %s, %s, %s' % (vr(CS + 4 * q + h, 2), vr(CS + 4 * q + h, 2), vr(src + h, 2)))
LOB = 'op_sel:[0,0,0] op_sel_hi:[1,0,1]'
HIB = 'op_sel:[0,1,0] op_sel_hi:[1,1,1]'
RR, II = ACC, ACC + 16
tq = XF
tZ, tO = tq, B1
def gelu_tile(v, tag, mid=None):
    for hh in range(2):
        prs = [(2 * hh + a, h) for a in range(2) for h in range(2)]
        accp = lambda T, h: ACC + 32 + 16 * v + 4 * T + 2 * h
        for (T, h) in prs if not OPT['BF'] else []:
            e('v_pk_fma_f32 %s, %s, %s, %s %s' % (vr(accp(T, h), 2), vr(BU + 4 * v + 2 * h, 2), vr(ST + 4 * T, 2), vr(accp(T, h), 2), HIB))
        for (T, h) in prs:
            e('v_pk_fma_f32 %s, %s, %s, %s %s %s' % (vr(accp(T, h), 2), vr(CS + 8 + 4 * v + 2 * h, 2), vr(ST + 4 * T, 2), vr(accp(T, h), 2), LOB, NEG1))
        for i, (T, h) in enumerate(prs):
            e('v_pk_mul_f32 %s, %s, %s' % (vr(tZ + 2 * i, 2), vr(accp(T, h), 2), vr(accp(T, h), 2)))
        for i, (T, h) in enumerate(prs):
            e('v_pk_fma_f32 %s, %s, %s, %s op_sel:[0,1,0] op_sel_hi:[1,1,0]' % (vr(tZ + 2 * i, 2), vr(tZ + 2 * i, 2), vr(ST + 4 * T + 2, 2), vr(ST + 4 * T + 2, 2)))
        for i, (T, h) in enumerate(prs):
            e('v_pk_mul_f32 %s, %s, %s' % (vr(tZ + 2 * i, 2), vr(tZ + 2 * i, 2), vr(accp(T, h), 2)))
        for i in range(8):
            e('v_exp_f32 %s, %s' % (vr(tZ + i), vr(tZ + i)))
        for i, (T, h) in enumerate(prs):
            e('v_pk_fma_f32 %s, %s, %s, %s op_sel:[0,1,1] op_sel_hi:[1,1,1]' % (vr(tZ + 2 * i, 2), vr(tZ + 2 * i, 2), vr(ST + 4 * T, 2), vr(ST + 4 * T, 2)))
        for i in range(8):
            e('v_rcp_f32 %s, %s' % (vr(tZ + i), vr(tZ + i)))
        for i, (T, h) in enumerate(prs):
            e('v_pk_mul_f32 %s, %s, %s' % (vr(tZ + 2 * i, 2), vr(tZ + 2 * i, 2), vr(accp(T, h), 2)))
        o = tO + 4 * hh
        for i in (0, 2, 1, 3):
            e('v_cvt_pk_bf16_f32 %s, %s, %s' % (vr(o + i), vr(tZ + 2 * i), vr(tZ + 2 * i + 1)))
        if mid:
            mid(hh)
        auto(False)
        e('v_permlane16_swap_b32 %s, %s' % (vr(o), vr(o + 2)))
        so = sHM
        if v:
            so = sU0
            if hh == 0:
                S('s_add_u32 %s, %s, %s', sU0, sHM, str(4096 * v))
        if v == 2:
            S('s_cmp_eq_u32 %s, 0', sF1)
        e('v_permlane16_swap_b32 %s, %s' % (vr(o + 1), vr(o + 3)))
        if v == 2:
            lab = newlab('skip')
            e('s_cbranch_scc1 %s' % lab)
        A.vmem('buffer_store_dwordx4 %s, %s, %s, %s offen offset:%d sc1' % (vr(o, 4), vr(vL16), sr(dWS, 4), sr(so), 1024 * hh), tag, opt=(v == 2))
        if v == 2:
            A.label(lab)
        auto(True)
def fep(k):
    if OPT['F3'] and OPT['FEP'] == k:
        on = AUTO['on']
        auto(False)
        A.wait_vm('HE')
        stamp('HEdone')
        flag(WS_FA, 'fa')
        auto(on)
for i, v in enumerate((2, 0, 1)[:OPT['GF']]):
    gelu_tile(v, 'HE' if i < OPT['F3'] else 'HM')
if OPT['GF']:
    print('DQ left after the first GELU tiles', len(DQ.q))
    stamp('ge')
for T in range(4):
    for part in range(2):
        for h in (0, 2):
            r = ACC + 16 * part + 4 * T + h
            e('v_pk_fma_f32 %s, %s, %s, %s %s %s' % (vr(r, 2), vr(CS + 4 * part + h, 2), vr(SS + 2 * T, 2), vr(r, 2), LOB, NEG1))
    if OPT['CL']:
        if T == 0 and not OPT['GF']:
            tab_rd(tq, 2, 'k2')
            tab_rd(tq + 8, 4, 'k3')
        for part in range(2):
            for h in (0, 2):
                r = ACC + 16 * part + 4 * T + h
                e('v_pk_mul_f32 %s, %s, %s op_sel:[0,1] op_sel_hi:[1,1]' % (vr(r, 2), vr(r, 2), vr(SS + 2 * T, 2)))
        continue
    if T == 0:
        A.wait_lg('k0')
    for q in (0, 2, 4, 6):
        e('v_pk_mul_f32 %s, %s, %s op_sel:[0,1] op_sel_hi:[1,1]' % (vr(tq + q, 2), vr(K0 + q, 2), vr(SS + 2 * T, 2)))
    if T == 3:
        tab_rd(K0, 1, 'k0')
    for h in (0, 2):
        e('v_pk_mul_f32 %s, %s, %s' % (vr(tq + 8 + h, 2), vr(RR + 4 * T + h, 2), vr(tq + 4 + h, 2)))
    for h in (0, 2):
        e('v_pk_mul_f32 %s, %s, %s' % (vr(RR + 4 * T + h, 2), vr(RR + 4 * T + h, 2), vr(tq + h, 2)))
    for h in (0, 2):
        e('v_pk_fma_f32 %s, %s, %s, %s %s' % (vr(RR + 4 * T + h, 2), vr(II + 4 * T + h, 2), vr(tq + 4 + h, 2), vr(RR + 4 * T + h, 2), NEG1))
    for h in (0, 2):
        e('v_pk_fma_f32 %s, %s, %s, %s' % (vr(II + 4 * T + h, 2), vr(II + 4 * T + h, 2), vr(tq + h, 2), vr(tq + 8 + h, 2)))
if not OPT['CL'] or OPT['GF']:
    tab_rd(tq, 2, 'k2')
    tab_rd(tq + 8, 4, 'k3')
A.wait_lg('k1')
for T in range(1, 4):
    pk_cfma4(RR + 4 * T, II + 4 * T, RR + 4 * T - 4, II + 4 * T - 4, K1, RR + 4 * T, II + 4 * T)
tab_rd(K1, 8, 'k1')
cur = (RR + 12, II + 12)
L64, L512, P128, S0 = K0, K0 + 2, K0 + 4, K0 + 6
for lv in range(4):
    fep(-20 + lv)
    k = [K0, tq, tq + 8, K1][lv]
    for part in range(2):
        for i in range(4):
            e('v_mov_b32_dpp %s, %s row_shr:%d row_mask:0xf bank_mask:0xf bound_ctrl:0' % (vr(SE + 4 * part + i), vr(cur[part] + i), 1 << lv))
    if lv in (0, 3):
        A.wait_lg(['k3', 'k3', 'k3', 'k1'][lv])
    pk_cfma4(SA, SA + 4, SE, SE + 4, k, cur[0], cur[1])
    cur = (SA, SA + 4)
    if lv == 0:
        for (dst, row, ad) in ((L64, R_L64, vTC), (L512, R_L512, vTC), (P128, 0, vTG)):
            for part in range(2):
                A.ds('ds_read_b32 %s, %s offset:%d' % (vr(dst + part), vr(ad), row * TROW + part * 128), 'kc')
auto(False)
e('s_mov_b32 exec_lo, 0x80008000')
e('s_mov_b32 exec_hi, 0x80008000')
A.ds('ds_write_b128 %s, %s' % (vr(vCR), vr(SA, 4)), 'sx')
A.ds('ds_write_b128 %s, %s offset:64' % (vr(vCR), vr(SA + 4, 4)), 'sx')
e('s_mov_b64 exec, -1')
GR = tq + 12
for part in range(2):
    for i in range(4):
        e('v_mov_b32_dpp %s, %s row_shr:1 row_mask:0xf bank_mask:0xf bound_ctrl:0' % (vr(SE + 4 * part + i), vr(SA + 4 * part + i)))
e('v_mov_b32 %s, %s' % (vr(GR + 2), sr(sTAG)))
e('v_mov_b32 %s, %s' % (vr(GR + 3), sr(sTAG)))
fep(-11)
page('sx')
A.wait_lg0()
e('s_barrier')
A.ds('ds_read2_b32 %s, %s offset0:160 offset1:176' % (vr(S0, 2), vr(vSXR)), 's0')
A.ds('ds_read2_b32 %s, %s offset0:0 offset1:16' % (vr(GR, 2), vr(vSXR)), 's0')
DQ.open.add('sx')
print('DQ left at Spub', len(DQ.q))
lab = newlab('np')
S('s_cmp_eq_u32 %s, 0', sTH)
e('s_cbranch_scc1 %s' % lab)
e('s_waitcnt lgkmcnt(0)')
cfma(GR, GR + 1, S0, S0 + 1, L64, L64 + 1, GR, GR + 1)
e('s_mov_b64 exec, 0xffff')
A.vmem('buffer_store_dwordx4 %s, %s, %s, %s offen sc1' % (vr(GR, 4), vr(vL16), sr(dWS, 4), sr(sSGO)), 'S', opt=True)
e('s_mov_b64 exec, -1')
A.label(lab)
stamp('Spub')
fep(-10)
auto(True)

vQ = 64 if OPT['XG'] else 152
if OPT['XG']:
    assert OPT['LBPOS'] >= 2
    if not OPT['XAD']:
        for (c, f) in xw_addr():
            f()
    XQ.open.add('x0')
    AUTO['xn'] = AUTO['t']
vPD = vWT
def lb_issue():
    for i in range(4):
        A.vmem('buffer_load_dwordx4 %s, %s, %s, %s offen sc1' % (vr(vQ + 4 * i, 4), vr(vPA + i), sr(dWS, 4), sr(sSG)), 'lb')
def lb_check():
    for i in range(4):
        e('v_xor_b32 %s, %s, %s' % (vr(vQ + 4 * i + 3), sr(sTAG), vr(vQ + 4 * i + 2)))
    for i in range(4):
        e('v_cndmask_b32 %s, 0, %s, %s' % (vr(vQ + 4 * i + 3), vr(vQ + 4 * i + 3), sr(sMSK[i], 2)))
    e('v_or3_b32 %s, %s, %s, %s' % (vr(vQ + 3), vr(vQ + 3), vr(vQ + 7), vr(vQ + 11)))
    e('v_or_b32 %s, %s, %s' % (vr(vQ + 3), vr(vQ + 3), vr(vQ + 15)))
    e('v_cmp_ne_u32 vcc, 0, %s' % vr(vQ + 3))
def poll(tag, so):
    return lambda: A.vmem('buffer_load_dword %s, %s, %s, %s offen sc1' % (vr(vPD), vr(vPF), sr(dWS, 4), sr(so)), tag)
def p_check():
    e('v_cmp_ne_u32 vcc, %s, %s' % (sr(sTAG), vr(vPD)))
pa_issue, pb_issue = poll('pa', sPA), poll('pb', sPB)
def lbp(k):
    if k == 5:
        fep(-1)
    if k in (2, 3, 4):
        fep(-k - 1)
    if k == 0:
        print('DQ left at the first HM store', len(DQ.q))
        if OPT['FL0']:
            DQ.flush()
    if k == 6:
        DQ.flush()
    if k == OPT['XC0']:
        XQ.open.add('x1')
    if k == OPT['XC1']:
        DQ.flush()
        XQ.open.add('x2')
    if OPT['LBPOS'] == k and OPT['LBX'] < 0:
        lb_issue()
for i, v in enumerate((2, 0, 1)):
    if i < OPT['GF']:
        continue
    gelu_tile(v, 'HE' if i < OPT['F3'] else 'HM', lambda hh: lbp(2 * i + hh))
    if i < 2:
        stamp('g%d' % i)
stamp('gelu')
auto(False)
fep(-2)
lbp(6)
fep(0)
KP = [tq, tq + 8, CS, CS + 8]
tab_rd(K1, 0, 'kp', vTI)
for T, row in enumerate((R_L1, R_L2, R_L3, 1)):
    tab_rd(KP[T], row, 'kp')
if OPT['CL']:
    tab_rd(ST, R_CF, 'kp')
fep(1)
NR, RING = 22, 152
LD, MF = [], []
SO = [list(range(11)), [8, 9, 10, 0, 1, 2, 3, 4, 5, 6, 7], [0, 1, 2, 3, 8, 9, 10, 4, 5, 6, 7]][OPT['F3']] + list(range(11, 19))
NA = [0, 3, 7][OPT['F3']]
SEG = ((0, 0, 11), (1, 0, OPT['NB1']), (0, 11, 19), (1, OPT['NB1'], 19))
if OPT['F3']:
    assert OPT['N1'] <= min(NA, OPT['NB1'])
    SEG = ((0, 0, NA), (1, 0, OPT['N1']), (0, NA, 11), (1, OPT['N1'], OPT['NB1']), (0, 11, 19), (1, OPT['NB1'], 19))
for (t, s0, s1) in SEG:
    tl = OPT['TL%d' % t] if s1 == 19 else 0
    for s in SO[s0:s1 - tl]:
        for hh in range(2):
            MF += [(len(LD), 0), (len(LD), 1)]
            LD.append((t, s, hh))
    for hh in range(2):
        for dh in range(2):
            MF += [(len(LD) + k, dh) for k in range(tl)]
        LD += [(t, s, hh) for s in range(s1 - tl, s1)]
FS = LD.index((0, 11, 0))
FC = LD.index((0, SO[NA], 0)) if OPT['F3'] else -99
EA = OPT['F3'] and not OPT['EP']
assert FC <= FS - OPT['PBD'] or OPT['LDB']
pc_issue = poll('pc', sPA)
hf = [0]
cur = [None, 0]
def hload():
    f = hf[0]
    t, s, hh = LD[f]
    n = 3
    if f == FC - OPT['PCD'] and not OPT['LDC']:
        S('s_add_u32 %s, %s, %s', sPA, sPA, hex(WS_FC - WS_FA))
        pc_issue()
        n += 3
    if f == FC:
        A.wait_vm('pc')
        retry_loop('pc', pc_issue, p_check, 57)
        stamp('pcok')
        e('v_lshrrev_b32 %s, 1, %s' % (vr(vPF), vr(vPF)))
        n += 4
    if f == FS - OPT['PBD'] and not OPT['LDB']:
        pb_issue()
        n += 2
    if f == FS:
        A.wait_vm('pb')
        retry_loop('pb', pb_issue, p_check, 61)
        stamp('pbok')
        n += 3
    base = (sH2 if t else sH1) if s < 11 else (sP2 if t else sP1)
    off = (TOFF[s] if s < 11 else s - 11) * 2048 + hh * 1024
    cl = None
    if OPT['SWP'] & 1 and s < 8:
        cl, off = ('s_add_u32', sCB if s >> 2 else sCA), TOFF[s & 3] * 2048 + hh * 1024
    if OPT['SWP'] & 2 and s >= 11:
        cl, off = ('s_lshl1_add_u32', sCB if s >= 15 else sCA), off & 8191
    if off < 4096 and not cl:
        so = base
    else:
        so = sHC
        if cur[0] != (base, cl) or not 0 <= off - cur[1] < 4096:
            cur[0], cur[1] = (base, cl), off & ~2047 if cl else off
            if cl:
                S(cl[0] + ' %s, %s, %s', sHC, cl[1], base)
                n += 1
            if cur[1] or not cl:
                S('s_add_u32 %s, %s, %s', sHC, sHC if cl else base, str(cur[1]))
                n += 1
        off -= cur[1]
    A.vmem('buffer_load_dwordx4 %s, %s, %s, %s offen offset:%d%s' % (ar(RING + 4 * (f % NR), 4), vr(vL16), sr(dWS, 4), sr(so), off, '' if OPT['X'] & 16 else ' sc1'), 'h%d' % f)
    hf[0] += 1
    return n

RD, RES, PXR, pT, TB = 128, 192, 208, 224, 240
vOO, vRW, vRR, vRR2 = vGO, vCW, vCR, vSXR
TILE = 64 * 272
def xw_block(k):
    if OPT['XWP'] != k:
        return
    if OPT['XG']:
        D2.popD(2)
        print('XQ left', len(XQ.q))
        XQ.open.update(['x0', 'x1', 'x2'])
        XQ.flush()
        return
    for (c, f) in xw_addr():
        f()
    D2.popD(2)
    fep(2)
    if OPT['XL']:
        A.wait_vm('W')
    xw_w2(range(min(11, OPT['XL'])))
    if OPT['XL'] == 12:
        xw_c(range(2 - OPT['DEF']))
def xw_w2(steps):
    for st in steps:
        for dh in range(2):
            for half in range(2):
                if (4 * st + 2 * dh + half) % OPT['DFI'] == OPT['DFI'] - 1:
                    D2.popD(1)
                if dh + half == 0:
                    fep(3 + st)
                    if EA and OPT['PAX'] == st:
                        pa_issue()
                    if OPT['LBX'] == st:
                        lb_issue()
                    fap(10 + st)
                if st == 0:
                    ad, off = AD, 0
                elif st <= 8:
                    ad, off = AD + 2, ((st - 1) // 4) * SLOT + ((st - 1) % 4) * 2048
                else:
                    ad, off = AD + 4 + 2 * (st - 9), 0
                A.ds('ds_read_b64_tr_b16 %s, %s offset:%d' % (ar(8 * st + 4 * dh + 2 * half, 2), vr(ad + dh), off + half * 512), 'xw')
def xw_c(parts):
    for part in parts:
        for sub in range(4):
            D2.popD(1)
            for dh in range(2):
                A.ds('ds_read_b128 %s, %s offset:%d' % (ar(8 * (11 + 2 * sub + part) + 4 * dh, 4), vr(vCA + sub), part * SLOT + dh * 4096), 'xw')
def fap(k):
    if OPT['FAP'] == k:
        A.wait_vm('HM')
        stamp('HMdone')
        flag(WS_FC if OPT['F3'] else WS_FA, 'fa')
        if OPT['PTOUCH'] & 1:
            e('v_lshlrev_b32 %s, 7, %s' % (vr(vCT), vr(vLO4)))
            e('v_lshl_add_u32 %s, %s, 12, %s' % (vr(vCT), vr(vG), vr(vCT)))
            S('s_mov_b32 exec_hi, %s', sF1)
            A.vmem('buffer_load_dword %s, %s, %s, %s offen sc1' % (vr(vSCR), vr(vCT), sr(dWS, 4), sr(sHM)), 'touch')
            e('s_mov_b32 exec_hi, -1')
        stamp('fa')
if EA:
    late_scalars()
xw_block(0)
if not EA and not OPT['LSP']:
    late_scalars()
if EA and OPT['PAX'] == 11:
    pa_issue()
if OPT['LBX'] == 11:
    lb_issue()
print('deferred left', len(D2.q))
D2.flush()
def ea_start():
    A.wait_vm('pa')
    stamp('pa1')
    retry_loop('pa', pa_issue, p_check, 60)
    stamp('paok')
    S('s_add_u32 %s, %s, %s', sPA, sPA, hex(WS_FC - WS_FA))
    DQ.add([('D', hload)] * min(FC, OPT['NE']))
    DQ.popD(OPT['N0'])
    AUTO.update(on=True, int=OPT['AI'], nxt=AUTO['t'] + OPT['AI'])
if EA and OPT['PAP'] == -3:
    ea_start()
    auto(False)
def coef_mul(T, R=RR, I=II):
    R, I = R + 4 * T, I + 4 * T
    for h in (0, 2):
        e('v_pk_mul_f32 %s, %s, %s' % (vr(ST + 8 + h, 2), vr(R + h, 2), vr(ST + 4 + h, 2)))
    for h in (0, 2):
        e('v_pk_mul_f32 %s, %s, %s' % (vr(R + h, 2), vr(R + h, 2), vr(ST + h, 2)))
    for h in (0, 2):
        e('v_pk_fma_f32 %s, %s, %s, %s %s' % (vr(R + h, 2), vr(I + h, 2), vr(ST + 4 + h, 2), vr(R + h, 2), NEG1))
    for h in (0, 2):
        e('v_pk_fma_f32 %s, %s, %s, %s' % (vr(I + h, 2), vr(I + h, 2), vr(ST + h, 2), vr(ST + 8 + h, 2)))
if OPT['CL'] == 2:
    A.wait_lg('kp')
    for T in range(4):
        coef_mul(T)
page('lb')
A.wait_vm('lb')
stamp('lb1')
fap(0)
retry_loop('lb', lb_issue, lb_check, 59)
stamp('Sgot')
if EA and OPT['PAX'] == 12:
    pa_issue()
if OPT['DP']:
    DQ.q += D3.q
    DQ.popD(OPT['DPN'])
    AUTO.update(on=True, int=OPT['AI'], nxt=AUTO['t'] + OPT['AI'])
if EA and OPT['PAP'] == -1:
    ea_start()
if EA and OPT['PAP'] == -3:
    auto(True)
if OPT['EP'] and OPT['PAP'] == -1:
    pa_issue()
for i in range(4):
    e('v_cndmask_b32 %s, 0, %s, %s' % (vr(vQ + 4 * i), vr(vQ + 4 * i), sr(sMSK[i], 2)))
    e('v_cndmask_b32 %s, 0, %s, %s' % (vr(vQ + 4 * i + 1), vr(vQ + 4 * i + 1), sr(sMSK[i], 2)))
for i in (2, 1, 0):
    cfma(vQ + 4 * i, vQ + 4 * i + 1, vQ + 4 * i + 4, vQ + 4 * i + 5, L512, L512 + 1, vQ + 4 * i, vQ + 4 * i + 1)
hr, hi_, h2, h3 = vQ + 4, vQ + 5, vQ + 6, vQ + 7
cmul(hr, hi_, vQ, vQ + 1, P128, P128 + 1)
for sw in ('v_permlane16_swap_b32', 'v_permlane32_swap_b32'):
    e('v_mov_b32 %s, %s' % (vr(h2), vr(hr)))
    e('v_mov_b32 %s, %s' % (vr(h3), vr(hi_)))
    e('%s %s, %s' % (sw, vr(hr), vr(h2)))
    e('%s %s, %s' % (sw, vr(hi_), vr(h3)))
    e('v_add_f32 %s, %s, %s' % (vr(hr), vr(hr), vr(h2)))
    e('v_add_f32 %s, %s, %s' % (vr(hi_), vr(hi_), vr(h3)))
auto(False)
A.wait_lg('s0')
lab = newlab('t0')
S('s_cmp_eq_u32 %s, 0', sTH)
e('s_cbranch_scc1 %s' % lab)
cfma(S0, S0 + 1, hr, hi_, L64, L64 + 1, S0, S0 + 1)
e('v_mov_b32 %s, %s' % (vr(hr), vr(S0)))
e('v_mov_b32 %s, %s' % (vr(hi_), vr(S0 + 1)))
A.label(lab)
A.ds('ds_write2_b32 %s, %s, %s offset0:32 offset1:48' % (vr(vSXW), vr(hr), vr(hi_)), 'cy')
A.ds('ds_read_b128 %s, %s offset:128' % (vr(SA, 4), vr(vCR)), 'cy')
A.ds('ds_read_b128 %s, %s offset:192' % (vr(SA + 4, 4), vr(vCR)), 'cy')
fap(1)
if OPT['EP'] and OPT['PAP'] == -2:
    pa_issue()
if EA and OPT['PAP'] == -2:
    ea_start()
A.wait_lg0()
if EA and OPT['PAP'] < 0 or OPT['DP']:
    auto(True)
pk_cfma4(SE, SE + 4, SA, SA + 4, K1, SE, SE + 4)
if OPT['CL'] == 2:
    coef_mul(0, SE, SE + 4)
for hh in range(2):
    for T in (2 * hh, 2 * hh + 1):
        pk_cfma4(RR + 4 * T, II + 4 * T, SE, SE + 4, KP[T], RR + 4 * T, II + 4 * T)
        if OPT['CL'] == 1:
            coef_mul(T)
    for part in range(2):
        o = vQ + 8 * hh + 4 * part
        b = ACC + 16 * part + 8 * hh
        ng = '-' if part else ''
        for i in range(4):
            e('v_cvt_pk_bf16_f32 %s, %s%s, %s%s' % (vr(o + i), ng, vr(b + 2 * i), ng, vr(b + 2 * i + 1)))
    if OPT['EP'] and OPT['PAP'] == hh:
        pa_issue()
    if (EA and OPT['PAP'] < 0 or OPT['DP']) and hh == 0:
        print('early loads left at the first HS store', len(DQ.q))
        DQ.flush()
        if OPT['DP']:
            auto(False)
    for part in range(2):
        o = vQ + 8 * hh + 4 * part
        e('v_permlane16_swap_b32 %s, %s' % (vr(o), vr(o + 2)))
        e('v_permlane16_swap_b32 %s, %s' % (vr(o + 1), vr(o + 3)))
        A.vmem('buffer_store_dwordx4 %s, %s, %s, %s offen offset:%d sc1' % (vr(o, 4), vr(vL16), sr(dWS, 4), sr(sHS), 2048 * part + 1024 * hh), 'HS')
if OPT['EP'] and OPT['PAP'] == 2:
    pa_issue()
stamp('epi')
if EA and OPT['PAP'] >= 0:
    ea_start()

xw_block(1)
if OPT['LSP']:
    late_scalars()
eX, eS, eD = 128, 136, 140
fD, fB, fU, fM = 144, 148, 152, 156
def res_pre():
    A.wait_vm('res')
    for i in range(16):
        e('v_accvgpr_read_b32 %s, a%d' % (vr(eX + [0, 1, 2, 3, 4, 5, 6, 7, 12, 13, 14, 15, 8, 9, 10, 11][i]), 240 + i))
    for (dst, src) in ((fD, eD), (fB, eD + 2)):
        for hh in range(2):
            e('v_lshlrev_b32 %s, 16, %s' % (vr(dst + 2 * hh), vr(src + hh)))
            e('v_and_b32 %s, 0xffff0000, %s' % (vr(dst + 2 * hh + 1), vr(src + hh)))
def res_q(q):
    r = RES + 4 * q
    e('v_and_b32 %s, 0xffff0000, %s' % (vr(fM + 1), vr(eS + q)))
    e('v_lshlrev_b32 %s, 16, %s' % (vr(fM), vr(eS + q)))
    e('v_rcp_f32 %s, %s' % (vr(fM + 1), vr(fM + 1)))
    for hh in range(2):
        e('v_lshlrev_b32 %s, 16, %s' % (vr(r + 2 * hh), vr(eX + 2 * q + hh)))
        e('v_and_b32 %s, 0xffff0000, %s' % (vr(r + 2 * hh + 1), vr(eX + 2 * q + hh)))
    def rnd4():
        e('v_cvt_pk_bf16_f32 %s, %s, %s' % (vr(fU + 1), vr(fU), vr(fU + 1)))
        e('v_cvt_pk_bf16_f32 %s, %s, %s' % (vr(fU + 3), vr(fU + 2), vr(fU + 3)))
        e('v_lshlrev_b32 %s, 16, %s' % (vr(fU), vr(fU + 1)))
        e('v_lshlrev_b32 %s, 16, %s' % (vr(fU + 2), vr(fU + 3)))
        e('v_and_b32 %s, 0xffff0000, %s' % (vr(fU + 1), vr(fU + 1)))
        e('v_and_b32 %s, 0xffff0000, %s' % (vr(fU + 3), vr(fU + 3)))
    for hh in range(2):
        e('v_pk_add_f32 %s, %s, %s op_sel:[0,0] op_sel_hi:[1,0] neg_lo:[0,1] neg_hi:[0,1]' % (vr(fU + 2 * hh, 2), vr(r + 2 * hh, 2), vr(fM, 2)))
    rnd4()
    for hh in range(2):
        e('v_pk_mul_f32 %s, %s, %s op_sel:[0,1] op_sel_hi:[1,1]' % (vr(fU + 2 * hh, 2), vr(fU + 2 * hh, 2), vr(fM, 2)))
    rnd4()
    for hh in range(2):
        e('v_pk_mul_f32 %s, %s, %s' % (vr(fU + 2 * hh, 2), vr(fU + 2 * hh, 2), vr(fD + 2 * hh, 2)))
    rnd4()
    for hh in range(2):
        e('v_pk_add_f32 %s, %s, %s' % (vr(r + 2 * hh, 2), vr(r + 2 * hh, 2), vr(fU + 2 * hh, 2)))
    for hh in range(2):
        e('v_pk_add_f32 %s, %s, %s' % (vr(r + 2 * hh, 2), vr(r + 2 * hh, 2), vr(fB + 2 * hh, 2)))

F2 = Q()
e('v_lshrrev_b32 %s, 3, %s' % (vr(vRR), vr(vLO4)))
e('v_lshlrev_b32 %s, 12, %s' % (vr(vRR), vr(vRR)))
e('v_lshl_add_u32 %s, %s, 8, %s' % (vr(vRR), vr(vHI5), vr(vRR)))
e('v_and_b32 %s, 0x17, %s' % (vr(vRR2), vr(vLANE)))
e('v_and_b32 %s, 7, %s' % (vr(vRW), vr(vLANE)))
e('v_add_u32 %s, %s, %s' % (vr(vRR2), vr(vRR2), vr(vRW)))
e('v_lshl_add_u32 %s, %s, 3, %s' % (vr(vRR), vr(vRR2), vr(vRR)))
S('s_lshl_b32 %s, %s, 9', sT0, sW)
e('v_add_u32 %s, %s, %s' % (vr(vRR), sr(sT0), vr(vRR)))
e('v_add_u32 %s, 0x10000, %s' % (vr(vRR2), vr(vRR)))
S('s_lshl_b32 m0, %s, 14', sW)
if OPT['PH']:
    S('s_mov_b32 %s, 0x10001', sBM)
    S('s_mul_i32 %s, %s, 0x9e3779b1', sT0, sTAG)
    e('v_and_b32 %s, 3, %s' % (vr(TB), vr(vLANE)))
    e('v_lshlrev_b32 %s, 3, %s' % (vr(TB), vr(TB)))
    e('v_lshrrev_b32 %s, %s, %s' % (vr(TB), vr(TB), sr(sT0)))
    e('v_and_b32 %s, 0xff, %s' % (vr(TB), vr(TB)))
    e('v_lshl_or_b32 %s, %s, 12, %s' % (vr(TB), vr(TB), vr(TB)))
    for i in (3, 2, 1):
        e('v_lshrrev_b32 %s, %d, %s' % (vr(TB + i), i, vr(TB)))
    for i in range(4):
        e('v_and_b32 %s, %s, %s' % (vr(TB + i), sr(sBM), vr(TB + i)))
else:
    S('s_movk_i32 %s, 0xff', sBM)
    for i in range(4):
        e('v_bfe_u32 %s, %s, %d, 8' % (vr(TB + i), vr(vTAG), 8 * i))
if OPT['EP']:
    if OPT['PAP'] == 3:
        pa_issue()
    res_pre()
    if OPT['PAP'] == 4:
        pa_issue()
    for q in range(OPT['R0']):
        res_q(q)
    stamp('r0')
    A.wait_vm('pa')
    stamp('pa1')
    retry_loop('pa', pa_issue, p_check, 60, after=lambda: flag(WS_FB, 'fb'))
    stamp('paok')
    DQ.add([('D', hload)] * OPT['NPRE'])
    DQ.popD(OPT['N0'])
    AUTO.update(on=True, int=OPT['HI2'], nxt=AUTO['t'] + OPT['HI2'])
    for q in range(OPT['R0'], OPT['R1']):
        res_q(q)
    auto(False)
    stamp('r1')
    A.wait_vm('HS')
    stamp('HSdone')
    flag(WS_FB, 'fb')
    auto(True)
    for q in range(OPT['R1'], 4):
        res_q(q)
    e('v_lshlrev_b32 %s, 1, %s' % (vr(vOO), vr(vXO)))
    auto(False)
    print('H loads left after the residual', len(DQ.q))
    DQ.flush()
    stamp('res')
else:
    if OPT['RQ'] == -1:
        pa_issue()
    if OPT['DEF'] and OPT['XL'] == 12:
        A.wait_vm('Wd')
        xw_c(range(2 - OPT['DEF'], 2))
    res_pre()
    if OPT['XL'] == 12:
        A.wait_lg0()
        stamp('xw')
        e('s_barrier')
        stamp('bx')
    for q in range(5):
        if q == OPT['RQ']:
            if EA:
                print('early loads left', len(DQ.q))
                DQ.flush()
                auto(False)
            (pc_issue if EA else pa_issue)()
        if q < 4:
            res_q(q)
    e('v_lshlrev_b32 %s, 1, %s' % (vr(vOO), vr(vXO)))
    stamp('res')
    A.wait_vm('HS')
    stamp('HSdone')
    flag(WS_FB, 'fb')
    def hs_touch():
        e('v_lshlrev_b32 %s, 5, %s' % (vr(vCT), vr(vTM)))
        e('s_mov_b32 exec_hi, 0')
        A.vmem('buffer_load_dword %s, %s, %s, %s offen sc1' % (vr(vSCR), vr(vCT), sr(dWS, 4), sr(sHS)), 'touch')
        e('s_mov_b32 exec_hi, -1')
    if OPT['PTOUCH'] & 2:
        hs_touch()
    stamp('fb')
    page('pa')
    if not EA:
        A.wait_vm('pa')
        stamp('pa1')
        retry_loop('pa', pa_issue, p_check, 60)
        stamp('paok')
        for i in range(OPT['NPRE']):
            hload()
        if OPT['XL'] < 12:
            A.wait_vm(['W', 'Wd'])
            xw_w2(range(OPT['XL'], 11))
            xw_c(range(2))
            A.wait_lg0()
    if OPT['PTOUCH'] & 4:
        hs_touch()
if not OPT['F3']:
    e('v_lshrrev_b32 %s, 1, %s' % (vr(vPF), vr(vPF)))
assert (OPT['NPRE'] <= FS - OPT['PBD'] or OPT['LDB']) and (hf[0] <= FC - OPT['PCD'] or not OPT['F3'] or OPT['LDC'])
M1 = 16320
def red_write(t, k):
    A.ds('ds_write_addtid_b32 %s offset:%d' % (vr(64 * t + k), t * (65536 - M1) + 256 * k), 'rw')
def red_read(t, q, part):
    A.ds('ds_read_b128 %s, %s offset:%d' % (vr(RD + 16 * q + 4 * part, 4), vr(vRR2 if t else vRR), part * 16384 + (q >> 1) * 8192 + (q & 1) * 2048), 'rr%d' % q)
def px_issue():
    for k in range(2 if OPT['PH'] else 4):
        A.vmem('buffer_load_dwordx4 %s, %s, %s, %s offen offset:%d sc1' % (vr(PXR + 4 * k, 4), vr(vL16), sr(dWS, 4), sr(sPX), k * 1024), 'px')
def px_check():
    if OPT['PH']:
        for k in range(8):
            e('v_xor_b32 %s, %s, %s' % (vr(PXR + k), vr(TB + (k & 3)), vr(PXR + k)))
        e('v_or3_b32 %s, %s, %s, %s' % (vr(pT), vr(PXR), vr(PXR + 1), vr(PXR + 2)))
        e('v_or3_b32 %s, %s, %s, %s' % (vr(pT + 1), vr(PXR + 3), vr(PXR + 4), vr(PXR + 5)))
        e('v_or3_b32 %s, %s, %s, %s' % (vr(pT), vr(pT), vr(PXR + 6), vr(PXR + 7)))
        e('v_or_b32 %s, %s, %s' % (vr(pT), vr(pT), vr(pT + 1)))
        e('v_and_b32 %s, %s, %s' % (vr(pT), sr(sBM), vr(pT)))
        e('v_cmp_ne_u32 vcc, 0, %s' % vr(pT))
        return
    for k in range(16):
        e('v_xor_b32 %s, %s, %s' % (vr(PXR + k), vr(TB + (k & 3)), vr(PXR + k)))
    for k in range(4):
        e('v_or3_b32 %s, %s, %s, %s' % (vr(pT + k), vr(PXR + 4 * k), vr(PXR + 4 * k + 1), vr(PXR + 4 * k + 2)))
    e('v_or3_b32 %s, %s, %s, %s' % (vr(pT), vr(pT), vr(PXR + 3), vr(PXR + 7)))
    e('v_or3_b32 %s, %s, %s, %s' % (vr(pT + 1), vr(pT + 1), vr(PXR + 11), vr(PXR + 15)))
    e('v_or3_b32 %s, %s, %s, %s' % (vr(pT), vr(pT), vr(pT + 2), vr(pT + 3)))
    e('v_or_b32 %s, %s, %s' % (vr(pT), vr(pT), vr(pT + 1)))
    e('v_and_b32 %s, %s, %s' % (vr(pT), sr(sBM), vr(pT)))
    e('v_cmp_ne_u32 vcc, 0, %s' % vr(pT))
def al_issue(opt=True):
    e('v_lshlrev_b32 v8, 7, %s' % vr(vLANE))
    for i in range(4):
        S('s_mov_b32 %s, %s', sT0, hex(WS_G + 8192 * i))
        A.vmem('buffer_load_dword v%d, v8, %s, %s offen offset:12 sc1' % (i, sr(dWS, 4), sr(sT0)), 'alp', opt=opt)
def al_check():
    for i in range(4):
        e('v_xor_b32 v%d, %s, v%d' % (4 + i, sr(sTAG), i))
    e('v_or3_b32 v4, v4, v5, v6')
    e('v_or_b32 v4, v4, v7')
    e('v_cmp_ne_u32 vcc, 0, v4')

left = [2] * 76
last = {}
for n, (f, dh) in enumerate(MF):
    last[(LD[f][0], LD[f][2], dh)] = n
clk = [0, -4 * OPT['HINT']]
seen = set()
for n, (f, dh) in enumerate(MF):
    t, s, hh = LD[f]
    for (tq_, hq, dq), m in sorted(last.items()):
        if n == m + 2:
            o = Ops()
            if (tq_, hq, dq) == (1, 0, 0):
                o.s('s_add_u32 m0, m0, %d' % M1)
            for k in range(16):
                o.f(lambda k=k, tq_=tq_, hq=hq, dq=dq: red_write(tq_, 32 * hq + 16 * dq + k), OPT['WC'])
            F2.add(o)
            if dq == 0 or (tq_, hq) == (1, 1) or (hq == 0 and not OPT['FIN1' if tq_ else 'FINE']):
                continue
            qs = (0, 1) if hq == 0 else (2, 3) if OPT['FINE'] else range(4)
            o = Ops()
            def bar1(nm='bar%d%d' % (tq_, hq)):
                A.wait_lg0()
                e('s_barrier')
                stamp('bar1' if nm == 'bar01' else nm)
            o.f(lambda: None, OPT['BW'])
            o.f(bar1, 4)
            for q in qs:
                for part in range(4):
                    o.f(lambda q=q, part=part, tq_=tq_: red_read(tq_, q, part), 2)
            for q in qs:
                o.f(lambda q=q: A.wait_lg('rr%d' % q))
                b = RD + 16 * q
                for i in range(4):
                    o.v('v_add_f32 %s, %s, %s' % (vr(b + i), vr(b + i), vr(b + 4 + i)))
                for i in range(4):
                    o.v('v_add_f32 %s, %s, %s' % (vr(b + 8 + i), vr(b + 8 + i), vr(b + 12 + i)))
                if tq_:
                    for i in range(8):
                        o.v('v_add_f32 %s, %s, %s' % (vr(RES + 4 * q + (i & 3)), vr(RES + 4 * q + (i & 3)), vr(b + 2 * (i & 4) + (i & 3))))
                    continue
                for i in range(4):
                    o.v('v_add_f32 %s, %s, %s' % (vr(b + i), vr(b + i), vr(b + 8 + i)))
                if OPT['PH']:
                    g = RD + 32 * (q >> 1) + 4
                    for i in range(2):
                        o.v('v_cvt_pk_f16_f32 %s, %s, %s' % (vr(g + 2 * (q & 1) + i), vr(b + 2 * i), vr(b + 2 * i + 1)))
                    for i in range(2):
                        k = 2 * (q & 1) + i
                        o.v('v_bfi_b32 %s, %s, %s, %s' % (vr(g + k), sr(sBM), vr(TB + k), vr(g + k)))
                    if q & 1:
                        o.f(lambda q=q, g=g: A.vmem('buffer_store_dwordx4 %s, %s, %s, %s offen offset:%d sc1' % (vr(g, 4), vr(vL16), sr(dWS, 4), sr(sPX), (q >> 1) * 1024), 'pxs'), 4)
                    continue
                for i in range(4):
                    o.v('v_bfi_b32 %s, %s, %s, %s' % (vr(b + i), sr(sBM), vr(TB + i), vr(b + i)))
                o.f(lambda q=q, b=b: A.vmem('buffer_store_dwordx4 %s, %s, %s, %s offen offset:%d sc1' % (vr(b, 4), vr(vL16), sr(dWS, 4), sr(sPX), q * 1024), 'pxs'), 4)
                o.f(lambda: print(' px store at step', clk[2] / 4, 'loads issued', hf[0]), 0)
            if (tq_, hq) == (0, 1):
                o.s('s_xor_b32 %s, %s, %s', sPX, sPX, '0x2000' if OPT['PH'] else '0x4000')
                o.f(lambda: (stamp('pxs'), seen.add('pxs'), print('px stores done at step', clk[2] / 4, 'loads issued', hf[0])), 0)
            F2.add(o)
    clk[2:] = [n]
    if (OPT['EP'] or OPT['XL'] < 12) and n == 4 * OPT['BXP']:
        assert DSN.get('rw', 0) == 0
        e('s_barrier')
    if n == 4 * OPT['WB']:
        lab = newlab('wb')
        S('s_and_b32 %s, %s, %s', sT0, sGW, ['3', '0x3e3', '0x63'][OPT['WBM']])
        S('s_cmp_lg_u32 %s, 1', sT0)
        e('s_cbranch_scc1 %s' % lab)
        A.vmem('buffer_wbl2 sc1', 'wb', opt=True)
        A.label(lab)
    if n == 4 * OPT['PXPOS']:
        assert 'pxs' in seen
        px_issue()
    if n == 4 * min(37, OPT['PXPOS']):
        lab = newlab('nal')
        S('s_cmp_lg_u32 %s, 3', sGW)
        e('s_cbranch_scc1 %s' % lab)
        al_issue()
        A.label(lab)
    u = 0
    if n % 4 == 0:
        page('hH' if n == 4 * OPT['PGH'] else 'h%d' % (n // 4))
    if f not in seen:
        assert hf[0] > f
        A.wait_vm('h%d' % f)
        seen.add(f)
    if n // 4 in HST and n % 4 == 0:
        stamp('h%d' % (n // 4))
    acc = vr(64 * t + 32 * hh + 16 * dh, 16)
    def m16(k):
        acc = vr(64 * t + 32 * hh + 16 * dh + 8 * (s & 1) + 4 * k, 4)
        e('v_mfma_f32_16x16x32_bf16 %s, %s, %s, %s' % (acc, ar(RING + 4 * (f % NR), 4), ar(8 * s + 4 * (dh ^ k), 4), acc if s > 1 else '0'))
    if OPT['X'] & 256:
        m16(0)
    elif not OPT['X'] & 8:
        e('v_mfma_f32_32x32x16_bf16 %s, %s, %s, %s' % (acc, ar(RING + 4 * (f % NR), 4), ar(8 * s + 4 * dh, 4), acc if s != SO[0] else '0'))
    left[f] -= 1
    if n + 1 < len(MF) and MF[n + 1][0] not in seen:
        u = 1
    if OPT['LDC'] and not EA and n == max(0, 2 * (FC - OPT['LDC'] - OPT['PCM'])):
        assert hf[0] <= FC
        S('s_add_u32 %s, %s, %s', sPA, sPA, hex(WS_FC - WS_FA))
        pc_issue()
        u += 3
    if OPT['LDB'] and n == 2 * (FS - OPT['LDB'] - OPT['PBM']):
        assert FC < hf[0] <= FS, (FC, hf[0], FS)
        pb_issue()
        u += 2
    held = n < OPT['HOLD'] or (OPT['LDC'] and hf[0] == FC and n < 2 * (FC - OPT['LDC'])) or (OPT['LDB'] and hf[0] == FS and n < 2 * (FS - OPT['LDB']))
    if held:
        clk[1] = max(clk[1], clk[0] - OPT['CU'] * OPT['HINT'])
    elif hf[0] < 76 and (hf[0] < NR or left[hf[0] - NR] == 0) and clk[0] >= clk[1]:
        u += hload()
        clk[1] += OPT['HINT']
    if OPT['X'] & 256:
        while F2.ready() and (u + F2.cost() <= OPT['RPOP'] // 2):
            u += F2.cost()
            F2.pop1()
        m16(1)
    while F2.ready() and (u + F2.cost() <= OPT['RPOP'] or u <= 1):
        u += F2.cost()
        F2.pop1()
    clk[0] += max(32, (16 if OPT['X'] & 256 else 8) + 4 * u)
assert hf[0] == 76
stamp('mfma2')
if OPT['PXPOS'] == 38:
    px_issue()
print('F2 left', len(F2.q))
F2.flush()
for key, m in sorted(last.items()):
    if m + 2 >= len(MF):
        assert key != (1, 0, 0)
        for k in range(16):
            red_write(1, 32 * key[1] + 16 * key[2] + k)
A.wait_lg0()
e('s_barrier')
stamp('bar2')
if OPT['PXPOS'] == 39:
    px_issue()
Q1 = range(2 if OPT['FIN1'] else 0, 4)
for q in Q1:
    for part in range(4):
        red_read(1, q, part)
if OPT['PXPOS'] == 40:
    A.wait_vm('pxs')
    stamp('pxack')
    px_issue()
def own_sum(q):
    A.wait_lg('rr%d' % q)
    b, r = RD + 16 * q, RES + 4 * q
    for h in (0, 2):
        e('v_pk_add_f32 %s, %s, %s' % (vr(b + h, 2), vr(b + h, 2), vr(b + 4 + h, 2)))
        e('v_pk_add_f32 %s, %s, %s' % (vr(b + 8 + h, 2), vr(b + 8 + h, 2), vr(b + 12 + h, 2)))
    for h in (0, 2):
        e('v_pk_add_f32 %s, %s, %s' % (vr(r + h, 2), vr(r + h, 2), vr(b + h, 2)))
    for h in (0, 2):
        e('v_pk_add_f32 %s, %s, %s' % (vr(r + h, 2), vr(r + h, 2), vr(b + 8 + h, 2)))
def px_add(q):
    r = RES + 4 * q
    for h in (0, 2):
        if OPT['PH']:
            for lo in range(2):
                e('v_fma_mix_f32 %s, %s, 1.0, %s op_sel:[%d,0,0] op_sel_hi:[1,0,0]' % (vr(r + h + lo), vr(PXR + 2 * q + h // 2), vr(r + h + lo), lo))
        else:
            e('v_pk_add_f32 %s, %s, %s' % (vr(r + h, 2), vr(r + h, 2), vr(PXR + 4 * q + h, 2)))
def out_store(q):
    if q == 2:
        S('s_movk_i32 %s, 4096', sT0)
    A.vmem('buffer_store_dwordx4 %s, %s, %s, %s offen offset:%d%s' % (vr(RES + 4 * q, 4), vr(vOO), sr(dO, 4), sr(sT0) if q > 1 else '0', (q & 1) * 2048, ['', ' sc1', ' nt', ' sc0 sc1'][OPT['OUTSC']]), 'out')
NE = [4, 0, 2][OPT['PXE']]
for q in Q1:
    if q < NE:
        own_sum(q)
A.wait_vm('px')
stamp('px1')
retry_loop('px', px_issue, px_check, 62)
stamp('pxok')
for q in range(4):
    px_add(q)
    if q < NE or q not in Q1:
        out_store(q)
for q in Q1:
    if q >= NE:
        own_sum(q)
        out_store(q)
lab = newlab('nep')
S('s_cmp_lg_u32 %s, 3', sGW)
e('s_cbranch_scc1 %s' % lab)
A.wait_vm('alp')
retry_loop('al', al_issue, al_check, 63)
one_lane_store(8, '0', 'ep')
A.label(lab)
if PROF:
    stamp('stored')
    e('s_waitcnt vmcnt(0)')
    stamp('drained')
    stamp('rt1', True)
    A.wait_lg0()
    e('v_lshlrev_b32 v16, 2, %s' % vr(vLANE))
    if DBGT and os.environ.get('AMP'):
        x0, x1 = os.environ['AMP'].split('-')
        e('v_readlane_b32 s40, %s, %d' % (vr(vSTAMP), SNAMES[x0]))
        e('v_readlane_b32 s41, %s, %d' % (vr(vSTAMP), SNAMES[x1]))
        e('v_readlane_b32 s42, %s, %d' % (vr(vSTAMP), SNAMES['drained']))
        e('s_nop 4')
        e('s_sub_u32 s40, s41, s40')
        e('s_lshl_b32 s40, s40, 2')
        e('s_min_u32 s40, s40, 20000')
        e('s_mov_b32 s43, 0')
        A.label('L_amp')
        e('s_memrealtime s[44:45]')
        e('s_waitcnt lgkmcnt(0)')
        e('s_add_u32 s43, s43, 1')
        e('s_cmp_gt_u32 s43, 0x4000')
        e('s_cbranch_scc1 L_ampd')
        e('s_sub_u32 s44, s44, s42')
        e('s_cmp_lt_u32 s44, s40')
        e('s_cbranch_scc1 L_amp')
        A.label('L_ampd')
    elif DBGT:
        e('s_load_dwordx2 s[40:41], s[0:1], 120')
        e('v_not_b32 v17, %s' % vr(vSTAMP))
        e('v_cmp_eq_u32 vcc, 0, %s' % vr(vLANE))
        e('s_nop 1')
        e('v_cndmask_b32 v17, %s, v17, vcc' % vr(vSTAMP))
        e('s_waitcnt lgkmcnt(0)')
        e('s_mov_b64 exec, 0xffff')
        e('global_atomic_umax v16, v17, s[40:41] sc1')
        e('s_mov_b64 exec, -1')
    S('s_lshl_b32 %s, %s, 8', sT0, sGW)
    S('s_add_u32 %s, %s, %s', sT0, sT0, hex(WS_PROF))
    e('buffer_store_dword %s, v16, %s, %s offen' % (vr(vSTAMP), sr(dWS, 4), sr(sT0)))
    json.dump(SNAMES, open(OUT + '.names', 'w'))
A.label('L_end')
e('s_endpgm')

body, nops = hazard_pass(A.lines)
if OPT['PG'] & 8:
    body, n1, n2, tot = stub_pass(body, 0x300, 2, 4, OPT['AL'])
    print('alignment: nops', n1, 'widened', n2, 'cost', tot)
elif OPT['AL']:
    body, n1, n2, tot = align_pass(body, OPT['AL'])
    print('alignment: nops', n1, 'widened', n2, 'cost', tot)
head = open('cdna_kernels/%s.s.ref' % NAME).read().split('; Override launch')[0]
txt = head + '; @launch grid=(256,1,1) block=(256,1,1) lds=%d\n' % LDS_BYTES
txt += '''.amdgcn_target "amdgcn-amd-amdhsa--gfx950"
.text
.globl %s_kernel
.p2align %d
.type %s_kernel,@function
%s_kernel:
''' % (NAME, 12 if OPT['PG'] & 1 else 8, NAME, NAME)
txt += '\n'.join(body) + '\n'
txt += '''.section .rodata,"a"
.p2align 6
.amdhsa_kernel %s_kernel
  .amdhsa_next_free_vgpr 512
  .amdhsa_next_free_sgpr 102
  .amdhsa_accum_offset 256
  .amdhsa_group_segment_fixed_size 0
  .amdhsa_kernarg_size 136
  .amdhsa_user_sgpr_count 2
  .amdhsa_user_sgpr_kernarg_segment_ptr 1
  .amdhsa_system_sgpr_workgroup_id_x 1
.end_amdhsa_kernel
''' % NAME
open(OUT, 'w').write(txt)
print('wrote', OUT, 'lines', len(body), 'nops', nops)
```

```python
import sys, math, struct, json
from asmlib import *

NAME = 'parallel_sum__ssm_conv_s5__mixer_channel_mlp__prompt'
DBGT = '--dbgt' in sys.argv
PROF = '--prof' in sys.argv or DBGT
OUT = [a for a in sys.argv[1:] if not a.startswith('--') and '=' not in a]
OUT = OUT[0] if OUT else 'cdna_kernels/%s.s' % NAME
OPT = dict(SXI=0, GO=0, FTP=0, FT=0, OTP=-1, CLN=0, DP=0, DPN=1, XL=11, LSP=0, CL=1, BF=0, SWP=0, SWB=0, CT=0, CTP=0, SRP=0, PXE=0, TW=0, GF=0, LBX=-1, NE=22, HOLD=0, PH=1, PAX=6, AI=40, LDB=0, PBM=6, LDC=0, PCM=6, CU=2, F3=0, FEP=0, N1=2, PCD=6, XG=0, XI=28, XC0=2, XC1=5, XAD=1, DS=0, FINE=0, FIN1=0, BW=8, DEF=0, DEFR=3, DFI=4, ZJ=1, CPF=1, EP=0, PAP=1, R0=1, R1=3, N0=4, HI2=70, BXP=8, D0A=2, NPK=20, LATE=1, ROT=10, DINT=72, LBPOS=6, OUTSC=0, PXPOS=38, RPOP=8, HINT=60, PTOUCH=0, DCOST=2, D1A=0, BUD0=2, NB0=4, X=0,
           EINT=100, NB1=3, PBD=12, SDG=5, NPRE=10, WPF=3, WT0=9, STL=4, RQ=3,
           PB=1, PINT=110, SPF=0, D1B=7, B1P=-1, B1G=3, XS=0, TL0=6, TL1=6, WC=2, FAP=0, XWP=0, PXS=0, CJ0=6, WG0=0, WNT=0, FL0=0, NTX=-1, NTW=-1, NTS=0, WPK=0, WINT=92, WCL=4, SMP=0, STD=0, AL=5, PG=11, PGA=3, PGH=19, PGT=0, HP=0, WB=-1, WBM=0)
for a in sys.argv[1:]:
    if '=' in a:
        k, v = a.split('=')
        assert k in OPT, k
        OPT[k] = int(v)

def f2u(x):
    return '0x%08x' % struct.unpack('<I', struct.pack('<f', x))[0]

WS_AL = 0x1000
WS_G = 0x8000
WS_SG = 0x10000
WS_PROF = 0x40000
WS_FA = 0x80000
WS_FB = 0xA0000
WS_FC = 0xC0000
WS_PX = 0x100000
WS_H = 0x800000
WS_SIZE = 0x1200000
HR = 152 * 2048

SLOT, PIECE = 36864, 9216
TAB, TROW = 147456, 272
CSX = TAB + 25 * TROW
PE = 155648
assert CSX + 1280 <= PE and CSX % 16 == 0
LDS_BYTES = 160 * 1024

sW, sRB, sJ, sKH, sC, sRBL, sTAG, sGW, sTH, sPH, sPC = 4, 5, 6, 7, 8, 9, 10, 11, 12, 13, 14
sJT = sPC
pX, pLRE, pLIM, pBRE, pBIM, pCRE, pCIM, pLDT, pDSK, pBX, pW1, pB1, pW2, pB2, pOUT, pDBG, pWS = [16 + 2 * i for i in range(17)]
sPERM, sCNT = 50, 51
dX, dWS, dB, dW1, dW2, dO = 52, 56, 60, 64, 68, 72
sM0, sSX, sSW, sOFF, sM8, sME, sWS, sBM, sU0, sCG, sT0, sT1 = range(76, 88)
sCO = sOFF
sMSK = [88, 90, 92, 94]
sT2, sT3 = 34, 35
sD0, sSG, sSGO, sHM, sHS, sFL, sPA, sPB, sH1, sH2 = range(16, 26)
sSSM, sGR, sPX, sP1, sP2, sHC, sF0, sF1 = 30, 31, 32, 33, 36, 37, 38, 39

vLANE, vL16, vLO4, vG, vLO5, vHI5, vSTAMP, vSCR = 255, 254, 253, 252, 251, 250, 249, 248

A = Asm()
AUTO = dict(on=False, t=0, nxt=0, xn=0, busy=False, any=False, int=OPT['EINT'])
_e = A.e
def e_time(s):
    mn = s.split()[0]
    AUTO['t'] += 8 if mn in TRANS else 12 if mn.startswith(('buffer_', 'ds_write')) else 4
    _e(s)
A.e = e_time
def e(s):
    A.e(s)
    ok = s.startswith('v_') or (AUTO['any'] and s.startswith('s_') and not s.startswith(('s_cmp', 's_bitcmp', 's_memtime', 's_wait')))
    if AUTO['on'] and not AUTO['busy'] and ok and DQ.ready() and AUTO['t'] >= AUTO['nxt']:
        AUTO['busy'] = True
        AUTO['nxt'] = max(AUTO['nxt'], AUTO['t'] - 2 * AUTO['int']) + AUTO['int']
        DQ.popD()
        AUTO['busy'] = False
    elif AUTO['on'] and not AUTO['busy'] and ok and XQ.ready() and AUTO['t'] >= AUTO['xn']:
        AUTO['busy'] = True
        AUTO['xn'] = max(AUTO['xn'], AUTO['t'] - 2 * OPT['XI']) + OPT['XI'] * XQ.cost()
        XQ.pop1()
        AUTO['busy'] = False
def auto(on):
    AUTO['on'] = on
EXPECT = dict([('st%d' % v, 9) for v in range(8)] + [('stat', 4), ('W', 38 - 8 * OPT['DEF']), ('Wd', 8 * OPT['DEF']), ('Wa', 20), ('Wb', 2), ('Wc0', 8), ('Wc1', 8), ('b1', 5), ('srow', 2), ('lb', 4), ('px', 2 if OPT['PH'] else 4), ('res', 8)])
ISSUED = {}
_vm, _wv = A.vmem, A.wait_vm
def vm_hook(s, tag='x', opt=False):
    ISSUED[tag] = ISSUED.get(tag, 0) + 1
    if OPT['X'] & 1 and ' lds' in s and tag not in ('st0', 'st1'):
        return
    if OPT['HP'] & 1 and tag in ('HM', 'HS') or OPT['HP'] & 2 and tag in ('fa', 'fb'):
        s = s.replace(' sc1', ' nt' if OPT['HP'] & 4 else '')
    if tag in ('HM', 'HS', 'HE') and OPT['HP'] & 24:
        s = s.replace(' sc1', ' sc1 nt' if OPT['HP'] & 8 else ' sc0 sc1')
    if tag == 'pxs' and OPT['HP'] & 96:
        s = s.replace(' sc1', ' sc1 nt' if OPT['HP'] & 32 else ' sc0 sc1')
    if tag[0] == 'h' and tag[1:].isdigit() and OPT['HP'] & 384:
        s = s.replace(' sc1', ' sc1 nt' if OPT['HP'] & 128 else ' sc0')
    if tag in ('pa', 'pb') and OPT['HP'] & 512:
        s = s.replace(' sc1', ' sc0')
    _vm(s, tag, opt)
def wv_hook(tags):
    for t in ([tags] if isinstance(tags, str) else tags):
        assert ISSUED.get(t, 0) >= EXPECT.get(t, 1), (t, ISSUED.get(t, 0))
    _wv(tags)
A.vmem, A.wait_vm = vm_hook, wv_hook
DSN = {}
_ds = A.ds
def ds_hook(s, tag='x'):
    DSN[tag] = DSN.get(tag, 0) + 1
    if OPT['X'] & 4 and tag[0] in 'xa' and tag[1].isdigit():
        return
    if OPT['X'] & 32 and tag == 'csw' or OPT['X'] & 64 and tag == 'cso':
        return
    _ds(s, tag)
A.ds = ds_hook
SNAMES = {}
import os
SKIP = os.environ.get('SKIP', 'b1,b3,fa,fb,d0,tab').split(',')
HST = [int(x) for x in os.environ.get('HST', '0,6,12,19,26,32').split(',')]
pending = []
SPAIRS = [96, 98, 100]
def flush_stamps():
    for (i, p) in pending:
        e('v_writelane_b32 %s, %s, %d' % (vr(vSTAMP), sr(p), i))
    del pending[:]
_wl0 = A.wait_lg0
def wait_lg0_hook():
    _wl0()
    flush_stamps()
A.wait_lg0 = wait_lg0_hook
DT = os.environ.get('DT', 'rt0,t0,karg,lam,st0,a3,kloop,Spub,gelu,Sgot,epi,paok,pbok,mfma2,pxok,drained').split(',')
def stamp(name, real=False):
    if not PROF:
        A.label('L_m_' + name)
    if not PROF or name in SKIP:
        return
    if os.environ.get('ONLY') and name not in ['rt0', 't0', 'drained', 'rt1'] + os.environ['ONLY'].split(','):
        return
    if DBGT:
        if name not in DT:
            return
        real = True
    if os.environ.get('REAL') and name not in ('t0', 'drained'):
        real = True
    assert name not in SNAMES
    SNAMES[name] = len(SNAMES)
    i = SNAMES[name]
    assert i < 57
    if len(pending) == len(SPAIRS):
        A.wait_lg0()
    used = [p for (_, p) in pending]
    p = [q for q in SPAIRS if q not in used][0]
    e('%s %s' % ('s_memrealtime' if real else 's_memtime', sr(p, 2)))
    pending.append((i, p))
def count(slot):
    if PROF and not os.environ.get('ONLY'):
        e('v_writelane_b32 %s, %s, %d' % (vr(vSTAMP), sr(sCNT), slot))

def srd(d, p, size):
    e('s_mov_b32 %s, %s' % (sr(d), sr(p)))
    e('s_mov_b32 %s, %s' % (sr(d + 1), sr(p + 1)))
    e('s_mov_b32 %s, 0x%x' % (sr(d + 2), size))
    e('s_mov_b32 %s, 0x20000' % sr(d + 3))

def cmul(dr, di, ar_, ai, br, bi):
    e('v_mul_f32 %s, %s, %s' % (vr(dr), vr(ar_), vr(br)))
    e('v_mul_f32 %s, %s, %s' % (vr(di), vr(ar_), vr(bi)))
    e('v_fma_f32 %s, -%s, %s, %s' % (vr(dr), vr(ai), vr(bi), vr(dr)))
    e('v_fma_f32 %s, %s, %s, %s' % (vr(di), vr(ai), vr(br), vr(di)))

def cfma(dr, di, ar_, ai, br, bi, cr, ci):
    e('v_fma_f32 %s, %s, %s, %s' % (vr(dr), vr(ar_), vr(br), vr(cr)))
    e('v_fma_f32 %s, %s, %s, %s' % (vr(di), vr(ar_), vr(bi), vr(ci)))
    e('v_fma_f32 %s, -%s, %s, %s' % (vr(dr), vr(ai), vr(bi), vr(dr)))
    e('v_fma_f32 %s, %s, %s, %s' % (vr(di), vr(ai), vr(br), vr(di)))

NEG1 = 'neg_lo:[0,1,0] neg_hi:[0,1,0]'
def pk_cfma4(dr, di, ar_, ai, k, cr, ci):
    for h in (0, 2):
        e('v_pk_fma_f32 %s, %s, %s, %s' % (vr(dr + h, 2), vr(ar_ + h, 2), vr(k + h, 2), vr(cr + h, 2)))
    for h in (0, 2):
        e('v_pk_fma_f32 %s, %s, %s, %s' % (vr(di + h, 2), vr(ai + h, 2), vr(k + h, 2), vr(ci + h, 2)))
    for h in (0, 2):
        e('v_pk_fma_f32 %s, %s, %s, %s %s' % (vr(dr + h, 2), vr(ai + h, 2), vr(k + 4 + h, 2), vr(dr + h, 2), NEG1))
    for h in (0, 2):
        e('v_pk_fma_f32 %s, %s, %s, %s' % (vr(di + h, 2), vr(ar_ + h, 2), vr(k + 4 + h, 2), vr(di + h, 2)))

labn = [0]
def newlab(s):
    labn[0] += 1
    return 'L_%s_%d' % (s, labn[0])

PGS = os.environ.get('PGS', 'st0').split(',')
def page(name):
    if name not in PGS or not OPT['PG'] & 6:
        return
    k = PGS.index(name)
    A.e('s_branch L_pg_%d' % k)
    if OPT['PG'] & 2:
        A.lines.append('.p2align 12')
    if OPT['PG'] & 4:
        A.label('L_stub_%d' % k)
        A.e('s_branch %s' % ('L_stub_%d' % (k + 4) if 0 < k < len(PGS) - 4 else 'L_back'))
    A.label('L_pg_%d' % k)
def touch_pages(k):
    if OPT['PG'] & 8 and OPT['PGT'] == k:
        A.e('s_mov_b64 exec, 0')
        for w in range(3):
            A.e('s_cmp_eq_u32 %s, %d' % (sr(sW), w))
            A.e('s_cbranch_scc1 L_stub_%d' % w)
        A.e('s_branch L_stub_3')
        A.label('L_back')
        A.e('s_mov_b64 exec, -1')
    if not OPT['PG'] & 4 or OPT['PGT'] != k:
        return
    for w in range(3):
        A.e('s_cmp_eq_u32 %s, %d' % (sr(sW), w))
        A.e('s_cbranch_scc1 L_stub_%d' % (w + 1))
    A.e('s_branch L_stub_4')
    A.label('L_back')

def S(fmt, *a):
    e(fmt % tuple(sr(x) if isinstance(x, int) else x for x in a))

def retry_loop(name, issue, check, slot, first=True, after=None):
    lo, ld = newlab(name + 'l'), newlab(name + 'd')
    if first:
        check()
    if PROF:
        S('s_mov_b32 %s, 0', sCNT)
    e('s_cbranch_vccz %s' % ld)
    S('s_mov_b32 %s, 0', sCNT)
    A.label(lo)
    sv = list(A.vm)
    issue()
    e('s_waitcnt vmcnt(0)')
    if after:
        after()
    A.vm = sv
    check()
    S('s_add_u32 %s, %s, 1', sCNT, sCNT)
    e('s_cbranch_vccz %s' % ld)
    S('s_cmp_le_u32 %s, 0x20000', sCNT)
    e('s_cbranch_scc1 %s' % lo)
    A.label(ld)
    count(slot)

def one_lane_store(vt, soff, tag, opt=False, sc=' sc1'):
    e('v_mov_b32 %s, %s' % (vr(vt), sr(sTAG)))
    e('v_mov_b32 %s, 0' % vr(vt + 1))
    e('s_mov_b64 exec, 1')
    A.vmem('buffer_store_dword %s, %s, %s, %s offen%s' % (vr(vt), vr(vt + 1), sr(dWS, 4), soff, sc), tag, opt=opt)
    e('s_mov_b64 exec, -1')
def flag(off, tag):
    S('s_add_u32 %s, %s, %s', sT0, sFL, hex(off))
    e('s_mov_b32 exec_hi, 0')
    if OPT['FT'] == 2:
        S('s_add_u32 %s, %s, 0x40000', sT1, sT0)
        A.vmem('buffer_store_dword %s, %s, %s, %s offen' % (vr(vTAG), vr(vTM), sr(dWS, 4), sr(sT1)), tag)
    A.vmem('buffer_store_dword %s, %s, %s, %s offen sc1' % (vr(vTAG), vr(vTM), sr(dWS, 4), sr(sT0)), tag)
    e('s_mov_b32 exec_hi, -1')

class Q:
    def __init__(self):
        self.q = []
        self.open = set([None])
    def add(self, ops, gate=None):
        self.q += [(c, f, gate) for (c, f) in ops]
    def ready(self):
        return bool(self.q) and self.q[0][2] in self.open
    def cost(self):
        return self.q[0][0]
    def pop1(self):
        self.q.pop(0)[1]()
    def popD(self, n=1):
        while n > 0 and self.ready():
            if self.cost() == 'D':
                n -= 1
            self.pop1()
    def pop(self, n):
        while n > 0 and self.ready():
            c = self.cost()
            n -= 2 if c == 'D' else c
            self.pop1()
    def flush(self):
        while self.q:
            assert self.ready(), self.q[0][2]
            self.pop1()

class Ops(list):
    def v(self, s, c=1):
        self.append((c, lambda: e(s)))
    def s(self, fmt, *a):
        self.append((1, lambda: S(fmt, *a)))
    def f(self, fn, c=1):
        self.append((c, fn))

DQ = Q()
XQ = Q()
FQ = Q()
ACC, CS, XF, AF, ONE = 0, 80, 100, 132, 152
XA, BA, WA = 156, 160, 164
vX, vB, vW1, vW2 = 168, 170, 172, 175
B1, ST, SS, TMP = 180, 188, 204, 212
BU = TMP + 4
vTB, vTI, vTC, vTG, vSXW, vSXR, vCW, vCR, vPF, vTM, vXO, vGO = range(TMP + 16, TMP + 28)
vPA = TMP + 28
vSA, vTRL, vTAG = 177, 178, 179
vWT, vCT, vPW, vCO = 244, 245, 246, 247
sPM = 40
U0, U1 = 186, 187
SR = ST

e('s_cmp_ge_u32 s2, 256')
e('s_cbranch_scc1 L_end')
if PROF:
    e('v_mov_b32 %s, 0' % vr(vSTAMP))
    stamp('rt0', True)
    stamp('t0')
e('s_load_dwordx16 s[16:31], s[0:1], 0')
e('s_load_dwordx16 s[32:47], s[0:1], 64')
e('s_load_dwordx2 s[48:49], s[0:1], 128')
e('s_getpc_b64 %s' % sr(sPC, 2))
A.label('L_pc')
e('v_and_b32 %s, 63, v0' % vr(vLANE))
e('v_lshrrev_b32 v1, 6, v0')
e('v_lshlrev_b32 %s, 4, %s' % (vr(vL16), vr(vLANE)))
e('v_readfirstlane_b32 %s, v1' % sr(sW))
if OPT['CPF'] == 0:
    e('v_lshlrev_b32 v2, 7, v0')
    e('v_min_u32 v2, L_end-L_pc, v2')
    lab = newlab('npf')
    e('s_cmp_ge_u32 s2, 16')
    e('s_cbranch_scc1 %s' % lab)
    A.vmem('global_load_dword %s, v2, %s' % (vr(vSCR), sr(sPC, 2)), 'pf', opt=True)
    A.label(lab)
else:
    n = OPT['CPF']
    e('v_lshrrev_b32 v2, %d, v0' % (6 - n))
    e('s_and_b32 s3, s2, %d' % (0xf8 >> (n - 1) & 0xf8))
    e('s_lshl_b32 s3, s3, %d' % (6 + n))
    e('v_lshl_add_u32 v2, v2, 7, s3')
    e('v_min_u32 v2, L_end-L_pc, v2')
    A.vmem('global_load_dword %s, v2, %s' % (vr(vSCR), sr(sPC, 2)), 'pf')
S('s_and_b32 %s, s2, 1', sKH)
S('s_lshr_b32 %s, s2, 6', sRBL)
S('s_bfe_u32 %s, s2, 0x30003', sC)
S('s_bfe_u32 s3, s2, 0x20001')
S('s_lshl2_add_u32 %s, s3, %s', sRB, sRBL)
S('s_lshl3_add_u32 %s, %s, %s', sJ, sKH, sC)
S('s_lshl2_add_u32 %s, s2, %s', sGW, sW)
if OPT['ROT'] == 0:
    S('s_mov_b32 %s, 0x76543210', sPERM)
elif OPT['ROT'] == 9:
    PT = [[0, 4, 1, 2, 3, 5, 6, 7], [1, 2, 5, 3, 0, 4, 6, 7], [2, 3, 0, 6, 1, 4, 5, 7], [3, 0, 1, 2, 7, 4, 5, 6]]
    PT = [hex(sum(x << (4 * i) for i, x in enumerate(p))) for p in PT]
    S('s_add_u32 %s, %s, %s', sT0, sRBL, sC)
    S('s_mov_b32 %s, %s', sPERM, PT[0])
    S('s_mov_b32 %s, %s', sT1, PT[2])
    S('s_bitcmp1_b32 %s, 0', sT0)
    S('s_cselect_b32 %s, %s, %s', sPERM, PT[1], sPERM)
    S('s_cselect_b32 %s, %s, %s', sT1, PT[3], sT1)
    S('s_bitcmp1_b32 %s, 1', sT0)
    S('s_cselect_b32 %s, %s, %s', sPERM, sT1, sPERM)
    S('s_add_u32 %s, s3, %s', sT1, sKH)
    S('s_bitcmp1_b32 %s, 0', sT1)
    S('s_cselect_b32 %s, 0x44444444, 0', sT1)
    S('s_xor_b32 %s, %s, %s', sPERM, sPERM, sT1)
elif OPT['ROT'] == 10:
    PT = [[int(c) for c in p] for p in os.environ.get('PT', '01423567,02136457,10253467,13024756').split(',')]
    assert all(sorted(p) == list(range(8)) for p in PT)
    PT = [hex(sum(x << (4 * i) for i, x in enumerate(p))) for p in PT]
    S('s_add_u32 %s, %s, %s', sT0, sRBL, sC)
    S('s_mov_b32 %s, %s', sPERM, PT[0])
    S('s_mov_b32 %s, %s', sT1, PT[2])
    S('s_bitcmp1_b32 %s, 0', sT0)
    S('s_cselect_b32 %s, %s, %s', sPERM, PT[1], sPERM)
    S('s_cselect_b32 %s, %s, %s', sT1, PT[3], sT1)
    S('s_bitcmp1_b32 %s, 1', sT0)
    S('s_cselect_b32 %s, %s, %s', sPERM, sT1, sPERM)
    S('s_lshl1_add_u32 %s, %s, s3', sT1, sKH)
    S('s_and_b32 %s, %s, 3', sT1, sT1)
    S('s_mul_i32 %s, %s, 0x22222222', sT1, sT1)
    S('s_xor_b32 %s, %s, %s', sPERM, sPERM, sT1)
elif OPT['ROT'] == 8:
    S('s_lshl1_add_u32 %s, %s, %s', sT0, sRBL, sC)
    S('s_add_u32 %s, %s, s3', sT0, sT0)
    S('s_and_b32 %s, %s, 7', sT0, sT0)
    S('s_mul_i32 %s, %s, 0x11111111', sT0, sT0)
    S('s_add_u32 %s, %s, 0x76543210', sT0, sT0)
    S('s_and_b32 %s, %s, 0x77777777', sPERM, sT0)
else:
    S('s_add_u32 %s, %s, %s', sT0, sRBL, sC)
    S('s_and_b32 %s, %s, 3', sT0, sT0)
    S('s_mul_i32 %s, %s, 0x11111111', sT0, sT0)
    S('s_add_u32 %s, %s, 0x32103210', sT0, sT0)
    S('s_and_b32 %s, %s, 0x33333333', sT0, sT0)
    if OPT['ROT'] == 4:
        S('s_add_u32 %s, s3, %s', sT1, sKH)
    elif OPT['ROT'] == 6:
        S('s_mov_b32 %s, 0', sT1)
    else:
        S('s_lshr_b32 %s, %s, 2', sT1, sC)
        S('s_add_u32 %s, %s, s3', sT1, sT1)
    S('s_bitcmp0_b32 %s, 0', sT1)
    S('s_mov_b32 %s, 0x4444', sT1)
    S('s_cselect_b32 %s, 0x44440000, %s', sT1, sT1)
    S('s_or_b32 %s, %s, %s', sPERM, sT0, sT1)
e('v_lshrrev_b32 %s, 5, %s' % (vr(vHI5), vr(vLANE)))
e('v_and_b32 %s, 31, %s' % (vr(vLO5), vr(vLANE)))
e('v_lshrrev_b32 %s, 4, %s' % (vr(vG), vr(vLANE)))
e('v_and_b32 %s, 15, %s' % (vr(vLO4), vr(vLANE)))
S('s_lshr_b32 %s, %s, 1', sTH, sW)
S('s_and_b32 %s, %s, 1', sPH, sW)
e('v_and_b32 v1, 7, %s' % vr(vLANE))
e('v_lshrrev_b32 v3, 3, %s' % vr(vLANE))
e('v_xor_b32 v4, v1, %s' % vr(vG))
e('v_lshlrev_b32 v4, 4, v4')
S('s_lshl1_add_u32 %s, %s, %s', sT0, sRB, sTH)
S('s_lshl_b32 %s, %s, 6', sT0, sT0)
S('s_add_u32 %s, %s, %s', sT0, sT0, sPH)
S('s_lshl_b32 %s, %s, 10', sT0, sT0)
e('v_lshl_add_u32 v5, v3, 12, v4')
e('v_add_u32 %s, %s, v5' % (vr(vX), sr(sT0)))
e('v_xor_b32 %s, 64, %s' % (vr(vX + 1), vr(vX)))
e('v_add_u32 %s, %d, %s' % (vr(vX + 1), 31 * 1024, vr(vX + 1)))
S('s_lshl1_add_u32 %s, %s, %s', sCG, sJ, sTH)
S('s_lshl_b32 %s, %s, 14', sCG, sCG)
e('v_lshl_add_u32 v5, v3, 10, v4')
e('v_add_u32 %s, %s, v5' % (vr(vB), sr(sCG)))
e('v_xor_b32 %s, 64, %s' % (vr(vB + 1), vr(vB)))
e('v_add_u32 %s, %d, %s' % (vr(vB + 1), 7 * 1024, vr(vB + 1)))
S('s_lshr_b32 %s, %s, 2', sT0, sJ)
S('s_mul_i32 %s, %s, 22', sT0, sT0)
S('s_and_b32 %s, %s, 3', sT1, sJ)
if OPT['ZJ']:
    S('s_cmp_eq_u32 %s, 3', sT1)
    S('s_cselect_b32 %s, 8, 0', sU0)
S('s_mul_i32 %s, %s, 6', sT1, sT1)
S('s_add_u32 %s, %s, %s', sJT, sT0, sT1)
S('s_lshl_b32 %s, %s, 5', sSW, sJT)
S('s_mul_i32 %s, %s, %s', sT0, sW, str(16 * 2752))
S('s_add_u32 %s, %s, %s', sSW, sSW, sT0)
S('s_movk_i32 %s, 5462', sT0)
S('s_movk_i32 %s, 2752', sT1)
for i in range(3):
    e('v_add_u32 v6, %d, %s' % (64 * i, vr(vLANE)))
    e('v_mul_u32_u24 v7, %s, v6' % sr(sT0))
    e('v_lshrrev_b32 v7, 16, v7')
    e('v_mul_u32_u24 v8, 12, v7')
    e('v_sub_u32 v6, v6, v8')
    e('v_lshrrev_b32 v8, 3, v7')
    e('v_lshlrev_b32 v8, 1, v8')
    e('v_xor_b32 v6, v6, v8')
    e('v_mul_u32_u24 v7, %s, v7' % sr(sT1))
    if OPT['ZJ']:
        e('v_and_b32 v8, %s, v6' % sr(sU0))
        e('v_lshl_add_u32 v7, v8, 27, v7')
    e('v_lshl_add_u32 v6, v6, 4, v7')
    e('v_add_u32 %s, %s, v6' % (vr(vW1 + i), sr(sSW)))
    if i < 2:
        S('s_sub_u32 %s, %s, 1024', sSW, sSW)
S('s_mul_i32 %s, %s, %s', sM0, sW, str(PIECE))
S('s_lshl_b32 %s, %s, 6', sT0, sJ)
e('v_lshl_add_u32 v9, %s, 1, %s' % (vr(vLO5), sr(sT0)))
e('v_mov_b32 v10, 0')
S('s_mov_b32 %s, 0x200000', dX + 2)
S('s_mov_b32 %s, 0x20000', dX + 3)
S('s_mov_b32 %s, 0x80000', dB + 2)
S('s_mov_b32 %s, 0x20000', dB + 3)
S('s_mov_b32 %s, %s', dW1 + 2, str(512 * 2752))
S('s_mov_b32 %s, 0x20000', dW1 + 3)
S('s_mov_b32 %s, %s', dWS + 2, hex(WS_SIZE))
S('s_mov_b32 %s, 0x20000', dWS + 3)
S('s_movk_i32 %s, 2752', dO + 2)
S('s_mov_b32 %s, 0x20000', dO + 3)
S('s_add_u32 %s, %s, %s', sT0, sJT, sPH)
S('s_lshl_b32 %s, %s, 5', sT0, sT0)
e('v_lshl_add_u32 v15, %s, 3, %s' % (vr(vG), sr(sT0)))
S('s_lshl_b32 %s, %s, 7', sT1, sC)
e('v_lshl_add_u32 v16, %s, 3, %s' % (vr(vLO4), sr(sT1)))

def stage_dma(v):
    slot = v & 3
    tag = 'st%d' % v
    ops = []
    sc = lambda fmt, *a: ops.append((1, lambda: S(fmt, *a)))
    dm = lambda txt: ops.append(('D', lambda: A.vmem(txt, tag)))
    sc('s_bfe_u32 %s, %s, %s', sSW, sPERM, '0x%x' % (4 * v + 0x30000))
    sc('s_add_u32 m0, %s, %s', sM0, str(slot * SLOT + 4096))
    sc('s_lshl_b32 %s, %s, 7', sSX, sSW)
    for i in range(2):
        dm('buffer_load_dwordx4 %s, %s, %s offen offset:%d%s lds' % (vr(vB + i), sr(dB, 4), sr(sSX), i * 1024, ' nt' if v <= OPT['NTW'] else ''))
    sc('s_add_u32 m0, %s, %s', sM0, str(slot * SLOT + 6144))
    sc('s_mul_i32 %s, %s, %s', sSW, sSW, str(64 * 2752))
    for i in range(3):
        dm('buffer_load_dwordx4 %s, %s, %s offen offset:%d%s lds' % (vr(vW1 + i), sr(dW1, 4), sr(sSW), i * 1024, ' nt' if v <= OPT['NTW'] else ''))
    sc('s_add_u32 m0, %s, %s', sM0, str(slot * SLOT))
    for i in range(4):
        dm('buffer_load_dwordx4 %s, %s, %s offen offset:%d%s lds' % (vr(vX + (i & 1)), sr(dX, 4), sr(sSX), i * 1024, ' nt' if v <= OPT['NTX'] else ''))
    return ops

S('s_lshl1_add_u32 %s, %s, %s', sT0, sRB, sKH)
S('s_and_b32 %s, %s, 1', sT1, sJ)
S('s_lshl1_add_u32 %s, %s, %s', sT0, sT0, sT1)
S('s_lshl2_add_u32 %s, %s, %s', sT0, sT0, sW)
S('s_bfe_u32 %s, %s, 0x20001', sT1, sJ)
S('s_lshl3_add_u32 %s, %s, %s', sT0, sT0, sT1)
S('s_lshl_b32 %s, %s, 10', sM8, sT0)
e('v_lshlrev_b32 %s, 12, %s' % (vr(vSA), vr(vHI5)))
e('v_lshl_add_u32 %s, %s, 4, %s' % (vr(vSA), vr(vLO5), vr(vSA)))
d0 = stage_dma(0)
for (c, f) in d0[:3]:
    f()
if OPT['FTP'] == 1:
    S('s_lshl4_add_u32 %s, %s, %s', sT0, sRB, sJ)
    S('s_lshl2_add_u32 %s, %s, %s', sT0, sT0, sW)
    S('s_lshl_b32 %s, %s, 7', sT0, sT0)
    S('s_add_u32 %s, %s, %s', sT0, sT0, hex(WS_FA + 0x40000))
    e('v_and_b32 v17, 1, %s' % vr(vLANE))
    e('v_lshl_add_u32 v17, v17, 17, %s' % sr(sT0))
if OPT['CT']:
    e('v_lshrrev_b32 v17, 1, %s' % vr(vLANE))
    e('v_and_b32 v18, 1, %s' % vr(vLANE))
    e('v_lshlrev_b32 v18, 7, v18')
    e('v_lshl_add_u32 v17, v17, 10, v18')
    S('s_and_b32 %s, %s, -256', sT1, sSX)
if OPT['CT'] & 1:
    S('s_lshl3_add_u32 %s, %s, %s', sT0, sRBL, sC)
    S('s_lshl2_add_u32 %s, %s, %s', sT0, sT0, sW)
    S('s_lshr_b32 %s, %s, 1', sU0, sT1)
    S('s_add_u32 %s, %s, %s', sT0, sT0, sU0)
    S('s_mul_i32 %s, %s, 2752', sT0, sT0)
    S('s_mul_i32 %s, %s, 1408', sU0, sKH)
    S('s_add_u32 %s, %s, %s', sT0, sT0, sU0)
    e('v_lshl_add_u32 v19, %s, 7, %s' % (vr(vLANE), sr(sT0)))
if OPT['CT'] & 2:
    S('s_lshl1_add_u32 %s, %s, %s', sT0, sRB, sKH)
    S('s_xor_b32 %s, %s, 1', sT0, sT0)
    S('s_lshl3_add_u32 %s, %s, %s', sT0, sT0, sC)
    S('s_lshl2_add_u32 %s, %s, %s', sT0, sT0, sW)
    S('s_lshl_b32 %s, %s, 11', sT0, sT0)
    S('s_add_u32 %s, %s, %s', sT0, sT0, sT1)
    e('v_add_u32 v18, %s, v17' % sr(sT0))
if OPT['CT'] & 4:
    S('s_lshl2_add_u32 %s, %s, %s', sT0, sJ, sRBL)
    S('s_lshl1_add_u32 %s, %s, %s', sT0, sT0, sTH)
    S('s_lshl_b32 %s, %s, 12', sT0, sT0)
    S('s_add_u32 %s, %s, %s', sT0, sT0, sT1)
    e('v_add_u32 v17, %s, v17' % sr(sT0))
def coop_touch(k):
    if not OPT['CT'] or OPT['CTP'] != k:
        return
    for (bit, m, v, d) in ((1, 0xfff, 19, dW1), (2, 0xf, 18, dX), (4, 0xff, 17, dB)):
        if OPT['CT'] & bit:
            e('s_mov_b64 exec, 0x%x' % m)
            A.vmem('buffer_load_dword %s, v%d, %s, 0 offen' % (vr(vSCR), v, sr(d, 4)), 'touch')
    e('s_mov_b64 exec, -1')
P = Ops()
P.v('v_lshrrev_b32 v1, 1, %s' % vr(vLO4))
P.v('v_xor_b32 v1, v1, %s' % vr(vG))
P.v('v_lshlrev_b32 v1, 4, v1')
P.v('v_lshl_add_u32 v1, %s, 7, v1' % vr(vLO4))
P.s('s_lshl_b32 %s, %s, 6', sT0, sTH)
P.v('v_xor_b32 v1, %s, v1' % sr(sT0))
P.v('v_xor_b32 v2, 64, v1')
P.s('s_mul_i32 %s, %s, %s', sT0, sTH, str(2 * PIECE))
P.s('s_mul_i32 %s, %s, %s', sT1, sPH, str(2 * PIECE))
P.s('s_add_u32 %s, %s, 4096', sT1, sT1)
for k in range(2):
    P.v('v_add_u32 %s, %s, v%d' % (vr(XA + 2 * k), sr(sT0), 1 + k))
    P.v('v_add_u32 %s, %s, v%d' % (vr(BA + 2 * k), sr(sT1), 1 + k))
    P.v('v_add_u32 %s, %d, %s' % (vr(XA + 2 * k + 1), 2 * SLOT, vr(XA + 2 * k)))
    P.v('v_add_u32 %s, %d, %s' % (vr(BA + 2 * k + 1), 2 * SLOT, vr(BA + 2 * k)))
P.v('v_bfe_u32 v1, %s, 2, 2' % vr(vLANE))
P.v('v_bfe_u32 v2, %s, 4, 1' % vr(vLANE))
P.v('v_lshl_add_u32 v3, v2, 3, v1')
P.v('v_mul_u32_u24 v3, 192, v3')
P.v('v_xor_b32 v4, %s, v2' % sr(sPH))
P.v('v_lshl_add_u32 v3, v4, 5, v3')
P.v('v_and_b32 v4, 3, %s' % vr(vLANE))
P.v('v_lshl_add_u32 v3, v4, 3, v3')
P.s('s_movk_i32 %s, %s', sT1, str(PIECE))
P.v('v_mad_u32_u24 v3, %s, %s, v3' % (vr(vHI5), sr(sT1)))
P.s('s_add_u32 %s, %s, 6144', sT1, sT0)
P.s('s_sub_u32 %s, %s, %s', sT0, str(2 * PIECE + 6144), sT0)
P.v('v_add_u32 %s, %s, v3' % (vr(WA), sr(sT1)))
P.v('v_add_u32 %s, %s, v3' % (vr(WA + 2), sr(sT0)))
P.v('v_add_u32 %s, %d, %s' % (vr(WA + 1), 2 * SLOT, vr(WA)))
P.v('v_add_u32 %s, %d, %s' % (vr(WA + 3), 2 * SLOT, vr(WA + 2)))
P.v('v_and_b32 v5, 7, %s' % vr(vLANE))
P.v('v_lshlrev_b32 v6, 2, v2')
P.v('v_xor_b32 v5, v5, v6')
P.v('v_lshlrev_b32 v5, 4, v5')
P.v('v_lshrrev_b32 v6, 3, %s' % vr(vLANE))
P.v('v_lshl_add_u32 %s, v6, 10, v5' % vr(vW2))
P.v('v_add_u32 %s, %d, %s' % (vr(vW2 + 1), 7 * 1024, vr(vW2)))
P.v('v_lshl_add_u32 v5, %s, 3, v1' % vr(vHI5))
P.v('v_lshlrev_b32 v5, 7, v5')
P.v('v_lshrrev_b32 v6, 1, v1')
P.v('v_lshl_add_u32 v5, v6, 6, v5')
P.v('v_lshl_add_u32 v5, v2, 5, v5')
P.v('v_lshl_add_u32 %s, v4, 3, v5' % vr(vTRL))
P.v('v_mov_b32 %s, 0x3f803f80' % vr(ONE))
for q in range(5):
    P.v('v_cmp_eq_u32 %s, %d, %s' % (sr(sMSK[q & 3], 2) if q < 4 else 'vcc', q, vr(vLO4)))
for q in range(5):
    P.v('v_cndmask_b32 %s, 0, %s, %s' % (vr(CS + 4 * q), vr(ONE), sr(sMSK[q & 3], 2) if q < 4 else 'vcc'))
for q in range(5):
    P.v('v_mov_b32 %s, %s' % (vr(CS + 4 * q + 1), vr(CS + 4 * q)))
for q in range(5):
    P.v('v_mov_b64 %s, %s' % (vr(CS + 4 * q + 2, 2), vr(CS + 4 * q, 2)))
P.s('s_lshl2_add_u32 %s, %s, %s', sT1, sKH, sW)
P.s('s_lshl_b32 %s, %s, 9', sCO, sC)
P.s('s_add_u32 %s, %s, %s', sCO, sCO, sT1)
P.s('s_lshl_b32 %s, %s, 7', sCO, sCO)
P.s('s_lshr_b32 %s, %s, 1', sT0, sT1)
P.s('s_mul_i32 %s, %s, 22', sT0, sT0)
P.s('s_add_u32 %s, %s, %s', sT0, sT0, sPH)
P.s('s_lshl_b32 %s, %s, 7', sWS, sT0)
P.s('s_add_u32 %s, %s, %s', sWS, sWS, sC)
P.s('s_lshl_b32 %s, %s, 7', sWS, sWS)
P.v('v_lshlrev_b32 %s, 10, %s' % (vr(vCT), vr(vLANE)))
P.v('v_lshrrev_b32 %s, 2, %s' % (vr(U0), vr(vLANE)))
P.v('v_mad_u32_u24 %s, v4, 3, %s' % (vr(U0), vr(U0)))
P.s('s_lshl2_add_u32 %s, %s, s3', sU0, sRBL)
P.s('s_lshl_b32 %s, %s, 10', sT1, sU0)
P.v('v_lshl_add_u32 %s, %s, 15, %s' % (vr(vPW), vr(U0), sr(sT1)))
P.s('s_lshl_b32 %s, %s, 2', sU0, sU0)
P.s('s_mov_b32 %s, %s', dW2 + 2, str(1376 * 1024))
P.s('s_mov_b32 %s, 0x20000', dW2 + 3)
P.s('s_mul_i32 %s, %s, %s', sME, sTH, str(SLOT))
P.s('s_lshl_b32 %s, %s, 11', sT0, sPH)
P.s('s_add_u32 %s, %s, %s', sME, sME, sT0)
P.s('s_add_u32 %s, %s, 32768', sME, sME)
P.s('s_lshl_b32 %s, %s, 6', sT0, sPH)
P.s('s_add_u32 %s, %s, %s', sT0, sT0, str(TAB))
P.s('s_movk_i32 %s, %s', sT1, str(TROW))
P.v('v_lshl_add_u32 %s, %s, 4, %s' % (vr(vTB), vr(vG), sr(sT0)))
P.v('v_lshl_add_u32 %s, %s, 2, %s' % (vr(vTC), vr(vLO4), sr(sT0)))
P.v('v_mad_u32_u24 %s, %s, %s, %s' % (vr(vTI), vr(vLO4), sr(sT1), vr(vTB)))
P.v('v_min_u32 %s, 1, %s' % (vr(U0), vr(vG)))
P.v('v_lshl_add_u32 %s, %s, 4, %s' % (vr(U0), vr(U0), vr(vG)))
P.v('v_mad_u32_u24 %s, %s, %s, %s' % (vr(vTG), vr(U0), sr(sT1), vr(vTC)))
P.s('s_mul_i32 %s, %s, 320', sT0, sW)
P.s('s_add_u32 %s, %s, %s', sT0, sT0, str(CSX))
P.v('v_lshl_add_u32 %s, %s, 4, %s' % (vr(vCO), vr(vG), sr(sT0)))
P.v('v_lshl_add_u32 %s, %s, 6, %s' % (vr(vCW), vr(vLO4), vr(vCO)))
P.s('s_xor_b32 %s, %s, 2', sT0, sW)
P.s('s_mul_i32 %s, %s, 320', sT0, sT0)
P.s('s_add_u32 %s, %s, %s', sT0, sT0, str(CSX))
P.v('v_lshl_add_u32 %s, %s, 4, %s' % (vr(vCR), vr(vG), sr(sT0)))
P.v('v_lshl_add_u32 %s, %s, 2, %s' % (vr(vSXW), vr(vLO4), sr(sT0)))
P.s('s_mul_i32 %s, %s, 320', sT0, sPH)
P.s('s_add_u32 %s, %s, %s', sT0, sT0, str(CSX))
P.v('v_lshl_add_u32 %s, %s, 2, %s' % (vr(vSXR), vr(vLO4), sr(sT0)))
P.s('s_sub_u32 %s, %s, 1', sT0, sRB)
P.v('v_sub_u32 %s, %s, %s' % (vr(U0), sr(sT0), vr(vG)))
P.v('v_lshlrev_b32 %s, 4, %s' % (vr(U1), vr(vLO4)))
for i in range(4):
    P.v('v_subrev_u32 %s, %d, %s' % (vr(vPA + i), 4 * i, vr(U0)))
    P.v('v_cmp_le_i32 %s, 0, %s' % (sr(sMSK[i], 2), vr(vPA + i)))
    P.v('v_max_i32 %s, 0, %s' % (vr(vPA + i), vr(vPA + i)))
    P.v('v_lshl_add_u32 %s, %s, 8, %s' % (vr(vPA + i), vr(vPA + i), vr(U1)))
P.v('v_lshlrev_b32 %s, 2, %s' % (vr(vTM), vr(vLO5)))
P.s('s_lshl1_add_u32 %s, %s, %s', sT0, sRB, sKH)
P.s('s_lshl1_add_u32 %s, %s, %s', sT0, sT0, sTH)
P.s('s_lshl2_add_u32 %s, %s, %s', sT0, sT0, sPH)
P.s('s_lshl_b32 %s, %s, 3', sT0, sT0)
P.v('v_and_b32 %s, 1, %s' % (vr(vGO), vr(vG)))
P.v('v_lshl_add_u32 %s, %s, 2, %s' % (vr(vGO), vr(vGO), vr(vHI5)))
P.v('v_lshl_add_u32 %s, %s, 2, %s' % (vr(U0), vr(vGO), sr(sT0)))
P.v('v_lshl_add_u32 %s, %s, 10, v16' % (vr(vXO), vr(U0)))
P.v('v_lshlrev_b32 %s, 4, %s' % (vr(vGO), vr(vGO)))
print('argument-free prologue ops', len(P))
for (c, f) in P[:OPT['NPK']]:
    f()
S('s_cmp_eq_u32 %s, 0', sPH)
stamp('pre')
A.wait_lg0()
stamp('karg')
S('s_cselect_b64 %s, %s, %s', sr(dB, 2), sr(pBRE, 2), sr(pBIM, 2))
S('s_mov_b64 %s, %s', sr(dX, 2), sr(pX, 2))
S('s_mov_b64 %s, %s', sr(dWS, 2), sr(pWS, 2))
lre, lim, ldt, vEP = 11, 12, 13, 14
if OPT['CT'] and OPT['CTP'] == 0:
    S('s_mov_b64 %s, %s', sr(dW1, 2), sr(pW1, 2))
coop_touch(0)
A.vmem('global_load_ushort %s, v9, %s' % (vr(lre), sr(pLRE, 2)), 'lam')
A.vmem('global_load_ushort %s, v9, %s' % (vr(lim), sr(pLIM, 2)), 'lam')
A.vmem('global_load_ushort %s, v9, %s' % (vr(ldt), sr(pLDT, 2)), 'lam')
A.vmem('buffer_load_dword %s, v10, %s, 0 offen sc1' % (vr(vEP), sr(dWS, 4)), 'lam')
if OPT['FTP'] == 1:
    A.vmem('buffer_load_dword %s, v17, %s, 0 offen' % (vr(vSCR), sr(dWS, 4)), 'touch')
if not (OPT['CT'] and OPT['CTP'] == 0):
    S('s_mov_b64 %s, %s', sr(dW1, 2), sr(pW1, 2))
coop_touch(1)
srow = [('D', lambda i=i: A.vmem('buffer_load_dwordx4 %s, %s, %s, %s offen offset:%d' % (vr(SR + 4 * i, 4), vr(vSA), sr(dX, 4), sr(sT2 if OPT['SRP'] else sM8), 512 * i), 'srow')) for i in range(2)]
if OPT['SRP']:
    S('s_mov_b32 %s, %s', sT2, sM8)
else:
    for (c, f) in srow:
        f()
S('s_mov_b64 %s, %s', sr(dO, 2), sr(pB1, 2))
def b1_loads():
    o = Ops()
    for v in range(3):
        o.f(lambda v=v: A.vmem('buffer_load_dwordx2 %s, v15, %s, 0 offen offset:%d' % (vr(B1 + 2 * v, 2), sr(dO, 4), 64 * v), 'b1'), 2)
    o.f(lambda: A.vmem('global_load_dwordx2 a[248:249], v16, %s' % sr(pDSK, 2), 'b1'), 2)
    o.f(lambda: A.vmem('global_load_dwordx2 a[250:251], v16, %s' % sr(pB2, 2), 'b1'), 2)
    o.s('s_mov_b32 %s, 0x80000', dO + 2)
    o.f(lambda: FQ.open.add('b1'), 0)
    return o
if OPT['B1P'] == -1:
    for (c, f) in b1_loads():
        f()
if OPT['PB']:
    e('s_barrier')
DQ.add(d0[3:])
if OPT['SRP'] == 1:
    DQ.add(srow)
if OPT['B1P'] == 0:
    DQ.add(b1_loads())
stamp('sm')
DQ.popD(OPT['D0A'])
AUTO.update(on=True, any=True, int=OPT['PINT'], nxt=AUTO['t'])
S('s_mov_b64 %s, %s', sr(dW2, 2), sr(pW2, 2))
S('s_lshl_b32 %s, %s, 13', sM8, sW)
for (c, f) in P[OPT['NPK']:]:
    f()
S('s_lshl_b64 %s, 15, %s', sr(sPM, 2), sU0)
S('s_lshl1_add_u32 %s, %s, %s', sT1, sRB, sKH)
S('s_lshl3_add_u32 %s, %s, %s', sGR, sT1, sTH)
S('s_lshl2_add_u32 %s, %s, %s', sGR, sGR, sPH)
S('s_lshl_b32 %s, %s, 5', sGR, sGR)
S('s_add_u32 %s, %s, %s', sGR, sGR, hex(WS_G + 8))
S('s_lshl1_add_u32 %s, %s, %s', sT0, sJ, sPH)
S('s_lshl_b32 %s, %s, 12', sT0, sT0)
S('s_add_u32 %s, %s, %s', sSG, sT0, hex(WS_SG))
S('s_lshl_b32 %s, %s, 8', sSGO, sRB)
S('s_add_u32 %s, %s, %s', sSGO, sSGO, sSG)
S('s_lshl1_add_u32 %s, %s, %s', sT1, sRB, sTH)
S('s_mul_i32 %s, %s, %s', sT1, sT1, str(HR))
S('s_add_u32 %s, %s, %s', sHS, sT0, sT1)
S('s_add_u32 %s, %s, %s', sHS, sHS, hex(WS_H + 88 * 2048))
S('s_add_u32 %s, %s, %s', sHM, sJT, sPH)
S('s_lshl_b32 %s, %s, 11', sHM, sHM)
S('s_add_u32 %s, %s, %s', sHM, sHM, sT1)
S('s_add_u32 %s, %s, %s', sHM, sHM, hex(WS_H))
S('s_lshl4_add_u32 %s, %s, %s', sFL, sRB, sJ)
S('s_lshl2_add_u32 %s, %s, %s', sFL, sFL, sW)
S('s_lshl_b32 %s, %s, 5', sF0, sFL)
S('s_add_u32 %s, %s, %s', sF0, sF0, hex(WS_G))
S('s_lshl_b32 %s, %s, 7', sFL, sFL)
if OPT['FT'] and not OPT['FTP']:
    on = AUTO['on']
    auto(False)
    S('s_add_u32 %s, %s, %s', sT0, sFL, hex(WS_FA + (0x40000 if OPT['FT'] == 2 else 0)))
    e('v_lshlrev_b32 v17, 17, %s' % vr(vLANE))
    e('s_mov_b64 exec, 3')
    A.vmem('buffer_load_dword %s, v17, %s, %s offen' % (vr(vSCR), sr(dWS, 4), sr(sT0)), 'touch')
    e('s_mov_b64 exec, -1')
    auto(on)
S('s_add_u32 %s, %s, 1', sF1, sJ)
S('s_and_b32 %s, %s, 3', sF1, sF1)
sCA, sCB = 0, 1
if OPT['SWP']:
    S('s_bfe_u32 %s, %s, %s', sCA, sC, hex(0x10000 + OPT['SWB']))
    S('s_lshl_b32 %s, %s, 12', sCA, sCA)
    S('s_xor_b32 %s, %s, 0x1000', sCB, sCA)
def late_scalars():
    S('s_lshr_b32 %s, %s, 14', sT0, sWS)
    S('s_lshl_b32 %s, %s, 11', sT0, sT0)
    S('s_add_u32 %s, %s, %s', sT0, sT0, hex(WS_H))
    S('s_lshl2_add_u32 %s, %s, %s', sT2, sKH, sW)
    S('s_lshl_b32 %s, %s, 14', sT2, sT2)
    S('s_add_u32 %s, %s, %s', sT2, sT2, hex(WS_H + 88 * 2048))
    S('s_lshl1_add_u32 %s, %s, %s', sT1, sRB, sKH)
    S('s_mul_i32 %s, %s, %s', sT3, sT1, str(HR))
    S('s_add_u32 %s, %s, %s', sH2, sT3, sT0)
    S('s_add_u32 %s, %s, %s', sP2, sT3, sT2)
    S('s_xor_b32 %s, %s, 1', sT3, sT1)
    S('s_mul_i32 %s, %s, %s', sT3, sT3, str(HR))
    S('s_add_u32 %s, %s, %s', sH1, sT3, sT0)
    S('s_add_u32 %s, %s, %s', sP1, sT3, sT2)
    S('s_lshl1_add_u32 %s, %s, %s', sPA, sT1, sTH)
    S('s_lshl4_add_u32 %s, %s, %s', sPA, sPA, sPH)
    S('s_lshl_b32 %s, %s, 7', sPA, sPA)
    S('s_add_u32 %s, %s, %s', sPA, sPA, hex(WS_FA))
    S('s_lshl2_add_u32 %s, %s, %s', sPB, sT1, sW)
    S('s_lshl_b32 %s, %s, 10', sPB, sPB)
    S('s_add_u32 %s, %s, %s', sPB, sPB, hex(WS_FB))
    S('s_lshl_b32 %s, %s, %s', sPX, sGW, '11' if OPT['PH'] else '12')
    S('s_add_u32 %s, %s, %s', sPX, sPX, hex(WS_PX))
    e('v_and_b32 %s, 7, %s' % (vr(vPF), vr(vLANE)))
    e('v_lshlrev_b32 %s, 8, %s' % (vr(vPF), vr(vPF)))
stamp('prep')
print('DQ left after prep', len(DQ.q))
DQ.flush()
AUTO.update(on=False, any=False, int=OPT['EINT'])
def w_prefetch():
    o = Ops()
    def f():
        e('s_mov_b64 exec, 0x7ff')
        A.vmem('buffer_load_dword %s, %s, %s, %s offen' % (vr(vSCR), vr(vPW), sr(dW2, 4), sr(sWS)), 'touch')
        e('s_mov_b64 exec, %s' % sr(sPM, 2))
        for p in (pCRE, pCIM):
            S('s_mov_b64 %s, %s', sr(dO, 2), sr(p, 2))
            A.vmem('buffer_load_dword %s, %s, %s, %s offen' % (vr(vSCR), vr(vCT), sr(dO, 4), sr(sCO)), 'touch')
        e('s_mov_b64 exec, -1')
    o.f(f, 8)
    return o
if OPT['WPF'] == -2:
    w_prefetch()[0][1]()
stamp('d0')
if OPT['X'] & 8192:
    A.wait_vm('lam')
    stamp('ar0')
    A.wait_vm('b1')
    stamp('ar1')
    A.wait_vm('st0')
    stamp('arr')
touch_pages(1)
A.wait_vm('lam')
stamp('lam')
LOG2E = math.log2(math.e)
e('v_readfirstlane_b32 %s, %s' % (sr(sTAG), vr(vEP)))
for r in (lre, lim, ldt):
    e('v_lshlrev_b32 %s, 16, %s' % (vr(r), vr(r)))
e('v_mul_f32 %s, %s, %s' % (vr(ldt), f2u(LOG2E), vr(ldt)))
e('v_exp_f32 %s, %s' % (vr(ldt), vr(ldt)))
S('s_add_u32 %s, %s, 1', sTAG, sTAG)
e('v_add_u32 %s, 1, %s' % (vr(vTAG), vr(vEP)))
S('s_lshl_b32 %s, %s, 1', sT0, sW)
e('v_add_u32 v1, %s, %s' % (sr(sT0), vr(vHI5)))
e('v_cvt_pk_bf16_f32 %s, %s, %s' % (vr(ldt), vr(ldt), vr(ldt)))
e('v_cvt_f32_u32 v2, v1')
e('v_lshlrev_b32 %s, 16, %s' % (vr(ldt), vr(ldt)))
e('v_cmp_lt_u32 vcc, 4, v1')
e('v_mul_u32_u24 v3, %d, v1' % TROW)
e('v_mul_f32 v5, %s, %s' % (vr(ldt), vr(lre)))
e('v_mul_f32 v6, %s, %s' % (vr(ldt), vr(lim)))
e('v_lshl_add_u32 v3, %s, 2, v3' % vr(vLO5))
e('v_mul_f32 v5, %s, v5' % f2u(LOG2E))
e('v_mul_f32 v6, 0.15915494, v6')
e('v_add_u32 v3, %d, v3' % TAB)
e('v_mul_f32 v20, 4.0, v2')
e('v_add_f32 v21, %s, v20' % f2u(32.0))
e('v_mul_f32 v22, %s, v2' % f2u(128.0))
e('v_max_f32 v22, %s, v22' % f2u(64.0))
e('v_add_f32 v23, -4.0, v2')
e('v_cndmask_b32 v22, v22, v23, vcc')
for r in range(3):
    e('v_mul_f32 v%d, v%d, v5' % (24 + r, 20 + r))
    e('v_mul_f32 v%d, v%d, v6' % (28 + r, 20 + r))
for r in range(3):
    e('v_exp_f32 v%d, v%d' % (24 + r, 24 + r))
    e('v_rndne_f32 v%d, v%d' % (20 + r, 28 + r))
for r in range(3):
    e('v_sub_f32 v%d, v%d, v%d' % (28 + r, 28 + r, 20 + r))
for r in range(3):
    e('v_cos_f32 v%d, v%d' % (20 + r, 28 + r))
    e('v_sin_f32 v%d, v%d' % (28 + r, 28 + r))
for r in range(3):
    e('v_mul_f32 v%d, v%d, v%d' % (20 + r, 20 + r, 24 + r))
    e('v_mul_f32 v%d, v%d, v%d' % (28 + r, 28 + r, 24 + r))
for r in range(3):
    A.ds('ds_write_b32 v3, v%d offset:%d' % (20 + r, 8 * r * TROW), 'tab')
    A.ds('ds_write_b32 v3, v%d offset:%d' % (28 + r, 8 * r * TROW + 128), 'tab')
lab = newlab('ncf')
S('s_cmp_lg_u32 %s, 2', sW)
e('s_cbranch_scc1 %s' % lab)
e('v_mul_f32 v24, %s, %s' % (vr(lre), vr(lre)))
e('v_fma_f32 v24, %s, %s, v24' % (vr(lim), vr(lim)))
e('v_rcp_f32 v24, v24')
e('v_add_f32 v25, -1.0, v22')
e('v_mul_f32 v26, v25, %s' % vr(lre))
e('v_mul_f32 v27, v30, %s' % vr(lre))
e('v_add_f32 v24, v24, v24')
e('v_fma_f32 v26, v30, %s, v26' % vr(lim))
e('v_fma_f32 v27, -v25, %s, v27' % vr(lim))
e('v_mul_f32 v26, v26, v24')
e('v_mul_f32 v27, v27, v24')
e('s_mov_b32 exec_lo, 0')
e('ds_write_b32 v3, v26 offset:%d' % (19 * TROW))
e('ds_write_b32 v3, v27 offset:%d' % (19 * TROW + 128))
e('s_mov_b32 exec_lo, -1')
A.label(lab)
stamp('tab')
R_L64, R_L512, R_L1, R_L2, R_L3, R_CF = 16, 20, 21, 22, 23, 24

def stat_compute_ops():
    o = Ops()
    t = SR + 8
    o.f(lambda: A.wait_vm('srow'))
    o.v('v_dot2_f32_bf16 v%d, v%d, v%d, 0' % (t, SR, ONE), 2)
    o.v('v_dot2_f32_bf16 v%d, v%d, v%d, 0' % (t + 1, SR, SR), 2)
    for i in range(1, 8):
        o.v('v_dot2_f32_bf16 v%d, v%d, v%d, v%d' % (t, SR + i, ONE, t), 2)
        o.v('v_dot2_f32_bf16 v%d, v%d, v%d, v%d' % (t + 1, SR + i, SR + i, t + 1), 2)
    for sh in (1, 2, 4, 8):
        for r in (t, t + 1):
            o.v('v_add_f32_dpp v%d, v%d, v%d row_shr:%d row_mask:0xf bank_mask:0xf bound_ctrl:0' % (r, r, r, sh))
    for r in (t, t + 1):
        o.v('v_add_f32_dpp v%d, v%d, v%d row_bcast:15 row_mask:0xa bank_mask:0xf' % (r, r, r))
    mean, var, sb, rs, m2, v2_, mb = t, t + 1, t + 2, t + 3, t + 8, t + 9, t + 10
    g0 = t + 4
    def rnd(d, s):
        o.v('v_cvt_pk_bf16_f32 v%d, v%d, v%d' % (d, s, s))
        o.v('v_lshlrev_b32 v%d, 16, v%d' % (d, d))
    o.v('v_mul_f32 v%d, %s, v%d' % (mean, f2u(1.0 / 512), mean))
    o.v('v_mul_f32 v%d, %s, v%d' % (var, f2u(1.0 / 512), var))
    o.v('v_fma_f32 v%d, -v%d, v%d, v%d' % (var, mean, mean, var))
    o.v('v_max_f32 v%d, 0, v%d' % (var, var))
    rnd(mb, mean)
    rnd(sb, var)
    o.v('v_add_f32 v%d, %s, v%d' % (sb, f2u(1e-5), sb))
    rnd(sb, sb)
    o.v('v_sqrt_f32 v%d, v%d' % (sb, sb), 2)
    o.v('v_sub_f32 v%d, v%d, v%d' % (m2, mean, mb))
    rnd(sb, sb)
    o.v('v_rcp_f32 v%d, v%d' % (rs, sb), 2)
    o.v('v_cvt_pk_bf16_f32 v%d, v%d, v%d' % (g0 + 2, mb, sb))
    o.v('v_mul_f32 v%d, v%d, v%d' % (m2, m2, rs))
    o.v('v_mul_f32 v%d, v%d, v%d' % (v2_, var, rs))
    rnd(m2, m2)
    o.v('v_mul_f32 v%d, v%d, v%d' % (v2_, v2_, rs))
    o.v('v_fma_f32 v%d, v%d, v%d, v%d' % (g0, m2, sb, mb))
    rnd(v2_, v2_)
    o.v('v_add_f32 v%d, %s, v%d' % (v2_, f2u(1e-5), v2_))
    rnd(v2_, v2_)
    o.v('v_sqrt_f32 v%d, v%d' % (v2_, v2_), 2)
    o.v('v_mov_b32 v%d, %s' % (g0 + 3, sr(sTAG)))
    rnd(v2_, v2_)
    o.v('v_mul_f32 v%d, v%d, v%d' % (g0 + 1, v2_, sb))
    o.s('s_lshl_b32 %s, %s, 5', sT0, sW)
    o.s('s_add_u32 %s, %s, %s', sT0, sT0, str(CSX))
    o.v('v_lshl_add_u32 v%d, %s, 4, %s' % (t, vr(vHI5), sr(sT0)))
    o.v('v_add_u32 v%d, %d, %s' % (SR, CSX, vr(vL16)))
    o.v('s_mov_b32 exec_lo, 0x80000000')
    o.v('s_mov_b32 exec_hi, 0x80000000')
    o.f(lambda: A.ds('ds_write_b128 v%d, %s offset:%d' % (t, vr(g0, 4), 0), 'gw'))
    o.v('s_mov_b64 exec, -1')
    o.f(lambda: stamp('gs'))
    o.s('s_lshl1_add_u32 %s, %s, %s', sD0, sRB, sTH)
    o.s('s_lshl_b32 %s, %s, 10', sD0, sD0)
    o.s('s_add_u32 %s, %s, %s', sD0, sD0, hex(WS_G))
    o.v('v_lshlrev_b32 %s, 4, %s' % (vr(vSA), vr(vLO4)))
    return o
if OPT['WPF'] == -1:
    w_prefetch()[0][1]()
DQ.add(stage_dma(1))
DQ.popD(OPT['D1A'])
for (c, f) in stat_compute_ops():
    f()
touch_pages(2)
if OPT['WPF'] == -3:
    w_prefetch()[0][1]()
DQ.popD(OPT['D1B'] - OPT['D1A'])
A.wait_lg0()
stamp('d1')
def b1_ops():
    o = Ops()
    o.f(lambda: A.wait_vm('b1'), 0)
    for v in range(3):
        for hh in range(2):
            o.v('v_lshlrev_b32 %s, 16, %s' % (vr(BU + 4 * v + 2 * hh), vr(B1 + 2 * v + hh)))
            o.v('v_and_b32 %s, 0xffff0000, %s' % (vr(BU + 4 * v + 2 * hh + 1), vr(B1 + 2 * v + hh)))
    return o
def stat_loads():
    return [('D' if OPT['STD'] else 2, lambda T=T: A.vmem('buffer_load_dwordx4 %s, %s, %s, %s offen offset:%d sc1' % (vr(ST + 4 * T, 4), vr(vSA), sr(dWS, 4), sr(sD0), 256 * T), 'stat')) for T in range(4)]
def stat_issue():
    for (c, f) in stat_loads():
        f()
def stat_check(e=e):
    t = TMP
    for T in range(4):
        e('v_xor_b32 v%d, %s, %s' % (t + T, sr(sTAG), vr(ST + 4 * T + 3)))
    e('v_or3_b32 v%d, v%d, v%d, v%d' % (t, t, t + 1, t + 2))
    e('v_or_b32 v%d, v%d, v%d' % (t, t, t + 3))
    e('v_cmp_ne_u32 vcc, 0, v%d' % t)
C0 = -2.0 * math.sqrt(2.0 / math.pi) * math.log2(math.e)
def stat_derive_ops():
    o = Ops()
    o.f(lambda: A.wait_vm('stat'))
    stat_check(o.v)
    o.f(lambda: retry_loop('st', stat_issue, stat_check, 58, False), 2)
    for T in range(4):
        b = ST + 4 * T
        o.v('v_rcp_f32 v%d, v%d' % (TMP + T, b + 1), 2)
        o.v('v_lshlrev_b32 v%d, 16, v%d' % (SS + 2 * T, b + 2))
        o.v('v_and_b32 v%d, 0xffff0000, v%d' % (SS + 2 * T + 1, b + 2))
    for T in range(4):
        b = ST + 4 * T
        o.v('v_rcp_f32 v%d, v%d' % (SS + 2 * T + 1, SS + 2 * T + 1), 2)
        o.v('v_mul_f32 v%d, %s, v%d' % (b + 2, f2u(C0), TMP + T))
        o.v('v_mul_f32 v%d, v%d, v%d' % (b + 3, TMP + T, TMP + T))
    for T in range(4):
        b = ST + 4 * T
        o.v('v_mul_f32 v%d, v%d, v%d' % (b + 3, b + 3, b + 2))
        o.v('v_mul_f32 v%d, %s, v%d' % (b + 3, f2u(0.044715), b + 3))
    return o

TOFF = [6 * (st & 3) + 2 * (st >> 2) for st in range(11)]
KS = [0]
def w_prefetch_cls(k):
    def f():
        lab = newlab('pf')
        if OPT['WCL'] == 4:
            S('s_cmp_lg_u32 %s, %s', sRBL, str(k))
        else:
            S('s_bitcmp%d_b32 %%s, 0' % (1 - k), sRBL)
        e('s_cbranch_scc1 %s' % lab)
        e('s_mov_b64 exec, 0x7ff')
        A.vmem('buffer_load_dword %s, %s, %s, %s offen' % (vr(vSCR), vr(vPW), sr(dW2, 4), sr(sWS)), 'touch', opt=True)
        e('s_mov_b64 exec, %s' % sr(sPM, 2))
        for p in (pCRE, pCIM):
            S('s_mov_b64 %s, %s', sr(dO, 2), sr(p, 2))
            A.vmem('buffer_load_dword %s, %s, %s, %s offen' % (vr(vSCR), vr(vCT), sr(dO, 4), sr(sCO)), 'touch', opt=True)
        e('s_mov_b64 exec, -1')
        A.label(lab)
    return [(4, f)]
def w2_step(st):
    o = Ops()
    odd = 0
    if st == 0:
        o.s('s_lshl_b32 %s, %s, 11', sSX, sW)
        o.s('s_add_u32 m0, %s, %s', sSX, str(PE))
    elif st <= 8:
        odd = (st - 1) & 1
        if not odd:
            o.s('s_add_u32 m0, %s, %s', sM8, str(((st - 1) // 4) * SLOT + ((st - 1) % 4) * 2048))
    else:
        o.s('s_add_u32 m0, %s, %s', sME, str((st - 9) * 2 * SLOT))
    if OPT['SWP'] & 1 and st < 8:
        o.s('s_lshl3_add_u32 %s, %s, %s', sSW, sCB if st >> 2 else sCA, sWS)
        o.s('s_add_u32 %s, %s, %s', sSW, sSW, str(TOFF[st & 3] * 16384 - odd * 2048))
    else:
        o.s('s_add_u32 %s, %s, %s', sSW, sWS, str(TOFF[st] * 16384 - odd * 2048))
    for i in range(2):
        o.f(lambda i=i: A.vmem('buffer_load_dwordx4 %s, %s, %s offen offset:%d lds' % (vr(vW2 + i), sr(dW2, 4), sr(sSW), odd * 2048 + i * 1024), ('Wa' if st < 10 else 'Wb') if OPT['XG'] else 'W'), 'D')
    return o
def c_job(part):
    o = Ops()
    o.s('s_mov_b64 %s, %s', sr(dB, 2), sr(pCIM if part else pCRE, 2))
    if part == 0:
        o.v('v_subrev_u32 %s, %s, %s' % (vr(vB), sr(sCG), vr(vB)))
        o.v('v_subrev_u32 %s, %s, %s' % (vr(vB + 1), sr(sCG), vr(vB + 1)))
    for k in range(4):
        odd = k & 1
        if not odd:
            o.s('s_add_u32 m0, %s, %s', sM8, str((2 + part) * SLOT + k * 2048))
        o.s('s_add_u32 %s, %s, %s', sSX, sCO, str(k * 16384 - odd * 2048))
        for i in range(2):
            o.f(lambda i=i, odd=odd: A.vmem('buffer_load_dwordx4 %s, %s, %s offen offset:%d lds' % (vr(vB + i), sr(dB, 4), sr(sSX), odd * 2048 + i * 1024), 'Wc%d' % part if OPT['XG'] else 'Wd' if part + OPT['DEF'] >= 2 else 'W'), 'D')
    return o
QR = [0, 2, 8, 10]
def resx_loads():
    o = Ops()
    for q in range(4):
        o.f(lambda q=q: A.vmem('buffer_load_dwordx2 %s, %s, %s, 0 offen offset:%d' % (ar(240 + 2 * q, 2), vr(vXO), sr(dX, 4), q * 1024), 'res'), 'D' if q & 1 else 2)
    return o
def resg_loads():
    return [(2, lambda q=q: A.vmem('buffer_load_dword %s, %s, %s, %s offen offset:%d sc1' % (ar(252 + q), vr(vGO), sr(dWS, 4), sr(sGR), q * 256), 'res')) for q in range(4)]

for v in range(1, 8):
    if v > 1:
        sd = stage_dma(v)
        if v == OPT['WPF'] and OPT['WPK']:
            sd, rest = sd[:-5], sd[-5:]
        DQ.add(sd, None if v < 4 else 'mid%d' % (v - 4))
    if OPT['WCL'] == 4 and OPT['WPF'] > 0 and 0 <= v - OPT['WPF'] < 4:
        DQ.add(w_prefetch_cls(v - OPT['WPF']))
    if OPT['WCL'] in (2, 3) and v - OPT['WPF'] in (0, OPT['WCL']):
        DQ.add(w_prefetch_cls(int(v > OPT['WPF'])))
    if v == OPT['WPF'] and not OPT['WCL']:
        DQ.add([(0, lambda: print('prefetch at step', KS[0]))])
        DQ.add(w_prefetch())
        if OPT['WPK']:
            DQ.add(rest)
    if v == OPT['STL']:
        DQ.add(stat_loads())
        DQ.add([(0, lambda: FQ.open.add('stl'))])
o = Ops()
o.s('s_mov_b64 %s, %s', sr(dO, 2), sr(pOUT, 2))
o.s('s_mov_b32 %s, 0x400000', dO + 2)
def tlb_warm():
    e('v_lshlrev_b32 %s, 1, %s' % (vr(vCT), vr(vXO)))
    S('s_lshl_b32 %s, %s, 11', sT0, sGW)
    S('s_add_u32 %s, %s, %s', sT0, sT0, hex(WS_PX))
    e('s_mov_b64 exec, 1')
    if OPT['TW'] & 1:
        A.vmem('buffer_load_dword %s, %s, %s, 0 offen' % (vr(vSCR), vr(vCT), sr(dO, 4)), 'touch')
    if OPT['TW'] & 2:
        A.vmem('buffer_load_dword %s, %s, %s, %s offen sc1' % (vr(vSCR), vr(vL16), sr(dWS, 4), sr(sHM)), 'touch')
        A.vmem('buffer_load_dword %s, %s, %s, %s offen sc1' % (vr(vSCR), vr(vL16), sr(dWS, 4), sr(sHS)), 'touch')
    if OPT['TW'] & 4:
        A.vmem('buffer_load_dword %s, %s, %s, %s offen sc1' % (vr(vSCR), vr(vL16), sr(dWS, 4), sr(sT0)), 'touch')
    e('s_mov_b64 exec, -1')
if OPT['TW']:
    o.f(tlb_warm, 4)
def flag_touch():
    S('s_add_u32 %s, %s, %s', sT0, sFL, hex(WS_FA + 0x40000))
    e('v_lshlrev_b32 %s, 17, %s' % (vr(vCT), vr(vHI5)))
    A.vmem('buffer_load_dword %s, %s, %s, %s offen' % (vr(vSCR), vr(vCT), sr(dWS, 4), sr(sT0)), 'touch')
DQ.add(o)
DQ.add([(0, lambda: (print('st7 issued at step', KS[0]), OPT.update(DINT=OPT['WINT'])))])
DQ.add(w2_step(0), 'k%d' % OPT['WG0'])
for st in range(1, 10):
    DQ.add(w2_step(st), 'mid4' if st < 5 else 'mid5')
D2 = Q()
D3 = Q() if OPT['DP'] else D2
if OPT['DEF'] < 2:
    DQ.add(c_job(0), 'mid%d' % OPT['CJ0'])
else:
    D3.add(c_job(0))
if not OPT['DEFR'] & 1:
    DQ.add(resx_loads())
DQ.add(w2_step(10), 'mid7')
if OPT['DEF'] < 1:
    DQ.add(c_job(1), 'mid7')
else:
    D3.add(c_job(1))
if OPT['FTP'] == 2:
    DQ.add([(3, flag_touch)])
if OPT['DEFR'] & 1:
    D2.add(resx_loads())
FQ.add([(0, lambda: None)], 'b1')
FQ.add(b1_ops(), 'mid%d' % OPT['B1G'])
FQ.add([(0, lambda: None)], 'stl')
FQ.add(stat_derive_ops(), 'mid%d' % OPT['SDG'])
if OPT['BF']:
    FQ.add([(0, lambda: print('bias from step', KS[0]))])
    for v in range(3):
        o = Ops()
        for T in range(4):
            for h in range(2):
                r = ACC + 32 + 16 * v + 4 * T + 2 * h
                o.v('v_pk_fma_f32 %s, %s, %s, %s op_sel:[0,1,0] op_sel_hi:[1,1,1]' % (vr(r, 2), vr(BU + 4 * v + 2 * h, 2), vr(ST + 4 * T, 2), vr(r, 2)))
        FQ.add(o, 'bf%d' % (v + 2))
    FQ.add([(0, lambda: print('bias done at step', KS[0]))])

AD, vCA = (156, 164) if OPT['XG'] else (32, 40)
def xw_addr():
    o = Ops()
    o.s('s_lshl_b32 %s, %s, 11', sT0, sW)
    o.s('s_add_u32 %s, %s, %s', sT0, sT0, str(PE))
    o.s('s_add_u32 %s, %s, %s', sT1, sME, str(2 * SLOT))
    for i, sb in enumerate((sT0, sM8, sME, sT1)):
        o.v('v_add_u32 %s, %s, %s' % (vr(AD + 2 * i), sr(sb), vr(vTRL)))
        o.v('v_xor_b32 %s, 64, %s' % (vr(AD + 2 * i + 1), vr(AD + 2 * i)))
    o.v('v_bfe_u32 %s, %s, 1, 3' % (vr(vCA), vr(vLANE)))
    o.v('v_xor_b32 %s, %s, %s' % (vr(vCA), vr(vCA), vr(vHI5)))
    o.v('v_lshlrev_b32 %s, 4, %s' % (vr(vCA), vr(vCA)))
    o.v('v_lshl_add_u32 %s, %s, 7, %s' % (vr(vCA), vr(vLO5), vr(vCA)))
    o.s('s_add_u32 %s, %s, %s', sT0, sM8, str(2 * SLOT))
    o.v('v_add_u32 %s, %s, %s' % (vr(vCA), sr(sT0), vr(vCA)))
    if OPT['SWP'] & 2:
        o.s('s_lshr_b32 %s, %s, 6', sT0, sCA)
        o.v('v_xor_b32 %s, %s, %s' % (vr(vCA), sr(sT0), vr(vCA)))
    for sub in range(1, 4):
        o.v('v_xor_b32 %s, %d, %s' % (vr(vCA + sub), 32 * sub, vr(vCA)))
    return o
def xw_w(st, dh, half):
    if st == 0:
        ad, off = AD, 0
    elif st <= 8:
        ad, off = AD + 2, ((st - 1) // 4) * SLOT + ((st - 1) % 4) * 2048
    else:
        ad, off = AD + 4 + 2 * (st - 9), 0
    A.wait_vm('Wa' if st < 10 else 'Wb')
    A.ds('ds_read_b64_tr_b16 %s, %s offset:%d' % (ar(8 * st + 4 * dh + 2 * half, 2), vr(ad + dh), off + half * 512), 'xw')
def xw_1(part, sub, dh):
    A.wait_vm('Wc%d' % part)
    A.ds('ds_read_b128 %s, %s offset:%d' % (ar(8 * (11 + 2 * sub + part) + 4 * dh, 4), vr(vCA + sub), part * SLOT + dh * 4096), 'xw')
if OPT['XG']:
    if OPT['XAD']:
        FQ.add(xw_addr(), 'mid7')
    XQ.add([(1, lambda st=st, dh=dh, half=half: xw_w(st, dh, half)) for st in range(10) for dh in range(2) for half in range(2)], 'x0')
    XQ.add([(2, lambda sub=sub, dh=dh: xw_1(0, sub, dh)) for sub in range(4) for dh in range(2)], 'x1')
    XQ.add([(1, lambda dh=dh, half=half: xw_w(10, dh, half)) for dh in range(2) for half in range(2)], 'x1')
    XQ.add([(2, lambda sub=sub, dh=dh: xw_1(1, sub, dh)) for sub in range(4) for dh in range(2)], 'x2')

RQ = Q()
def rd_x(step, T):
    v, ks = step // 2, step % 2
    slot = v & 3
    return [(1, lambda: A.ds('ds_read_b128 %s, %s offset:%d' % (vr(XF + 16 * ks + 4 * T, 4), vr(XA + 2 * ks + (slot >> 1)), (slot & 1) * SLOT + (T & 1) * PIECE + (T >> 1) * 2048), 'x%d' % step))]
def rd_a(step, a):
    v, ks = step // 2, step % 2
    slot = v & 3
    if a < 2:
        return [(1, lambda: A.ds('ds_read_b128 %s, %s offset:%d' % (vr(AF + 4 * a, 4), vr(BA + 2 * ks + (slot >> 1)), (slot & 1) * SLOT + a * PIECE), 'a%d_%d' % (step, a)))]
    return [(1, lambda half=half: A.ds('ds_read_b64_tr_b16 %s, %s offset:%d' % (vr(AF + 4 * a + 2 * half, 2), vr(WA + 2 * ks + (slot >> 1)), (slot & 1) * SLOT + half * 768 + 64 * (a - 2)), 'a%d_%d' % (step, a))) for half in range(2)]

touch_pages(0)
stamp('tch')
page('st0')
A.wait_vm('st0')
stamp('st0')
e('s_barrier')
RQ.add(rd_a(0, 0))
for T in range(4):
    RQ.add(rd_x(0, T))
for a in range(1, 5):
    RQ.add(rd_a(0, a))
RQ.flush()
A.ds('ds_read_b128 %s, %s' % (vr(SR + 4, 4), vr(SR)), 'gr')
def g_store():
    A.wait_lg('gr')
    lab = newlab('gs')
    S('s_cmp_lg_u32 %s, 0', sW)
    e('s_cbranch_scc1 %s' % lab)
    e('s_mov_b64 exec, 0xff')
    A.vmem('buffer_store_dwordx4 %s, %s, %s, %s offen sc1' % (vr(SR + 4, 4), vr(vL16), sr(dWS, 4), sr(sF0)), 'gs', opt=True)
    e('s_mov_b64 exec, -1')
    A.label(lab)
clk = [0, 0]
def gap(budget, base):
    used = 0
    while used < budget:
        if RQ.ready():
            used += RQ.cost()
            RQ.pop1()
        elif DQ.ready() and (DQ.cost() != 'D' or (clk[0] >= clk[1] and used + OPT['DCOST'] <= max(budget, OPT['DCOST']))):
            if DQ.cost() == 'D':
                used += OPT['DCOST']
                clk[1] = max(clk[1], clk[0] - 2 * OPT['DINT']) + OPT['DINT']
            elif used + DQ.cost() > max(budget, DQ.cost()):
                break
            else:
                used += DQ.cost()
                if DQ.cost() >= 2:
                    clk[1] += OPT['SMP']
            DQ.pop1()
        elif FQ.ready() and used + FQ.cost() <= max(budget, FQ.cost()):
            used += FQ.cost()
            FQ.pop1()
        else:
            break
    clk[0] += max(base, 8 + 4 * used)

K0, K1, SA, SE = 116, 124, 136, 144
def tab_rd(dst, row, tag, addr=None):
    for part in range(2):
        A.ds('ds_read_b128 %s, %s offset:%d' % (vr(dst + 4 * part, 4), vr(vTB if addr is None else addr), row * TROW + part * 128), tag)
for step in range(16):
    v, ks = step // 2, step % 2
    gate = 'mid%d' % v if ks == 1 else None
    for a in range(5):
        KS[0] = step + a / 5
        DQ.open.add('k%d' % (5 * step + a))
        FQ.open -= set('bf%d' % u for u in range(5))
        FQ.open |= set('bf%d' % ((a - u) % 5) for u in (2, 3))
        if ks == 1 and a == 2:
            for u in range(5):
                assert DSN.get('a%d_%d' % (step, u), 0) == (1 if u < 2 else 2), (step, u)
            if v == 7:
                assert DSN.get('csw', 0) == 1 and DSN.get('cso', 0) == 5
            page('aA' if v == OPT['PGA'] else 'a%d' % v)
            A.wait_lg0()
            stamp('a%d' % v)
            if v < 7:
                A.wait_vm('st%d' % (v + 1))
                if v in (1, 3, 6):
                    stamp('b%d' % v)
            if not OPT['X'] & 2:
                e('s_barrier')
            clk[0] += 40
            for q in (DQ, FQ, RQ):
                q.open.add('mid%d' % v)
            if v == 7:
                for q in range(5):
                    RQ.add([(1, lambda q=q: A.ds('ds_read_b128 %s, %s offset:%d' % (vr((XF + 4 * q) if q < 4 else AF, 4), vr(vCR), 64 * q), 'csr'))])
        if a in (0, 2, 4):
            assert DSN.get('x%d' % step, 0) == 4, (step, a)
            for u in (a, a + 1):
                assert u > 4 or DSN.get('a%d_%d' % (step, u), 0) == (1 if u < 2 else 2), (step, a, u)
            A.wait_lg(['x%d' % step] + ['a%d_%d' % (step, u) for u in (a, a + 1)])
        if OPT['XS'] and step in (14, 15) and a == 0:
            stamp('s%d' % step)
        if step == 0 and a == 4:
            g_store()
        ms = []
        if ks == 0 and not (OPT['X'] & 1024 and step):
            ms.append((ONE, CS + 4 * a))
        for T in range(4):
            if a < 2 and step >= 16 - OPT['DS'] and T < 3 + (ks == 0) - (a == 0 and ks == 0):
                continue
            ms.append((ACC + 16 * a + 4 * T, XF + 16 * ks + 4 * T))
        for i, (acc, b) in enumerate(ms):
            e('v_mfma_f32_16x16x32_bf16 %s, %s, %s, %s' % (vr(acc, 4), vr(AF + 4 * a, 4), vr(b, 4), '0' if step == 0 and (acc != ONE or a == 0) else vr(acc, 4)))
            last = i == len(ms) - 1
            if step < 15:
                if last:
                    RQ.add(rd_a(step + 1, a), gate)
                if (a == 0 and last) if ks == 1 else (a == 0 and i == 1):
                    for T in range(4):
                        RQ.add(rd_x(step + 1, T), gate)
            if step == 15 and a == 0 and i == 0:
                def csw():
                    e('s_mov_b32 exec_lo, 0x1f001f')
                    e('s_mov_b32 exec_hi, 0x1f001f')
                    A.ds('ds_write_b128 %s, %s' % (vr(vCW), vr(ONE, 4)), 'csw')
                    e('s_mov_b64 exec, -1')
                RQ.add([(2, csw)])
                for q in range(5):
                    RQ.add([(1, lambda q=q: A.ds('ds_read_b128 %s, %s offset:%d' % (vr(CS + 4 * q, 4), vr(vCO), 64 * q), 'cso'))])
            bud = OPT['BUD0'] if step < OPT['NB0'] else 2
            if last and a in (1, 3, 4) and not (ks == 1 and a == 3):
                bud = 0 if (ks == 1 and a == 1) else 1
            if bud == 0:
                while RQ.ready():
                    RQ.pop1()
            gap(bud, 16)
print('K loop estimate', clk[0], 'left DQ', len(DQ.q), 'FQ', len(FQ.q))
FQ.open |= set('bf%d' % u for u in range(5))
FQ.flush()
RQ.flush()
stamp('kloop')

if OPT['DEFR'] & 2:
    D2.add([('D', f) for (c, f) in resg_loads()])
else:
    DQ.add(resg_loads(), 'sx')
tab_rd(K0, 1 if OPT['CL'] else R_CF, 'k0')
tab_rd(K1, R_L1, 'k1')
A.wait_lg('csr')
AUTO['nxt'] = AUTO['t'] + max(0, clk[1] - clk[0])
auto(True)
for q in range(5):
    src = (XF + 4 * q) if q < 4 else AF
    for h in (0, 2):
        e('v_pk_add_f32 %s, %s, %s' % (vr(CS + 4 * q + h, 2), vr(CS + 4 * q + h, 2), vr(src + h, 2)))
LOB = 'op_sel:[0,0,0] op_sel_hi:[1,0,1]'
HIB = 'op_sel:[0,1,0] op_sel_hi:[1,1,1]'
RR, II = ACC, ACC + 16
tq = XF
tZ, tO = tq, B1
HOOK = {}
def hook(k):
    if k in HOOK:
        HOOK.pop(k)()
def gelu_tile(v, tag, mid=None):
    for hh in range(2):
        prs = [(2 * hh + a, h) for a in range(2) for h in range(2)]
        accp = lambda T, h: ACC + 32 + 16 * v + 4 * T + 2 * h
        for (T, h) in prs if not OPT['BF'] else []:
            e('v_pk_fma_f32 %s, %s, %s, %s %s' % (vr(accp(T, h), 2), vr(BU + 4 * v + 2 * h, 2), vr(ST + 4 * T, 2), vr(accp(T, h), 2), HIB))
        for (T, h) in prs:
            e('v_pk_fma_f32 %s, %s, %s, %s %s %s' % (vr(accp(T, h), 2), vr(CS + 8 + 4 * v + 2 * h, 2), vr(ST + 4 * T, 2), vr(accp(T, h), 2), LOB, NEG1))
        for i, (T, h) in enumerate(prs):
            e('v_pk_mul_f32 %s, %s, %s' % (vr(tZ + 2 * i, 2), vr(accp(T, h), 2), vr(accp(T, h), 2)))
        for i, (T, h) in enumerate(prs):
            e('v_pk_fma_f32 %s, %s, %s, %s op_sel:[0,1,0] op_sel_hi:[1,1,0]' % (vr(tZ + 2 * i, 2), vr(tZ + 2 * i, 2), vr(ST + 4 * T + 2, 2), vr(ST + 4 * T + 2, 2)))
        for i, (T, h) in enumerate(prs):
            e('v_pk_mul_f32 %s, %s, %s' % (vr(tZ + 2 * i, 2), vr(tZ + 2 * i, 2), vr(accp(T, h), 2)))
        hook(0)
        for i in range(8):
            e('v_exp_f32 %s, %s' % (vr(tZ + i), vr(tZ + i)))
        hook(2)
        for i, (T, h) in enumerate(prs):
            e('v_pk_fma_f32 %s, %s, %s, %s op_sel:[0,1,1] op_sel_hi:[1,1,1]' % (vr(tZ + 2 * i, 2), vr(tZ + 2 * i, 2), vr(ST + 4 * T, 2), vr(ST + 4 * T, 2)))
        for i in range(8):
            e('v_rcp_f32 %s, %s' % (vr(tZ + i), vr(tZ + i)))
        hook(1)
        for i, (T, h) in enumerate(prs):
            e('v_pk_mul_f32 %s, %s, %s' % (vr(tZ + 2 * i, 2), vr(tZ + 2 * i, 2), vr(accp(T, h), 2)))
        o = tO + 4 * hh
        for i in (0, 2, 1, 3):
            e('v_cvt_pk_bf16_f32 %s, %s, %s' % (vr(o + i), vr(tZ + 2 * i), vr(tZ + 2 * i + 1)))
        if mid:
            mid(hh)
        auto(False)
        e('v_permlane16_swap_b32 %s, %s' % (vr(o), vr(o + 2)))
        so = sHM
        if v:
            so = sU0
            if hh == 0:
                S('s_add_u32 %s, %s, %s', sU0, sHM, str(4096 * v))
        if v == 2 and OPT['GO'] != 2:
            S('s_cmp_eq_u32 %s, 0', sF1)
        e('v_permlane16_swap_b32 %s, %s' % (vr(o + 1), vr(o + 3)))
        if v == 2 and OPT['GO'] != 2:
            lab = newlab('skip')
            e('s_cbranch_scc1 %s' % lab)
        A.vmem('buffer_store_dwordx4 %s, %s, %s, %s offen offset:%d sc1' % (vr(o, 4), vr(vL16), sr(dWS, 4), sr(so), 1024 * hh), tag, opt=(v == 2))
        if v == 2 and OPT['GO'] != 2:
            A.label(lab)
        auto(True)
def fep(k):
    if OPT['F3'] and OPT['FEP'] == k:
        on = AUTO['on']
        auto(False)
        A.wait_vm('HE')
        stamp('HEdone')
        flag(WS_FA, 'fa')
        auto(on)
for i, v in enumerate((2, 0, 1)[:OPT['GF']]):
    gelu_tile(v, 'HE' if i < OPT['F3'] else 'HM')
if OPT['GF']:
    print('DQ left after the first GELU tiles', len(DQ.q))
    stamp('ge')
for T in range(4):
    for part in range(2):
        for h in (0, 2):
            r = ACC + 16 * part + 4 * T + h
            e('v_pk_fma_f32 %s, %s, %s, %s %s %s' % (vr(r, 2), vr(CS + 4 * part + h, 2), vr(SS + 2 * T, 2), vr(r, 2), LOB, NEG1))
    if OPT['CL']:
        if T == 0 and not OPT['GF']:
            tab_rd(tq, 2, 'k2')
            tab_rd(tq + 8, 4, 'k3')
        for part in range(2):
            for h in (0, 2):
                r = ACC + 16 * part + 4 * T + h
                e('v_pk_mul_f32 %s, %s, %s op_sel:[0,1] op_sel_hi:[1,1]' % (vr(r, 2), vr(r, 2), vr(SS + 2 * T, 2)))
        continue
    if T == 0:
        A.wait_lg('k0')
    for q in (0, 2, 4, 6):
        e('v_pk_mul_f32 %s, %s, %s op_sel:[0,1] op_sel_hi:[1,1]' % (vr(tq + q, 2), vr(K0 + q, 2), vr(SS + 2 * T, 2)))
    if T == 3:
        tab_rd(K0, 1, 'k0')
    for h in (0, 2):
        e('v_pk_mul_f32 %s, %s, %s' % (vr(tq + 8 + h, 2), vr(RR + 4 * T + h, 2), vr(tq + 4 + h, 2)))
    for h in (0, 2):
        e('v_pk_mul_f32 %s, %s, %s' % (vr(RR + 4 * T + h, 2), vr(RR + 4 * T + h, 2), vr(tq + h, 2)))
    for h in (0, 2):
        e('v_pk_fma_f32 %s, %s, %s, %s %s' % (vr(RR + 4 * T + h, 2), vr(II + 4 * T + h, 2), vr(tq + 4 + h, 2), vr(RR + 4 * T + h, 2), NEG1))
    for h in (0, 2):
        e('v_pk_fma_f32 %s, %s, %s, %s' % (vr(II + 4 * T + h, 2), vr(II + 4 * T + h, 2), vr(tq + h, 2), vr(tq + 8 + h, 2)))
if not OPT['CL'] or OPT['GF']:
    tab_rd(tq, 2, 'k2')
    tab_rd(tq + 8, 4, 'k3')
A.wait_lg('k1')
for T in range(1, 4):
    pk_cfma4(RR + 4 * T, II + 4 * T, RR + 4 * T - 4, II + 4 * T - 4, K1, RR + 4 * T, II + 4 * T)
tab_rd(K1, 8, 'k1')
cur = (RR + 12, II + 12)
L64, L512, P128, S0 = K0, K0 + 2, K0 + 4, K0 + 6
for lv in range(4):
    fep(-20 + lv)
    k = [K0, tq, tq + 8, K1][lv]
    for part in range(2):
        for i in range(4):
            e('v_mov_b32_dpp %s, %s row_shr:%d row_mask:0xf bank_mask:0xf bound_ctrl:0' % (vr(SE + 4 * part + i), vr(cur[part] + i), 1 << lv))
    if lv in (0, 3):
        A.wait_lg(['k3', 'k3', 'k3', 'k1'][lv])
    pk_cfma4(SA, SA + 4, SE, SE + 4, k, cur[0], cur[1])
    cur = (SA, SA + 4)
    if lv == 0:
        for (dst, row, ad) in ((L64, R_L64, vTC), (L512, R_L512, vTC), (P128, 0, vTG)):
            for part in range(2):
                A.ds('ds_read_b32 %s, %s offset:%d' % (vr(dst + part), vr(ad), row * TROW + part * 128), 'kc')
auto(False)
e('s_mov_b32 exec_lo, 0x80008000')
e('s_mov_b32 exec_hi, 0x80008000')
A.ds('ds_write_b128 %s, %s' % (vr(vCR), vr(SA, 4)), 'sx')
A.ds('ds_write_b128 %s, %s offset:64' % (vr(vCR), vr(SA + 4, 4)), 'sx')
e('s_mov_b64 exec, -1')
GR = tq + 12
for part in range(2):
    for i in range(4):
        e('v_mov_b32_dpp %s, %s row_shr:1 row_mask:0xf bank_mask:0xf bound_ctrl:0' % (vr(SE + 4 * part + i), vr(SA + 4 * part + i)))
e('v_mov_b32 %s, %s' % (vr(GR + 2), sr(sTAG)))
e('v_mov_b32 %s, %s' % (vr(GR + 3), sr(sTAG)))
fep(-11)
def sx_bar():
    auto(False)
    page('sx')
    A.wait_lg0()
    e('s_barrier')
    A.ds('ds_read2_b32 %s, %s offset0:160 offset1:176' % (vr(S0, 2), vr(vSXR)), 's0')
    A.ds('ds_read2_b32 %s, %s offset0:0 offset1:16' % (vr(GR, 2), vr(vSXR)), 's0')
    DQ.open.add('sx')
    print('DQ left at Spub', len(DQ.q))
    auto(OPT['SXI'] == 1)
def sx_pub():
    auto(False)
    lab = newlab('np')
    S('s_cmp_eq_u32 %s, 0', sTH)
    e('s_cbranch_scc1 %s' % lab)
    e('s_waitcnt lgkmcnt(0)')
    cfma(GR, GR + 1, S0, S0 + 1, L64, L64 + 1, GR, GR + 1)
    e('s_mov_b64 exec, 0xffff')
    A.vmem('buffer_store_dwordx4 %s, %s, %s, %s offen sc1' % (vr(GR, 4), vr(vL16), sr(dWS, 4), sr(sSGO)), 'S', opt=True)
    e('s_mov_b64 exec, -1')
    A.label(lab)
    stamp('Spub')
    auto(True)
if OPT['SXI'] != 1:
    sx_bar()
else:
    HOOK[0] = sx_bar
if OPT['SXI']:
    HOOK[1 if OPT['SXI'] == 1 else 2] = sx_pub
else:
    sx_pub()
fep(-10)
auto(True)

vQ = 64 if OPT['XG'] else 152
if OPT['XG']:
    assert OPT['LBPOS'] >= 2
    if not OPT['XAD']:
        for (c, f) in xw_addr():
            f()
    XQ.open.add('x0')
    AUTO['xn'] = AUTO['t']
vPD = vWT
def lb_issue():
    for i in range(4):
        A.vmem('buffer_load_dwordx4 %s, %s, %s, %s offen sc1' % (vr(vQ + 4 * i, 4), vr(vPA + i), sr(dWS, 4), sr(sSG)), 'lb')
def lb_check():
    for i in range(4):
        e('v_xor_b32 %s, %s, %s' % (vr(vQ + 4 * i + 3), sr(sTAG), vr(vQ + 4 * i + 2)))
    for i in range(4):
        e('v_cndmask_b32 %s, 0, %s, %s' % (vr(vQ + 4 * i + 3), vr(vQ + 4 * i + 3), sr(sMSK[i], 2)))
    e('v_or3_b32 %s, %s, %s, %s' % (vr(vQ + 3), vr(vQ + 3), vr(vQ + 7), vr(vQ + 11)))
    e('v_or_b32 %s, %s, %s' % (vr(vQ + 3), vr(vQ + 3), vr(vQ + 15)))
    e('v_cmp_ne_u32 vcc, 0, %s' % vr(vQ + 3))
def poll(tag, so):
    return lambda: A.vmem('buffer_load_dword %s, %s, %s, %s offen sc1' % (vr(vPD), vr(vPF), sr(dWS, 4), sr(so)), tag)
def p_check():
    e('v_cmp_ne_u32 vcc, %s, %s' % (sr(sTAG), vr(vPD)))
def fast(f, so):
    if OPT['FT'] != 2:
        return f
    def g():
        S('s_xor_b32 %s, %s, 0x40000', so, so)
        f()
    return g
pa_issue, pb_issue = fast(poll('pa', sPA), sPA), fast(poll('pb', sPB), sPB)
def lbp(k):
    if k == 5:
        fep(-1)
    if k in (2, 3, 4):
        fep(-k - 1)
    if k == 0:
        print('DQ left at the first HM store', len(DQ.q))
        if OPT['FL0']:
            DQ.flush()
    if k == 6:
        DQ.flush()
    if k == OPT['XC0']:
        XQ.open.add('x1')
    if k == OPT['XC1']:
        DQ.flush()
        XQ.open.add('x2')
    if OPT['LBPOS'] == k and OPT['LBX'] < 0:
        lb_issue()
for i, v in enumerate((0, 1, 2) if OPT['GO'] else (2, 0, 1)):
    if i < OPT['GF']:
        continue
    if OPT['GO'] == 2 and v == 2:
        assert OPT['LBPOS'] == 6 and not OPT['F3'] and not OPT['XG']
        print('DQ left at the last tile', len(DQ.q))
        DQ.flush()
        labk = newlab('nog')
        S('s_cmp_eq_u32 %s, 0', sF1)
        e('s_cbranch_scc1 %s' % labk)
    gelu_tile(v, 'HE' if i < OPT['F3'] else 'HM', lambda hh: lbp(2 * i + hh))
    if OPT['GO'] == 2 and v == 2:
        A.label(labk)
    if i < 2:
        stamp('g%d' % i)
stamp('gelu')
auto(False)
fep(-2)
lbp(6)
fep(0)
KP = [tq, tq + 8, CS, CS + 8]
tab_rd(K1, 0, 'kp', vTI)
for T, row in enumerate((R_L1, R_L2, R_L3, 1)):
    tab_rd(KP[T], row, 'kp')
if OPT['CL']:
    tab_rd(ST, R_CF, 'kp')
fep(1)
NR, RING = 22, 152
LD, MF = [], []
SO = [list(range(11)), [8, 9, 10, 0, 1, 2, 3, 4, 5, 6, 7], [0, 1, 2, 3, 8, 9, 10, 4, 5, 6, 7]][OPT['F3']] + list(range(11, 19))
NA = [0, 3, 7][OPT['F3']]
SEG = ((0, 0, 11), (1, 0, OPT['NB1']), (0, 11, 19), (1, OPT['NB1'], 19))
if OPT['F3']:
    assert OPT['N1'] <= min(NA, OPT['NB1'])
    SEG = ((0, 0, NA), (1, 0, OPT['N1']), (0, NA, 11), (1, OPT['N1'], OPT['NB1']), (0, 11, 19), (1, OPT['NB1'], 19))
for (t, s0, s1) in SEG:
    tl = OPT['TL%d' % t] if s1 == 19 else 0
    for s in SO[s0:s1 - tl]:
        for hh in range(2):
            MF += [(len(LD), 0), (len(LD), 1)]
            LD.append((t, s, hh))
    for hh in range(2):
        for dh in range(2):
            MF += [(len(LD) + k, dh) for k in range(tl)]
        LD += [(t, s, hh) for s in range(s1 - tl, s1)]
FS = LD.index((0, 11, 0))
FC = LD.index((0, SO[NA], 0)) if OPT['F3'] else -99
EA = OPT['F3'] and not OPT['EP']
assert FC <= FS - OPT['PBD'] or OPT['LDB']
pc_issue = poll('pc', sPA)
hf = [0]
cur = [None, 0]
def hload():
    f = hf[0]
    t, s, hh = LD[f]
    n = 3
    if f == FC - OPT['PCD'] and not OPT['LDC']:
        S('s_add_u32 %s, %s, %s', sPA, sPA, hex(WS_FC - WS_FA))
        pc_issue()
        n += 3
    if f == FC:
        A.wait_vm('pc')
        retry_loop('pc', pc_issue, p_check, 57)
        stamp('pcok')
        e('v_lshrrev_b32 %s, 1, %s' % (vr(vPF), vr(vPF)))
        n += 4
    if f == FS - OPT['PBD'] and not OPT['LDB']:
        pb_issue()
        n += 2
    if f == FS:
        A.wait_vm('pb')
        retry_loop('pb', pb_issue, p_check, 61)
        stamp('pbok')
        n += 3
    base = (sH2 if t else sH1) if s < 11 else (sP2 if t else sP1)
    off = (TOFF[s] if s < 11 else s - 11) * 2048 + hh * 1024
    cl = None
    if OPT['SWP'] & 1 and s < 8:
        cl, off = ('s_add_u32', sCB if s >> 2 else sCA), TOFF[s & 3] * 2048 + hh * 1024
    if OPT['SWP'] & 2 and s >= 11:
        cl, off = ('s_lshl1_add_u32', sCB if s >= 15 else sCA), off & 8191
    if off < 4096 and not cl:
        so = base
    else:
        so = sHC
        if cur[0] != (base, cl) or not 0 <= off - cur[1] < 4096:
            cur[0], cur[1] = (base, cl), off & ~2047 if cl else off
            if cl:
                S(cl[0] + ' %s, %s, %s', sHC, cl[1], base)
                n += 1
            if cur[1] or not cl:
                S('s_add_u32 %s, %s, %s', sHC, sHC if cl else base, str(cur[1]))
                n += 1
        off -= cur[1]
    A.vmem('buffer_load_dwordx4 %s, %s, %s, %s offen offset:%d%s' % (ar(RING + 4 * (f % NR), 4), vr(vL16), sr(dWS, 4), sr(so), off, '' if OPT['X'] & 16 else ' sc1'), 'h%d' % f)
    hf[0] += 1
    return n

RD, RES, PXR, pT, TB = 128, 192, 208, 224, 240
vOO, vRW, vRR, vRR2 = vGO, vCW, vCR, vSXR
TILE = 64 * 272
def coef_mul(T, R=RR, I=II):
    R, I = R + 4 * T, I + 4 * T
    for h in (0, 2):
        e('v_pk_mul_f32 %s, %s, %s' % (vr(ST + 8 + h, 2), vr(R + h, 2), vr(ST + 4 + h, 2)))
    for h in (0, 2):
        e('v_pk_mul_f32 %s, %s, %s' % (vr(R + h, 2), vr(R + h, 2), vr(ST + h, 2)))
    for h in (0, 2):
        e('v_pk_fma_f32 %s, %s, %s, %s %s' % (vr(R + h, 2), vr(I + h, 2), vr(ST + 4 + h, 2), vr(R + h, 2), NEG1))
    for h in (0, 2):
        e('v_pk_fma_f32 %s, %s, %s, %s' % (vr(I + h, 2), vr(I + h, 2), vr(ST + h, 2), vr(ST + 8 + h, 2)))
def xw_block(k):
    if OPT['XWP'] != k:
        return
    if OPT['XG']:
        D2.popD(2)
        print('XQ left', len(XQ.q))
        XQ.open.update(['x0', 'x1', 'x2'])
        XQ.flush()
        return
    for (c, f) in xw_addr():
        f()
    D2.popD(2)
    if OPT['CL'] == 3:
        A.wait_lg('kp')
        coef_mul(0, SE, SE + 4)
        coef_mul(0, K1, K1 + 4)
        for T in range(OPT['CLN']):
            coef_mul(T)
    fep(2)
    if OPT['XL']:
        A.wait_vm('W')
    xw_w2(range(min(11, OPT['XL'])))
    if OPT['XL'] == 12:
        xw_c(range(2 - OPT['DEF']))
def xw_w2(steps):
    for st in steps:
        for dh in range(2):
            for half in range(2):
                if (4 * st + 2 * dh + half) % OPT['DFI'] == OPT['DFI'] - 1:
                    D2.popD(1)
                if dh + half == 0:
                    fep(3 + st)
                    if EA and OPT['PAX'] == st:
                        pa_issue()
                    if OPT['LBX'] == st:
                        lb_issue()
                    fap(10 + st)
                if st == 0:
                    ad, off = AD, 0
                elif st <= 8:
                    ad, off = AD + 2, ((st - 1) // 4) * SLOT + ((st - 1) % 4) * 2048
                else:
                    ad, off = AD + 4 + 2 * (st - 9), 0
                A.ds('ds_read_b64_tr_b16 %s, %s offset:%d' % (ar(8 * st + 4 * dh + 2 * half, 2), vr(ad + dh), off + half * 512), 'xw')
def xw_c(parts):
    for part in parts:
        for sub in range(4):
            D2.popD(1)
            for dh in range(2):
                A.ds('ds_read_b128 %s, %s offset:%d' % (ar(8 * (11 + 2 * sub + part) + 4 * dh, 4), vr(vCA + sub), part * SLOT + dh * 4096), 'xw')
def fap(k):
    if OPT['FAP'] == k:
        A.wait_vm('HM')
        stamp('HMdone')
        flag(WS_FC if OPT['F3'] else WS_FA, 'fa')
        if OPT['PTOUCH'] & 1:
            e('v_lshlrev_b32 %s, 7, %s' % (vr(vCT), vr(vLO4)))
            e('v_lshl_add_u32 %s, %s, 12, %s' % (vr(vCT), vr(vG), vr(vCT)))
            S('s_mov_b32 exec_hi, %s', sF1)
            A.vmem('buffer_load_dword %s, %s, %s, %s offen sc1' % (vr(vSCR), vr(vCT), sr(dWS, 4), sr(sHM)), 'touch')
            e('s_mov_b32 exec_hi, -1')
        stamp('fa')
if EA:
    late_scalars()
xw_block(0)
if not EA and not OPT['LSP']:
    late_scalars()
if EA and OPT['PAX'] == 11:
    pa_issue()
if OPT['LBX'] == 11:
    lb_issue()
print('deferred left', len(D2.q))
D2.flush()
def ea_start():
    A.wait_vm('pa')
    stamp('pa1')
    retry_loop('pa', pa_issue, p_check, 60)
    stamp('paok')
    S('s_add_u32 %s, %s, %s', sPA, sPA, hex(WS_FC - WS_FA))
    DQ.add([('D', hload)] * min(FC, OPT['NE']))
    DQ.popD(OPT['N0'])
    AUTO.update(on=True, int=OPT['AI'], nxt=AUTO['t'] + OPT['AI'])
if EA and OPT['PAP'] == -3:
    ea_start()
    auto(False)
if OPT['CL'] == 2:
    A.wait_lg('kp')
    for T in range(4):
        coef_mul(T)
page('lb')
A.wait_vm('lb')
stamp('lb1')
fap(0)
retry_loop('lb', lb_issue, lb_check, 59)
stamp('Sgot')
if EA and OPT['PAX'] == 12:
    pa_issue()
if OPT['DP']:
    DQ.q += D3.q
    DQ.popD(OPT['DPN'])
    AUTO.update(on=True, int=OPT['AI'], nxt=AUTO['t'] + OPT['AI'])
if EA and OPT['PAP'] == -1:
    ea_start()
if EA and OPT['PAP'] == -3:
    auto(True)
if OPT['EP'] and OPT['PAP'] == -1:
    pa_issue()
for i in range(4):
    e('v_cndmask_b32 %s, 0, %s, %s' % (vr(vQ + 4 * i), vr(vQ + 4 * i), sr(sMSK[i], 2)))
    e('v_cndmask_b32 %s, 0, %s, %s' % (vr(vQ + 4 * i + 1), vr(vQ + 4 * i + 1), sr(sMSK[i], 2)))
for i in (2, 1, 0):
    cfma(vQ + 4 * i, vQ + 4 * i + 1, vQ + 4 * i + 4, vQ + 4 * i + 5, L512, L512 + 1, vQ + 4 * i, vQ + 4 * i + 1)
hr, hi_, h2, h3 = vQ + 4, vQ + 5, vQ + 6, vQ + 7
cmul(hr, hi_, vQ, vQ + 1, P128, P128 + 1)
for sw in ('v_permlane16_swap_b32', 'v_permlane32_swap_b32'):
    e('v_mov_b32 %s, %s' % (vr(h2), vr(hr)))
    e('v_mov_b32 %s, %s' % (vr(h3), vr(hi_)))
    e('%s %s, %s' % (sw, vr(hr), vr(h2)))
    e('%s %s, %s' % (sw, vr(hi_), vr(h3)))
    e('v_add_f32 %s, %s, %s' % (vr(hr), vr(hr), vr(h2)))
    e('v_add_f32 %s, %s, %s' % (vr(hi_), vr(hi_), vr(h3)))
auto(False)
A.wait_lg('s0')
lab = newlab('t0')
S('s_cmp_eq_u32 %s, 0', sTH)
e('s_cbranch_scc1 %s' % lab)
cfma(S0, S0 + 1, hr, hi_, L64, L64 + 1, S0, S0 + 1)
e('v_mov_b32 %s, %s' % (vr(hr), vr(S0)))
e('v_mov_b32 %s, %s' % (vr(hi_), vr(S0 + 1)))
A.label(lab)
A.ds('ds_write2_b32 %s, %s, %s offset0:32 offset1:48' % (vr(vSXW), vr(hr), vr(hi_)), 'cy')
A.ds('ds_read_b128 %s, %s offset:128' % (vr(SA, 4), vr(vCR)), 'cy')
A.ds('ds_read_b128 %s, %s offset:192' % (vr(SA + 4, 4), vr(vCR)), 'cy')
fap(1)
if OPT['CL'] == 3:
    for T in range(OPT['CLN'], 4):
        coef_mul(T)
if OPT['EP'] and OPT['PAP'] == -2:
    pa_issue()
if EA and OPT['PAP'] == -2:
    ea_start()
A.wait_lg0()
if EA and OPT['PAP'] < 0 or OPT['DP']:
    auto(True)
pk_cfma4(SE, SE + 4, SA, SA + 4, K1, SE, SE + 4)
if OPT['CL'] == 2:
    coef_mul(0, SE, SE + 4)
for hh in range(2):
    for T in (2 * hh, 2 * hh + 1):
        pk_cfma4(RR + 4 * T, II + 4 * T, SE, SE + 4, KP[T], RR + 4 * T, II + 4 * T)
        if OPT['CL'] == 1:
            coef_mul(T)
    for part in range(2):
        o = vQ + 8 * hh + 4 * part
        b = ACC + 16 * part + 8 * hh
        ng = '-' if part else ''
        for i in range(4):
            e('v_cvt_pk_bf16_f32 %s, %s%s, %s%s' % (vr(o + i), ng, vr(b + 2 * i), ng, vr(b + 2 * i + 1)))
    if OPT['EP'] and OPT['PAP'] == hh:
        pa_issue()
    if (EA and OPT['PAP'] < 0 or OPT['DP']) and hh == 0:
        print('early loads left at the first HS store', len(DQ.q))
        DQ.flush()
        if OPT['DP']:
            auto(False)
    for part in range(2):
        o = vQ + 8 * hh + 4 * part
        e('v_permlane16_swap_b32 %s, %s' % (vr(o), vr(o + 2)))
        e('v_permlane16_swap_b32 %s, %s' % (vr(o + 1), vr(o + 3)))
        A.vmem('buffer_store_dwordx4 %s, %s, %s, %s offen offset:%d sc1' % (vr(o, 4), vr(vL16), sr(dWS, 4), sr(sHS), 2048 * part + 1024 * hh), 'HS')
if OPT['EP'] and OPT['PAP'] == 2:
    pa_issue()
stamp('epi')
if EA and OPT['PAP'] >= 0:
    ea_start()

xw_block(1)
if OPT['LSP']:
    late_scalars()
eX, eS, eD = 128, 136, 140
fD, fB, fU, fM = 144, 148, 152, 156
def res_pre():
    A.wait_vm('res')
    for i in range(16):
        e('v_accvgpr_read_b32 %s, a%d' % (vr(eX + [0, 1, 2, 3, 4, 5, 6, 7, 12, 13, 14, 15, 8, 9, 10, 11][i]), 240 + i))
    for (dst, src) in ((fD, eD), (fB, eD + 2)):
        for hh in range(2):
            e('v_lshlrev_b32 %s, 16, %s' % (vr(dst + 2 * hh), vr(src + hh)))
            e('v_and_b32 %s, 0xffff0000, %s' % (vr(dst + 2 * hh + 1), vr(src + hh)))
def res_q(q):
    r = RES + 4 * q
    e('v_and_b32 %s, 0xffff0000, %s' % (vr(fM + 1), vr(eS + q)))
    e('v_lshlrev_b32 %s, 16, %s' % (vr(fM), vr(eS + q)))
    e('v_rcp_f32 %s, %s' % (vr(fM + 1), vr(fM + 1)))
    for hh in range(2):
        e('v_lshlrev_b32 %s, 16, %s' % (vr(r + 2 * hh), vr(eX + 2 * q + hh)))
        e('v_and_b32 %s, 0xffff0000, %s' % (vr(r + 2 * hh + 1), vr(eX + 2 * q + hh)))
    def rnd4():
        e('v_cvt_pk_bf16_f32 %s, %s, %s' % (vr(fU + 1), vr(fU), vr(fU + 1)))
        e('v_cvt_pk_bf16_f32 %s, %s, %s' % (vr(fU + 3), vr(fU + 2), vr(fU + 3)))
        e('v_lshlrev_b32 %s, 16, %s' % (vr(fU), vr(fU + 1)))
        e('v_lshlrev_b32 %s, 16, %s' % (vr(fU + 2), vr(fU + 3)))
        e('v_and_b32 %s, 0xffff0000, %s' % (vr(fU + 1), vr(fU + 1)))
        e('v_and_b32 %s, 0xffff0000, %s' % (vr(fU + 3), vr(fU + 3)))
    for hh in range(2):
        e('v_pk_add_f32 %s, %s, %s op_sel:[0,0] op_sel_hi:[1,0] neg_lo:[0,1] neg_hi:[0,1]' % (vr(fU + 2 * hh, 2), vr(r + 2 * hh, 2), vr(fM, 2)))
    rnd4()
    for hh in range(2):
        e('v_pk_mul_f32 %s, %s, %s op_sel:[0,1] op_sel_hi:[1,1]' % (vr(fU + 2 * hh, 2), vr(fU + 2 * hh, 2), vr(fM, 2)))
    rnd4()
    for hh in range(2):
        e('v_pk_mul_f32 %s, %s, %s' % (vr(fU + 2 * hh, 2), vr(fU + 2 * hh, 2), vr(fD + 2 * hh, 2)))
    rnd4()
    for hh in range(2):
        e('v_pk_add_f32 %s, %s, %s' % (vr(r + 2 * hh, 2), vr(r + 2 * hh, 2), vr(fU + 2 * hh, 2)))
    for hh in range(2):
        e('v_pk_add_f32 %s, %s, %s' % (vr(r + 2 * hh, 2), vr(r + 2 * hh, 2), vr(fB + 2 * hh, 2)))

F2 = Q()
e('v_lshrrev_b32 %s, 3, %s' % (vr(vRR), vr(vLO4)))
e('v_lshlrev_b32 %s, 12, %s' % (vr(vRR), vr(vRR)))
e('v_lshl_add_u32 %s, %s, 8, %s' % (vr(vRR), vr(vHI5), vr(vRR)))
e('v_and_b32 %s, 0x17, %s' % (vr(vRR2), vr(vLANE)))
e('v_and_b32 %s, 7, %s' % (vr(vRW), vr(vLANE)))
e('v_add_u32 %s, %s, %s' % (vr(vRR2), vr(vRR2), vr(vRW)))
e('v_lshl_add_u32 %s, %s, 3, %s' % (vr(vRR), vr(vRR2), vr(vRR)))
S('s_lshl_b32 %s, %s, 9', sT0, sW)
e('v_add_u32 %s, %s, %s' % (vr(vRR), sr(sT0), vr(vRR)))
e('v_add_u32 %s, 0x10000, %s' % (vr(vRR2), vr(vRR)))
S('s_lshl_b32 m0, %s, 14', sW)
if OPT['PH']:
    S('s_mov_b32 %s, 0x10001', sBM)
    S('s_mul_i32 %s, %s, 0x9e3779b1', sT0, sTAG)
    e('v_and_b32 %s, 3, %s' % (vr(TB), vr(vLANE)))
    e('v_lshlrev_b32 %s, 3, %s' % (vr(TB), vr(TB)))
    e('v_lshrrev_b32 %s, %s, %s' % (vr(TB), vr(TB), sr(sT0)))
    e('v_and_b32 %s, 0xff, %s' % (vr(TB), vr(TB)))
    e('v_lshl_or_b32 %s, %s, 12, %s' % (vr(TB), vr(TB), vr(TB)))
    for i in (3, 2, 1):
        e('v_lshrrev_b32 %s, %d, %s' % (vr(TB + i), i, vr(TB)))
    for i in range(4):
        e('v_and_b32 %s, %s, %s' % (vr(TB + i), sr(sBM), vr(TB + i)))
else:
    S('s_movk_i32 %s, 0xff', sBM)
    for i in range(4):
        e('v_bfe_u32 %s, %s, %d, 8' % (vr(TB + i), vr(vTAG), 8 * i))
if OPT['EP']:
    if OPT['PAP'] == 3:
        pa_issue()
    res_pre()
    if OPT['PAP'] == 4:
        pa_issue()
    for q in range(OPT['R0']):
        res_q(q)
    stamp('r0')
    A.wait_vm('pa')
    stamp('pa1')
    retry_loop('pa', pa_issue, p_check, 60, after=lambda: flag(WS_FB, 'fb'))
    stamp('paok')
    DQ.add([('D', hload)] * OPT['NPRE'])
    DQ.popD(OPT['N0'])
    AUTO.update(on=True, int=OPT['HI2'], nxt=AUTO['t'] + OPT['HI2'])
    for q in range(OPT['R0'], OPT['R1']):
        res_q(q)
    auto(False)
    stamp('r1')
    A.wait_vm('HS')
    stamp('HSdone')
    flag(WS_FB, 'fb')
    auto(True)
    for q in range(OPT['R1'], 4):
        res_q(q)
    e('v_lshlrev_b32 %s, 1, %s' % (vr(vOO), vr(vXO)))
    auto(False)
    print('H loads left after the residual', len(DQ.q))
    DQ.flush()
    if OPT['XL'] < 12:
        xw_w2(range(OPT['XL'], 11))
        xw_c(range(2))
        A.wait_lg0()
    stamp('res')
else:
    if OPT['RQ'] == -1:
        pa_issue()
    if OPT['DEF'] and OPT['XL'] == 12:
        A.wait_vm('Wd')
        xw_c(range(2 - OPT['DEF'], 2))
    res_pre()
    if OPT['XL'] == 12:
        A.wait_lg0()
        stamp('xw')
        e('s_barrier')
        stamp('bx')
    for q in range(5):
        if q == OPT['RQ']:
            if EA:
                print('early loads left', len(DQ.q))
                DQ.flush()
                auto(False)
            (pc_issue if EA else pa_issue)()
        if q < 4:
            res_q(q)
    e('v_lshlrev_b32 %s, 1, %s' % (vr(vOO), vr(vXO)))
    stamp('res')
    A.wait_vm('HS')
    stamp('HSdone')
    flag(WS_FB, 'fb')
    def hs_touch():
        e('v_lshlrev_b32 %s, 5, %s' % (vr(vCT), vr(vTM)))
        e('s_mov_b32 exec_hi, 0')
        A.vmem('buffer_load_dword %s, %s, %s, %s offen sc1' % (vr(vSCR), vr(vCT), sr(dWS, 4), sr(sHS)), 'touch')
        e('s_mov_b32 exec_hi, -1')
    if OPT['PTOUCH'] & 2:
        hs_touch()
    stamp('fb')
    page('pa')
    if not EA:
        A.wait_vm('pa')
        stamp('pa1')
        retry_loop('pa', pa_issue, p_check, 60)
        stamp('paok')
        for i in range(OPT['NPRE']):
            hload()
        if OPT['XL'] < 12:
            A.wait_vm(['W', 'Wd'])
            xw_w2(range(OPT['XL'], 11))
            xw_c(range(2))
            A.wait_lg0()
    if OPT['PTOUCH'] & 4:
        hs_touch()
if not OPT['F3']:
    e('v_lshrrev_b32 %s, 1, %s' % (vr(vPF), vr(vPF)))
assert (OPT['NPRE'] <= FS - OPT['PBD'] or OPT['LDB']) and (hf[0] <= FC - OPT['PCD'] or not OPT['F3'] or OPT['LDC'])
M1 = 16320
def red_write(t, k):
    A.ds('ds_write_addtid_b32 %s offset:%d' % (vr(64 * t + k), t * (65536 - M1) + 256 * k), 'rw')
def red_read(t, q, part):
    A.ds('ds_read_b128 %s, %s offset:%d' % (vr(RD + 16 * q + 4 * part, 4), vr(vRR2 if t else vRR), part * 16384 + (q >> 1) * 8192 + (q & 1) * 2048), 'rr%d' % q)
def px_issue():
    for k in range(2 if OPT['PH'] else 4):
        A.vmem('buffer_load_dwordx4 %s, %s, %s, %s offen offset:%d sc1' % (vr(PXR + 4 * k, 4), vr(vL16), sr(dWS, 4), sr(sPX), k * 1024), 'px')
def px_check():
    if OPT['PH']:
        for k in range(8):
            e('v_xor_b32 %s, %s, %s' % (vr(PXR + k), vr(TB + (k & 3)), vr(PXR + k)))
        e('v_or3_b32 %s, %s, %s, %s' % (vr(pT), vr(PXR), vr(PXR + 1), vr(PXR + 2)))
        e('v_or3_b32 %s, %s, %s, %s' % (vr(pT + 1), vr(PXR + 3), vr(PXR + 4), vr(PXR + 5)))
        e('v_or3_b32 %s, %s, %s, %s' % (vr(pT), vr(pT), vr(PXR + 6), vr(PXR + 7)))
        e('v_or_b32 %s, %s, %s' % (vr(pT), vr(pT), vr(pT + 1)))
        e('v_and_b32 %s, %s, %s' % (vr(pT), sr(sBM), vr(pT)))
        e('v_cmp_ne_u32 vcc, 0, %s' % vr(pT))
        return
    for k in range(16):
        e('v_xor_b32 %s, %s, %s' % (vr(PXR + k), vr(TB + (k & 3)), vr(PXR + k)))
    for k in range(4):
        e('v_or3_b32 %s, %s, %s, %s' % (vr(pT + k), vr(PXR + 4 * k), vr(PXR + 4 * k + 1), vr(PXR + 4 * k + 2)))
    e('v_or3_b32 %s, %s, %s, %s' % (vr(pT), vr(pT), vr(PXR + 3), vr(PXR + 7)))
    e('v_or3_b32 %s, %s, %s, %s' % (vr(pT + 1), vr(pT + 1), vr(PXR + 11), vr(PXR + 15)))
    e('v_or3_b32 %s, %s, %s, %s' % (vr(pT), vr(pT), vr(pT + 2), vr(pT + 3)))
    e('v_or_b32 %s, %s, %s' % (vr(pT), vr(pT), vr(pT + 1)))
    e('v_and_b32 %s, %s, %s' % (vr(pT), sr(sBM), vr(pT)))
    e('v_cmp_ne_u32 vcc, 0, %s' % vr(pT))
def al_issue(opt=True):
    e('v_lshlrev_b32 v8, 7, %s' % vr(vLANE))
    for i in range(4):
        S('s_mov_b32 %s, %s', sT0, hex(WS_G + 8192 * i))
        A.vmem('buffer_load_dword v%d, v8, %s, %s offen offset:12 sc1' % (i, sr(dWS, 4), sr(sT0)), 'alp', opt=opt)
def al_check():
    for i in range(4):
        e('v_xor_b32 v%d, %s, v%d' % (4 + i, sr(sTAG), i))
    e('v_or3_b32 v4, v4, v5, v6')
    e('v_or_b32 v4, v4, v7')
    e('v_cmp_ne_u32 vcc, 0, v4')

left = [2] * 76
last = {}
for n, (f, dh) in enumerate(MF):
    last[(LD[f][0], LD[f][2], dh)] = n
clk = [0, -4 * OPT['HINT']]
seen = set()
for n, (f, dh) in enumerate(MF):
    t, s, hh = LD[f]
    for (tq_, hq, dq), m in sorted(last.items()):
        if n == m + 2:
            o = Ops()
            if (tq_, hq, dq) == (1, 0, 0):
                o.s('s_add_u32 m0, m0, %d' % M1)
            for k in range(16):
                o.f(lambda k=k, tq_=tq_, hq=hq, dq=dq: red_write(tq_, 32 * hq + 16 * dq + k), OPT['WC'])
            F2.add(o)
            if dq == 0 or (tq_, hq) == (1, 1) or (hq == 0 and not OPT['FIN1' if tq_ else 'FINE']):
                continue
            qs = (0, 1) if hq == 0 else (2, 3) if OPT['FINE'] else range(4)
            o = Ops()
            def bar1(nm='bar%d%d' % (tq_, hq)):
                A.wait_lg0()
                e('s_barrier')
                stamp('bar1' if nm == 'bar01' else nm)
            o.f(lambda: None, OPT['BW'])
            o.f(bar1, 4)
            for q in qs:
                for part in range(4):
                    o.f(lambda q=q, part=part, tq_=tq_: red_read(tq_, q, part), 2)
            for q in qs:
                o.f(lambda q=q: A.wait_lg('rr%d' % q))
                b = RD + 16 * q
                for i in range(4):
                    o.v('v_add_f32 %s, %s, %s' % (vr(b + i), vr(b + i), vr(b + 4 + i)))
                for i in range(4):
                    o.v('v_add_f32 %s, %s, %s' % (vr(b + 8 + i), vr(b + 8 + i), vr(b + 12 + i)))
                if tq_:
                    for i in range(8):
                        o.v('v_add_f32 %s, %s, %s' % (vr(RES + 4 * q + (i & 3)), vr(RES + 4 * q + (i & 3)), vr(b + 2 * (i & 4) + (i & 3))))
                    continue
                for i in range(4):
                    o.v('v_add_f32 %s, %s, %s' % (vr(b + i), vr(b + i), vr(b + 8 + i)))
                if OPT['PH']:
                    g = RD + 32 * (q >> 1) + 4
                    for i in range(2):
                        o.v('v_cvt_pk_f16_f32 %s, %s, %s' % (vr(g + 2 * (q & 1) + i), vr(b + 2 * i), vr(b + 2 * i + 1)))
                    for i in range(2):
                        k = 2 * (q & 1) + i
                        o.v('v_bfi_b32 %s, %s, %s, %s' % (vr(g + k), sr(sBM), vr(TB + k), vr(g + k)))
                    if q & 1:
                        o.f(lambda q=q, g=g: A.vmem('buffer_store_dwordx4 %s, %s, %s, %s offen offset:%d sc1' % (vr(g, 4), vr(vL16), sr(dWS, 4), sr(sPX), (q >> 1) * 1024), 'pxs'), 4)
                    continue
                for i in range(4):
                    o.v('v_bfi_b32 %s, %s, %s, %s' % (vr(b + i), sr(sBM), vr(TB + i), vr(b + i)))
                o.f(lambda q=q, b=b: A.vmem('buffer_store_dwordx4 %s, %s, %s, %s offen offset:%d sc1' % (vr(b, 4), vr(vL16), sr(dWS, 4), sr(sPX), q * 1024), 'pxs'), 4)
                o.f(lambda: print(' px store at step', clk[2] / 4, 'loads issued', hf[0]), 0)
            if (tq_, hq) == (0, 1):
                o.s('s_xor_b32 %s, %s, %s', sPX, sPX, '0x2000' if OPT['PH'] else '0x4000')
                o.f(lambda: (stamp('pxs'), seen.add('pxs'), print('px stores done at step', clk[2] / 4, 'loads issued', hf[0])), 0)
            F2.add(o)
    clk[2:] = [n]
    if (OPT['EP'] or OPT['XL'] < 12) and n == 4 * OPT['BXP']:
        assert DSN.get('rw', 0) == 0
        e('s_barrier')
    if n == 4 * OPT['WB']:
        lab = newlab('wb')
        S('s_and_b32 %s, %s, %s', sT0, sGW, ['3', '0x3e3', '0x63'][OPT['WBM']])
        S('s_cmp_lg_u32 %s, 1', sT0)
        e('s_cbranch_scc1 %s' % lab)
        A.vmem('buffer_wbl2 sc1', 'wb', opt=True)
        A.label(lab)
    if n == OPT['OTP']:
        e('v_and_b32 %s, 3, %s' % (vr(pT), vr(vLANE)))
        e('v_lshl_add_u32 %s, %s, 11, %s' % (vr(pT), vr(pT), vr(vOO)))
        e('s_mov_b32 exec_lo, 0x0f0f0f0f')
        e('s_mov_b32 exec_hi, 0x0f0f0f0f')
        A.vmem('buffer_load_dword %s, %s, %s, 0 offen' % (vr(vSCR), vr(pT), sr(dO, 4)), 'touch')
        e('s_mov_b64 exec, -1')
    if n == 4 * OPT['PXPOS']:
        assert 'pxs' in seen
        px_issue()
    if n == 4 * min(37, OPT['PXPOS']):
        lab = newlab('nal')
        S('s_cmp_lg_u32 %s, 3', sGW)
        e('s_cbranch_scc1 %s' % lab)
        al_issue()
        A.label(lab)
    u = 0
    if n % 4 == 0:
        page('hH' if n == 4 * OPT['PGH'] else 'h%d' % (n // 4))
    if f not in seen:
        assert hf[0] > f
        A.wait_vm('h%d' % f)
        seen.add(f)
    if n // 4 in HST and n % 4 == 0:
        stamp('h%d' % (n // 4))
    acc = vr(64 * t + 32 * hh + 16 * dh, 16)
    def m16(k):
        acc = vr(64 * t + 32 * hh + 16 * dh + 8 * (s & 1) + 4 * k, 4)
        e('v_mfma_f32_16x16x32_bf16 %s, %s, %s, %s' % (acc, ar(RING + 4 * (f % NR), 4), ar(8 * s + 4 * (dh ^ k), 4), acc if s > 1 else '0'))
    if OPT['X'] & 256:
        m16(0)
    elif not OPT['X'] & 8:
        e('v_mfma_f32_32x32x16_bf16 %s, %s, %s, %s' % (acc, ar(RING + 4 * (f % NR), 4), ar(8 * s + 4 * dh, 4), acc if s != SO[0] else '0'))
    left[f] -= 1
    if n + 1 < len(MF) and MF[n + 1][0] not in seen:
        u = 1
    if OPT['LDC'] and not EA and n == max(0, 2 * (FC - OPT['LDC'] - OPT['PCM'])):
        assert hf[0] <= FC
        S('s_add_u32 %s, %s, %s', sPA, sPA, hex(WS_FC - WS_FA))
        pc_issue()
        u += 3
    if OPT['LDB'] and n == 2 * (FS - OPT['LDB'] - OPT['PBM']):
        assert FC < hf[0] <= FS, (FC, hf[0], FS)
        pb_issue()
        u += 2
    held = n < OPT['HOLD'] or (OPT['LDC'] and hf[0] == FC and n < 2 * (FC - OPT['LDC'])) or (OPT['LDB'] and hf[0] == FS and n < 2 * (FS - OPT['LDB']))
    if held:
        clk[1] = max(clk[1], clk[0] - OPT['CU'] * OPT['HINT'])
    elif hf[0] < 76 and (hf[0] < NR or left[hf[0] - NR] == 0) and clk[0] >= clk[1]:
        u += hload()
        clk[1] += OPT['HINT']
    if OPT['X'] & 256:
        while F2.ready() and (u + F2.cost() <= OPT['RPOP'] // 2):
            u += F2.cost()
            F2.pop1()
        m16(1)
    while F2.ready() and (u + F2.cost() <= OPT['RPOP'] or u <= 1):
        u += F2.cost()
        F2.pop1()
    clk[0] += max(32, (16 if OPT['X'] & 256 else 8) + 4 * u)
assert hf[0] == 76
stamp('mfma2')
if OPT['PXPOS'] == 38:
    px_issue()
print('F2 left', len(F2.q))
F2.flush()
for key, m in sorted(last.items()):
    if m + 2 >= len(MF):
        assert key != (1, 0, 0)
        for k in range(16):
            red_write(1, 32 * key[1] + 16 * key[2] + k)
A.wait_lg0()
e('s_barrier')
stamp('bar2')
if OPT['PXPOS'] == 39:
    px_issue()
Q1 = range(2 if OPT['FIN1'] else 0, 4)
for q in Q1:
    for part in range(4):
        red_read(1, q, part)
if OPT['PXPOS'] == 40:
    A.wait_vm('pxs')
    stamp('pxack')
    px_issue()
def own_sum(q):
    A.wait_lg('rr%d' % q)
    b, r = RD + 16 * q, RES + 4 * q
    for h in (0, 2):
        e('v_pk_add_f32 %s, %s, %s' % (vr(b + h, 2), vr(b + h, 2), vr(b + 4 + h, 2)))
        e('v_pk_add_f32 %s, %s, %s' % (vr(b + 8 + h, 2), vr(b + 8 + h, 2), vr(b + 12 + h, 2)))
    for h in (0, 2):
        e('v_pk_add_f32 %s, %s, %s' % (vr(r + h, 2), vr(r + h, 2), vr(b + h, 2)))
    for h in (0, 2):
        e('v_pk_add_f32 %s, %s, %s' % (vr(r + h, 2), vr(r + h, 2), vr(b + 8 + h, 2)))
def px_add(q):
    r = RES + 4 * q
    for h in (0, 2):
        if OPT['PH']:
            for lo in range(2):
                e('v_fma_mix_f32 %s, %s, 1.0, %s op_sel:[%d,0,0] op_sel_hi:[1,0,0]' % (vr(r + h + lo), vr(PXR + 2 * q + h // 2), vr(r + h + lo), lo))
        else:
            e('v_pk_add_f32 %s, %s, %s' % (vr(r + h, 2), vr(r + h, 2), vr(PXR + 4 * q + h, 2)))
def out_store(q):
    if q == 2:
        S('s_movk_i32 %s, 4096', sT0)
    A.vmem('buffer_store_dwordx4 %s, %s, %s, %s offen offset:%d%s' % (vr(RES + 4 * q, 4), vr(vOO), sr(dO, 4), sr(sT0) if q > 1 else '0', (q & 1) * 2048, ['', ' sc1', ' nt', ' sc0 sc1'][OPT['OUTSC']]), 'out')
NE = [4, 0, 2][OPT['PXE']]
for q in Q1:
    if q < NE:
        own_sum(q)
A.wait_vm('px')
stamp('px1')
retry_loop('px', px_issue, px_check, 62)
stamp('pxok')
for q in range(4):
    px_add(q)
    if q < NE or q not in Q1:
        out_store(q)
for q in Q1:
    if q >= NE:
        own_sum(q)
        out_store(q)
lab = newlab('nep')
S('s_cmp_lg_u32 %s, 3', sGW)
e('s_cbranch_scc1 %s' % lab)
A.wait_vm('alp')
retry_loop('al', al_issue, al_check, 63)
one_lane_store(8, '0', 'ep')
A.label(lab)
if PROF:
    stamp('stored')
    e('s_waitcnt vmcnt(0)')
    stamp('drained')
    stamp('rt1', True)
    A.wait_lg0()
    e('v_lshlrev_b32 v16, 2, %s' % vr(vLANE))
    if DBGT and os.environ.get('AMP'):
        x0, x1 = os.environ['AMP'].split('-')
        e('v_readlane_b32 s40, %s, %d' % (vr(vSTAMP), SNAMES[x0]))
        e('v_readlane_b32 s41, %s, %d' % (vr(vSTAMP), SNAMES[x1]))
        e('v_readlane_b32 s42, %s, %d' % (vr(vSTAMP), SNAMES['drained']))
        e('s_nop 4')
        e('s_sub_u32 s40, s41, s40')
        e('s_lshl_b32 s40, s40, 2')
        e('s_min_u32 s40, s40, 20000')
        e('s_mov_b32 s43, 0')
        A.label('L_amp')
        e('s_memrealtime s[44:45]')
        e('s_waitcnt lgkmcnt(0)')
        e('s_add_u32 s43, s43, 1')
        e('s_cmp_gt_u32 s43, 0x4000')
        e('s_cbranch_scc1 L_ampd')
        e('s_sub_u32 s44, s44, s42')
        e('s_cmp_lt_u32 s44, s40')
        e('s_cbranch_scc1 L_amp')
        A.label('L_ampd')
    elif DBGT:
        e('s_load_dwordx2 s[40:41], s[0:1], 120')
        e('v_not_b32 v17, %s' % vr(vSTAMP))
        e('v_cmp_eq_u32 vcc, 0, %s' % vr(vLANE))
        e('s_nop 1')
        e('v_cndmask_b32 v17, %s, v17, vcc' % vr(vSTAMP))
        e('s_waitcnt lgkmcnt(0)')
        e('s_mov_b64 exec, 0xffff')
        e('global_atomic_umax v16, v17, s[40:41] sc1')
        e('s_mov_b64 exec, -1')
    S('s_lshl_b32 %s, %s, 8', sT0, sGW)
    S('s_add_u32 %s, %s, %s', sT0, sT0, hex(WS_PROF))
    e('buffer_store_dword %s, v16, %s, %s offen' % (vr(vSTAMP), sr(dWS, 4), sr(sT0)))
    json.dump(SNAMES, open(OUT + '.names', 'w'))
A.label('L_end')
e('s_endpgm')

body, nops = hazard_pass(A.lines)
if OPT['PG'] & 8:
    body, n1, n2, tot = stub_pass(body, 0x300, 2, 4, OPT['AL'])
    print('alignment: nops', n1, 'widened', n2, 'cost', tot)
elif OPT['AL']:
    body, n1, n2, tot = align_pass(body, OPT['AL'])
    print('alignment: nops', n1, 'widened', n2, 'cost', tot)
head = open('cdna_kernels/%s.s.ref' % NAME).read().split('; Override launch')[0]
txt = head + '; @launch grid=(256,1,1) block=(256,1,1) lds=%d\n' % LDS_BYTES
txt += '''.amdgcn_target "amdgcn-amd-amdhsa--gfx950"
.text
.globl %s_kernel
.p2align %d
.type %s_kernel,@function
%s_kernel:
''' % (NAME, 12 if OPT['PG'] & 1 else 8, NAME, NAME)
txt += '\n'.join(body) + '\n'
txt += '''.section .rodata,"a"
.p2align 6
.amdhsa_kernel %s_kernel
  .amdhsa_next_free_vgpr 512
  .amdhsa_next_free_sgpr 102
  .amdhsa_accum_offset 256
  .amdhsa_group_segment_fixed_size 0
  .amdhsa_kernarg_size 136
  .amdhsa_user_sgpr_count 2
  .amdhsa_user_sgpr_kernarg_segment_ptr 1
  .amdhsa_system_sgpr_workgroup_id_x 1
.end_amdhsa_kernel
''' % NAME
open(OUT, 'w').write(txt)
print('wrote', OUT, 'lines', len(body), 'nops', nops)
```
